```python
import torch

def _softmax(x, axis=-1):
    return torch.softmax(x, dim=axis)
def _gelu(x):
    return torch.nn.functional.gelu(x, approximate="tanh")
def _silu(x):
    return torch.nn.functional.silu(x)
def _sigmoid(x):
    return torch.sigmoid(x)
def _layernorm(x, axis=-1, eps=1e-5):
    m = x.mean(dim=axis, keepdim=True)
    v = x.var(dim=axis, keepdim=True, unbiased=False)
    return (x - m) / torch.sqrt(v + eps)
def _scatter_add(tgt, idx, src, axis=0):
    return tgt.clone().index_add_(axis, idx, src)
def _segment_sum(src, seg, n):
    out = torch.zeros((n,) + src.shape[1:], dtype=src.dtype)
    return out.index_add_(0, seg, src)
def _pad(x, pw):
    flat = tuple(v for pair in reversed(pw) for v in pair)
    return torch.nn.functional.pad(x, flat)

kernel_name = 'standalone__mpnn_edge_mlp__graph'

def setup_inputs():

    _w = (lambda a: (lambda t: t.to(torch.bfloat16) if t.is_floating_point() else t)(torch.as_tensor(a)))
    N, deg, D, De = 25000, 32, 64, max(0, 1)
    E = N * deg
    return {
        "x": _w((lambda *s: torch.randn(*s, dtype=torch.bfloat16) * 0.05)(N, D)),
        "e_attr": _w((lambda *s: torch.randn(*s, dtype=torch.bfloat16) * 0.4)(E, De)),
        "src": _w((lambda lo, hi, *s: torch.randint(lo, hi, s))(0, N, E).to(torch.int64)),
        "dst": _w((lambda lo, hi, *s: torch.randint(lo, hi, s))(0, N, E).to(torch.int64)),
        "w_msg": _w((lambda *s: torch.randn(*s, dtype=torch.bfloat16) * 0.4)(2 * D + De, D)),
        "w_upd": _w((lambda *s: torch.randn(*s, dtype=torch.bfloat16) * 0.05)(2 * D, D)),
    }

def reference(x, e_attr, src, dst, w_msg, w_upd):
    N, D = x.shape
    m_in = torch.concatenate([x[src], x[dst], e_attr], axis=-1)
    msg = _silu(m_in @ w_msg)
    agg = _segment_sum(msg, dst, N)
    return _silu(torch.concatenate([x, agg], axis=-1) @ w_upd)
```

```python
import re

TRANS = ("v_exp_f32", "v_rcp_f32", "v_log_f32", "v_rsq_f32", "v_sqrt_f32", "v_rcp_iflag_f32")

def regs_of(tok):
    t = tok.strip()
    neg = t.startswith("-")
    if neg: t = t[1:]
    m = re.match(r"^abs\((.*)\)$", t) or re.match(r"^\|(.*)\|$", t)
    if m: t = m.group(1)
    m = re.match(r"^([vsa])(\d+)$", t)
    if m: return {(m.group(1), int(m.group(2)))}
    m = re.match(r"^([vsa])\[(\d+):(\d+)\]$", t)
    if m: return {(m.group(1), i) for i in range(int(m.group(2)), int(m.group(3)) + 1)}
    if t in ("vcc", "vcc_lo", "vcc_hi"): return {("x", "vcc")}
    if t in ("exec", "exec_lo", "exec_hi"): return {("x", "exec")}
    if t == "m0": return {("x", "m0")}
    return set()

class Ins:
    def __init__(self, text):
        self.text = text
        t = text.split(";")[0].strip()
        self.label = None; self.op = None
        if t.endswith(":"):
            self.label = t[:-1]; return
        if not t or t.startswith("."):
            return
        parts = t.split(None, 1)
        self.op = parts[0]
        rest = parts[1] if len(parts) > 1 else ""
        ops = []; depth = 0; cur = ""
        for ch in rest:
            if ch in "[(": depth += 1
            if ch in "])": depth -= 1
            if ch == "," and depth == 0: ops.append(cur.strip()); cur = ""
            else: cur += ch
        if cur.strip(): ops.append(cur.strip())
        self.mods = ""
        if ops:
            sp = ops[-1].split(None, 1)
            ops[-1] = sp[0]
            if len(sp) > 1: self.mods = sp[1]
        self.ops = ops
        op = self.op
        self.kind = ("mfma" if op.startswith(("v_mfma", "v_smfmac")) else "valu" if op.startswith("v_") else
                     "vmem" if op.startswith(("buffer_", "global_")) else "ds" if op.startswith("ds_") else
                     "salu" if op.startswith("s_") else "other")
        self.dst = set(); self.src = set()
        R = [regs_of(o) for o in ops]
        self.dpp = ("_dpp" in op) or ("quad_perm" in self.mods) or ("row_" in self.mods)
        self.sdwa = "_sdwa" in op
        self.trans = any(op.startswith(x) for x in TRANS)
        self.lanesel = set()
        self.srcC = set(); self.srcAB = set()
        self.stdata = set()
        if self.kind == "mfma":
            self.dst = R[0]; self.srcAB = R[1] | R[2]; self.srcC = R[3]; self.src = self.srcAB | self.srcC
            if op.startswith("v_smfmac"): self.srcAB = R[1] | R[2] | R[3]; self.srcC = R[0]; self.src = self.srcAB | self.srcC
            self.passes = 8 if "32x32x16" in op or "32x32x8" in op or "smfmac_f32_32x32x32" in op else 4 if "16x16x32" in op or "16x16x16" in op else 2 if "4x4x4" in op else 16
        elif self.kind == "valu":
            if op.startswith("v_cmpx"):
                self.dst = R[0] | {("x", "exec")}; self.src = set().union(*R[1:])
            elif op.startswith("v_cmp"):
                self.dst = R[0]; self.src = set().union(*R[1:])
            elif re.match(r"v_(add|sub|subrev|addc|subb|subbrev)_co_", op) or op.startswith("v_mad_u64") or op.startswith("v_div_scale"):
                self.dst = R[0] | R[1]; self.src = set().union(*R[2:])
            elif op == "v_nop":
                pass
            else:
                self.dst = R[0]; self.src = set().union(*R[1:]) if len(R) > 1 else set()
                if op.startswith(("v_fmac", "v_pk_fmac", "v_writelane", "v_dot2c", "v_permlane")) or self.dpp or self.sdwa:
                    self.src |= R[0]
                if op.startswith("v_permlane"): self.dst |= R[1]
                if op.startswith(("v_readlane", "v_writelane")): self.lanesel = R[2]
        elif self.kind == "vmem":
            if op.startswith(("buffer_wbl2", "buffer_inv")): pass
            elif op.startswith("buffer_"):
                if "store" in op or ("atomic" in op):
                    self.src = set().union(*R); self.stdata = R[0]
                    if "atomic" in op and "sc0" in self.mods: self.dst = R[0]
                elif " lds" in (" " + self.mods):
                    self.src = set().union(*R)
                else:
                    self.dst = R[0]; self.src = set().union(*R[1:])
            else:
                if "store" in op:
                    self.src = set().union(*R); self.stdata = R[1]
                elif "atomic" in op and "sc0" not in self.mods:
                    self.src = set().union(*R); self.stdata = R[1]
                else:
                    self.dst = R[0]; self.src = set().union(*R[1:])
            self.wide = ("x3" in op or "x4" in op) and bool(self.stdata)
        elif self.kind == "ds":
            if op.startswith(("ds_read", "ds_bpermute", "ds_permute", "ds_swizzle")) or "_rtn" in op:
                self.dst = R[0]; self.src = set().union(*R[1:])
            else:
                self.src = set().union(*R) if R else set()
        elif self.kind == "salu":
            if op.startswith(("s_cmp", "s_cbranch", "s_branch", "s_waitcnt", "s_nop", "s_barrier", "s_endpgm", "s_setprio", "s_bitcmp", "s_sleep")):
                self.src = set().union(*R) if R else set()
            else:
                self.dst = R[0] if R else set(); self.src = set().union(*R[1:]) if len(R) > 1 else set()
                if "saveexec" in op: self.dst = self.dst | {("x", "exec")}
    def states(self):
        if self.op is None: return 0
        if self.op == "s_nop": return int(self.ops[0], 0) + 1
        return 1

S_OR_X = lambda rs: {r for r in rs if r[0] == "s" or r == ("x", "vcc")}
V = lambda rs: {r for r in rs if r[0] in "va"}

def required(p, c):
    w = 0
    if p.kind == "valu":
        sd = S_OR_X(p.dst); vd = V(p.dst)
        wexec = ("x", "exec") in p.dst
        if c.kind == "valu":
            if sd & c.lanesel: w = max(w, 4)
            if sd & c.src: w = max(w, 2)
            if c.op.startswith("v_cndmask") and ("x", "vcc") in sd and len(c.ops) == 3: w = max(w, 2)
            if c.op.startswith("v_div_fmas") and ("x", "vcc") in sd: w = max(w, 4)
            if c.dpp and (vd & c.src): w = max(w, 2)
            if c.dpp and wexec: w = max(w, 5)
            if wexec and ("x", "exec") in c.src: w = max(w, 2)
            if wexec and c.op.startswith(("v_readlane", "v_readfirstlane", "v_writelane", "v_permlane")): w = max(w, 4)
            if c.op.startswith(("v_readlane", "v_readfirstlane")) and (vd & c.src): w = max(w, 1)
            if (p.sdwa or "op_sel" in p.mods and not p.op.startswith("v_pk")) and (vd & (c.src | c.dst)): w = max(w, 1)
            if p.trans and not c.trans and (vd & c.src): w = max(w, 1)
            if c.op.startswith("v_permlane") and (vd & c.src): w = max(w, 2)
            if p.op.startswith("v_dot") and (vd & (c.src | c.dst)): w = max(w, 3)
        if c.kind == "vmem" and (sd & c.src): w = max(w, 5)
        if c.kind == "mfma":
            if vd & c.src: w = max(w, 2)
            if wexec: w = max(w, 4)
        if c.kind in ("vmem", "ds") and p.trans and (vd & c.src): w = max(w, 1)
    if p.kind == "vmem" and getattr(p, "wide", False):
        if c.kind in ("valu", "mfma") and (p.stdata & c.dst): w = max(w, 2)
        elif p.stdata & c.dst: w = max(w, 1)
    if p.kind == "mfma":
        i = {2: 0, 4: 1, 8: 2, 16: 3}[p.passes]
        if c.kind == "mfma":
            if p.dst & c.srcC:
                if p.dst == c.srcC and p.passes == c.passes: w = max(w, [2, 0, 0, 0][i])
                else: w = max(w, [4, 6, 10, 18][i])
            if p.dst & c.srcAB: w = max(w, [5, 8, 12, 20][i])
            if (p.dst & c.dst) and not (p.dst & c.srcC): w = max(w, [5, 8, 12, 20][i])
        elif c.kind == "valu":
            if p.dst & (c.src | c.dst): w = max(w, [5, 8, 12, 20][i])
            if p.srcC & c.dst: w = max(w, [1, 3, 7, 15][i])
        elif c.kind in ("vmem", "ds"):
            if p.dst & (c.src | c.dst): w = max(w, [5, 8, 12, 20][i])
    if p.kind == "salu" and ("x", "m0") in p.dst and (c.kind == "vmem" and " lds" in (" " + c.mods)): w = max(w, 1)
    return w

MAXW = 20

def fix_hazards(lines, verbose=False):
    ins = [Ins(l) for l in lines]
    total = 0
    def build():
        labels = {x.label: i for i, x in enumerate(ins) if x.label}
        preds = [[] for _ in ins]
        for i, x in enumerate(ins):
            if i + 1 < len(ins) and not (x.op in ("s_branch", "s_endpgm")): preds[i + 1].append(i)
            if x.op and x.op.startswith(("s_cbranch", "s_branch")): preds[labels[x.ops[0]]].append(i)
        return preds
    changed = True
    while changed:
        changed = False
        preds = build()
        ci = 0
        while ci < len(ins):
            c = ins[ci]
            if c.op is None or c.kind in ("salu", "other"):
                ci += 1; continue
            need = 0
            stack = [(p, 0) for p in preds[ci]]
            seen = {}
            while stack:
                pi, d = stack.pop()
                if pi in seen and seen[pi] <= d: continue
                seen[pi] = d
                p = ins[pi]
                if p.op is not None:
                    r = required(p, c)
                    if r > d: need = max(need, r - d)
                nd = d + p.states()
                if nd < MAXW:
                    for q in preds[pi]: stack.append((q, nd))
            if need > 0:
                if verbose: print(f"nop {need} before: {c.text.strip()}")
                k = need; new = []
                while k > 0:
                    n = min(k, 16); new.append(Ins(f"  s_nop {n-1}")); k -= n
                ins[ci:ci] = new
                total += need
                changed = True
                preds = build()
                ci += len(new)
            ci += 1
    return [x.text for x in ins], total

class Asm:
    def __init__(self): self.lines = []
    def __call__(self, *txt):
        for t in txt:
            for l in t.split("\n"):
                l = l.rstrip()
                if not l.strip(): continue
                self.lines.append(l if l.strip().endswith(":") or l.strip().startswith(".") else "  " + l.strip())
    def label(self, n): self.lines.append(n + ":")

class Regs:
    def __init__(self, start=0, limit=256): self.n = start; self.limit = limit; self.names = {}
    def alloc(self, name, cnt=1, align=1):
        if cnt > 1 and align == 1: align = 2
        self.n = (self.n + align - 1) // align * align
        r = self.n; self.n += cnt
        assert self.n <= self.limit, (name, self.n)
        self.names[name] = r
        return r

def vr(b, n): return f"v[{b}:{b+n-1}]" if n > 1 else f"v{b}"
def sr(b, n): return f"s[{b}:{b+n-1}]" if n > 1 else f"s{b}"
```

```python
import sys, struct, math
sys.path.insert(0, "gen")
from asmlib import *

N = 25000; E = 800000; NB = 98; CH = 3128; CAP = 72
WS_REC = 0x400000; WS_DL = 0xC00000; WS_WF = 0xE00000; WS_END = WS_WF + 25 * 1024
WS_STAMP = 0x1000000
f2u = lambda f: struct.unpack("<I", struct.pack("<f", f))[0]
NLOG2E = f2u(-1.4426950408889634); NLN2 = f2u(-0.6931471805599453)
NTILE = (N + 15) // 16

def mf16(d, a, b, c): return f"v_mfma_f32_16x16x32_bf16 {vr(d,4)}, {vr(a,4)}, {vr(b,4)}, {c if isinstance(c,str) else vr(c,4)}"
def mf32(d, a, b, c): return f"v_mfma_f32_32x32x16_bf16 {vr(d,16)}, {vr(a,4)}, {vr(b,4)}, {vr(c,16)}"

class Stamps:
    def __init__(self, a, on, base, kidx, nw): self.a = a; self.on = on; self.base = base; self.k = 0; self.kidx = kidx; self.nw = nw
    def __call__(self):
        if not self.on: return
        r = self.base + 2 * self.k; self.k += 1
        self.a(f"s_waitcnt lgkmcnt(0)", f"s_memrealtime s[{r}:{r+1}]", "s_waitcnt lgkmcnt(0)")
    def flush(self, ws, wave, t0, t1):
        if not self.on: return
        a = self.a
        self()
        a("s_mov_b64 exec, -1")
        a(f"v_mov_b32 v{t0}, 0")
        for k in range(self.k): a(f"v_writelane_b32 v{t0}, s{self.base+2*k}, {k}")
        a(f"s_mul_i32 s{self.base}, s2, {self.nw}", f"s_add_u32 s{self.base}, s{self.base}, s{wave}", f"s_lshl_b32 s{self.base}, s{self.base}, 6",
          f"s_add_u32 s{self.base}, s{self.base}, {WS_STAMP + self.kidx * 0x100000}",
          f"v_and_b32 v{t1}, 63, v0", f"v_lshlrev_b32 v{t1}, 2, v{t1}", f"v_add_u32 v{t1}, s{self.base}, v{t1}",
          "s_mov_b64 exec, 0xffff", f"global_store_dword v{t1}, v{t0}, s[{ws}:{ws+1}]")

def srd(a, r, lo, hi, num, stride=0):
    a(f"s_mov_b32 s{r}, s{lo}")
    if stride: a(f"s_or_b32 s{r+1}, s{hi}, {stride << 16:#x}")
    else: a(f"s_mov_b32 s{r+1}, s{hi}")
    a(f"s_mov_b32 s{r+2}, {num}", f"s_mov_b32 s{r+3}, 0x20000")

K1_DLB = 32768; K1_CNT = 40960; K1_LDS = 41984
def gen_k1(opt):
    a = Asm(); st = Stamps(a, opt.get("stamp"), 70, 0, 16)
    a.label("mpnn_bin_kernel")
    a("s_cmp_ge_u32 s2, 256", "s_cbranch_scc1 K1_END")
    a("s_load_dwordx8 s[4:11], s[0:1], 0", "s_load_dwordx4 s[12:15], s[0:1], 32", "s_load_dwordx2 s[16:17], s[0:1], 64")
    a("v_lshrrev_b32 v1, 6, v0", "v_mov_b32 v2, -1", "v_readfirstlane_b32 s3, v1", "v_mov_b32 v3, -1",
      "v_lshlrev_b32 v4, 3, v0", f"ds_write_b64 v4, v[2:3] offset:{K1_DLB}",
      "v_and_b32 v5, 255, v0", "v_lshlrev_b32 v5, 2, v5", "v_mov_b32 v6, 0", f"ds_write_b32 v5, v6 offset:{K1_CNT}")
    a("v_lshlrev_b32 v7, 4, v0")
    a("s_cmp_ge_u32 s3, 13", "s_cbranch_scc1 K1_P")
    DST, SRC, EE, B, DL, RK, REC = 8, 12, 16, 20, 24, 28, 32
    a(f"s_mul_i32 s18, s2, {CH}", f"s_sub_u32 s19, {E}, s18", f"s_min_u32 s19, s19, {CH}", "s_lshl_b32 s36, s18, 2", "s_lshl_b32 s37, s18, 1")
    a("s_waitcnt lgkmcnt(0)")
    st()
    srd(a, 20, 10, 11, E * 4)
    a(f"buffer_load_dwordx4 {vr(DST,4)}, v7, s[20:23], s36 offen")
    srd(a, 24, 8, 9, E * 4)
    a(f"buffer_load_dwordx4 {vr(SRC,4)}, v7, s[24:27], s36 offen")
    srd(a, 28, 6, 7, E * 2)
    a(f"buffer_load_dwordx2 {vr(EE,2)}, v4, s[28:31], s37 offen")
    srd(a, 32, 16, 17, WS_END)
    a("s_barrier")
    a("v_lshlrev_b32 v1, 2, v0", "v_cmp_gt_u32 vcc, s19, v1", "v_mov_b32 v6, 1", "s_movk_i32 s38, -98", "s_mov_b32 s39, 0xffff0000",
      "s_mov_b64 exec, vcc", "s_cbranch_execz K1_B1")
    a("s_waitcnt vmcnt(2)")
    st()
    for i in range(4):
        a(f"v_mul_u32_u24 v{B+i}, 21400, v{DST+i}", f"v_lshrrev_b32 v{B+i}, 21, v{B+i}", f"v_lshlrev_b32 v{RK+i}, 2, v{B+i}",
          f"ds_add_rtn_u32 v{RK+i}, v{RK+i}, v6 offset:{K1_CNT}")
    for i in range(4): a(f"v_mad_i32_i24 v{DL+i}, v{B+i}, s38, v{DST+i}")
    a("s_waitcnt vmcnt(0)")
    for i in range(4):
        if i % 2 == 0: a(f"v_lshl_or_b32 v{REC+i}, v{EE+i//2}, 16, v{SRC+i}")
        else: a(f"v_and_or_b32 v{REC+i}, v{EE+i//2}, s39, v{SRC+i}")
    for i in range(4):
        a(f"s_waitcnt lgkmcnt({3+i})")
        a(f"v_min_u32 v{RK+i}, 31, v{RK+i}", f"v_and_b32 v1, 7, v{RK+i}", f"v_lshrrev_b32 v{RK+i}, 3, v{RK+i}", f"v_lshl_add_u32 v1, v1, 2, v{RK+i}",
          f"v_lshl_add_u32 v{B+i}, v{B+i}, 5, v1", f"v_lshlrev_b32 v{RK+i}, 2, v{B+i}",
          f"ds_write_b32 v{RK+i}, v{REC+i}", f"ds_write_b8 v{B+i}, v{DL+i} offset:{K1_DLB}")
    a.label("K1_B1")
    a("s_mov_b64 exec, -1")
    a("s_and_b32 s40, s2, 7", "s_lshl_b32 s40, s40, 5", "s_lshr_b32 s41, s2, 3", "s_add_u32 s40, s40, s41",
      "s_lshl_b32 s41, s40, 7", f"s_add_u32 s41, s41, {WS_REC}", f"s_add_u32 s42, s41, {128*32768}",
      "s_lshl_b32 s43, s40, 5", f"s_add_u32 s43, s43, {WS_DL}")
    a("v_lshrrev_b32 v1, 3, v0", "v_lshlrev_b32 v1, 15, v1", "v_and_b32 v2, 7, v0", "v_lshl_add_u32 v1, v2, 4, v1")
    a("v_lshrrev_b32 v2, 1, v0", "v_lshlrev_b32 v3, 2, v2", "v_lshlrev_b32 v2, 13, v2", "v_and_b32 v4, 1, v0", "v_lshl_add_u32 v2, v4, 4, v2")
    a("v_lshlrev_b32 v4, 24, v4", "v_not_b32 v4, v4")
    a("s_waitcnt lgkmcnt(0)", "s_barrier")
    st()
    a("ds_read_b128 v[8:11], v7", "ds_read_b128 v[12:15], v7 offset:16384")
    a("s_cmp_ge_u32 s3, 8", "s_cbranch_scc1 K1_NODL")
    a(f"ds_read_b128 v[16:19], v7 offset:{K1_DLB}", f"ds_read_b32 v5, v3 offset:{K1_CNT}")
    a("s_waitcnt lgkmcnt(0)", "v_cmp_lt_u32 vcc, 32, v5")
    a("v_cndmask_b32 v16, v16, -1, vcc", "v_cndmask_b32 v17, v17, -1, vcc", "v_cndmask_b32 v18, v18, -1, vcc", "v_cndmask_b32 v19, v19, v4, vcc")
    a("buffer_store_dwordx4 v[16:19], v2, s[32:35], s43 offen")
    a.label("K1_NODL")
    a("s_waitcnt lgkmcnt(1)", "buffer_store_dwordx4 v[8:11], v1, s[32:35], s41 offen",
      "s_waitcnt lgkmcnt(0)", "buffer_store_dwordx4 v[12:15], v1, s[32:35], s42 offen")
    if st.on: a("s_waitcnt vmcnt(0)")
    st.flush(16, 3, 20, 21)
    a.label("K1_END")
    a("s_endpgm")
    W, A, X, D, O = 8, 40, 72, 96, 112
    a.label("K1_P")
    a("v_and_b32 v1, 15, v0", "v_bfe_u32 v2, v0, 4, 2",
      "v_lshlrev_b32 v3, 10, v2", "v_lshl_add_u32 v3, v1, 3, v3",
      "v_lshlrev_b32 v4, 7, v1", "v_lshl_add_u32 v4, v2, 4, v4")
    a("s_mul_i32 s18, s2, 3", "s_add_u32 s18, s18, s3", "s_sub_u32 s18, s18, 13",
      "s_lshl_b32 s36, s18, 11", f"s_add_u32 s37, s36, {768*2048}", f"s_add_u32 s38, s36, {1536*2048}", "s_movk_i32 s39, 4096")
    a("s_waitcnt lgkmcnt(0)")
    st.k = 0; st()
    srd(a, 20, 12, 13, 129 * 128)
    srd(a, 24, 4, 5, N * 128)
    for i in range(2):
        for s in range(2): a(f"buffer_load_dwordx4 {vr(X+8*i+4*s,4)}, v4, s[24:27], s{36+i} offen offset:{64*s}")
    for s in range(2):
        for kk in range(8): a(f"buffer_load_dwordx2 {vr(W+16*s+2*kk,2)}, v3, s[20:23], {'s39' if s else '0'} offen offset:{128*kk}")
    for s in range(2): a(f"buffer_load_dwordx4 {vr(X+16+4*s,4)}, v4, s[24:27], s38 offen offset:{64*s}")
    srd(a, 28, 16, 17, N * 128)
    srd(a, 32, 16, 17, WS_END)
    a("s_barrier")
    a("s_mov_b32 s44, 0x05040100", "s_mov_b32 s45, 0x07060302", f"s_mov_b32 s46, {NLOG2E:#x}", f"s_mov_b32 s47, {NLOG2E:#x}")
    a("s_waitcnt vmcnt(2)")
    st()
    for tau in range(4):
        for s in range(2):
            for rr in range(4):
                a(f"v_perm_b32 v{A+8*tau+4*s+rr}, v{W+16*s+2*(2*rr+1)+tau//2}, v{W+16*s+2*(2*rr)+tau//2}, s{44+tau%2}")
    for i in range(3):
        if i == 2:
            a(f"s_cmp_ge_u32 s18, {NTILE-1536}", "s_cbranch_scc1 K1_PD", "s_waitcnt vmcnt(4)")
        for tau in range(4): a(mf16(D+4*tau, A+8*tau, X+8*i, "0"))
        for tau in range(4): a(mf16(D+4*tau, A+8*tau+4, X+8*i+4, D+4*tau))
        for k in range(0, 16, 2): a(f"v_pk_mul_f32 {vr(D+k,2)}, {vr(D+k,2)}, s[46:47]")
        for r in range(4):
            for h in range(2): a(f"v_cvt_pk_bf16_f32 v{O+2*r+h}, v{D+4*(2*h)+r}, v{D+4*(2*h+1)+r}")
        a(f"buffer_store_dwordx4 {vr(O,4)}, v4, s[28:31], s{36+i} offen", f"buffer_store_dwordx4 {vr(O+4,4)}, v4, s[28:31], s{36+i} offen offset:64")
    a.label("K1_PD")
    a("s_cmp_lg_u32 s3, 15", "s_cbranch_scc1 K1_B1", "s_sub_u32 s18, s2, 16", "s_cmp_gt_u32 s18, 24", "s_cbranch_scc1 K1_B1")
    a("v_and_b32 v5, 63, v0", "v_lshlrev_b32 v5, 4, v5", "s_lshl_b32 s36, s18, 10", f"s_add_u32 s36, s36, {WS_WF}")
    a("s_cmp_eq_u32 s18, 24", "s_cbranch_scc1 K1_AE")
    a("s_mul_i32 s37, s18, 43", "s_lshr_b32 s37, s37, 8", "s_mul_i32 s38, s37, 6", "s_sub_u32 s38, s18, s38")
    a("v_lshlrev_b32 v3, 10, v2", "v_lshl_add_u32 v3, v1, 1, v3", "s_lshl_b32 s37, s37, 5", "s_lshl_b32 s39, s38, 12", "s_add_u32 s39, s39, s37")
    a("s_cmp_ge_u32 s38, 2", "s_cbranch_scc1 K1_FU")
    a("s_add_u32 s39, s39, 8192")
    for kk in range(8): a(f"buffer_load_ushort v{W+kk}, v3, s[20:23], s39 offen offset:{128*kk}")
    a("s_branch K1_FJ")
    a.label("K1_FU")
    srd(a, 24, 14, 15, 128 * 128)
    a("s_sub_u32 s39, s39, 8192")
    for kk in range(8): a(f"buffer_load_ushort v{W+kk}, v3, s[24:27], s39 offen offset:{128*kk}")
    a.label("K1_FJ")
    a("s_waitcnt vmcnt(0)")
    for rr in range(4): a(f"v_lshl_or_b32 v{A+rr}, v{W+2*rr+1}, 16, v{W+2*rr}")
    a(f"buffer_store_dwordx4 {vr(A,4)}, v5, s[32:35], s36 offen", "s_branch K1_B1")
    a.label("K1_AE")
    a("v_bfe_u32 v1, v0, 3, 2", "v_and_b32 v2, 3, v0", "v_lshl_add_u32 v1, v1, 2, v2", "v_lshlrev_b32 v1, 1, v1",
      "v_bfe_u32 v2, v0, 2, 1", "v_bfe_u32 v3, v0, 5, 1", "v_cmp_eq_u32 vcc, v2, v3", "s_movk_i32 s39, 16384")
    for c in range(4): a(f"buffer_load_ushort v{W+c}, v1, s[20:23], s39 offen offset:{32*c}")
    a("s_waitcnt vmcnt(0)")
    for c in range(4):
        a(f"v_lshlrev_b32 v{W+c}, 16, v{W+c}", f"v_mul_f32 v{W+c}, s46, v{W+c}", f"v_cvt_pk_bf16_f32 v{W+c}, 0, v{W+c}", f"v_cndmask_b32 v{A+c}, 0, v{W+c}, vcc")
    a(f"buffer_store_dwordx4 {vr(A,4)}, v5, s[32:35], s36 offen", "s_branch K1_B1")
    return a.lines

L_CTR = 0; L_OVC = 448; L_FLG = 452; L_SLOT = 512; L_OVL = 1280; L_QS = 2304; QSTR = 272
L_AGB = L_QS + 112 * QSTR; ASTR = 144
L_ELL = L_AGB + 112 * ASTR; ESTR = 516; EROWS = 80
K2_LDS = L_ELL + 3 * 768 * 16 + 6144
assert K2_LDS >= L_ELL + EROWS * ESTR and L_ELL % 16 == 0
ZCOL = 112 * 4; DUMP = L_ELL + CAP * ESTR + 400

def gen_k2(opt):
    a = Asm(); st = Stamps(a, opt.get("stamp"), 76, 1, 12)
    perm = opt.get("perm", [0, 1, 2, 3, 10, 6, 5, 4, 11, 9, 8, 7])
    Q, P, Z0, Z1, NN, DD, EX, BE, AL, AH, AE, ACC, WU2, IX, VI, VE, LEN, AGA, MFL, OOF, ARD = \
        8, 24, 40, 56, 72, 88, 104, 120, 124, 128, 132, 136, 148, 156, 158, 159, 163, 164, 165, 166, 167
    R = Z0; L = Z0 + 12; AD = Z1
    X = NN; W2 = EX; WU1 = EX + 8
    SWS, SPT, SX, SO = 24, 28, 32, 36
    MK = 40
    a.label("mpnn_msg_kernel")
    a("s_cmp_ge_u32 s2, 256", "s_cbranch_scc1 K2_END")
    a("s_load_dwordx2 s[20:21], s[0:1], 64", "s_load_dwordx16 s[4:19], s[0:1], 0")
    a("v_lshrrev_b32 v1, 6, v0", "v_lshlrev_b32 v2, 4, v0", "v_readfirstlane_b32 s3, v1", "v_lshlrev_b32 v3, 2, v0")
    for i in range(4): a(f"v_mov_b32 v{Q+i}, 0")
    for i in range(3): a(f"ds_write_b128 v2, {vr(Q,4)} offset:{L_ELL + i*12288}" if L_ELL + i*12288 < 65536 else None) if L_ELL + i*12288 < 65536 else None
    a(f"v_add_u32 v4, {L_ELL + 2*12288}, v2")
    for i in range(3):
        if L_ELL + i*12288 >= 65536: a(f"ds_write_b128 v4, {vr(Q,4)} offset:{(i-2)*12288}")
    a(f"v_lshlrev_b32 v5, 3, v0", f"v_add_u32 v5, {L_ELL + 3*12288}, v5", f"ds_write_b64 v5, {vr(Q,2)}")
    a("v_and_b32 v5, 127, v0", "v_lshlrev_b32 v5, 2, v5", f"v_add_u32 v4, {L_ELL}, v5", f"v_cmp_gt_u32 vcc, {NB*4}, v5", "v_cndmask_b32 v4, 0, v4, vcc",
      f"ds_write_b32 v5, v4 offset:{L_CTR}")
    a("s_lshl_b32 s64, s2, 15", f"s_add_u32 s64, s64, {WS_REC}", "s_add_u32 s65, s64, 12288", "s_add_u32 s66, s64, 24576",
      "s_lshl_b32 s67, s2, 13", f"s_add_u32 s67, s67, {WS_DL}", "s_add_u32 s68, s67, 6144")
    a(f"s_mul_i32 s69, s2, {NB}", f"s_sub_u32 s70, {N}, s69", f"s_min_u32 s70, s70, {NB}", "s_lshl_b32 s70, s70, 7", "s_lshl_b32 s71, s69, 7")
    a("s_and_b32 s72, s3, 3", "s_lshr_b32 s73, s3, 2")
    a(f"v_mov_b32 v{L+2}, -1")
    a("v_and_b32 v4, 15, v0", "v_bfe_u32 v5, v0, 4, 2")
    a(f"v_lshlrev_b32 v{OOF}, 7, v4", f"v_lshl_add_u32 v1, v5, 4, v{OOF}")
    a("s_lshl_b32 s74, s73, 11")
    a("s_waitcnt lgkmcnt(0)")
    st()
    srd(a, SWS, 20, 21, WS_END)
    a("s_cmp_ge_u32 s3, 8", "s_cbranch_scc1 K2_NOR2")
    a(f"buffer_load_dword v{L+2}, v3, s[{SWS}:{SWS+3}], s68 offen", f"buffer_load_dwordx4 {vr(R+8,4)}, v2, s[{SWS}:{SWS+3}], s66 offen")
    a.label("K2_NOR2")
    a(f"buffer_load_dword v{L}, v3, s[{SWS}:{SWS+3}], s67 offen", f"buffer_load_dword v{L+1}, v3, s[{SWS}:{SWS+3}], s67 offen offset:3072")
    a(f"buffer_load_dwordx4 {vr(R,4)}, v2, s[{SWS}:{SWS+3}], s64 offen", f"buffer_load_dwordx4 {vr(R+4,4)}, v2, s[{SWS}:{SWS+3}], s65 offen")
    a(f"s_add_u32 s{SX}, s4, s71", f"s_addc_u32 s{SX+1}, s5, 0", f"s_mov_b32 s{SX+2}, s70", f"s_mov_b32 s{SX+3}, 0x20000")
    a(f"s_add_u32 s75, s74, {3*2048}", f"s_add_u32 s22, s74, {6*2048}")
    for i, so in enumerate(("s74", "s75", "s22")):
        for s in range(2): a(f"buffer_load_dwordx4 {vr(X+8*i+4*s,4)}, v1, s[{SX}:{SX+3}], {so} offen offset:{64*s}")
    a("v_and_b32 v6, 63, v0", "v_lshlrev_b32 v6, 4, v6", f"s_mul_i32 s23, s72, 6144", f"s_add_u32 s23, s23, {WS_WF}", "s_add_u32 s64, s23, 4096", f"s_mov_b32 s65, {WS_WF + 24*1024}")
    for k in range(4): a(f"buffer_load_dwordx4 {vr(W2+4*k,4)}, v6, s[{SWS}:{SWS+3}], s23 offen offset:{1024*k}")
    for k in range(2): a(f"buffer_load_dwordx4 {vr(WU2+4*k,4)}, v6, s[{SWS}:{SWS+3}], s64 offen offset:{1024*k}")
    a(f"buffer_load_dwordx4 {vr(AE,4)}, v6, s[{SWS}:{SWS+3}], s65 offen")
    a("s_lshr_b32 s66, s2, 3", f"s_mul_i32 s66, s66, {782*128}", "v_lshlrev_b32 v7, 7, v0")
    a(f"buffer_load_dword v6, v7, s[{SWS}:{SWS+3}], s66 offen", f"buffer_load_dword v7, v7, s[{SWS}:{SWS+3}], s66 offen offset:64")
    srd(a, SPT, 20, 21, N, stride=128)
    a(f"s_add_u32 s{SO}, s16, s71", f"s_addc_u32 s{SO+1}, s17, 0", f"s_mov_b32 s{SO+2}, s70", f"s_mov_b32 s{SO+3}, 0x20000")
    a("s_barrier")
    T = Q
    a(f"v_and_b32 v{T}, 1, v0", f"v_lshlrev_b32 v{T}, 4, v{T}", f"v_mov_b32 v{T+1}, 0x3f80", f"v_lshlrev_b32 v{T}, v{T}, v{T+1}",
      f"v_bfe_u32 v{T+1}, v0, 3, 2", f"v_bfe_u32 v{T+2}, v0, 1, 1", f"v_lshl_add_u32 v{T+1}, v{T+1}, 1, v{T+2}",
      f"v_bfe_u32 v{T+2}, v0, 2, 1", f"v_bfe_u32 v{T+3}, v0, 5, 1", f"v_xor_b32 v{T+2}, v{T+2}, v{T+3}", f"v_lshl_add_u32 v{T+1}, v{T+2}, 3, v{T+1}")
    for k in range(8): a(f"v_cmp_eq_u32 s[{MK+2*k}:{MK+2*k+1}], {k}, v{T+1}")
    for k in range(8): a(f"v_cndmask_b32 v{AL+k}, 0, v{T}, s[{MK+2*k}:{MK+2*k+1}]")
    a(f"s_lshl_b32 s64, s72, 5", f"v_lshl_add_u32 v{OOF}, v5, 3, v{OOF}", f"v_add_u32 v{OOF}, s64, v{OOF}")
    a(f"s_lshl_b32 s64, s73, 4", f"v_add_u32 v4, s64, v4", f"v_mul_u32_u24 v{ARD}, {ASTR}, v4", f"v_lshl_add_u32 v{ARD}, v5, 4, v{ARD}")
    a(f"v_mul_u32_u24 v1, {QSTR}, v4", "v_lshl_add_u32 v1, v5, 4, v1", "s_lshl_b32 s64, s72, 6", "v_add_u32 v1, s64, v1")
    a(f"v_and_b32 v4, 3, v0", f"v_lshlrev_b32 v{IX+1}, 4, v4")
    a(f"v_mov_b32 v5, {ESTR}", f"s_movk_i32 s64, {NB*4}", f"s_mov_b32 s65, {DUMP}", f"s_mov_b32 s66, {NLOG2E:#x}", f"s_mov_b32 s67, {NLOG2E:#x}",
      "s_mov_b32 s68, 0", "s_mov_b32 s71, 0")
    order = [(r, jj) for jj in range(3) for r in (2, 0, 1)]
    a("s_waitcnt vmcnt(17)")
    st()
    for k, (r, jj) in enumerate(order):
        a(f"v_lshlrev_b32_sdwa v{AD+k}, 2, v{L+r} dst_sel:DWORD dst_unused:UNUSED_PAD src0_sel:DWORD src1_sel:BYTE_{jj}")
    for k in range(9): a(f"v_cmp_gt_u32 s[{MK+2*k}:{MK+2*k+1}], s64, v{AD+k}")
    a(f"v_and_b32 v{AD+9}, v{L}, v{L+1}", f"v_and_b32 v{AD+9}, v{AD+9}, v{L+2}", f"v_cmp_gt_u32 vcc, 0xff000000, v{AD+9}")
    for k in range(9): a(f"s_mov_b64 exec, s[{MK+2*k}:{MK+2*k+1}]", f"ds_add_rtn_u32 v{AD+k}, v{AD+k}, v5 offset:{L_CTR}")
    a("s_waitcnt vmcnt(15)")
    for k, (r, jj) in enumerate(order):
        a(f"s_mov_b64 exec, s[{MK+2*k}:{MK+2*k+1}]", "s_waitcnt lgkmcnt(8)", f"v_min_u32 v{AD+k}, s65, v{AD+k}", f"ds_write_b32 v{AD+k}, v{R+4*r+jj}")
    a("s_mov_b64 exec, -1", "s_cbranch_vccnz K2_RARE")
    a.label("K2_INSD")
    a("s_waitcnt lgkmcnt(0)", "s_barrier")
    st()
    a.label("K2_AB1")
    C = Q; OWN = Z1; RK = Z1 + 1; NQ = Z1 + 2; PP = Z1 + 3; T = Z1 + 4
    a(f"v_mov_b32 v{T}, 0", f"ds_read_b32 v{T+1}, v{T} offset:{L_OVC}")
    a("s_cmp_ge_u32 s3, 7", "s_cbranch_scc1 K2_NR1")
    a(f"v_lshrrev_b32 v{NQ}, 2, v0", f"v_and_b32 v{PP}, 3, v0", f"v_lshlrev_b32 v{T}, 2, v{NQ}", f"v_mul_u32_u24 v{T+2}, 112, v{PP}",
      f"ds_read_b32 v{OWN}, v{T} offset:{L_CTR}")
    for k in range(7): a(f"ds_read_b128 {vr(C+4*k,4)}, v{T+2} offset:{L_CTR+16*k}")
    a.label("K2_NR1")
    a("s_waitcnt vmcnt(7)")
    for i in range(3): a(mf16(ACC+4*i, W2, X+8*i, "0"))
    for i in range(3): a(mf16(ACC+4*i, W2+4, X+8*i+4, ACC+4*i))
    a("s_waitcnt lgkmcnt(0)", f"v_readfirstlane_b32 s23, v{T+1}", "s_andn2_b32 s23, s23, s68", "s_cbranch_scc1 K2_RESCAN")
    for i in range(3):
        if i == 2: a("s_cmp_lg_u32 s73, 0", "s_cbranch_scc1 K2_NQ2")
        a(f"v_pk_mul_f32 {vr(ACC+4*i,2)}, {vr(ACC+4*i,2)}, s[66:67]", f"v_pk_mul_f32 {vr(ACC+4*i+2,2)}, {vr(ACC+4*i+2,2)}, s[66:67]",
          f"ds_write_b128 v1, {vr(ACC+4*i,4)} offset:{L_QS + 48*QSTR*i}")
    a.label("K2_NQ2")
    a("s_cmp_ge_u32 s3, 7", "s_cbranch_scc1 K2_NR2")
    a(f"v_mov_b32 v{RK}, 0")
    for m in range(28 + 3):
        if m < 28: a(f"v_cmp_gt_u32 s[{MK+2*(m%4)}:{MK+2*(m%4)+1}], v{C+m}, v{OWN}")
        if m >= 3: a(f"v_addc_co_u32 v{RK}, vcc, 0, v{RK}, s[{MK+2*((m-3)%4)}:{MK+2*((m-3)%4)+1}]")
    a(f"v_add_u32 v{T}, {L_ELL}, v{T}", f"v_sub_u32 v{OWN}, v{OWN}, v{T}")
    a(f"v_add_u32_dpp v{RK}, v{RK}, v{RK} quad_perm:[1,0,3,2] row_mask:0xf bank_mask:0xf")
    a(f"v_cmp_lt_u32 vcc, {CAP*ESTR}, v{OWN}", f"v_min_u32 v{OWN}, {CAP*ESTR}, v{OWN}")
    a(f"v_add_u32_dpp v{RK}, v{RK}, v{RK} quad_perm:[2,3,0,1] row_mask:0xf bank_mask:0xf")
    a(f"v_lshrrev_b32 v{OWN}, 2, v{OWN}", f"v_mul_u32_u24 v{OWN}, 509, v{OWN}", f"v_lshrrev_b32 v{OWN}, 16, v{OWN}")
    a(f"s_movk_i32 s23, {NB}", f"v_cmp_gt_u32 s[{MK}:{MK+1}], s23, v{NQ}", f"s_and_b64 vcc, vcc, s[{MK}:{MK+1}]")
    a(f"s_movk_i32 s23, {NB-4}", f"v_cmp_gt_u32 s[{MK+2}:{MK+3}], s23, v{RK}")
    a(f"v_add_u32 v{T+1}, 1, v{OWN}", f"v_lshrrev_b32 v{T+2}, 1, v{T+1}", f"v_mul_u32_u24 v{T+2}, v{T+2}, v{PP}", f"v_mad_u32_u24 v{T}, v{T+2}, v5, v{T}",
      f"v_sub_u32 v{T+1}, v{T+1}, v{PP}", f"v_lshrrev_b32 v{T+1}, 1, v{T+1}", f"v_cndmask_b32 v{T+1}, v{OWN}, v{T+1}, s[{MK+2}:{MK+3}]",
      f"v_lshl_add_u32 v{T+2}, v{RK}, 1, v{PP}", f"v_add_u32 v{T+2}, 4, v{T+2}", f"v_subrev_u32 v{RK}, {NB-4}, v{RK}", f"v_cndmask_b32 v{T+2}, v{RK}, v{T+2}, s[{MK+2}:{MK+3}]",
      f"v_lshl_or_b32 v{T}, v{NQ}, 17, v{T}", f"v_lshl_or_b32 v{T}, v{T+1}, 24, v{T}", f"v_lshlrev_b32 v{T+2}, 2, v{T+2}",
      f"v_cndmask_b32 v{T+1}, 1, 2, s[{MK+2}:{MK+3}]", f"v_cmp_gt_u32 s[{MK+4}:{MK+5}], v{T+1}, v{PP}",
      f"s_and_b64 exec, s[{MK+4}:{MK+5}], s[{MK}:{MK+1}]", f"ds_write_b32 v{T+2}, v{T} offset:{L_SLOT}",
      "s_mov_b64 exec, vcc", f"v_mov_b32 v{T}, 0", f"ds_write_b32 v{T}, v5 offset:{L_FLG}", "s_mov_b64 exec, -1")
    a.label("K2_NR2")
    pk = sum(p << (4 * w) for w, p in enumerate(perm))
    a(f"s_mov_b32 s{MK}, {pk & 0xffffffff:#x}", f"s_mov_b32 s{MK+1}, {pk >> 32:#x}", "s_lshl_b32 s23, s3, 2", f"s_lshr_b64 s[{MK}:{MK+1}], s[{MK}:{MK+1}], s23",
      f"s_and_b32 s23, s{MK}, 15", "s_lshl_b32 s23, s23, 4")
    a(f"v_bfe_u32 v{T}, v0, 2, 4", f"v_add_u32 v{T}, s23, v{T}", f"v_lshlrev_b32 v{T+1}, 2, v{T}")
    a(f"v_and_b32 v{T+2}, 1, v{T}", f"v_cmp_gt_u32 vcc, 4, v{T}", f"v_cmp_eq_u32 s[{MK+2}:{MK+3}], 0, v{T+2}",
      f"s_or_b64 s[{MK}:{MK+1}], vcc, s[{MK+2}:{MK+3}]", f"s_andn2_b64 s[{MK+2}:{MK+3}], s[{MK+2}:{MK+3}], vcc",
      f"v_cndmask_b32 v{MFL}, 0, 1.0, s[{MK+2}:{MK+3}]")
    for r in range(4): a(f"v_cmp_eq_u32 s[{MK+4+2*r}:{MK+5+2*r}], {r}, v4")
    a(f"v_mov_b32 v{T+3}, {L_ELL + ZCOL}")
    a("s_waitcnt lgkmcnt(0)", "s_barrier")
    st()
    a(f"ds_read_b32 v{T}, v{T+1} offset:{L_SLOT}", "s_waitcnt lgkmcnt(0)")
    a(f"v_and_b32 v{VI}, 0x1ffff, v{T}", f"ds_read_u16 v{IX}, v{VI}", f"ds_read_u16 v{T+4}, v{VI} offset:{ESTR}", f"ds_read_u16 v{T+6}, v{VI} offset:{2*ESTR}")
    a(f"v_bfe_u32 v{T+1}, v{T}, 17, 7", f"v_lshrrev_b32 v{LEN}, 24, v{T}")
    for r in range(4): a(f"v_cndmask_b32 v{VE+r}, v{T+3}, v{VI}, s[{MK+4+2*r}:{MK+5+2*r}]")
    a(f"v_mul_u32_u24 v{T+2}, {QSTR}, v{T+1}", f"v_lshl_add_u32 v{T+2}, v4, 6, v{T+2}")
    a(f"v_mov_b32 v{T+5}, v{IX+1}", f"v_mov_b32 v{T+7}, v{IX+1}")
    def gather(slot, ix):
        p = P + 8 * slot
        return [f"buffer_load_dwordx4 {vr(p,4)}, {vr(ix,2)}, s[{SPT}:{SPT+3}], 0 idxen offen",
                f"buffer_load_dwordx4 {vr(p+4,4)}, {vr(ix,2)}, s[{SPT}:{SPT+3}], 0 idxen offen offset:64"]
    def rde(t): return [f"ds_read_b32 v{BE+r}, v{VE+r} offset:{t*ESTR}" for r in range(4)]
    a("s_waitcnt lgkmcnt(2)", *gather(0, IX), "s_waitcnt lgkmcnt(1)", *gather(1, T+4))
    for k in range(4): a(f"ds_read_b128 {vr(Q+4*k,4)}, v{T+2} offset:{L_QS+16*k}")
    a(*rde(0), f"ds_read_u16 v{IX}, v{VI} offset:{3*ESTR}")
    a(f"v_mul_u32_u24 v{AGA}, {ASTR}, v{T+1}", f"v_lshl_add_u32 v{AGA}, v4, 5, v{AGA}")
    a(f"v_readlane_b32 s69, v{LEN}, 0", f"v_readlane_b32 s70, v{LEN}, 16", "s_max_u32 s69, s69, s70", "s_mov_b32 s70, 0")
    a("s_waitcnt vmcnt(6)")
    for i in range(3): a(mf16(ACC+4*i, WU1, X+8*i, "0"))
    for i in range(3): a(mf16(ACC+4*i, WU1+4, X+8*i+4, ACC+4*i))
    for i in range(16): a(f"v_mov_b32 v{NN+i}, 0")
    for i in range(16): a(f"v_mov_b32 v{DD+i}, 1.0")
    a("s_cmp_eq_u32 s69, 0", "s_cbranch_scc1 K2_DONE")
    a("s_waitcnt vmcnt(2) lgkmcnt(0)")
    st()
    a(mf32(Z0, AE, BE, Q), mf32(Z0, AL, P, Z0), mf32(Z0, AH, P + 4, Z0))
    a(*gather(0, T+6), *rde(1), "s_nop 3")
    a(".p2align 6")
    a.label("K2_LOOP")
    for u in range(2):
        zc = (Z0, Z1)[u]; zn = (Z1, Z0)[u]; p = P + 8 * ((u + 1) % 2)
        ex = [f"v_exp_f32 v{EX+i}, v{zc+i}" for i in range(16)]
        a("s_waitcnt vmcnt(2) lgkmcnt(0)")
        a(mf32(zn, AE, BE, Q), *ex[0:4], mf32(zn, AL, p, zn), *ex[4:8], mf32(zn, AH, p + 4, zn), *ex[8:16])
        a(*gather((u + 1) % 2, IX), *rde(u + 2), f"ds_read_u16 v{IX}, v{VI} offset:{(u+4)*ESTR}")
        a(f"v_cmpx_lt_u32 vcc, s70, v{LEN}")
        for i in range(0, 16, 2): a(f"v_pk_fma_f32 {vr(NN+i,2)}, {vr(NN+i,2)}, {vr(EX+i,2)}, {vr(NN+i,2)}")
        for i in range(0, 16, 2): a(f"v_pk_fma_f32 {vr(NN+i,2)}, {vr(zc+i,2)}, {vr(DD+i,2)}, {vr(NN+i,2)}")
        for i in range(0, 16, 2): a(f"v_pk_fma_f32 {vr(DD+i,2)}, {vr(DD+i,2)}, {vr(EX+i,2)}, {vr(DD+i,2)}")
        a("s_mov_b64 exec, -1", "s_add_u32 s70, s70, 1", "s_cmp_ge_u32 s70, s69")
        if u == 0: a("s_cbranch_scc1 K2_DONE")
        else:
            for rg in [VI] + [VE + r for r in range(4)]: a(f"v_add_u32 v{rg}, {2*ESTR}, v{rg}")
            a("s_cbranch_scc0 K2_LOOP")
    a.label("K2_DONE")
    st()
    for i in range(16): a(f"v_rcp_f32 v{EX+i}, v{DD+i}")
    a(f"s_mov_b32 s66, {NLN2:#x}", f"s_mov_b32 s67, {NLN2:#x}", f"s_mov_b32 s64, {f2u(2.0**120):#x}")
    for i in range(0, 16, 2): a(f"v_pk_mul_f32 {vr(NN+i,2)}, {vr(NN+i,2)}, s[66:67]")
    a(f"v_max3_f32 v2, v{DD}, v{DD+1}, v{DD+2}")
    for i in range(3, 15, 2): a(f"v_max3_f32 v2, v{DD+i}, v{DD+i+1}, v2")
    a(f"v_max_f32 v2, v{DD+15}, v2")
    for i in range(0, 16, 2): a(f"v_pk_mul_f32 {vr(NN+i,2)}, {vr(NN+i,2)}, {vr(EX+i,2)}")
    a(f"v_pk_mul_f32 {vr(DD,2)}, {vr(NN,2)}, 0")
    for i in range(2, 16, 2): a(f"v_pk_fma_f32 {vr(DD,2)}, {vr(NN+i,2)}, 0, {vr(DD,2)}")
    for i in range(16): a(f"v_fmac_f32_dpp v{NN+i}, v{NN+i}, v{MFL} row_shl:4 row_mask:0xf bank_mask:0xf bound_ctrl:0")
    a(f"v_cmp_u_f32 vcc, v{DD}, v{DD+1}", f"v_cmp_nlt_f32 s[{MK+2}:{MK+3}], v2, s64", f"s_or_b64 vcc, vcc, s[{MK+2}:{MK+3}]")
    for i in range(8): a(f"v_cvt_pk_bf16_f32 v{EX+i}, v{NN+2*i}, v{NN+2*i+1}")
    a(f"s_mov_b64 exec, s[{MK}:{MK+1}]", f"ds_write_b128 v{AGA}, {vr(EX,4)} offset:{L_AGB}", f"ds_write_b128 v{AGA}, {vr(EX+4,4)} offset:{L_AGB+16}")
    a("s_mov_b64 exec, vcc", "v_mov_b32 v2, 0", f"ds_write_b32 v2, v5 offset:{L_FLG}", "s_mov_b64 exec, -1")
    a(f"s_mov_b32 s66, {NLOG2E:#x}", f"s_mov_b32 s67, {NLOG2E:#x}", "v_mov_b32 v2, 0")
    a("s_waitcnt lgkmcnt(0)", "s_barrier")
    st()
    a.label("K2_EPI")
    B = Z0; O = Q; TT = NN
    a(f"ds_read_b32 v3, v2 offset:{L_FLG}")
    for i in range(3):
        for s in range(2): a(f"ds_read_b128 {vr(B+8*i+4*s,4)}, v{ARD} offset:{L_AGB + 48*ASTR*i + 64*s}")
    a("s_waitcnt lgkmcnt(6)", "v_readfirstlane_b32 s23, v3", "s_andn2_b32 s23, s23, s71", "s_cbranch_scc1 K2_BF")
    def epi_tile(i):
        o = O + 4 * i; t = TT + 4 * i
        a(f"v_pk_mul_f32 {vr(t,2)}, {vr(o,2)}, s[66:67]", f"v_pk_mul_f32 {vr(t+2,2)}, {vr(o+2,2)}, s[66:67]")
        for k in range(4): a(f"v_exp_f32 v{t+k}, v{t+k}")
        a(f"v_pk_add_f32 {vr(t,2)}, {vr(t,2)}, 1.0 op_sel_hi:[1,0]", f"v_pk_add_f32 {vr(t+2,2)}, {vr(t+2,2)}, 1.0 op_sel_hi:[1,0]")
        for k in range(4): a(f"v_rcp_f32 v{t+k}, v{t+k}")
        a(f"v_pk_mul_f32 {vr(t,2)}, {vr(t,2)}, {vr(o,2)}", f"v_pk_mul_f32 {vr(t+2,2)}, {vr(t+2,2)}, {vr(o+2,2)}")
        a(f"v_cvt_pk_bf16_f32 v{o}, v{t}, v{t+1}", f"v_cvt_pk_bf16_f32 v{o+1}, v{t+2}, v{t+3}")
        a(f"buffer_store_dwordx2 {vr(o,2)}, v{OOF}, s[{SO}:{SO+3}], {('s74','s75','s22')[i]} offen")
    for i in range(3):
        a(f"s_waitcnt lgkmcnt({4-2*i})", mf16(O+4*i, WU2, B+8*i, ACC+4*i), mf16(O+4*i, WU2+4, B+8*i+4, O+4*i))
    epi_tile(0); epi_tile(1)
    a("s_cmp_lg_u32 s73, 0", "s_cbranch_scc1 K2_FIN")
    epi_tile(2)
    a.label("K2_FIN")
    if st.on: a("s_waitcnt vmcnt(0)")
    st.flush(20, 3, 2, 3)
    a.label("K2_END")
    a("s_endpgm")

    a.label("K2_RARE")
    for r in range(3):
        a(f"v_lshrrev_b32 v{AD}, 24, v{L+r}", f"v_lshlrev_b32 v{AD}, 2, v{AD}",
          f"v_cmp_gt_u32 vcc, s64, v{AD}", f"v_mov_b32 v{AD+1}, {0xFE*4}", f"v_cmp_eq_u32 s[{MK}:{MK+1}], v{AD+1}, v{AD}",
          "s_mov_b64 exec, vcc", f"ds_add_rtn_u32 v{AD}, v{AD}, v5 offset:{L_CTR}", "s_waitcnt lgkmcnt(0)",
          f"v_min_u32 v{AD}, s65, v{AD}", f"ds_write_b32 v{AD}, v{R+4*r+3}",
          f"s_mov_b64 exec, s[{MK}:{MK+1}]", f"v_mov_b32 v{AD}, 0", f"v_mov_b32 v{AD+1}, 1", f"ds_add_rtn_u32 v{AD}, v{AD}, v{AD+1} offset:{L_OVC}",
          f"v_add_u32 v{AD+1}, {768*r}, v0", f"v_lshrrev_b32 v{AD+1}, 3, v{AD+1}", "s_waitcnt lgkmcnt(0)",
          f"v_and_b32 v{AD}, 255, v{AD}", f"v_lshlrev_b32 v{AD}, 2, v{AD}", f"ds_write_b32 v{AD}, v{AD+1} offset:{L_OVL}", "s_mov_b64 exec, -1")
    a("s_branch K2_INSD")

    SD, SS, SE = 40, 44, 48
    a.label("K2_RESCAN")
    srd(a, SD, 10, 11, E * 4); srd(a, SS, 8, 9, E * 4); srd(a, SE, 6, 7, E * 2)
    a("s_mov_b32 s52, 0", f"s_mul_i32 s53, s2, {NB}", "s_min_u32 s23, s23, 256")
    a.label("K2_RS1")
    T = Z0
    a("s_lshl_b32 s54, s52, 2", f"v_mov_b32 v{T}, s54", f"ds_read_b32 v{T}, v{T} offset:{L_OVL}", "s_waitcnt lgkmcnt(0)", f"v_readfirstlane_b32 s54, v{T}",
      "s_and_b32 s55, s54, 31", "s_lshl_b32 s55, s55, 3", "s_lshr_b32 s54, s54, 5", "s_add_u32 s54, s54, s55",
      f"s_mul_i32 s54, s54, {CH}", f"s_sub_u32 s55, {E}, s54", f"s_min_u32 s55, s55, {CH}",
      f"v_mov_b32 v{T}, v0")
    a.label("K2_RS2")
    a(f"v_add_u32 v{T+1}, s54, v{T}", f"v_lshlrev_b32 v{T+2}, 1, v{T+1}", f"v_lshlrev_b32 v{T+1}, 2, v{T+1}",
      f"buffer_load_dword v{T+3}, v{T+1}, s[{SD}:{SD+3}], 0 offen", f"buffer_load_dword v{T+4}, v{T+1}, s[{SS}:{SS+3}], 0 offen",
      f"buffer_load_ushort v{T+5}, v{T+2}, s[{SE}:{SE+3}], 0 offen", "s_waitcnt vmcnt(0)",
      f"v_subrev_u32 v{T+3}, s53, v{T+3}", f"v_cmp_gt_u32 vcc, {NB}, v{T+3}", f"v_cmp_gt_u32 s[56:57], s55, v{T}", "s_and_b64 exec, vcc, s[56:57]",
      f"v_lshlrev_b32 v{T+3}, 2, v{T+3}", f"ds_add_rtn_u32 v{T+3}, v{T+3}, v5 offset:{L_CTR}", f"v_lshl_or_b32 v{T+4}, v{T+5}, 16, v{T+4}",
      "s_waitcnt lgkmcnt(0)", f"v_min_u32 v{T+3}, s65, v{T+3}", f"ds_write_b32 v{T+3}, v{T+4}", "s_mov_b64 exec, -1",
      f"v_add_u32 v{T}, 768, v{T}", f"v_cmp_gt_u32 vcc, s55, v{T}", "s_cbranch_vccnz K2_RS2")
    a("s_add_u32 s52, s52, 1", "s_cmp_lt_u32 s52, s23", "s_cbranch_scc1 K2_RS1")
    a("s_mov_b32 s68, -1", "s_waitcnt lgkmcnt(0)", "s_barrier", "s_branch K2_AB1")

    a.label("K2_BF")
    T = Z0
    a("s_waitcnt vmcnt(0) lgkmcnt(0)")
    srd(a, SD, 10, 11, E * 4); srd(a, SS, 8, 9, E * 4); srd(a, SE, 6, 7, E * 2); srd(a, 52, 12, 13, 129 * 128)
    for i in range(4): a(f"v_mov_b32 v{T+i}, 0")
    a(f"v_lshlrev_b32 v{T+4}, 4, v0", f"v_add_u32 v{T+4}, {L_ELL}, v{T+4}")
    for i in range(3): a(f"ds_write_b128 v{T+4}, {vr(T,4)} offset:{12288*i}")
    LN, F4, F2, PO, W3 = T + 4, T + 5, T + 6, T + 7, T + 8
    a(f"v_and_b32 v{LN}, 63, v0", f"v_lshlrev_b32 v{F4}, 2, v{LN}", f"v_lshlrev_b32 v{F2}, 1, v{LN}",
      f"v_and_b32 v{PO}, 8, v{LN}", f"v_lshlrev_b32 v{PO}, 3, v{PO}", f"v_and_b32 v{T}, 48, v{LN}", f"v_add_u32 v{PO}, v{PO}, v{T}",
      f"v_and_b32 v{T}, 7, v{LN}", f"v_lshl_add_u32 v{PO}, v{T}, 1, v{PO}",
      "s_movk_i32 s56, 16384", f"buffer_load_ushort v{W3}, v{F2}, s[52:55], s56 offen", "s_waitcnt vmcnt(0) lgkmcnt(0)",
      f"v_lshlrev_b32 v{W3}, 16, v{W3}", f"v_mul_f32 v{W3}, s66, v{W3}",
      f"s_mul_i32 s57, s2, {NB}", "s_mov_b32 s56, s3", "s_barrier")
    a.label("K2_BF1")
    DV, SV, EV = T + 9, T + 10, T + 11
    a("s_lshl_b32 s58, s56, 8", "s_lshl_b32 s59, s56, 7",
      f"buffer_load_dword v{DV}, v{F4}, s[{SD}:{SD+3}], s58 offen", "s_waitcnt vmcnt(0)",
      f"v_subrev_u32 v{DV}, s57, v{DV}", f"v_cmp_gt_u32 vcc, {NB}, v{DV}", "s_cbranch_vccz K2_BF3",
      f"buffer_load_dword v{SV}, v{F4}, s[{SS}:{SS+3}], s58 offen", f"buffer_load_ushort v{EV}, v{F2}, s[{SE}:{SE+3}], s59 offen",
      "s_mov_b64 s[60:61], vcc", "s_waitcnt vmcnt(0)")
    a.label("K2_BF2")
    a("s_ff1_i32_b64 s58, s[60:61]", "s_bitset0_b64 s[60:61], s58",
      f"v_readlane_b32 s59, v{SV}, s58", f"v_readlane_b32 s62, v{DV}, s58", f"v_readlane_b32 s63, v{EV}, s58",
      "s_min_u32 s59, s59, %d" % (N - 1), "s_lshl_b32 s59, s59, 7", f"buffer_load_ushort v{T}, v{PO}, s[{SWS}:{SWS+3}], s59 offen",
      f"s_mul_i32 s58, s62, {QSTR}", f"v_add_u32 v{T+1}, s58, v{F4}", f"ds_read_b32 v{T+1}, v{T+1} offset:{L_QS}",
      "s_lshl_b32 s63, s63, 16", "s_lshl_b32 s62, s62, 8", f"s_add_u32 s62, s62, {L_ELL}", f"v_add_u32 v{T+2}, s62, v{F4}",
      "s_waitcnt vmcnt(0) lgkmcnt(0)",
      f"v_lshlrev_b32 v{T}, 16, v{T}", f"v_add_f32 v{T}, v{T}, v{T+1}", f"v_fma_f32 v{T}, s63, v{W3}, v{T}",
      f"v_exp_f32 v{T+1}, v{T}", f"v_add_f32 v{T+1}, 1.0, v{T+1}", f"v_rcp_f32 v{T+1}, v{T+1}", f"v_mul_f32 v{T}, {NLN2:#x}, v{T}", f"v_mul_f32 v{T}, v{T}, v{T+1}",
      f"ds_add_f32 v{T+2}, v{T}", "s_cmp_lg_u64 s[60:61], 0", "s_cbranch_scc1 K2_BF2")
    a.label("K2_BF3")
    a("s_add_u32 s56, s56, 12", f"s_cmp_lt_u32 s56, {E//64}", "s_cbranch_scc1 K2_BF1")
    a("s_waitcnt lgkmcnt(0)", "s_barrier", f"v_mov_b32 v{T+4}, v0")
    a.label("K2_BF4")
    a(f"v_lshlrev_b32 v{T+5}, 3, v{T+4}", f"v_add_u32 v{T+5}, {L_ELL}, v{T+5}", f"ds_read_b64 {vr(T,2)}, v{T+5}",
      f"v_lshrrev_b32 v{T+5}, 5, v{T+4}", f"v_mul_u32_u24 v{T+5}, {ASTR}, v{T+5}", f"v_and_b32 v{T+6}, 31, v{T+4}", f"v_lshl_add_u32 v{T+5}, v{T+6}, 2, v{T+5}",
      "s_waitcnt lgkmcnt(0)", f"v_cvt_pk_bf16_f32 v{T}, v{T}, v{T+1}", f"ds_write_b32 v{T+5}, v{T} offset:{L_AGB}",
      f"v_add_u32 v{T+4}, 768, v{T+4}", f"v_cmpx_gt_u32 vcc, {NB*32}, v{T+4}", "s_cbranch_execnz K2_BF4")
    a("s_mov_b64 exec, -1", "s_mov_b32 s71, -1", "s_waitcnt lgkmcnt(0)", "s_barrier", "s_branch K2_EPI")
    return a.lines

def kd(name, vg, sg=102):
    return f""".amdhsa_kernel {name}
  .amdhsa_next_free_vgpr {vg}
  .amdhsa_next_free_sgpr {sg}
  .amdhsa_accum_offset {vg}
  .amdhsa_group_segment_fixed_size 0
  .amdhsa_kernarg_size 72
  .amdhsa_user_sgpr_count 2
  .amdhsa_user_sgpr_kernarg_segment_ptr 1
  .amdhsa_system_sgpr_workgroup_id_x 1
.end_amdhsa_kernel"""

def build(opt=None):
    opt = opt or {}
    out = ["; mpnn edge MLP: K1 bins edges by destination bucket and builds the P' table, K2 aggregates and updates",
           f"; @launch kernel=mpnn_bin_kernel grid=(256,1,1) block=(1024,1,1) lds={K1_LDS}",
           f"; @launch kernel=mpnn_msg_kernel grid=(256,1,1) block=(768,1,1) lds={K2_LDS}",
           '.amdgcn_target "amdgcn-amd-amdhsa--gfx950"', ".text"]
    for name, fn in (("mpnn_bin_kernel", gen_k1), ("mpnn_msg_kernel", gen_k2)):
        lines, nn = fix_hazards(fn(opt), verbose=opt.get("verbose"))
        out += [f".globl {name}", ".p2align 8", f".type {name},@function"] + lines
    out += ['.section .rodata,"a"', ".p2align 6", kd("mpnn_bin_kernel", 128), ".p2align 6", kd("mpnn_msg_kernel", 168)]
    return "\n".join(out) + "\n"

if __name__ == "__main__":
    import argparse
    ap = argparse.ArgumentParser(); ap.add_argument("-o", default="standalone__mpnn_edge_mlp__graph.s")
    ap.add_argument("--stamp", action="store_true"); ap.add_argument("-v", action="store_true")
    g = ap.parse_args()
    open(g.o, "w").write(build({"stamp": g.stamp, "verbose": g.v}))
```

```python
import sys, struct, math
sys.path.insert(0, "gen")
from asmlib import *

N = 25000; E = 800000; NB = 98; CH = 3128; CAP = 72
WS_REC = 0x400000; WS_DL = 0xC00000; WS_WF = 0xE00000; WS_END = WS_WF + 25 * 1024
WS_STAMP = 0x1000000
f2u = lambda f: struct.unpack("<I", struct.pack("<f", f))[0]
NLOG2E = f2u(-1.4426950408889634); NLN2 = f2u(-0.6931471805599453)
NTILE = (N + 15) // 16

def mf16(d, a, b, c): return f"v_mfma_f32_16x16x32_bf16 {vr(d,4)}, {vr(a,4)}, {vr(b,4)}, {c if isinstance(c,str) else vr(c,4)}"
def mf32(d, a, b, c): return f"v_mfma_f32_32x32x16_bf16 {vr(d,16)}, {vr(a,4)}, {vr(b,4)}, {vr(c,16)}"

class Stamps:
    def __init__(self, a, on, base, kidx, nw): self.a = a; self.on = on; self.base = base; self.k = 0; self.kidx = kidx; self.nw = nw
    def __call__(self):
        if not self.on: return
        r = self.base + 2 * self.k; self.k += 1
        self.a(f"s_waitcnt lgkmcnt(0)", f"s_memrealtime s[{r}:{r+1}]", "s_waitcnt lgkmcnt(0)")
    def flush(self, ws, wave, t0, t1):
        if not self.on: return
        a = self.a
        self()
        a("s_mov_b64 exec, -1")
        a(f"v_mov_b32 v{t0}, 0")
        for k in range(self.k): a(f"v_writelane_b32 v{t0}, s{self.base+2*k}, {k}")
        if self.on == 2:
            b = self.base
            a(f"s_add_u32 s{b}, s2, s{wave}", f"s_cmp_lg_u32 s{b}, 0", f"s_cbranch_scc1 STK{self.kidx}",
              f"s_load_dwordx2 s[{b}:{b+1}], s[0:1], 56", f"v_and_b32 v{t1}, 63, v0", f"v_lshlrev_b32 v{t1}, 2, v{t1}", f"v_add_u32 v{t1}, {1024 + (-512+24 if self.kidx else 0)}, v{t1}",
              "s_waitcnt lgkmcnt(0)", f"s_mov_b64 exec, {0x3ff if self.kidx else 0x3f}", f"global_store_dword v{t1}, v{t0}, s[{b}:{b+1}] offset:-1024")
            a.label(f"STK{self.kidx}")
            return
        a(f"s_mul_i32 s{self.base}, s2, {self.nw}", f"s_add_u32 s{self.base}, s{self.base}, s{wave}", f"s_lshl_b32 s{self.base}, s{self.base}, 6",
          f"s_add_u32 s{self.base}, s{self.base}, {WS_STAMP + self.kidx * 0x100000}",
          f"v_and_b32 v{t1}, 63, v0", f"v_lshlrev_b32 v{t1}, 2, v{t1}", f"v_add_u32 v{t1}, s{self.base}, v{t1}",
          "s_mov_b64 exec, 0xffff", f"global_store_dword v{t1}, v{t0}, s[{ws}:{ws+1}]")

def srd(a, r, lo, hi, num, stride=0):
    a(f"s_mov_b32 s{r}, s{lo}")
    if stride: a(f"s_or_b32 s{r+1}, s{hi}, {stride << 16:#x}")
    else: a(f"s_mov_b32 s{r+1}, s{hi}")
    a(f"s_mov_b32 s{r+2}, {num}", f"s_mov_b32 s{r+3}, 0x20000")

K1_DLB = 32768; K1_CNT = 40960; K1_LDS = 41984
def gen_k1(opt):
    a = Asm(); st = Stamps(a, opt.get("stamp"), 70, 0, 16)
    a.label("mpnn_bin_kernel")
    a("s_cmp_ge_u32 s2, 256", "s_cbranch_scc1 K1_END")
    a("s_load_dwordx8 s[4:11], s[0:1], 0", "s_load_dwordx4 s[12:15], s[0:1], 32", "s_load_dwordx2 s[16:17], s[0:1], 64")
    a("v_lshrrev_b32 v1, 6, v0", "v_mov_b32 v2, -1", "v_readfirstlane_b32 s3, v1", "v_mov_b32 v3, -1",
      "v_lshlrev_b32 v4, 3, v0", f"ds_write_b64 v4, v[2:3] offset:{K1_DLB}",
      "v_and_b32 v5, 255, v0", "v_lshlrev_b32 v5, 2, v5", "v_mov_b32 v6, 0", f"ds_write_b32 v5, v6 offset:{K1_CNT}")
    a("v_lshlrev_b32 v7, 4, v0")
    a("s_cmp_ge_u32 s3, 13", "s_cbranch_scc1 K1_P")
    DST, SRC, EE, B, DL, RK, REC = 8, 12, 16, 20, 24, 28, 32
    a(f"s_mul_i32 s18, s2, {CH}", f"s_sub_u32 s19, {E}, s18", f"s_min_u32 s19, s19, {CH}", "s_lshl_b32 s36, s18, 2", "s_lshl_b32 s37, s18, 1")
    a("s_waitcnt lgkmcnt(0)")
    st()
    srd(a, 20, 10, 11, E * 4)
    a(f"buffer_load_dwordx4 {vr(DST,4)}, v7, s[20:23], s36 offen")
    srd(a, 24, 8, 9, E * 4)
    a(f"buffer_load_dwordx4 {vr(SRC,4)}, v7, s[24:27], s36 offen")
    srd(a, 28, 6, 7, E * 2)
    a(f"buffer_load_dwordx2 {vr(EE,2)}, v4, s[28:31], s37 offen")
    srd(a, 32, 16, 17, WS_END)
    a("s_barrier")
    a("v_lshlrev_b32 v1, 2, v0", "v_cmp_gt_u32 vcc, s19, v1", "v_mov_b32 v6, 1", "s_movk_i32 s38, -98", "s_mov_b32 s39, 0xffff0000",
      "s_mov_b64 exec, vcc", "s_cbranch_execz K1_B1")
    a("s_waitcnt vmcnt(2)")
    st()
    for i in range(4):
        a(f"v_mul_u32_u24 v{B+i}, 21400, v{DST+i}", f"v_lshrrev_b32 v{B+i}, 21, v{B+i}", f"v_lshlrev_b32 v{RK+i}, 2, v{B+i}",
          f"ds_add_rtn_u32 v{RK+i}, v{RK+i}, v6 offset:{K1_CNT}")
    for i in range(4): a(f"v_mad_i32_i24 v{DL+i}, v{B+i}, s38, v{DST+i}")
    a("s_waitcnt vmcnt(0)")
    for i in range(4):
        if i % 2 == 0: a(f"v_lshl_or_b32 v{REC+i}, v{EE+i//2}, 16, v{SRC+i}")
        else: a(f"v_and_or_b32 v{REC+i}, v{EE+i//2}, s39, v{SRC+i}")
    for i in range(4):
        a(f"s_waitcnt lgkmcnt({3+i})")
        a(f"v_min_u32 v{RK+i}, 31, v{RK+i}", f"v_and_b32 v1, 7, v{RK+i}", f"v_lshrrev_b32 v{RK+i}, 3, v{RK+i}", f"v_lshl_add_u32 v1, v1, 2, v{RK+i}",
          f"v_lshl_add_u32 v{B+i}, v{B+i}, 5, v1", f"v_lshlrev_b32 v{RK+i}, 2, v{B+i}",
          f"ds_write_b32 v{RK+i}, v{REC+i}", f"ds_write_b8 v{B+i}, v{DL+i} offset:{K1_DLB}")
    a.label("K1_B1")
    a("s_mov_b64 exec, -1")
    a("s_and_b32 s40, s2, 7", "s_lshl_b32 s40, s40, 5", "s_lshr_b32 s41, s2, 3", "s_add_u32 s40, s40, s41",
      "s_lshl_b32 s41, s40, 7", f"s_add_u32 s41, s41, {WS_REC}", f"s_add_u32 s42, s41, {128*32768}",
      "s_lshl_b32 s43, s40, 5", f"s_add_u32 s43, s43, {WS_DL}")
    a("v_lshrrev_b32 v1, 3, v0", "v_lshlrev_b32 v1, 15, v1", "v_and_b32 v2, 7, v0", "v_lshl_add_u32 v1, v2, 4, v1")
    a("v_lshrrev_b32 v2, 1, v0", "v_lshlrev_b32 v3, 2, v2", "v_lshlrev_b32 v2, 13, v2", "v_and_b32 v4, 1, v0", "v_lshl_add_u32 v2, v4, 4, v2")
    a("v_lshlrev_b32 v4, 24, v4", "v_not_b32 v4, v4")
    a("s_waitcnt lgkmcnt(0)", "s_barrier")
    st()
    a("ds_read_b128 v[8:11], v7", "ds_read_b128 v[12:15], v7 offset:16384")
    a("s_cmp_ge_u32 s3, 8", "s_cbranch_scc1 K1_NODL")
    a(f"ds_read_b128 v[16:19], v7 offset:{K1_DLB}", f"ds_read_b32 v5, v3 offset:{K1_CNT}")
    a("s_waitcnt lgkmcnt(0)", "v_cmp_lt_u32 vcc, 32, v5")
    a("v_cndmask_b32 v16, v16, -1, vcc", "v_cndmask_b32 v17, v17, -1, vcc", "v_cndmask_b32 v18, v18, -1, vcc", "v_cndmask_b32 v19, v19, v4, vcc")
    a("buffer_store_dwordx4 v[16:19], v2, s[32:35], s43 offen")
    a.label("K1_NODL")
    a("s_waitcnt lgkmcnt(1)", "buffer_store_dwordx4 v[8:11], v1, s[32:35], s41 offen",
      "s_waitcnt lgkmcnt(0)", "buffer_store_dwordx4 v[12:15], v1, s[32:35], s42 offen")
    if st.on: a("s_waitcnt vmcnt(0)")
    st.flush(16, 3, 20, 21)
    a.label("K1_END")
    a("s_endpgm")
    W, A, X, D, O = 8, 40, 72, 96, 112
    a.label("K1_P")
    a("v_and_b32 v1, 15, v0", "v_bfe_u32 v2, v0, 4, 2",
      "v_lshlrev_b32 v3, 10, v2", "v_lshl_add_u32 v3, v1, 3, v3",
      "v_lshlrev_b32 v4, 7, v1", "v_lshl_add_u32 v4, v2, 4, v4")
    a("s_mul_i32 s18, s2, 3", "s_add_u32 s18, s18, s3", "s_sub_u32 s18, s18, 13",
      "s_lshl_b32 s36, s18, 11", f"s_add_u32 s37, s36, {768*2048}", f"s_add_u32 s38, s36, {1536*2048}", "s_movk_i32 s39, 4096")
    a("s_waitcnt lgkmcnt(0)")
    st.k = 0; st()
    srd(a, 20, 12, 13, 129 * 128)
    srd(a, 24, 4, 5, N * 128)
    for i in range(2):
        for s in range(2): a(f"buffer_load_dwordx4 {vr(X+8*i+4*s,4)}, v4, s[24:27], s{36+i} offen offset:{64*s}")
    for s in range(2):
        for kk in range(8): a(f"buffer_load_dwordx2 {vr(W+16*s+2*kk,2)}, v3, s[20:23], {'s39' if s else '0'} offen offset:{128*kk}")
    for s in range(2): a(f"buffer_load_dwordx4 {vr(X+16+4*s,4)}, v4, s[24:27], s38 offen offset:{64*s}")
    srd(a, 28, 16, 17, N * 128)
    srd(a, 32, 16, 17, WS_END)
    a("s_barrier")
    a("s_mov_b32 s44, 0x05040100", "s_mov_b32 s45, 0x07060302", f"s_mov_b32 s46, {NLOG2E:#x}", f"s_mov_b32 s47, {NLOG2E:#x}")
    a("s_waitcnt vmcnt(2)")
    st()
    for tau in range(4):
        for s in range(2):
            for rr in range(4):
                a(f"v_perm_b32 v{A+8*tau+4*s+rr}, v{W+16*s+2*(2*rr+1)+tau//2}, v{W+16*s+2*(2*rr)+tau//2}, s{44+tau%2}")
    for i in range(3):
        if i == 2:
            a(f"s_cmp_ge_u32 s18, {NTILE-1536}", "s_cbranch_scc1 K1_PD", "s_waitcnt vmcnt(4)")
        for tau in range(4): a(mf16(D+4*tau, A+8*tau, X+8*i, "0"))
        for tau in range(4): a(mf16(D+4*tau, A+8*tau+4, X+8*i+4, D+4*tau))
        for k in range(0, 16, 2): a(f"v_pk_mul_f32 {vr(D+k,2)}, {vr(D+k,2)}, s[46:47]")
        for r in range(4):
            for h in range(2): a(f"v_cvt_pk_bf16_f32 v{O+2*r+h}, v{D+4*(2*h)+r}, v{D+4*(2*h+1)+r}")
        a(f"buffer_store_dwordx4 {vr(O,4)}, v4, s[28:31], s{36+i} offen", f"buffer_store_dwordx4 {vr(O+4,4)}, v4, s[28:31], s{36+i} offen offset:64")
    a.label("K1_PD")
    a("s_cmp_lg_u32 s3, 15", "s_cbranch_scc1 K1_B1", "s_sub_u32 s18, s2, 16", "s_cmp_gt_u32 s18, 24", "s_cbranch_scc1 K1_B1")
    a("v_and_b32 v5, 63, v0", "v_lshlrev_b32 v5, 4, v5", "s_lshl_b32 s36, s18, 10", f"s_add_u32 s36, s36, {WS_WF}")
    a("s_cmp_eq_u32 s18, 24", "s_cbranch_scc1 K1_AE")
    a("s_mul_i32 s37, s18, 43", "s_lshr_b32 s37, s37, 8", "s_mul_i32 s38, s37, 6", "s_sub_u32 s38, s18, s38")
    a("v_lshlrev_b32 v3, 10, v2", "v_lshl_add_u32 v3, v1, 1, v3", "s_lshl_b32 s37, s37, 5", "s_lshl_b32 s39, s38, 12", "s_add_u32 s39, s39, s37")
    a("s_cmp_ge_u32 s38, 2", "s_cbranch_scc1 K1_FU")
    a("s_add_u32 s39, s39, 8192")
    for kk in range(8): a(f"buffer_load_ushort v{W+kk}, v3, s[20:23], s39 offen offset:{128*kk}")
    a("s_branch K1_FJ")
    a.label("K1_FU")
    srd(a, 24, 14, 15, 128 * 128)
    a("s_sub_u32 s39, s39, 8192")
    for kk in range(8): a(f"buffer_load_ushort v{W+kk}, v3, s[24:27], s39 offen offset:{128*kk}")
    a.label("K1_FJ")
    a("s_waitcnt vmcnt(0)")
    for rr in range(4): a(f"v_lshl_or_b32 v{A+rr}, v{W+2*rr+1}, 16, v{W+2*rr}")
    a(f"buffer_store_dwordx4 {vr(A,4)}, v5, s[32:35], s36 offen", "s_branch K1_B1")
    a.label("K1_AE")
    a("v_bfe_u32 v1, v0, 3, 2", "v_and_b32 v2, 3, v0", "v_lshl_add_u32 v1, v1, 2, v2", "v_lshlrev_b32 v1, 1, v1",
      "v_bfe_u32 v2, v0, 2, 1", "v_bfe_u32 v3, v0, 5, 1", "v_cmp_eq_u32 vcc, v2, v3", "s_movk_i32 s39, 16384")
    for c in range(4): a(f"buffer_load_ushort v{W+c}, v1, s[20:23], s39 offen offset:{32*c}")
    a("s_waitcnt vmcnt(0)")
    for c in range(4):
        a(f"v_lshlrev_b32 v{W+c}, 16, v{W+c}", f"v_mul_f32 v{W+c}, s46, v{W+c}", f"v_cvt_pk_bf16_f32 v{W+c}, 0, v{W+c}", f"v_cndmask_b32 v{A+c}, 0, v{W+c}, vcc")
    a(f"buffer_store_dwordx4 {vr(A,4)}, v5, s[32:35], s36 offen", "s_branch K1_B1")
    return a.lines

L_CTR = 0; L_OVC = 448; L_FLG = 452; L_SLOT = 512; L_OVL = 1280; L_QS = 2304; QSTR = 272
L_AGB = L_QS + 112 * QSTR; ASTR = 144
L_ELL = L_AGB + 112 * ASTR; ESTR = 516; EROWS = 80
K2_LDS = L_ELL + 3 * 768 * 16 + 6144
assert K2_LDS >= L_ELL + EROWS * ESTR and L_ELL % 16 == 0
ZCOL = 112 * 4; DUMP = L_ELL + CAP * ESTR + 400

def gen_k2(opt):
    a = Asm(); st = Stamps(a, opt.get("stamp"), 76, 1, 12)
    perm = opt.get("perm", [0, 1, 2, 3, 10, 6, 5, 4, 11, 9, 8, 7])
    Q, P, Z0, Z1, NN, DD, EX, BE, AL, AH, AE, ACC, WU2, IX, VI, VE, LEN, AGA, MFL, OOF, ARD = \
        8, 24, 40, 56, 72, 88, 104, 120, 124, 128, 132, 136, 148, 156, 158, 159, 163, 164, 165, 166, 167
    R = Z0; L = Z0 + 12; AD = Z1
    X = NN; W2 = EX; WU1 = EX + 8
    SWS, SPT, SX, SO = 24, 28, 32, 36
    MK = 40
    a.label("mpnn_msg_kernel")
    a("s_cmp_ge_u32 s2, 256", "s_cbranch_scc1 K2_END")
    a("s_load_dwordx2 s[20:21], s[0:1], 64", "s_load_dwordx16 s[4:19], s[0:1], 0")
    a("v_lshrrev_b32 v1, 6, v0", "v_lshlrev_b32 v2, 4, v0", "v_readfirstlane_b32 s3, v1", "v_lshlrev_b32 v3, 2, v0")
    for i in range(4): a(f"v_mov_b32 v{Q+i}, 0")
    for i in range(3): a(f"ds_write_b128 v2, {vr(Q,4)} offset:{L_ELL + i*12288}" if L_ELL + i*12288 < 65536 else None) if L_ELL + i*12288 < 65536 else None
    a(f"v_add_u32 v4, {L_ELL + 2*12288}, v2")
    for i in range(3):
        if L_ELL + i*12288 >= 65536: a(f"ds_write_b128 v4, {vr(Q,4)} offset:{(i-2)*12288}")
    a(f"v_lshlrev_b32 v5, 3, v0", f"v_add_u32 v5, {L_ELL + 3*12288}, v5", f"ds_write_b64 v5, {vr(Q,2)}")
    a("v_and_b32 v5, 127, v0", "v_lshlrev_b32 v5, 2, v5", f"v_add_u32 v4, {L_ELL}, v5", f"v_cmp_gt_u32 vcc, {NB*4}, v5", "v_cndmask_b32 v4, 0, v4, vcc",
      f"ds_write_b32 v5, v4 offset:{L_CTR}")
    a("s_lshl_b32 s64, s2, 15", f"s_add_u32 s64, s64, {WS_REC}", "s_add_u32 s65, s64, 12288", "s_add_u32 s66, s64, 24576",
      "s_lshl_b32 s67, s2, 13", f"s_add_u32 s67, s67, {WS_DL}", "s_add_u32 s68, s67, 6144")
    a(f"s_mul_i32 s69, s2, {NB}", f"s_sub_u32 s70, {N}, s69", f"s_min_u32 s70, s70, {NB}", "s_lshl_b32 s70, s70, 7", "s_lshl_b32 s71, s69, 7")
    a("s_and_b32 s72, s3, 3", "s_lshr_b32 s73, s3, 2")
    a(f"v_mov_b32 v{L+2}, -1")
    a("v_and_b32 v4, 15, v0", "v_bfe_u32 v5, v0, 4, 2")
    a(f"v_lshlrev_b32 v{OOF}, 7, v4", f"v_lshl_add_u32 v1, v5, 4, v{OOF}")
    a("s_lshl_b32 s74, s73, 11")
    a("s_waitcnt lgkmcnt(0)")
    st()
    srd(a, SWS, 20, 21, WS_END)
    a("s_cmp_ge_u32 s3, 8", "s_cbranch_scc1 K2_NOR2")
    a(f"buffer_load_dword v{L+2}, v3, s[{SWS}:{SWS+3}], s68 offen", f"buffer_load_dwordx4 {vr(R+8,4)}, v2, s[{SWS}:{SWS+3}], s66 offen")
    a.label("K2_NOR2")
    a(f"buffer_load_dword v{L}, v3, s[{SWS}:{SWS+3}], s67 offen", f"buffer_load_dword v{L+1}, v3, s[{SWS}:{SWS+3}], s67 offen offset:3072")
    a(f"buffer_load_dwordx4 {vr(R,4)}, v2, s[{SWS}:{SWS+3}], s64 offen", f"buffer_load_dwordx4 {vr(R+4,4)}, v2, s[{SWS}:{SWS+3}], s65 offen")
    a(f"s_add_u32 s{SX}, s4, s71", f"s_addc_u32 s{SX+1}, s5, 0", f"s_mov_b32 s{SX+2}, s70", f"s_mov_b32 s{SX+3}, 0x20000")
    a(f"s_add_u32 s75, s74, {3*2048}", f"s_add_u32 s22, s74, {6*2048}")
    for i, so in enumerate(("s74", "s75", "s22")):
        for s in range(2): a(f"buffer_load_dwordx4 {vr(X+8*i+4*s,4)}, v1, s[{SX}:{SX+3}], {so} offen offset:{64*s}")
    a("v_and_b32 v6, 63, v0", "v_lshlrev_b32 v6, 4, v6", f"s_mul_i32 s23, s72, 6144", f"s_add_u32 s23, s23, {WS_WF}", "s_add_u32 s64, s23, 4096", f"s_mov_b32 s65, {WS_WF + 24*1024}")
    for k in range(4): a(f"buffer_load_dwordx4 {vr(W2+4*k,4)}, v6, s[{SWS}:{SWS+3}], s23 offen offset:{1024*k}")
    for k in range(2): a(f"buffer_load_dwordx4 {vr(WU2+4*k,4)}, v6, s[{SWS}:{SWS+3}], s64 offen offset:{1024*k}")
    a(f"buffer_load_dwordx4 {vr(AE,4)}, v6, s[{SWS}:{SWS+3}], s65 offen")
    a("s_lshr_b32 s66, s2, 3", f"s_mul_i32 s66, s66, {782*128}", "v_lshlrev_b32 v7, 7, v0")
    a(f"buffer_load_dword v6, v7, s[{SWS}:{SWS+3}], s66 offen", f"buffer_load_dword v7, v7, s[{SWS}:{SWS+3}], s66 offen offset:64")
    srd(a, SPT, 20, 21, N, stride=128)
    a(f"s_add_u32 s{SO}, s16, s71", f"s_addc_u32 s{SO+1}, s17, 0", f"s_mov_b32 s{SO+2}, s70", f"s_mov_b32 s{SO+3}, 0x20000")
    a("s_barrier")
    T = Q
    a(f"v_and_b32 v{T}, 1, v0", f"v_lshlrev_b32 v{T}, 4, v{T}", f"v_mov_b32 v{T+1}, 0x3f80", f"v_lshlrev_b32 v{T}, v{T}, v{T+1}",
      f"v_bfe_u32 v{T+1}, v0, 3, 2", f"v_bfe_u32 v{T+2}, v0, 1, 1", f"v_lshl_add_u32 v{T+1}, v{T+1}, 1, v{T+2}",
      f"v_bfe_u32 v{T+2}, v0, 2, 1", f"v_bfe_u32 v{T+3}, v0, 5, 1", f"v_xor_b32 v{T+2}, v{T+2}, v{T+3}", f"v_lshl_add_u32 v{T+1}, v{T+2}, 3, v{T+1}")
    for k in range(8): a(f"v_cmp_eq_u32 s[{MK+2*k}:{MK+2*k+1}], {k}, v{T+1}")
    for k in range(8): a(f"v_cndmask_b32 v{AL+k}, 0, v{T}, s[{MK+2*k}:{MK+2*k+1}]")
    a(f"s_lshl_b32 s64, s72, 5", f"v_lshl_add_u32 v{OOF}, v5, 3, v{OOF}", f"v_add_u32 v{OOF}, s64, v{OOF}")
    a(f"s_lshl_b32 s64, s73, 4", f"v_add_u32 v4, s64, v4", f"v_mul_u32_u24 v{ARD}, {ASTR}, v4", f"v_lshl_add_u32 v{ARD}, v5, 4, v{ARD}")
    a(f"v_mul_u32_u24 v1, {QSTR}, v4", "v_lshl_add_u32 v1, v5, 4, v1", "s_lshl_b32 s64, s72, 6", "v_add_u32 v1, s64, v1")
    a(f"v_and_b32 v4, 3, v0", f"v_lshlrev_b32 v{IX+1}, 4, v4")
    a(f"v_mov_b32 v5, {ESTR}", f"s_movk_i32 s64, {NB*4}", f"s_mov_b32 s65, {DUMP}", f"s_mov_b32 s66, {NLOG2E:#x}", f"s_mov_b32 s67, {NLOG2E:#x}",
      "s_mov_b32 s68, 0", "s_mov_b32 s71, 0")
    order = [(r, jj) for jj in range(3) for r in (2, 0, 1)]
    a("s_waitcnt vmcnt(17)")
    st()
    for k, (r, jj) in enumerate(order):
        a(f"v_lshlrev_b32_sdwa v{AD+k}, 2, v{L+r} dst_sel:DWORD dst_unused:UNUSED_PAD src0_sel:DWORD src1_sel:BYTE_{jj}")
    for k in range(9): a(f"v_cmp_gt_u32 s[{MK+2*k}:{MK+2*k+1}], s64, v{AD+k}")
    a(f"v_and_b32 v{AD+9}, v{L}, v{L+1}", f"v_and_b32 v{AD+9}, v{AD+9}, v{L+2}", f"v_cmp_gt_u32 vcc, 0xff000000, v{AD+9}")
    for k in range(9): a(f"s_mov_b64 exec, s[{MK+2*k}:{MK+2*k+1}]", f"ds_add_rtn_u32 v{AD+k}, v{AD+k}, v5 offset:{L_CTR}")
    a("s_waitcnt vmcnt(15)")
    for k, (r, jj) in enumerate(order):
        a(f"s_mov_b64 exec, s[{MK+2*k}:{MK+2*k+1}]", "s_waitcnt lgkmcnt(8)", f"v_min_u32 v{AD+k}, s65, v{AD+k}", f"ds_write_b32 v{AD+k}, v{R+4*r+jj}")
    a("s_mov_b64 exec, -1", "s_cbranch_vccnz K2_RARE")
    a.label("K2_INSD")
    a("s_waitcnt lgkmcnt(0)", "s_barrier")
    st()
    a.label("K2_AB1")
    C = Q; OWN = Z1; RK = Z1 + 1; NQ = Z1 + 2; PP = Z1 + 3; T = Z1 + 4
    a(f"v_mov_b32 v{T}, 0", f"ds_read_b32 v{T+1}, v{T} offset:{L_OVC}")
    a("s_cmp_ge_u32 s3, 7", "s_cbranch_scc1 K2_NR1")
    a(f"v_lshrrev_b32 v{NQ}, 2, v0", f"v_and_b32 v{PP}, 3, v0", f"v_lshlrev_b32 v{T}, 2, v{NQ}", f"v_mul_u32_u24 v{T+2}, 112, v{PP}",
      f"ds_read_b32 v{OWN}, v{T} offset:{L_CTR}")
    for k in range(7): a(f"ds_read_b128 {vr(C+4*k,4)}, v{T+2} offset:{L_CTR+16*k}")
    a.label("K2_NR1")
    a("s_waitcnt vmcnt(7)")
    for i in range(3): a(mf16(ACC+4*i, W2, X+8*i, "0"))
    for i in range(3): a(mf16(ACC+4*i, W2+4, X+8*i+4, ACC+4*i))
    a("s_waitcnt lgkmcnt(0)", f"v_readfirstlane_b32 s23, v{T+1}", "s_andn2_b32 s23, s23, s68", "s_cbranch_scc1 K2_RESCAN")
    for i in range(3):
        if i == 2: a("s_cmp_lg_u32 s73, 0", "s_cbranch_scc1 K2_NQ2")
        a(f"v_pk_mul_f32 {vr(ACC+4*i,2)}, {vr(ACC+4*i,2)}, s[66:67]", f"v_pk_mul_f32 {vr(ACC+4*i+2,2)}, {vr(ACC+4*i+2,2)}, s[66:67]",
          f"ds_write_b128 v1, {vr(ACC+4*i,4)} offset:{L_QS + 48*QSTR*i}")
    a.label("K2_NQ2")
    a("s_cmp_ge_u32 s3, 7", "s_cbranch_scc1 K2_NR2")
    a(f"v_mov_b32 v{RK}, 0")
    for m in range(28 + 3):
        if m < 28: a(f"v_cmp_gt_u32 s[{MK+2*(m%4)}:{MK+2*(m%4)+1}], v{C+m}, v{OWN}")
        if m >= 3: a(f"v_addc_co_u32 v{RK}, vcc, 0, v{RK}, s[{MK+2*((m-3)%4)}:{MK+2*((m-3)%4)+1}]")
    a(f"v_add_u32 v{T}, {L_ELL}, v{T}", f"v_sub_u32 v{OWN}, v{OWN}, v{T}")
    a(f"v_add_u32_dpp v{RK}, v{RK}, v{RK} quad_perm:[1,0,3,2] row_mask:0xf bank_mask:0xf")
    a(f"v_cmp_lt_u32 vcc, {CAP*ESTR}, v{OWN}", f"v_min_u32 v{OWN}, {CAP*ESTR}, v{OWN}")
    a(f"v_add_u32_dpp v{RK}, v{RK}, v{RK} quad_perm:[2,3,0,1] row_mask:0xf bank_mask:0xf")
    a(f"v_lshrrev_b32 v{OWN}, 2, v{OWN}", f"v_mul_u32_u24 v{OWN}, 509, v{OWN}", f"v_lshrrev_b32 v{OWN}, 16, v{OWN}")
    a(f"s_movk_i32 s23, {NB}", f"v_cmp_gt_u32 s[{MK}:{MK+1}], s23, v{NQ}", f"s_and_b64 vcc, vcc, s[{MK}:{MK+1}]")
    a(f"s_movk_i32 s23, {NB-4}", f"v_cmp_gt_u32 s[{MK+2}:{MK+3}], s23, v{RK}")
    a(f"v_add_u32 v{T+1}, 1, v{OWN}", f"v_lshrrev_b32 v{T+2}, 1, v{T+1}", f"v_mul_u32_u24 v{T+2}, v{T+2}, v{PP}", f"v_mad_u32_u24 v{T}, v{T+2}, v5, v{T}",
      f"v_sub_u32 v{T+1}, v{T+1}, v{PP}", f"v_lshrrev_b32 v{T+1}, 1, v{T+1}", f"v_cndmask_b32 v{T+1}, v{OWN}, v{T+1}, s[{MK+2}:{MK+3}]",
      f"v_lshl_add_u32 v{T+2}, v{RK}, 1, v{PP}", f"v_add_u32 v{T+2}, 4, v{T+2}", f"v_subrev_u32 v{RK}, {NB-4}, v{RK}", f"v_cndmask_b32 v{T+2}, v{RK}, v{T+2}, s[{MK+2}:{MK+3}]",
      f"v_lshl_or_b32 v{T}, v{NQ}, 17, v{T}", f"v_lshl_or_b32 v{T}, v{T+1}, 24, v{T}", f"v_lshlrev_b32 v{T+2}, 2, v{T+2}",
      f"v_cndmask_b32 v{T+1}, 1, 2, s[{MK+2}:{MK+3}]", f"v_cmp_gt_u32 s[{MK+4}:{MK+5}], v{T+1}, v{PP}",
      f"s_and_b64 exec, s[{MK+4}:{MK+5}], s[{MK}:{MK+1}]", f"ds_write_b32 v{T+2}, v{T} offset:{L_SLOT}",
      "s_mov_b64 exec, vcc", f"v_mov_b32 v{T}, 0", f"ds_write_b32 v{T}, v5 offset:{L_FLG}", "s_mov_b64 exec, -1")
    a.label("K2_NR2")
    pk = sum(p << (4 * w) for w, p in enumerate(perm))
    a(f"s_mov_b32 s{MK}, {pk & 0xffffffff:#x}", f"s_mov_b32 s{MK+1}, {pk >> 32:#x}", "s_lshl_b32 s23, s3, 2", f"s_lshr_b64 s[{MK}:{MK+1}], s[{MK}:{MK+1}], s23",
      f"s_and_b32 s23, s{MK}, 15", "s_lshl_b32 s23, s23, 4")
    a(f"v_bfe_u32 v{T}, v0, 2, 4", f"v_add_u32 v{T}, s23, v{T}", f"v_lshlrev_b32 v{T+1}, 2, v{T}")
    a(f"v_and_b32 v{T+2}, 1, v{T}", f"v_cmp_gt_u32 vcc, 4, v{T}", f"v_cmp_eq_u32 s[{MK+2}:{MK+3}], 0, v{T+2}",
      f"s_or_b64 s[{MK}:{MK+1}], vcc, s[{MK+2}:{MK+3}]", f"s_andn2_b64 s[{MK+2}:{MK+3}], s[{MK+2}:{MK+3}], vcc",
      f"v_cndmask_b32 v{MFL}, 0, 1.0, s[{MK+2}:{MK+3}]")
    for r in range(4): a(f"v_cmp_eq_u32 s[{MK+4+2*r}:{MK+5+2*r}], {r}, v4")
    a(f"v_mov_b32 v{T+3}, {L_ELL + ZCOL}")
    a("s_waitcnt lgkmcnt(0)", "s_barrier")
    st()
    a(f"ds_read_b32 v{T}, v{T+1} offset:{L_SLOT}", "s_waitcnt lgkmcnt(0)")
    a(f"v_and_b32 v{VI}, 0x1ffff, v{T}", f"ds_read_u16 v{IX}, v{VI}", f"ds_read_u16 v{T+4}, v{VI} offset:{ESTR}", f"ds_read_u16 v{T+6}, v{VI} offset:{2*ESTR}")
    a(f"v_bfe_u32 v{T+1}, v{T}, 17, 7", f"v_lshrrev_b32 v{LEN}, 24, v{T}")
    for r in range(4): a(f"v_cndmask_b32 v{VE+r}, v{T+3}, v{VI}, s[{MK+4+2*r}:{MK+5+2*r}]")
    a(f"v_mul_u32_u24 v{T+2}, {QSTR}, v{T+1}", f"v_lshl_add_u32 v{T+2}, v4, 6, v{T+2}")
    a(f"v_mov_b32 v{T+5}, v{IX+1}", f"v_mov_b32 v{T+7}, v{IX+1}")
    def gather(slot, ix):
        p = P + 8 * slot
        return [f"buffer_load_dwordx4 {vr(p,4)}, {vr(ix,2)}, s[{SPT}:{SPT+3}], 0 idxen offen",
                f"buffer_load_dwordx4 {vr(p+4,4)}, {vr(ix,2)}, s[{SPT}:{SPT+3}], 0 idxen offen offset:64"]
    def rde(t): return [f"ds_read_b32 v{BE+r}, v{VE+r} offset:{t*ESTR}" for r in range(4)]
    a("s_waitcnt lgkmcnt(2)", *gather(0, IX), "s_waitcnt lgkmcnt(1)", *gather(1, T+4))
    for k in range(4): a(f"ds_read_b128 {vr(Q+4*k,4)}, v{T+2} offset:{L_QS+16*k}")
    a(*rde(0), f"ds_read_u16 v{IX}, v{VI} offset:{3*ESTR}")
    a(f"v_mul_u32_u24 v{AGA}, {ASTR}, v{T+1}", f"v_lshl_add_u32 v{AGA}, v4, 5, v{AGA}")
    a(f"v_readlane_b32 s69, v{LEN}, 0", f"v_readlane_b32 s70, v{LEN}, 16", "s_max_u32 s69, s69, s70", "s_mov_b32 s70, 0")
    a("s_waitcnt vmcnt(6)")
    for i in range(3): a(mf16(ACC+4*i, WU1, X+8*i, "0"))
    for i in range(3): a(mf16(ACC+4*i, WU1+4, X+8*i+4, ACC+4*i))
    for i in range(16): a(f"v_mov_b32 v{NN+i}, 0")
    for i in range(16): a(f"v_mov_b32 v{DD+i}, 1.0")
    a("s_cmp_eq_u32 s69, 0", "s_cbranch_scc1 K2_DONE")
    a("s_waitcnt vmcnt(2) lgkmcnt(0)")
    st()
    a(mf32(Z0, AE, BE, Q), mf32(Z0, AL, P, Z0), mf32(Z0, AH, P + 4, Z0))
    a(*gather(0, T+6), *rde(1), "s_nop 3")
    a(".p2align 6")
    a.label("K2_LOOP")
    for u in range(2):
        zc = (Z0, Z1)[u]; zn = (Z1, Z0)[u]; p = P + 8 * ((u + 1) % 2)
        ex = [f"v_exp_f32 v{EX+i}, v{zc+i}" for i in range(16)]
        a("s_waitcnt vmcnt(2) lgkmcnt(0)")
        a(mf32(zn, AE, BE, Q), *ex[0:4], mf32(zn, AL, p, zn), *ex[4:8], mf32(zn, AH, p + 4, zn), *ex[8:16])
        a(*gather((u + 1) % 2, IX), *rde(u + 2), f"ds_read_u16 v{IX}, v{VI} offset:{(u+4)*ESTR}")
        a(f"v_cmpx_lt_u32 vcc, s70, v{LEN}")
        for i in range(0, 16, 2): a(f"v_pk_fma_f32 {vr(NN+i,2)}, {vr(NN+i,2)}, {vr(EX+i,2)}, {vr(NN+i,2)}")
        for i in range(0, 16, 2): a(f"v_pk_fma_f32 {vr(NN+i,2)}, {vr(zc+i,2)}, {vr(DD+i,2)}, {vr(NN+i,2)}")
        for i in range(0, 16, 2): a(f"v_pk_fma_f32 {vr(DD+i,2)}, {vr(DD+i,2)}, {vr(EX+i,2)}, {vr(DD+i,2)}")
        a("s_mov_b64 exec, -1", "s_add_u32 s70, s70, 1", "s_cmp_ge_u32 s70, s69")
        if u == 0: a("s_cbranch_scc1 K2_DONE")
        else:
            for rg in [VI] + [VE + r for r in range(4)]: a(f"v_add_u32 v{rg}, {2*ESTR}, v{rg}")
            a("s_cbranch_scc0 K2_LOOP")
    a.label("K2_DONE")
    st()
    for i in range(16): a(f"v_rcp_f32 v{EX+i}, v{DD+i}")
    a(f"s_mov_b32 s66, {NLN2:#x}", f"s_mov_b32 s67, {NLN2:#x}", f"s_mov_b32 s64, {f2u(2.0**120):#x}")
    for i in range(0, 16, 2): a(f"v_pk_mul_f32 {vr(NN+i,2)}, {vr(NN+i,2)}, s[66:67]")
    a(f"v_max3_f32 v2, v{DD}, v{DD+1}, v{DD+2}")
    for i in range(3, 15, 2): a(f"v_max3_f32 v2, v{DD+i}, v{DD+i+1}, v2")
    a(f"v_max_f32 v2, v{DD+15}, v2")
    for i in range(0, 16, 2): a(f"v_pk_mul_f32 {vr(NN+i,2)}, {vr(NN+i,2)}, {vr(EX+i,2)}")
    a(f"v_pk_mul_f32 {vr(DD,2)}, {vr(NN,2)}, 0")
    for i in range(2, 16, 2): a(f"v_pk_fma_f32 {vr(DD,2)}, {vr(NN+i,2)}, 0, {vr(DD,2)}")
    for i in range(16): a(f"v_fmac_f32_dpp v{NN+i}, v{NN+i}, v{MFL} row_shl:4 row_mask:0xf bank_mask:0xf bound_ctrl:0")
    a(f"v_cmp_u_f32 vcc, v{DD}, v{DD+1}", f"v_cmp_nlt_f32 s[{MK+2}:{MK+3}], v2, s64", f"s_or_b64 vcc, vcc, s[{MK+2}:{MK+3}]")
    for i in range(8): a(f"v_cvt_pk_bf16_f32 v{EX+i}, v{NN+2*i}, v{NN+2*i+1}")
    a(f"s_mov_b64 exec, s[{MK}:{MK+1}]", f"ds_write_b128 v{AGA}, {vr(EX,4)} offset:{L_AGB}", f"ds_write_b128 v{AGA}, {vr(EX+4,4)} offset:{L_AGB+16}")
    a("s_mov_b64 exec, vcc", "v_mov_b32 v2, 0", f"ds_write_b32 v2, v5 offset:{L_FLG}", "s_mov_b64 exec, -1")
    a(f"s_mov_b32 s66, {NLOG2E:#x}", f"s_mov_b32 s67, {NLOG2E:#x}", "v_mov_b32 v2, 0")
    a("s_waitcnt lgkmcnt(0)", "s_barrier")
    st()
    a.label("K2_EPI")
    B = Z0; O = Q; TT = NN
    a(f"ds_read_b32 v3, v2 offset:{L_FLG}")
    for i in range(3):
        for s in range(2): a(f"ds_read_b128 {vr(B+8*i+4*s,4)}, v{ARD} offset:{L_AGB + 48*ASTR*i + 64*s}")
    a("s_waitcnt lgkmcnt(6)", "v_readfirstlane_b32 s23, v3", "s_andn2_b32 s23, s23, s71", "s_cbranch_scc1 K2_BF")
    def epi_tile(i):
        o = O + 4 * i; t = TT + 4 * i
        a(f"v_pk_mul_f32 {vr(t,2)}, {vr(o,2)}, s[66:67]", f"v_pk_mul_f32 {vr(t+2,2)}, {vr(o+2,2)}, s[66:67]")
        for k in range(4): a(f"v_exp_f32 v{t+k}, v{t+k}")
        a(f"v_pk_add_f32 {vr(t,2)}, {vr(t,2)}, 1.0 op_sel_hi:[1,0]", f"v_pk_add_f32 {vr(t+2,2)}, {vr(t+2,2)}, 1.0 op_sel_hi:[1,0]")
        for k in range(4): a(f"v_rcp_f32 v{t+k}, v{t+k}")
        a(f"v_pk_mul_f32 {vr(t,2)}, {vr(t,2)}, {vr(o,2)}", f"v_pk_mul_f32 {vr(t+2,2)}, {vr(t+2,2)}, {vr(o+2,2)}")
        a(f"v_cvt_pk_bf16_f32 v{o}, v{t}, v{t+1}", f"v_cvt_pk_bf16_f32 v{o+1}, v{t+2}, v{t+3}")
        a(f"buffer_store_dwordx2 {vr(o,2)}, v{OOF}, s[{SO}:{SO+3}], {('s74','s75','s22')[i]} offen")
    for i in range(3):
        a(f"s_waitcnt lgkmcnt({4-2*i})", mf16(O+4*i, WU2, B+8*i, ACC+4*i), mf16(O+4*i, WU2+4, B+8*i+4, O+4*i))
    epi_tile(0); epi_tile(1)
    a("s_cmp_lg_u32 s73, 0", "s_cbranch_scc1 K2_FIN")
    epi_tile(2)
    a.label("K2_FIN")
    if st.on: a("s_waitcnt vmcnt(0)")
    st.flush(20, 3, 2, 3)
    a.label("K2_END")
    a("s_endpgm")

    a.label("K2_RARE")
    for r in range(3):
        a(f"v_lshrrev_b32 v{AD}, 24, v{L+r}", f"v_lshlrev_b32 v{AD}, 2, v{AD}",
          f"v_cmp_gt_u32 vcc, s64, v{AD}", f"v_mov_b32 v{AD+1}, {0xFE*4}", f"v_cmp_eq_u32 s[{MK}:{MK+1}], v{AD+1}, v{AD}",
          "s_mov_b64 exec, vcc", f"ds_add_rtn_u32 v{AD}, v{AD}, v5 offset:{L_CTR}", "s_waitcnt lgkmcnt(0)",
          f"v_min_u32 v{AD}, s65, v{AD}", f"ds_write_b32 v{AD}, v{R+4*r+3}",
          f"s_mov_b64 exec, s[{MK}:{MK+1}]", f"v_mov_b32 v{AD}, 0", f"v_mov_b32 v{AD+1}, 1", f"ds_add_rtn_u32 v{AD}, v{AD}, v{AD+1} offset:{L_OVC}",
          f"v_add_u32 v{AD+1}, {768*r}, v0", f"v_lshrrev_b32 v{AD+1}, 3, v{AD+1}", "s_waitcnt lgkmcnt(0)",
          f"v_and_b32 v{AD}, 255, v{AD}", f"v_lshlrev_b32 v{AD}, 2, v{AD}", f"ds_write_b32 v{AD}, v{AD+1} offset:{L_OVL}", "s_mov_b64 exec, -1")
    a("s_branch K2_INSD")

    SD, SS, SE = 40, 44, 48
    a.label("K2_RESCAN")
    srd(a, SD, 10, 11, E * 4); srd(a, SS, 8, 9, E * 4); srd(a, SE, 6, 7, E * 2)
    a("s_mov_b32 s52, 0", f"s_mul_i32 s53, s2, {NB}", "s_min_u32 s23, s23, 256")
    a.label("K2_RS1")
    T = Z0
    a("s_lshl_b32 s54, s52, 2", f"v_mov_b32 v{T}, s54", f"ds_read_b32 v{T}, v{T} offset:{L_OVL}", "s_waitcnt lgkmcnt(0)", f"v_readfirstlane_b32 s54, v{T}",
      "s_and_b32 s55, s54, 31", "s_lshl_b32 s55, s55, 3", "s_lshr_b32 s54, s54, 5", "s_add_u32 s54, s54, s55",
      f"s_mul_i32 s54, s54, {CH}", f"s_sub_u32 s55, {E}, s54", f"s_min_u32 s55, s55, {CH}",
      f"v_mov_b32 v{T}, v0")
    a.label("K2_RS2")
    a(f"v_add_u32 v{T+1}, s54, v{T}", f"v_lshlrev_b32 v{T+2}, 1, v{T+1}", f"v_lshlrev_b32 v{T+1}, 2, v{T+1}",
      f"buffer_load_dword v{T+3}, v{T+1}, s[{SD}:{SD+3}], 0 offen", f"buffer_load_dword v{T+4}, v{T+1}, s[{SS}:{SS+3}], 0 offen",
      f"buffer_load_ushort v{T+5}, v{T+2}, s[{SE}:{SE+3}], 0 offen", "s_waitcnt vmcnt(0)",
      f"v_subrev_u32 v{T+3}, s53, v{T+3}", f"v_cmp_gt_u32 vcc, {NB}, v{T+3}", f"v_cmp_gt_u32 s[56:57], s55, v{T}", "s_and_b64 exec, vcc, s[56:57]",
      f"v_lshlrev_b32 v{T+3}, 2, v{T+3}", f"ds_add_rtn_u32 v{T+3}, v{T+3}, v5 offset:{L_CTR}", f"v_lshl_or_b32 v{T+4}, v{T+5}, 16, v{T+4}",
      "s_waitcnt lgkmcnt(0)", f"v_min_u32 v{T+3}, s65, v{T+3}", f"ds_write_b32 v{T+3}, v{T+4}", "s_mov_b64 exec, -1",
      f"v_add_u32 v{T}, 768, v{T}", f"v_cmp_gt_u32 vcc, s55, v{T}", "s_cbranch_vccnz K2_RS2")
    a("s_add_u32 s52, s52, 1", "s_cmp_lt_u32 s52, s23", "s_cbranch_scc1 K2_RS1")
    a("s_mov_b32 s68, -1", "s_waitcnt lgkmcnt(0)", "s_barrier", "s_branch K2_AB1")

    a.label("K2_BF")
    T = Z0
    a("s_waitcnt vmcnt(0) lgkmcnt(0)")
    srd(a, SD, 10, 11, E * 4); srd(a, SS, 8, 9, E * 4); srd(a, SE, 6, 7, E * 2); srd(a, 52, 12, 13, 129 * 128)
    for i in range(4): a(f"v_mov_b32 v{T+i}, 0")
    a(f"v_lshlrev_b32 v{T+4}, 4, v0", f"v_add_u32 v{T+4}, {L_ELL}, v{T+4}")
    for i in range(3): a(f"ds_write_b128 v{T+4}, {vr(T,4)} offset:{12288*i}")
    LN, F4, F2, PO, W3 = T + 4, T + 5, T + 6, T + 7, T + 8
    a(f"v_and_b32 v{LN}, 63, v0", f"v_lshlrev_b32 v{F4}, 2, v{LN}", f"v_lshlrev_b32 v{F2}, 1, v{LN}",
      f"v_and_b32 v{PO}, 8, v{LN}", f"v_lshlrev_b32 v{PO}, 3, v{PO}", f"v_and_b32 v{T}, 48, v{LN}", f"v_add_u32 v{PO}, v{PO}, v{T}",
      f"v_and_b32 v{T}, 7, v{LN}", f"v_lshl_add_u32 v{PO}, v{T}, 1, v{PO}",
      "s_movk_i32 s56, 16384", f"buffer_load_ushort v{W3}, v{F2}, s[52:55], s56 offen", "s_waitcnt vmcnt(0) lgkmcnt(0)",
      f"v_lshlrev_b32 v{W3}, 16, v{W3}", f"v_mul_f32 v{W3}, s66, v{W3}",
      f"s_mul_i32 s57, s2, {NB}", "s_mov_b32 s56, s3", "s_barrier")
    a.label("K2_BF1")
    DV, SV, EV = T + 9, T + 10, T + 11
    a("s_lshl_b32 s58, s56, 8", "s_lshl_b32 s59, s56, 7",
      f"buffer_load_dword v{DV}, v{F4}, s[{SD}:{SD+3}], s58 offen", "s_waitcnt vmcnt(0)",
      f"v_subrev_u32 v{DV}, s57, v{DV}", f"v_cmp_gt_u32 vcc, {NB}, v{DV}", "s_cbranch_vccz K2_BF3",
      f"buffer_load_dword v{SV}, v{F4}, s[{SS}:{SS+3}], s58 offen", f"buffer_load_ushort v{EV}, v{F2}, s[{SE}:{SE+3}], s59 offen",
      "s_mov_b64 s[60:61], vcc", "s_waitcnt vmcnt(0)")
    a.label("K2_BF2")
    a("s_ff1_i32_b64 s58, s[60:61]", "s_bitset0_b64 s[60:61], s58",
      f"v_readlane_b32 s59, v{SV}, s58", f"v_readlane_b32 s62, v{DV}, s58", f"v_readlane_b32 s63, v{EV}, s58",
      "s_min_u32 s59, s59, %d" % (N - 1), "s_lshl_b32 s59, s59, 7", f"buffer_load_ushort v{T}, v{PO}, s[{SWS}:{SWS+3}], s59 offen",
      f"s_mul_i32 s58, s62, {QSTR}", f"v_add_u32 v{T+1}, s58, v{F4}", f"ds_read_b32 v{T+1}, v{T+1} offset:{L_QS}",
      "s_lshl_b32 s63, s63, 16", "s_lshl_b32 s62, s62, 8", f"s_add_u32 s62, s62, {L_ELL}", f"v_add_u32 v{T+2}, s62, v{F4}",
      "s_waitcnt vmcnt(0) lgkmcnt(0)",
      f"v_lshlrev_b32 v{T}, 16, v{T}", f"v_add_f32 v{T}, v{T}, v{T+1}", f"v_fma_f32 v{T}, s63, v{W3}, v{T}",
      f"v_exp_f32 v{T+1}, v{T}", f"v_add_f32 v{T+1}, 1.0, v{T+1}", f"v_rcp_f32 v{T+1}, v{T+1}", f"v_mul_f32 v{T}, {NLN2:#x}, v{T}", f"v_mul_f32 v{T}, v{T}, v{T+1}",
      f"ds_add_f32 v{T+2}, v{T}", "s_cmp_lg_u64 s[60:61], 0", "s_cbranch_scc1 K2_BF2")
    a.label("K2_BF3")
    a("s_add_u32 s56, s56, 12", f"s_cmp_lt_u32 s56, {E//64}", "s_cbranch_scc1 K2_BF1")
    a("s_waitcnt lgkmcnt(0)", "s_barrier", f"v_mov_b32 v{T+4}, v0")
    a.label("K2_BF4")
    a(f"v_lshlrev_b32 v{T+5}, 3, v{T+4}", f"v_add_u32 v{T+5}, {L_ELL}, v{T+5}", f"ds_read_b64 {vr(T,2)}, v{T+5}",
      f"v_lshrrev_b32 v{T+5}, 5, v{T+4}", f"v_mul_u32_u24 v{T+5}, {ASTR}, v{T+5}", f"v_and_b32 v{T+6}, 31, v{T+4}", f"v_lshl_add_u32 v{T+5}, v{T+6}, 2, v{T+5}",
      "s_waitcnt lgkmcnt(0)", f"v_cvt_pk_bf16_f32 v{T}, v{T}, v{T+1}", f"ds_write_b32 v{T+5}, v{T} offset:{L_AGB}",
      f"v_add_u32 v{T+4}, 768, v{T+4}", f"v_cmpx_gt_u32 vcc, {NB*32}, v{T+4}", "s_cbranch_execnz K2_BF4")
    a("s_mov_b64 exec, -1", "s_mov_b32 s71, -1", "s_waitcnt lgkmcnt(0)", "s_barrier", "s_branch K2_EPI")
    return a.lines

def kd(name, vg, sg=102):
    return f""".amdhsa_kernel {name}
  .amdhsa_next_free_vgpr {vg}
  .amdhsa_next_free_sgpr {sg}
  .amdhsa_accum_offset {vg}
  .amdhsa_group_segment_fixed_size 0
  .amdhsa_kernarg_size 72
  .amdhsa_user_sgpr_count 2
  .amdhsa_user_sgpr_kernarg_segment_ptr 1
  .amdhsa_system_sgpr_workgroup_id_x 1
.end_amdhsa_kernel"""

def build(opt=None):
    opt = opt or {}
    out = ["; mpnn edge MLP: K1 bins edges by destination bucket and builds the P' table, K2 aggregates and updates",
           f"; @launch kernel=mpnn_bin_kernel grid=(256,1,1) block=(1024,1,1) lds={K1_LDS}",
           f"; @launch kernel=mpnn_msg_kernel grid=(256,1,1) block=(768,1,1) lds={K2_LDS}",
           '.amdgcn_target "amdgcn-amd-amdhsa--gfx950"', ".text"]
    for name, fn in (("mpnn_bin_kernel", gen_k1), ("mpnn_msg_kernel", gen_k2)):
        lines, nn = fix_hazards(fn(opt), verbose=opt.get("verbose"))
        out += [f".globl {name}", ".p2align 8", f".type {name},@function"] + lines
    out += ['.section .rodata,"a"', ".p2align 6", kd("mpnn_bin_kernel", 128), ".p2align 6", kd("mpnn_msg_kernel", 168)]
    return "\n".join(out) + "\n"

if __name__ == "__main__":
    import argparse
    ap = argparse.ArgumentParser(); ap.add_argument("-o", default="standalone__mpnn_edge_mlp__graph.s")
    ap.add_argument("--stamp", type=int, default=0); ap.add_argument("-v", action="store_true")
    g = ap.parse_args()
    open(g.o, "w").write(build({"stamp": g.stamp, "verbose": g.v}))
```

```python
import sys, struct, math
sys.path.insert(0, "gen")
from asmlib import *

N = 25000; E = 800000; NB = 98; CH = 3128; CAP = 72
WS_REC = 0x400000; WS_DL = 0xC00000; WS_WF = 0xE00000; WS_END = WS_WF + 25 * 1024
WS_STAMP = 0x1000000
f2u = lambda f: struct.unpack("<I", struct.pack("<f", f))[0]
NLOG2E = f2u(-1.4426950408889634); NLN2 = f2u(-0.6931471805599453)
NTILE = (N + 15) // 16

def mf16(d, a, b, c): return f"v_mfma_f32_16x16x32_bf16 {vr(d,4)}, {vr(a,4)}, {vr(b,4)}, {c if isinstance(c,str) else vr(c,4)}"
def mf32(d, a, b, c): return f"v_mfma_f32_32x32x16_bf16 {vr(d,16)}, {vr(a,4)}, {vr(b,4)}, {vr(c,16)}"

class Stamps:
    def __init__(self, a, on, base, kidx, nw): self.a = a; self.on = on; self.base = base; self.k = 0; self.kidx = kidx; self.nw = nw
    def __call__(self):
        if not self.on: return
        r = self.base + 2 * self.k; self.k += 1
        self.a(f"s_waitcnt lgkmcnt(0)", f"s_memrealtime s[{r}:{r+1}]", "s_waitcnt lgkmcnt(0)")
    def flush(self, ws, wave, t0, t1):
        if not self.on: return
        a = self.a
        self()
        a("s_mov_b64 exec, -1")
        a(f"v_mov_b32 v{t0}, 0")
        for k in range(self.k): a(f"v_writelane_b32 v{t0}, s{self.base+2*k}, {k}")
        if self.on == 2 and self.kidx == 1:
            b = self.base
            a(f"s_add_u32 s{b}, s2, s{wave}", f"s_cmp_lg_u32 s{b}, 0", f"s_cbranch_scc1 STK{self.kidx}",
              f"s_load_dwordx2 s[{b}:{b+1}], s[0:1], 56", f"v_and_b32 v{t1}, 63, v0", f"v_lshlrev_b32 v{t1}, 2, v{t1}",
              f"v_add_u32 v{t1+1}, {WS_STAMP}, v{t1}", f"global_load_dword v{t1+1}, v{t1+1}, s[{ws}:{ws+1}]",
              "s_waitcnt vmcnt(0) lgkmcnt(0)", f"s_mov_b64 exec, 0x3ff", f"global_store_dword v{t1}, v{t0}, s[{b}:{b+1}] offset:24",
              f"s_mov_b64 exec, 0x3f", f"global_store_dword v{t1}, v{t1+1}, s[{b}:{b+1}]")
            a.label(f"STK{self.kidx}")
            return
        a(f"s_mul_i32 s{self.base}, s2, {self.nw}", f"s_add_u32 s{self.base}, s{self.base}, s{wave}", f"s_lshl_b32 s{self.base}, s{self.base}, 6",
          f"s_add_u32 s{self.base}, s{self.base}, {WS_STAMP + self.kidx * 0x100000}",
          f"v_and_b32 v{t1}, 63, v0", f"v_lshlrev_b32 v{t1}, 2, v{t1}", f"v_add_u32 v{t1}, s{self.base}, v{t1}",
          "s_mov_b64 exec, 0xffff", f"global_store_dword v{t1}, v{t0}, s[{ws}:{ws+1}]")

def srd(a, r, lo, hi, num, stride=0):
    a(f"s_mov_b32 s{r}, s{lo}")
    if stride: a(f"s_or_b32 s{r+1}, s{hi}, {stride << 16:#x}")
    else: a(f"s_mov_b32 s{r+1}, s{hi}")
    a(f"s_mov_b32 s{r+2}, {num}", f"s_mov_b32 s{r+3}, 0x20000")

K1_DLB = 32768; K1_CNT = 40960; K1_LDS = 41984
def gen_k1(opt):
    a = Asm(); st = Stamps(a, opt.get("stamp"), 70, 0, 16)
    a.label("mpnn_bin_kernel")
    a("s_cmp_ge_u32 s2, 256", "s_cbranch_scc1 K1_END")
    a("s_load_dwordx8 s[4:11], s[0:1], 0", "s_load_dwordx4 s[12:15], s[0:1], 32", "s_load_dwordx2 s[16:17], s[0:1], 64")
    a("v_lshrrev_b32 v1, 6, v0", "v_mov_b32 v2, -1", "v_readfirstlane_b32 s3, v1", "v_mov_b32 v3, -1",
      "v_lshlrev_b32 v4, 3, v0", f"ds_write_b64 v4, v[2:3] offset:{K1_DLB}",
      "v_and_b32 v5, 255, v0", "v_lshlrev_b32 v5, 2, v5", "v_mov_b32 v6, 0", f"ds_write_b32 v5, v6 offset:{K1_CNT}")
    a("v_lshlrev_b32 v7, 4, v0")
    a("s_cmp_ge_u32 s3, 13", "s_cbranch_scc1 K1_P")
    DST, SRC, EE, B, DL, RK, REC = 8, 12, 16, 20, 24, 28, 32
    a(f"s_mul_i32 s18, s2, {CH}", f"s_sub_u32 s19, {E}, s18", f"s_min_u32 s19, s19, {CH}", "s_lshl_b32 s36, s18, 2", "s_lshl_b32 s37, s18, 1")
    a("s_waitcnt lgkmcnt(0)")
    st()
    srd(a, 20, 10, 11, E * 4)
    a(f"buffer_load_dwordx4 {vr(DST,4)}, v7, s[20:23], s36 offen")
    srd(a, 24, 8, 9, E * 4)
    a(f"buffer_load_dwordx4 {vr(SRC,4)}, v7, s[24:27], s36 offen")
    srd(a, 28, 6, 7, E * 2)
    a(f"buffer_load_dwordx2 {vr(EE,2)}, v4, s[28:31], s37 offen")
    srd(a, 32, 16, 17, WS_END)
    a("s_barrier")
    a("v_lshlrev_b32 v1, 2, v0", "v_cmp_gt_u32 vcc, s19, v1", "v_mov_b32 v6, 1", "s_movk_i32 s38, -98", "s_mov_b32 s39, 0xffff0000",
      "s_mov_b64 exec, vcc", "s_cbranch_execz K1_B1")
    a("s_waitcnt vmcnt(2)")
    st()
    for i in range(4):
        a(f"v_mul_u32_u24 v{B+i}, 21400, v{DST+i}", f"v_lshrrev_b32 v{B+i}, 21, v{B+i}", f"v_lshlrev_b32 v{RK+i}, 2, v{B+i}",
          f"ds_add_rtn_u32 v{RK+i}, v{RK+i}, v6 offset:{K1_CNT}")
    for i in range(4): a(f"v_mad_i32_i24 v{DL+i}, v{B+i}, s38, v{DST+i}")
    a("s_waitcnt vmcnt(0)")
    for i in range(4):
        if i % 2 == 0: a(f"v_lshl_or_b32 v{REC+i}, v{EE+i//2}, 16, v{SRC+i}")
        else: a(f"v_and_or_b32 v{REC+i}, v{EE+i//2}, s39, v{SRC+i}")
    for i in range(4):
        a(f"s_waitcnt lgkmcnt({3+i})")
        a(f"v_min_u32 v{RK+i}, 31, v{RK+i}", f"v_and_b32 v1, 7, v{RK+i}", f"v_lshrrev_b32 v{RK+i}, 3, v{RK+i}", f"v_lshl_add_u32 v1, v1, 2, v{RK+i}",
          f"v_lshl_add_u32 v{B+i}, v{B+i}, 5, v1", f"v_lshlrev_b32 v{RK+i}, 2, v{B+i}",
          f"ds_write_b32 v{RK+i}, v{REC+i}", f"ds_write_b8 v{B+i}, v{DL+i} offset:{K1_DLB}")
    a.label("K1_B1")
    a("s_mov_b64 exec, -1")
    a("s_and_b32 s40, s2, 7", "s_lshl_b32 s40, s40, 5", "s_lshr_b32 s41, s2, 3", "s_add_u32 s40, s40, s41",
      "s_lshl_b32 s41, s40, 7", f"s_add_u32 s41, s41, {WS_REC}", f"s_add_u32 s42, s41, {128*32768}",
      "s_lshl_b32 s43, s40, 5", f"s_add_u32 s43, s43, {WS_DL}")
    a("v_lshrrev_b32 v1, 3, v0", "v_lshlrev_b32 v1, 15, v1", "v_and_b32 v2, 7, v0", "v_lshl_add_u32 v1, v2, 4, v1")
    a("v_lshrrev_b32 v2, 1, v0", "v_lshlrev_b32 v3, 2, v2", "v_lshlrev_b32 v2, 13, v2", "v_and_b32 v4, 1, v0", "v_lshl_add_u32 v2, v4, 4, v2")
    a("v_lshlrev_b32 v4, 24, v4", "v_not_b32 v4, v4")
    a("s_waitcnt lgkmcnt(0)", "s_barrier")
    st()
    a("ds_read_b128 v[8:11], v7", "ds_read_b128 v[12:15], v7 offset:16384")
    a("s_cmp_ge_u32 s3, 8", "s_cbranch_scc1 K1_NODL")
    a(f"ds_read_b128 v[16:19], v7 offset:{K1_DLB}", f"ds_read_b32 v5, v3 offset:{K1_CNT}")
    a("s_waitcnt lgkmcnt(0)", "v_cmp_lt_u32 vcc, 32, v5")
    a("v_cndmask_b32 v16, v16, -1, vcc", "v_cndmask_b32 v17, v17, -1, vcc", "v_cndmask_b32 v18, v18, -1, vcc", "v_cndmask_b32 v19, v19, v4, vcc")
    a("buffer_store_dwordx4 v[16:19], v2, s[32:35], s43 offen")
    a.label("K1_NODL")
    a("s_waitcnt lgkmcnt(1)", "buffer_store_dwordx4 v[8:11], v1, s[32:35], s41 offen",
      "s_waitcnt lgkmcnt(0)", "buffer_store_dwordx4 v[12:15], v1, s[32:35], s42 offen")
    if st.on: a("s_waitcnt vmcnt(0)")
    st.flush(16, 3, 20, 21)
    a.label("K1_END")
    a("s_endpgm")
    W, A, X, D, O = 8, 40, 72, 96, 112
    a.label("K1_P")
    a("v_and_b32 v1, 15, v0", "v_bfe_u32 v2, v0, 4, 2",
      "v_lshlrev_b32 v3, 10, v2", "v_lshl_add_u32 v3, v1, 3, v3",
      "v_lshlrev_b32 v4, 7, v1", "v_lshl_add_u32 v4, v2, 4, v4")
    a("s_mul_i32 s18, s2, 3", "s_add_u32 s18, s18, s3", "s_sub_u32 s18, s18, 13",
      "s_lshl_b32 s36, s18, 11", f"s_add_u32 s37, s36, {768*2048}", f"s_add_u32 s38, s36, {1536*2048}", "s_movk_i32 s39, 4096")
    a("s_waitcnt lgkmcnt(0)")
    st.k = 0; st()
    srd(a, 20, 12, 13, 129 * 128)
    srd(a, 24, 4, 5, N * 128)
    for i in range(2):
        for s in range(2): a(f"buffer_load_dwordx4 {vr(X+8*i+4*s,4)}, v4, s[24:27], s{36+i} offen offset:{64*s}")
    for s in range(2):
        for kk in range(8): a(f"buffer_load_dwordx2 {vr(W+16*s+2*kk,2)}, v3, s[20:23], {'s39' if s else '0'} offen offset:{128*kk}")
    for s in range(2): a(f"buffer_load_dwordx4 {vr(X+16+4*s,4)}, v4, s[24:27], s38 offen offset:{64*s}")
    srd(a, 28, 16, 17, N * 128)
    srd(a, 32, 16, 17, WS_END)
    a("s_barrier")
    a("s_mov_b32 s44, 0x05040100", "s_mov_b32 s45, 0x07060302", f"s_mov_b32 s46, {NLOG2E:#x}", f"s_mov_b32 s47, {NLOG2E:#x}")
    a("s_waitcnt vmcnt(2)")
    st()
    for tau in range(4):
        for s in range(2):
            for rr in range(4):
                a(f"v_perm_b32 v{A+8*tau+4*s+rr}, v{W+16*s+2*(2*rr+1)+tau//2}, v{W+16*s+2*(2*rr)+tau//2}, s{44+tau%2}")
    for i in range(3):
        if i == 2:
            a(f"s_cmp_ge_u32 s18, {NTILE-1536}", "s_cbranch_scc1 K1_PD", "s_waitcnt vmcnt(4)")
        for tau in range(4): a(mf16(D+4*tau, A+8*tau, X+8*i, "0"))
        for tau in range(4): a(mf16(D+4*tau, A+8*tau+4, X+8*i+4, D+4*tau))
        for k in range(0, 16, 2): a(f"v_pk_mul_f32 {vr(D+k,2)}, {vr(D+k,2)}, s[46:47]")
        for r in range(4):
            for h in range(2): a(f"v_cvt_pk_bf16_f32 v{O+2*r+h}, v{D+4*(2*h)+r}, v{D+4*(2*h+1)+r}")
        a(f"buffer_store_dwordx4 {vr(O,4)}, v4, s[28:31], s{36+i} offen", f"buffer_store_dwordx4 {vr(O+4,4)}, v4, s[28:31], s{36+i} offen offset:64")
    a.label("K1_PD")
    a("s_cmp_lg_u32 s3, 15", "s_cbranch_scc1 K1_B1", "s_sub_u32 s18, s2, 16", "s_cmp_gt_u32 s18, 24", "s_cbranch_scc1 K1_B1")
    a("v_and_b32 v5, 63, v0", "v_lshlrev_b32 v5, 4, v5", "s_lshl_b32 s36, s18, 10", f"s_add_u32 s36, s36, {WS_WF}")
    a("s_cmp_eq_u32 s18, 24", "s_cbranch_scc1 K1_AE")
    a("s_mul_i32 s37, s18, 43", "s_lshr_b32 s37, s37, 8", "s_mul_i32 s38, s37, 6", "s_sub_u32 s38, s18, s38")
    a("v_lshlrev_b32 v3, 10, v2", "v_lshl_add_u32 v3, v1, 1, v3", "s_lshl_b32 s37, s37, 5", "s_lshl_b32 s39, s38, 12", "s_add_u32 s39, s39, s37")
    a("s_cmp_ge_u32 s38, 2", "s_cbranch_scc1 K1_FU")
    a("s_add_u32 s39, s39, 8192")
    for kk in range(8): a(f"buffer_load_ushort v{W+kk}, v3, s[20:23], s39 offen offset:{128*kk}")
    a("s_branch K1_FJ")
    a.label("K1_FU")
    srd(a, 24, 14, 15, 128 * 128)
    a("s_sub_u32 s39, s39, 8192")
    for kk in range(8): a(f"buffer_load_ushort v{W+kk}, v3, s[24:27], s39 offen offset:{128*kk}")
    a.label("K1_FJ")
    a("s_waitcnt vmcnt(0)")
    for rr in range(4): a(f"v_lshl_or_b32 v{A+rr}, v{W+2*rr+1}, 16, v{W+2*rr}")
    a(f"buffer_store_dwordx4 {vr(A,4)}, v5, s[32:35], s36 offen", "s_branch K1_B1")
    a.label("K1_AE")
    a("v_bfe_u32 v1, v0, 3, 2", "v_and_b32 v2, 3, v0", "v_lshl_add_u32 v1, v1, 2, v2", "v_lshlrev_b32 v1, 1, v1",
      "v_bfe_u32 v2, v0, 2, 1", "v_bfe_u32 v3, v0, 5, 1", "v_cmp_eq_u32 vcc, v2, v3", "s_movk_i32 s39, 16384")
    for c in range(4): a(f"buffer_load_ushort v{W+c}, v1, s[20:23], s39 offen offset:{32*c}")
    a("s_waitcnt vmcnt(0)")
    for c in range(4):
        a(f"v_lshlrev_b32 v{W+c}, 16, v{W+c}", f"v_mul_f32 v{W+c}, s46, v{W+c}", f"v_cvt_pk_bf16_f32 v{W+c}, 0, v{W+c}", f"v_cndmask_b32 v{A+c}, 0, v{W+c}, vcc")
    a(f"buffer_store_dwordx4 {vr(A,4)}, v5, s[32:35], s36 offen", "s_branch K1_B1")
    return a.lines

L_CTR = 0; L_OVC = 448; L_FLG = 452; L_SLOT = 512; L_OVL = 1280; L_QS = 2304; QSTR = 272
L_AGB = L_QS + 112 * QSTR; ASTR = 144
L_ELL = L_AGB + 112 * ASTR; ESTR = 516; EROWS = 80
K2_LDS = L_ELL + 3 * 768 * 16 + 6144
assert K2_LDS >= L_ELL + EROWS * ESTR and L_ELL % 16 == 0
ZCOL = 112 * 4; DUMP = L_ELL + CAP * ESTR + 400

def gen_k2(opt):
    a = Asm(); st = Stamps(a, opt.get("stamp"), 76, 1, 12)
    perm = opt.get("perm", [0, 1, 2, 3, 10, 6, 5, 4, 11, 9, 8, 7])
    Q, P, Z0, Z1, NN, DD, EX, BE, AL, AH, AE, ACC, WU2, IX, VI, VE, LEN, AGA, MFL, OOF, ARD = \
        8, 24, 40, 56, 72, 88, 104, 120, 124, 128, 132, 136, 148, 156, 158, 159, 163, 164, 165, 166, 167
    R = Z0; L = Z0 + 12; AD = Z1
    X = NN; W2 = EX; WU1 = EX + 8
    SWS, SPT, SX, SO = 24, 28, 32, 36
    MK = 40
    a.label("mpnn_msg_kernel")
    a("s_cmp_ge_u32 s2, 256", "s_cbranch_scc1 K2_END")
    a("s_load_dwordx2 s[20:21], s[0:1], 64", "s_load_dwordx16 s[4:19], s[0:1], 0")
    a("v_lshrrev_b32 v1, 6, v0", "v_lshlrev_b32 v2, 4, v0", "v_readfirstlane_b32 s3, v1", "v_lshlrev_b32 v3, 2, v0")
    for i in range(4): a(f"v_mov_b32 v{Q+i}, 0")
    for i in range(3): a(f"ds_write_b128 v2, {vr(Q,4)} offset:{L_ELL + i*12288}" if L_ELL + i*12288 < 65536 else None) if L_ELL + i*12288 < 65536 else None
    a(f"v_add_u32 v4, {L_ELL + 2*12288}, v2")
    for i in range(3):
        if L_ELL + i*12288 >= 65536: a(f"ds_write_b128 v4, {vr(Q,4)} offset:{(i-2)*12288}")
    a(f"v_lshlrev_b32 v5, 3, v0", f"v_add_u32 v5, {L_ELL + 3*12288}, v5", f"ds_write_b64 v5, {vr(Q,2)}")
    a("v_and_b32 v5, 127, v0", "v_lshlrev_b32 v5, 2, v5", f"v_add_u32 v4, {L_ELL}, v5", f"v_cmp_gt_u32 vcc, {NB*4}, v5", "v_cndmask_b32 v4, 0, v4, vcc",
      f"ds_write_b32 v5, v4 offset:{L_CTR}")
    a("s_lshl_b32 s64, s2, 15", f"s_add_u32 s64, s64, {WS_REC}", "s_add_u32 s65, s64, 12288", "s_add_u32 s66, s64, 24576",
      "s_lshl_b32 s67, s2, 13", f"s_add_u32 s67, s67, {WS_DL}", "s_add_u32 s68, s67, 6144")
    a(f"s_mul_i32 s69, s2, {NB}", f"s_sub_u32 s70, {N}, s69", f"s_min_u32 s70, s70, {NB}", "s_lshl_b32 s70, s70, 7", "s_lshl_b32 s71, s69, 7")
    a("s_and_b32 s72, s3, 3", "s_lshr_b32 s73, s3, 2")
    a(f"v_mov_b32 v{L+2}, -1")
    a("v_and_b32 v4, 15, v0", "v_bfe_u32 v5, v0, 4, 2")
    a(f"v_lshlrev_b32 v{OOF}, 7, v4", f"v_lshl_add_u32 v1, v5, 4, v{OOF}")
    a("s_lshl_b32 s74, s73, 11")
    a("s_waitcnt lgkmcnt(0)")
    st()
    srd(a, SWS, 20, 21, WS_END)
    a("s_cmp_ge_u32 s3, 8", "s_cbranch_scc1 K2_NOR2")
    a(f"buffer_load_dword v{L+2}, v3, s[{SWS}:{SWS+3}], s68 offen", f"buffer_load_dwordx4 {vr(R+8,4)}, v2, s[{SWS}:{SWS+3}], s66 offen")
    a.label("K2_NOR2")
    a(f"buffer_load_dword v{L}, v3, s[{SWS}:{SWS+3}], s67 offen", f"buffer_load_dword v{L+1}, v3, s[{SWS}:{SWS+3}], s67 offen offset:3072")
    a(f"buffer_load_dwordx4 {vr(R,4)}, v2, s[{SWS}:{SWS+3}], s64 offen", f"buffer_load_dwordx4 {vr(R+4,4)}, v2, s[{SWS}:{SWS+3}], s65 offen")
    a(f"s_add_u32 s{SX}, s4, s71", f"s_addc_u32 s{SX+1}, s5, 0", f"s_mov_b32 s{SX+2}, s70", f"s_mov_b32 s{SX+3}, 0x20000")
    a(f"s_add_u32 s75, s74, {3*2048}", f"s_add_u32 s22, s74, {6*2048}")
    for i, so in enumerate(("s74", "s75", "s22")):
        for s in range(2): a(f"buffer_load_dwordx4 {vr(X+8*i+4*s,4)}, v1, s[{SX}:{SX+3}], {so} offen offset:{64*s}")
    a("v_and_b32 v6, 63, v0", "v_lshlrev_b32 v6, 4, v6", f"s_mul_i32 s23, s72, 6144", f"s_add_u32 s23, s23, {WS_WF}", "s_add_u32 s64, s23, 4096", f"s_mov_b32 s65, {WS_WF + 24*1024}")
    for k in range(4): a(f"buffer_load_dwordx4 {vr(W2+4*k,4)}, v6, s[{SWS}:{SWS+3}], s23 offen offset:{1024*k}")
    for k in range(2): a(f"buffer_load_dwordx4 {vr(WU2+4*k,4)}, v6, s[{SWS}:{SWS+3}], s64 offen offset:{1024*k}")
    a(f"buffer_load_dwordx4 {vr(AE,4)}, v6, s[{SWS}:{SWS+3}], s65 offen")
    a("s_lshr_b32 s66, s2, 3", f"s_mul_i32 s66, s66, {782*128}", "v_lshlrev_b32 v7, 7, v0")
    a(f"buffer_load_dword v6, v7, s[{SWS}:{SWS+3}], s66 offen", f"buffer_load_dword v7, v7, s[{SWS}:{SWS+3}], s66 offen offset:64")
    srd(a, SPT, 20, 21, N, stride=128)
    a(f"s_add_u32 s{SO}, s16, s71", f"s_addc_u32 s{SO+1}, s17, 0", f"s_mov_b32 s{SO+2}, s70", f"s_mov_b32 s{SO+3}, 0x20000")
    a("s_barrier")
    T = Q
    a(f"v_and_b32 v{T}, 1, v0", f"v_lshlrev_b32 v{T}, 4, v{T}", f"v_mov_b32 v{T+1}, 0x3f80", f"v_lshlrev_b32 v{T}, v{T}, v{T+1}",
      f"v_bfe_u32 v{T+1}, v0, 3, 2", f"v_bfe_u32 v{T+2}, v0, 1, 1", f"v_lshl_add_u32 v{T+1}, v{T+1}, 1, v{T+2}",
      f"v_bfe_u32 v{T+2}, v0, 2, 1", f"v_bfe_u32 v{T+3}, v0, 5, 1", f"v_xor_b32 v{T+2}, v{T+2}, v{T+3}", f"v_lshl_add_u32 v{T+1}, v{T+2}, 3, v{T+1}")
    for k in range(8): a(f"v_cmp_eq_u32 s[{MK+2*k}:{MK+2*k+1}], {k}, v{T+1}")
    for k in range(8): a(f"v_cndmask_b32 v{AL+k}, 0, v{T}, s[{MK+2*k}:{MK+2*k+1}]")
    a(f"s_lshl_b32 s64, s72, 5", f"v_lshl_add_u32 v{OOF}, v5, 3, v{OOF}", f"v_add_u32 v{OOF}, s64, v{OOF}")
    a(f"s_lshl_b32 s64, s73, 4", f"v_add_u32 v4, s64, v4", f"v_mul_u32_u24 v{ARD}, {ASTR}, v4", f"v_lshl_add_u32 v{ARD}, v5, 4, v{ARD}")
    a(f"v_mul_u32_u24 v1, {QSTR}, v4", "v_lshl_add_u32 v1, v5, 4, v1", "s_lshl_b32 s64, s72, 6", "v_add_u32 v1, s64, v1")
    a(f"v_and_b32 v4, 3, v0", f"v_lshlrev_b32 v{IX+1}, 4, v4")
    a(f"v_mov_b32 v5, {ESTR}", f"s_movk_i32 s64, {NB*4}", f"s_mov_b32 s65, {DUMP}", f"s_mov_b32 s66, {NLOG2E:#x}", f"s_mov_b32 s67, {NLOG2E:#x}",
      "s_mov_b32 s68, 0", "s_mov_b32 s71, 0")
    order = [(r, jj) for jj in range(3) for r in (2, 0, 1)]
    a("s_waitcnt vmcnt(17)")
    st()
    for k, (r, jj) in enumerate(order):
        a(f"v_lshlrev_b32_sdwa v{AD+k}, 2, v{L+r} dst_sel:DWORD dst_unused:UNUSED_PAD src0_sel:DWORD src1_sel:BYTE_{jj}")
    for k in range(9): a(f"v_cmp_gt_u32 s[{MK+2*k}:{MK+2*k+1}], s64, v{AD+k}")
    a(f"v_and_b32 v{AD+9}, v{L}, v{L+1}", f"v_and_b32 v{AD+9}, v{AD+9}, v{L+2}", f"v_cmp_gt_u32 vcc, 0xff000000, v{AD+9}")
    for k in range(9): a(f"s_mov_b64 exec, s[{MK+2*k}:{MK+2*k+1}]", f"ds_add_rtn_u32 v{AD+k}, v{AD+k}, v5 offset:{L_CTR}")
    a("s_waitcnt vmcnt(15)")
    for k, (r, jj) in enumerate(order):
        a(f"s_mov_b64 exec, s[{MK+2*k}:{MK+2*k+1}]", "s_waitcnt lgkmcnt(8)", f"v_min_u32 v{AD+k}, s65, v{AD+k}", f"ds_write_b32 v{AD+k}, v{R+4*r+jj}")
    a("s_mov_b64 exec, -1", "s_cbranch_vccnz K2_RARE")
    a.label("K2_INSD")
    a("s_waitcnt lgkmcnt(0)", "s_barrier")
    st()
    a.label("K2_AB1")
    C = Q; OWN = Z1; RK = Z1 + 1; NQ = Z1 + 2; PP = Z1 + 3; T = Z1 + 4
    a(f"v_mov_b32 v{T}, 0", f"ds_read_b32 v{T+1}, v{T} offset:{L_OVC}")
    a("s_cmp_ge_u32 s3, 7", "s_cbranch_scc1 K2_NR1")
    a(f"v_lshrrev_b32 v{NQ}, 2, v0", f"v_and_b32 v{PP}, 3, v0", f"v_lshlrev_b32 v{T}, 2, v{NQ}", f"v_mul_u32_u24 v{T+2}, 112, v{PP}",
      f"ds_read_b32 v{OWN}, v{T} offset:{L_CTR}")
    for k in range(7): a(f"ds_read_b128 {vr(C+4*k,4)}, v{T+2} offset:{L_CTR+16*k}")
    a.label("K2_NR1")
    a("s_waitcnt vmcnt(7)")
    for i in range(3): a(mf16(ACC+4*i, W2, X+8*i, "0"))
    for i in range(3): a(mf16(ACC+4*i, W2+4, X+8*i+4, ACC+4*i))
    a("s_waitcnt lgkmcnt(0)", f"v_readfirstlane_b32 s23, v{T+1}", "s_andn2_b32 s23, s23, s68", "s_cbranch_scc1 K2_RESCAN")
    for i in range(3):
        if i == 2: a("s_cmp_lg_u32 s73, 0", "s_cbranch_scc1 K2_NQ2")
        a(f"v_pk_mul_f32 {vr(ACC+4*i,2)}, {vr(ACC+4*i,2)}, s[66:67]", f"v_pk_mul_f32 {vr(ACC+4*i+2,2)}, {vr(ACC+4*i+2,2)}, s[66:67]",
          f"ds_write_b128 v1, {vr(ACC+4*i,4)} offset:{L_QS + 48*QSTR*i}")
    a.label("K2_NQ2")
    a("s_cmp_ge_u32 s3, 7", "s_cbranch_scc1 K2_NR2")
    a(f"v_mov_b32 v{RK}, 0")
    for m in range(28 + 3):
        if m < 28: a(f"v_cmp_gt_u32 s[{MK+2*(m%4)}:{MK+2*(m%4)+1}], v{C+m}, v{OWN}")
        if m >= 3: a(f"v_addc_co_u32 v{RK}, vcc, 0, v{RK}, s[{MK+2*((m-3)%4)}:{MK+2*((m-3)%4)+1}]")
    a(f"v_add_u32 v{T}, {L_ELL}, v{T}", f"v_sub_u32 v{OWN}, v{OWN}, v{T}")
    a(f"v_add_u32_dpp v{RK}, v{RK}, v{RK} quad_perm:[1,0,3,2] row_mask:0xf bank_mask:0xf")
    a(f"v_cmp_lt_u32 vcc, {CAP*ESTR}, v{OWN}", f"v_min_u32 v{OWN}, {CAP*ESTR}, v{OWN}")
    a(f"v_add_u32_dpp v{RK}, v{RK}, v{RK} quad_perm:[2,3,0,1] row_mask:0xf bank_mask:0xf")
    a(f"v_lshrrev_b32 v{OWN}, 2, v{OWN}", f"v_mul_u32_u24 v{OWN}, 509, v{OWN}", f"v_lshrrev_b32 v{OWN}, 16, v{OWN}")
    a(f"s_movk_i32 s23, {NB}", f"v_cmp_gt_u32 s[{MK}:{MK+1}], s23, v{NQ}", f"s_and_b64 vcc, vcc, s[{MK}:{MK+1}]")
    a(f"s_movk_i32 s23, {NB-4}", f"v_cmp_gt_u32 s[{MK+2}:{MK+3}], s23, v{RK}")
    a(f"v_add_u32 v{T+1}, 1, v{OWN}", f"v_lshrrev_b32 v{T+2}, 1, v{T+1}", f"v_mul_u32_u24 v{T+2}, v{T+2}, v{PP}", f"v_mad_u32_u24 v{T}, v{T+2}, v5, v{T}",
      f"v_sub_u32 v{T+1}, v{T+1}, v{PP}", f"v_lshrrev_b32 v{T+1}, 1, v{T+1}", f"v_cndmask_b32 v{T+1}, v{OWN}, v{T+1}, s[{MK+2}:{MK+3}]",
      f"v_lshl_add_u32 v{T+2}, v{RK}, 1, v{PP}", f"v_add_u32 v{T+2}, 4, v{T+2}", f"v_subrev_u32 v{RK}, {NB-4}, v{RK}", f"v_cndmask_b32 v{T+2}, v{RK}, v{T+2}, s[{MK+2}:{MK+3}]",
      f"v_lshl_or_b32 v{T}, v{NQ}, 17, v{T}", f"v_lshl_or_b32 v{T}, v{T+1}, 24, v{T}", f"v_lshlrev_b32 v{T+2}, 2, v{T+2}",
      f"v_cndmask_b32 v{T+1}, 1, 2, s[{MK+2}:{MK+3}]", f"v_cmp_gt_u32 s[{MK+4}:{MK+5}], v{T+1}, v{PP}",
      f"s_and_b64 exec, s[{MK+4}:{MK+5}], s[{MK}:{MK+1}]", f"ds_write_b32 v{T+2}, v{T} offset:{L_SLOT}",
      "s_mov_b64 exec, vcc", f"v_mov_b32 v{T}, 0", f"ds_write_b32 v{T}, v5 offset:{L_FLG}", "s_mov_b64 exec, -1")
    a.label("K2_NR2")
    pk = sum(p << (4 * w) for w, p in enumerate(perm))
    a(f"s_mov_b32 s{MK}, {pk & 0xffffffff:#x}", f"s_mov_b32 s{MK+1}, {pk >> 32:#x}", "s_lshl_b32 s23, s3, 2", f"s_lshr_b64 s[{MK}:{MK+1}], s[{MK}:{MK+1}], s23",
      f"s_and_b32 s23, s{MK}, 15", "s_lshl_b32 s23, s23, 4")
    a(f"v_bfe_u32 v{T}, v0, 2, 4", f"v_add_u32 v{T}, s23, v{T}", f"v_lshlrev_b32 v{T+1}, 2, v{T}")
    a(f"v_and_b32 v{T+2}, 1, v{T}", f"v_cmp_gt_u32 vcc, 4, v{T}", f"v_cmp_eq_u32 s[{MK+2}:{MK+3}], 0, v{T+2}",
      f"s_or_b64 s[{MK}:{MK+1}], vcc, s[{MK+2}:{MK+3}]", f"s_andn2_b64 s[{MK+2}:{MK+3}], s[{MK+2}:{MK+3}], vcc",
      f"v_cndmask_b32 v{MFL}, 0, 1.0, s[{MK+2}:{MK+3}]")
    for r in range(4): a(f"v_cmp_eq_u32 s[{MK+4+2*r}:{MK+5+2*r}], {r}, v4")
    a(f"v_mov_b32 v{T+3}, {L_ELL + ZCOL}")
    a("s_waitcnt lgkmcnt(0)", "s_barrier")
    st()
    a(f"ds_read_b32 v{T}, v{T+1} offset:{L_SLOT}", "s_waitcnt lgkmcnt(0)")
    a(f"v_and_b32 v{VI}, 0x1ffff, v{T}", f"ds_read_u16 v{IX}, v{VI}", f"ds_read_u16 v{T+4}, v{VI} offset:{ESTR}", f"ds_read_u16 v{T+6}, v{VI} offset:{2*ESTR}")
    a(f"v_bfe_u32 v{T+1}, v{T}, 17, 7", f"v_lshrrev_b32 v{LEN}, 24, v{T}")
    for r in range(4): a(f"v_cndmask_b32 v{VE+r}, v{T+3}, v{VI}, s[{MK+4+2*r}:{MK+5+2*r}]")
    a(f"v_mul_u32_u24 v{T+2}, {QSTR}, v{T+1}", f"v_lshl_add_u32 v{T+2}, v4, 6, v{T+2}")
    a(f"v_mov_b32 v{T+5}, v{IX+1}", f"v_mov_b32 v{T+7}, v{IX+1}")
    def gather(slot, ix):
        p = P + 8 * slot
        return [f"buffer_load_dwordx4 {vr(p,4)}, {vr(ix,2)}, s[{SPT}:{SPT+3}], 0 idxen offen",
                f"buffer_load_dwordx4 {vr(p+4,4)}, {vr(ix,2)}, s[{SPT}:{SPT+3}], 0 idxen offen offset:64"]
    def rde(t): return [f"ds_read_b32 v{BE+r}, v{VE+r} offset:{t*ESTR}" for r in range(4)]
    a("s_waitcnt lgkmcnt(2)", *gather(0, IX), "s_waitcnt lgkmcnt(1)", *gather(1, T+4))
    for k in range(4): a(f"ds_read_b128 {vr(Q+4*k,4)}, v{T+2} offset:{L_QS+16*k}")
    a(*rde(0), f"ds_read_u16 v{IX}, v{VI} offset:{3*ESTR}")
    a(f"v_mul_u32_u24 v{AGA}, {ASTR}, v{T+1}", f"v_lshl_add_u32 v{AGA}, v4, 5, v{AGA}")
    a(f"v_readlane_b32 s69, v{LEN}, 0", f"v_readlane_b32 s70, v{LEN}, 16", "s_max_u32 s69, s69, s70", "s_mov_b32 s70, 0")
    a("s_waitcnt vmcnt(6)")
    for i in range(3): a(mf16(ACC+4*i, WU1, X+8*i, "0"))
    for i in range(3): a(mf16(ACC+4*i, WU1+4, X+8*i+4, ACC+4*i))
    for i in range(16): a(f"v_mov_b32 v{NN+i}, 0")
    for i in range(16): a(f"v_mov_b32 v{DD+i}, 1.0")
    a("s_cmp_eq_u32 s69, 0", "s_cbranch_scc1 K2_DONE")
    a("s_waitcnt vmcnt(2) lgkmcnt(0)")
    st()
    a(mf32(Z0, AE, BE, Q), mf32(Z0, AL, P, Z0), mf32(Z0, AH, P + 4, Z0))
    a(*gather(0, T+6), *rde(1), "s_nop 3")
    a(".p2align 6")
    a.label("K2_LOOP")
    for u in range(2):
        zc = (Z0, Z1)[u]; zn = (Z1, Z0)[u]; p = P + 8 * ((u + 1) % 2)
        ex = [f"v_exp_f32 v{EX+i}, v{zc+i}" for i in range(16)]
        a("s_waitcnt vmcnt(2) lgkmcnt(0)")
        a(mf32(zn, AE, BE, Q), *ex[0:4], mf32(zn, AL, p, zn), *ex[4:8], mf32(zn, AH, p + 4, zn), *ex[8:16])
        a(*gather((u + 1) % 2, IX), *rde(u + 2), f"ds_read_u16 v{IX}, v{VI} offset:{(u+4)*ESTR}")
        a(f"v_cmpx_lt_u32 vcc, s70, v{LEN}")
        for i in range(0, 16, 2): a(f"v_pk_fma_f32 {vr(NN+i,2)}, {vr(NN+i,2)}, {vr(EX+i,2)}, {vr(NN+i,2)}")
        for i in range(0, 16, 2): a(f"v_pk_fma_f32 {vr(NN+i,2)}, {vr(zc+i,2)}, {vr(DD+i,2)}, {vr(NN+i,2)}")
        for i in range(0, 16, 2): a(f"v_pk_fma_f32 {vr(DD+i,2)}, {vr(DD+i,2)}, {vr(EX+i,2)}, {vr(DD+i,2)}")
        a("s_mov_b64 exec, -1", "s_add_u32 s70, s70, 1", "s_cmp_ge_u32 s70, s69")
        if u == 0: a("s_cbranch_scc1 K2_DONE")
        else:
            for rg in [VI] + [VE + r for r in range(4)]: a(f"v_add_u32 v{rg}, {2*ESTR}, v{rg}")
            a("s_cbranch_scc0 K2_LOOP")
    a.label("K2_DONE")
    st()
    for i in range(16): a(f"v_rcp_f32 v{EX+i}, v{DD+i}")
    a(f"s_mov_b32 s66, {NLN2:#x}", f"s_mov_b32 s67, {NLN2:#x}", f"s_mov_b32 s64, {f2u(2.0**120):#x}")
    for i in range(0, 16, 2): a(f"v_pk_mul_f32 {vr(NN+i,2)}, {vr(NN+i,2)}, s[66:67]")
    a(f"v_max3_f32 v2, v{DD}, v{DD+1}, v{DD+2}")
    for i in range(3, 15, 2): a(f"v_max3_f32 v2, v{DD+i}, v{DD+i+1}, v2")
    a(f"v_max_f32 v2, v{DD+15}, v2")
    for i in range(0, 16, 2): a(f"v_pk_mul_f32 {vr(NN+i,2)}, {vr(NN+i,2)}, {vr(EX+i,2)}")
    a(f"v_pk_mul_f32 {vr(DD,2)}, {vr(NN,2)}, 0")
    for i in range(2, 16, 2): a(f"v_pk_fma_f32 {vr(DD,2)}, {vr(NN+i,2)}, 0, {vr(DD,2)}")
    for i in range(16): a(f"v_fmac_f32_dpp v{NN+i}, v{NN+i}, v{MFL} row_shl:4 row_mask:0xf bank_mask:0xf bound_ctrl:0")
    a(f"v_cmp_u_f32 vcc, v{DD}, v{DD+1}", f"v_cmp_nlt_f32 s[{MK+2}:{MK+3}], v2, s64", f"s_or_b64 vcc, vcc, s[{MK+2}:{MK+3}]")
    for i in range(8): a(f"v_cvt_pk_bf16_f32 v{EX+i}, v{NN+2*i}, v{NN+2*i+1}")
    a(f"s_mov_b64 exec, s[{MK}:{MK+1}]", f"ds_write_b128 v{AGA}, {vr(EX,4)} offset:{L_AGB}", f"ds_write_b128 v{AGA}, {vr(EX+4,4)} offset:{L_AGB+16}")
    a("s_mov_b64 exec, vcc", "v_mov_b32 v2, 0", f"ds_write_b32 v2, v5 offset:{L_FLG}", "s_mov_b64 exec, -1")
    a(f"s_mov_b32 s66, {NLOG2E:#x}", f"s_mov_b32 s67, {NLOG2E:#x}", "v_mov_b32 v2, 0")
    a("s_waitcnt lgkmcnt(0)", "s_barrier")
    st()
    a.label("K2_EPI")
    B = Z0; O = Q; TT = NN
    a(f"ds_read_b32 v3, v2 offset:{L_FLG}")
    for i in range(3):
        for s in range(2): a(f"ds_read_b128 {vr(B+8*i+4*s,4)}, v{ARD} offset:{L_AGB + 48*ASTR*i + 64*s}")
    a("s_waitcnt lgkmcnt(6)", "v_readfirstlane_b32 s23, v3", "s_andn2_b32 s23, s23, s71", "s_cbranch_scc1 K2_BF")
    def epi_tile(i):
        o = O + 4 * i; t = TT + 4 * i
        a(f"v_pk_mul_f32 {vr(t,2)}, {vr(o,2)}, s[66:67]", f"v_pk_mul_f32 {vr(t+2,2)}, {vr(o+2,2)}, s[66:67]")
        for k in range(4): a(f"v_exp_f32 v{t+k}, v{t+k}")
        a(f"v_pk_add_f32 {vr(t,2)}, {vr(t,2)}, 1.0 op_sel_hi:[1,0]", f"v_pk_add_f32 {vr(t+2,2)}, {vr(t+2,2)}, 1.0 op_sel_hi:[1,0]")
        for k in range(4): a(f"v_rcp_f32 v{t+k}, v{t+k}")
        a(f"v_pk_mul_f32 {vr(t,2)}, {vr(t,2)}, {vr(o,2)}", f"v_pk_mul_f32 {vr(t+2,2)}, {vr(t+2,2)}, {vr(o+2,2)}")
        a(f"v_cvt_pk_bf16_f32 v{o}, v{t}, v{t+1}", f"v_cvt_pk_bf16_f32 v{o+1}, v{t+2}, v{t+3}")
        a(f"buffer_store_dwordx2 {vr(o,2)}, v{OOF}, s[{SO}:{SO+3}], {('s74','s75','s22')[i]} offen")
    for i in range(3):
        a(f"s_waitcnt lgkmcnt({4-2*i})", mf16(O+4*i, WU2, B+8*i, ACC+4*i), mf16(O+4*i, WU2+4, B+8*i+4, O+4*i))
    epi_tile(0); epi_tile(1)
    a("s_cmp_lg_u32 s73, 0", "s_cbranch_scc1 K2_FIN")
    epi_tile(2)
    a.label("K2_FIN")
    if st.on: a("s_waitcnt vmcnt(0)")
    st.flush(20, 3, 2, 3)
    a.label("K2_END")
    a("s_endpgm")

    a.label("K2_RARE")
    for r in range(3):
        a(f"v_lshrrev_b32 v{AD}, 24, v{L+r}", f"v_lshlrev_b32 v{AD}, 2, v{AD}",
          f"v_cmp_gt_u32 vcc, s64, v{AD}", f"v_mov_b32 v{AD+1}, {0xFE*4}", f"v_cmp_eq_u32 s[{MK}:{MK+1}], v{AD+1}, v{AD}",
          "s_mov_b64 exec, vcc", f"ds_add_rtn_u32 v{AD}, v{AD}, v5 offset:{L_CTR}", "s_waitcnt lgkmcnt(0)",
          f"v_min_u32 v{AD}, s65, v{AD}", f"ds_write_b32 v{AD}, v{R+4*r+3}",
          f"s_mov_b64 exec, s[{MK}:{MK+1}]", f"v_mov_b32 v{AD}, 0", f"v_mov_b32 v{AD+1}, 1", f"ds_add_rtn_u32 v{AD}, v{AD}, v{AD+1} offset:{L_OVC}",
          f"v_add_u32 v{AD+1}, {768*r}, v0", f"v_lshrrev_b32 v{AD+1}, 3, v{AD+1}", "s_waitcnt lgkmcnt(0)",
          f"v_and_b32 v{AD}, 255, v{AD}", f"v_lshlrev_b32 v{AD}, 2, v{AD}", f"ds_write_b32 v{AD}, v{AD+1} offset:{L_OVL}", "s_mov_b64 exec, -1")
    a("s_branch K2_INSD")

    SD, SS, SE = 40, 44, 48
    a.label("K2_RESCAN")
    srd(a, SD, 10, 11, E * 4); srd(a, SS, 8, 9, E * 4); srd(a, SE, 6, 7, E * 2)
    a("s_mov_b32 s52, 0", f"s_mul_i32 s53, s2, {NB}", "s_min_u32 s23, s23, 256")
    a.label("K2_RS1")
    T = Z0
    a("s_lshl_b32 s54, s52, 2", f"v_mov_b32 v{T}, s54", f"ds_read_b32 v{T}, v{T} offset:{L_OVL}", "s_waitcnt lgkmcnt(0)", f"v_readfirstlane_b32 s54, v{T}",
      "s_and_b32 s55, s54, 31", "s_lshl_b32 s55, s55, 3", "s_lshr_b32 s54, s54, 5", "s_add_u32 s54, s54, s55",
      f"s_mul_i32 s54, s54, {CH}", f"s_sub_u32 s55, {E}, s54", f"s_min_u32 s55, s55, {CH}",
      f"v_mov_b32 v{T}, v0")
    a.label("K2_RS2")
    a(f"v_add_u32 v{T+1}, s54, v{T}", f"v_lshlrev_b32 v{T+2}, 1, v{T+1}", f"v_lshlrev_b32 v{T+1}, 2, v{T+1}",
      f"buffer_load_dword v{T+3}, v{T+1}, s[{SD}:{SD+3}], 0 offen", f"buffer_load_dword v{T+4}, v{T+1}, s[{SS}:{SS+3}], 0 offen",
      f"buffer_load_ushort v{T+5}, v{T+2}, s[{SE}:{SE+3}], 0 offen", "s_waitcnt vmcnt(0)",
      f"v_subrev_u32 v{T+3}, s53, v{T+3}", f"v_cmp_gt_u32 vcc, {NB}, v{T+3}", f"v_cmp_gt_u32 s[56:57], s55, v{T}", "s_and_b64 exec, vcc, s[56:57]",
      f"v_lshlrev_b32 v{T+3}, 2, v{T+3}", f"ds_add_rtn_u32 v{T+3}, v{T+3}, v5 offset:{L_CTR}", f"v_lshl_or_b32 v{T+4}, v{T+5}, 16, v{T+4}",
      "s_waitcnt lgkmcnt(0)", f"v_min_u32 v{T+3}, s65, v{T+3}", f"ds_write_b32 v{T+3}, v{T+4}", "s_mov_b64 exec, -1",
      f"v_add_u32 v{T}, 768, v{T}", f"v_cmp_gt_u32 vcc, s55, v{T}", "s_cbranch_vccnz K2_RS2")
    a("s_add_u32 s52, s52, 1", "s_cmp_lt_u32 s52, s23", "s_cbranch_scc1 K2_RS1")
    a("s_mov_b32 s68, -1", "s_waitcnt lgkmcnt(0)", "s_barrier", "s_branch K2_AB1")

    a.label("K2_BF")
    T = Z0
    a("s_waitcnt vmcnt(0) lgkmcnt(0)")
    srd(a, SD, 10, 11, E * 4); srd(a, SS, 8, 9, E * 4); srd(a, SE, 6, 7, E * 2); srd(a, 52, 12, 13, 129 * 128)
    for i in range(4): a(f"v_mov_b32 v{T+i}, 0")
    a(f"v_lshlrev_b32 v{T+4}, 4, v0", f"v_add_u32 v{T+4}, {L_ELL}, v{T+4}")
    for i in range(3): a(f"ds_write_b128 v{T+4}, {vr(T,4)} offset:{12288*i}")
    LN, F4, F2, PO, W3 = T + 4, T + 5, T + 6, T + 7, T + 8
    a(f"v_and_b32 v{LN}, 63, v0", f"v_lshlrev_b32 v{F4}, 2, v{LN}", f"v_lshlrev_b32 v{F2}, 1, v{LN}",
      f"v_and_b32 v{PO}, 8, v{LN}", f"v_lshlrev_b32 v{PO}, 3, v{PO}", f"v_and_b32 v{T}, 48, v{LN}", f"v_add_u32 v{PO}, v{PO}, v{T}",
      f"v_and_b32 v{T}, 7, v{LN}", f"v_lshl_add_u32 v{PO}, v{T}, 1, v{PO}",
      "s_movk_i32 s56, 16384", f"buffer_load_ushort v{W3}, v{F2}, s[52:55], s56 offen", "s_waitcnt vmcnt(0) lgkmcnt(0)",
      f"v_lshlrev_b32 v{W3}, 16, v{W3}", f"v_mul_f32 v{W3}, s66, v{W3}",
      f"s_mul_i32 s57, s2, {NB}", "s_mov_b32 s56, s3", "s_barrier")
    a.label("K2_BF1")
    DV, SV, EV = T + 9, T + 10, T + 11
    a("s_lshl_b32 s58, s56, 8", "s_lshl_b32 s59, s56, 7",
      f"buffer_load_dword v{DV}, v{F4}, s[{SD}:{SD+3}], s58 offen", "s_waitcnt vmcnt(0)",
      f"v_subrev_u32 v{DV}, s57, v{DV}", f"v_cmp_gt_u32 vcc, {NB}, v{DV}", "s_cbranch_vccz K2_BF3",
      f"buffer_load_dword v{SV}, v{F4}, s[{SS}:{SS+3}], s58 offen", f"buffer_load_ushort v{EV}, v{F2}, s[{SE}:{SE+3}], s59 offen",
      "s_mov_b64 s[60:61], vcc", "s_waitcnt vmcnt(0)")
    a.label("K2_BF2")
    a("s_ff1_i32_b64 s58, s[60:61]", "s_bitset0_b64 s[60:61], s58",
      f"v_readlane_b32 s59, v{SV}, s58", f"v_readlane_b32 s62, v{DV}, s58", f"v_readlane_b32 s63, v{EV}, s58",
      "s_min_u32 s59, s59, %d" % (N - 1), "s_lshl_b32 s59, s59, 7", f"buffer_load_ushort v{T}, v{PO}, s[{SWS}:{SWS+3}], s59 offen",
      f"s_mul_i32 s58, s62, {QSTR}", f"v_add_u32 v{T+1}, s58, v{F4}", f"ds_read_b32 v{T+1}, v{T+1} offset:{L_QS}",
      "s_lshl_b32 s63, s63, 16", "s_lshl_b32 s62, s62, 8", f"s_add_u32 s62, s62, {L_ELL}", f"v_add_u32 v{T+2}, s62, v{F4}",
      "s_waitcnt vmcnt(0) lgkmcnt(0)",
      f"v_lshlrev_b32 v{T}, 16, v{T}", f"v_add_f32 v{T}, v{T}, v{T+1}", f"v_fma_f32 v{T}, s63, v{W3}, v{T}",
      f"v_exp_f32 v{T+1}, v{T}", f"v_add_f32 v{T+1}, 1.0, v{T+1}", f"v_rcp_f32 v{T+1}, v{T+1}", f"v_mul_f32 v{T}, {NLN2:#x}, v{T}", f"v_mul_f32 v{T}, v{T}, v{T+1}",
      f"ds_add_f32 v{T+2}, v{T}", "s_cmp_lg_u64 s[60:61], 0", "s_cbranch_scc1 K2_BF2")
    a.label("K2_BF3")
    a("s_add_u32 s56, s56, 12", f"s_cmp_lt_u32 s56, {E//64}", "s_cbranch_scc1 K2_BF1")
    a("s_waitcnt lgkmcnt(0)", "s_barrier", f"v_mov_b32 v{T+4}, v0")
    a.label("K2_BF4")
    a(f"v_lshlrev_b32 v{T+5}, 3, v{T+4}", f"v_add_u32 v{T+5}, {L_ELL}, v{T+5}", f"ds_read_b64 {vr(T,2)}, v{T+5}",
      f"v_lshrrev_b32 v{T+5}, 5, v{T+4}", f"v_mul_u32_u24 v{T+5}, {ASTR}, v{T+5}", f"v_and_b32 v{T+6}, 31, v{T+4}", f"v_lshl_add_u32 v{T+5}, v{T+6}, 2, v{T+5}",
      "s_waitcnt lgkmcnt(0)", f"v_cvt_pk_bf16_f32 v{T}, v{T}, v{T+1}", f"ds_write_b32 v{T+5}, v{T} offset:{L_AGB}",
      f"v_add_u32 v{T+4}, 768, v{T+4}", f"v_cmpx_gt_u32 vcc, {NB*32}, v{T+4}", "s_cbranch_execnz K2_BF4")
    a("s_mov_b64 exec, -1", "s_mov_b32 s71, -1", "s_waitcnt lgkmcnt(0)", "s_barrier", "s_branch K2_EPI")
    return a.lines

def kd(name, vg, sg=102):
    return f""".amdhsa_kernel {name}
  .amdhsa_next_free_vgpr {vg}
  .amdhsa_next_free_sgpr {sg}
  .amdhsa_accum_offset {vg}
  .amdhsa_group_segment_fixed_size 0
  .amdhsa_kernarg_size 72
  .amdhsa_user_sgpr_count 2
  .amdhsa_user_sgpr_kernarg_segment_ptr 1
  .amdhsa_system_sgpr_workgroup_id_x 1
.end_amdhsa_kernel"""

def build(opt=None):
    opt = opt or {}
    out = ["; mpnn edge MLP: K1 bins edges by destination bucket and builds the P' table, K2 aggregates and updates",
           f"; @launch kernel=mpnn_bin_kernel grid=(256,1,1) block=(1024,1,1) lds={K1_LDS}",
           f"; @launch kernel=mpnn_msg_kernel grid=(256,1,1) block=(768,1,1) lds={K2_LDS}",
           '.amdgcn_target "amdgcn-amd-amdhsa--gfx950"', ".text"]
    for name, fn in (("mpnn_bin_kernel", gen_k1), ("mpnn_msg_kernel", gen_k2)):
        lines, nn = fix_hazards(fn(opt), verbose=opt.get("verbose"))
        out += [f".globl {name}", ".p2align 8", f".type {name},@function"] + lines
    out += ['.section .rodata,"a"', ".p2align 6", kd("mpnn_bin_kernel", 128), ".p2align 6", kd("mpnn_msg_kernel", 168)]
    return "\n".join(out) + "\n"

if __name__ == "__main__":
    import argparse
    ap = argparse.ArgumentParser(); ap.add_argument("-o", default="standalone__mpnn_edge_mlp__graph.s")
    ap.add_argument("--stamp", type=int, default=0); ap.add_argument("-v", action="store_true")
    g = ap.parse_args()
    open(g.o, "w").write(build({"stamp": g.stamp, "verbose": g.v}))
```

```python
import sys, struct, math
sys.path.insert(0, "gen")
from asmlib import *

N = 25000; E = 800000; NB = 98; CH = 3128; CAP = 72
WS_RA = 0x400000; WS_DA = 0x800000; WS_TG = 0x900000; WS_RM = 0x980000; WS_WF = 0xA80000; WS_END = WS_WF + 26 * 1024
TSENT = 1000; TMARK = 1001
WS_STAMP = 0x1000000
f2u = lambda f: struct.unpack("<I", struct.pack("<f", f))[0]
NLOG2E = f2u(-1.4426950408889634); NLN2 = f2u(-0.6931471805599453)
NTILE = (N + 15) // 16

def mf16(d, a, b, c): return f"v_mfma_f32_16x16x32_bf16 {vr(d,4)}, {vr(a,4)}, {vr(b,4)}, {c if isinstance(c,str) else vr(c,4)}"
def mf32(d, a, b, c): return f"v_mfma_f32_32x32x16_bf16 {vr(d,16)}, {vr(a,4)}, {vr(b,4)}, {vr(c,16)}"

class Stamps:
    def __init__(self, a, on, base, kidx, nw): self.a = a; self.on = on; self.base = base; self.k = 0; self.kidx = kidx; self.nw = nw
    def __call__(self):
        if not self.on: return
        r = self.base + 2 * self.k; self.k += 1
        self.a(f"s_waitcnt lgkmcnt(0)", f"s_memrealtime s[{r}:{r+1}]", "s_waitcnt lgkmcnt(0)")
    def early(self):
        if not self.on: return
        r = self.base + 2 * self.k; self.k += 1
        self.a(f"s_memrealtime s[{r}:{r+1}]")
    def flush(self, ws, wave, t0, t1):
        if not self.on: return
        a = self.a
        self()
        a("s_mov_b64 exec, -1")
        a(f"v_mov_b32 v{t0}, 0")
        for k in range(self.k): a(f"v_writelane_b32 v{t0}, s{self.base+2*k}, {k}")
        if self.kidx == 1: a(f"v_writelane_b32 v{t0}, s69, 15", f"s_getreg_b32 s69, hwreg(HW_REG_HW_ID)", f"v_writelane_b32 v{t0}, s69, 14")
        if self.on == 2 and self.kidx == 1:
            b = self.base
            a(f"s_add_u32 s{b}, s2, s{wave}", f"s_cmp_lg_u32 s{b}, 0", f"s_cbranch_scc1 STK{self.kidx}",
              f"s_load_dwordx2 s[{b}:{b+1}], s[0:1], 56", f"v_and_b32 v{t1}, 63, v0", f"v_lshlrev_b32 v{t1}, 2, v{t1}",
              f"v_add_u32 v{t1+1}, {WS_STAMP}, v{t1}", f"global_load_dword v{t1+1}, v{t1+1}, s[{ws}:{ws+1}]",
              "s_waitcnt vmcnt(0) lgkmcnt(0)", f"s_mov_b64 exec, 0x3ff", f"global_store_dword v{t1}, v{t0}, s[{b}:{b+1}] offset:24",
              f"s_mov_b64 exec, 0x3f", f"global_store_dword v{t1}, v{t1+1}, s[{b}:{b+1}]")
            a.label(f"STK{self.kidx}")
            return
        a(f"s_mul_i32 s{self.base}, s2, {self.nw}", f"s_add_u32 s{self.base}, s{self.base}, s{wave}", f"s_lshl_b32 s{self.base}, s{self.base}, 6",
          f"s_add_u32 s{self.base}, s{self.base}, {WS_STAMP + self.kidx * 0x100000}",
          f"v_and_b32 v{t1}, 63, v0", f"v_lshlrev_b32 v{t1}, 2, v{t1}", f"v_add_u32 v{t1}, s{self.base}, v{t1}",
          "s_mov_b64 exec, 0xffff", f"global_store_dword v{t1}, v{t0}, s[{ws}:{ws+1}]")

def srd(a, r, lo, hi, num, stride=0):
    a(f"s_mov_b32 s{r}, s{lo}")
    if stride: a(f"s_or_b32 s{r+1}, s{hi}, {stride << 16:#x}")
    else: a(f"s_mov_b32 s{r+1}, s{hi}")
    a(f"s_mov_b32 s{r+2}, {num}", f"s_mov_b32 s{r+3}, 0x20000")

K1_RM = 16384; K1_TG = 20480; K1_DA = 24576; K1_CNT = 28672; K1_PC = K1_CNT + 1024; K1_LDS = K1_CNT + 2048
def gen_k1(opt):
    a = Asm(); st = Stamps(a, opt.get("stamp"), 70, 0, 16)
    a.label("mpnn_bin_kernel")
    a("s_cmp_ge_u32 s2, 256", "s_cbranch_scc1 K1_END")
    a("s_load_dwordx8 s[4:11], s[0:1], 0", "s_load_dwordx4 s[12:15], s[0:1], 32", "s_load_dwordx2 s[16:17], s[0:1], 64")
    a("v_lshrrev_b32 v1, 6, v0", "v_lshlrev_b32 v7, 4, v0", "v_readfirstlane_b32 s3, v1", "v_lshlrev_b32 v4, 3, v0")
    def ldsinit():
        a("v_lshlrev_b32 v5, 2, v0", "v_mov_b32 v6, -1", f"ds_write_b32 v5, v6 offset:{K1_DA}", f"v_mov_b32 v6, {TSENT}", f"ds_write_b32 v5, v6 offset:{K1_TG}",
          "v_and_b32 v5, 0x7fc, v5", "v_lshlrev_b32 v6, 4, v5", "v_cmp_lt_u32 vcc, 1020, v5", "v_cndmask_b32 v6, 0, v6, vcc", f"ds_write_b32 v5, v6 offset:{K1_CNT}")
    a("s_cmp_ge_u32 s3, 13", "s_cbranch_scc1 K1_P")
    DST, SRC, EE, B, DL, RK, REC, S, BQ = 8, 12, 16, 20, 24, 28, 32, 36, 40
    MK = 44
    a(f"s_mul_i32 s18, s2, {CH}", f"s_sub_u32 s19, {E}, s18", f"s_min_u32 s19, s19, {CH}", "s_lshl_b32 s36, s18, 2", "s_lshl_b32 s37, s18, 1")
    for r, n in ((20, E * 4), (24, E * 4), (28, E * 2), (32, WS_END)): a(f"s_mov_b32 s{r+2}, {n}", f"s_mov_b32 s{r+3}, 0x20000")
    a("s_waitcnt lgkmcnt(0)")
    st()
    a("s_mov_b32 s20, s10", "s_mov_b32 s21, s11", f"buffer_load_dwordx4 {vr(DST,4)}, v7, s[20:23], s36 offen")
    a("s_mov_b32 s24, s8", "s_mov_b32 s25, s9", f"buffer_load_dwordx4 {vr(SRC,4)}, v7, s[24:27], s36 offen")
    a("s_mov_b32 s28, s6", "s_mov_b32 s29, s7", f"buffer_load_dwordx2 {vr(EE,2)}, v4, s[28:31], s37 offen")
    a("s_mov_b32 s32, s16", "s_mov_b32 s33, s17")
    ldsinit()
    a("v_lshlrev_b32 v1, 2, v0", "v_cmp_gt_u32 vcc, s19, v1", "v_mov_b32 v6, 1", "v_mov_b32 v5, 4", "s_movk_i32 s38, -98", "s_mov_b32 s39, 0xffff0000",
      f"s_movk_i32 s18, {K1_TG - 4}")
    a("s_waitcnt lgkmcnt(0)", "s_barrier")
    a("s_mov_b64 exec, vcc", "s_cbranch_execz K1_B1")
    a("s_waitcnt vmcnt(2)")
    st()
    for i in range(4):
        a(f"v_mul_u32_u24 v{B+i}, 21400, v{DST+i}", f"v_lshrrev_b32 v{B+i}, 21, v{B+i}", f"v_lshlrev_b32 v{RK+i}, 2, v{B+i}",
          f"ds_add_rtn_u32 v{RK+i}, v{RK+i}, v6 offset:{K1_CNT}")
    for i in range(4): a(f"v_mad_i32_i24 v{DL+i}, v{B+i}, s38, v{DST+i}", f"v_and_b32 v{BQ+i}, 0xf8, v{B+i}")
    for i in range(4):
        a(f"s_waitcnt lgkmcnt(3)", f"v_cmp_lt_u32 s[{MK+2*i}:{MK+2*i+1}], 15, v{RK+i}", f"v_lshl_add_u32 v{S+i}, v{B+i}, 4, v{RK+i}", f"v_lshlrev_b32 v{RK+i}, 2, v{S+i}",
          f"s_mov_b64 exec, s[{MK+2*i}:{MK+2*i+1}]", f"ds_add_rtn_u32 v{RK+i}, v{BQ+i}, v5 offset:{K1_PC}", "s_mov_b64 exec, vcc")
    for i in range(4):
        a(f"s_andn2_b64 exec, vcc, s[{MK+2*i}:{MK+2*i+1}]", f"ds_write_b8 v{S+i}, v{DL+i} offset:{K1_DA}")
    a("s_mov_b64 exec, vcc")
    for i in range(4): a(f"v_mad_i32_i24 v{BQ+i}, v{BQ+i}, s38, v{DST+i}")
    a("s_waitcnt vmcnt(0)")
    for i in range(4):
        if i % 2 == 0: a(f"v_lshl_or_b32 v{REC+i}, v{EE+i//2}, 16, v{SRC+i}")
        else: a(f"v_and_or_b32 v{REC+i}, v{EE+i//2}, s39, v{SRC+i}")
    a("s_waitcnt lgkmcnt(4)")
    for i in range(4): a(f"v_min_u32 v{RK+i}, s18, v{RK+i}", f"ds_write_b32 v{RK+i}, v{REC+i}")
    for i in range(4): a(f"s_mov_b64 exec, s[{MK+2*i}:{MK+2*i+1}]", f"ds_write_b32 v{RK+i}, v{BQ+i} offset:4096")
    a.label("K1_B1")
    a("s_mov_b64 exec, -1")
    a("s_and_b32 s40, s2, 7", "s_lshl_b32 s40, s40, 5", "s_lshr_b32 s41, s2, 3", "s_add_u32 s40, s40, s41",
      "s_lshl_b32 s41, s40, 6", f"s_add_u32 s42, s41, {WS_RM}", f"s_add_u32 s44, s41, {WS_TG}", f"s_add_u32 s41, s41, {WS_RA}",
      "s_lshl_b32 s43, s40, 4", f"s_add_u32 s43, s43, {WS_DA}")
    a("v_lshrrev_b32 v1, 2, v0", "v_lshlrev_b32 v1, 14, v1", "v_and_b32 v2, 3, v0", "v_lshl_add_u32 v1, v2, 4, v1")
    a("v_and_b32 v3, 31, v0", "v_lshlrev_b32 v4, 3, v3", "v_lshlrev_b32 v3, 7, v3", f"v_add_u32 v3, {K1_RM + 128}, v3")
    a("s_lshr_b32 s45, s3, 2")
    a("s_waitcnt lgkmcnt(0)", "s_barrier")
    st()
    if opt.get("noc"): a("s_branch K1_NOC")
    a("ds_read_b128 v[8:11], v7")
    a("s_cmp_eq_u32 s45, 1", "s_cbranch_scc1 K1_CRM")
    a("s_cmp_ge_u32 s3, 10", "s_cbranch_scc1 K1_CRA")
    a(f"ds_read_b32 v5, v4 offset:{K1_PC}")
    a("s_cmp_eq_u32 s45, 2", "s_cbranch_scc1 K1_CTG")
    a(f"ds_read_b128 v[16:19], v7 offset:{K1_DA}", "v_lshlrev_b32 v2, 12, v0", "s_waitcnt lgkmcnt(0)", "v_cmp_gt_u32 vcc, v5, v3", "s_cbranch_vccz K1_CDA")
    for k in range(4): a(f"v_mov_b32 v{16+k}, -1")
    a.label("K1_CDA")
    a("buffer_store_dwordx4 v[16:19], v2, s[32:35], s43 offen", "s_branch K1_CRA")
    a.label("K1_CTG")
    a("v_bfe_u32 v6, v0, 2, 5", "v_lshlrev_b32 v12, 7, v6", "v_lshl_add_u32 v12, v2, 2, v12", f"v_add_u32 v12, {K1_TG}, v12")
    for k in range(4): a(f"ds_read2_b32 v[{16+2*k}:{17+2*k}], v12 offset0:{8*k} offset1:{8*k+4}")
    a("v_lshlrev_b32 v6, 14, v6", "v_lshl_add_u32 v6, v2, 4, v6", "s_waitcnt lgkmcnt(0)", "v_cmp_gt_u32 vcc, v5, v3")
    for k in range(4): a(f"v_lshlrev_b32 v{16+2*k}, 2, v{16+2*k}", f"v_lshl_or_b32 v{24+k}, v{17+2*k}, 18, v{16+2*k}")
    a("s_cbranch_vccz K1_CT2")
    for k in range(4): a(f"v_mov_b32 v{24+k}, {(TSENT*4) * 0x10001:#x}")
    a("v_cmp_eq_u32 vcc, 0, v2", f"v_mov_b32 v12, {(TSENT*4) * 0x10000 + TMARK*4:#x}", "v_cndmask_b32 v26, v26, v12, vcc")
    a.label("K1_CT2")
    a("buffer_store_dwordx4 v[24:27], v6, s[32:35], s44 offen", "s_branch K1_CRA")
    a.label("K1_CRM")
    a("v_bfe_u32 v6, v0, 3, 5", "v_lshlrev_b32 v4, 3, v6", f"ds_read_b32 v5, v4 offset:{K1_PC}", f"ds_read_b128 v[16:19], v7 offset:{K1_RM - 4096}",
      "v_lshlrev_b32 v6, 14, v6", "v_lshl_add_u32 v6, v2, 4, v6", "v_bfe_u32 v2, v0, 2, 1", "v_lshl_add_u32 v6, v2, 19, v6", f"v_add_u32 v3, {K1_RM - 4096}, v7",
      "s_waitcnt lgkmcnt(0)", "v_cmp_gt_u32 vcc, v5, v3", "s_mov_b64 exec, vcc", "s_cbranch_execz K1_CR2",
      "buffer_store_dwordx4 v[16:19], v6, s[32:35], s42 offen")
    a.label("K1_CR2")
    a("s_mov_b64 exec, -1")
    a.label("K1_CRA")
    a("s_waitcnt lgkmcnt(0)", "buffer_store_dwordx4 v[8:11], v1, s[32:35], s41 offen %s" % opt.get("cflag", ""))
    a.label("K1_NOC")
    if st.on: a("s_waitcnt vmcnt(0)")
    st.flush(16, 3, 20, 21)
    a.label("K1_END")
    a("s_endpgm")
    W, A, X, D, O = 8, 40, 72, 96, 112
    a.label("K1_P")
    a("v_and_b32 v1, 15, v0", "v_bfe_u32 v2, v0, 4, 2",
      "v_lshlrev_b32 v3, 10, v2", "v_lshl_add_u32 v3, v1, 3, v3",
      "v_lshlrev_b32 v4, 7, v1", "v_lshl_add_u32 v4, v2, 4, v4")
    a("s_mul_i32 s18, s2, 3", "s_add_u32 s18, s18, s3", "s_sub_u32 s18, s18, 13",
      "s_lshl_b32 s36, s18, 11", f"s_add_u32 s37, s36, {768*2048}", f"s_add_u32 s38, s36, {1536*2048}", "s_movk_i32 s39, 4096")
    a("s_waitcnt lgkmcnt(0)")
    st.k = 0; st()
    srd(a, 20, 12, 13, 129 * 128)
    srd(a, 24, 4, 5, N * 128)
    for i in range(2):
        for s in range(2): a(f"buffer_load_dwordx4 {vr(X+8*i+4*s,4)}, v4, s[24:27], s{36+i} offen offset:{64*s}")
    for s in range(2):
        for kk in range(8): a(f"buffer_load_dwordx2 {vr(W+16*s+2*kk,2)}, v3, s[20:23], {'s39' if s else '0'} offen offset:{128*kk}")
    for s in range(2): a(f"buffer_load_dwordx4 {vr(X+16+4*s,4)}, v4, s[24:27], s38 offen offset:{64*s}")
    srd(a, 28, 16, 17, N * 128)
    srd(a, 32, 16, 17, WS_END)
    ldsinit()
    a("s_waitcnt lgkmcnt(0)", "s_barrier")
    a("s_mov_b32 s44, 0x05040100", "s_mov_b32 s45, 0x07060302", f"s_mov_b32 s46, {NLOG2E:#x}", f"s_mov_b32 s47, {NLOG2E:#x}")
    a("s_waitcnt vmcnt(2)")
    st()
    for tau in range(4):
        for s in range(2):
            for rr in range(4):
                a(f"v_perm_b32 v{A+8*tau+4*s+rr}, v{W+16*s+2*(2*rr+1)+tau//2}, v{W+16*s+2*(2*rr)+tau//2}, s{44+tau%2}")
    for i in range(3):
        if i == 2:
            a(f"s_cmp_ge_u32 s18, {NTILE-1536}", "s_cbranch_scc1 K1_PD", "s_waitcnt vmcnt(%d)" % (0 if opt.get("nop") else 4))
        for tau in range(4): a(mf16(D+4*tau, A+8*tau, X+8*i, "0"))
        for tau in range(4): a(mf16(D+4*tau, A+8*tau+4, X+8*i+4, D+4*tau))
        for k in range(0, 16, 2): a(f"v_pk_mul_f32 {vr(D+k,2)}, {vr(D+k,2)}, s[46:47]")
        for r in range(4):
            for h in range(2): a(f"v_cvt_pk_bf16_f32 v{O+2*r+h}, v{D+4*(2*h)+r}, v{D+4*(2*h+1)+r}")
        pf = opt.get("pflag", "")
        if not opt.get("nop"): a(f"buffer_store_dwordx4 {vr(O,4)}, v4, s[28:31], s{36+i} offen {pf}", f"buffer_store_dwordx4 {vr(O+4,4)}, v4, s[28:31], s{36+i} offen offset:64 {pf}")
    a.label("K1_PD")
    a("s_cmp_lg_u32 s3, 15", "s_cbranch_scc1 K1_B1", "s_sub_u32 s18, s2, 16", "s_cmp_gt_u32 s18, 24", "s_cbranch_scc1 K1_B1")
    a("v_and_b32 v5, 63, v0", "v_lshlrev_b32 v5, 4, v5", "s_lshl_b32 s36, s18, 10", f"s_add_u32 s36, s36, {WS_WF}")
    a("s_cmp_eq_u32 s18, 24", "s_cbranch_scc1 K1_AE")
    a("v_lshlrev_b32 v3, 10, v2", "v_lshl_add_u32 v3, v1, 1, v3")
    a("s_cmp_ge_u32 s18, 8", "s_cbranch_scc1 K1_FU")
    a("s_lshr_b32 s37, s18, 1", "s_and_b32 s38, s18, 1", "s_lshl_b32 s37, s37, 5", "s_lshl_b32 s39, s38, 12", "s_add_u32 s39, s39, s37", "s_add_u32 s39, s39, 8192")
    for kk in range(8): a(f"buffer_load_ushort v{W+kk}, v3, s[20:23], s39 offen offset:{128*kk}")
    a("s_branch K1_FJ")
    a.label("K1_FU")
    srd(a, 24, 14, 15, 128 * 128)
    a("s_sub_u32 s18, s18, 8", "s_lshr_b32 s37, s18, 2", "s_and_b32 s38, s18, 3", "s_lshl_b32 s37, s37, 5", "s_lshl_b32 s39, s38, 12", "s_add_u32 s39, s39, s37", "s_add_u32 s36, s36, 2048")
    for kk in range(8): a(f"buffer_load_ushort v{W+kk}, v3, s[24:27], s39 offen offset:{128*kk}")
    a.label("K1_FJ")
    a("s_waitcnt vmcnt(0)")
    for rr in range(4): a(f"v_lshl_or_b32 v{A+rr}, v{W+2*rr+1}, 16, v{W+2*rr}")
    a(f"buffer_store_dwordx4 {vr(A,4)}, v5, s[32:35], s36 offen", "s_branch K1_B1")
    a.label("K1_AE")
    a("v_bfe_u32 v1, v0, 3, 2", "v_and_b32 v2, 3, v0", "v_lshl_add_u32 v1, v1, 2, v2", "v_lshlrev_b32 v1, 1, v1",
      "v_bfe_u32 v2, v0, 2, 1", "v_bfe_u32 v3, v0, 5, 1", "v_cmp_eq_u32 vcc, v2, v3", "s_movk_i32 s39, 16384", f"s_mov_b32 s36, {WS_WF + 9*1024}")
    for c in range(4): a(f"buffer_load_ushort v{W+c}, v1, s[20:23], s39 offen offset:{32*c}")
    a("s_waitcnt vmcnt(0)")
    for c in range(4):
        a(f"v_lshlrev_b32 v{W+c}, 16, v{W+c}", f"v_mul_f32 v{W+c}, s46, v{W+c}", f"v_cvt_pk_bf16_f32 v{W+c}, 0, v{W+c}", f"v_cndmask_b32 v{A+c}, 0, v{W+c}, vcc")
    a(f"buffer_store_dwordx4 {vr(A,4)}, v5, s[32:35], s36 offen", "s_branch K1_B1")
    return a.lines

L_QS = 0; QSTR = 272
L_AGB = L_QS + 112 * QSTR; ASTR = 144
L_CTR = L_AGB + 112 * ASTR; L_OVC = L_CTR + 448; L_FLG = L_CTR + 452; L_SLOT = L_CTR + 512; L_OVL = L_SLOT + 768
L_XS = L_OVL + 1024; L_WF = L_XS + 112 * ASTR
L_ELL = L_WF + 12288; ESTR = 516; EROWS = 80
K2_LDS = L_ELL + 3 * 768 * 16 + 6144
assert K2_LDS >= L_ELL + EROWS * ESTR and L_ELL % 16 == 0
ZCOL = 112 * 4; DUMP = L_ELL + CAP * ESTR + 400

def gen_k2(opt):
    a = Asm(); st = Stamps(a, opt.get("stamp"), 78, 1, 12)
    perm = opt.get("perm", [0, 1, 2, 3, 10, 6, 5, 4, 11, 9, 8, 7])
    Q, P, Z0, Z1, NN, DD, EX, BE, AL, AH, AE, WU, IX, VI, VE, LEN, AGA, MFL, OOF, ARD = \
        8, 24, 40, 56, 72, 88, 104, 120, 124, 128, 132, 136, 156, 158, 159, 163, 164, 165, 166, 167
    R = Z0
    AD = NN
    TG = DD
    XR = EX; XR2 = EX + 4; PV = EX + 8; SA2 = EX + 9
    CA = Q; CR = P
    X = NN; W2 = EX
    SWS, SPT, SX, SO = 24, 28, 32, 36
    MK = 40
    BK = "s76"
    a.label("mpnn_msg_kernel")
    a("s_cmp_ge_u32 s2, 256", "s_cbranch_scc1 K2_END")
    st.early()
    a("s_load_dwordx2 s[20:21], s[0:1], 64", "s_load_dwordx16 s[4:19], s[0:1], 0")
    a("v_lshrrev_b32 v1, 6, v0", "v_lshlrev_b32 v2, 4, v0", "v_readfirstlane_b32 s3, v1", "v_lshlrev_b32 v3, 2, v0")
    a(f"s_and_b32 {BK}, s2, 7", f"s_lshl_b32 {BK}, {BK}, 5", "s_lshr_b32 s64, s2, 3", f"s_add_u32 {BK}, {BK}, s64")
    a(f"s_lshl_b32 s64, {BK}, 14", f"s_add_u32 s64, s64, {WS_RA - 4096}", "s_add_u32 s65, s64, 8192",
      f"s_lshl_b32 s66, {BK}, 12", f"s_add_u32 s66, s66, {WS_DA - 1024}",
      f"s_lshr_b32 s67, {BK}, 3", "s_lshl_b32 s67, s67, 14", f"s_add_u32 s77, s67, {WS_RM}", f"s_add_u32 s60, s67, {WS_TG}",
      "s_add_u32 s61, s60, 4096", "s_add_u32 s62, s60, 8192", "s_add_u32 s63, s60, 12288")
    a(f"s_mul_i32 s69, {BK}, {NB}", f"s_sub_u32 s70, {N}, s69", f"s_min_u32 s70, s70, {NB}", "s_lshl_b32 s70, s70, 7", "s_lshl_b32 s71, s69, 7")
    a("s_and_b32 s72, s3, 3", "s_lshr_b32 s73, s3, 2")
    a(f"s_mov_b32 s{SWS+2}, {WS_END}", f"s_mov_b32 s{SWS+3}, 0x20000", f"s_mov_b32 s{SX+2}, s70", f"s_mov_b32 s{SX+3}, 0x20000")
    a("s_movk_i32 s75, 4096", f"s_mov_b32 s74, {WS_WF}")
    for i in range(4): a(f"v_mov_b32 v{Q+i}, 0")
    a("s_cmp_eq_u32 s73, 0")
    a("s_waitcnt lgkmcnt(0)")
    st()
    ws = f"s[{SWS}:{SWS+3}]"
    if opt.get("noc"): a("s_branch K2_FIN")
    a(f"s_mov_b32 s{SWS}, s20", f"s_mov_b32 s{SWS+1}, s21")
    a("s_cbranch_scc0 K2_A1")
    for r in range(4): a(f"buffer_load_dwordx4 {vr(TG+4*r,4)}, v2, {ws}, s{60+r} offen")
    a("s_barrier", "s_branch K2_A2")
    a.label("K2_A1")
    a(f"buffer_load_dword v{TG}, v3, {ws}, s66 offen", f"buffer_load_dword v{TG+1}, v3, {ws}, s66 offen offset:2048")
    a("s_barrier")
    a(f"buffer_load_dwordx4 {vr(R,4)}, v2, {ws}, s64 offen", f"buffer_load_dwordx4 {vr(R+4,4)}, v2, {ws}, s65 offen")
    a.label("K2_A2")
    a(f"s_add_u32 s{SX}, s4, s71", f"s_addc_u32 s{SX+1}, s5, 0")
    a(f"buffer_load_dwordx4 {vr(XR,4)}, v2, s[{SX}:{SX+3}], 0 offen")
    a(f"v_lshrrev_b32 v3, 3, v0", f"v_mul_u32_u24 v3, {ASTR}, v3", "v_and_b32 v4, 7, v0", "v_lshl_add_u32 v3, v4, 4, v3")
    a("s_cmp_eq_u32 s3, 8", "s_cbranch_scc1 K2_A3")
    a(f"buffer_load_dwordx4 {vr(XR2,4)}, v2, {ws}, s74 offen", f"v_add_u32 v{SA2}, {L_WF}, v2", "s_branch K2_A4")
    a.label("K2_A3")
    a(f"buffer_load_dwordx4 {vr(XR2,4)}, v2, s[{SX}:{SX+3}], s75 offen", f"v_add_u32 v{SA2}, {L_XS + 32*ASTR}, v3")
    a.label("K2_A4")
    a(f"v_add_u32 v4, {L_ELL}, v2")
    for i in range(3): a(f"ds_write_b128 v4, {vr(Q,4)} offset:{12288*i}")
    a(f"v_lshlrev_b32 v5, 3, v0", f"v_add_u32 v5, {L_ELL + 3*12288}, v5", f"ds_write_b64 v5, {vr(Q,2)}")
    a("v_and_b32 v5, 127, v0", "v_lshlrev_b32 v5, 2, v5", f"v_add_u32 v4, {L_ELL}, v5", f"v_cmp_gt_u32 vcc, {NB*4}, v5")
    a("v_and_b32 v6, 63, v0", "v_lshlrev_b32 v6, 4, v6", "v_cndmask_b32 v4, 0, v4, vcc", f"ds_write_b32 v5, v4 offset:{L_CTR}")
    a("v_and_b32 v4, 15, v0", "v_bfe_u32 v5, v0, 4, 2", f"v_lshlrev_b32 v{OOF}, 7, v4")
    a("s_lshl_b32 s74, s73, 11", f"s_add_u32 s75, s74, {3*2048}", f"s_add_u32 s22, s74, {6*2048}")
    srd(a, SPT, 20, 21, N, stride=128)
    a(f"s_add_u32 s{SO}, s16, s71", f"s_addc_u32 s{SO+1}, s17, 0", f"s_mov_b32 s{SO+2}, s70", f"s_mov_b32 s{SO+3}, 0x20000")
    T = Q + 4
    a(f"v_and_b32 v{T}, 1, v0", f"v_lshlrev_b32 v{T}, 4, v{T}", f"v_mov_b32 v{T+1}, 0x3f80", f"v_lshlrev_b32 v{T}, v{T}, v{T+1}",
      f"v_bfe_u32 v{T+1}, v0, 3, 2", f"v_bfe_u32 v{T+2}, v0, 1, 1", f"v_lshl_add_u32 v{T+1}, v{T+1}, 1, v{T+2}",
      f"v_bfe_u32 v{T+2}, v0, 2, 1", f"v_bfe_u32 v{T+3}, v0, 5, 1", f"v_xor_b32 v{T+2}, v{T+2}, v{T+3}", f"v_lshl_add_u32 v{T+1}, v{T+2}, 3, v{T+1}")
    for k in range(8): a(f"v_cmp_eq_u32 s[{MK+2*k}:{MK+2*k+1}], {k}, v{T+1}")
    for k in range(8): a(f"v_cndmask_b32 v{AL+k}, 0, v{T}, s[{MK+2*k}:{MK+2*k+1}]")
    a(f"s_lshl_b32 s64, s72, 5", f"v_lshl_add_u32 v{OOF}, v5, 3, v{OOF}", f"v_add_u32 v{OOF}, s64, v{OOF}")
    a(f"s_lshl_b32 s64, s73, 4", f"v_add_u32 v4, s64, v4", f"v_mul_u32_u24 v{ARD}, {ASTR}, v4", f"v_lshl_add_u32 v{ARD}, v5, 4, v{ARD}")
    a(f"v_mul_u32_u24 v1, {QSTR}, v4", "v_lshl_add_u32 v1, v5, 4, v1", "s_lshl_b32 s64, s72, 6", "v_add_u32 v1, s64, v1")
    a(f"v_and_b32 v4, 3, v0", f"v_lshlrev_b32 v{IX+1}, 4, v4")
    a(f"v_lshrrev_b32 v{PV}, 2, v0", f"v_lshlrev_b32 v{PV}, 6, v{PV}", f"v_lshl_add_u32 v{PV}, v4, 2, v{PV}")
    a(f"v_mov_b32 v5, {ESTR}", f"s_movk_i32 s64, {NB*4}", f"s_mov_b32 s65, {DUMP}", f"s_and_b32 s69, {BK}, 7", f"s_mul_i32 s69, s69, {NB*4}",
      "s_mov_b32 s68, 0", "s_mov_b32 s71, 0", "s_mov_b32 s70, 0")
    for r in range(4): a(f"s_add_u32 s{60+r}, s77, {4096*r}")
    pk = sum(p << (4 * w) for w, p in enumerate(perm))
    a(f"s_mov_b32 s66, {pk & 0xffffffff:#x}", f"s_mov_b32 s67, {pk >> 32:#x}", "s_lshl_b32 s23, s3, 2", f"s_lshr_b64 s[66:67], s[66:67], s23",
      f"s_and_b32 s23, s66, 15", "s_lshl_b32 s23, s23, 4")
    a(f"v_bfe_u32 v{BE}, v0, 2, 4", f"v_add_u32 v{BE}, s23, v{BE}", f"v_lshlrev_b32 v{BE+1}, 2, v{BE}")
    a(f"v_and_b32 v{BE+2}, 1, v{BE}", f"v_cmp_gt_u32 vcc, 4, v{BE}", f"v_cmp_eq_u32 s[66:67], 0, v{BE+2}",
      f"s_or_b64 s[58:59], vcc, s[66:67]", f"s_andn2_b64 s[66:67], s[66:67], vcc",
      f"v_cndmask_b32 v{MFL}, 0, 1.0, s[66:67]", f"v_mov_b32 v{BE+3}, {L_ELL + ZCOL}")
    a(f"s_mov_b32 s66, {NLOG2E:#x}", f"s_mov_b32 s67, {NLOG2E:#x}")
    a("s_cmp_eq_u32 s73, 0")
    a("s_waitcnt lgkmcnt(0)", "s_barrier")
    a("s_cbranch_scc0 K2_CA")
    def a_round(ad, l, mk):
        for k in range(4): a(f"v_lshlrev_b32_sdwa v{ad+k}, 2, v{l} dst_sel:DWORD dst_unused:UNUSED_PAD src0_sel:DWORD src1_sel:BYTE_{k}")
        for k in range(4): a(f"v_cmp_gt_u32 s[{mk+2*k}:{mk+2*k+1}], s64, v{ad+k}")
        for k in range(4): a(f"s_mov_b64 exec, s[{mk+2*k}:{mk+2*k+1}]", f"ds_add_rtn_u32 v{ad+k}, v{ad+k}, v5 offset:{L_CTR}")
        a("s_mov_b64 exec, -1")
    def t_round(ad, tg, mk):
        for k in range(4): a(f"v_subrev_u32_sdwa v{ad+k}, s69, v{tg+k//2} dst_sel:DWORD dst_unused:UNUSED_PAD src0_sel:DWORD src1_sel:WORD_{k%2}")
        for k in range(4): a(f"v_cmp_gt_u32 s[{mk+2*k}:{mk+2*k+1}], s64, v{ad+k}")
        for k in range(4): a(f"s_mov_b64 exec, s[{mk+2*k}:{mk+2*k+1}]", f"ds_add_rtn_u32 v{ad+k}, v{ad+k}, v5 offset:{L_CTR}")
        a("s_mov_b64 exec, -1")
    def t_loads(ad, rec):
        for r in range(4):
            for k in range(4): a(f"v_cmp_lt_i32 s[{MK+2*k}:{MK+2*k+1}], s23, v{ad+4*r+k}")
            for k in range(4): a(f"s_mov_b64 exec, s[{MK+2*k}:{MK+2*k+1}]", f"buffer_load_dword v{rec+4*r+k}, v{PV}, {ws}, s{60+r} offen offset:{16*k}")
            a("s_mov_b64 exec, -1")
    SENT2 = (TSENT * 4) * 0x10001
    stk = st.k
    for r in range(4):
        a(f"s_waitcnt vmcnt({5-r})")
        if r == 3: st()
        t_round(AD + 4*r, TG + 4*r, MK + 8*(r%2))
        if r == 2: a("s_waitcnt lgkmcnt(8)")
    a(f"v_and_b32 v{Z1}, v{TG+2}, v{TG+6}", f"v_and_b32 v{Z1+1}, v{TG+10}, v{TG+14}", f"v_or_b32 v{Z1+2}, v{TG+2}, v{TG+6}", f"v_or3_b32 v{Z1+2}, v{TG+10}, v{TG+14}, v{Z1+2}",
      f"v_and_b32 v{Z1}, v{Z1}, v{Z1+1}", f"v_cmp_ne_u32 vcc, {SENT2:#x}, v{Z1}", f"v_cmp_ne_u32 s[{MK}:{MK+1}], v{Z1}, v{Z1+2}", f"s_or_b64 vcc, vcc, s[{MK}:{MK+1}]",
      "s_cbranch_vccnz K2_COLD")
    a.label("K2_C0R")
    a("s_waitcnt lgkmcnt(0)", "s_barrier")
    st()
    a("s_movk_i32 s23, 4096")
    t_loads(AD, R)
    a.label("K2_AB1T")
    T = Z1 + 4
    a(f"v_mov_b32 v{T}, 0", f"ds_read_b32 v{T+1}, v{T} offset:{L_OVC}")
    a("s_waitcnt lgkmcnt(0)", f"v_readfirstlane_b32 s23, v{T+1}", "s_andn2_b32 s23, s23, s68", "s_cbranch_scc1 K2_RESCAN")
    a("s_waitcnt vmcnt(16)", f"ds_write_b128 v3, {vr(XR,4)} offset:{L_XS}", f"ds_write_b128 v{SA2}, {vr(XR2,4)}")
    for k in range(16): a(f"v_min_u32 v{AD+k}, s65, v{AD+k}")
    for k in range(16):
        if k % 4 == 0: a(f"s_waitcnt vmcnt({12-k})")
        a(f"ds_write_b32 v{AD+k}, v{R+k}")
    a("s_cmp_lg_u32 s70, 0", "s_cbranch_scc1 K2_COLDW", "s_branch K2_CWR")
    a.label("K2_CA")
    st.k = stk
    a("s_waitcnt vmcnt(4)")
    st()
    a_round(AD, TG, MK); a_round(AD + 4, TG + 1, MK + 8)
    a("s_waitcnt lgkmcnt(0)", "s_barrier")
    st()
    a.label("K2_AB1")
    C = Q; OWN = Z1; RK = Z1 + 1; NQ = Z1 + 2; T = Z1 + 4; PP = 4
    a(f"v_mov_b32 v{T}, 0", f"ds_read_b32 v{T+1}, v{T} offset:{L_OVC}")
    a(f"v_subrev_u32 v{NQ}, 256, v0", f"v_lshrrev_b32 v{NQ}, 2, v{NQ}", f"v_lshlrev_b32 v{T}, 2, v{NQ}", f"v_mul_u32_u24 v{T+2}, 112, v{PP}",
      f"ds_read_b32 v{OWN}, v{T} offset:{L_CTR}")
    a("s_cmp_eq_u32 s3, 11", "s_cbranch_scc1 K2_NR1")
    for k in range(7): a(f"ds_read_b128 {vr(C+4*k,4)}, v{T+2} offset:{L_CTR+16*k}")
    a(f"v_mov_b32 v{RK}, 0", f"v_add_u32 v{T}, {L_ELL}, v{T}")
    a("s_waitcnt lgkmcnt(6)", f"v_readfirstlane_b32 s23, v{T+1}", "s_andn2_b32 s23, s23, s68", "s_cbranch_scc1 K2_RESCAN")
    for m in range(28 + 3):
        if m < 28 and m % 4 == 0 and m > 0: a(f"s_waitcnt lgkmcnt({6 - m//4})")
        if m < 28: a(f"v_cmp_gt_u32 s[{MK+2*(m%4)}:{MK+2*(m%4)+1}], v{C+m}, v{OWN}")
        if m >= 3: a(f"v_addc_co_u32 v{RK}, vcc, 0, v{RK}, s[{MK+2*((m-3)%4)}:{MK+2*((m-3)%4)+1}]")
    a(f"v_sub_u32 v{OWN}, v{OWN}, v{T}", f"v_cmp_lt_u32 vcc, {CAP*ESTR}, v{OWN}")
    a(f"v_add_u32_dpp v{RK}, v{RK}, v{RK} quad_perm:[1,0,3,2] row_mask:0xf bank_mask:0xf")
    a(f"v_min_u32 v{OWN}, {CAP*ESTR}, v{OWN}", f"v_lshrrev_b32 v{OWN}, 2, v{OWN}")
    a(f"v_add_u32_dpp v{RK}, v{RK}, v{RK} quad_perm:[2,3,0,1] row_mask:0xf bank_mask:0xf")
    a(f"v_mul_u32_u24 v{OWN}, 509, v{OWN}", f"v_lshrrev_b32 v{OWN}, 16, v{OWN}")
    a(f"s_movk_i32 s23, {NB}", f"v_cmp_gt_u32 s[{MK}:{MK+1}], s23, v{NQ}", f"s_and_b64 vcc, vcc, s[{MK}:{MK+1}]")
    a(f"s_movk_i32 s23, {NB-4}", f"v_cmp_gt_u32 s[{MK+2}:{MK+3}], s23, v{RK}")
    a(f"v_add_u32 v{T+1}, 1, v{OWN}", f"v_lshrrev_b32 v{T+2}, 1, v{T+1}", f"v_mul_u32_u24 v{T+2}, v{T+2}, v{PP}", f"v_mad_u32_u24 v{T}, v{T+2}, v5, v{T}",
      f"v_sub_u32 v{T+1}, v{T+1}, v{PP}", f"v_lshrrev_b32 v{T+1}, 1, v{T+1}", f"v_cndmask_b32 v{T+1}, v{OWN}, v{T+1}, s[{MK+2}:{MK+3}]",
      f"v_lshl_add_u32 v{T+2}, v{RK}, 1, v{PP}", f"v_add_u32 v{T+2}, 4, v{T+2}", f"v_subrev_u32 v{RK}, {NB-4}, v{RK}", f"v_cndmask_b32 v{T+2}, v{RK}, v{T+2}, s[{MK+2}:{MK+3}]",
      f"v_lshl_or_b32 v{T}, v{NQ}, 17, v{T}", f"v_lshl_or_b32 v{T}, v{T+1}, 24, v{T}", f"v_lshlrev_b32 v{T+2}, 2, v{T+2}",
      f"v_cndmask_b32 v{T+1}, 1, 2, s[{MK+2}:{MK+3}]", f"v_cmp_gt_u32 s[{MK+4}:{MK+5}], v{T+1}, v{PP}",
      f"s_and_b64 exec, s[{MK+4}:{MK+5}], s[{MK}:{MK+1}]", f"ds_write_b32 v{T+2}, v{T} offset:{L_SLOT}",
      "s_mov_b64 exec, vcc", f"v_mov_b32 v{T}, 0", f"ds_write_b32 v{T}, v5 offset:{L_FLG}", "s_mov_b64 exec, -1")
    a("s_branch K2_NR2")
    a.label("K2_NR1")
    a("s_waitcnt lgkmcnt(0)", f"v_readfirstlane_b32 s23, v{T+1}", "s_andn2_b32 s23, s23, s68", "s_cbranch_scc1 K2_RESCAN")
    a.label("K2_NR2")
    a("s_waitcnt vmcnt(2)")
    for k in range(8): a(f"v_min_u32 v{AD+k}, s65, v{AD+k}", f"ds_write_b32 v{AD+k}, v{R+k}")
    a("s_waitcnt vmcnt(0)", f"ds_write_b128 v3, {vr(XR,4)} offset:{L_XS}", f"ds_write_b128 v{SA2}, {vr(XR2,4)}")
    a.label("K2_CWR")
    for r in range(4): a(f"v_cmp_eq_u32 s[{MK+4+2*r}:{MK+5+2*r}], {r}, v4")
    T = Z1 + 8
    a(f"s_lshl_b32 s23, s72, 11", f"s_add_u32 s23, s23, {L_WF}", f"v_add_u32 v{T+3}, s23, v6", f"v_add_u32 v7, {L_WF + 9*1024}, v6",
      f"v_mov_b32 v{T+5}, v{IX+1}", f"v_mov_b32 v{T+7}, v{IX+1}", "s_lshl_b32 s23, s72, 12", f"s_add_u32 s23, s23, {WS_WF + 10*1024}")
    a("s_waitcnt lgkmcnt(0)", "s_barrier")
    st()
    a(f"ds_read_b32 v{T}, v{BE+1} offset:{L_SLOT}", "s_waitcnt lgkmcnt(0)")
    a(f"v_and_b32 v{VI}, 0x1ffff, v{T}", f"ds_read_u16 v{IX}, v{VI}", f"ds_read_u16 v{T+4}, v{VI} offset:{ESTR}", f"ds_read_u16 v{T+6}, v{VI} offset:{2*ESTR}")
    a(f"ds_read_b128 {vr(W2,4)}, v{T+3}", f"ds_read_b128 {vr(W2+4,4)}, v{T+3} offset:1024")
    for i in range(3):
        for s in range(2): a(f"ds_read_b128 {vr(X+8*i+4*s,4)}, v{ARD} offset:{L_XS + 48*ASTR*i + 64*s}")
    a(f"v_bfe_u32 v{T+1}, v{T}, 17, 7", f"v_lshrrev_b32 v{LEN}, 24, v{T}")
    for r in range(4): a(f"v_cndmask_b32 v{VE+r}, v{BE+3}, v{VI}, s[{MK+4+2*r}:{MK+5+2*r}]")
    def gather(slot, ix):
        p = P + 8 * slot
        return [f"buffer_load_dwordx4 {vr(p,4)}, {vr(ix,2)}, s[{SPT}:{SPT+3}], 0 idxen offen",
                f"buffer_load_dwordx4 {vr(p+4,4)}, {vr(ix,2)}, s[{SPT}:{SPT+3}], 0 idxen offen offset:64"]
    def rde(t): return [f"ds_read_b32 v{BE+r}, v{VE+r} offset:{t*ESTR}" for r in range(4)]
    a("s_waitcnt lgkmcnt(10)", *gather(0, IX), "s_waitcnt lgkmcnt(9)", *gather(1, T+4))
    a(f"v_mul_u32_u24 v{T+2}, {QSTR}, v{T+1}", f"v_lshl_add_u32 v{T+2}, v4, 6, v{T+2}")
    a(f"v_mul_u32_u24 v{AGA}, {ASTR}, v{T+1}", f"v_lshl_add_u32 v{AGA}, v4, 5, v{AGA}")
    a(f"v_readlane_b32 s69, v{LEN}, 0", f"v_readlane_b32 s70, v{LEN}, 16", "s_max_u32 s69, s69, s70", "s_mov_b32 s70, 0")
    QT = Z0
    for i in range(3): a(f"s_waitcnt lgkmcnt({4-2*i})", mf16(QT+4*i, W2, X+8*i, "0"), mf16(QT+4*i, W2+4, X+8*i+4, QT+4*i))
    a(*rde(0), f"ds_read_u16 v{IX}, v{VI} offset:{3*ESTR}", f"ds_read_b128 {vr(AE,4)}, v7")
    for i in range(3):
        if i == 2: a("s_cmp_lg_u32 s73, 0", "s_cbranch_scc1 K2_NQ2")
        a(f"v_pk_mul_f32 {vr(QT+4*i,2)}, {vr(QT+4*i,2)}, s[66:67]", f"v_pk_mul_f32 {vr(QT+4*i+2,2)}, {vr(QT+4*i+2,2)}, s[66:67]",
          f"ds_write_b128 v1, {vr(QT+4*i,4)} offset:{L_QS + 48*QSTR*i}")
    a.label("K2_NQ2")
    a("s_waitcnt lgkmcnt(0)", "s_barrier")
    for k in range(4): a(f"ds_read_b128 {vr(Q+4*k,4)}, v{T+2} offset:{L_QS+16*k}")
    for k in range(4): a(f"buffer_load_dwordx4 {vr(WU+4*k,4)}, v6, {ws}, s23 offen offset:{1024*k}")
    for i in range(16): a(f"v_mov_b32 v{NN+i}, 0")
    for i in range(16): a(f"v_mov_b32 v{DD+i}, 1.0")
    if opt.get("prio", 0):
        a("s_cmp_eq_u32 s73, 2", "s_cbranch_scc1 K2_PR", "s_setprio 1", "s_cmp_eq_u32 s73, 1", "s_cbranch_scc1 K2_PR", "s_setprio 2")
        a.label("K2_PR")
    a("s_cmp_eq_u32 s69, 0", "s_cbranch_scc1 K2_DONE0")
    a("s_waitcnt vmcnt(6) lgkmcnt(0)")
    st()
    a(mf32(Z0, AE, BE, Q), mf32(Z0, AL, P, Z0), mf32(Z0, AH, P + 4, Z0))
    a(*gather(0, T+6), *rde(1), "s_nop 3")
    a(".p2align 6")
    a.label("K2_LOOP")
    for u in range(2):
        zc = (Z0, Z1)[u]; zn = (Z1, Z0)[u]; p = P + 8 * ((u + 1) % 2)
        ex = [f"v_exp_f32 v{EX+i}, v{zc+i}" for i in range(16)]
        a("s_waitcnt vmcnt(2) lgkmcnt(0)")
        a(mf32(zn, AE, BE, Q), *ex[0:4], mf32(zn, AL, p, zn), *ex[4:8], mf32(zn, AH, p + 4, zn), *ex[8:16])
        a(*gather((u + 1) % 2, IX), *rde(u + 2), f"ds_read_u16 v{IX}, v{VI} offset:{(u+4)*ESTR}")
        a(f"v_cmpx_lt_u32 vcc, s70, v{LEN}")
        for i in range(0, 16, 2): a(f"v_pk_fma_f32 {vr(NN+i,2)}, {vr(NN+i,2)}, {vr(EX+i,2)}, {vr(NN+i,2)}")
        for i in range(0, 16, 2): a(f"v_pk_fma_f32 {vr(NN+i,2)}, {vr(zc+i,2)}, {vr(DD+i,2)}, {vr(NN+i,2)}")
        for i in range(0, 16, 2): a(f"v_pk_fma_f32 {vr(DD+i,2)}, {vr(DD+i,2)}, {vr(EX+i,2)}, {vr(DD+i,2)}")
        a("s_mov_b64 exec, -1", "s_add_u32 s70, s70, 1", "s_cmp_ge_u32 s70, s69")
        if u == 0: a("s_cbranch_scc1 K2_DONE")
        else:
            for rg in [VI] + [VE + r for r in range(4)]: a(f"v_add_u32 v{rg}, {2*ESTR}, v{rg}")
            a("s_cbranch_scc0 K2_LOOP")
    a.label("K2_DONE")
    st()
    XF = Z0; ACC = Q
    for i in range(16): a(f"v_rcp_f32 v{EX+i}, v{DD+i}")
    for i in range(3):
        for s in range(2): a(f"ds_read_b128 {vr(XF+8*i+4*s,4)}, v{ARD} offset:{L_XS + 48*ASTR*i + 64*s}")
    a(f"s_mov_b32 s66, {NLN2:#x}", f"s_mov_b32 s67, {NLN2:#x}", f"s_mov_b32 s64, {f2u(2.0**120):#x}")
    for i in range(0, 16, 2): a(f"v_pk_mul_f32 {vr(NN+i,2)}, {vr(NN+i,2)}, s[66:67]")
    a(f"v_max3_f32 v2, v{DD}, v{DD+1}, v{DD+2}")
    for i in range(3, 15, 2): a(f"v_max3_f32 v2, v{DD+i}, v{DD+i+1}, v2")
    a(f"v_max_f32 v2, v{DD+15}, v2")
    for i in range(0, 16, 2): a(f"v_pk_mul_f32 {vr(NN+i,2)}, {vr(NN+i,2)}, {vr(EX+i,2)}")
    a(f"v_pk_mul_f32 {vr(DD,2)}, {vr(NN,2)}, 0")
    for i in range(2, 16, 2): a(f"v_pk_fma_f32 {vr(DD,2)}, {vr(NN+i,2)}, 0, {vr(DD,2)}")
    for i in range(16): a(f"v_fmac_f32_dpp v{NN+i}, v{NN+i}, v{MFL} row_shl:4 row_mask:0xf bank_mask:0xf bound_ctrl:0")
    a(f"v_cmp_u_f32 vcc, v{DD}, v{DD+1}", f"v_cmp_nlt_f32 s[{MK+2}:{MK+3}], v2, s64", f"s_or_b64 vcc, vcc, s[{MK+2}:{MK+3}]")
    for i in range(8): a(f"v_cvt_pk_bf16_f32 v{EX+i}, v{NN+2*i}, v{NN+2*i+1}")
    a(f"s_mov_b64 exec, s[58:59]", f"ds_write_b128 v{AGA}, {vr(EX,4)} offset:{L_AGB}", f"ds_write_b128 v{AGA}, {vr(EX+4,4)} offset:{L_AGB+16}")
    a("s_mov_b64 exec, vcc", "v_mov_b32 v2, 0", f"ds_write_b32 v2, v5 offset:{L_FLG}", "s_mov_b64 exec, -1")
    a(f"s_mov_b32 s66, {NLOG2E:#x}", f"s_mov_b32 s67, {NLOG2E:#x}", "v_mov_b32 v2, 0")
    a("s_waitcnt lgkmcnt(3)")
    for i in range(3): a(mf16(ACC+4*i, WU, XF+8*i, "0"))
    for i in range(3): a(mf16(ACC+4*i, WU+4, XF+8*i+4, ACC+4*i))
    a("s_waitcnt lgkmcnt(0)", "s_barrier")
    st()
    a.label("K2_EPI")
    B = Z0; O = EX; TT = NN; WU2 = WU + 8
    a(f"ds_read_b32 v3, v2 offset:{L_FLG}")
    for i in range(3):
        for s in range(2): a(f"ds_read_b128 {vr(B+8*i+4*s,4)}, v{ARD} offset:{L_AGB + 48*ASTR*i + 64*s}")
    a("s_waitcnt lgkmcnt(6)", "v_readfirstlane_b32 s23, v3", "s_andn2_b32 s23, s23, s71", "s_cbranch_scc1 K2_BF")
    def epi_tile(i):
        o = O + 4 * i; t = TT + 4 * i
        a(f"v_pk_mul_f32 {vr(t,2)}, {vr(o,2)}, s[66:67]", f"v_pk_mul_f32 {vr(t+2,2)}, {vr(o+2,2)}, s[66:67]")
        for k in range(4): a(f"v_exp_f32 v{t+k}, v{t+k}")
        a(f"v_pk_add_f32 {vr(t,2)}, {vr(t,2)}, 1.0 op_sel_hi:[1,0]", f"v_pk_add_f32 {vr(t+2,2)}, {vr(t+2,2)}, 1.0 op_sel_hi:[1,0]")
        for k in range(4): a(f"v_rcp_f32 v{t+k}, v{t+k}")
        a(f"v_pk_mul_f32 {vr(t,2)}, {vr(t,2)}, {vr(o,2)}", f"v_pk_mul_f32 {vr(t+2,2)}, {vr(t+2,2)}, {vr(o+2,2)}")
        a(f"v_cvt_pk_bf16_f32 v{o}, v{t}, v{t+1}", f"v_cvt_pk_bf16_f32 v{o+1}, v{t+2}, v{t+3}")
        a(f"buffer_store_dwordx2 {vr(o,2)}, v{OOF}, s[{SO}:{SO+3}], {('s74','s75','s22')[i]} offen")
    for i in range(3):
        a(f"s_waitcnt lgkmcnt({4-2*i})", mf16(O+4*i, WU2, B+8*i, ACC+4*i), mf16(O+4*i, WU2+4, B+8*i+4, O+4*i))
    epi_tile(0); epi_tile(1)
    a("s_cmp_lg_u32 s73, 0", "s_cbranch_scc1 K2_FIN")
    epi_tile(2)
    a.label("K2_FIN")
    if st.on: a("s_waitcnt vmcnt(0)")
    st.flush(20, 3, 2, 3)
    a.label("K2_END")
    a("s_endpgm")

    a.label("K2_DONE0")
    a("s_waitcnt vmcnt(0) lgkmcnt(0)", "s_branch K2_DONE")
    a.label("K2_COLD")
    T = Z1
    for r in range(4):
        a("s_waitcnt lgkmcnt(0)")
        t_round(CA + 4*r, TG + 4*r + 2, MK)
        a(f"v_and_b32 v{T}, 0xffff, v{TG+4*r+2}", f"v_cmp_eq_u32 vcc, {TMARK*4}, v{T}", f"s_cbranch_vccz K2_CM{r}",
          "s_mov_b64 exec, vcc", f"v_mov_b32 v{T}, 0", f"v_mov_b32 v{T+1}, 1", f"ds_add_rtn_u32 v{T}, v{T}, v{T+1} offset:{L_OVC}",
          f"v_add_u32 v{T+1}, {256*r}, v0", f"v_lshrrev_b32 v{T+1}, 2, v{T+1}", "s_waitcnt lgkmcnt(0)",
          f"v_and_b32 v{T}, 255, v{T}", f"v_lshlrev_b32 v{T}, 2, v{T}", f"ds_write_b32 v{T}, v{T+1} offset:{L_OVL}", "s_mov_b64 exec, -1")
        a.label(f"K2_CM{r}")
    a("s_waitcnt lgkmcnt(0)", "s_movk_i32 s23, 4096", f"v_add_u32 v{PV}, {1<<19}, v{PV}")
    t_loads(CA, CR)
    a(f"v_subrev_u32 v{PV}, {1<<19}, v{PV}", "s_mov_b32 s70, 1", "s_branch K2_C0R")
    a.label("K2_COLDW")
    for k in range(16): a(f"v_min_u32 v{CA+k}, s65, v{CA+k}", f"ds_write_b32 v{CA+k}, v{CR+k}")
    a("s_branch K2_CWR")

    SD, SS, SE = 40, 44, 48
    a.label("K2_RESCAN")
    srd(a, SD, 10, 11, E * 4); srd(a, SS, 8, 9, E * 4); srd(a, SE, 6, 7, E * 2)
    a("s_mov_b32 s52, 0", f"s_mul_i32 s53, {BK}, {NB}", "s_min_u32 s23, s23, 256", "s_waitcnt lgkmcnt(0)")
    a.label("K2_RS1")
    T = Z1 + 8
    a("s_lshl_b32 s54, s52, 2", f"v_mov_b32 v{T}, s54", f"ds_read_b32 v{T}, v{T} offset:{L_OVL}", "s_waitcnt lgkmcnt(0)", f"v_readfirstlane_b32 s54, v{T}",
      "s_and_b32 s55, s54, 31", "s_lshl_b32 s55, s55, 3", "s_lshr_b32 s54, s54, 5", "s_add_u32 s54, s54, s55",
      f"s_mul_i32 s54, s54, {CH}", f"s_sub_u32 s55, {E}, s54", f"s_min_u32 s55, s55, {CH}",
      f"v_mov_b32 v{T}, v0")
    a.label("K2_RS2")
    a(f"v_add_u32 v{T+1}, s54, v{T}", f"v_lshlrev_b32 v{T+2}, 1, v{T+1}", f"v_lshlrev_b32 v{T+1}, 2, v{T+1}",
      f"buffer_load_dword v{T+3}, v{T+1}, s[{SD}:{SD+3}], 0 offen", f"buffer_load_dword v{T+4}, v{T+1}, s[{SS}:{SS+3}], 0 offen",
      f"buffer_load_ushort v{T+5}, v{T+2}, s[{SE}:{SE+3}], 0 offen", "s_waitcnt vmcnt(0)",
      f"v_subrev_u32 v{T+3}, s53, v{T+3}", f"v_cmp_gt_u32 vcc, {NB}, v{T+3}", f"v_cmp_gt_u32 s[56:57], s55, v{T}", "s_and_b64 exec, vcc, s[56:57]",
      f"v_lshlrev_b32 v{T+3}, 2, v{T+3}", f"ds_add_rtn_u32 v{T+3}, v{T+3}, v5 offset:{L_CTR}", f"v_lshl_or_b32 v{T+4}, v{T+5}, 16, v{T+4}",
      "s_waitcnt lgkmcnt(0)", f"v_min_u32 v{T+3}, s65, v{T+3}", f"ds_write_b32 v{T+3}, v{T+4}", "s_mov_b64 exec, -1",
      f"v_add_u32 v{T}, 768, v{T}", f"v_cmp_gt_u32 vcc, s55, v{T}", "s_cbranch_vccnz K2_RS2")
    a("s_add_u32 s52, s52, 1", "s_cmp_lt_u32 s52, s23", "s_cbranch_scc1 K2_RS1")
    a("s_mov_b32 s68, -1", "s_waitcnt lgkmcnt(0)", "s_barrier", "s_cmp_eq_u32 s73, 0", "s_cbranch_scc1 K2_AB1T", "s_branch K2_AB1")

    a.label("K2_BF")
    T = Z0
    a("s_waitcnt vmcnt(0) lgkmcnt(0)")
    srd(a, SD, 10, 11, E * 4); srd(a, SS, 8, 9, E * 4); srd(a, SE, 6, 7, E * 2); srd(a, 52, 12, 13, 129 * 128)
    for i in range(4): a(f"v_mov_b32 v{T+i}, 0")
    a(f"v_lshlrev_b32 v{T+4}, 4, v0", f"v_add_u32 v{T+4}, {L_ELL}, v{T+4}")
    for i in range(3): a(f"ds_write_b128 v{T+4}, {vr(T,4)} offset:{12288*i}")
    LN, F4, F2, PO, W3 = T + 4, T + 5, T + 6, T + 7, T + 8
    a(f"v_and_b32 v{LN}, 63, v0", f"v_lshlrev_b32 v{F4}, 2, v{LN}", f"v_lshlrev_b32 v{F2}, 1, v{LN}",
      f"v_and_b32 v{PO}, 8, v{LN}", f"v_lshlrev_b32 v{PO}, 3, v{PO}", f"v_and_b32 v{T}, 48, v{LN}", f"v_add_u32 v{PO}, v{PO}, v{T}",
      f"v_and_b32 v{T}, 7, v{LN}", f"v_lshl_add_u32 v{PO}, v{T}, 1, v{PO}",
      "s_movk_i32 s56, 16384", f"buffer_load_ushort v{W3}, v{F2}, s[52:55], s56 offen", "s_waitcnt vmcnt(0) lgkmcnt(0)",
      f"v_lshlrev_b32 v{W3}, 16, v{W3}", f"v_mul_f32 v{W3}, s66, v{W3}",
      f"s_mul_i32 s57, {BK}, {NB}", "s_mov_b32 s56, s3", "s_barrier")
    a.label("K2_BF1")
    DV, SV, EV = T + 9, T + 10, T + 11
    a("s_lshl_b32 s58, s56, 8", "s_lshl_b32 s59, s56, 7",
      f"buffer_load_dword v{DV}, v{F4}, s[{SD}:{SD+3}], s58 offen", "s_waitcnt vmcnt(0)",
      f"v_subrev_u32 v{DV}, s57, v{DV}", f"v_cmp_gt_u32 vcc, {NB}, v{DV}", "s_cbranch_vccz K2_BF3",
      f"buffer_load_dword v{SV}, v{F4}, s[{SS}:{SS+3}], s58 offen", f"buffer_load_ushort v{EV}, v{F2}, s[{SE}:{SE+3}], s59 offen",
      "s_mov_b64 s[60:61], vcc", "s_waitcnt vmcnt(0)")
    a.label("K2_BF2")
    a("s_ff1_i32_b64 s58, s[60:61]", "s_bitset0_b64 s[60:61], s58",
      f"v_readlane_b32 s59, v{SV}, s58", f"v_readlane_b32 s62, v{DV}, s58", f"v_readlane_b32 s63, v{EV}, s58",
      "s_min_u32 s59, s59, %d" % (N - 1), "s_lshl_b32 s59, s59, 7", f"buffer_load_ushort v{T}, v{PO}, s[{SWS}:{SWS+3}], s59 offen",
      f"s_mul_i32 s58, s62, {QSTR}", f"v_add_u32 v{T+1}, s58, v{F4}", f"ds_read_b32 v{T+1}, v{T+1} offset:{L_QS}",
      "s_lshl_b32 s63, s63, 16", "s_lshl_b32 s62, s62, 8", f"s_add_u32 s62, s62, {L_ELL}", f"v_add_u32 v{T+2}, s62, v{F4}",
      "s_waitcnt vmcnt(0) lgkmcnt(0)",
      f"v_lshlrev_b32 v{T}, 16, v{T}", f"v_add_f32 v{T}, v{T}, v{T+1}", f"v_fma_f32 v{T}, s63, v{W3}, v{T}",
      f"v_exp_f32 v{T+1}, v{T}", f"v_add_f32 v{T+1}, 1.0, v{T+1}", f"v_rcp_f32 v{T+1}, v{T+1}", f"v_mul_f32 v{T}, {NLN2:#x}, v{T}", f"v_mul_f32 v{T}, v{T}, v{T+1}",
      f"ds_add_f32 v{T+2}, v{T}", "s_cmp_lg_u64 s[60:61], 0", "s_cbranch_scc1 K2_BF2")
    a.label("K2_BF3")
    a("s_add_u32 s56, s56, 12", f"s_cmp_lt_u32 s56, {E//64}", "s_cbranch_scc1 K2_BF1")
    a("s_waitcnt lgkmcnt(0)", "s_barrier", f"v_mov_b32 v{T+4}, v0")
    a.label("K2_BF4")
    a(f"v_lshlrev_b32 v{T+5}, 3, v{T+4}", f"v_add_u32 v{T+5}, {L_ELL}, v{T+5}", f"ds_read_b64 {vr(T,2)}, v{T+5}",
      f"v_lshrrev_b32 v{T+5}, 5, v{T+4}", f"v_mul_u32_u24 v{T+5}, {ASTR}, v{T+5}", f"v_and_b32 v{T+6}, 31, v{T+4}", f"v_lshl_add_u32 v{T+5}, v{T+6}, 2, v{T+5}",
      "s_waitcnt lgkmcnt(0)", f"v_cvt_pk_bf16_f32 v{T}, v{T}, v{T+1}", f"ds_write_b32 v{T+5}, v{T} offset:{L_AGB}",
      f"v_add_u32 v{T+4}, 768, v{T+4}", f"v_cmpx_gt_u32 vcc, {NB*32}, v{T+4}", "s_cbranch_execnz K2_BF4")
    a("s_mov_b64 exec, -1", "s_mov_b32 s71, -1", "s_waitcnt lgkmcnt(0)", "s_barrier", "s_branch K2_EPI")
    return a.lines

def kd(name, vg, sg=102):
    return f""".amdhsa_kernel {name}
  .amdhsa_next_free_vgpr {vg}
  .amdhsa_next_free_sgpr {sg}
  .amdhsa_accum_offset {vg}
  .amdhsa_group_segment_fixed_size 0
  .amdhsa_kernarg_size 72
  .amdhsa_user_sgpr_count 2
  .amdhsa_user_sgpr_kernarg_segment_ptr 1
  .amdhsa_system_sgpr_workgroup_id_x 1
.end_amdhsa_kernel"""

def build(opt=None):
    opt = opt or {}
    out = ["; mpnn edge MLP: K1 bins edges by destination bucket and builds the P' table, K2 aggregates and updates",
           f"; @launch kernel=mpnn_bin_kernel grid=(256,1,1) block=(1024,1,1) lds={K1_LDS}",
           f"; @launch kernel=mpnn_msg_kernel grid=(256,1,1) block=(768,1,1) lds={K2_LDS}",
           '.amdgcn_target "amdgcn-amd-amdhsa--gfx950"', ".text"]
    for name, fn in (("mpnn_bin_kernel", gen_k1), ("mpnn_msg_kernel", gen_k2)):
        lines, nn = fix_hazards(fn(opt), verbose=opt.get("verbose"))
        out += [f".globl {name}", ".p2align 8", f".type {name},@function"] + lines
    out += ['.section .rodata,"a"', ".p2align 6", kd("mpnn_bin_kernel", 128), ".p2align 6", kd("mpnn_msg_kernel", 168)]
    return "\n".join(out) + "\n"

if __name__ == "__main__":
    import argparse
    ap = argparse.ArgumentParser(); ap.add_argument("-o", default="standalone__mpnn_edge_mlp__graph.s")
    ap.add_argument("--stamp", type=int, default=0); ap.add_argument("-v", action="store_true"); ap.add_argument("--opt", default="{}")
    g = ap.parse_args()
    open(g.o, "w").write(build({"stamp": g.stamp, "verbose": g.v, **eval(g.opt)}))
```

```python
import sys, struct, math
sys.path.insert(0, "gen")
from asmlib import *

N = 25000; E = 800000; NB = 98; CH = 3128; CAP = 72
WS_RA = 0x400000; WS_RB = 0x800000; WS_DA = 0xC00000; WS_WF = 0xE00000; WS_END = WS_WF + 25 * 1024
MARK = 0xFEFEFEFE
WS_STAMP = 0x1000000
f2u = lambda f: struct.unpack("<I", struct.pack("<f", f))[0]
NLOG2E = f2u(-1.4426950408889634); NLN2 = f2u(-0.6931471805599453)
NTILE = (N + 15) // 16

def mf16(d, a, b, c): return f"v_mfma_f32_16x16x32_bf16 {vr(d,4)}, {vr(a,4)}, {vr(b,4)}, {c if isinstance(c,str) else vr(c,4)}"
def mf32(d, a, b, c): return f"v_mfma_f32_32x32x16_bf16 {vr(d,16)}, {vr(a,4)}, {vr(b,4)}, {vr(c,16)}"

class Stamps:
    def __init__(self, a, on, base, kidx, nw): self.a = a; self.on = on; self.base = base; self.k = 0; self.kidx = kidx; self.nw = nw
    def __call__(self):
        if not self.on: return
        r = self.base + 2 * self.k; self.k += 1
        self.a(f"s_waitcnt lgkmcnt(0)", f"s_memrealtime s[{r}:{r+1}]", "s_waitcnt lgkmcnt(0)")
    def early(self):
        if not self.on: return
        r = self.base + 2 * self.k; self.k += 1
        self.a(f"s_memrealtime s[{r}:{r+1}]")
    def flush(self, ws, wave, t0, t1):
        if not self.on: return
        a = self.a
        self()
        a("s_mov_b64 exec, -1")
        a(f"v_mov_b32 v{t0}, 0")
        for k in range(self.k): a(f"v_writelane_b32 v{t0}, s{self.base+2*k}, {k}")
        if self.kidx == 1: a(f"v_writelane_b32 v{t0}, s98, 13", f"v_writelane_b32 v{t0}, s96, 12", f"v_writelane_b32 v{t0}, s69, 15", f"s_getreg_b32 s69, hwreg(HW_REG_HW_ID)", f"v_writelane_b32 v{t0}, s69, 14")
        if self.on == 2 and self.kidx == 1:
            b = self.base
            a(f"s_add_u32 s{b}, s2, s{wave}", f"s_cmp_lg_u32 s{b}, 0", f"s_cbranch_scc1 STK{self.kidx}",
              f"s_load_dwordx2 s[{b}:{b+1}], s[0:1], 56", f"v_and_b32 v{t1}, 63, v0", f"v_lshlrev_b32 v{t1}, 2, v{t1}",
              f"v_add_u32 v{t1+1}, {WS_STAMP}, v{t1}", f"global_load_dword v{t1+1}, v{t1+1}, s[{ws}:{ws+1}]",
              "s_waitcnt vmcnt(0) lgkmcnt(0)", f"s_mov_b64 exec, 0x3ff", f"global_store_dword v{t1}, v{t0}, s[{b}:{b+1}] offset:24",
              f"s_mov_b64 exec, 0x3f", f"global_store_dword v{t1}, v{t1+1}, s[{b}:{b+1}]")
            a.label(f"STK{self.kidx}")
            return
        a(f"s_mul_i32 s{self.base}, s2, {self.nw}", f"s_add_u32 s{self.base}, s{self.base}, s{wave}", f"s_lshl_b32 s{self.base}, s{self.base}, 6",
          f"s_add_u32 s{self.base}, s{self.base}, {WS_STAMP + self.kidx * 0x100000}",
          f"v_and_b32 v{t1}, 63, v0", f"v_lshlrev_b32 v{t1}, 2, v{t1}", f"v_add_u32 v{t1}, s{self.base}, v{t1}",
          "s_mov_b64 exec, 0xffff", f"global_store_dword v{t1}, v{t0}, s[{ws}:{ws+1}]")

def srd(a, r, lo, hi, num, stride=0):
    a(f"s_mov_b32 s{r}, s{lo}")
    if stride: a(f"s_or_b32 s{r+1}, s{hi}, {stride << 16:#x}")
    else: a(f"s_mov_b32 s{r+1}, s{hi}")
    a(f"s_mov_b32 s{r+2}, {num}", f"s_mov_b32 s{r+3}, 0x20000")

K1_DA = 32768; K1_CNT = 40960; K1_LDS = K1_CNT + 1024
def gen_k1(opt):
    a = Asm(); st = Stamps(a, opt.get("stamp"), 70, 0, 16)
    a.label("mpnn_bin_kernel")
    a("s_cmp_ge_u32 s2, 256", "s_cbranch_scc1 K1_END")
    a("s_load_dwordx8 s[4:11], s[0:1], 0", "s_load_dwordx4 s[12:15], s[0:1], 32", "s_load_dwordx2 s[16:17], s[0:1], 64")
    a("v_lshrrev_b32 v1, 6, v0", "v_lshlrev_b32 v7, 4, v0", "v_readfirstlane_b32 s3, v1", "v_lshlrev_b32 v4, 3, v0")
    a("v_mov_b32 v46, -1", "v_mov_b32 v47, -1", f"ds_write_b64 v4, v[46:47] offset:{K1_DA}",
      "v_and_b32 v45, 255, v0", "v_lshlrev_b32 v44, 2, v45", "v_lshlrev_b32 v45, 5, v45", f"ds_write_b32 v44, v45 offset:{K1_CNT}")
    a("s_and_b32 s40, s2, 7", "s_lshr_b32 s41, s2, 3")
    a(f"s_mov_b32 s34, {WS_END}", "s_mov_b32 s35, 0x20000")
    CO = 44
    def co_addr():
        a("s_lshl_b32 s42, s40, 5", "s_add_u32 s42, s42, s41",
          "s_lshl_b32 s43, s42, 5", f"s_add_u32 s43, s43, {WS_DA}", "s_lshl_b32 s42, s42, 6", f"s_add_u32 s44, s42, {WS_RB}", f"s_add_u32 s42, s42, {WS_RA}")
        a(f"v_lshrrev_b32 v{CO+6}, 2, v0", f"v_and_b32 v{CO+5}, 3, v0", f"v_lshlrev_b32 v{CO+1}, 13, v{CO+6}", f"v_lshl_add_u32 v{CO+1}, v{CO+5}, 3, v{CO+1}", f"v_lshlrev_b32 v{CO}, 1, v{CO+1}",
          f"v_lshlrev_b32 v{CO+2}, 7, v{CO+6}", f"v_lshl_add_u32 v{CO+2}, v{CO+5}, 4, v{CO+2}", f"v_and_b32 v{CO+3}, 64, v0", f"v_add_u32 v{CO+2}, v{CO+2}, v{CO+3}", f"v_xor_b32 v{CO+3}, 64, v{CO+2}",
          f"v_bfe_u32 v{CO+4}, v0, 4, 2", f"v_xor_b32 v{CO+5}, v{CO+5}, v{CO+4}", f"v_lshlrev_b32 v{CO+6}, 5, v{CO+6}", f"v_lshl_add_u32 v{CO+5}, v{CO+5}, 2, v{CO+6}", f"v_add_u32 v{CO+5}, 16, v{CO+5}",
          *([f"v_add_u32 v{CO+5}, 16, v{CO+6}"] if opt.get("bfull") else []), f"v_add_u32 v{CO+6}, 32, v{CO+6}", f"v_and_b32 v{CO+4}, 0x3fc, v0", f"v_lshlrev_b32 v{CO+7}, 3, v0")
    a("s_cmp_ge_u32 s3, 13", "s_cbranch_scc1 K1_P")
    DST, SRC, EE, B, DL, S, LIM, REC = 8, 12, 16, 20, 24, 28, 32, 36
    a(f"s_mul_i32 s18, s2, {CH}", f"s_sub_u32 s19, {E}, s18", f"s_min_u32 s19, s19, {CH}", "s_lshl_b32 s36, s18, 2", "s_lshl_b32 s37, s18, 1")
    for r, n in ((20, E * 4), (24, E * 4), (28, E * 2)): a(f"s_mov_b32 s{r+2}, {n}", f"s_mov_b32 s{r+3}, 0x20000")
    a("v_lshlrev_b32 v1, 2, v0", "v_cmp_gt_u32 vcc, s19, v1")
    a("s_waitcnt lgkmcnt(0)")
    st()
    a("s_mov_b32 s20, s10", "s_mov_b32 s21, s11", f"buffer_load_dwordx4 {vr(DST,4)}, v7, s[20:23], s36 offen")
    a("s_mov_b32 s24, s8", "s_mov_b32 s25, s9", "s_mov_b32 s28, s6", "s_mov_b32 s29, s7", "s_mov_b32 s32, s16", "s_mov_b32 s33, s17")
    a("s_barrier")
    a(f"buffer_load_dwordx4 {vr(SRC,4)}, v7, s[24:27], s36 offen", f"buffer_load_dwordx2 {vr(EE,2)}, v4, s[28:31], s37 offen")
    co_addr()
    a("v_mov_b32 v6, 1", "s_movk_i32 s38, -98", "s_mov_b32 s39, 0xffff0000")
    a("s_mov_b64 exec, vcc", "s_cbranch_execz K1_B1")
    a("s_waitcnt vmcnt(2)")
    st()
    for i in range(4):
        a(f"v_mul_u32_u24 v{B+i}, 21400, v{DST+i}", f"v_lshrrev_b32 v{B+i}, 21, v{B+i}", f"v_lshlrev_b32 v{S+i}, 2, v{B+i}",
          f"ds_add_rtn_u32 v{S+i}, v{S+i}, v6 offset:{K1_CNT}")
    for i in range(4): a(f"v_mad_i32_i24 v{DL+i}, v{B+i}, s38, v{DST+i}", f"v_lshl_or_b32 v{LIM+i}, v{B+i}, 5, 31", f"v_and_b32 v{B+i}, 31, v{B+i}")
    for i in range(4):
        a(f"s_waitcnt lgkmcnt(3)", f"v_min_u32 v{S+i}, v{S+i}, v{LIM+i}", f"v_xor_b32 v{S+i}, v{S+i}, v{B+i}", f"ds_write_b8 v{S+i}, v{DL+i} offset:{K1_DA}")
    for i in range(4): a(f"v_lshlrev_b32 v{LIM+i}, 2, v{S+i}")
    a("s_waitcnt vmcnt(0)")
    st()
    if opt.get("smask"):
        for i in range(4): a(f"v_and_b32 v{SRC+i}, {opt['smask']}, v{SRC+i}")
    for i in range(4):
        if i % 2 == 0: a(f"v_lshl_or_b32 v{REC+i}, v{EE+i//2}, 16, v{SRC+i}")
        else: a(f"v_and_or_b32 v{REC+i}, v{EE+i//2}, s39, v{SRC+i}")
        a(f"ds_write_b32 v{LIM+i}, v{REC+i}")
    a.label("K1_B1")
    a("s_mov_b64 exec, -1")
    st.k = 3; st()
    a("s_waitcnt lgkmcnt(0)", "s_barrier")
    st()
    a(f"ds_read_b128 v[8:11], v{CO+2}", f"ds_read_b32 v18, v{CO+4} offset:{K1_CNT}", f"ds_read_b64 v[16:17], v{CO+7} offset:{K1_DA}", f"ds_read_b128 v[12:15], v{CO+3}")
    a("s_waitcnt lgkmcnt(3)", f"buffer_store_dwordx4 v[8:11], v{CO}, s[32:35], s42 offen")
    a("s_waitcnt lgkmcnt(1)", f"v_cmp_gt_u32 vcc, v18, v{CO+6}", f"v_cmp_gt_u32 s[46:47], v18, v{CO+5}", "s_cbranch_vccnz K1_OV")
    a.label("K1_OVR")
    x = opt.get("x1", "")
    if "d" not in x: a(f"buffer_store_dwordx2 v[16:17], v{CO+1}, s[32:35], s43 offen {opt.get('dflag', '')}")
    if "b" not in x: a("s_mov_b64 exec, s[46:47]", "s_waitcnt lgkmcnt(0)", f"buffer_store_dwordx4 v[12:15], v{CO}, s[32:35], s44 offen {opt.get('bflag', '')}")
    if st.on: a("s_waitcnt vmcnt(0)")
    st.flush(16, 3, 20, 21)
    a.label("K1_END")
    a("s_endpgm")
    a.label("K1_OV")
    a(f"v_mov_b32 v18, {MARK:#x}", "v_cndmask_b32 v16, v16, v18, vcc", "v_cndmask_b32 v17, v17, v18, vcc", "s_branch K1_OVR")
    W, A, X, D, O, FR = 8, 40, 72, 96, 112, 120
    a.label("K1_P")
    a("v_and_b32 v1, 15, v0", "v_bfe_u32 v2, v0, 4, 2",
      "v_lshlrev_b32 v3, 10, v2", "v_lshl_add_u32 v5, v1, 1, v3", "v_lshl_add_u32 v3, v1, 3, v3",
      "v_lshlrev_b32 v4, 7, v1", "v_lshl_add_u32 v4, v2, 4, v4")
    a("s_mul_i32 s18, s41, 3", "s_add_u32 s18, s18, s3", "s_sub_u32 s18, s18, 13",
      "s_mul_i32 s36, s40, 196", "s_add_u32 s36, s36, s18",
      "s_lshl_b32 s36, s36, 11", f"s_add_u32 s37, s36, {96*2048}", f"s_add_u32 s38, s36, {192*2048}", "s_movk_i32 s39, 4096")
    for r, n in ((20, 129 * 128), (24, N * 128), (28, N * 128), (48, 128 * 128)): a(f"s_mov_b32 s{r+2}, {n}", f"s_mov_b32 s{r+3}, 0x20000")
    a("s_sub_u32 s19, s2, 16", "s_cmp_eq_u32 s3, 15", "s_cselect_b32 s19, s19, 100")
    a("s_waitcnt lgkmcnt(0)")
    st.k = 0; st()
    a("s_mov_b32 s24, s4", "s_mov_b32 s25, s5", "s_mov_b32 s20, s12", "s_mov_b32 s21, s13")
    a("s_cmp_le_u32 s19, 24", "s_cbranch_scc1 K1_FL")
    a.label("K1_FLR")
    for i in range(2):
        for s in range(2): a(f"buffer_load_dwordx4 {vr(X+8*i+4*s,4)}, v4, s[24:27], s{36+i} offen offset:{64*s}")
    for s in range(2):
        for kk in range(8): a(f"buffer_load_dwordx2 {vr(W+16*s+2*kk,2)}, v3, s[20:23], {'s39' if s else '0'} offen offset:{128*kk}")
    a("s_cmp_lt_u32 s18, 4", "s_cselect_b64 exec, -1, 0")
    for s in range(2): a(f"buffer_load_dwordx4 {vr(X+16+4*s,4)}, v4, s[24:27], s38 offen offset:{64*s}")
    a("s_mov_b64 exec, -1")
    a("s_barrier")
    a("s_mov_b32 s28, s16", "s_mov_b32 s29, s17", "s_mov_b32 s32, s16", "s_mov_b32 s33, s17")
    a("s_mov_b32 s44, 0x05040100", "s_mov_b32 s45, 0x07060302", f"s_mov_b32 s46, {NLOG2E:#x}", f"s_mov_b32 s47, {NLOG2E:#x}")
    a("s_waitcnt vmcnt(2)")
    st()
    for tau in range(4):
        for s in range(2):
            for rr in range(4):
                a(f"v_perm_b32 v{A+8*tau+4*s+rr}, v{W+16*s+2*(2*rr+1)+tau//2}, v{W+16*s+2*(2*rr)+tau//2}, s{44+tau%2}")
    for i in range(3):
        if i == 2:
            a(f"s_cmp_ge_u32 s18, 4", "s_cbranch_scc1 K1_PD", "s_waitcnt vmcnt(4)")
        for tau in range(4): a(mf16(D+4*tau, A+8*tau, X+8*i, "0"))
        for tau in range(4): a(mf16(D+4*tau, A+8*tau+4, X+8*i+4, D+4*tau))
        for k in range(0, 16, 2): a(f"v_pk_mul_f32 {vr(D+k,2)}, {vr(D+k,2)}, s[46:47]")
        for r in range(4):
            for h in range(2): a(f"v_cvt_pk_bf16_f32 v{O+2*r+h}, v{D+4*(2*h)+r}, v{D+4*(2*h+1)+r}")
        a(f"buffer_store_dwordx4 {vr(O,4)}, v4, s[28:31], s{36+i} offen", f"buffer_store_dwordx4 {vr(O+4,4)}, v4, s[28:31], s{36+i} offen offset:64")
    a.label("K1_PD")
    st()
    a("s_cmp_le_u32 s19, 24", "s_cbranch_scc1 K1_FS")
    a.label("K1_PE")
    co_addr()
    a("s_branch K1_B1")
    a.label("K1_FL")
    a("s_cmp_eq_u32 s19, 8", "s_cbranch_scc1 K1_FA", "s_cmp_gt_u32 s19, 8", "s_cbranch_scc1 K1_FU")
    a("s_lshr_b32 s42, s19, 1", "s_and_b32 s43, s19, 1", "s_lshl_b32 s42, s42, 5", "s_lshl_b32 s43, s43, 12", "s_add_u32 s43, s43, s42", "s_add_u32 s43, s43, 8192")
    for kk in range(8): a(f"buffer_load_ushort v{FR+kk}, v5, s[20:23], s43 offen offset:{128*kk}")
    a("s_branch K1_FLR")
    a.label("K1_FU")
    a("s_mov_b32 s48, s14", "s_mov_b32 s49, s15")
    a("s_sub_u32 s43, s19, 9", "s_lshr_b32 s42, s43, 2", "s_and_b32 s43, s43, 3", "s_lshl_b32 s42, s42, 5", "s_lshl_b32 s43, s43, 12", "s_add_u32 s43, s43, s42")
    for kk in range(8): a(f"buffer_load_ushort v{FR+kk}, v5, s[48:51], s43 offen offset:{128*kk}")
    a("s_branch K1_FLR")
    a.label("K1_FA")
    a("v_bfe_u32 v5, v0, 3, 2", "v_and_b32 v6, 3, v0", "v_lshl_add_u32 v5, v5, 2, v6", "v_lshlrev_b32 v5, 1, v5", "s_movk_i32 s43, 16384")
    for c in range(4): a(f"buffer_load_ushort v{FR+c}, v5, s[20:23], s43 offen offset:{32*c}")
    a("s_branch K1_FLR")
    a.label("K1_FS")
    a("v_and_b32 v5, 63, v0", "v_lshlrev_b32 v5, 4, v5", "s_lshl_b32 s36, s19, 10", f"s_add_u32 s36, s36, {WS_WF}")
    a("s_cmp_eq_u32 s19, 8", "s_cbranch_scc1 K1_AE")
    for rr in range(4): a(f"v_lshl_or_b32 v{W+rr}, v{FR+2*rr+1}, 16, v{FR+2*rr}")
    a(f"buffer_store_dwordx4 {vr(W,4)}, v5, s[32:35], s36 offen", "s_branch K1_PE")
    a.label("K1_AE")
    a("v_bfe_u32 v2, v0, 2, 1", "v_bfe_u32 v3, v0, 5, 1", "v_cmp_eq_u32 vcc, v2, v3")
    for c in range(4):
        a(f"v_lshlrev_b32 v{FR+c}, 16, v{FR+c}", f"v_mul_f32 v{FR+c}, s46, v{FR+c}", f"v_cvt_pk_bf16_f32 v{FR+c}, 0, v{FR+c}", f"v_cndmask_b32 v{W+c}, 0, v{FR+c}, vcc")
    a(f"buffer_store_dwordx4 {vr(W,4)}, v5, s[32:35], s36 offen", "s_branch K1_PE")
    return a.lines

L_AGB = 0; ASTR = 144
L_QS = L_AGB + 112 * ASTR; QSTR = 272
L_CTR = L_QS + 112 * QSTR; L_OVC = L_CTR + 448; L_FLG = L_CTR + 452; L_SLOT = L_CTR + 512; L_OVL = L_SLOT + 768
L_XS = L_OVL + 1024; L_WF = L_XS + 16384
L_ELL = L_WF + 17408; ESTR = 516; EROWS = 83
K2_LDS = L_ELL + 3 * 768 * 16 + 6144
assert K2_LDS >= L_ELL + EROWS * ESTR and L_ELL % 16 == 0 and L_XS % 256 == 0, (L_XS, L_ELL)
ZCOL = 112 * 4; DUMP = L_ELL + CAP * ESTR + 400

def gen_k2(opt):
    a = Asm(); st = Stamps(a, opt.get("stamp"), 78, 1, 12)
    perm = opt.get("perm", [0, 1, 2, 3, 10, 6, 5, 4, 11, 9, 8, 7])
    RG = opt.get("ring", 2); small = opt.get("small", 1); dp = opt.get("dprio", [8, 4, 2])
    Q, P, Z0, Z1, NN, DD, EX, BE, AL, AH, AE, IX, VI, VE, LEN, AGA, MFL, OOF, ARD, ARX = \
        8, 24, 56, 72, 88, 104, 120, 136, 140, 144, 148, 152, 154, 155, 159, 160, 161, 162, 163, 164
    WU = BE
    R = Z0
    AD = NN
    TG = DD
    W2 = Q; X = EX
    SWS, SPT, SX, SO = 24, 28, 32, 36
    MK = 40
    BK = "s76"
    ws = f"s[{SWS}:{SWS+3}]"
    a.label("mpnn_msg_kernel")
    a("s_cmp_ge_u32 s2, 256", "s_cbranch_scc1 K2_END")
    for h in range(opt.get("hops", 0)):
        a(f"s_branch K2_H{h}", ".p2align 8"); a.label(f"K2_H{h}")
    st.early()
    a("s_load_dwordx2 s[20:21], s[0:1], 64", "s_load_dwordx16 s[4:19], s[0:1], 0")
    a("v_lshrrev_b32 v1, 6, v0", "v_lshlrev_b32 v2, 4, v0", "v_readfirstlane_b32 s3, v1")
    for i in range(4): a(f"v_mov_b32 v{Q+i}, 0")
    a(f"v_add_u32 v4, {L_ELL}, v2")
    a("v_and_b32 v5, 127, v0", "v_lshlrev_b32 v5, 2, v5", f"v_add_u32 v6, {L_ELL}, v5", f"v_cmp_gt_u32 vcc, {NB*4}, v5")
    a(f"s_and_b32 {BK}, s2, 7", f"s_lshl_b32 {BK}, {BK}, 5", "s_lshr_b32 s64, s2, 3", f"s_add_u32 {BK}, {BK}, s64")
    a("v_cndmask_b32 v6, 0, v6, vcc", f"ds_write_b32 v5, v6 offset:{L_CTR}")
    for i in range(3): a(f"ds_write_b128 v4, {vr(Q,4)} offset:{12288*i}")
    a(f"v_lshlrev_b32 v5, 3, v0", f"v_add_u32 v5, {L_ELL + 3*12288}, v5", f"ds_write_b64 v5, {vr(Q,2)}")
    a(f"s_lshl_b32 s64, {BK}, 14", f"s_add_u32 s62, s64, {WS_RB}", f"s_add_u32 s64, s64, {WS_RA - 4096}", "s_add_u32 s65, s64, 8192",
      f"s_lshl_b32 s66, {BK}, 13", f"s_and_b32 s67, {BK}, 16", "s_add_u32 s66, s66, s67", f"s_add_u32 s66, s66, {WS_DA}", "s_xor_b32 s60, s66, 16",
      "s_sub_u32 s66, s66, 2048", "s_add_u32 s67, s66, 4096")
    a(f"s_mul_i32 s69, {BK}, {NB}", f"s_sub_u32 s70, {N}, s69", f"s_min_u32 s70, s70, {NB}", "s_lshl_b32 s70, s70, 7", "s_lshl_b32 s71, s69, 7")
    a("s_and_b32 s72, s3, 3", "s_lshr_b32 s73, s3, 2")
    a(f"s_mov_b32 s{SWS+2}, {WS_END}", f"s_mov_b32 s{SWS+3}, 0x20000", f"s_mov_b32 s{SX+2}, s70", f"s_mov_b32 s{SX+3}, 0x20000")
    a(f"v_and_b32 v4, 3, v0", "v_and_b32 v6, 63, v0", "v_lshlrev_b32 v6, 4, v6")
    a("v_lshlrev_b32 v3, 5, v0", "v_lshrrev_b32 v5, 2, v0", "v_lshlrev_b32 v5, 5, v5", "v_lshl_add_u32 v5, v4, 2, v5")
    a("s_cmp_eq_u32 s73, 0")
    a("s_waitcnt lgkmcnt(0)")
    st()
    if opt.get("x1"): a("s_branch K2_FIN")
    a(f"s_mov_b32 s{SWS}, s20", f"s_mov_b32 s{SWS+1}, s21")
    a("s_cbranch_scc0 K2_A1")
    a(f"buffer_load_dwordx4 {vr(TG,4)}, v3, {ws}, s60 offen")
    a(f"s_add_u32 s{SX}, s4, s71", f"s_addc_u32 s{SX+1}, s5, 0")
    a("v_bfe_u32 v7, v0, 4, 2", "v_lshlrev_b32 v7, 4, v7", "v_xor_b32 v7, v7, v6", "v_xor_b32 v5, 64, v7",
      "s_lshl_b32 s60, s3, 11", f"s_add_u32 s61, s60, {L_XS}", "s_mov_b32 m0, s61", f"s_mov_b32 s63, {WS_WF}", f"s_mov_b32 s64, {WS_WF + 4096}")
    a("s_barrier")
    for k in range(8): a(f"buffer_load_dwordx4 {vr(W2+4*k,4)}, v6, {ws}, s{63 + k//4} offen offset:{1024*(k%4)}")
    sx = f"s[{SX}:{SX+3}]"
    a(f"buffer_load_dwordx4 v7, {sx}, s60 offen lds", f"buffer_load_dwordx4 v5, {sx}, s60 offen offset:1024 lds",
      "s_add_u32 m0, s61, 8192", "s_add_u32 s60, s60, 8192", "v_lshlrev_b32 v3, 6, v0", "s_cmp_eq_u32 s3, 3", "s_cbranch_scc1 K2_A3",
      f"buffer_load_dwordx4 v7, {sx}, s60 offen lds", f"buffer_load_dwordx4 v5, {sx}, s60 offen offset:1024 lds")
    a("s_branch K2_A2")
    a.label("K2_A3")
    a(f"s_mov_b32 m0, {L_WF}", f"s_mov_b32 s60, {WS_WF + 8192}", f"buffer_load_dwordx4 v6, {ws}, s60 offen lds", "s_mov_b64 exec, 0", f"buffer_load_dwordx4 v6, {ws}, s60 offen lds", "s_mov_b64 exec, -1")
    a("s_branch K2_A2")
    a.label("K2_A1")
    a(f"buffer_load_dword v{TG}, v5, {ws}, s66 offen", f"buffer_load_dword v{TG+1}, v5, {ws}, s67 offen")
    a("s_lshl_b32 s60, s3, 11", f"s_add_u32 s61, s60, {L_WF + 1024 - 8192}", "s_mov_b32 m0, s61", f"s_add_u32 s60, s60, {WS_WF + 9*1024 - 8192}")
    a("s_barrier")
    a(f"buffer_load_dwordx4 {vr(R,4)}, v2, {ws}, s64 offen", f"buffer_load_dwordx4 {vr(R+4,4)}, v2, {ws}, s65 offen")
    a(f"buffer_load_dwordx4 v6, {ws}, s60 offen lds", f"buffer_load_dwordx4 v6, {ws}, s60 offen offset:1024 lds")
    a.label("K2_A2")
    a("s_lshl_b32 s74, s73, 11", f"s_add_u32 s75, s74, {3*2048}", f"s_add_u32 s22, s74, {6*2048}")
    srd(a, SPT, 20, 21, N, stride=128)
    a(f"s_add_u32 s{SO}, s16, s71", f"s_addc_u32 s{SO+1}, s17, 0", f"s_mov_b32 s{SO+2}, s70", f"s_mov_b32 s{SO+3}, 0x20000")
    T = Z1
    if small:
        a(f"v_and_b32 v{T}, 1, v0", f"v_lshlrev_b32 v{T}, 4, v{T}", f"v_mov_b32 v{T+1}, 0x3f80", f"v_lshlrev_b32 v{T}, v{T}, v{T+1}", "v_cmp_gt_u32 vcc, 2, v4",
          f"v_cndmask_b32 v{AL}, 0, v{T}, vcc", f"v_cndmask_b32 v{AL+1}, v{T}, 0, vcc")
    else:
        a(f"v_and_b32 v{T}, 1, v0", f"v_lshlrev_b32 v{T}, 4, v{T}", f"v_mov_b32 v{T+1}, 0x3f80", f"v_lshlrev_b32 v{T}, v{T}, v{T+1}",
          f"v_bfe_u32 v{T+1}, v0, 3, 2", f"v_bfe_u32 v{T+2}, v0, 1, 1", f"v_lshl_add_u32 v{T+1}, v{T+1}, 1, v{T+2}",
          f"v_bfe_u32 v{T+2}, v0, 2, 1", f"v_bfe_u32 v{T+3}, v0, 5, 1", f"v_xor_b32 v{T+2}, v{T+2}, v{T+3}", f"v_lshl_add_u32 v{T+1}, v{T+2}, 3, v{T+1}")
        for k in range(8): a(f"v_cmp_eq_u32 s[{MK+2*k}:{MK+2*k+1}], {k}, v{T+1}")
        for k in range(8): a(f"v_cndmask_b32 v{AL+k}, 0, v{T}, s[{MK+2*k}:{MK+2*k+1}]")
    J, QQ = T, T + 1
    a(f"v_and_b32 v{J}, 15, v0", f"v_bfe_u32 v{QQ}, v0, 4, 2", f"v_lshlrev_b32 v{OOF}, 7, v{J}",
      f"v_lshrrev_b32 v{ARX}, 1, v{J}", f"v_xor_b32 v{ARX}, v{ARX}, v{QQ}", f"v_lshl_add_u32 v{ARX}, v{ARX}, 4, v{OOF}",
      f"s_lshl_b32 s64, s72, 5", f"v_lshl_add_u32 v{OOF}, v{QQ}, 3, v{OOF}", f"v_add_u32 v{OOF}, s64, v{OOF}",
      f"s_lshl_b32 s64, s72, 4", f"v_add_u32 v1, s64, v{J}", f"v_mul_u32_u24 v1, {QSTR}, v1", f"v_lshl_add_u32 v1, v{QQ}, 4, v1",
      f"s_lshl_b32 s64, s73, 4", f"v_add_u32 v{J}, s64, v{J}", f"v_mul_u32_u24 v{ARD}, {ASTR}, v{J}", f"v_lshl_add_u32 v{ARD}, v{QQ}, 4, v{ARD}",
      f"s_add_u32 s64, s74, {L_XS}", f"v_add_u32 v{ARX}, s64, v{ARX}")
    a(f"v_lshlrev_b32 v{IX+1}, 4, v4")
    a(f"v_mov_b32 v5, {ESTR}", f"s_movk_i32 s64, {NB*4}", f"s_mov_b32 s65, {DUMP}", "s_mov_b32 s68, 0", "s_mov_b32 s71, 0", "s_mov_b32 s70, 0")
    pk = sum(p << (4 * w) for w, p in enumerate(perm))
    a(f"s_mov_b32 s66, {pk & 0xffffffff:#x}", f"s_mov_b32 s67, {pk >> 32:#x}", "s_lshl_b32 s23, s3, 2", f"s_lshr_b64 s[66:67], s[66:67], s23",
      f"s_and_b32 s23, s66, 15", "s_lshl_b32 s23, s23, 4")
    a(f"v_bfe_u32 v{BE}, v0, 2, 4", f"v_add_u32 v{BE}, s23, v{BE}", f"v_lshlrev_b32 v{BE+1}, 2, v{BE}")
    a(f"v_and_b32 v{BE+2}, 1, v{BE}", f"v_cmp_gt_u32 vcc, 4, v{BE}", f"v_cmp_eq_u32 s[66:67], 0, v{BE+2}",
      f"s_or_b64 s[58:59], vcc, s[66:67]", f"s_andn2_b64 s[66:67], s[66:67], vcc",
      f"v_cndmask_b32 v{MFL}, 0, 1.0, s[66:67]", f"v_mov_b32 v{BE+3}, {L_ELL + ZCOL}")
    a(f"s_mov_b32 s66, {NLOG2E:#x}", f"s_mov_b32 s67, {NLOG2E:#x}")
    a("s_cmp_eq_u32 s73, 0", "s_cbranch_scc0 K2_CA")
    def a_round(ad, l, mk):
        for k in range(4): a(f"v_lshlrev_b32_sdwa v{ad+k}, 2, v{l} dst_sel:DWORD dst_unused:UNUSED_PAD src0_sel:DWORD src1_sel:BYTE_{k}")
        for k in range(4): a(f"v_cmp_gt_u32 s[{mk+2*k}:{mk+2*k+1}], s64, v{ad+k}")
        for k in range(4): a(f"s_mov_b64 exec, s[{mk+2*k}:{mk+2*k+1}]", f"ds_add_rtn_u32 v{ad+k}, v{ad+k}, v5 offset:{L_CTR}")
        a("s_mov_b64 exec, -1")
    stk = st.k
    a(f"s_lshl_b32 s23, s72, 11", f"v_add_u32 v2, s23, v{ARX}", "v_xor_b32 v7, 64, v2", f"v_mov_b32 v{Z1+4}, {MARK:#x}")
    a("s_waitcnt vmcnt(12)")
    st()
    for j in range(4): a(f"v_cmp_ne_u32 s[{MK+2*j}:{MK+2*j+1}], -1, v{TG+j}")
    a(f"v_cmp_eq_u32 vcc, v{Z1+4}, v{TG}")
    for j in range(4): a(f"s_mov_b64 exec, s[{MK+2*j}:{MK+2*j+1}]", f"buffer_load_dwordx4 {vr(R+4*j,4)}, v3, {ws}, s62 offen offset:{16*j}")
    a("s_mov_b64 exec, -1")
    for j in range(4):
        a(f"s_cmp_eq_u64 s[{MK+2*j}:{MK+2*j+1}], 0", f"s_cbranch_scc1 K2_TS{j}")
        if j == 3: a("s_waitcnt lgkmcnt(8)")
        a_round(AD + 4*j, TG + j, MK + 8)
        a(f"s_bitset1_b32 s70, {j}")
        a.label(f"K2_TS{j}")
    a("s_cbranch_vccnz K2_MARK")
    a.label("K2_MR")
    a("s_waitcnt lgkmcnt(0)", "s_barrier")
    st()
    a.label("K2_AB1T")
    T = Z1 + 4
    a(f"v_mov_b32 v{T}, 0", f"ds_read_b32 v{T+1}, v{T} offset:{L_OVC}", "s_waitcnt vmcnt(4)")
    for i in range(2): a(f"ds_read_b128 {vr(X+8*i,4)}, v2 offset:{8192*i}", f"ds_read_b128 {vr(X+8*i+4,4)}, v7 offset:{8192*i}")
    a("s_waitcnt lgkmcnt(4)", f"v_readfirstlane_b32 s23, v{T+1}", "s_andn2_b32 s23, s23, s68", "s_cbranch_scc1 K2_RESCAN")
    for i in range(2):
        QT = (Z1, DD)[i]
        a(f"s_waitcnt lgkmcnt({2-2*i})")
        for tau in range(4): a(mf16(QT+4*tau, W2+8*tau, X+8*i, "0"))
        for tau in range(4): a(mf16(QT+4*tau, W2+8*tau+4, X+8*i+4, QT+4*tau))
    for i in range(2):
        QT = (Z1, DD)[i]
        if i == 1: a("s_cmp_eq_u32 s3, 3", "s_cbranch_scc1 K2_NQ2")
        for tau in range(4):
            a(f"v_pk_mul_f32 {vr(QT+4*tau,2)}, {vr(QT+4*tau,2)}, s[66:67]", f"v_pk_mul_f32 {vr(QT+4*tau+2,2)}, {vr(QT+4*tau+2,2)}, s[66:67]",
              f"ds_write_b128 v1, {vr(QT+4*tau,4)} offset:{L_QS + 64*QSTR*i + 64*tau}")
    a.label("K2_NQ2")
    a("s_waitcnt vmcnt(0)")
    for j in range(4):
        a(f"s_bitcmp0_b32 s70, {j}", f"s_cbranch_scc1 K2_TW{j}")
        if j % 2 == 1: a("s_waitcnt lgkmcnt(4)")
        for k in range(4): a(f"v_min_u32 v{AD+4*j+k}, s65, v{AD+4*j+k}", f"ds_write_b32 v{AD+4*j+k}, v{R+4*j+k}")
        a.label(f"K2_TW{j}")
    a("s_branch K2_CWR")
    a.label("K2_CA")
    st.k = stk
    a("s_waitcnt vmcnt(4)")
    st()
    a_round(AD, TG, MK); a_round(AD + 4, TG + 1, MK + 8)
    a("s_waitcnt lgkmcnt(0)", "s_barrier")
    st()
    a.label("K2_AB1")
    C = Q; OWN = Z1; RK = Z1 + 1; NQ = Z1 + 2; T = Z1 + 4; PP = 4
    a(f"v_mov_b32 v{T}, 0", f"ds_read_b32 v{T+1}, v{T} offset:{L_OVC}")
    a(f"v_subrev_u32 v{NQ}, 256, v0", f"v_lshrrev_b32 v{NQ}, 2, v{NQ}", f"v_lshlrev_b32 v{T}, 2, v{NQ}", f"v_mul_u32_u24 v{T+2}, 112, v{PP}",
      f"ds_read_b32 v{OWN}, v{T} offset:{L_CTR}")
    a("s_cmp_eq_u32 s3, 11", "s_cbranch_scc1 K2_NR1")
    for k in range(7): a(f"ds_read_b128 {vr(C+4*k,4)}, v{T+2} offset:{L_CTR+16*k}")
    a(f"v_mov_b32 v{RK}, 0", f"v_add_u32 v{T}, {L_ELL}, v{T}")
    a("s_waitcnt lgkmcnt(6)", f"v_readfirstlane_b32 s23, v{T+1}", "s_andn2_b32 s23, s23, s68", "s_cbranch_scc1 K2_RESCAN")
    for m in range(28 + 3):
        if m < 28 and m % 4 == 0 and m > 0: a(f"s_waitcnt lgkmcnt({6 - m//4})")
        if m < 28: a(f"v_cmp_gt_u32 s[{MK+2*(m%4)}:{MK+2*(m%4)+1}], v{C+m}, v{OWN}")
        if m >= 3: a(f"v_addc_co_u32 v{RK}, vcc, 0, v{RK}, s[{MK+2*((m-3)%4)}:{MK+2*((m-3)%4)+1}]")
    a(f"v_sub_u32 v{OWN}, v{OWN}, v{T}", f"v_cmp_lt_u32 vcc, {CAP*ESTR}, v{OWN}")
    a(f"v_add_u32_dpp v{RK}, v{RK}, v{RK} quad_perm:[1,0,3,2] row_mask:0xf bank_mask:0xf")
    a(f"v_min_u32 v{OWN}, {CAP*ESTR}, v{OWN}", f"v_lshrrev_b32 v{OWN}, 2, v{OWN}")
    a(f"v_add_u32_dpp v{RK}, v{RK}, v{RK} quad_perm:[2,3,0,1] row_mask:0xf bank_mask:0xf")
    a(f"v_mul_u32_u24 v{OWN}, 509, v{OWN}", f"v_lshrrev_b32 v{OWN}, 16, v{OWN}")
    a(f"s_movk_i32 s23, {NB}", f"v_cmp_gt_u32 s[{MK}:{MK+1}], s23, v{NQ}", f"s_and_b64 vcc, vcc, s[{MK}:{MK+1}]")
    a(f"s_movk_i32 s23, {NB-4}", f"v_cmp_gt_u32 s[{MK+2}:{MK+3}], s23, v{RK}")
    a(f"v_add_u32 v{T+1}, 1, v{OWN}", f"v_lshrrev_b32 v{T+2}, 1, v{T+1}", f"v_mul_u32_u24 v{T+2}, v{T+2}, v{PP}", f"v_mad_u32_u24 v{T}, v{T+2}, v5, v{T}",
      f"v_sub_u32 v{T+1}, v{T+1}, v{PP}", f"v_lshrrev_b32 v{T+1}, 1, v{T+1}", f"v_cndmask_b32 v{T+1}, v{OWN}, v{T+1}, s[{MK+2}:{MK+3}]",
      f"v_lshl_add_u32 v{T+2}, v{RK}, 1, v{PP}", f"v_add_u32 v{T+2}, 4, v{T+2}", f"v_subrev_u32 v{RK}, {NB-4}, v{RK}", f"v_cndmask_b32 v{T+2}, v{RK}, v{T+2}, s[{MK+2}:{MK+3}]",
      f"v_lshl_or_b32 v{T}, v{NQ}, 17, v{T}", f"v_lshl_or_b32 v{T}, v{T+1}, 24, v{T}", f"v_lshlrev_b32 v{T+2}, 2, v{T+2}",
      f"v_cndmask_b32 v{T+1}, 1, 2, s[{MK+2}:{MK+3}]", f"v_cmp_gt_u32 s[{MK+4}:{MK+5}], v{T+1}, v{PP}",
      f"s_and_b64 exec, s[{MK+4}:{MK+5}], s[{MK}:{MK+1}]", f"ds_write_b32 v{T+2}, v{T} offset:{L_SLOT}",
      "s_mov_b64 exec, vcc", f"v_mov_b32 v{T}, 0", f"ds_write_b32 v{T}, v5 offset:{L_FLG}", "s_mov_b64 exec, -1")
    a("s_branch K2_NR2")
    a.label("K2_NR1")
    a("s_waitcnt lgkmcnt(0)", f"v_readfirstlane_b32 s23, v{T+1}", "s_andn2_b32 s23, s23, s68", "s_cbranch_scc1 K2_RESCAN")
    a.label("K2_NR2")
    a("s_waitcnt vmcnt(2)")
    for k in range(8): a(f"v_min_u32 v{AD+k}, s65, v{AD+k}", f"ds_write_b32 v{AD+k}, v{R+k}")
    a("s_waitcnt vmcnt(0)")
    a.label("K2_CWR")
    for r in range(4): a(f"v_cmp_eq_u32 s[{MK+4+2*r}:{MK+5+2*r}], {r}, v4")
    T = EX; IP = EX + 4
    a(f"v_add_u32 v7, {L_WF}, v6")
    for k in range(RG + 1): a(f"v_mov_b32 v{IP+2*k+1}, v{IX+1}")
    if st.on: a("s_waitcnt lgkmcnt(0)", "s_memrealtime s[96:97]")
    a("s_waitcnt lgkmcnt(0)", "s_barrier")
    st()
    a(f"ds_read_b32 v{T}, v{BE+1} offset:{L_SLOT}", f"ds_read_b128 {vr(AE,4)}, v7")
    for i in range(16): a(f"v_mov_b32 v{NN+i}, 0")
    a("s_waitcnt lgkmcnt(1)")
    a(f"v_and_b32 v{VI}, 0x1ffff, v{T}")
    for k in range(RG + 1): a(f"ds_read_u16 v{IP+2*k}, v{VI} offset:{k*ESTR}")
    a(f"v_bfe_u32 v{T+1}, v{T}, 17, 7", f"v_lshrrev_b32 v{LEN}, 24, v{T}")
    a(f"v_mul_u32_u24 v{T+2}, {QSTR}, v{T+1}", f"v_lshl_add_u32 v{T+2}, v4, 6, v{T+2}")
    for k in range(4): a(f"ds_read_b128 {vr(Q+4*k,4)}, v{T+2} offset:{L_QS+16*k}")
    for r in range(4): a(f"v_cndmask_b32 v{VE+r}, v{BE+3}, v{VI}, s[{MK+4+2*r}:{MK+5+2*r}]")
    def gather(slot, ix):
        p = P + 8 * slot
        return [f"buffer_load_dwordx4 {vr(p,4)}, {vr(ix,2)}, s[{SPT}:{SPT+3}], 0 idxen offen",
                f"buffer_load_dwordx4 {vr(p+4,4)}, {vr(ix,2)}, s[{SPT}:{SPT+3}], 0 idxen offen offset:64"]
    def rde(t): return [f"ds_read_b32 v{BE+r}, v{VE+r} offset:{t*ESTR}" for r in range(4)]
    for k in range(2): a(f"s_waitcnt lgkmcnt({4 + RG - k})", *gather(k, IP + 2*k))
    a(*rde(0), f"ds_read_u16 v{IX}, v{VI} offset:{(RG+1)*ESTR}")
    a(f"v_mul_u32_u24 v{AGA}, {ASTR}, v{T+1}", f"v_lshl_add_u32 v{AGA}, v4, 5, v{AGA}")
    a(f"v_readlane_b32 s69, v{LEN}, 0", f"v_readlane_b32 s70, v{LEN}, 16", "s_max_u32 s69, s69, s70", "s_mov_b32 s70, 0")
    for i in range(16): a(f"v_mov_b32 v{DD+i}, 1.0")
    a(f"s_lshl_b32 s23, s72, 12", f"s_add_u32 s23, s23, 1024", "v_add_u32 v7, s23, v7")
    a("s_cmp_eq_u32 s69, 0", "s_cbranch_scc1 K2_DONE0")
    a(f"s_waitcnt vmcnt(2) lgkmcnt(0)")
    st()
    if st.on: a("s_memtime s[98:99]", "s_waitcnt lgkmcnt(0)")
    for k in range(2, RG): a(*gather(k, IP + 2*k))
    def sm(z, b, c): return f"v_mfma_f32_4x4x4_16b_bf16 {vr(z,4)}, {vr(AL,2)}, {vr(b,2)}, {vr(c,4)}"
    if small: a(*[sm(Z0+4*i, P+2*i, Q+4*i) for i in range(4)], mf32(Z0, AE, BE, Z0))
    else: a(mf32(Z0, AE, BE, Q), mf32(Z0, AL, P, Z0), mf32(Z0, AH, P + 4, Z0))
    a(*gather(0, IP + 2*RG), *rde(1), "s_nop 3")
    U = max(2, RG)
    a(f"s_branch K2_PRI{U-1}")
    a(".p2align 6")
    for u in range(U):
        a.label(f"K2_L{u}")
        zc = (Z0, Z1)[u % 2]; zn = (Z1, Z0)[u % 2]; p = P + 8 * ((u + 1) % RG)
        ex = [f"v_exp_f32 v{EX+i}, v{zc+i}" for i in range(16)]
        a(f"s_waitcnt vmcnt({2*RG-2}) lgkmcnt(0)")
        if small:
            s4 = [sm(zn+4*i, p+2*i, Q+4*i) for i in range(4)]
            a(s4[0], ex[0], s4[1], ex[1], s4[2], ex[2], s4[3], *ex[3:8], mf32(zn, AE, BE, zn), *ex[8:16])
        else: a(mf32(zn, AE, BE, Q), *ex[0:4], mf32(zn, AL, p, zn), *ex[4:8], mf32(zn, AH, p + 4, zn), *ex[8:16])
        a(*gather((u + 1) % RG, IX), *rde(u + 2), f"ds_read_u16 v{IX}, v{VI} offset:{(u+RG+2)*ESTR}")
        a(f"v_cmpx_lt_u32 vcc, s70, v{LEN}")
        for i in range(0, 16, 2): a(f"v_pk_fma_f32 {vr(NN+i,2)}, {vr(NN+i,2)}, {vr(EX+i,2)}, {vr(NN+i,2)}")
        for i in range(0, 16, 2): a(f"v_pk_fma_f32 {vr(NN+i,2)}, {vr(zc+i,2)}, {vr(DD+i,2)}, {vr(NN+i,2)}")
        for i in range(0, 16, 2): a(f"v_pk_fma_f32 {vr(DD+i,2)}, {vr(DD+i,2)}, {vr(EX+i,2)}, {vr(DD+i,2)}")
        a("s_mov_b64 exec, -1", "s_add_u32 s70, s70, 1", "s_cmp_ge_u32 s70, s64")
        if u < U - 1: a(f"s_cbranch_scc1 K2_PRI{u}")
        else:
            for rg in [VI] + [VE + r for r in range(4)]: a(f"v_add_u32 v{rg}, {U*ESTR}, v{rg}")
            a("s_cbranch_scc0 K2_L0")
    for u in list(range(U - 1, -1, -1)):
        a.label(f"K2_PRI{u}")
        nx = f"K2_L{(u+1)%U}"
        a("s_sub_u32 s65, s69, s70")
        for lv, th in zip((3, 2, 1), dp):
            a(f"s_setprio {lv}", f"s_sub_u32 s64, s69, {th}", f"s_cmp_gt_u32 s65, {th}", f"s_cbranch_scc1 {nx}")
        a("s_setprio 0", "s_mov_b32 s64, s69", "s_cmp_lg_u32 s65, 0", f"s_cbranch_scc1 {nx}")
        if u: a("s_branch K2_DONE")
    a.label("K2_DONE")
    st()
    if st.on: a("s_memtime s[100:101]", "s_waitcnt lgkmcnt(0)", "s_sub_u32 s98, s100, s98")
    XF = Z0; ACC = Q
    a(f"v_xor_b32 v3, 64, v{ARX}")
    for i in range(16): a(f"v_rcp_f32 v{EX+i}, v{DD+i}")
    a("s_waitcnt lgkmcnt(0)")
    for k in range(4): a(f"ds_read_b128 {vr(WU+4*k,4)}, v7 offset:{1024*k}")
    for i in range(3): a(f"ds_read_b128 {vr(XF+8*i,4)}, v{ARX} offset:{6144*i}", f"ds_read_b128 {vr(XF+8*i+4,4)}, v3 offset:{6144*i}")
    a(f"s_mov_b32 s66, {NLN2:#x}", f"s_mov_b32 s67, {NLN2:#x}", f"s_mov_b32 s64, {f2u(2.0**120):#x}")
    for i in range(0, 16, 2): a(f"v_pk_mul_f32 {vr(NN+i,2)}, {vr(NN+i,2)}, s[66:67]")
    a(f"v_max3_f32 v2, v{DD}, v{DD+1}, v{DD+2}")
    for i in range(3, 15, 2): a(f"v_max3_f32 v2, v{DD+i}, v{DD+i+1}, v2")
    a(f"v_max_f32 v2, v{DD+15}, v2")
    for i in range(0, 16, 2): a(f"v_pk_mul_f32 {vr(NN+i,2)}, {vr(NN+i,2)}, {vr(EX+i,2)}")
    a(f"v_pk_mul_f32 {vr(DD,2)}, {vr(NN,2)}, 0")
    for i in range(2, 16, 2): a(f"v_pk_fma_f32 {vr(DD,2)}, {vr(NN+i,2)}, 0, {vr(DD,2)}")
    for i in range(16): a(f"v_fmac_f32_dpp v{NN+i}, v{NN+i}, v{MFL} row_shl:4 row_mask:0xf bank_mask:0xf bound_ctrl:0")
    a(f"v_cmp_u_f32 vcc, v{DD}, v{DD+1}", f"v_cmp_nlt_f32 s[{MK+2}:{MK+3}], v2, s64", f"s_or_b64 vcc, vcc, s[{MK+2}:{MK+3}]")
    for i in range(8): a(f"v_cvt_pk_bf16_f32 v{EX+i}, v{NN+2*i}, v{NN+2*i+1}")
    a(f"s_mov_b64 exec, s[58:59]", f"ds_write_b128 v{AGA}, {vr(EX,4)} offset:{L_AGB}", f"ds_write_b128 v{AGA}, {vr(EX+4,4)} offset:{L_AGB+16}")
    a("s_mov_b64 exec, vcc", "v_mov_b32 v2, 0", f"ds_write_b32 v2, v5 offset:{L_FLG}", "s_mov_b64 exec, -1")
    a(f"s_mov_b32 s66, {NLOG2E:#x}", f"s_mov_b32 s67, {NLOG2E:#x}", "v_mov_b32 v2, 0")
    a("s_waitcnt lgkmcnt(3)")
    for i in range(3): a(mf16(ACC+4*i, WU, XF+8*i, "0"))
    for i in range(3): a(mf16(ACC+4*i, WU+4, XF+8*i+4, ACC+4*i))
    a("s_waitcnt lgkmcnt(0)", "s_barrier")
    st()
    a.label("K2_EPI")
    B = Z0; O = EX; TT = NN; WU2 = WU + 8
    a(f"ds_read_b32 v3, v2 offset:{L_FLG}")
    for i in range(3):
        for s in range(2): a(f"ds_read_b128 {vr(B+8*i+4*s,4)}, v{ARD} offset:{L_AGB + 48*ASTR*i + 64*s}")
    a("s_waitcnt lgkmcnt(6)", "v_readfirstlane_b32 s23, v3", "s_andn2_b32 s23, s23, s71", "s_cbranch_scc1 K2_BF")
    def epi_tile(i):
        o = O + 4 * i; t = TT + 4 * i
        a(f"v_pk_mul_f32 {vr(t,2)}, {vr(o,2)}, s[66:67]", f"v_pk_mul_f32 {vr(t+2,2)}, {vr(o+2,2)}, s[66:67]")
        for k in range(4): a(f"v_exp_f32 v{t+k}, v{t+k}")
        a(f"v_pk_add_f32 {vr(t,2)}, {vr(t,2)}, 1.0 op_sel_hi:[1,0]", f"v_pk_add_f32 {vr(t+2,2)}, {vr(t+2,2)}, 1.0 op_sel_hi:[1,0]")
        for k in range(4): a(f"v_rcp_f32 v{t+k}, v{t+k}")
        a(f"v_pk_mul_f32 {vr(t,2)}, {vr(t,2)}, {vr(o,2)}", f"v_pk_mul_f32 {vr(t+2,2)}, {vr(t+2,2)}, {vr(o+2,2)}")
        a(f"v_cvt_pk_bf16_f32 v{o}, v{t}, v{t+1}", f"v_cvt_pk_bf16_f32 v{o+1}, v{t+2}, v{t+3}")
        a(f"buffer_store_dwordx2 {vr(o,2)}, v{OOF}, s[{SO}:{SO+3}], {('s74','s75','s22')[i]} offen")
    for i in range(3):
        a(f"s_waitcnt lgkmcnt({4-2*i})", mf16(O+4*i, WU2, B+8*i, ACC+4*i), mf16(O+4*i, WU2+4, B+8*i+4, O+4*i))
    epi_tile(0); epi_tile(1)
    a("s_cmp_lg_u32 s73, 0", "s_cbranch_scc1 K2_FIN")
    epi_tile(2)
    a.label("K2_FIN")
    if st.on: a("s_waitcnt vmcnt(0)")
    st.flush(20, 3, 2, 3)
    a.label("K2_END")
    a("s_endpgm")

    a.label("K2_DONE0")
    a("s_waitcnt vmcnt(0) lgkmcnt(0)", "s_branch K2_DONE")
    a.label("K2_MARK")
    T = Z1
    a("s_mov_b64 exec, vcc", f"v_mov_b32 v{T}, 0", f"v_mov_b32 v{T+1}, 1", f"ds_add_rtn_u32 v{T}, v{T}, v{T+1} offset:{L_OVC}", "s_waitcnt lgkmcnt(0)",
      f"v_and_b32 v{T}, 255, v{T}", f"v_lshlrev_b32 v{T}, 2, v{T}", f"ds_write_b32 v{T}, v0 offset:{L_OVL}", "s_mov_b64 exec, -1", "s_branch K2_MR")

    SD, SS, SE = 40, 44, 48
    a.label("K2_RESCAN")
    srd(a, SD, 10, 11, E * 4); srd(a, SS, 8, 9, E * 4); srd(a, SE, 6, 7, E * 2)
    a("s_mov_b32 s52, 0", f"s_mul_i32 s53, {BK}, {NB}", "s_min_u32 s23, s23, 256", "s_waitcnt lgkmcnt(0)")
    a.label("K2_RS1")
    T = Z1 + 8
    a("s_lshl_b32 s54, s52, 2", f"v_mov_b32 v{T}, s54", f"ds_read_b32 v{T}, v{T} offset:{L_OVL}", "s_waitcnt lgkmcnt(0)", f"v_readfirstlane_b32 s54, v{T}",
      "s_and_b32 s55, s54, 31", "s_lshl_b32 s55, s55, 3", "s_lshr_b32 s54, s54, 5", "s_add_u32 s54, s54, s55",
      f"s_mul_i32 s54, s54, {CH}", f"s_sub_u32 s55, {E}, s54", f"s_min_u32 s55, s55, {CH}",
      f"v_mov_b32 v{T}, v0")
    a.label("K2_RS2")
    a(f"v_add_u32 v{T+1}, s54, v{T}", f"v_lshlrev_b32 v{T+2}, 1, v{T+1}", f"v_lshlrev_b32 v{T+1}, 2, v{T+1}",
      f"buffer_load_dword v{T+3}, v{T+1}, s[{SD}:{SD+3}], 0 offen", f"buffer_load_dword v{T+4}, v{T+1}, s[{SS}:{SS+3}], 0 offen",
      f"buffer_load_ushort v{T+5}, v{T+2}, s[{SE}:{SE+3}], 0 offen", "s_waitcnt vmcnt(0)",
      f"v_subrev_u32 v{T+3}, s53, v{T+3}", f"v_cmp_gt_u32 vcc, {NB}, v{T+3}", f"v_cmp_gt_u32 s[56:57], s55, v{T}", "s_and_b64 exec, vcc, s[56:57]",
      f"v_lshlrev_b32 v{T+3}, 2, v{T+3}", f"ds_add_rtn_u32 v{T+3}, v{T+3}, v5 offset:{L_CTR}", f"v_lshl_or_b32 v{T+4}, v{T+5}, 16, v{T+4}",
      "s_waitcnt lgkmcnt(0)", f"v_min_u32 v{T+3}, s65, v{T+3}", f"ds_write_b32 v{T+3}, v{T+4}", "s_mov_b64 exec, -1",
      f"v_add_u32 v{T}, 768, v{T}", f"v_cmp_gt_u32 vcc, s55, v{T}", "s_cbranch_vccnz K2_RS2")
    a("s_add_u32 s52, s52, 1", "s_cmp_lt_u32 s52, s23", "s_cbranch_scc1 K2_RS1")
    a("s_mov_b32 s68, -1", "s_waitcnt lgkmcnt(0)", "s_barrier", "s_cmp_eq_u32 s73, 0", "s_cbranch_scc1 K2_AB1T", "s_branch K2_AB1")

    a.label("K2_BF")
    T = Z0
    a("s_waitcnt vmcnt(0) lgkmcnt(0)")
    srd(a, SD, 10, 11, E * 4); srd(a, SS, 8, 9, E * 4); srd(a, SE, 6, 7, E * 2); srd(a, 52, 12, 13, 129 * 128)
    for i in range(4): a(f"v_mov_b32 v{T+i}, 0")
    a(f"v_lshlrev_b32 v{T+4}, 4, v0", f"v_add_u32 v{T+4}, {L_ELL}, v{T+4}")
    for i in range(3): a(f"ds_write_b128 v{T+4}, {vr(T,4)} offset:{12288*i}")
    LN, F4, F2, PO, W3 = T + 4, T + 5, T + 6, T + 7, T + 8
    a(f"v_and_b32 v{LN}, 63, v0", f"v_lshlrev_b32 v{F4}, 2, v{LN}", f"v_lshlrev_b32 v{F2}, 1, v{LN}",
      f"v_and_b32 v{PO}, 8, v{LN}", f"v_lshlrev_b32 v{PO}, 3, v{PO}", f"v_and_b32 v{T}, 48, v{LN}", f"v_add_u32 v{PO}, v{PO}, v{T}",
      f"v_and_b32 v{T}, 7, v{LN}", f"v_lshl_add_u32 v{PO}, v{T}, 1, v{PO}",
      "s_movk_i32 s56, 16384", f"buffer_load_ushort v{W3}, v{F2}, s[52:55], s56 offen", "s_waitcnt vmcnt(0) lgkmcnt(0)",
      f"v_lshlrev_b32 v{W3}, 16, v{W3}", f"v_mul_f32 v{W3}, s66, v{W3}",
      f"s_mul_i32 s57, {BK}, {NB}", "s_mov_b32 s56, s3", "s_barrier")
    a.label("K2_BF1")
    DV, SV, EV = T + 9, T + 10, T + 11
    a("s_lshl_b32 s58, s56, 8", "s_lshl_b32 s59, s56, 7",
      f"buffer_load_dword v{DV}, v{F4}, s[{SD}:{SD+3}], s58 offen", "s_waitcnt vmcnt(0)",
      f"v_subrev_u32 v{DV}, s57, v{DV}", f"v_cmp_gt_u32 vcc, {NB}, v{DV}", "s_cbranch_vccz K2_BF3",
      f"buffer_load_dword v{SV}, v{F4}, s[{SS}:{SS+3}], s58 offen", f"buffer_load_ushort v{EV}, v{F2}, s[{SE}:{SE+3}], s59 offen",
      "s_mov_b64 s[60:61], vcc", "s_waitcnt vmcnt(0)")
    a.label("K2_BF2")
    a("s_ff1_i32_b64 s58, s[60:61]", "s_bitset0_b64 s[60:61], s58",
      f"v_readlane_b32 s59, v{SV}, s58", f"v_readlane_b32 s62, v{DV}, s58", f"v_readlane_b32 s63, v{EV}, s58",
      "s_min_u32 s59, s59, %d" % (N - 1), "s_lshl_b32 s59, s59, 7", f"buffer_load_ushort v{T}, v{PO}, s[{SWS}:{SWS+3}], s59 offen",
      f"s_mul_i32 s58, s62, {QSTR}", f"v_add_u32 v{T+1}, s58, v{F4}", f"ds_read_b32 v{T+1}, v{T+1} offset:{L_QS}",
      "s_lshl_b32 s63, s63, 16", "s_lshl_b32 s62, s62, 8", f"s_add_u32 s62, s62, {L_ELL}", f"v_add_u32 v{T+2}, s62, v{F4}",
      "s_waitcnt vmcnt(0) lgkmcnt(0)",
      f"v_lshlrev_b32 v{T}, 16, v{T}", f"v_add_f32 v{T}, v{T}, v{T+1}", f"v_fma_f32 v{T}, s63, v{W3}, v{T}",
      f"v_exp_f32 v{T+1}, v{T}", f"v_add_f32 v{T+1}, 1.0, v{T+1}", f"v_rcp_f32 v{T+1}, v{T+1}", f"v_mul_f32 v{T}, {NLN2:#x}, v{T}", f"v_mul_f32 v{T}, v{T}, v{T+1}",
      f"ds_add_f32 v{T+2}, v{T}", "s_cmp_lg_u64 s[60:61], 0", "s_cbranch_scc1 K2_BF2")
    a.label("K2_BF3")
    a("s_add_u32 s56, s56, 12", f"s_cmp_lt_u32 s56, {E//64}", "s_cbranch_scc1 K2_BF1")
    a("s_waitcnt lgkmcnt(0)", "s_barrier", f"v_mov_b32 v{T+4}, v0")
    a.label("K2_BF4")
    a(f"v_lshlrev_b32 v{T+5}, 3, v{T+4}", f"v_add_u32 v{T+5}, {L_ELL}, v{T+5}", f"ds_read_b64 {vr(T,2)}, v{T+5}",
      f"v_lshrrev_b32 v{T+5}, 5, v{T+4}", f"v_mul_u32_u24 v{T+5}, {ASTR}, v{T+5}", f"v_and_b32 v{T+6}, 31, v{T+4}", f"v_lshl_add_u32 v{T+5}, v{T+6}, 2, v{T+5}",
      "s_waitcnt lgkmcnt(0)", f"v_cvt_pk_bf16_f32 v{T}, v{T}, v{T+1}", f"ds_write_b32 v{T+5}, v{T} offset:{L_AGB}",
      f"v_add_u32 v{T+4}, 768, v{T+4}", f"v_cmpx_gt_u32 vcc, {NB*32}, v{T+4}", "s_cbranch_execnz K2_BF4")
    a("s_mov_b64 exec, -1", "s_mov_b32 s71, -1", "s_waitcnt lgkmcnt(0)", "s_barrier", "s_branch K2_EPI")
    return a.lines

def kd(name, vg, sg=102):
    return f""".amdhsa_kernel {name}
  .amdhsa_next_free_vgpr {vg}
  .amdhsa_next_free_sgpr {sg}
  .amdhsa_accum_offset {vg}
  .amdhsa_group_segment_fixed_size 0
  .amdhsa_kernarg_size 72
  .amdhsa_user_sgpr_count 2
  .amdhsa_user_sgpr_kernarg_segment_ptr 1
  .amdhsa_system_sgpr_workgroup_id_x 1
.end_amdhsa_kernel"""

def build(opt=None):
    opt = opt or {}
    out = ["; mpnn edge MLP: K1 bins edges by destination bucket and builds the P' table, K2 aggregates and updates",
           f"; @launch kernel=mpnn_bin_kernel grid=(256,1,1) block=(1024,1,1) lds={K1_LDS}",
           f"; @launch kernel=mpnn_msg_kernel grid=(256,1,1) block=(768,1,1) lds={K2_LDS}",
           '.amdgcn_target "amdgcn-amd-amdhsa--gfx950"', ".text"]
    for name, fn in (("mpnn_bin_kernel", gen_k1), ("mpnn_msg_kernel", gen_k2)):
        lines, nn = fix_hazards(fn(opt), verbose=opt.get("verbose"))
        out += [f".globl {name}", ".p2align 8", f".type {name},@function"] + lines
    out += ['.section .rodata,"a"', ".p2align 6", kd("mpnn_bin_kernel", 128), ".p2align 6", kd("mpnn_msg_kernel", 168)]
    return "\n".join(out) + "\n"

if __name__ == "__main__":
    import argparse
    ap = argparse.ArgumentParser(); ap.add_argument("-o", default="standalone__mpnn_edge_mlp__graph.s")
    ap.add_argument("--stamp", type=int, default=0); ap.add_argument("-v", action="store_true"); ap.add_argument("--opt", default="{}")
    g = ap.parse_args()
    open(g.o, "w").write(build({"stamp": g.stamp, "verbose": g.v, **eval(g.opt)}))
```

```python
import sys, struct, math
sys.path.insert(0, "gen")
from asmlib import *

N = 25000; E = 800000; NB = 98; CH = 3128; CAP = 72
WS_RA = 0x400000; WS_DA = 0x800000; WS_RB = 0xA00000; WS_WF = 0x380000; WS_END = WS_RB + 0x800000
MARK = 0xFEFEFEFE
WS_STAMP = 0x1400000
f2u = lambda f: struct.unpack("<I", struct.pack("<f", f))[0]
NLOG2E = f2u(-1.4426950408889634); NLN2 = f2u(-0.6931471805599453)
NTILE = (N + 15) // 16

def mf16(d, a, b, c): return f"v_mfma_f32_16x16x32_bf16 {vr(d,4)}, {vr(a,4)}, {vr(b,4)}, {c if isinstance(c,str) else vr(c,4)}"
def mf32(d, a, b, c): return f"v_mfma_f32_32x32x16_bf16 {vr(d,16)}, {vr(a,4)}, {vr(b,4)}, {vr(c,16)}"

class Stamps:
    def __init__(self, a, on, base, kidx, nw): self.a = a; self.on = on; self.base = base; self.k = 0; self.kidx = kidx; self.nw = nw
    def __call__(self):
        if not self.on: return
        r = self.base + 2 * self.k; self.k += 1
        if self.on == 3 and (self.k - 1) not in ((0, 5), (0, 1, 7, 8))[self.kidx]: return
        self.a(f"s_waitcnt lgkmcnt(0)", f"s_memrealtime s[{r}:{r+1}]", "s_waitcnt lgkmcnt(0)")
    def early(self):
        if not self.on: return
        r = self.base + 2 * self.k; self.k += 1
        self.a(f"s_memrealtime s[{r}:{r+1}]")
    def flush(self, ws, wave, t0, t1):
        if not self.on: return
        a = self.a
        self()
        a("s_mov_b64 exec, -1")
        a(f"v_mov_b32 v{t0}, 0")
        for k in range(self.k): a(f"v_writelane_b32 v{t0}, s{self.base+2*k}, {k}")
        if self.kidx == 1: a(f"v_writelane_b32 v{t0}, s98, 13", f"v_writelane_b32 v{t0}, s96, 12", f"v_writelane_b32 v{t0}, s97, 11", f"v_writelane_b32 v{t0}, s69, 15", f"s_getreg_b32 s69, hwreg(HW_REG_HW_ID)", f"v_writelane_b32 v{t0}, s69, 14")
        if self.on == 2 and self.kidx == 1:
            b = self.base
            a(f"s_add_u32 s{b}, s2, s{wave}", f"s_cmp_lg_u32 s{b}, 0", f"s_cbranch_scc1 STK{self.kidx}",
              f"s_load_dwordx2 s[{b}:{b+1}], s[0:1], 56", f"v_and_b32 v{t1}, 63, v0", f"v_lshlrev_b32 v{t1}, 2, v{t1}",
              f"v_add_u32 v{t1+1}, {WS_STAMP}, v{t1}", f"global_load_dword v{t1+1}, v{t1+1}, s[{ws}:{ws+1}]",
              "s_waitcnt vmcnt(0) lgkmcnt(0)", f"s_mov_b64 exec, 0x3ff", f"global_store_dword v{t1}, v{t0}, s[{b}:{b+1}] offset:24",
              f"s_mov_b64 exec, 0x3f", f"global_store_dword v{t1}, v{t1+1}, s[{b}:{b+1}]")
            a.label(f"STK{self.kidx}")
            return
        a(f"s_mul_i32 s{self.base}, s2, {self.nw}", f"s_add_u32 s{self.base}, s{self.base}, s{wave}", f"s_lshl_b32 s{self.base}, s{self.base}, 6",
          f"s_add_u32 s{self.base}, s{self.base}, {WS_STAMP + self.kidx * 0x100000}",
          f"v_and_b32 v{t1}, 63, v0", f"v_lshlrev_b32 v{t1}, 2, v{t1}", f"v_add_u32 v{t1}, s{self.base}, v{t1}",
          "s_mov_b64 exec, 0xffff", f"global_store_dword v{t1}, v{t0}, s[{ws}:{ws+1}]")

def srd(a, r, lo, hi, num, stride=0):
    a(f"s_mov_b32 s{r}, s{lo}")
    if stride: a(f"s_or_b32 s{r+1}, s{hi}, {stride << 16:#x}")
    else: a(f"s_mov_b32 s{r+1}, s{hi}")
    a(f"s_mov_b32 s{r+2}, {num}", f"s_mov_b32 s{r+3}, 0x20000")

K1_DA = 32768; K1_CNT = 40960; K1_LDS = K1_CNT + 1024
def gen_k1(opt):
    a = Asm(); st = Stamps(a, opt.get("stamp"), 70, 0, 16)
    a.label("mpnn_bin_kernel")
    if opt.get("cpf") == 2:
        a("s_getpc_b64 s[48:49]", "v_lshlrev_b32 v54, 7, v0", "v_min_u32 v54, K2_END-mpnn_bin_kernel-4, v54", "global_load_dword v55, v54, s[48:49]")
    a("s_cmp_ge_u32 s2, 256", "s_cbranch_scc1 K1_END")
    a("s_load_dwordx8 s[4:11], s[0:1], 0", "s_load_dwordx4 s[12:15], s[0:1], 32", "s_load_dwordx2 s[16:17], s[0:1], 64")
    a("v_lshrrev_b32 v1, 6, v0", "v_lshlrev_b32 v7, 4, v0", "v_readfirstlane_b32 s3, v1", "v_lshlrev_b32 v4, 3, v0")
    a("v_mov_b32 v46, -1", "v_mov_b32 v47, -1", f"ds_write_b64 v4, v[46:47] offset:{K1_DA}",
      "v_and_b32 v45, 255, v0", "v_lshlrev_b32 v44, 2, v45", "v_lshlrev_b32 v45, 5, v45", f"ds_write_b32 v44, v45 offset:{K1_CNT}")
    a("s_and_b32 s40, s2, 7", "s_lshr_b32 s41, s2, 3")
    a(f"s_mov_b32 s34, {WS_END}", "s_mov_b32 s35, 0x20000")
    CO = 44
    def co_addr():
        a("s_lshl_b32 s42, s40, 5", "s_add_u32 s42, s42, s41",
          "s_lshl_b32 s43, s42, 5", f"s_add_u32 s43, s43, {WS_DA}", "s_lshl_b32 s44, s42, 7", "s_lshl_b32 s42, s42, 6", f"s_add_u32 s44, s44, {WS_RB}", f"s_add_u32 s42, s42, {WS_RA}")
        a(f"v_lshrrev_b32 v{CO+6}, 2, v0", f"v_and_b32 v{CO+5}, 3, v0", f"v_lshlrev_b32 v{CO+1}, 13, v{CO+6}", f"v_lshl_add_u32 v{CO+1}, v{CO+5}, 3, v{CO+1}", f"v_lshlrev_b32 v{CO}, 1, v{CO+1}", f"v_lshl_add_u32 v{CO+8}, v{CO+6}, 14, v{CO}",
          f"v_lshlrev_b32 v{CO+2}, 7, v{CO+6}", f"v_lshl_add_u32 v{CO+2}, v{CO+5}, 4, v{CO+2}", f"v_and_b32 v{CO+3}, 64, v0", f"v_add_u32 v{CO+2}, v{CO+2}, v{CO+3}", f"v_xor_b32 v{CO+3}, 64, v{CO+2}",
          f"v_bfe_u32 v{CO+4}, v0, 4, 2", f"v_xor_b32 v{CO+5}, v{CO+5}, v{CO+4}", f"v_lshlrev_b32 v{CO+6}, 5, v{CO+6}", f"v_lshl_add_u32 v{CO+5}, v{CO+5}, 2, v{CO+6}", f"v_add_u32 v{CO+5}, 16, v{CO+5}",
          *([f"v_add_u32 v{CO+5}, 16, v{CO+6}"] if opt.get("bfull", 1) else []), f"v_add_u32 v{CO+6}, 32, v{CO+6}", f"v_and_b32 v{CO+4}, 0x3fc, v0", f"v_lshlrev_b32 v{CO+7}, 3, v0")
    a("s_cmp_ge_u32 s3, 13", "s_cbranch_scc1 K1_P")
    DST, SRC, EE, B, DL, S, LIM, REC = 8, 12, 16, 20, 24, 28, 32, 36
    a(f"s_mul_i32 s18, s2, {CH}", f"s_sub_u32 s19, {E}, s18", f"s_min_u32 s19, s19, {CH}", "s_lshl_b32 s36, s18, 2", "s_lshl_b32 s37, s18, 1")
    for r, n in ((20, E * 4), (24, E * 4), (28, E * 2)): a(f"s_mov_b32 s{r+2}, {n}", f"s_mov_b32 s{r+3}, 0x20000")
    a("v_lshlrev_b32 v1, 2, v0", "v_cmp_gt_u32 vcc, s19, v1")
    if opt.get("cpf") == 1:
        a("s_cmp_lg_u32 s3, 12", "s_cbranch_scc1 K1_NPF", "s_getpc_b64 s[48:49]")
        a.label("K1_PC")
        a("s_add_u32 s48, s48, mpnn_msg_kernel-K1_PC", "s_addc_u32 s49, s49, 0", "v_and_b32 v54, 63, v0", "v_lshlrev_b32 v54, 7, v54",
          "v_min_u32 v54, K2_END-mpnn_msg_kernel, v54", "global_load_dword v55, v54, s[48:49]")
        a.label("K1_NPF")
    a("s_waitcnt lgkmcnt(0)")
    st()
    a("s_mov_b32 s20, s10", "s_mov_b32 s21, s11", f"buffer_load_dwordx4 {vr(DST,4)}, v7, s[20:23], s36 offen")
    a("s_mov_b32 s24, s8", "s_mov_b32 s25, s9", "s_mov_b32 s28, s6", "s_mov_b32 s29, s7", "s_mov_b32 s32, s16", "s_mov_b32 s33, s17")
    a("s_barrier")
    a(f"buffer_load_dwordx4 {vr(SRC,4)}, v7, s[24:27], s36 offen", f"buffer_load_dwordx2 {vr(EE,2)}, v4, s[28:31], s37 offen")
    co_addr()
    a("v_mov_b32 v6, 1", "s_movk_i32 s38, -98", "s_mov_b32 s39, 0xffff0000")
    a("s_mov_b64 exec, vcc", "s_cbranch_execz K1_B1")
    a("s_waitcnt vmcnt(2)")
    st()
    for i in range(4):
        a(f"v_mul_u32_u24 v{B+i}, 21400, v{DST+i}", f"v_lshrrev_b32 v{B+i}, 21, v{B+i}", f"v_lshlrev_b32 v{S+i}, 2, v{B+i}",
          f"ds_add_rtn_u32 v{S+i}, v{S+i}, v6 offset:{K1_CNT}")
    for i in range(4): a(f"v_mad_i32_i24 v{DL+i}, v{B+i}, s38, v{DST+i}", f"v_lshl_or_b32 v{LIM+i}, v{B+i}, 5, 31", f"v_and_b32 v{B+i}, 31, v{B+i}")
    for i in range(4):
        a(f"s_waitcnt lgkmcnt(3)", f"v_min_u32 v{S+i}, v{S+i}, v{LIM+i}", f"v_xor_b32 v{S+i}, v{S+i}, v{B+i}", f"ds_write_b8 v{S+i}, v{DL+i} offset:{K1_DA}")
    for i in range(4): a(f"v_lshlrev_b32 v{LIM+i}, 2, v{S+i}")
    a("s_waitcnt vmcnt(0)")
    st()
    if opt.get("smask"):
        for i in range(4): a(f"v_and_b32 v{SRC+i}, {opt['smask']}, v{SRC+i}")
    for i in range(4):
        if i % 2 == 0: a(f"v_lshl_or_b32 v{REC+i}, v{EE+i//2}, 16, v{SRC+i}")
        else: a(f"v_and_or_b32 v{REC+i}, v{EE+i//2}, s39, v{SRC+i}")
        a(f"ds_write_b32 v{LIM+i}, v{REC+i}")
    a.label("K1_B1")
    a("s_mov_b64 exec, -1")
    st.k = 3; st()
    a("s_waitcnt lgkmcnt(0)", "s_barrier")
    st()
    a(f"ds_read_b128 v[8:11], v{CO+2}", f"ds_read_b32 v18, v{CO+4} offset:{K1_CNT}", f"ds_read_b64 v[16:17], v{CO+7} offset:{K1_DA}", f"ds_read_b128 v[12:15], v{CO+3}")
    a("s_waitcnt lgkmcnt(3)", f"buffer_store_dwordx4 v[8:11], v{CO}, s[32:35], s42 offen")
    a("s_waitcnt lgkmcnt(1)", f"v_cmp_gt_u32 vcc, v18, v{CO+6}", f"v_cmp_gt_u32 s[46:47], v18, v{CO+5}", "s_cbranch_vccnz K1_OV")
    a.label("K1_OVR")
    x = opt.get("x1", "")
    if "d" not in x: a(f"buffer_store_dwordx2 v[16:17], v{CO+1}, s[32:35], s43 offen {opt.get('dflag', '')}")
    if "b" not in x: a("s_mov_b64 exec, s[46:47]", "s_waitcnt lgkmcnt(0)", f"buffer_store_dwordx4 v[12:15], v{CO+8}, s[32:35], s44 offen", *([] if opt.get("bhalf", 1) else [f"buffer_store_dwordx4 v[8:11], v{CO+8}, s[32:35], s44 offen offset:64"]))
    if st.on: a("s_waitcnt vmcnt(0)")
    st.flush(16, 3, 20, 21)
    a.label("K1_END")
    a("s_endpgm")
    a.label("K1_OV")
    a(f"v_mov_b32 v18, {MARK:#x}", "v_cndmask_b32 v16, v16, v18, vcc", "v_cndmask_b32 v17, v17, v18, vcc", "s_branch K1_OVR")
    W, A, X, D, O, FR = 8, 40, 72, 96, 112, 120
    a.label("K1_P")
    a("v_and_b32 v1, 15, v0", "v_bfe_u32 v2, v0, 4, 2",
      "v_lshlrev_b32 v3, 10, v2", "v_lshl_add_u32 v5, v1, 1, v3", "v_lshl_add_u32 v3, v1, 3, v3",
      "v_lshlrev_b32 v4, 7, v1", "v_lshl_add_u32 v4, v2, 4, v4")
    a("s_mul_i32 s18, s41, 3", "s_add_u32 s18, s18, s3", "s_sub_u32 s18, s18, 13",
      "s_mul_i32 s36, s40, 196", "s_add_u32 s36, s36, s18",
      "s_lshl_b32 s36, s36, 11", f"s_add_u32 s37, s36, {96*2048}", f"s_add_u32 s38, s36, {192*2048}", "s_movk_i32 s39, 4096")
    for r, n in ((20, 129 * 128), (24, N * 128), (28, N * 128), (48, 128 * 128)): a(f"s_mov_b32 s{r+2}, {n}", f"s_mov_b32 s{r+3}, 0x20000")
    a("s_sub_u32 s19, s2, 16", "s_cmp_eq_u32 s3, 15", "s_cselect_b32 s19, s19, 100")
    a("s_waitcnt lgkmcnt(0)")
    st.k = 0; st()
    a("s_mov_b32 s24, s4", "s_mov_b32 s25, s5", "s_mov_b32 s20, s12", "s_mov_b32 s21, s13")
    a("s_cmp_le_u32 s19, 24", "s_cbranch_scc1 K1_FL")
    a.label("K1_FLR")
    for i in range(2):
        for s in range(2): a(f"buffer_load_dwordx4 {vr(X+8*i+4*s,4)}, v4, s[24:27], s{36+i} offen offset:{64*s}")
    for s in range(2):
        for kk in range(8): a(f"buffer_load_dwordx2 {vr(W+16*s+2*kk,2)}, v3, s[20:23], {'s39' if s else '0'} offen offset:{128*kk}")
    a("s_cmp_lt_u32 s18, 4", "s_cselect_b64 exec, -1, 0")
    for s in range(2): a(f"buffer_load_dwordx4 {vr(X+16+4*s,4)}, v4, s[24:27], s38 offen offset:{64*s}")
    a("s_mov_b64 exec, -1")
    a("s_barrier")
    a("s_mov_b32 s28, s16", "s_mov_b32 s29, s17", "s_mov_b32 s32, s16", "s_mov_b32 s33, s17")
    a("s_mov_b32 s44, 0x05040100", "s_mov_b32 s45, 0x07060302", f"s_mov_b32 s46, {NLOG2E:#x}", f"s_mov_b32 s47, {NLOG2E:#x}")
    a("s_waitcnt vmcnt(2)")
    st()
    for tau in range(4):
        for s in range(2):
            for rr in range(4):
                a(f"v_perm_b32 v{A+8*tau+4*s+rr}, v{W+16*s+2*(2*rr+1)+tau//2}, v{W+16*s+2*(2*rr)+tau//2}, s{44+tau%2}")
    for i in range(3):
        if i == 2:
            a(f"s_cmp_ge_u32 s18, 4", "s_cbranch_scc1 K1_PD", "s_waitcnt vmcnt(4)")
        for tau in range(4): a(mf16(D+4*tau, A+8*tau, X+8*i, "0"))
        for tau in range(4): a(mf16(D+4*tau, A+8*tau+4, X+8*i+4, D+4*tau))
        for k in range(0, 16, 2): a(f"v_pk_mul_f32 {vr(D+k,2)}, {vr(D+k,2)}, s[46:47]")
        for r in range(4):
            for h in range(2): a(f"v_cvt_pk_bf16_f32 v{O+2*r+h}, v{D+4*(2*h)+r}, v{D+4*(2*h+1)+r}")
        a(f"buffer_store_dwordx4 {vr(O,4)}, v4, s[28:31], s{36+i} offen", f"buffer_store_dwordx4 {vr(O+4,4)}, v4, s[28:31], s{36+i} offen offset:64")
    a.label("K1_PD")
    st()
    a("s_cmp_le_u32 s19, 24", "s_cbranch_scc1 K1_FS")
    a.label("K1_PE")
    if opt.get("cpf", 3) == 3:
        a("s_lshr_b32 s19, s2, 5", "s_add_u32 s19, s19, s3", "s_cmp_lg_u32 s19, 18", "s_cbranch_scc1 K1_NPF", "s_getpc_b64 s[48:49]")
        a.label("K1_PC")
        a("s_add_u32 s48, s48, mpnn_msg_kernel-K1_PC", "s_addc_u32 s49, s49, 0", "v_and_b32 v54, 63, v0", "v_lshlrev_b32 v54, 7, v54",
          "v_min_u32 v54, K2_END-mpnn_msg_kernel, v54", "global_load_dword v55, v54, s[48:49]")
        a.label("K1_NPF")
    co_addr()
    a("s_branch K1_B1")
    a.label("K1_FL")
    a("s_cmp_eq_u32 s19, 8", "s_cbranch_scc1 K1_FA", "s_cmp_gt_u32 s19, 8", "s_cbranch_scc1 K1_FU")
    a("s_lshr_b32 s42, s19, 1", "s_and_b32 s43, s19, 1", "s_lshl_b32 s42, s42, 5", "s_lshl_b32 s43, s43, 12", "s_add_u32 s43, s43, s42", "s_add_u32 s43, s43, 8192")
    for kk in range(8): a(f"buffer_load_ushort v{FR+kk}, v5, s[20:23], s43 offen offset:{128*kk}")
    a("s_branch K1_FLR")
    a.label("K1_FU")
    a("s_mov_b32 s48, s14", "s_mov_b32 s49, s15")
    a("s_sub_u32 s43, s19, 9", "s_lshr_b32 s42, s43, 2", "s_and_b32 s43, s43, 3", "s_lshl_b32 s42, s42, 5", "s_lshl_b32 s43, s43, 12", "s_add_u32 s43, s43, s42")
    for kk in range(8): a(f"buffer_load_ushort v{FR+kk}, v5, s[48:51], s43 offen offset:{128*kk}")
    a("s_branch K1_FLR")
    a.label("K1_FA")
    a("v_bfe_u32 v5, v0, 3, 2", "v_and_b32 v6, 3, v0", "v_lshl_add_u32 v5, v5, 2, v6", "v_lshlrev_b32 v5, 1, v5", "s_movk_i32 s43, 16384")
    for c in range(4): a(f"buffer_load_ushort v{FR+c}, v5, s[20:23], s43 offen offset:{32*c}")
    a("s_branch K1_FLR")
    a.label("K1_FS")
    a("v_and_b32 v5, 63, v0", "v_lshlrev_b32 v5, 4, v5", "s_lshl_b32 s36, s19, 10", f"s_add_u32 s36, s36, {WS_WF}")
    a("s_cmp_eq_u32 s19, 8", "s_cbranch_scc1 K1_AE")
    for rr in range(4): a(f"v_lshl_or_b32 v{W+rr}, v{FR+2*rr+1}, 16, v{FR+2*rr}")
    a(f"buffer_store_dwordx4 {vr(W,4)}, v5, s[32:35], s36 offen", "s_branch K1_PE")
    a.label("K1_AE")
    a("v_bfe_u32 v2, v0, 2, 1", "v_bfe_u32 v3, v0, 5, 1", "v_cmp_eq_u32 vcc, v2, v3")
    for c in range(4):
        a(f"v_lshlrev_b32 v{FR+c}, 16, v{FR+c}", f"v_mul_f32 v{FR+c}, s46, v{FR+c}", f"v_cvt_pk_bf16_f32 v{FR+c}, 0, v{FR+c}", f"v_cndmask_b32 v{W+c}, 0, v{FR+c}, vcc")
    a(f"buffer_store_dwordx4 {vr(W,4)}, v5, s[32:35], s36 offen", "s_branch K1_PE")
    return a.lines

L_AGB = 0; ASTR = 144
L_QS = L_AGB + 112 * ASTR; QSTR = 272
L_CTR = L_QS + 112 * QSTR; L_OVC = L_CTR + 448; L_FLG = L_CTR + 452; L_CT2 = L_CTR + 512; L_SLOT = L_CTR + 1024; L_OVL = L_SLOT + 512
L_XS = L_OVL + 1024; L_WF = L_XS + 14336
L_ELL = L_WF + 25600; ESTR = 516; EROWS = 83
K2_LDS = L_ELL + 3 * 768 * 16 + 6144
assert K2_LDS >= L_ELL + EROWS * ESTR and L_ELL % 16 == 0 and L_XS % 256 == 0 and L_CTR % 256 == 0 and L_ELL + 512 < (1 << 17), (L_XS, L_ELL)
ZCOL = 112 * 4; DUMP = L_ELL + CAP * ESTR + 400; HCOL = 116 * 4

def gen_k2(opt):
    a = Asm(); st = Stamps(a, opt.get("stamp"), 78, 1, 12)
    perm = opt.get("perm", [0, 1, 2, 3, 10, 6, 5, 4, 11, 9, 8, 7])
    RG = opt.get("ring", 2); small = opt.get("small", 1); dp = opt.get("dprio", [8, 4, 2])
    Q, P, Z0, Z1, NN, DD, EX, BE, AL, AH, AE, IX, VI, VE, LEN, AGA, MFL, OOF, ARD, ARX = \
        8, 24, 56, 72, 88, 104, 120, 136, 140, 144, 148, 152, 154, 155, 159, 160, 161, 162, 163, 164
    WU = BE
    R = Z0
    AD = NN
    TG = DD
    W2 = Q; X = P
    SP, PP5, EH, QC, AC = DD + 8, DD + 9, DD + 10, DD + 11, DD + 12
    SWS, SPT, SX, SO = 24, 28, 32, 36
    MK = 40
    BK = "s76"
    ws = f"s[{SWS}:{SWS+3}]"
    a.label("mpnn_msg_kernel")
    a("s_cmp_ge_u32 s2, 256", "s_cbranch_scc1 K2_END")
    st.early()
    a("s_load_dwordx2 s[20:21], s[0:1], 64", "s_load_dwordx16 s[4:19], s[0:1], 0")
    a("v_lshrrev_b32 v1, 6, v0", "v_lshlrev_b32 v2, 4, v0", "v_readfirstlane_b32 s3, v1")
    for i in range(4): a(f"v_mov_b32 v{Q+i}, 0")
    a(f"v_add_u32 v4, {L_ELL}, v2")
    a("v_and_b32 v5, 255, v0", "v_lshlrev_b32 v5, 2, v5", f"v_add_u32 v6, {L_ELL}, v5", f"v_cmp_gt_u32 vcc, {NB*4}, v5")
    a(f"s_and_b32 {BK}, s2, 7", f"s_lshl_b32 {BK}, {BK}, 5", "s_lshr_b32 s64, s2, 3", f"s_add_u32 {BK}, {BK}, s64")
    a("v_cndmask_b32 v6, 0, v6, vcc", f"ds_write_b32 v5, v6 offset:{L_CTR}")
    for i in range(3): a(f"ds_write_b128 v4, {vr(Q,4)} offset:{12288*i}")
    a(f"v_lshlrev_b32 v5, 3, v0", f"v_add_u32 v5, {L_ELL + 3*12288}, v5", f"ds_write_b64 v5, {vr(Q,2)}")
    a(f"s_lshl_b32 s64, {BK}, 14", f"s_lshl_b32 s62, {BK}, 15", f"s_add_u32 s62, s62, {WS_RB}", f"s_add_u32 s64, s64, {WS_RA - 4096}", "s_add_u32 s65, s64, 8192",
      f"s_lshl_b32 s66, {BK}, 13", f"s_and_b32 s67, {BK}, 16", "s_add_u32 s66, s66, s67", f"s_add_u32 s66, s66, {WS_DA}", "s_xor_b32 s60, s66, 16",
      "s_sub_u32 s66, s66, 2048", "s_add_u32 s67, s66, 4096")
    a(f"s_mul_i32 s69, {BK}, {NB}", f"s_sub_u32 s70, {N}, s69", f"s_min_u32 s70, s70, {NB}", "s_lshl_b32 s70, s70, 7", "s_lshl_b32 s71, s69, 7")
    a("s_and_b32 s72, s3, 3", "s_lshr_b32 s73, s3, 2")
    a(f"s_mov_b32 s{SWS+2}, {WS_END}", f"s_mov_b32 s{SWS+3}, 0x20000", f"s_mov_b32 s{SX+2}, s70", f"s_mov_b32 s{SX+3}, 0x20000")
    a(f"v_and_b32 v4, 3, v0", "v_and_b32 v6, 63, v0", "v_lshlrev_b32 v6, 4, v6")
    a("v_lshlrev_b32 v3, 5, v0", "v_lshrrev_b32 v5, 2, v0", "v_lshlrev_b32 v5, 5, v5", "v_lshl_add_u32 v5, v4, 2, v5")
    a("s_cmp_eq_u32 s73, 0")
    a("s_waitcnt lgkmcnt(0)")
    st()
    if opt.get("x1"): a("s_branch K2_FIN")
    a(f"s_mov_b32 s{SWS}, s20", f"s_mov_b32 s{SWS+1}, s21")
    a("s_cbranch_scc0 K2_A1")
    a(f"buffer_load_dwordx4 {vr(TG,4)}, v3, {ws}, s60 offen")
    a(f"s_add_u32 s{SX}, s4, s71", f"s_addc_u32 s{SX+1}, s5, 0")
    a("v_bfe_u32 v7, v0, 4, 2", "v_lshlrev_b32 v7, 4, v7", "v_xor_b32 v7, v7, v6", "v_xor_b32 v5, 64, v7",
      "s_lshl_b32 s60, s3, 11", f"s_add_u32 s61, s60, {L_XS}", f"s_add_u32 m0, s60, {L_WF}", f"s_add_u32 s63, s60, {WS_WF}")
    a("s_barrier")
    sx = f"s[{SX}:{SX+3}]"
    a(f"buffer_load_dwordx4 v6, {ws}, s63 offen lds", f"buffer_load_dwordx4 v6, {ws}, s63 offen offset:1024 lds", "s_mov_b32 m0, s61", "v_lshlrev_b32 v3, 7, v0")
    a(f"buffer_load_dwordx4 v7, {sx}, s60 offen lds", f"buffer_load_dwordx4 v5, {sx}, s60 offen offset:1024 lds",
      "s_add_u32 m0, s61, 8192", "s_add_u32 s60, s60, 8192", "s_cmp_eq_u32 s3, 3", "s_cbranch_scc1 K2_A3",
      f"buffer_load_dwordx4 v7, {sx}, s60 offen lds", f"buffer_load_dwordx4 v5, {sx}, s60 offen offset:1024 lds")
    a("s_branch K2_A2")
    a.label("K2_A3")
    a(f"s_mov_b32 m0, {L_WF + 8192}", f"s_mov_b32 s60, {WS_WF + 8192}", f"buffer_load_dwordx4 v6, {ws}, s60 offen lds", "s_mov_b64 exec, 0", f"buffer_load_dwordx4 v6, {ws}, s60 offen lds", "s_mov_b64 exec, -1")
    a("s_branch K2_A2")
    a.label("K2_A1")
    a(f"buffer_load_dword v{TG}, v5, {ws}, s66 offen", f"buffer_load_dword v{TG+1}, v5, {ws}, s67 offen")
    a("s_barrier")
    a(f"buffer_load_dwordx4 {vr(R,4)}, v2, {ws}, s64 offen", f"buffer_load_dwordx4 {vr(R+4,4)}, v2, {ws}, s65 offen")
    a.label("K2_A2")
    a("s_lshl_b32 s74, s73, 11", f"s_add_u32 s75, s74, {3*2048}", f"s_add_u32 s22, s74, {6*2048}")
    srd(a, SPT, 20, 21, N, stride=128)
    a(f"s_add_u32 s{SO}, s16, s71", f"s_addc_u32 s{SO+1}, s17, 0", f"s_mov_b32 s{SO+2}, s70", f"s_mov_b32 s{SO+3}, 0x20000")
    T = Z1
    if small:
        a(f"v_and_b32 v{T}, 1, v0", f"v_lshlrev_b32 v{T}, 4, v{T}", f"v_mov_b32 v{T+1}, 0x3f80", f"v_lshlrev_b32 v{T}, v{T}, v{T+1}", "v_cmp_gt_u32 vcc, 2, v4",
          f"v_cndmask_b32 v{AL}, 0, v{T}, vcc", f"v_cndmask_b32 v{AL+1}, v{T}, 0, vcc")
    else:
        a(f"v_and_b32 v{T}, 1, v0", f"v_lshlrev_b32 v{T}, 4, v{T}", f"v_mov_b32 v{T+1}, 0x3f80", f"v_lshlrev_b32 v{T}, v{T}, v{T+1}",
          f"v_bfe_u32 v{T+1}, v0, 3, 2", f"v_bfe_u32 v{T+2}, v0, 1, 1", f"v_lshl_add_u32 v{T+1}, v{T+1}, 1, v{T+2}",
          f"v_bfe_u32 v{T+2}, v0, 2, 1", f"v_bfe_u32 v{T+3}, v0, 5, 1", f"v_xor_b32 v{T+2}, v{T+2}, v{T+3}", f"v_lshl_add_u32 v{T+1}, v{T+2}, 3, v{T+1}")
        for k in range(8): a(f"v_cmp_eq_u32 s[{MK+2*k}:{MK+2*k+1}], {k}, v{T+1}")
        for k in range(8): a(f"v_cndmask_b32 v{AL+k}, 0, v{T}, s[{MK+2*k}:{MK+2*k+1}]")
    J, QQ = T, T + 1
    a(f"v_and_b32 v{J}, 15, v0", f"v_bfe_u32 v{QQ}, v0, 4, 2", f"v_lshlrev_b32 v{OOF}, 7, v{J}",
      f"v_lshrrev_b32 v{ARX}, 1, v{J}", f"v_xor_b32 v{ARX}, v{ARX}, v{QQ}", f"v_lshl_add_u32 v{ARX}, v{ARX}, 4, v{OOF}",
      f"s_lshl_b32 s64, s72, 5", f"v_lshl_add_u32 v{OOF}, v{QQ}, 3, v{OOF}", f"v_add_u32 v{OOF}, s64, v{OOF}",
      f"s_mul_i32 s64, s73, {64*QSTR}", f"s_lshl_b32 s65, s72, 6", "s_add_u32 s64, s64, s65", f"s_add_u32 s64, s64, {L_QS - 64*QSTR}",
      f"v_mul_u32_u24 v1, {QSTR}, v{J}", f"v_lshl_add_u32 v1, v{QQ}, 4, v1", "v_add_u32 v1, s64, v1",
      f"s_lshl_b32 s64, s73, 13", f"s_add_u32 s64, s64, {L_XS - 8192}", f"v_add_u32 v2, s64, v{ARX}", "v_xor_b32 v7, 64, v2",
      f"s_lshl_b32 s64, s73, 4", f"v_add_u32 v{J}, s64, v{J}", f"v_mul_u32_u24 v{ARD}, {ASTR}, v{J}", f"v_lshl_add_u32 v{ARD}, v{QQ}, 4, v{ARD}",
      f"s_add_u32 s64, s74, {L_XS}", f"v_add_u32 v{ARX}, s64, v{ARX}")
    a(f"v_lshlrev_b32 v{IX+1}, 4, v4")
    a(f"v_mov_b32 v5, {ESTR}", f"s_movk_i32 s64, {NB*4}", f"s_mov_b32 s65, {DUMP}", "s_mov_b32 s68, 0", "s_mov_b32 s71, 0", "s_mov_b32 s70, 0")
    pk = sum(p << (4 * w) for w, p in enumerate(perm))
    a(f"s_mov_b32 s66, {pk & 0xffffffff:#x}", f"s_mov_b32 s67, {pk >> 32:#x}", "s_lshl_b32 s23, s3, 2", f"s_lshr_b64 s[66:67], s[66:67], s23",
      f"s_and_b32 s23, s66, 15", "s_lshl_b32 s23, s23, 4")
    a(f"v_bfe_u32 v{BE}, v0, 2, 4", f"v_add_u32 v{BE}, s23, v{BE}")
    a(f"v_and_b32 v{BE+2}, 1, v{BE}", f"v_cmp_gt_u32 vcc, 4, v{BE}", f"v_cmp_eq_u32 s[66:67], 0, v{BE+2}",
      f"v_lshlrev_b32 v{BE+1}, 1, v{BE}", f"v_and_b32 v{BE+1}, 0x1fc, v{BE+1}", f"v_subrev_u32 v{BE+1}, 8, v{BE+1}", f"v_lshlrev_b32 v{BE}, 2, v{BE}", f"v_add_u32 v{BE}, {(NB-4)*4}, v{BE}",
      f"s_or_b64 s[58:59], vcc, s[66:67]", f"s_andn2_b64 s[66:67], s[66:67], vcc",
      f"v_cndmask_b32 v{BE+1}, v{BE+1}, v{BE}, vcc",
      f"v_cndmask_b32 v{SP}, 1, 0, vcc", f"v_cndmask_b32 v{PP5}, v5, 0, s[58:59]", f"v_cndmask_b32 v{EH}, 0, 1, s[66:67]",
      f"v_cndmask_b32 v{MFL}, 0, 1.0, s[66:67]", f"v_mov_b32 v{BE+3}, {L_ELL + ZCOL}",
      f"v_lshlrev_b32 v{QC}, 6, v4", f"v_add_u32 v{QC}, {(L_QS - 68*L_ELL) & 0xffffffff:#x}, v{QC}", f"v_lshlrev_b32 v{AC}, 5, v4", f"v_add_u32 v{AC}, {(L_AGB - 36*L_ELL) & 0xffffffff:#x}, v{AC}")
    a(f"s_mov_b32 s66, {NLOG2E:#x}", f"s_mov_b32 s67, {NLOG2E:#x}")
    T = EX; IP = EX + 4
    for k in range(RG + 1): a(f"v_mov_b32 v{IP+2*k+1}, v{IX+1}")
    a("s_cmp_eq_u32 s73, 0", "s_cbranch_scc1 K2_CT")
    def a_round(ad, l, mk):
        for k in range(4): a(f"v_lshlrev_b32_sdwa v{ad+k}, 2, v{l} dst_sel:DWORD dst_unused:UNUSED_PAD src0_sel:DWORD src1_sel:BYTE_{k}")
        for k in range(4): a(f"v_cmp_gt_u32 s[{mk+2*k}:{mk+2*k+1}], s64, v{ad+k}")
        for k in range(4): a(f"s_mov_b64 exec, s[{mk+2*k}:{mk+2*k+1}]", f"ds_add_rtn_u32 v{ad+k}, v{ad+k}, v5 offset:{L_CTR}")
        a("s_mov_b64 exec, -1")
    stk = st.k
    ellpre = 0
    def ellw():
        for k in range(8):
            if k % 4 == 0: a(f"s_waitcnt vmcnt({1 - k//4})")
            if k == 4 and st.on == 1: a("s_memrealtime s[100:101]")
            a(f"v_min_u32 v{AD+k}, s65, v{AD+k}", f"ds_write_b32 v{AD+k}, v{R+k}")
    a(f"s_lshl_b32 s23, s72, 11", f"s_add_u32 s23, s23, {L_WF}", f"v_add_u32 v3, s23, v6", f"v_mov_b32 v{Z1+4}, 0")
    a("s_waitcnt vmcnt(2)")
    st()
    a_round(AD, TG, MK); a_round(AD + 4, TG + 1, MK + 8)
    a("s_waitcnt lgkmcnt(0)")
    if ellpre: ellw()
    a("s_barrier")
    st()
    a.label("K2_AB1")
    T = Z1 + 4
    a(f"ds_read_b32 v{T+1}, v{T} offset:{L_OVC}")
    if not ellpre: ellw()
    a("s_waitcnt lgkmcnt(4)", f"v_readfirstlane_b32 s23, v{T+1}")
    a(f"ds_read_b128 {vr(W2,4)}, v3", f"ds_read_b128 {vr(W2+4,4)}, v3 offset:1024")
    for i in range(4): a(f"ds_read_b128 {vr(X+8*i,4)}, v2 offset:{2048*i}", f"ds_read_b128 {vr(X+8*i+4,4)}, v7 offset:{2048*i}")
    a("s_andn2_b32 s23, s23, s68", "s_cbranch_scc1 K2_RESCAN")
    QT = Z1; T = EX
    def gather(slot, ix):
        p = P + 8 * slot
        return [f"buffer_load_dwordx4 {vr(p,4)}, {vr(ix,2)}, s[{SPT}:{SPT+3}], 0 idxen offen",
                f"buffer_load_dwordx4 {vr(p+4,4)}, {vr(ix,2)}, s[{SPT}:{SPT+3}], 0 idxen offen offset:64"]
    stb = st.k
    for r in range(4): a(f"v_cmp_eq_u32 s[{MK+4+2*r}:{MK+5+2*r}], {r}, v4")
    a(f"v_add_u32 v7, {L_WF + 8192}, v6")
    if st.on == 1: a("s_memrealtime s[96:97]", "s_waitcnt lgkmcnt(0)", "s_mov_b32 s97, s100")
    a("s_waitcnt lgkmcnt(%d)" % (0 if st.on == 1 else 10), "s_barrier")
    st()
    a(f"ds_read_b32 v{T}, v{BE+1} offset:{L_SLOT}", f"ds_read_b128 {vr(AE,4)}, v7", "s_waitcnt lgkmcnt(2)")
    for i in range(4): a(mf16(QT+4*i, W2, X+8*i, "0"))
    for i in range(4): a(mf16(QT+4*i, W2+4, X+8*i+4, QT+4*i))
    def slotdec():
        a("s_waitcnt lgkmcnt(1)")
        a(f"v_lshrrev_b32 v{LEN}, 17, v{T}", f"v_add_u32 v{T+1}, v{LEN}, v{SP}", f"v_and_b32 v{T}, 0x1ffff, v{T}", f"v_lshrrev_b32 v{T+1}, 1, v{T+1}", f"v_mad_u32_u24 v{VI}, v{T+1}, v{PP5}, v{T}")
        a(f"ds_read_u16 v{IP}, v{VI}")
    slotdec()
    for i in range(4):
        a(f"v_pk_mul_f32 {vr(QT+4*i,2)}, {vr(QT+4*i,2)}, s[66:67]", f"v_pk_mul_f32 {vr(QT+4*i+2,2)}, {vr(QT+4*i+2,2)}, s[66:67]")
        if i == 3: a(f"s_waitcnt lgkmcnt(3)", *gather(0, IP), "s_cmp_eq_u32 s73, 2", "s_cbranch_scc1 K2_NQ2")
        a(f"ds_write_b128 v1, {vr(QT+4*i,4)} offset:{16*QSTR*i}")
    a("s_branch K2_NQ2")
    a.label("K2_CT")
    st.k = stk
    C0, C1, H0, H1, T0, T1, HH, PS, L4, B0, B1_, LOB, HIB, HA, FOUR = [Q + i for i in range(15)]
    a(f"v_mov_b32 v{Z1+4}, {MARK:#x}", "s_lshl_b32 s60, s3, 12", f"s_add_u32 m0, s60, {L_WF + 9*1024}", f"s_add_u32 s60, s60, {WS_WF + 9*1024}")
    a(f"v_lshlrev_b32 v{L4}, 2, v0", f"v_add_u32 v{B0}, {L_ELL}, v{L4}", f"v_add_u32 v{B1_}, {L_ELL + 256}, v{L4}",
      f"v_mov_b32 v{LOB}, {(CAP-63)*ESTR}", f"v_mov_b32 v{HIB}, {CAP*ESTR}", f"v_mul_u32_u24 v{HA}, {ESTR}, v0", f"v_sub_u32 v{HA}, {L_ELL + HCOL + CAP*ESTR}, v{HA}", f"v_mov_b32 v{FOUR}, 4",
      f"s_mov_b32 s61, {L_ELL + HCOL}")
    AD2 = P + 8; AD3 = P + 24
    for k in range(16): a(f"v_mov_b32 v{AD+k}, -1")
    a("s_waitcnt vmcnt(6)")
    st()
    for j in range(4): a(f"v_cmp_ne_u32 s[{MK+2*j}:{MK+2*j+1}], -1, v{TG+j}")
    a(f"v_cmp_eq_u32 vcc, v{Z1+4}, v{TG}")
    for j in range(4): a(f"s_mov_b64 exec, s[{MK+2*j}:{MK+2*j+1}]", f"buffer_load_dwordx4 {vr(R+4*j,4)}, v3, {ws}, s62 offen offset:{16*j}")
    a("s_mov_b64 exec, -1")
    for j in range(4):
        a(f"s_cmp_eq_u64 s[{MK+2*j}:{MK+2*j+1}], 0", f"s_cbranch_scc1 K2_TS{j}")
        if j == 3: a("s_waitcnt lgkmcnt(8)")
        for k in range(4): a(f"v_lshlrev_b32_sdwa v{AD2+4*j+k}, 2, v{TG+j} dst_sel:DWORD dst_unused:UNUSED_PAD src0_sel:DWORD src1_sel:BYTE_{k}")
        for k in range(4): a(f"v_cmp_gt_u32 s[{MK+8+2*k}:{MK+9+2*k}], s64, v{AD2+4*j+k}")
        for k in range(4): a(f"s_mov_b64 exec, s[{MK+8+2*k}:{MK+9+2*k}]", f"ds_add_rtn_u32 v{AD+4*j+k}, v{AD2+4*j+k}, v5 offset:{L_CT2}")
        a("s_mov_b64 exec, -1", f"s_bitset1_b32 s70, {j}")
        a.label(f"K2_TS{j}")
    if opt.get("nowu"): a("s_mov_b64 exec, 0")
    for k in range(4): a(f"buffer_load_dwordx4 v6, {ws}, s60 offen offset:{1024*k} lds")
    if opt.get("nowu"): a("s_mov_b64 exec, -1")
    a("s_cbranch_vccnz K2_MARK")
    a.label("K2_MR")
    a("s_waitcnt vmcnt(8) lgkmcnt(0)", "s_barrier")
    st()
    a.label("K2_AB1T")
    a(f"v_and_b32 v{T0}, 0xfc, v{L4}", f"ds_read2st64_b32 {vr(C0,2)}, v{T0} offset0:{L_CTR//256} offset1:{L_CTR//256+1}", f"ds_read2st64_b32 {vr(H0,2)}, v{T0} offset0:{L_CTR//256+2} offset1:{L_CTR//256+3}", "s_setprio 3", "s_mov_b32 s56, -1", "s_mov_b32 s57, 3")
    a("s_waitcnt lgkmcnt(0)", f"v_readlane_b32 s23, v{C1}, 48", f"v_sub_u32 v{C0}, v{C0}, v{B0}", f"v_sub_u32 v{C1}, v{C1}, v{B1_}", f"v_add_u32 v{C0}, v{C0}, v{H0}", f"v_add_u32 v{C1}, v{C1}, v{H1}",
      "s_andn2_b32 s23, s23, s68", "s_cbranch_scc1 K2_RESCAN", "s_cmp_lg_u32 s3, 0", "s_cbranch_scc1 K2_TW")
    for c, h, t in ((C0, H0, T0), (C1, H1, T1)):
        if c == C1: a("s_mov_b64 exec, s[56:57]")
        a(f"v_med3_u32 v{h}, v{c}, v{LOB}, v{HIB}", f"v_add_u32 v{t}, s61, v{h}", f"ds_add_rtn_u32 v{t}, v{t}, v{FOUR}")
    a(f"v_cmp_gt_u32 s[{MK}:{MK+1}], v{C1}, v{HIB}", "s_mov_b64 exec, -1", f"ds_read_b32 v{HH}, v{HA}", f"v_cmp_gt_u32 vcc, v{C0}, v{HIB}")
    for c, h, b in ((C0, H0, B0), (C1, H1, B1_)):
        a(f"v_min_u32 v{c}, v{c}, v{HIB}", f"v_lshrrev_b32 v{c}, 2, v{c}", f"v_mul_u32_u24 v{c}, 509, v{c}", f"v_lshrrev_b32 v{c}, 16, v{c}",
          f"v_max_u32 v{h}, {CAP-63}, v{c}", f"v_sub_u32 v{h}, {CAP}, v{h}", f"v_lshlrev_b32 v{h}, 2, v{h}", f"v_lshl_or_b32 v{c}, v{c}, 17, v{b}")
    a(f"s_or_b64 vcc, vcc, s[{MK}:{MK+1}]", "s_waitcnt lgkmcnt(0)")
    a(f"v_add_u32_dpp v{PS}, v{HH}, v{HH} row_shr:1 row_mask:0xf bank_mask:0xf bound_ctrl:0")
    for k in (2, 4, 8): a(f"v_add_u32_dpp v{PS}, v{PS}, v{PS} row_shr:{k} row_mask:0xf bank_mask:0xf bound_ctrl:0")
    a(f"v_add_u32_dpp v{PS}, v{PS}, v{PS} row_bcast:15 row_mask:0xa bank_mask:0xf", f"v_add_u32_dpp v{PS}, v{PS}, v{PS} row_bcast:31 row_mask:0xc bank_mask:0xf")
    a(f"v_sub_u32 v{PS}, v{PS}, v{HH}", f"ds_bpermute_b32 v{H0}, v{H0}, v{PS}", f"ds_bpermute_b32 v{H1}, v{H1}, v{PS}")
    a(f"v_mov_b32 v{HH}, 0", "s_waitcnt lgkmcnt(1)", f"v_add_u32 v{H0}, v{H0}, v{T0}", f"ds_write_b32 v{H0}, v{C0} offset:{L_SLOT}",
      "s_waitcnt lgkmcnt(1)", "s_mov_b64 exec, s[56:57]", f"v_add_u32 v{H1}, v{H1}, v{T1}", f"ds_write_b32 v{H1}, v{C1} offset:{L_SLOT}", "s_mov_b64 exec, -1")
    a("s_cbranch_vccz K2_TW", f"ds_write_b32 v{HH}, v5 offset:{L_FLG}")
    a.label("K2_TW")
    a.label("K2_CWR")
    for r in range(4): a(f"v_cmp_eq_u32 s[{MK+4+2*r}:{MK+5+2*r}], {r}, v4")
    T = EX
    a(f"v_add_u32 v7, {L_WF + 8192}, v6")
    if st.on == 1: a("s_waitcnt lgkmcnt(0)", "s_memrealtime s[96:97]")
    a("s_waitcnt lgkmcnt(0)", "s_barrier")
    st()
    a(f"ds_read_b32 v{T}, v{BE+1} offset:{L_SLOT}", f"ds_read_b128 {vr(AE,4)}, v7")
    slotdec()
    a(f"s_waitcnt lgkmcnt(0)", *gather(0, IP))
    for j in range(4):
        a(f"s_bitcmp0_b32 s70, {j}", f"s_cbranch_scc1 K2_TR{j}")
        for k in range(4): a(f"ds_read_b32 v{AD3+k}, v{AD2+4*j+k} offset:{L_CTR}")
        for k in range(4): a(f"s_waitcnt lgkmcnt({3-k})", f"v_add_u32 v{AD+4*j+k}, v{AD+4*j+k}, v{AD3+k} clamp", f"v_min_u32 v{AD+4*j+k}, s65, v{AD+4*j+k}")
        a.label(f"K2_TR{j}")
    a("s_waitcnt vmcnt(6)")
    if st.on == 1: a("s_memrealtime s[100:101]", "s_waitcnt lgkmcnt(0)", "s_mov_b32 s97, s100")
    for j in range(4):
        a(f"s_bitcmp0_b32 s70, {j}", f"s_cbranch_scc1 K2_TW{j}")
        if j == 3: a("s_waitcnt lgkmcnt(4)")
        for k in range(4): a(f"ds_write_b32 v{AD+4*j+k}, v{R+4*j+k}")
        a.label(f"K2_TW{j}")
    a.label("K2_NQ2")
    def rde(t): return [f"ds_read_b32 v{BE+r}, v{VE+r} offset:{t*ESTR}" for r in range(4)]
    a(f"v_mov_b32 v{T+1}, 68", f"v_mad_u32_u24 v{T+2}, v{T}, v{T+1}, v{QC}")
    for r in range(4): a(f"v_cndmask_b32 v{VE+r}, v{BE+3}, v{VI}, s[{MK+4+2*r}:{MK+5+2*r}]")
    for i in range(16): a(f"v_mov_b32 v{NN+i}, 0")
    a("s_waitcnt vmcnt(2) lgkmcnt(0)", "s_barrier")
    a(f"ds_read_u16 v{T+3}, v{VI}")
    for k in range(1, RG + 1): a(f"ds_read_u16 v{IP+2*k}, v{VI} offset:{k*ESTR}")
    for k in range(4): a(f"ds_read_b128 {vr(Q+4*k,4)}, v{T+2} offset:{16*k}")
    a(*rde(0), f"ds_read_u16 v{IX}, v{VI} offset:{(RG+1)*ESTR}")
    a(f"s_waitcnt lgkmcnt({RG + 8})", f"v_cmp_ne_u32 vcc, v{T+3}, v{IP}", "s_cbranch_vccnz K2_G0R")
    a.label("K2_G0D")
    a(*gather(1, IP + 2))
    a(f"v_add_u32 v{LEN}, v{LEN}, v{EH}", f"v_lshrrev_b32 v{LEN}, v{SP}, v{LEN}", f"v_mad_u32_u24 v{AGA}, v{T}, 36, v{AC}")
    a(f"v_max_u32_dpp v{T+1}, v{LEN}, v{LEN} row_shr:4 row_mask:0xf bank_mask:0xf bound_ctrl:0")
    for i in range(8): a(f"v_mov_b32 v{DD+i}, 1.0")
    a(f"v_max_u32_dpp v{T+1}, v{T+1}, v{T+1} row_shr:8 row_mask:0xf bank_mask:0xf bound_ctrl:0")
    for i in range(8, 16): a(f"v_mov_b32 v{DD+i}, 1.0")
    a(f"v_readlane_b32 s69, v{T+1}, 15", f"v_readlane_b32 s70, v{T+1}, 31", f"v_readlane_b32 s64, v{T+1}, 47", f"v_readlane_b32 s65, v{T+1}, 63",
      "s_max_u32 s69, s69, s70", "s_max_u32 s64, s64, s65", "s_max_u32 s69, s69, s64", "s_mov_b32 s70, 0")
    a(f"s_lshl_b32 s23, s72, 12", f"s_add_u32 s23, s23, 1024", "v_add_u32 v7, s23, v7")
    a("s_cmp_eq_u32 s69, 0", "s_cbranch_scc1 K2_DONE0")
    a(f"s_waitcnt vmcnt(2) lgkmcnt(0)")
    st()
    if st.on == 1: a("s_memtime s[98:99]", "s_waitcnt lgkmcnt(0)")
    for k in range(2, RG): a(*gather(k, IP + 2*k))
    def sm(z, b, c): return f"v_mfma_f32_4x4x4_16b_bf16 {vr(z,4)}, {vr(AL,2)}, {vr(b,2)}, {vr(c,4)}"
    if small: a(*[sm(Z0+4*i, P+2*i, Q+4*i) for i in range(4)], mf32(Z0, AE, BE, Z0))
    else: a(mf32(Z0, AE, BE, Q), mf32(Z0, AL, P, Z0), mf32(Z0, AH, P + 4, Z0))
    a(*gather(0, IP + 2*RG), *rde(1), "s_nop 3")
    U = max(2, RG)
    a(f"s_branch K2_PRI{U-1}")
    a(".p2align 6")
    for u in range(U):
        a.label(f"K2_L{u}")
        zc = (Z0, Z1)[u % 2]; zn = (Z1, Z0)[u % 2]; p = P + 8 * ((u + 1) % RG)
        ex = [f"v_exp_f32 v{EX+i}, v{zc+i}" for i in range(16)]
        a(f"s_waitcnt vmcnt({2*RG-2}) lgkmcnt(0)")
        if small:
            s4 = [sm(zn+4*i, p+2*i, Q+4*i) for i in range(4)]
            a(s4[0], ex[0], s4[1], ex[1], s4[2], ex[2], s4[3], *ex[3:8], mf32(zn, AE, BE, zn), *ex[8:16])
        else: a(mf32(zn, AE, BE, Q), *ex[0:4], mf32(zn, AL, p, zn), *ex[4:8], mf32(zn, AH, p + 4, zn), *ex[8:16])
        a(*gather((u + 1) % RG, IX), *rde(u + 2), f"ds_read_u16 v{IX}, v{VI} offset:{(u+RG+2)*ESTR}")
        a(f"v_cmpx_lt_u32 vcc, s70, v{LEN}")
        for i in range(0, 16, 2): a(f"v_pk_fma_f32 {vr(NN+i,2)}, {vr(NN+i,2)}, {vr(EX+i,2)}, {vr(NN+i,2)}")
        for i in range(0, 16, 2): a(f"v_pk_fma_f32 {vr(NN+i,2)}, {vr(zc+i,2)}, {vr(DD+i,2)}, {vr(NN+i,2)}")
        for i in range(0, 16, 2): a(f"v_pk_fma_f32 {vr(DD+i,2)}, {vr(DD+i,2)}, {vr(EX+i,2)}, {vr(DD+i,2)}")
        a("s_mov_b64 exec, -1", "s_add_u32 s70, s70, 1", "s_cmp_ge_u32 s70, s64")
        if u < U - 1: a(f"s_cbranch_scc1 K2_PRI{u}")
        else:
            for rg in [VI] + [VE + r for r in range(4)]: a(f"v_add_u32 v{rg}, {U*ESTR}, v{rg}")
            a("s_cbranch_scc0 K2_L0")
    for u in list(range(U - 1, -1, -1)):
        a.label(f"K2_PRI{u}")
        nx = f"K2_L{(u+1)%U}"
        a("s_sub_u32 s65, s69, s70")
        for lv, th in zip((3, 2, 1), dp):
            a(f"s_setprio {lv}", f"s_sub_u32 s64, s69, {th}", f"s_cmp_gt_u32 s65, {th}", f"s_cbranch_scc1 {nx}")
        a("s_setprio 0", "s_mov_b32 s64, s69", "s_cmp_lg_u32 s65, 0", f"s_cbranch_scc1 {nx}")
        if u: a("s_branch K2_DONE")
    a.label("K2_DONE")
    st()
    if st.on == 1: a("s_memtime s[100:101]", "s_waitcnt lgkmcnt(0)", "s_sub_u32 s98, s100, s98")
    XF = Z0; ACC = Q
    a(f"v_xor_b32 v3, 64, v{ARX}")
    for i in range(16): a(f"v_rcp_f32 v{EX+i}, v{DD+i}")
    a("s_waitcnt lgkmcnt(0)")
    for k in range(4): a(f"ds_read_b128 {vr(WU+4*k,4)}, v7 offset:{1024*k}")
    for i in range(3): a(f"ds_read_b128 {vr(XF+8*i,4)}, v{ARX} offset:{6144*i}", f"ds_read_b128 {vr(XF+8*i+4,4)}, v3 offset:{6144*i}")
    a(f"s_mov_b32 s66, {NLN2:#x}", f"s_mov_b32 s67, {NLN2:#x}", f"s_mov_b32 s64, {f2u(2.0**120):#x}")
    for i in range(0, 16, 2): a(f"v_pk_mul_f32 {vr(NN+i,2)}, {vr(NN+i,2)}, s[66:67]")
    a(f"v_max3_f32 v2, v{DD}, v{DD+1}, v{DD+2}")
    for i in range(3, 15, 2): a(f"v_max3_f32 v2, v{DD+i}, v{DD+i+1}, v2")
    a(f"v_max_f32 v2, v{DD+15}, v2")
    for i in range(0, 16, 2): a(f"v_pk_mul_f32 {vr(NN+i,2)}, {vr(NN+i,2)}, {vr(EX+i,2)}")
    a(f"v_pk_mul_f32 {vr(DD,2)}, {vr(NN,2)}, 0")
    for i in range(2, 16, 2): a(f"v_pk_fma_f32 {vr(DD,2)}, {vr(NN+i,2)}, 0, {vr(DD,2)}")
    for i in range(16): a(f"v_fmac_f32_dpp v{NN+i}, v{NN+i}, v{MFL} row_shl:4 row_mask:0xf bank_mask:0xf bound_ctrl:0")
    a(f"v_cmp_u_f32 vcc, v{DD}, v{DD+1}", f"v_cmp_nlt_f32 s[{MK+2}:{MK+3}], v2, s64", f"s_or_b64 vcc, vcc, s[{MK+2}:{MK+3}]")
    for i in range(8): a(f"v_cvt_pk_bf16_f32 v{EX+i}, v{NN+2*i}, v{NN+2*i+1}")
    a("s_waitcnt lgkmcnt(0)", f"s_mov_b64 exec, s[58:59]", f"ds_write_b128 v{AGA}, {vr(EX,4)} offset:{L_AGB}", f"ds_write_b128 v{AGA}, {vr(EX+4,4)} offset:{L_AGB+16}")
    a("s_mov_b64 exec, vcc", "v_mov_b32 v2, 0", f"ds_write_b32 v2, v5 offset:{L_FLG}", "s_mov_b64 exec, -1")
    a(f"s_mov_b32 s66, {NLOG2E:#x}", f"s_mov_b32 s67, {NLOG2E:#x}", "v_mov_b32 v2, 0")
    for i in range(3): a(mf16(ACC+4*i, WU, XF+8*i, "0"))
    for i in range(3): a(mf16(ACC+4*i, WU+4, XF+8*i+4, ACC+4*i))
    a("s_waitcnt lgkmcnt(0)", "s_barrier")
    st()
    a.label("K2_EPI")
    B = Z0; O = EX; TT = NN; WU2 = WU + 8
    a(f"ds_read_b32 v3, v2 offset:{L_FLG}")
    for i in range(3):
        for s in range(2): a(f"ds_read_b128 {vr(B+8*i+4*s,4)}, v{ARD} offset:{L_AGB + 48*ASTR*i + 64*s}")
    a("s_waitcnt lgkmcnt(6)", "v_readfirstlane_b32 s23, v3", "s_andn2_b32 s23, s23, s71", "s_cbranch_scc1 K2_BF")
    def epi_tile(i):
        o = O + 4 * i; t = TT + 4 * i
        a(f"v_pk_mul_f32 {vr(t,2)}, {vr(o,2)}, s[66:67]", f"v_pk_mul_f32 {vr(t+2,2)}, {vr(o+2,2)}, s[66:67]")
        for k in range(4): a(f"v_exp_f32 v{t+k}, v{t+k}")
        a(f"v_pk_add_f32 {vr(t,2)}, {vr(t,2)}, 1.0 op_sel_hi:[1,0]", f"v_pk_add_f32 {vr(t+2,2)}, {vr(t+2,2)}, 1.0 op_sel_hi:[1,0]")
        for k in range(4): a(f"v_rcp_f32 v{t+k}, v{t+k}")
        a(f"v_pk_mul_f32 {vr(t,2)}, {vr(t,2)}, {vr(o,2)}", f"v_pk_mul_f32 {vr(t+2,2)}, {vr(t+2,2)}, {vr(o+2,2)}")
        a(f"v_cvt_pk_bf16_f32 v{o}, v{t}, v{t+1}", f"v_cvt_pk_bf16_f32 v{o+1}, v{t+2}, v{t+3}")
        a(f"buffer_store_dwordx2 {vr(o,2)}, v{OOF}, s[{SO}:{SO+3}], {('s74','s75','s22')[i]} offen")
    for i in range(3):
        a(f"s_waitcnt lgkmcnt({4-2*i})", mf16(O+4*i, WU2, B+8*i, ACC+4*i), mf16(O+4*i, WU2+4, B+8*i+4, O+4*i))
    epi_tile(0); epi_tile(1)
    a("s_cmp_lg_u32 s73, 0", "s_cbranch_scc1 K2_FIN")
    epi_tile(2)
    a.label("K2_FIN")
    if st.on: a("s_waitcnt vmcnt(0)")
    st.flush(20, 3, 2, 3)
    a.label("K2_END")
    a("s_endpgm")

    a.label("K2_G0R")
    a(f"v_mov_b32 v{IP}, v{EX+3}", *gather(0, IP), "s_branch K2_G0D")
    a.label("K2_DONE0")
    a("s_waitcnt vmcnt(0) lgkmcnt(0)", "s_branch K2_DONE")
    a.label("K2_MARK")
    T = Z1
    a("s_mov_b64 exec, vcc", f"v_mov_b32 v{T}, 0", f"v_mov_b32 v{T+1}, 1", f"ds_add_rtn_u32 v{T}, v{T}, v{T+1} offset:{L_OVC}", "s_waitcnt lgkmcnt(0)",
      f"v_and_b32 v{T}, 255, v{T}", f"v_lshlrev_b32 v{T}, 2, v{T}", f"ds_write_b32 v{T}, v0 offset:{L_OVL}", "s_mov_b64 exec, -1", "s_branch K2_MR")

    SD, SS, SE = 40, 44, 48
    a.label("K2_RESCAN")
    srd(a, SD, 10, 11, E * 4); srd(a, SS, 8, 9, E * 4); srd(a, SE, 6, 7, E * 2)
    a("s_mov_b32 s52, 0", f"s_mul_i32 s53, {BK}, {NB}", "s_min_u32 s23, s23, 256", "s_waitcnt lgkmcnt(0)")
    a.label("K2_RS1")
    T = Z1 + 8
    a("s_lshl_b32 s54, s52, 2", f"v_mov_b32 v{T}, s54", f"ds_read_b32 v{T}, v{T} offset:{L_OVL}", "s_waitcnt lgkmcnt(0)", f"v_readfirstlane_b32 s54, v{T}",
      "s_and_b32 s55, s54, 31", "s_lshl_b32 s55, s55, 3", "s_lshr_b32 s54, s54, 5", "s_add_u32 s54, s54, s55",
      f"s_mul_i32 s54, s54, {CH}", f"s_sub_u32 s55, {E}, s54", f"s_min_u32 s55, s55, {CH}",
      f"v_mov_b32 v{T}, v0")
    a.label("K2_RS2")
    a(f"v_add_u32 v{T+1}, s54, v{T}", f"v_lshlrev_b32 v{T+2}, 1, v{T+1}", f"v_lshlrev_b32 v{T+1}, 2, v{T+1}",
      f"buffer_load_dword v{T+3}, v{T+1}, s[{SD}:{SD+3}], 0 offen", f"buffer_load_dword v{T+4}, v{T+1}, s[{SS}:{SS+3}], 0 offen",
      f"buffer_load_ushort v{T+5}, v{T+2}, s[{SE}:{SE+3}], 0 offen", "s_waitcnt vmcnt(0)",
      f"v_subrev_u32 v{T+3}, s53, v{T+3}", f"v_cmp_gt_u32 vcc, {NB}, v{T+3}", f"v_cmp_gt_u32 s[56:57], s55, v{T}", "s_and_b64 exec, vcc, s[56:57]",
      f"v_lshlrev_b32 v{T+3}, 2, v{T+3}", f"ds_add_rtn_u32 v{T+3}, v{T+3}, v5 offset:{L_CTR}", f"v_lshl_or_b32 v{T+4}, v{T+5}, 16, v{T+4}",
      "s_waitcnt lgkmcnt(0)", f"v_min_u32 v{T+3}, s65, v{T+3}", f"ds_write_b32 v{T+3}, v{T+4}", "s_mov_b64 exec, -1",
      f"v_add_u32 v{T}, 768, v{T}", f"v_cmp_gt_u32 vcc, s55, v{T}", "s_cbranch_vccnz K2_RS2")
    a("s_add_u32 s52, s52, 1", "s_cmp_lt_u32 s52, s23", "s_cbranch_scc1 K2_RS1")
    a("s_mov_b32 s68, -1", "s_waitcnt lgkmcnt(0)", "s_barrier", "s_cmp_eq_u32 s73, 0", "s_cbranch_scc1 K2_AB1T", "s_branch K2_AB1")

    a.label("K2_BF")
    T = Z0
    a("s_waitcnt vmcnt(0) lgkmcnt(0)")
    srd(a, SD, 10, 11, E * 4); srd(a, SS, 8, 9, E * 4); srd(a, SE, 6, 7, E * 2); srd(a, 52, 12, 13, 129 * 128)
    for i in range(4): a(f"v_mov_b32 v{T+i}, 0")
    a(f"v_lshlrev_b32 v{T+4}, 4, v0", f"v_add_u32 v{T+4}, {L_ELL}, v{T+4}")
    for i in range(3): a(f"ds_write_b128 v{T+4}, {vr(T,4)} offset:{12288*i}")
    LN, F4, F2, PO, W3 = T + 4, T + 5, T + 6, T + 7, T + 8
    a(f"v_and_b32 v{LN}, 63, v0", f"v_lshlrev_b32 v{F4}, 2, v{LN}", f"v_lshlrev_b32 v{F2}, 1, v{LN}",
      f"v_and_b32 v{PO}, 8, v{LN}", f"v_lshlrev_b32 v{PO}, 3, v{PO}", f"v_and_b32 v{T}, 48, v{LN}", f"v_add_u32 v{PO}, v{PO}, v{T}",
      f"v_and_b32 v{T}, 7, v{LN}", f"v_lshl_add_u32 v{PO}, v{T}, 1, v{PO}",
      "s_movk_i32 s56, 16384", f"buffer_load_ushort v{W3}, v{F2}, s[52:55], s56 offen", "s_waitcnt vmcnt(0) lgkmcnt(0)",
      f"v_lshlrev_b32 v{W3}, 16, v{W3}", f"v_mul_f32 v{W3}, s66, v{W3}",
      f"s_mul_i32 s57, {BK}, {NB}", "s_mov_b32 s56, s3", "s_barrier")
    a.label("K2_BF1")
    DV, SV, EV = T + 9, T + 10, T + 11
    a("s_lshl_b32 s58, s56, 8", "s_lshl_b32 s59, s56, 7",
      f"buffer_load_dword v{DV}, v{F4}, s[{SD}:{SD+3}], s58 offen", "s_waitcnt vmcnt(0)",
      f"v_subrev_u32 v{DV}, s57, v{DV}", f"v_cmp_gt_u32 vcc, {NB}, v{DV}", "s_cbranch_vccz K2_BF3",
      f"buffer_load_dword v{SV}, v{F4}, s[{SS}:{SS+3}], s58 offen", f"buffer_load_ushort v{EV}, v{F2}, s[{SE}:{SE+3}], s59 offen",
      "s_mov_b64 s[60:61], vcc", "s_waitcnt vmcnt(0)")
    a.label("K2_BF2")
    a("s_ff1_i32_b64 s58, s[60:61]", "s_bitset0_b64 s[60:61], s58",
      f"v_readlane_b32 s59, v{SV}, s58", f"v_readlane_b32 s62, v{DV}, s58", f"v_readlane_b32 s63, v{EV}, s58",
      "s_min_u32 s59, s59, %d" % (N - 1), "s_lshl_b32 s59, s59, 7", f"buffer_load_ushort v{T}, v{PO}, s[{SWS}:{SWS+3}], s59 offen",
      f"s_mul_i32 s58, s62, {QSTR}", f"v_add_u32 v{T+1}, s58, v{F4}", f"ds_read_b32 v{T+1}, v{T+1} offset:{L_QS}",
      "s_lshl_b32 s63, s63, 16", "s_lshl_b32 s62, s62, 8", f"s_add_u32 s62, s62, {L_ELL}", f"v_add_u32 v{T+2}, s62, v{F4}",
      "s_waitcnt vmcnt(0) lgkmcnt(0)",
      f"v_lshlrev_b32 v{T}, 16, v{T}", f"v_add_f32 v{T}, v{T}, v{T+1}", f"v_fma_f32 v{T}, s63, v{W3}, v{T}",
      f"v_exp_f32 v{T+1}, v{T}", f"v_add_f32 v{T+1}, 1.0, v{T+1}", f"v_rcp_f32 v{T+1}, v{T+1}", f"v_mul_f32 v{T}, {NLN2:#x}, v{T}", f"v_mul_f32 v{T}, v{T}, v{T+1}",
      f"ds_add_f32 v{T+2}, v{T}", "s_cmp_lg_u64 s[60:61], 0", "s_cbranch_scc1 K2_BF2")
    a.label("K2_BF3")
    a("s_add_u32 s56, s56, 12", f"s_cmp_lt_u32 s56, {E//64}", "s_cbranch_scc1 K2_BF1")
    a("s_waitcnt lgkmcnt(0)", "s_barrier", f"v_mov_b32 v{T+4}, v0")
    a.label("K2_BF4")
    a(f"v_lshlrev_b32 v{T+5}, 3, v{T+4}", f"v_add_u32 v{T+5}, {L_ELL}, v{T+5}", f"ds_read_b64 {vr(T,2)}, v{T+5}",
      f"v_lshrrev_b32 v{T+5}, 5, v{T+4}", f"v_mul_u32_u24 v{T+5}, {ASTR}, v{T+5}", f"v_and_b32 v{T+6}, 31, v{T+4}", f"v_lshl_add_u32 v{T+5}, v{T+6}, 2, v{T+5}",
      "s_waitcnt lgkmcnt(0)", f"v_cvt_pk_bf16_f32 v{T}, v{T}, v{T+1}", f"ds_write_b32 v{T+5}, v{T} offset:{L_AGB}",
      f"v_add_u32 v{T+4}, 768, v{T+4}", f"v_cmpx_gt_u32 vcc, {NB*32}, v{T+4}", "s_cbranch_execnz K2_BF4")
    a("s_mov_b64 exec, -1", "s_mov_b32 s71, -1", "s_waitcnt lgkmcnt(0)", "s_barrier", "s_branch K2_EPI")
    return a.lines

def kd(name, vg, sg=102):
    return f""".amdhsa_kernel {name}
  .amdhsa_next_free_vgpr {vg}
  .amdhsa_next_free_sgpr {sg}
  .amdhsa_accum_offset {vg}
  .amdhsa_group_segment_fixed_size 0
  .amdhsa_kernarg_size 72
  .amdhsa_user_sgpr_count 2
  .amdhsa_user_sgpr_kernarg_segment_ptr 1
  .amdhsa_system_sgpr_workgroup_id_x 1
.end_amdhsa_kernel"""

def build(opt=None):
    opt = opt or {}
    out = ["; mpnn edge MLP: K1 bins edges by destination bucket and builds the P' table, K2 aggregates and updates",
           f"; @launch kernel=mpnn_bin_kernel grid=(256,1,1) block=(1024,1,1) lds={K1_LDS}",
           f"; @launch kernel=mpnn_msg_kernel grid=(256,1,1) block=(768,1,1) lds={K2_LDS}",
           '.amdgcn_target "amdgcn-amd-amdhsa--gfx950"', ".text"]
    for name, fn in (("mpnn_bin_kernel", gen_k1), ("mpnn_msg_kernel", gen_k2)):
        lines, nn = fix_hazards(fn(opt), verbose=opt.get("verbose"))
        out += [f".globl {name}", ".p2align 8", f".type {name},@function"] + lines
    out += ['.section .rodata,"a"', ".p2align 6", kd("mpnn_bin_kernel", 128), ".p2align 6", kd("mpnn_msg_kernel", 168)]
    return "\n".join(out) + "\n"

if __name__ == "__main__":
    import argparse
    ap = argparse.ArgumentParser(); ap.add_argument("-o", default="standalone__mpnn_edge_mlp__graph.s")
    ap.add_argument("--stamp", type=int, default=0); ap.add_argument("-v", action="store_true"); ap.add_argument("--opt", default="{}")
    g = ap.parse_args()
    open(g.o, "w").write(build({"stamp": g.stamp, "verbose": g.v, **eval(g.opt)}))
```

```python
import sys, struct, math
sys.path.insert(0, "gen")
from asmlib import *

N = 25000; E = 800000; NB = 98; CH = 3128; CAP = 72
WS_RA = 0x400000; WS_DA = 0x800000; WS_RB = 0xA00000; WS_WF = 0x380000; WS_END = WS_RB + 0x800000
MARK = 0xFEFEFEFE
WS_STAMP = 0x1400000
f2u = lambda f: struct.unpack("<I", struct.pack("<f", f))[0]
NLOG2E = f2u(-1.4426950408889634); NLN2 = f2u(-0.6931471805599453)
NTILE = (N + 15) // 16

def mf16(d, a, b, c): return f"v_mfma_f32_16x16x32_bf16 {vr(d,4)}, {vr(a,4)}, {vr(b,4)}, {c if isinstance(c,str) else vr(c,4)}"
def mf32(d, a, b, c): return f"v_mfma_f32_32x32x16_bf16 {vr(d,16)}, {vr(a,4)}, {vr(b,4)}, {vr(c,16)}"

class Stamps:
    def __init__(self, a, on, base, kidx, nw): self.a = a; self.on = on; self.base = base; self.k = 0; self.kidx = kidx; self.nw = nw
    def __call__(self):
        if not self.on: return
        r = self.base + 2 * self.k; self.k += 1
        if self.on == 3 and (self.k - 1) not in ((0, 5), (0, 1, 7, 8))[self.kidx]: return
        self.a(f"s_waitcnt lgkmcnt(0)", f"s_memrealtime s[{r}:{r+1}]", "s_waitcnt lgkmcnt(0)")
    def early(self):
        if not self.on: return
        r = self.base + 2 * self.k; self.k += 1
        self.a(f"s_memrealtime s[{r}:{r+1}]")
    def flush(self, ws, wave, t0, t1):
        if not self.on: return
        a = self.a
        self()
        a("s_mov_b64 exec, -1")
        a(f"v_mov_b32 v{t0}, 0")
        for k in range(self.k): a(f"v_writelane_b32 v{t0}, s{self.base+2*k}, {k}")
        if self.kidx == 1: a(f"v_writelane_b32 v{t0}, s98, 13", f"v_writelane_b32 v{t0}, s96, 12", f"v_writelane_b32 v{t0}, s97, 11", f"v_writelane_b32 v{t0}, s69, 15", f"s_getreg_b32 s69, hwreg(HW_REG_HW_ID)", f"v_writelane_b32 v{t0}, s69, 14")
        if self.on == 2 and self.kidx == 1:
            b = self.base
            a(f"s_add_u32 s{b}, s2, s{wave}", f"s_cmp_lg_u32 s{b}, 0", f"s_cbranch_scc1 STK{self.kidx}",
              f"s_load_dwordx2 s[{b}:{b+1}], s[0:1], 56", f"v_and_b32 v{t1}, 63, v0", f"v_lshlrev_b32 v{t1}, 2, v{t1}",
              f"v_add_u32 v{t1+1}, {WS_STAMP}, v{t1}", f"global_load_dword v{t1+1}, v{t1+1}, s[{ws}:{ws+1}]",
              "s_waitcnt vmcnt(0) lgkmcnt(0)", f"s_mov_b64 exec, 0x3ff", f"global_store_dword v{t1}, v{t0}, s[{b}:{b+1}] offset:24",
              f"s_mov_b64 exec, 0x3f", f"global_store_dword v{t1}, v{t1+1}, s[{b}:{b+1}]")
            a.label(f"STK{self.kidx}")
            return
        a(f"s_mul_i32 s{self.base}, s2, {self.nw}", f"s_add_u32 s{self.base}, s{self.base}, s{wave}", f"s_lshl_b32 s{self.base}, s{self.base}, 6",
          f"s_add_u32 s{self.base}, s{self.base}, {WS_STAMP + self.kidx * 0x100000}",
          f"v_and_b32 v{t1}, 63, v0", f"v_lshlrev_b32 v{t1}, 2, v{t1}", f"v_add_u32 v{t1}, s{self.base}, v{t1}",
          "s_mov_b64 exec, 0xffff", f"global_store_dword v{t1}, v{t0}, s[{ws}:{ws+1}]")

def srd(a, r, lo, hi, num, stride=0):
    a(f"s_mov_b32 s{r}, s{lo}")
    if stride: a(f"s_or_b32 s{r+1}, s{hi}, {stride << 16:#x}")
    else: a(f"s_mov_b32 s{r+1}, s{hi}")
    a(f"s_mov_b32 s{r+2}, {num}", f"s_mov_b32 s{r+3}, 0x20000")

K1_DA = 32768; K1_CNT = 40960; K1_LDS = K1_CNT + 1024
def gen_k1(opt):
    a = Asm(); st = Stamps(a, opt.get("stamp"), 70, 0, 16)
    a.label("mpnn_bin_kernel")
    if opt.get("cpf") == 2:
        a("s_getpc_b64 s[48:49]", "v_lshlrev_b32 v54, 7, v0", "v_min_u32 v54, K2_END-mpnn_bin_kernel-4, v54", "global_load_dword v55, v54, s[48:49]")
    a("s_cmp_ge_u32 s2, 256", "s_cbranch_scc1 K1_END")
    a("s_load_dwordx8 s[4:11], s[0:1], 0", "s_load_dwordx4 s[12:15], s[0:1], 32", "s_load_dwordx2 s[16:17], s[0:1], 64")
    a("v_lshrrev_b32 v1, 6, v0", "v_lshlrev_b32 v7, 4, v0", "v_readfirstlane_b32 s3, v1", "v_lshlrev_b32 v4, 3, v0")
    a("v_mov_b32 v46, -1", "v_mov_b32 v47, -1", f"ds_write_b64 v4, v[46:47] offset:{K1_DA}",
      "v_and_b32 v45, 255, v0", "v_lshlrev_b32 v44, 2, v45", "v_lshlrev_b32 v45, 5, v45", f"ds_write_b32 v44, v45 offset:{K1_CNT}")
    a("s_and_b32 s40, s2, 7", "s_lshr_b32 s41, s2, 3")
    a(f"s_mov_b32 s34, {WS_END}", "s_mov_b32 s35, 0x20000")
    CO = 44
    def co_addr():
        a("s_lshl_b32 s42, s40, 5", "s_add_u32 s42, s42, s41",
          "s_lshl_b32 s43, s42, 5", f"s_add_u32 s43, s43, {WS_DA}", "s_lshl_b32 s44, s42, 7", "s_lshl_b32 s42, s42, 6", f"s_add_u32 s44, s44, {WS_RB}", f"s_add_u32 s42, s42, {WS_RA}")
        a(f"v_lshrrev_b32 v{CO+6}, 2, v0", f"v_and_b32 v{CO+5}, 3, v0", f"v_lshlrev_b32 v{CO+1}, 13, v{CO+6}", f"v_lshl_add_u32 v{CO+1}, v{CO+5}, 3, v{CO+1}", f"v_lshlrev_b32 v{CO}, 1, v{CO+1}", f"v_lshl_add_u32 v{CO+8}, v{CO+6}, 14, v{CO}",
          f"v_lshlrev_b32 v{CO+2}, 7, v{CO+6}", f"v_lshl_add_u32 v{CO+2}, v{CO+5}, 4, v{CO+2}", f"v_and_b32 v{CO+3}, 64, v0", f"v_add_u32 v{CO+2}, v{CO+2}, v{CO+3}", f"v_xor_b32 v{CO+3}, 64, v{CO+2}",
          f"v_bfe_u32 v{CO+4}, v0, 4, 2", f"v_xor_b32 v{CO+5}, v{CO+5}, v{CO+4}", f"v_lshlrev_b32 v{CO+6}, 5, v{CO+6}", f"v_lshl_add_u32 v{CO+5}, v{CO+5}, 2, v{CO+6}", f"v_add_u32 v{CO+5}, 16, v{CO+5}",
          *([f"v_add_u32 v{CO+5}, 16, v{CO+6}"] if opt.get("bfull", 1) else []), f"v_add_u32 v{CO+6}, 32, v{CO+6}", f"v_and_b32 v{CO+4}, 0x3fc, v0", f"v_lshlrev_b32 v{CO+7}, 3, v0")
    a("s_cmp_ge_u32 s3, 13", "s_cbranch_scc1 K1_P")
    DST, SRC, EE, B, DL, S, LIM, REC = 8, 12, 16, 20, 24, 28, 32, 36
    a(f"s_mul_i32 s18, s2, {CH}", f"s_sub_u32 s19, {E}, s18", f"s_min_u32 s19, s19, {CH}", "s_lshl_b32 s36, s18, 2", "s_lshl_b32 s37, s18, 1")
    for r, n in ((20, E * 4), (24, E * 4), (28, E * 2)): a(f"s_mov_b32 s{r+2}, {n}", f"s_mov_b32 s{r+3}, 0x20000")
    a("v_lshlrev_b32 v1, 2, v0", "v_cmp_gt_u32 vcc, s19, v1")
    if opt.get("cpf") == 1:
        a("s_cmp_lg_u32 s3, 12", "s_cbranch_scc1 K1_NPF", "s_getpc_b64 s[48:49]")
        a.label("K1_PC")
        a("s_add_u32 s48, s48, mpnn_msg_kernel-K1_PC", "s_addc_u32 s49, s49, 0", "v_and_b32 v54, 63, v0", "v_lshlrev_b32 v54, 7, v54",
          "v_min_u32 v54, K2_END-mpnn_msg_kernel, v54", "global_load_dword v55, v54, s[48:49]")
        a.label("K1_NPF")
    a("s_waitcnt lgkmcnt(0)")
    st()
    a("s_mov_b32 s20, s10", "s_mov_b32 s21, s11", f"buffer_load_dwordx4 {vr(DST,4)}, v7, s[20:23], s36 offen {opt.get('lflag', '')}")
    a("s_mov_b32 s24, s8", "s_mov_b32 s25, s9", "s_mov_b32 s28, s6", "s_mov_b32 s29, s7", "s_mov_b32 s32, s16", "s_mov_b32 s33, s17")
    a("s_barrier")
    a(f"buffer_load_dwordx4 {vr(SRC,4)}, v7, s[24:27], s36 offen {opt.get('lflag', '')}", f"buffer_load_dwordx2 {vr(EE,2)}, v4, s[28:31], s37 offen {opt.get('lflag', '')}")
    co_addr()
    if opt.get("tlb"):
        a("s_cmp_lg_u32 s3, 12", "s_cbranch_scc1 K1_NT", "v_and_b32 v54, 63, v0", f"v_mul_u32_u24 v54, {opt['tlb']}, v54", "buffer_load_dword v55, v54, s[32:35], 0 offen", "s_waitcnt vmcnt(1)")
        a.label("K1_NT")
    a("v_mov_b32 v6, 1", "s_movk_i32 s38, -98", "s_mov_b32 s39, 0xffff0000")
    a("s_mov_b64 exec, vcc", "s_cbranch_execz K1_B1")
    a("s_waitcnt vmcnt(2)")
    st()
    for i in range(4):
        a(f"v_mul_u32_u24 v{B+i}, 21400, v{DST+i}", f"v_lshrrev_b32 v{B+i}, 21, v{B+i}", f"v_lshlrev_b32 v{S+i}, 2, v{B+i}",
          f"ds_add_rtn_u32 v{S+i}, v{S+i}, v6 offset:{K1_CNT}")
    for i in range(4): a(f"v_mad_i32_i24 v{DL+i}, v{B+i}, s38, v{DST+i}", f"v_lshl_or_b32 v{LIM+i}, v{B+i}, 5, 31", f"v_and_b32 v{B+i}, 31, v{B+i}")
    for i in range(4):
        a(f"s_waitcnt lgkmcnt(3)", f"v_min_u32 v{S+i}, v{S+i}, v{LIM+i}", f"v_xor_b32 v{S+i}, v{S+i}, v{B+i}", f"ds_write_b8 v{S+i}, v{DL+i} offset:{K1_DA}")
    for i in range(4): a(f"v_lshlrev_b32 v{LIM+i}, 2, v{S+i}")
    a("s_waitcnt vmcnt(0)")
    st()
    if opt.get("smask"):
        for i in range(4): a(f"v_and_b32 v{SRC+i}, {opt['smask']}, v{SRC+i}")
    for i in range(4):
        if i % 2 == 0: a(f"v_lshl_or_b32 v{REC+i}, v{EE+i//2}, 16, v{SRC+i}")
        else: a(f"v_and_or_b32 v{REC+i}, v{EE+i//2}, s39, v{SRC+i}")
        a(f"ds_write_b32 v{LIM+i}, v{REC+i}")
    a.label("K1_B1")
    a("s_mov_b64 exec, -1")
    st.k = 3; st()
    a("s_waitcnt lgkmcnt(0)", "s_barrier")
    st()
    a(f"ds_read_b128 v[8:11], v{CO+2}", f"ds_read_b32 v18, v{CO+4} offset:{K1_CNT}", f"ds_read_b64 v[16:17], v{CO+7} offset:{K1_DA}", f"ds_read_b128 v[12:15], v{CO+3}")
    a("s_waitcnt lgkmcnt(3)", f"buffer_store_dwordx4 v[8:11], v{CO}, s[32:35], s42 offen {opt.get('dflag', '')}")
    a("s_waitcnt lgkmcnt(1)", f"v_cmp_gt_u32 vcc, v18, v{CO+6}", f"v_cmp_gt_u32 s[46:47], v18, v{CO+5}", "s_cbranch_vccnz K1_OV")
    a.label("K1_OVR")
    x = opt.get("x1", "")
    if "d" not in x: a(f"buffer_store_dwordx2 v[16:17], v{CO+1}, s[32:35], s43 offen {opt.get('dflag', '')}")
    if "b" not in x: a("s_mov_b64 exec, s[46:47]", "s_waitcnt lgkmcnt(0)", f"buffer_store_dwordx4 v[12:15], v{CO+8}, s[32:35], s44 offen", *([] if opt.get("bhalf", 1) else [f"buffer_store_dwordx4 v[8:11], v{CO+8}, s[32:35], s44 offen offset:64"]))
    if st.on: a("s_waitcnt vmcnt(0)")
    st.flush(16, 3, 20, 21)
    if opt.get("kp"):
        a("s_mov_b64 exec, -1", f"s_mul_i32 s45, s41, {782*128}", "v_lshlrev_b32 v60, 7, v0", f"v_cmp_gt_u32 vcc, {opt['kp']}, v0", "s_and_b64 exec, exec, vcc", "s_cbranch_execz K1_END", "buffer_load_dword v61, v60, s[32:35], s45 offen")
    a.label("K1_END")
    a("s_endpgm")
    a.label("K1_OV")
    a(f"v_mov_b32 v18, {MARK:#x}", "v_cndmask_b32 v16, v16, v18, vcc", "v_cndmask_b32 v17, v17, v18, vcc", "s_branch K1_OVR")
    W, A, X, D, O, FR = 8, 40, 72, 96, 112, 120
    a.label("K1_P")
    a("v_and_b32 v1, 15, v0", "v_bfe_u32 v2, v0, 4, 2",
      "v_lshlrev_b32 v3, 10, v2", "v_lshl_add_u32 v5, v1, 1, v3", "v_lshl_add_u32 v3, v1, 3, v3",
      "v_lshlrev_b32 v4, 7, v1", "v_lshl_add_u32 v4, v2, 4, v4")
    a("s_mul_i32 s18, s41, 3", "s_add_u32 s18, s18, s3", "s_sub_u32 s18, s18, 13",
      "s_mul_i32 s36, s40, 196", "s_add_u32 s36, s36, s18",
      "s_lshl_b32 s36, s36, 11", f"s_add_u32 s37, s36, {96*2048}", f"s_add_u32 s38, s36, {192*2048}", "s_movk_i32 s39, 4096")
    for r, n in ((20, 129 * 128), (24, N * 128), (28, N * 128), (48, 128 * 128)): a(f"s_mov_b32 s{r+2}, {n}", f"s_mov_b32 s{r+3}, 0x20000")
    a("s_sub_u32 s19, s2, 16", "s_cmp_eq_u32 s3, 15", "s_cselect_b32 s19, s19, 100")
    a("s_waitcnt lgkmcnt(0)")
    st.k = 0; st()
    a("s_mov_b32 s24, s4", "s_mov_b32 s25, s5", "s_mov_b32 s20, s12", "s_mov_b32 s21, s13")
    a("s_cmp_le_u32 s19, 24", "s_cbranch_scc1 K1_FL")
    a.label("K1_FLR")
    for i in range(2):
        for s in range(2): a(f"buffer_load_dwordx4 {vr(X+8*i+4*s,4)}, v4, s[24:27], s{36+i} offen offset:{64*s} {opt.get('xflag', '')}")
    for s in range(2):
        for kk in range(8): a(f"buffer_load_dwordx2 {vr(W+16*s+2*kk,2)}, v3, s[20:23], {'s39' if s else '0'} offen offset:{128*kk}")
    a("s_cmp_lt_u32 s18, 4", "s_cselect_b64 exec, -1, 0")
    for s in range(2): a(f"buffer_load_dwordx4 {vr(X+16+4*s,4)}, v4, s[24:27], s38 offen offset:{64*s}")
    a("s_mov_b64 exec, -1")
    a("s_barrier")
    a("s_mov_b32 s28, s16", "s_mov_b32 s29, s17", "s_mov_b32 s32, s16", "s_mov_b32 s33, s17")
    a("s_mov_b32 s44, 0x05040100", "s_mov_b32 s45, 0x07060302", f"s_mov_b32 s46, {NLOG2E:#x}", f"s_mov_b32 s47, {NLOG2E:#x}")
    a("s_waitcnt vmcnt(2)")
    st()
    for tau in range(4):
        for s in range(2):
            for rr in range(4):
                a(f"v_perm_b32 v{A+8*tau+4*s+rr}, v{W+16*s+2*(2*rr+1)+tau//2}, v{W+16*s+2*(2*rr)+tau//2}, s{44+tau%2}")
    for i in range(3):
        if i == 2:
            a(f"s_cmp_ge_u32 s18, 4", "s_cbranch_scc1 K1_PD", "s_waitcnt vmcnt(4)")
        for tau in range(4): a(mf16(D+4*tau, A+8*tau, X+8*i, "0"))
        for tau in range(4): a(mf16(D+4*tau, A+8*tau+4, X+8*i+4, D+4*tau))
        for k in range(0, 16, 2): a(f"v_pk_mul_f32 {vr(D+k,2)}, {vr(D+k,2)}, s[46:47]")
        for r in range(4):
            for h in range(2): a(f"v_cvt_pk_bf16_f32 v{O+2*r+h}, v{D+4*(2*h)+r}, v{D+4*(2*h+1)+r}")
        a(f"buffer_store_dwordx4 {vr(O,4)}, v4, s[28:31], s{36+i} offen {opt.get('pflag', '')}", f"buffer_store_dwordx4 {vr(O+4,4)}, v4, s[28:31], s{36+i} offen offset:64 {opt.get('pflag', '')}")
    a.label("K1_PD")
    st()
    a("s_cmp_le_u32 s19, 24", "s_cbranch_scc1 K1_FS")
    a.label("K1_PE")
    if opt.get("cpf", 3) == 3:
        a("s_lshr_b32 s19, s2, 5", "s_add_u32 s19, s19, s3", "s_cmp_lg_u32 s19, 18", "s_cbranch_scc1 K1_NPF", "s_getpc_b64 s[48:49]")
        a.label("K1_PC")
        a("s_add_u32 s48, s48, mpnn_msg_kernel-K1_PC", "s_addc_u32 s49, s49, 0", "v_and_b32 v54, 63, v0", "v_lshlrev_b32 v54, 7, v54",
          "v_min_u32 v54, K2_END-mpnn_msg_kernel, v54", "global_load_dword v55, v54, s[48:49]")
        a.label("K1_NPF")
    co_addr()
    a("s_branch K1_B1")
    a.label("K1_FL")
    a("s_cmp_eq_u32 s19, 8", "s_cbranch_scc1 K1_FA", "s_cmp_gt_u32 s19, 8", "s_cbranch_scc1 K1_FU")
    a("s_lshr_b32 s42, s19, 1", "s_and_b32 s43, s19, 1", "s_lshl_b32 s42, s42, 5", "s_lshl_b32 s43, s43, 12", "s_add_u32 s43, s43, s42", "s_add_u32 s43, s43, 8192")
    for kk in range(8): a(f"buffer_load_ushort v{FR+kk}, v5, s[20:23], s43 offen offset:{128*kk}")
    a("s_branch K1_FLR")
    a.label("K1_FU")
    a("s_mov_b32 s48, s14", "s_mov_b32 s49, s15")
    a("s_sub_u32 s43, s19, 9", "s_lshr_b32 s42, s43, 2", "s_and_b32 s43, s43, 3", "s_lshl_b32 s42, s42, 5", "s_lshl_b32 s43, s43, 12", "s_add_u32 s43, s43, s42")
    for kk in range(8): a(f"buffer_load_ushort v{FR+kk}, v5, s[48:51], s43 offen offset:{128*kk}")
    a("s_branch K1_FLR")
    a.label("K1_FA")
    a("v_bfe_u32 v5, v0, 3, 2", "v_and_b32 v6, 3, v0", "v_lshl_add_u32 v5, v5, 2, v6", "v_lshlrev_b32 v5, 1, v5", "s_movk_i32 s43, 16384")
    for c in range(4): a(f"buffer_load_ushort v{FR+c}, v5, s[20:23], s43 offen offset:{32*c}")
    a("s_branch K1_FLR")
    a.label("K1_FS")
    a("v_and_b32 v5, 63, v0", "v_lshlrev_b32 v5, 4, v5", "s_lshl_b32 s36, s19, 10", f"s_add_u32 s36, s36, {WS_WF}")
    a("s_cmp_eq_u32 s19, 8", "s_cbranch_scc1 K1_AE")
    for rr in range(4): a(f"v_lshl_or_b32 v{W+rr}, v{FR+2*rr+1}, 16, v{FR+2*rr}")
    a(f"buffer_store_dwordx4 {vr(W,4)}, v5, s[32:35], s36 offen", "s_branch K1_PE")
    a.label("K1_AE")
    a("v_bfe_u32 v2, v0, 2, 1", "v_bfe_u32 v3, v0, 5, 1", "v_cmp_eq_u32 vcc, v2, v3")
    for c in range(4):
        a(f"v_lshlrev_b32 v{FR+c}, 16, v{FR+c}", f"v_mul_f32 v{FR+c}, s46, v{FR+c}", f"v_cvt_pk_bf16_f32 v{FR+c}, 0, v{FR+c}", f"v_cndmask_b32 v{W+c}, 0, v{FR+c}, vcc")
    a(f"buffer_store_dwordx4 {vr(W,4)}, v5, s[32:35], s36 offen", "s_branch K1_PE")
    return a.lines

L_AGB = 0; ASTR = 144
L_QS = L_AGB + 112 * ASTR; QSTR = 272
L_CTR = L_QS + 112 * QSTR; L_OVC = L_CTR + 448; L_FLG = L_CTR + 452; L_CT2 = L_CTR + 512; L_SLOT = L_CTR + 1024; L_OVL = L_SLOT + 512
L_XS = L_OVL + 1024; L_WF = L_XS + 14336
L_ELL = L_WF + 25600; ESTR = 516; EROWS = 83
K2_LDS = L_ELL + 3 * 768 * 16 + 6144
assert K2_LDS >= L_ELL + EROWS * ESTR and L_ELL % 16 == 0 and L_XS % 256 == 0 and L_CTR % 256 == 0 and L_ELL + 512 < (1 << 17), (L_XS, L_ELL)
ZCOL = 112 * 4; DUMP = L_ELL + CAP * ESTR + 400; HCOL = 116 * 4

def gen_k2(opt):
    a = Asm(); st = Stamps(a, opt.get("stamp"), 78, 1, 12)
    perm = opt.get("perm", [0, 1, 2, 3, 10, 6, 5, 4, 11, 9, 8, 7])
    RG = opt.get("ring", 2); small = opt.get("small", 1); dp = opt.get("dprio", [8, 4, 2])
    Q, P, Z0, Z1, NN, DD, EX, BE, AL, AH, AE, IX, VI, VE, LEN, AGA, MFL, OOF, ARD, ARX = \
        8, 24, 56, 72, 88, 104, 120, 136, 140, 144, 148, 152, 154, 155, 159, 160, 161, 162, 163, 164
    WU = BE
    R = Z0
    AD = NN
    TG = DD
    W2 = Q; X = P
    SP, PP5, EH, QC, AC = DD + 8, DD + 9, DD + 10, DD + 11, DD + 12
    SWS, SPT, SX, SO = 24, 28, 32, 36
    MK = 40
    BK = "s76"
    ws = f"s[{SWS}:{SWS+3}]"
    a.label("mpnn_msg_kernel")
    a("s_cmp_ge_u32 s2, 256", "s_cbranch_scc1 K2_END")
    st.early()
    a("s_load_dwordx2 s[20:21], s[0:1], 64", "s_load_dwordx16 s[4:19], s[0:1], 0")
    a("v_lshrrev_b32 v1, 6, v0", "v_lshlrev_b32 v2, 4, v0", "v_readfirstlane_b32 s3, v1")
    for i in range(4): a(f"v_mov_b32 v{Q+i}, 0")
    a(f"v_add_u32 v4, {L_ELL}, v2")
    a("v_and_b32 v5, 255, v0", "v_lshlrev_b32 v5, 2, v5", f"v_add_u32 v6, {L_ELL}, v5", f"v_cmp_gt_u32 vcc, {NB*4}, v5")
    a(f"s_and_b32 {BK}, s2, 7", f"s_lshl_b32 {BK}, {BK}, 5", "s_lshr_b32 s64, s2, 3", f"s_add_u32 {BK}, {BK}, s64")
    a("v_cndmask_b32 v6, 0, v6, vcc", f"ds_write_b32 v5, v6 offset:{L_CTR}")
    for i in range(3): a(f"ds_write_b128 v4, {vr(Q,4)} offset:{12288*i}")
    a(f"v_lshlrev_b32 v5, 3, v0", f"v_add_u32 v5, {L_ELL + 3*12288}, v5", f"ds_write_b64 v5, {vr(Q,2)}")
    a(f"s_lshl_b32 s64, {BK}, 14", f"s_lshl_b32 s62, {BK}, 15", f"s_add_u32 s62, s62, {WS_RB}", f"s_add_u32 s64, s64, {WS_RA - 4096}", "s_add_u32 s65, s64, 8192",
      f"s_lshl_b32 s66, {BK}, 13", f"s_and_b32 s67, {BK}, 16", "s_add_u32 s66, s66, s67", f"s_add_u32 s66, s66, {WS_DA}", "s_xor_b32 s60, s66, 16",
      "s_sub_u32 s66, s66, 2048", "s_add_u32 s67, s66, 4096")
    a(f"s_mul_i32 s69, {BK}, {NB}", f"s_sub_u32 s70, {N}, s69", f"s_min_u32 s70, s70, {NB}", "s_lshl_b32 s70, s70, 7", "s_lshl_b32 s71, s69, 7")
    a("s_and_b32 s72, s3, 3", "s_lshr_b32 s73, s3, 2")
    a(f"s_mov_b32 s{SWS+2}, {WS_END}", f"s_mov_b32 s{SWS+3}, 0x20000", f"s_mov_b32 s{SX+2}, s70", f"s_mov_b32 s{SX+3}, 0x20000")
    a(f"v_and_b32 v4, 3, v0", "v_and_b32 v6, 63, v0", "v_lshlrev_b32 v6, 4, v6")
    a("v_lshlrev_b32 v3, 5, v0", "v_lshrrev_b32 v5, 2, v0", "v_lshlrev_b32 v5, 5, v5", "v_lshl_add_u32 v5, v4, 2, v5")
    BS = opt.get("bs", 0); BP = opt.get("bp", "a")
    if BS: a("v_lshlrev_b32 v166, 3, v6", "s_andn2_b32 s77, s2, 7", "s_add_u32 s77, s77, s3", "s_sub_u32 s77, s77, 4", f"s_mul_i32 s77, s77, {BS*128}", "s_and_b32 s61, s2, 7", f"s_mul_i32 s61, s61, {(25000 - 256*BS)//7*128 if opt.get('xo', 1) else 0}", "s_add_u32 s77, s77, s61")
    def bulk(): a(f"s_mov_b64 exec, {(1 << BS) - 1 if BS < 64 else -1:#x}" if BS <= 32 else f"s_mov_b32 exec_hi, {(1 << (BS-32)) - 1:#x}", "buffer_load_dword v167, v166, s[24:27], s77 offen", "s_mov_b64 exec, -1")
    a("s_cmp_eq_u32 s73, 0")
    a("s_waitcnt lgkmcnt(0)")
    st()
    if opt.get("x1"): a("s_branch K2_FIN")
    a(f"s_mov_b32 s{SWS}, s20", f"s_mov_b32 s{SWS+1}, s21")
    a("s_cbranch_scc0 K2_A1")
    a(f"buffer_load_dwordx4 {vr(TG,4)}, v3, {ws}, s60 offen {opt.get('kflag', '')}")
    a(f"s_add_u32 s{SX}, s4, s71", f"s_addc_u32 s{SX+1}, s5, 0")
    a("v_bfe_u32 v7, v0, 4, 2", "v_lshlrev_b32 v7, 4, v7", "v_xor_b32 v7, v7, v6", "v_xor_b32 v5, 64, v7",
      "s_lshl_b32 s60, s3, 11", f"s_add_u32 s61, s60, {L_XS}", f"s_add_u32 m0, s60, {L_WF}", f"s_add_u32 s63, s60, {WS_WF}")
    a("s_barrier")
    sx = f"s[{SX}:{SX+3}]"
    a(f"buffer_load_dwordx4 v6, {ws}, s63 offen lds", f"buffer_load_dwordx4 v6, {ws}, s63 offen offset:1024 lds", "s_mov_b32 m0, s61", "v_lshlrev_b32 v3, 7, v0")
    a(f"buffer_load_dwordx4 v7, {sx}, s60 offen lds", f"buffer_load_dwordx4 v5, {sx}, s60 offen offset:1024 lds",
      "s_add_u32 m0, s61, 8192", "s_add_u32 s60, s60, 8192", "s_cmp_eq_u32 s3, 3", "s_cbranch_scc1 K2_A3",
      f"buffer_load_dwordx4 v7, {sx}, s60 offen lds", f"buffer_load_dwordx4 v5, {sx}, s60 offen offset:1024 lds")
    a("s_branch K2_A2")
    a.label("K2_A3")
    a(f"s_mov_b32 m0, {L_WF + 8192}", f"s_mov_b32 s60, {WS_WF + 8192}", f"buffer_load_dwordx4 v6, {ws}, s60 offen lds", "s_mov_b64 exec, 0", f"buffer_load_dwordx4 v6, {ws}, s60 offen lds", "s_mov_b64 exec, -1")
    a("s_branch K2_A2")
    a.label("K2_A1")
    a(f"buffer_load_dword v{TG}, v5, {ws}, s66 offen {opt.get('kflag', '')}", f"buffer_load_dword v{TG+1}, v5, {ws}, s67 offen {opt.get('kflag', '')}")
    a("s_barrier")
    a(f"buffer_load_dwordx4 {vr(R,4)}, v2, {ws}, s64 offen {opt.get('kflag', '')}", f"buffer_load_dwordx4 {vr(R+4,4)}, v2, {ws}, s65 offen {opt.get('kflag', '')}")
    if BS and BP == "a": bulk()
    a.label("K2_A2")
    a("s_lshl_b32 s74, s73, 11", f"s_add_u32 s75, s74, {3*2048}", f"s_add_u32 s22, s74, {6*2048}")
    srd(a, SPT, 20, 21, N, stride=128)
    a(f"s_add_u32 s{SO}, s16, s71", f"s_addc_u32 s{SO+1}, s17, 0", f"s_mov_b32 s{SO+2}, s70", f"s_mov_b32 s{SO+3}, 0x20000")
    T = Z1
    if small:
        a(f"v_and_b32 v{T}, 1, v0", f"v_lshlrev_b32 v{T}, 4, v{T}", f"v_mov_b32 v{T+1}, 0x3f80", f"v_lshlrev_b32 v{T}, v{T}, v{T+1}", "v_cmp_gt_u32 vcc, 2, v4",
          f"v_cndmask_b32 v{AL}, 0, v{T}, vcc", f"v_cndmask_b32 v{AL+1}, v{T}, 0, vcc")
    else:
        a(f"v_and_b32 v{T}, 1, v0", f"v_lshlrev_b32 v{T}, 4, v{T}", f"v_mov_b32 v{T+1}, 0x3f80", f"v_lshlrev_b32 v{T}, v{T}, v{T+1}",
          f"v_bfe_u32 v{T+1}, v0, 3, 2", f"v_bfe_u32 v{T+2}, v0, 1, 1", f"v_lshl_add_u32 v{T+1}, v{T+1}, 1, v{T+2}",
          f"v_bfe_u32 v{T+2}, v0, 2, 1", f"v_bfe_u32 v{T+3}, v0, 5, 1", f"v_xor_b32 v{T+2}, v{T+2}, v{T+3}", f"v_lshl_add_u32 v{T+1}, v{T+2}, 3, v{T+1}")
        for k in range(8): a(f"v_cmp_eq_u32 s[{MK+2*k}:{MK+2*k+1}], {k}, v{T+1}")
        for k in range(8): a(f"v_cndmask_b32 v{AL+k}, 0, v{T}, s[{MK+2*k}:{MK+2*k+1}]")
    J, QQ = T, T + 1
    a(f"v_and_b32 v{J}, 15, v0", f"v_bfe_u32 v{QQ}, v0, 4, 2", f"v_lshlrev_b32 v{OOF}, 7, v{J}",
      f"v_lshrrev_b32 v{ARX}, 1, v{J}", f"v_xor_b32 v{ARX}, v{ARX}, v{QQ}", f"v_lshl_add_u32 v{ARX}, v{ARX}, 4, v{OOF}",
      f"s_lshl_b32 s64, s72, 5", f"v_lshl_add_u32 v{OOF}, v{QQ}, 3, v{OOF}", f"v_add_u32 v{OOF}, s64, v{OOF}",
      f"s_mul_i32 s64, s73, {64*QSTR}", f"s_lshl_b32 s65, s72, 6", "s_add_u32 s64, s64, s65", f"s_add_u32 s64, s64, {L_QS - 64*QSTR}",
      f"v_mul_u32_u24 v1, {QSTR}, v{J}", f"v_lshl_add_u32 v1, v{QQ}, 4, v1", "v_add_u32 v1, s64, v1",
      f"s_lshl_b32 s64, s73, 13", f"s_add_u32 s64, s64, {L_XS - 8192}", f"v_add_u32 v2, s64, v{ARX}", "v_xor_b32 v7, 64, v2",
      f"s_lshl_b32 s64, s73, 4", f"v_add_u32 v{J}, s64, v{J}", f"v_mul_u32_u24 v{ARD}, {ASTR}, v{J}", f"v_lshl_add_u32 v{ARD}, v{QQ}, 4, v{ARD}",
      f"s_add_u32 s64, s74, {L_XS}", f"v_add_u32 v{ARX}, s64, v{ARX}")
    a(f"v_lshlrev_b32 v{IX+1}, 4, v4")
    a(f"v_mov_b32 v5, {ESTR}", f"s_movk_i32 s64, {NB*4}", f"s_mov_b32 s65, {DUMP}", "s_mov_b32 s68, 0", "s_mov_b32 s71, 0", "s_mov_b32 s70, 0")
    pk = sum(p << (4 * w) for w, p in enumerate(perm))
    a(f"s_mov_b32 s66, {pk & 0xffffffff:#x}", f"s_mov_b32 s67, {pk >> 32:#x}", "s_lshl_b32 s23, s3, 2", f"s_lshr_b64 s[66:67], s[66:67], s23",
      f"s_and_b32 s23, s66, 15", "s_lshl_b32 s23, s23, 4")
    a(f"v_bfe_u32 v{BE}, v0, 2, 4", f"v_add_u32 v{BE}, s23, v{BE}")
    a(f"v_and_b32 v{BE+2}, 1, v{BE}", f"v_cmp_gt_u32 vcc, 4, v{BE}", f"v_cmp_eq_u32 s[66:67], 0, v{BE+2}",
      f"v_lshlrev_b32 v{BE+1}, 1, v{BE}", f"v_and_b32 v{BE+1}, 0x1fc, v{BE+1}", f"v_subrev_u32 v{BE+1}, 8, v{BE+1}", f"v_lshlrev_b32 v{BE}, 2, v{BE}", f"v_add_u32 v{BE}, {(NB-4)*4}, v{BE}",
      f"s_or_b64 s[58:59], vcc, s[66:67]", f"s_andn2_b64 s[66:67], s[66:67], vcc",
      f"v_cndmask_b32 v{BE+1}, v{BE+1}, v{BE}, vcc",
      f"v_cndmask_b32 v{SP}, 1, 0, vcc", f"v_cndmask_b32 v{PP5}, v5, 0, s[58:59]", f"v_cndmask_b32 v{EH}, 0, 1, s[66:67]",
      f"v_cndmask_b32 v{MFL}, 0, 1.0, s[66:67]", f"v_mov_b32 v{BE+3}, {L_ELL + ZCOL}",
      f"v_lshlrev_b32 v{QC}, 6, v4", f"v_add_u32 v{QC}, {(L_QS - 68*L_ELL) & 0xffffffff:#x}, v{QC}", f"v_lshlrev_b32 v{AC}, 5, v4", f"v_add_u32 v{AC}, {(L_AGB - 36*L_ELL) & 0xffffffff:#x}, v{AC}")
    a(f"s_mov_b32 s66, {NLOG2E:#x}", f"s_mov_b32 s67, {NLOG2E:#x}")
    T = EX; IP = EX + 4
    for k in range(RG + 1): a(f"v_mov_b32 v{IP+2*k+1}, v{IX+1}")
    a("s_cmp_eq_u32 s73, 0", "s_cbranch_scc1 K2_CT")
    def a_round(ad, l, mk):
        for k in range(4): a(f"v_lshlrev_b32_sdwa v{ad+k}, 2, v{l} dst_sel:DWORD dst_unused:UNUSED_PAD src0_sel:DWORD src1_sel:BYTE_{k}")
        for k in range(4): a(f"v_cmp_gt_u32 s[{mk+2*k}:{mk+2*k+1}], s64, v{ad+k}")
        for k in range(4): a(f"s_mov_b64 exec, s[{mk+2*k}:{mk+2*k+1}]", f"ds_add_rtn_u32 v{ad+k}, v{ad+k}, v5 offset:{L_CTR}")
        a("s_mov_b64 exec, -1")
    stk = st.k
    ellpre = 0
    def ellw():
        for k in range(8):
            if k % 4 == 0: a(f"s_waitcnt vmcnt({1 - k//4 + (1 if BS else 0)})")
            if k == 4 and st.on == 1: a("s_memrealtime s[100:101]")
            a(f"v_min_u32 v{AD+k}, s65, v{AD+k}", f"ds_write_b32 v{AD+k}, v{R+k}")
    a(f"s_lshl_b32 s23, s72, 11", f"s_add_u32 s23, s23, {L_WF}", f"v_add_u32 v3, s23, v6", f"v_mov_b32 v{Z1+4}, 0")
    if BS and BP == "a2": bulk()
    a(f"s_waitcnt vmcnt({2 + (1 if BS and BP != 'b' else 0)})")
    st()
    if BS and BP == "b": bulk()
    a_round(AD, TG, MK); a_round(AD + 4, TG + 1, MK + 8)
    a("s_waitcnt lgkmcnt(0)")
    if ellpre: ellw()
    a("s_barrier")
    st()
    a.label("K2_AB1")
    T = Z1 + 4
    a(f"ds_read_b32 v{T+1}, v{T} offset:{L_OVC}")
    if not ellpre: ellw()
    a("s_waitcnt lgkmcnt(4)", f"v_readfirstlane_b32 s23, v{T+1}")
    a(f"ds_read_b128 {vr(W2,4)}, v3", f"ds_read_b128 {vr(W2+4,4)}, v3 offset:1024")
    for i in range(4): a(f"ds_read_b128 {vr(X+8*i,4)}, v2 offset:{2048*i}", f"ds_read_b128 {vr(X+8*i+4,4)}, v7 offset:{2048*i}")
    a("s_andn2_b32 s23, s23, s68", "s_cbranch_scc1 K2_RESCAN")
    QT = Z1; T = EX
    def gather(slot, ix):
        p = P + 8 * slot
        return [f"buffer_load_dwordx4 {vr(p,4)}, {vr(ix,2)}, s[{SPT}:{SPT+3}], 0 idxen offen",
                f"buffer_load_dwordx4 {vr(p+4,4)}, {vr(ix,2)}, s[{SPT}:{SPT+3}], 0 idxen offen offset:64"]
    stb = st.k
    for r in range(4): a(f"v_cmp_eq_u32 s[{MK+4+2*r}:{MK+5+2*r}], {r}, v4")
    a(f"v_add_u32 v7, {L_WF + 8192}, v6")
    if st.on == 1: a("s_memrealtime s[96:97]", "s_waitcnt lgkmcnt(0)", "s_mov_b32 s97, s100")
    a("s_waitcnt lgkmcnt(%d)" % (0 if st.on == 1 else 10), "s_barrier")
    st()
    a(f"ds_read_b32 v{T}, v{BE+1} offset:{L_SLOT}", f"ds_read_b128 {vr(AE,4)}, v7", "s_waitcnt lgkmcnt(2)")
    for i in range(4): a(mf16(QT+4*i, W2, X+8*i, "0"))
    for i in range(4): a(mf16(QT+4*i, W2+4, X+8*i+4, QT+4*i))
    def slotdec():
        a("s_waitcnt lgkmcnt(1)")
        a(f"v_lshrrev_b32 v{LEN}, 17, v{T}", f"v_add_u32 v{T+1}, v{LEN}, v{SP}", f"v_and_b32 v{T}, 0x1ffff, v{T}", f"v_lshrrev_b32 v{T+1}, 1, v{T+1}", f"v_mad_u32_u24 v{VI}, v{T+1}, v{PP5}, v{T}")
        a(f"ds_read_u16 v{IP}, v{VI}")
    slotdec()
    for i in range(4):
        a(f"v_pk_mul_f32 {vr(QT+4*i,2)}, {vr(QT+4*i,2)}, s[66:67]", f"v_pk_mul_f32 {vr(QT+4*i+2,2)}, {vr(QT+4*i+2,2)}, s[66:67]")
        if i == 3: a(f"s_waitcnt lgkmcnt(3)", *gather(0, IP), "s_cmp_eq_u32 s73, 2", "s_cbranch_scc1 K2_NQ2")
        a(f"ds_write_b128 v1, {vr(QT+4*i,4)} offset:{16*QSTR*i}")
    a("s_branch K2_NQ2")
    a.label("K2_CT")
    st.k = stk
    C0, C1, H0, H1, T0, T1, HH, PS, L4, B0, B1_, LOB, HIB, HA, FOUR = [Q + i for i in range(15)]
    a(f"v_mov_b32 v{Z1+4}, {MARK:#x}", "s_lshl_b32 s60, s3, 12", f"s_add_u32 m0, s60, {L_WF + 9*1024}", f"s_add_u32 s60, s60, {WS_WF + 9*1024}")
    a(f"v_lshlrev_b32 v{L4}, 2, v0", f"v_add_u32 v{B0}, {L_ELL}, v{L4}", f"v_add_u32 v{B1_}, {L_ELL + 256}, v{L4}",
      f"v_mov_b32 v{LOB}, {(CAP-63)*ESTR}", f"v_mov_b32 v{HIB}, {CAP*ESTR}", f"v_mul_u32_u24 v{HA}, {ESTR}, v0", f"v_sub_u32 v{HA}, {L_ELL + HCOL + CAP*ESTR}, v{HA}", f"v_mov_b32 v{FOUR}, 4",
      f"s_mov_b32 s61, {L_ELL + HCOL}")
    AD2 = P + 8; AD3 = P + 24
    for k in range(16): a(f"v_mov_b32 v{AD+k}, -1")
    a("s_waitcnt vmcnt(6)")
    st()
    for j in range(4): a(f"v_cmp_ne_u32 s[{MK+2*j}:{MK+2*j+1}], -1, v{TG+j}")
    a(f"v_cmp_eq_u32 vcc, v{Z1+4}, v{TG}")
    for j in range(4): a(f"s_mov_b64 exec, s[{MK+2*j}:{MK+2*j+1}]", f"buffer_load_dwordx4 {vr(R+4*j,4)}, v3, {ws}, s62 offen offset:{16*j}")
    a("s_mov_b64 exec, -1")
    for j in range(4):
        a(f"s_cmp_eq_u64 s[{MK+2*j}:{MK+2*j+1}], 0", f"s_cbranch_scc1 K2_TS{j}")
        if j == 3: a("s_waitcnt lgkmcnt(8)")
        for k in range(4): a(f"v_lshlrev_b32_sdwa v{AD2+4*j+k}, 2, v{TG+j} dst_sel:DWORD dst_unused:UNUSED_PAD src0_sel:DWORD src1_sel:BYTE_{k}")
        for k in range(4): a(f"v_cmp_gt_u32 s[{MK+8+2*k}:{MK+9+2*k}], s64, v{AD2+4*j+k}")
        for k in range(4): a(f"s_mov_b64 exec, s[{MK+8+2*k}:{MK+9+2*k}]", f"ds_add_rtn_u32 v{AD+4*j+k}, v{AD2+4*j+k}, v5 offset:{L_CT2}")
        a("s_mov_b64 exec, -1", f"s_bitset1_b32 s70, {j}")
        a.label(f"K2_TS{j}")
    if opt.get("nowu"): a("s_mov_b64 exec, 0")
    for k in range(4): a(f"buffer_load_dwordx4 v6, {ws}, s60 offen offset:{1024*k} lds")
    if opt.get("nowu"): a("s_mov_b64 exec, -1")
    a("s_cbranch_vccnz K2_MARK")
    a.label("K2_MR")
    a("s_waitcnt vmcnt(8) lgkmcnt(0)", "s_barrier")
    st()
    a.label("K2_AB1T")
    a(f"v_and_b32 v{T0}, 0xfc, v{L4}", f"ds_read2st64_b32 {vr(C0,2)}, v{T0} offset0:{L_CTR//256} offset1:{L_CTR//256+1}", f"ds_read2st64_b32 {vr(H0,2)}, v{T0} offset0:{L_CTR//256+2} offset1:{L_CTR//256+3}", "s_setprio 3", "s_mov_b32 s56, -1", "s_mov_b32 s57, 3")
    a("s_waitcnt lgkmcnt(0)", f"v_readlane_b32 s23, v{C1}, 48", f"v_sub_u32 v{C0}, v{C0}, v{B0}", f"v_sub_u32 v{C1}, v{C1}, v{B1_}", f"v_add_u32 v{C0}, v{C0}, v{H0}", f"v_add_u32 v{C1}, v{C1}, v{H1}",
      "s_andn2_b32 s23, s23, s68", "s_cbranch_scc1 K2_RESCAN", "s_cmp_lg_u32 s3, 0", "s_cbranch_scc1 K2_TW")
    for c, h, t in ((C0, H0, T0), (C1, H1, T1)):
        if c == C1: a("s_mov_b64 exec, s[56:57]")
        a(f"v_med3_u32 v{h}, v{c}, v{LOB}, v{HIB}", f"v_add_u32 v{t}, s61, v{h}", f"ds_add_rtn_u32 v{t}, v{t}, v{FOUR}")
    a(f"v_cmp_gt_u32 s[{MK}:{MK+1}], v{C1}, v{HIB}", "s_mov_b64 exec, -1", f"ds_read_b32 v{HH}, v{HA}", f"v_cmp_gt_u32 vcc, v{C0}, v{HIB}")
    for c, h, b in ((C0, H0, B0), (C1, H1, B1_)):
        a(f"v_min_u32 v{c}, v{c}, v{HIB}", f"v_lshrrev_b32 v{c}, 2, v{c}", f"v_mul_u32_u24 v{c}, 509, v{c}", f"v_lshrrev_b32 v{c}, 16, v{c}",
          f"v_max_u32 v{h}, {CAP-63}, v{c}", f"v_sub_u32 v{h}, {CAP}, v{h}", f"v_lshlrev_b32 v{h}, 2, v{h}", f"v_lshl_or_b32 v{c}, v{c}, 17, v{b}")
    a(f"s_or_b64 vcc, vcc, s[{MK}:{MK+1}]", "s_waitcnt lgkmcnt(0)")
    a(f"v_add_u32_dpp v{PS}, v{HH}, v{HH} row_shr:1 row_mask:0xf bank_mask:0xf bound_ctrl:0")
    for k in (2, 4, 8): a(f"v_add_u32_dpp v{PS}, v{PS}, v{PS} row_shr:{k} row_mask:0xf bank_mask:0xf bound_ctrl:0")
    a(f"v_add_u32_dpp v{PS}, v{PS}, v{PS} row_bcast:15 row_mask:0xa bank_mask:0xf", f"v_add_u32_dpp v{PS}, v{PS}, v{PS} row_bcast:31 row_mask:0xc bank_mask:0xf")
    a(f"v_sub_u32 v{PS}, v{PS}, v{HH}", f"ds_bpermute_b32 v{H0}, v{H0}, v{PS}", f"ds_bpermute_b32 v{H1}, v{H1}, v{PS}")
    a(f"v_mov_b32 v{HH}, 0", "s_waitcnt lgkmcnt(1)", f"v_add_u32 v{H0}, v{H0}, v{T0}", f"ds_write_b32 v{H0}, v{C0} offset:{L_SLOT}",
      "s_waitcnt lgkmcnt(1)", "s_mov_b64 exec, s[56:57]", f"v_add_u32 v{H1}, v{H1}, v{T1}", f"ds_write_b32 v{H1}, v{C1} offset:{L_SLOT}", "s_mov_b64 exec, -1")
    a("s_cbranch_vccz K2_TW", f"ds_write_b32 v{HH}, v5 offset:{L_FLG}")
    a.label("K2_TW")
    a.label("K2_CWR")
    for r in range(4): a(f"v_cmp_eq_u32 s[{MK+4+2*r}:{MK+5+2*r}], {r}, v4")
    T = EX
    a(f"v_add_u32 v7, {L_WF + 8192}, v6")
    if st.on == 1: a("s_waitcnt lgkmcnt(0)", "s_memrealtime s[96:97]")
    a("s_waitcnt lgkmcnt(0)", "s_barrier")
    st()
    a(f"ds_read_b32 v{T}, v{BE+1} offset:{L_SLOT}", f"ds_read_b128 {vr(AE,4)}, v7")
    slotdec()
    a(f"s_waitcnt lgkmcnt(0)", *gather(0, IP))
    for j in range(4):
        a(f"s_bitcmp0_b32 s70, {j}", f"s_cbranch_scc1 K2_TR{j}")
        for k in range(4): a(f"ds_read_b32 v{AD3+k}, v{AD2+4*j+k} offset:{L_CTR}")
        for k in range(4): a(f"s_waitcnt lgkmcnt({3-k})", f"v_add_u32 v{AD+4*j+k}, v{AD+4*j+k}, v{AD3+k} clamp", f"v_min_u32 v{AD+4*j+k}, s65, v{AD+4*j+k}")
        a.label(f"K2_TR{j}")
    a("s_waitcnt vmcnt(6)")
    if st.on == 1: a("s_memrealtime s[100:101]", "s_waitcnt lgkmcnt(0)", "s_mov_b32 s97, s100")
    for j in range(4):
        a(f"s_bitcmp0_b32 s70, {j}", f"s_cbranch_scc1 K2_TW{j}")
        if j == 3: a("s_waitcnt lgkmcnt(4)")
        for k in range(4): a(f"ds_write_b32 v{AD+4*j+k}, v{R+4*j+k}")
        a.label(f"K2_TW{j}")
    a.label("K2_NQ2")
    def rde(t): return [f"ds_read_b32 v{BE+r}, v{VE+r} offset:{t*ESTR}" for r in range(4)]
    a(f"v_mov_b32 v{T+1}, 68", f"v_mad_u32_u24 v{T+2}, v{T}, v{T+1}, v{QC}")
    for r in range(4): a(f"v_cndmask_b32 v{VE+r}, v{BE+3}, v{VI}, s[{MK+4+2*r}:{MK+5+2*r}]")
    for i in range(16): a(f"v_mov_b32 v{NN+i}, 0")
    a("s_waitcnt vmcnt(2) lgkmcnt(0)", "s_barrier")
    a(f"ds_read_u16 v{T+3}, v{VI}")
    for k in range(1, RG + 1): a(f"ds_read_u16 v{IP+2*k}, v{VI} offset:{k*ESTR}")
    for k in range(4): a(f"ds_read_b128 {vr(Q+4*k,4)}, v{T+2} offset:{16*k}")
    a(*rde(0), f"ds_read_u16 v{IX}, v{VI} offset:{(RG+1)*ESTR}")
    a(f"s_waitcnt lgkmcnt({RG + 8})", f"v_cmp_ne_u32 vcc, v{T+3}, v{IP}", "s_cbranch_vccnz K2_G0R")
    a.label("K2_G0D")
    a(*gather(1, IP + 2))
    a(f"v_add_u32 v{LEN}, v{LEN}, v{EH}", f"v_lshrrev_b32 v{LEN}, v{SP}, v{LEN}", f"v_mad_u32_u24 v{AGA}, v{T}, 36, v{AC}")
    a(f"v_max_u32_dpp v{T+1}, v{LEN}, v{LEN} row_shr:4 row_mask:0xf bank_mask:0xf bound_ctrl:0")
    for i in range(8): a(f"v_mov_b32 v{DD+i}, 1.0")
    a(f"v_max_u32_dpp v{T+1}, v{T+1}, v{T+1} row_shr:8 row_mask:0xf bank_mask:0xf bound_ctrl:0")
    for i in range(8, 16): a(f"v_mov_b32 v{DD+i}, 1.0")
    a(f"v_readlane_b32 s69, v{T+1}, 15", f"v_readlane_b32 s70, v{T+1}, 31", f"v_readlane_b32 s64, v{T+1}, 47", f"v_readlane_b32 s65, v{T+1}, 63",
      "s_max_u32 s69, s69, s70", "s_max_u32 s64, s64, s65", "s_max_u32 s69, s69, s64", "s_mov_b32 s70, 0")
    a(f"s_lshl_b32 s23, s72, 12", f"s_add_u32 s23, s23, 1024", "v_add_u32 v7, s23, v7")
    a("s_cmp_eq_u32 s69, 0", "s_cbranch_scc1 K2_DONE0")
    a(f"s_waitcnt vmcnt(2) lgkmcnt(0)")
    st()
    if st.on == 1: a("s_memtime s[98:99]", "s_waitcnt lgkmcnt(0)")
    for k in range(2, RG): a(*gather(k, IP + 2*k))
    def sm(z, b, c): return f"v_mfma_f32_4x4x4_16b_bf16 {vr(z,4)}, {vr(AL,2)}, {vr(b,2)}, {vr(c,4)}"
    if small: a(*[sm(Z0+4*i, P+2*i, Q+4*i) for i in range(4)], mf32(Z0, AE, BE, Z0))
    else: a(mf32(Z0, AE, BE, Q), mf32(Z0, AL, P, Z0), mf32(Z0, AH, P + 4, Z0))
    a(*gather(0, IP + 2*RG), *rde(1), "s_nop 3")
    U = max(2, RG)
    a(f"s_branch K2_PRI{U-1}")
    a(".p2align 6")
    for u in range(U):
        a.label(f"K2_L{u}")
        zc = (Z0, Z1)[u % 2]; zn = (Z1, Z0)[u % 2]; p = P + 8 * ((u + 1) % RG)
        ex = [f"v_exp_f32 v{EX+i}, v{zc+i}" for i in range(16)]
        a(f"s_waitcnt vmcnt({2*RG-2}) lgkmcnt(0)")
        if small:
            s4 = [sm(zn+4*i, p+2*i, Q+4*i) for i in range(4)]
            a(s4[0], ex[0], s4[1], ex[1], s4[2], ex[2], s4[3], *ex[3:8], mf32(zn, AE, BE, zn), *ex[8:16])
        else: a(mf32(zn, AE, BE, Q), *ex[0:4], mf32(zn, AL, p, zn), *ex[4:8], mf32(zn, AH, p + 4, zn), *ex[8:16])
        a(*gather((u + 1) % RG, IX), *rde(u + 2), f"ds_read_u16 v{IX}, v{VI} offset:{(u+RG+2)*ESTR}")
        a(f"v_cmpx_lt_u32 vcc, s70, v{LEN}")
        for i in range(0, 16, 2): a(f"v_pk_fma_f32 {vr(NN+i,2)}, {vr(NN+i,2)}, {vr(EX+i,2)}, {vr(NN+i,2)}")
        for i in range(0, 16, 2): a(f"v_pk_fma_f32 {vr(NN+i,2)}, {vr(zc+i,2)}, {vr(DD+i,2)}, {vr(NN+i,2)}")
        for i in range(0, 16, 2): a(f"v_pk_fma_f32 {vr(DD+i,2)}, {vr(DD+i,2)}, {vr(EX+i,2)}, {vr(DD+i,2)}")
        a("s_mov_b64 exec, -1", "s_add_u32 s70, s70, 1", "s_cmp_ge_u32 s70, s64")
        if u < U - 1: a(f"s_cbranch_scc1 K2_PRI{u}")
        else:
            for rg in [VI] + [VE + r for r in range(4)]: a(f"v_add_u32 v{rg}, {U*ESTR}, v{rg}")
            a("s_cbranch_scc0 K2_L0")
    for u in list(range(U - 1, -1, -1)):
        a.label(f"K2_PRI{u}")
        nx = f"K2_L{(u+1)%U}"
        a("s_sub_u32 s65, s69, s70")
        for lv, th in zip((3, 2, 1), dp):
            a(f"s_setprio {lv}", f"s_sub_u32 s64, s69, {th}", f"s_cmp_gt_u32 s65, {th}", f"s_cbranch_scc1 {nx}")
        a("s_setprio 0", "s_mov_b32 s64, s69", "s_cmp_lg_u32 s65, 0", f"s_cbranch_scc1 {nx}")
        if u: a("s_branch K2_DONE")
    a.label("K2_DONE")
    st()
    if st.on == 1: a("s_memtime s[100:101]", "s_waitcnt lgkmcnt(0)", "s_sub_u32 s98, s100, s98")
    XF = Z0; ACC = Q
    a(f"v_xor_b32 v3, 64, v{ARX}")
    for i in range(16): a(f"v_rcp_f32 v{EX+i}, v{DD+i}")
    a("s_waitcnt lgkmcnt(0)")
    for k in range(4): a(f"ds_read_b128 {vr(WU+4*k,4)}, v7 offset:{1024*k}")
    for i in range(3): a(f"ds_read_b128 {vr(XF+8*i,4)}, v{ARX} offset:{6144*i}", f"ds_read_b128 {vr(XF+8*i+4,4)}, v3 offset:{6144*i}")
    a(f"s_mov_b32 s66, {NLN2:#x}", f"s_mov_b32 s67, {NLN2:#x}", f"s_mov_b32 s64, {f2u(2.0**120):#x}")
    for i in range(0, 16, 2): a(f"v_pk_mul_f32 {vr(NN+i,2)}, {vr(NN+i,2)}, s[66:67]")
    a(f"v_max3_f32 v2, v{DD}, v{DD+1}, v{DD+2}")
    for i in range(3, 15, 2): a(f"v_max3_f32 v2, v{DD+i}, v{DD+i+1}, v2")
    a(f"v_max_f32 v2, v{DD+15}, v2")
    for i in range(0, 16, 2): a(f"v_pk_mul_f32 {vr(NN+i,2)}, {vr(NN+i,2)}, {vr(EX+i,2)}")
    a(f"v_pk_mul_f32 {vr(DD,2)}, {vr(NN,2)}, 0")
    for i in range(2, 16, 2): a(f"v_pk_fma_f32 {vr(DD,2)}, {vr(NN+i,2)}, 0, {vr(DD,2)}")
    for i in range(16): a(f"v_fmac_f32_dpp v{NN+i}, v{NN+i}, v{MFL} row_shl:4 row_mask:0xf bank_mask:0xf bound_ctrl:0")
    a(f"v_cmp_u_f32 vcc, v{DD}, v{DD+1}", f"v_cmp_nlt_f32 s[{MK+2}:{MK+3}], v2, s64", f"s_or_b64 vcc, vcc, s[{MK+2}:{MK+3}]")
    for i in range(8): a(f"v_cvt_pk_bf16_f32 v{EX+i}, v{NN+2*i}, v{NN+2*i+1}")
    a("s_waitcnt lgkmcnt(0)", f"s_mov_b64 exec, s[58:59]", f"ds_write_b128 v{AGA}, {vr(EX,4)} offset:{L_AGB}", f"ds_write_b128 v{AGA}, {vr(EX+4,4)} offset:{L_AGB+16}")
    a("s_mov_b64 exec, vcc", "v_mov_b32 v2, 0", f"ds_write_b32 v2, v5 offset:{L_FLG}", "s_mov_b64 exec, -1")
    a(f"s_mov_b32 s66, {NLOG2E:#x}", f"s_mov_b32 s67, {NLOG2E:#x}", "v_mov_b32 v2, 0")
    for i in range(3): a(mf16(ACC+4*i, WU, XF+8*i, "0"))
    for i in range(3): a(mf16(ACC+4*i, WU+4, XF+8*i+4, ACC+4*i))
    a("s_waitcnt lgkmcnt(0)", "s_barrier")
    st()
    a.label("K2_EPI")
    B = Z0; O = EX; TT = NN; WU2 = WU + 8
    a(f"ds_read_b32 v3, v2 offset:{L_FLG}")
    for i in range(3):
        for s in range(2): a(f"ds_read_b128 {vr(B+8*i+4*s,4)}, v{ARD} offset:{L_AGB + 48*ASTR*i + 64*s}")
    a("s_waitcnt lgkmcnt(6)", "v_readfirstlane_b32 s23, v3", "s_andn2_b32 s23, s23, s71", "s_cbranch_scc1 K2_BF")
    def epi_tile(i):
        o = O + 4 * i; t = TT + 4 * i
        a(f"v_pk_mul_f32 {vr(t,2)}, {vr(o,2)}, s[66:67]", f"v_pk_mul_f32 {vr(t+2,2)}, {vr(o+2,2)}, s[66:67]")
        for k in range(4): a(f"v_exp_f32 v{t+k}, v{t+k}")
        a(f"v_pk_add_f32 {vr(t,2)}, {vr(t,2)}, 1.0 op_sel_hi:[1,0]", f"v_pk_add_f32 {vr(t+2,2)}, {vr(t+2,2)}, 1.0 op_sel_hi:[1,0]")
        for k in range(4): a(f"v_rcp_f32 v{t+k}, v{t+k}")
        a(f"v_pk_mul_f32 {vr(t,2)}, {vr(t,2)}, {vr(o,2)}", f"v_pk_mul_f32 {vr(t+2,2)}, {vr(t+2,2)}, {vr(o+2,2)}")
        a(f"v_cvt_pk_bf16_f32 v{o}, v{t}, v{t+1}", f"v_cvt_pk_bf16_f32 v{o+1}, v{t+2}, v{t+3}")
        a(f"buffer_store_dwordx2 {vr(o,2)}, v{OOF}, s[{SO}:{SO+3}], {('s74','s75','s22')[i]} offen")
    for i in range(3):
        a(f"s_waitcnt lgkmcnt({4-2*i})", mf16(O+4*i, WU2, B+8*i, ACC+4*i), mf16(O+4*i, WU2+4, B+8*i+4, O+4*i))
    epi_tile(0); epi_tile(1)
    a("s_cmp_lg_u32 s73, 0", "s_cbranch_scc1 K2_FIN")
    epi_tile(2)
    a.label("K2_FIN")
    if st.on: a("s_waitcnt vmcnt(0)")
    st.flush(20, 3, 2, 3)
    a.label("K2_END")
    a("s_endpgm")

    a.label("K2_G0R")
    a(f"v_mov_b32 v{IP}, v{EX+3}", *gather(0, IP), "s_branch K2_G0D")
    a.label("K2_DONE0")
    a("s_waitcnt vmcnt(0) lgkmcnt(0)", "s_branch K2_DONE")
    a.label("K2_MARK")
    T = Z1
    a("s_mov_b64 exec, vcc", f"v_mov_b32 v{T}, 0", f"v_mov_b32 v{T+1}, 1", f"ds_add_rtn_u32 v{T}, v{T}, v{T+1} offset:{L_OVC}", "s_waitcnt lgkmcnt(0)",
      f"v_and_b32 v{T}, 255, v{T}", f"v_lshlrev_b32 v{T}, 2, v{T}", f"ds_write_b32 v{T}, v0 offset:{L_OVL}", "s_mov_b64 exec, -1", "s_branch K2_MR")

    SD, SS, SE = 40, 44, 48
    a.label("K2_RESCAN")
    srd(a, SD, 10, 11, E * 4); srd(a, SS, 8, 9, E * 4); srd(a, SE, 6, 7, E * 2)
    a("s_mov_b32 s52, 0", f"s_mul_i32 s53, {BK}, {NB}", "s_min_u32 s23, s23, 256", "s_waitcnt lgkmcnt(0)")
    a.label("K2_RS1")
    T = Z1 + 8
    a("s_lshl_b32 s54, s52, 2", f"v_mov_b32 v{T}, s54", f"ds_read_b32 v{T}, v{T} offset:{L_OVL}", "s_waitcnt lgkmcnt(0)", f"v_readfirstlane_b32 s54, v{T}",
      "s_and_b32 s55, s54, 31", "s_lshl_b32 s55, s55, 3", "s_lshr_b32 s54, s54, 5", "s_add_u32 s54, s54, s55",
      f"s_mul_i32 s54, s54, {CH}", f"s_sub_u32 s55, {E}, s54", f"s_min_u32 s55, s55, {CH}",
      f"v_mov_b32 v{T}, v0")
    a.label("K2_RS2")
    a(f"v_add_u32 v{T+1}, s54, v{T}", f"v_lshlrev_b32 v{T+2}, 1, v{T+1}", f"v_lshlrev_b32 v{T+1}, 2, v{T+1}",
      f"buffer_load_dword v{T+3}, v{T+1}, s[{SD}:{SD+3}], 0 offen", f"buffer_load_dword v{T+4}, v{T+1}, s[{SS}:{SS+3}], 0 offen",
      f"buffer_load_ushort v{T+5}, v{T+2}, s[{SE}:{SE+3}], 0 offen", "s_waitcnt vmcnt(0)",
      f"v_subrev_u32 v{T+3}, s53, v{T+3}", f"v_cmp_gt_u32 vcc, {NB}, v{T+3}", f"v_cmp_gt_u32 s[56:57], s55, v{T}", "s_and_b64 exec, vcc, s[56:57]",
      f"v_lshlrev_b32 v{T+3}, 2, v{T+3}", f"ds_add_rtn_u32 v{T+3}, v{T+3}, v5 offset:{L_CTR}", f"v_lshl_or_b32 v{T+4}, v{T+5}, 16, v{T+4}",
      "s_waitcnt lgkmcnt(0)", f"v_min_u32 v{T+3}, s65, v{T+3}", f"ds_write_b32 v{T+3}, v{T+4}", "s_mov_b64 exec, -1",
      f"v_add_u32 v{T}, 768, v{T}", f"v_cmp_gt_u32 vcc, s55, v{T}", "s_cbranch_vccnz K2_RS2")
    a("s_add_u32 s52, s52, 1", "s_cmp_lt_u32 s52, s23", "s_cbranch_scc1 K2_RS1")
    a("s_mov_b32 s68, -1", "s_waitcnt lgkmcnt(0)", "s_barrier", "s_cmp_eq_u32 s73, 0", "s_cbranch_scc1 K2_AB1T", "s_branch K2_AB1")

    a.label("K2_BF")
    T = Z0
    a("s_waitcnt vmcnt(0) lgkmcnt(0)")
    srd(a, SD, 10, 11, E * 4); srd(a, SS, 8, 9, E * 4); srd(a, SE, 6, 7, E * 2); srd(a, 52, 12, 13, 129 * 128)
    for i in range(4): a(f"v_mov_b32 v{T+i}, 0")
    a(f"v_lshlrev_b32 v{T+4}, 4, v0", f"v_add_u32 v{T+4}, {L_ELL}, v{T+4}")
    for i in range(3): a(f"ds_write_b128 v{T+4}, {vr(T,4)} offset:{12288*i}")
    LN, F4, F2, PO, W3 = T + 4, T + 5, T + 6, T + 7, T + 8
    a(f"v_and_b32 v{LN}, 63, v0", f"v_lshlrev_b32 v{F4}, 2, v{LN}", f"v_lshlrev_b32 v{F2}, 1, v{LN}",
      f"v_and_b32 v{PO}, 8, v{LN}", f"v_lshlrev_b32 v{PO}, 3, v{PO}", f"v_and_b32 v{T}, 48, v{LN}", f"v_add_u32 v{PO}, v{PO}, v{T}",
      f"v_and_b32 v{T}, 7, v{LN}", f"v_lshl_add_u32 v{PO}, v{T}, 1, v{PO}",
      "s_movk_i32 s56, 16384", f"buffer_load_ushort v{W3}, v{F2}, s[52:55], s56 offen", "s_waitcnt vmcnt(0) lgkmcnt(0)",
      f"v_lshlrev_b32 v{W3}, 16, v{W3}", f"v_mul_f32 v{W3}, s66, v{W3}",
      f"s_mul_i32 s57, {BK}, {NB}", "s_mov_b32 s56, s3", "s_barrier")
    a.label("K2_BF1")
    DV, SV, EV = T + 9, T + 10, T + 11
    a("s_lshl_b32 s58, s56, 8", "s_lshl_b32 s59, s56, 7",
      f"buffer_load_dword v{DV}, v{F4}, s[{SD}:{SD+3}], s58 offen", "s_waitcnt vmcnt(0)",
      f"v_subrev_u32 v{DV}, s57, v{DV}", f"v_cmp_gt_u32 vcc, {NB}, v{DV}", "s_cbranch_vccz K2_BF3",
      f"buffer_load_dword v{SV}, v{F4}, s[{SS}:{SS+3}], s58 offen", f"buffer_load_ushort v{EV}, v{F2}, s[{SE}:{SE+3}], s59 offen",
      "s_mov_b64 s[60:61], vcc", "s_waitcnt vmcnt(0)")
    a.label("K2_BF2")
    a("s_ff1_i32_b64 s58, s[60:61]", "s_bitset0_b64 s[60:61], s58",
      f"v_readlane_b32 s59, v{SV}, s58", f"v_readlane_b32 s62, v{DV}, s58", f"v_readlane_b32 s63, v{EV}, s58",
      "s_min_u32 s59, s59, %d" % (N - 1), "s_lshl_b32 s59, s59, 7", f"buffer_load_ushort v{T}, v{PO}, s[{SWS}:{SWS+3}], s59 offen",
      f"s_mul_i32 s58, s62, {QSTR}", f"v_add_u32 v{T+1}, s58, v{F4}", f"ds_read_b32 v{T+1}, v{T+1} offset:{L_QS}",
      "s_lshl_b32 s63, s63, 16", "s_lshl_b32 s62, s62, 8", f"s_add_u32 s62, s62, {L_ELL}", f"v_add_u32 v{T+2}, s62, v{F4}",
      "s_waitcnt vmcnt(0) lgkmcnt(0)",
      f"v_lshlrev_b32 v{T}, 16, v{T}", f"v_add_f32 v{T}, v{T}, v{T+1}", f"v_fma_f32 v{T}, s63, v{W3}, v{T}",
      f"v_exp_f32 v{T+1}, v{T}", f"v_add_f32 v{T+1}, 1.0, v{T+1}", f"v_rcp_f32 v{T+1}, v{T+1}", f"v_mul_f32 v{T}, {NLN2:#x}, v{T}", f"v_mul_f32 v{T}, v{T}, v{T+1}",
      f"ds_add_f32 v{T+2}, v{T}", "s_cmp_lg_u64 s[60:61], 0", "s_cbranch_scc1 K2_BF2")
    a.label("K2_BF3")
    a("s_add_u32 s56, s56, 12", f"s_cmp_lt_u32 s56, {E//64}", "s_cbranch_scc1 K2_BF1")
    a("s_waitcnt lgkmcnt(0)", "s_barrier", f"v_mov_b32 v{T+4}, v0")
    a.label("K2_BF4")
    a(f"v_lshlrev_b32 v{T+5}, 3, v{T+4}", f"v_add_u32 v{T+5}, {L_ELL}, v{T+5}", f"ds_read_b64 {vr(T,2)}, v{T+5}",
      f"v_lshrrev_b32 v{T+5}, 5, v{T+4}", f"v_mul_u32_u24 v{T+5}, {ASTR}, v{T+5}", f"v_and_b32 v{T+6}, 31, v{T+4}", f"v_lshl_add_u32 v{T+5}, v{T+6}, 2, v{T+5}",
      "s_waitcnt lgkmcnt(0)", f"v_cvt_pk_bf16_f32 v{T}, v{T}, v{T+1}", f"ds_write_b32 v{T+5}, v{T} offset:{L_AGB}",
      f"v_add_u32 v{T+4}, 768, v{T+4}", f"v_cmpx_gt_u32 vcc, {NB*32}, v{T+4}", "s_cbranch_execnz K2_BF4")
    a("s_mov_b64 exec, -1", "s_mov_b32 s71, -1", "s_waitcnt lgkmcnt(0)", "s_barrier", "s_branch K2_EPI")
    return a.lines

def kd(name, vg, sg=102):
    return f""".amdhsa_kernel {name}
  .amdhsa_next_free_vgpr {vg}
  .amdhsa_next_free_sgpr {sg}
  .amdhsa_accum_offset {vg}
  .amdhsa_group_segment_fixed_size 0
  .amdhsa_kernarg_size 72
  .amdhsa_user_sgpr_count 2
  .amdhsa_user_sgpr_kernarg_segment_ptr 1
  .amdhsa_system_sgpr_workgroup_id_x 1
.end_amdhsa_kernel"""

def build(opt=None):
    opt = opt or {}
    out = ["; mpnn edge MLP: K1 bins edges by destination bucket and builds the P' table, K2 aggregates and updates",
           f"; @launch kernel=mpnn_bin_kernel grid=(256,1,1) block=(1024,1,1) lds={K1_LDS}",
           f"; @launch kernel=mpnn_msg_kernel grid=(256,1,1) block=(768,1,1) lds={K2_LDS}",
           '.amdgcn_target "amdgcn-amd-amdhsa--gfx950"', ".text"]
    for name, fn in (("mpnn_bin_kernel", gen_k1), ("mpnn_msg_kernel", gen_k2)):
        lines, nn = fix_hazards(fn(opt), verbose=opt.get("verbose"))
        out += [f".globl {name}", ".p2align 8", f".type {name},@function"] + lines
    out += ['.section .rodata,"a"', ".p2align 6", kd("mpnn_bin_kernel", 128), ".p2align 6", kd("mpnn_msg_kernel", 168)]
    return "\n".join(out) + "\n"

if __name__ == "__main__":
    import argparse
    ap = argparse.ArgumentParser(); ap.add_argument("-o", default="standalone__mpnn_edge_mlp__graph.s")
    ap.add_argument("--stamp", type=int, default=0); ap.add_argument("-v", action="store_true"); ap.add_argument("--opt", default="{}")
    g = ap.parse_args()
    open(g.o, "w").write(build({"stamp": g.stamp, "verbose": g.v, **eval(g.opt)}))
```

```python
import sys, struct, math
sys.path.insert(0, "gen")
from asmlib import *

N = 25000; E = 800000; NB = 98; CH = 3128; CAP = 72
WS_RA = 0x400000; WS_DA = 0x800000; WS_RB = 0xA00000; WS_WF = 0x380000; WS_END = WS_RB + 0x800000
MARK = 0xFEFEFEFE
WS_STAMP = 0x1400000
f2u = lambda f: struct.unpack("<I", struct.pack("<f", f))[0]
NLOG2E = f2u(-1.4426950408889634); NLN2 = f2u(-0.6931471805599453)
NTILE = (N + 15) // 16

def mf16(d, a, b, c): return f"v_mfma_f32_16x16x32_bf16 {vr(d,4)}, {vr(a,4)}, {vr(b,4)}, {c if isinstance(c,str) else vr(c,4)}"
def mf32(d, a, b, c): return f"v_mfma_f32_32x32x16_bf16 {vr(d,16)}, {vr(a,4)}, {vr(b,4)}, {vr(c,16)}"

class Stamps:
    def __init__(self, a, on, base, kidx, nw): self.a = a; self.on = on; self.base = base; self.k = 0; self.kidx = kidx; self.nw = nw
    def __call__(self):
        if not self.on: return
        r = self.base + 2 * self.k; self.k += 1
        if self.on == 3 and (self.k - 1) not in ((0, 5), (0, 1, 7, 8))[self.kidx]: return
        self.a(f"s_waitcnt lgkmcnt(0)", f"s_memrealtime s[{r}:{r+1}]", "s_waitcnt lgkmcnt(0)")
    def early(self):
        if not self.on: return
        r = self.base + 2 * self.k; self.k += 1
        self.a(f"s_memrealtime s[{r}:{r+1}]")
    def flush(self, ws, wave, t0, t1):
        if not self.on: return
        a = self.a
        self()
        a("s_mov_b64 exec, -1")
        a(f"v_mov_b32 v{t0}, 0")
        for k in range(self.k): a(f"v_writelane_b32 v{t0}, s{self.base+2*k}, {k}")
        if self.kidx == 1: a(f"v_writelane_b32 v{t0}, s98, 13", f"v_writelane_b32 v{t0}, s96, 12", f"v_writelane_b32 v{t0}, s97, 11", f"v_writelane_b32 v{t0}, s69, 15", f"s_getreg_b32 s69, hwreg(HW_REG_HW_ID)", f"v_writelane_b32 v{t0}, s69, 14")
        if self.on == 2 and self.kidx == 1:
            b = self.base
            a(f"s_add_u32 s{b}, s2, s{wave}", f"s_cmp_lg_u32 s{b}, 0", f"s_cbranch_scc1 STK{self.kidx}",
              f"s_load_dwordx2 s[{b}:{b+1}], s[0:1], 56", f"v_and_b32 v{t1}, 63, v0", f"v_lshlrev_b32 v{t1}, 2, v{t1}",
              f"v_add_u32 v{t1+1}, {WS_STAMP}, v{t1}", f"global_load_dword v{t1+1}, v{t1+1}, s[{ws}:{ws+1}]",
              "s_waitcnt vmcnt(0) lgkmcnt(0)", f"s_mov_b64 exec, 0x3ff", f"global_store_dword v{t1}, v{t0}, s[{b}:{b+1}] offset:24",
              f"s_mov_b64 exec, 0x3f", f"global_store_dword v{t1}, v{t1+1}, s[{b}:{b+1}]")
            a.label(f"STK{self.kidx}")
            return
        a(f"s_mul_i32 s{self.base}, s2, {self.nw}", f"s_add_u32 s{self.base}, s{self.base}, s{wave}", f"s_lshl_b32 s{self.base}, s{self.base}, 6",
          f"s_add_u32 s{self.base}, s{self.base}, {WS_STAMP + self.kidx * 0x100000}",
          f"v_and_b32 v{t1}, 63, v0", f"v_lshlrev_b32 v{t1}, 2, v{t1}", f"v_add_u32 v{t1}, s{self.base}, v{t1}",
          "s_mov_b64 exec, 0xffff", f"global_store_dword v{t1}, v{t0}, s[{ws}:{ws+1}]")

def srd(a, r, lo, hi, num, stride=0):
    a(f"s_mov_b32 s{r}, s{lo}")
    if stride: a(f"s_or_b32 s{r+1}, s{hi}, {stride << 16:#x}")
    else: a(f"s_mov_b32 s{r+1}, s{hi}")
    a(f"s_mov_b32 s{r+2}, {num}", f"s_mov_b32 s{r+3}, 0x20000")

K1_DA = 32768; K1_CNT = 40960; K1_LDS = K1_CNT + 1024
def gen_k1(opt):
    a = Asm(); st = Stamps(a, opt.get("stamp"), 70, 0, 16)
    a.label("mpnn_bin_kernel")
    if opt.get("cpf") == 2:
        a("s_getpc_b64 s[48:49]", "v_lshlrev_b32 v54, 7, v0", "v_min_u32 v54, K2_END-mpnn_bin_kernel-4, v54", "global_load_dword v55, v54, s[48:49]")
    a("s_cmp_ge_u32 s2, 256", "s_cbranch_scc1 K1_END")
    a("s_load_dwordx8 s[4:11], s[0:1], 0", "s_load_dwordx4 s[12:15], s[0:1], 32", "s_load_dwordx2 s[16:17], s[0:1], 64")
    a("v_lshrrev_b32 v1, 6, v0", "v_lshlrev_b32 v7, 4, v0", "v_readfirstlane_b32 s3, v1", "v_lshlrev_b32 v4, 3, v0")
    a("v_mov_b32 v46, -1", "v_mov_b32 v47, -1", f"ds_write_b64 v4, v[46:47] offset:{K1_DA}",
      "v_and_b32 v45, 255, v0", "v_lshlrev_b32 v44, 2, v45", "v_lshlrev_b32 v45, 5, v45", f"ds_write_b32 v44, v45 offset:{K1_CNT}")
    a("s_and_b32 s40, s2, 7", "s_lshr_b32 s41, s2, 3")
    a(f"s_mov_b32 s34, {WS_END}", "s_mov_b32 s35, 0x20000")
    CO = 44
    def co_addr():
        a("s_lshl_b32 s42, s40, 5", "s_add_u32 s42, s42, s41",
          "s_lshl_b32 s43, s42, 5", f"s_add_u32 s43, s43, {WS_DA}", "s_lshl_b32 s44, s42, 7", "s_lshl_b32 s42, s42, 6", f"s_add_u32 s44, s44, {WS_RB}", f"s_add_u32 s42, s42, {WS_RA}")
        a(f"v_lshrrev_b32 v{CO+6}, 2, v0", f"v_and_b32 v{CO+5}, 3, v0", f"v_lshlrev_b32 v{CO+1}, 13, v{CO+6}", f"v_lshl_add_u32 v{CO+1}, v{CO+5}, 3, v{CO+1}", f"v_lshlrev_b32 v{CO}, 1, v{CO+1}", f"v_lshl_add_u32 v{CO+8}, v{CO+6}, 14, v{CO}",
          f"v_lshlrev_b32 v{CO+2}, 7, v{CO+6}", f"v_lshl_add_u32 v{CO+2}, v{CO+5}, 4, v{CO+2}", f"v_and_b32 v{CO+3}, 64, v0", f"v_add_u32 v{CO+2}, v{CO+2}, v{CO+3}", f"v_xor_b32 v{CO+3}, 64, v{CO+2}",
          f"v_bfe_u32 v{CO+4}, v0, 4, 2", f"v_xor_b32 v{CO+5}, v{CO+5}, v{CO+4}", f"v_lshlrev_b32 v{CO+6}, 5, v{CO+6}", f"v_lshl_add_u32 v{CO+5}, v{CO+5}, 2, v{CO+6}", f"v_add_u32 v{CO+5}, 16, v{CO+5}",
          *([f"v_add_u32 v{CO+5}, 16, v{CO+6}"] if opt.get("bfull", 1) else []), f"v_add_u32 v{CO+6}, 32, v{CO+6}", f"v_and_b32 v{CO+4}, 0x3fc, v0", f"v_lshlrev_b32 v{CO+7}, 3, v0")
    a("s_cmp_ge_u32 s3, 13", "s_cbranch_scc1 K1_P")
    DST, SRC, EE, B, DL, S, LIM, REC = 8, 12, 16, 20, 24, 28, 32, 36
    a(f"s_mul_i32 s18, s2, {CH}", f"s_sub_u32 s19, {E}, s18", f"s_min_u32 s19, s19, {CH}", "s_lshl_b32 s36, s18, 2", "s_lshl_b32 s37, s18, 1")
    for r, n in ((20, E * 4), (24, E * 4), (28, E * 2)): a(f"s_mov_b32 s{r+2}, {n}", f"s_mov_b32 s{r+3}, 0x20000")
    a("v_lshlrev_b32 v1, 2, v0", "v_cmp_gt_u32 vcc, s19, v1")
    if opt.get("cpf") == 1:
        a("s_cmp_lg_u32 s3, 12", "s_cbranch_scc1 K1_NPF", "s_getpc_b64 s[48:49]")
        a.label("K1_PC")
        a("s_add_u32 s48, s48, mpnn_msg_kernel-K1_PC", "s_addc_u32 s49, s49, 0", "v_and_b32 v54, 63, v0", "v_lshlrev_b32 v54, 7, v54",
          "v_min_u32 v54, K2_END-mpnn_msg_kernel, v54", "global_load_dword v55, v54, s[48:49]")
        a.label("K1_NPF")
    a("s_waitcnt lgkmcnt(0)")
    st()
    a("s_mov_b32 s20, s10", "s_mov_b32 s21, s11", f"buffer_load_dwordx4 {vr(DST,4)}, v7, s[20:23], s36 offen {opt.get('lflag', '')}")
    a("s_mov_b32 s24, s8", "s_mov_b32 s25, s9", "s_mov_b32 s28, s6", "s_mov_b32 s29, s7", "s_mov_b32 s32, s16", "s_mov_b32 s33, s17")
    a("s_barrier")
    a(f"buffer_load_dwordx4 {vr(SRC,4)}, v7, s[24:27], s36 offen {opt.get('lflag', '')}", f"buffer_load_dwordx2 {vr(EE,2)}, v4, s[28:31], s37 offen {opt.get('lflag', '')}")
    co_addr()
    if opt.get("tlb"):
        a("s_cmp_lg_u32 s3, 12", "s_cbranch_scc1 K1_NT", "v_and_b32 v54, 63, v0", f"v_mul_u32_u24 v54, {opt['tlb']}, v54", "buffer_load_dword v55, v54, s[32:35], 0 offen", "s_waitcnt vmcnt(1)")
        a.label("K1_NT")
    a("v_mov_b32 v6, 1", "s_movk_i32 s38, -98", "s_mov_b32 s39, 0xffff0000")
    a("s_mov_b64 exec, vcc", "s_cbranch_execz K1_B1")
    a("s_waitcnt vmcnt(2)")
    st()
    for i in range(4):
        a(f"v_mul_u32_u24 v{B+i}, 21400, v{DST+i}", f"v_lshrrev_b32 v{B+i}, 21, v{B+i}", f"v_lshlrev_b32 v{S+i}, 2, v{B+i}",
          f"ds_add_rtn_u32 v{S+i}, v{S+i}, v6 offset:{K1_CNT}")
    for i in range(4): a(f"v_mad_i32_i24 v{DL+i}, v{B+i}, s38, v{DST+i}", f"v_lshl_or_b32 v{LIM+i}, v{B+i}, 5, 31", f"v_and_b32 v{B+i}, 31, v{B+i}")
    for i in range(4):
        a(f"s_waitcnt lgkmcnt(3)", f"v_min_u32 v{S+i}, v{S+i}, v{LIM+i}", f"v_xor_b32 v{S+i}, v{S+i}, v{B+i}", f"ds_write_b8 v{S+i}, v{DL+i} offset:{K1_DA}")
    for i in range(4): a(f"v_lshlrev_b32 v{LIM+i}, 2, v{S+i}")
    a("s_waitcnt vmcnt(0)")
    st()
    if opt.get("smask"):
        for i in range(4): a(f"v_and_b32 v{SRC+i}, {opt['smask']}, v{SRC+i}")
    for i in range(4):
        if i % 2 == 0: a(f"v_lshl_or_b32 v{REC+i}, v{EE+i//2}, 16, v{SRC+i}")
        else: a(f"v_and_or_b32 v{REC+i}, v{EE+i//2}, s39, v{SRC+i}")
        a(f"ds_write_b32 v{LIM+i}, v{REC+i}")
    a.label("K1_B1")
    a("s_mov_b64 exec, -1")
    st.k = 3; st()
    a("s_waitcnt lgkmcnt(0)", "s_barrier")
    st()
    a(f"ds_read_b128 v[8:11], v{CO+2}", f"ds_read_b32 v18, v{CO+4} offset:{K1_CNT}", f"ds_read_b64 v[16:17], v{CO+7} offset:{K1_DA}", f"ds_read_b128 v[12:15], v{CO+3}")
    a("s_waitcnt lgkmcnt(3)", f"buffer_store_dwordx4 v[8:11], v{CO}, s[32:35], s42 offen {opt.get('dflag', '')}")
    a("s_waitcnt lgkmcnt(1)", f"v_cmp_gt_u32 vcc, v18, v{CO+6}", f"v_cmp_gt_u32 s[46:47], v18, v{CO+5}", "s_cbranch_vccnz K1_OV")
    a.label("K1_OVR")
    x = opt.get("x1", "")
    if "d" not in x: a(f"buffer_store_dwordx2 v[16:17], v{CO+1}, s[32:35], s43 offen {opt.get('dflag', '')}")
    if "b" not in x: a("s_mov_b64 exec, s[46:47]", "s_waitcnt lgkmcnt(0)", f"buffer_store_dwordx4 v[12:15], v{CO+8}, s[32:35], s44 offen", *([] if opt.get("bhalf", 1) else [f"buffer_store_dwordx4 v[8:11], v{CO+8}, s[32:35], s44 offen offset:64"]))
    if st.on: a("s_waitcnt vmcnt(0)")
    st.flush(16, 3, 20, 21)
    if opt.get("kp"):
        a("s_mov_b64 exec, -1", f"s_mul_i32 s45, s41, {782*128}", "v_lshlrev_b32 v60, 7, v0", f"v_cmp_gt_u32 vcc, {opt['kp']}, v0", "s_and_b64 exec, exec, vcc", "s_cbranch_execz K1_END", "buffer_load_dword v61, v60, s[32:35], s45 offen")
    a.label("K1_END")
    a("s_endpgm")
    a.label("K1_OV")
    a(f"v_mov_b32 v18, {MARK:#x}", "v_cndmask_b32 v16, v16, v18, vcc", "v_cndmask_b32 v17, v17, v18, vcc", "s_branch K1_OVR")
    W, A, X, D, O, FR = 8, 40, 72, 96, 112, 120
    a.label("K1_P")
    a("v_and_b32 v1, 15, v0", "v_bfe_u32 v2, v0, 4, 2",
      "v_lshlrev_b32 v3, 10, v2", "v_lshl_add_u32 v5, v1, 1, v3", "v_lshl_add_u32 v3, v1, 3, v3",
      "v_lshlrev_b32 v4, 7, v1", "v_lshl_add_u32 v4, v2, 4, v4")
    a("s_mul_i32 s18, s41, 3", "s_add_u32 s18, s18, s3", "s_sub_u32 s18, s18, 13",
      "s_mul_i32 s36, s40, 196", "s_add_u32 s36, s36, s18",
      "s_lshl_b32 s36, s36, 11", f"s_add_u32 s37, s36, {96*2048}", f"s_add_u32 s38, s36, {192*2048}", "s_movk_i32 s39, 4096")
    for r, n in ((20, 129 * 128), (24, N * 128), (28, N * 128), (48, 128 * 128)): a(f"s_mov_b32 s{r+2}, {n}", f"s_mov_b32 s{r+3}, 0x20000")
    a("s_sub_u32 s19, s2, 16", "s_cmp_eq_u32 s3, 15", "s_cselect_b32 s19, s19, 100")
    a("s_waitcnt lgkmcnt(0)")
    st.k = 0; st()
    a("s_mov_b32 s24, s4", "s_mov_b32 s25, s5", "s_mov_b32 s20, s12", "s_mov_b32 s21, s13")
    a("s_cmp_le_u32 s19, 24", "s_cbranch_scc1 K1_FL")
    a.label("K1_FLR")
    for i in range(2):
        for s in range(2): a(f"buffer_load_dwordx4 {vr(X+8*i+4*s,4)}, v4, s[24:27], s{36+i} offen offset:{64*s} {opt.get('xflag', '')}")
    for s in range(2):
        for kk in range(8): a(f"buffer_load_dwordx2 {vr(W+16*s+2*kk,2)}, v3, s[20:23], {'s39' if s else '0'} offen offset:{128*kk}")
    a("s_cmp_lt_u32 s18, 4", "s_cselect_b64 exec, -1, 0")
    for s in range(2): a(f"buffer_load_dwordx4 {vr(X+16+4*s,4)}, v4, s[24:27], s38 offen offset:{64*s}")
    a("s_mov_b64 exec, -1")
    a("s_barrier")
    a("s_mov_b32 s28, s16", "s_mov_b32 s29, s17", "s_mov_b32 s32, s16", "s_mov_b32 s33, s17")
    a("s_mov_b32 s44, 0x05040100", "s_mov_b32 s45, 0x07060302", f"s_mov_b32 s46, {NLOG2E:#x}", f"s_mov_b32 s47, {NLOG2E:#x}")
    a("s_waitcnt vmcnt(2)")
    st()
    for tau in range(4):
        for s in range(2):
            for rr in range(4):
                a(f"v_perm_b32 v{A+8*tau+4*s+rr}, v{W+16*s+2*(2*rr+1)+tau//2}, v{W+16*s+2*(2*rr)+tau//2}, s{44+tau%2}")
    for i in range(3):
        if i == 2:
            a(f"s_cmp_ge_u32 s18, 4", "s_cbranch_scc1 K1_PD", "s_waitcnt vmcnt(4)")
        for tau in range(4): a(mf16(D+4*tau, A+8*tau, X+8*i, "0"))
        for tau in range(4): a(mf16(D+4*tau, A+8*tau+4, X+8*i+4, D+4*tau))
        for k in range(0, 16, 2): a(f"v_pk_mul_f32 {vr(D+k,2)}, {vr(D+k,2)}, s[46:47]")
        for r in range(4):
            for h in range(2): a(f"v_cvt_pk_bf16_f32 v{O+2*r+h}, v{D+4*(2*h)+r}, v{D+4*(2*h+1)+r}")
        a(f"buffer_store_dwordx4 {vr(O,4)}, v4, s[28:31], s{36+i} offen {opt.get('pflag', '')}", f"buffer_store_dwordx4 {vr(O+4,4)}, v4, s[28:31], s{36+i} offen offset:64 {opt.get('pflag', '')}")
    a.label("K1_PD")
    st()
    a("s_cmp_le_u32 s19, 24", "s_cbranch_scc1 K1_FS")
    a.label("K1_PE")
    if opt.get("cpf", 3) == 3:
        a("s_lshr_b32 s19, s2, 5", "s_add_u32 s19, s19, s3", "s_cmp_lg_u32 s19, 18", "s_cbranch_scc1 K1_NPF", "s_getpc_b64 s[48:49]")
        a.label("K1_PC")
        a("s_add_u32 s48, s48, mpnn_msg_kernel-K1_PC", "s_addc_u32 s49, s49, 0", "v_and_b32 v54, 63, v0", "v_lshlrev_b32 v54, 7, v54",
          "v_min_u32 v54, K2_END-mpnn_msg_kernel, v54", "global_load_dword v55, v54, s[48:49]")
        a.label("K1_NPF")
    co_addr()
    a("s_branch K1_B1")
    a.label("K1_FL")
    a("s_cmp_eq_u32 s19, 8", "s_cbranch_scc1 K1_FA", "s_cmp_gt_u32 s19, 8", "s_cbranch_scc1 K1_FU")
    a("s_lshr_b32 s42, s19, 1", "s_and_b32 s43, s19, 1", "s_lshl_b32 s42, s42, 5", "s_lshl_b32 s43, s43, 12", "s_add_u32 s43, s43, s42", "s_add_u32 s43, s43, 8192")
    for kk in range(8): a(f"buffer_load_ushort v{FR+kk}, v5, s[20:23], s43 offen offset:{128*kk}")
    a("s_branch K1_FLR")
    a.label("K1_FU")
    a("s_mov_b32 s48, s14", "s_mov_b32 s49, s15")
    a("s_sub_u32 s43, s19, 9", "s_lshr_b32 s42, s43, 2", "s_and_b32 s43, s43, 3", "s_lshl_b32 s42, s42, 5", "s_lshl_b32 s43, s43, 12", "s_add_u32 s43, s43, s42")
    for kk in range(8): a(f"buffer_load_ushort v{FR+kk}, v5, s[48:51], s43 offen offset:{128*kk}")
    a("s_branch K1_FLR")
    a.label("K1_FA")
    a("v_bfe_u32 v5, v0, 3, 2", "v_and_b32 v6, 3, v0", "v_lshl_add_u32 v5, v5, 2, v6", "v_lshlrev_b32 v5, 1, v5", "s_movk_i32 s43, 16384")
    for c in range(4): a(f"buffer_load_ushort v{FR+c}, v5, s[20:23], s43 offen offset:{32*c}")
    a("s_branch K1_FLR")
    a.label("K1_FS")
    a("v_and_b32 v5, 63, v0", "v_lshlrev_b32 v5, 4, v5", "s_lshl_b32 s36, s19, 10", f"s_add_u32 s36, s36, {WS_WF}")
    a("s_cmp_eq_u32 s19, 8", "s_cbranch_scc1 K1_AE")
    for rr in range(4): a(f"v_lshl_or_b32 v{W+rr}, v{FR+2*rr+1}, 16, v{FR+2*rr}")
    a(f"buffer_store_dwordx4 {vr(W,4)}, v5, s[32:35], s36 offen", "s_branch K1_PE")
    a.label("K1_AE")
    a("v_bfe_u32 v2, v0, 2, 1", "v_bfe_u32 v3, v0, 5, 1", "v_cmp_eq_u32 vcc, v2, v3")
    for c in range(4):
        a(f"v_lshlrev_b32 v{FR+c}, 16, v{FR+c}", f"v_mul_f32 v{FR+c}, s46, v{FR+c}", f"v_cvt_pk_bf16_f32 v{FR+c}, 0, v{FR+c}", f"v_cndmask_b32 v{W+c}, 0, v{FR+c}, vcc")
    a(f"buffer_store_dwordx4 {vr(W,4)}, v5, s[32:35], s36 offen", "s_branch K1_PE")
    return a.lines

L_AGB = 0; ASTR = 144
L_QS = L_AGB + 112 * ASTR; QSTR = 272
L_CTR = L_QS + 112 * QSTR; L_OVC = L_CTR + 448; L_FLG = L_CTR + 452; L_CT2 = L_CTR + 512; L_SLOT = L_CTR + 1024; L_OVL = L_SLOT + 512
L_XS = L_OVL + 1024; L_WF = L_XS + 14336
L_ELL = L_WF + 25600; ESTR = 516; EROWS = 83
K2_LDS = L_ELL + 3 * 768 * 16 + 6144
assert K2_LDS >= L_ELL + EROWS * ESTR and L_ELL % 16 == 0 and L_XS % 256 == 0 and L_CTR % 256 == 0 and L_ELL + 512 < (1 << 17), (L_XS, L_ELL)
ZCOL = 112 * 4; DUMP = L_ELL + CAP * ESTR + 400; HCOL = 116 * 4

def gen_k2(opt):
    a = Asm(); st = Stamps(a, opt.get("stamp"), 78, 1, 12)
    perm = opt.get("perm", [0, 1, 2, 3, 10, 6, 5, 4, 11, 9, 8, 7])
    RG = opt.get("ring", 2); small = opt.get("small", 1); dp = opt.get("dprio", [8, 4, 2])
    Q, P, Z0, Z1, NN, DD, EX, BE, AL, AH, AE, IX, VI, VE, LEN, AGA, MFL, OOF, ARD, ARX = \
        8, 24, 56, 72, 88, 104, 120, 136, 140, 144, 148, 152, 154, 155, 159, 160, 161, 162, 163, 164
    WU = BE
    R = Z0
    AD = NN
    TG = DD
    W2 = Q; X = P
    SP, PP5, EH, QC, AC = DD + 8, DD + 9, DD + 10, DD + 11, DD + 12
    SWS, SPT, SX, SO = 24, 28, 32, 36
    MK = 40
    BK = "s76"
    ws = f"s[{SWS}:{SWS+3}]"
    a.label("mpnn_msg_kernel")
    a("s_cmp_ge_u32 s2, 256", "s_cbranch_scc1 K2_END")
    st.early()
    a("s_load_dwordx2 s[20:21], s[0:1], 64", "s_load_dwordx16 s[4:19], s[0:1], 0")
    a("v_lshrrev_b32 v1, 6, v0", "v_lshlrev_b32 v2, 4, v0", "v_readfirstlane_b32 s3, v1")
    for i in range(4): a(f"v_mov_b32 v{Q+i}, 0")
    a(f"v_add_u32 v4, {L_ELL}, v2")
    a("v_and_b32 v5, 255, v0", "v_lshlrev_b32 v5, 2, v5", f"v_add_u32 v6, {L_ELL}, v5", f"v_cmp_gt_u32 vcc, {NB*4}, v5")
    a(f"s_and_b32 {BK}, s2, 7", f"s_lshl_b32 {BK}, {BK}, 5", "s_lshr_b32 s64, s2, 3", f"s_add_u32 {BK}, {BK}, s64")
    a("v_cndmask_b32 v6, 0, v6, vcc", f"ds_write_b32 v5, v6 offset:{L_CTR}")
    for i in range(3): a(f"ds_write_b128 v4, {vr(Q,4)} offset:{12288*i}")
    a(f"v_lshlrev_b32 v5, 3, v0", f"v_add_u32 v5, {L_ELL + 3*12288}, v5", f"ds_write_b64 v5, {vr(Q,2)}")
    a(f"s_lshl_b32 s64, {BK}, 14", f"s_lshl_b32 s62, {BK}, 15", f"s_add_u32 s62, s62, {WS_RB}", f"s_add_u32 s64, s64, {WS_RA - 4096}", "s_add_u32 s65, s64, 8192",
      f"s_lshl_b32 s66, {BK}, 13", f"s_and_b32 s67, {BK}, 16", "s_add_u32 s66, s66, s67", f"s_add_u32 s66, s66, {WS_DA}", "s_xor_b32 s60, s66, 16",
      "s_sub_u32 s66, s66, 2048", "s_add_u32 s67, s66, 4096")
    a(f"s_mul_i32 s69, {BK}, {NB}", f"s_sub_u32 s70, {N}, s69", f"s_min_u32 s70, s70, {NB}", "s_lshl_b32 s70, s70, 7", "s_lshl_b32 s71, s69, 7")
    a("s_and_b32 s72, s3, 3", "s_lshr_b32 s73, s3, 2")
    a(f"s_mov_b32 s{SWS+2}, {WS_END}", f"s_mov_b32 s{SWS+3}, 0x20000", f"s_mov_b32 s{SX+2}, s70", f"s_mov_b32 s{SX+3}, 0x20000")
    a(f"v_and_b32 v4, 3, v0", "v_and_b32 v6, 63, v0", "v_lshlrev_b32 v6, 4, v6")
    a("v_lshlrev_b32 v3, 5, v0", "v_lshrrev_b32 v5, 2, v0", "v_lshlrev_b32 v5, 5, v5", "v_lshl_add_u32 v5, v4, 2, v5")
    BS = opt.get("bs", 0); BP = opt.get("bp", "a")
    if BS: a("v_lshlrev_b32 v166, 3, v6", "s_andn2_b32 s77, s2, 7", "s_add_u32 s77, s77, s3", "s_sub_u32 s77, s77, 4", f"s_mul_i32 s77, s77, {BS*128}", "s_and_b32 s61, s2, 7", f"s_mul_i32 s61, s61, {(25000 - 256*BS)//7*128 if opt.get('xo', 1) else 0}", "s_add_u32 s77, s77, s61")
    def bulk(): a(f"s_mov_b64 exec, {(1 << BS) - 1 if BS < 64 else -1:#x}" if BS <= 32 else f"s_mov_b32 exec_hi, {(1 << (BS-32)) - 1:#x}", "buffer_load_dword v167, v166, s[24:27], s77 offen", "s_mov_b64 exec, -1")
    a("s_cmp_eq_u32 s73, 0")
    a("s_waitcnt lgkmcnt(0)")
    st()
    if opt.get("x1"): a("s_branch K2_FIN")
    a(f"s_mov_b32 s{SWS}, s20", f"s_mov_b32 s{SWS+1}, s21")
    a("s_cbranch_scc0 K2_A1")
    a(f"buffer_load_dwordx4 {vr(TG,4)}, v3, {ws}, s60 offen {opt.get('kflag', '')}")
    a(f"s_add_u32 s{SX}, s4, s71", f"s_addc_u32 s{SX+1}, s5, 0")
    a("v_bfe_u32 v7, v0, 4, 2", "v_lshlrev_b32 v7, 4, v7", "v_xor_b32 v7, v7, v6", "v_xor_b32 v5, 64, v7",
      "s_lshl_b32 s60, s3, 11", f"s_add_u32 s61, s60, {L_XS}", f"s_add_u32 m0, s60, {L_WF}", f"s_add_u32 s63, s60, {WS_WF}")
    a("s_barrier")
    sx = f"s[{SX}:{SX+3}]"
    a(f"buffer_load_dwordx4 v6, {ws}, s63 offen lds", f"buffer_load_dwordx4 v6, {ws}, s63 offen offset:1024 lds", "s_mov_b32 m0, s61", "v_lshlrev_b32 v3, 7, v0")
    a(f"buffer_load_dwordx4 v7, {sx}, s60 offen lds", f"buffer_load_dwordx4 v5, {sx}, s60 offen offset:1024 lds",
      "s_add_u32 m0, s61, 8192", "s_add_u32 s60, s60, 8192", "s_cmp_eq_u32 s3, 3", "s_cbranch_scc1 K2_A3",
      f"buffer_load_dwordx4 v7, {sx}, s60 offen lds", f"buffer_load_dwordx4 v5, {sx}, s60 offen offset:1024 lds")
    a("s_branch K2_A2")
    a.label("K2_A3")
    a(f"s_mov_b32 m0, {L_WF + 8192}", f"s_mov_b32 s60, {WS_WF + 8192}", f"buffer_load_dwordx4 v6, {ws}, s60 offen lds", "s_mov_b64 exec, 0", f"buffer_load_dwordx4 v6, {ws}, s60 offen lds", "s_mov_b64 exec, -1")
    a("s_branch K2_A2")
    a.label("K2_A1")
    a(f"buffer_load_dword v{TG}, v5, {ws}, s66 offen {opt.get('kflag', '')}", f"buffer_load_dword v{TG+1}, v5, {ws}, s67 offen {opt.get('kflag', '')}")
    a("s_barrier")
    a(f"buffer_load_dwordx4 {vr(R,4)}, v2, {ws}, s64 offen {opt.get('kflag', '')}", f"buffer_load_dwordx4 {vr(R+4,4)}, v2, {ws}, s65 offen {opt.get('kflag', '')}")
    if BS and BP == "a": bulk()
    a.label("K2_A2")
    a("s_lshl_b32 s74, s73, 11", f"s_add_u32 s75, s74, {3*2048}", f"s_add_u32 s22, s74, {6*2048}")
    srd(a, SPT, 20, 21, N, stride=128)
    a(f"s_add_u32 s{SO}, s16, s71", f"s_addc_u32 s{SO+1}, s17, 0", f"s_mov_b32 s{SO+2}, s70", f"s_mov_b32 s{SO+3}, 0x20000")
    T = Z1
    if small:
        a(f"v_and_b32 v{T}, 1, v0", f"v_lshlrev_b32 v{T}, 4, v{T}", f"v_mov_b32 v{T+1}, 0x3f80", f"v_lshlrev_b32 v{T}, v{T}, v{T+1}", "v_cmp_gt_u32 vcc, 2, v4",
          f"v_cndmask_b32 v{AL}, 0, v{T}, vcc", f"v_cndmask_b32 v{AL+1}, v{T}, 0, vcc")
    else:
        a(f"v_and_b32 v{T}, 1, v0", f"v_lshlrev_b32 v{T}, 4, v{T}", f"v_mov_b32 v{T+1}, 0x3f80", f"v_lshlrev_b32 v{T}, v{T}, v{T+1}",
          f"v_bfe_u32 v{T+1}, v0, 3, 2", f"v_bfe_u32 v{T+2}, v0, 1, 1", f"v_lshl_add_u32 v{T+1}, v{T+1}, 1, v{T+2}",
          f"v_bfe_u32 v{T+2}, v0, 2, 1", f"v_bfe_u32 v{T+3}, v0, 5, 1", f"v_xor_b32 v{T+2}, v{T+2}, v{T+3}", f"v_lshl_add_u32 v{T+1}, v{T+2}, 3, v{T+1}")
        for k in range(8): a(f"v_cmp_eq_u32 s[{MK+2*k}:{MK+2*k+1}], {k}, v{T+1}")
        for k in range(8): a(f"v_cndmask_b32 v{AL+k}, 0, v{T}, s[{MK+2*k}:{MK+2*k+1}]")
    J, QQ = T, T + 1
    a(f"v_and_b32 v{J}, 15, v0", f"v_bfe_u32 v{QQ}, v0, 4, 2", f"v_lshlrev_b32 v{OOF}, 7, v{J}",
      f"v_lshrrev_b32 v{ARX}, 1, v{J}", f"v_xor_b32 v{ARX}, v{ARX}, v{QQ}", f"v_lshl_add_u32 v{ARX}, v{ARX}, 4, v{OOF}",
      f"s_lshl_b32 s64, s72, 5", f"v_lshl_add_u32 v{OOF}, v{QQ}, 3, v{OOF}", f"v_add_u32 v{OOF}, s64, v{OOF}",
      f"s_mul_i32 s64, s73, {64*QSTR}", f"s_lshl_b32 s65, s72, 6", "s_add_u32 s64, s64, s65", f"s_add_u32 s64, s64, {L_QS - 64*QSTR}",
      f"v_mul_u32_u24 v1, {QSTR}, v{J}", f"v_lshl_add_u32 v1, v{QQ}, 4, v1", "v_add_u32 v1, s64, v1",
      f"s_lshl_b32 s64, s73, 13", f"s_add_u32 s64, s64, {L_XS - 8192}", f"v_add_u32 v2, s64, v{ARX}", "v_xor_b32 v7, 64, v2",
      f"s_lshl_b32 s64, s73, 4", f"v_add_u32 v{J}, s64, v{J}", f"v_mul_u32_u24 v{ARD}, {ASTR}, v{J}", f"v_lshl_add_u32 v{ARD}, v{QQ}, 4, v{ARD}",
      f"s_add_u32 s64, s74, {L_XS}", f"v_add_u32 v{ARX}, s64, v{ARX}")
    a(f"v_lshlrev_b32 v{IX+1}, 4, v4")
    a(f"v_mov_b32 v5, {ESTR}", f"s_movk_i32 s64, {NB*4}", f"s_mov_b32 s65, {DUMP}", "s_mov_b32 s68, 0", "s_mov_b32 s71, 0", "s_mov_b32 s70, 0")
    pk = sum(p << (4 * w) for w, p in enumerate(perm))
    a(f"s_mov_b32 s66, {pk & 0xffffffff:#x}", f"s_mov_b32 s67, {pk >> 32:#x}", "s_lshl_b32 s23, s3, 2", f"s_lshr_b64 s[66:67], s[66:67], s23",
      f"s_and_b32 s23, s66, 15", "s_lshl_b32 s23, s23, 4")
    a(f"v_bfe_u32 v{BE}, v0, 2, 4", f"v_add_u32 v{BE}, s23, v{BE}")
    a(f"v_and_b32 v{BE+2}, 1, v{BE}", f"v_cmp_gt_u32 vcc, 4, v{BE}", f"v_cmp_eq_u32 s[66:67], 0, v{BE+2}",
      f"v_lshlrev_b32 v{BE+1}, 1, v{BE}", f"v_and_b32 v{BE+1}, 0x1fc, v{BE+1}", f"v_subrev_u32 v{BE+1}, 8, v{BE+1}", f"v_lshlrev_b32 v{BE}, 2, v{BE}", f"v_add_u32 v{BE}, {(NB-4)*4}, v{BE}",
      f"s_or_b64 s[58:59], vcc, s[66:67]", f"s_andn2_b64 s[66:67], s[66:67], vcc",
      f"v_cndmask_b32 v{BE+1}, v{BE+1}, v{BE}, vcc",
      f"v_cndmask_b32 v{SP}, 1, 0, vcc", f"v_cndmask_b32 v{PP5}, v5, 0, s[58:59]", f"v_cndmask_b32 v{EH}, 0, 1, s[66:67]",
      f"v_cndmask_b32 v{MFL}, 0, 1.0, s[66:67]", f"v_mov_b32 v{BE+3}, {L_ELL + ZCOL}",
      f"v_lshlrev_b32 v{QC}, 6, v4", f"v_add_u32 v{QC}, {(L_QS - 68*L_ELL) & 0xffffffff:#x}, v{QC}", f"v_lshlrev_b32 v{AC}, 5, v4", f"v_add_u32 v{AC}, {(L_AGB - 36*L_ELL) & 0xffffffff:#x}, v{AC}")
    a(f"s_mov_b32 s66, {NLOG2E:#x}", f"s_mov_b32 s67, {NLOG2E:#x}")
    T = EX; IP = EX + 4
    for k in range(RG + 1): a(f"v_mov_b32 v{IP+2*k+1}, v{IX+1}")
    a("s_cmp_eq_u32 s73, 0", "s_cbranch_scc1 K2_CT")
    def a_round(ad, l, mk):
        for k in range(4): a(f"v_lshlrev_b32_sdwa v{ad+k}, 2, v{l} dst_sel:DWORD dst_unused:UNUSED_PAD src0_sel:DWORD src1_sel:BYTE_{k}")
        for k in range(4): a(f"v_cmp_gt_u32 s[{mk+2*k}:{mk+2*k+1}], s64, v{ad+k}")
        for k in range(4): a(f"s_mov_b64 exec, s[{mk+2*k}:{mk+2*k+1}]", f"ds_add_rtn_u32 v{ad+k}, v{ad+k}, v5 offset:{L_CTR}")
        a("s_mov_b64 exec, -1")
    stk = st.k
    ellpre = 0
    def ellw():
        for k in range(8):
            if k % 4 == 0: a(f"s_waitcnt vmcnt({1 - k//4 + (1 if BS else 0)})")
            if k == 4 and st.on == 1: a("s_memrealtime s[100:101]")
            a(f"v_min_u32 v{AD+k}, s65, v{AD+k}", f"ds_write_b32 v{AD+k}, v{R+k}")
    a(f"s_lshl_b32 s23, s72, 11", f"s_add_u32 s23, s23, {L_WF}", f"v_add_u32 v3, s23, v6", f"v_mov_b32 v{Z1+4}, 0")
    if BS and BP == "a2": bulk()
    a(f"s_waitcnt vmcnt({2 + (1 if BS and BP != 'b' else 0)})")
    st()
    if BS and BP == "b": bulk()
    a_round(AD, TG, MK); a_round(AD + 4, TG + 1, MK + 8)
    a("s_waitcnt lgkmcnt(0)")
    if ellpre: ellw()
    a("s_barrier")
    st()
    a.label("K2_AB1")
    T = Z1 + 4
    a(f"ds_read_b32 v{T+1}, v{T} offset:{L_OVC}")
    if not ellpre: ellw()
    a("s_waitcnt lgkmcnt(4)", f"v_readfirstlane_b32 s23, v{T+1}")
    a(f"ds_read_b128 {vr(W2,4)}, v3", f"ds_read_b128 {vr(W2+4,4)}, v3 offset:1024")
    for i in range(4): a(f"ds_read_b128 {vr(X+8*i,4)}, v2 offset:{2048*i}", f"ds_read_b128 {vr(X+8*i+4,4)}, v7 offset:{2048*i}")
    a("s_andn2_b32 s23, s23, s68", "s_cbranch_scc1 K2_RESCAN")
    QT = Z1; T = EX
    def gather(slot, ix):
        p = P + 8 * slot
        return [f"buffer_load_dwordx4 {vr(p,4)}, {vr(ix,2)}, s[{SPT}:{SPT+3}], 0 idxen offen",
                f"buffer_load_dwordx4 {vr(p+4,4)}, {vr(ix,2)}, s[{SPT}:{SPT+3}], 0 idxen offen offset:64"]
    stb = st.k
    for r in range(4): a(f"v_cmp_eq_u32 s[{MK+4+2*r}:{MK+5+2*r}], {r}, v4")
    a(f"v_add_u32 v7, {L_WF + 8192}, v6")
    if st.on == 1: a("s_memrealtime s[96:97]", "s_waitcnt lgkmcnt(0)", "s_mov_b32 s97, s100")
    a("s_waitcnt lgkmcnt(%d)" % (0 if st.on == 1 else 10), "s_barrier")
    st()
    a(f"ds_read_b32 v{T}, v{BE+1} offset:{L_SLOT}", f"ds_read_b128 {vr(AE,4)}, v7", "s_waitcnt lgkmcnt(2)")
    for i in range(4): a(mf16(QT+4*i, W2, X+8*i, "0"))
    for i in range(4): a(mf16(QT+4*i, W2+4, X+8*i+4, QT+4*i))
    def slotdec():
        a("s_waitcnt lgkmcnt(1)")
        a(f"v_lshrrev_b32 v{LEN}, 17, v{T}", f"v_add_u32 v{T+1}, v{LEN}, v{SP}", f"v_and_b32 v{T}, 0x1ffff, v{T}", f"v_lshrrev_b32 v{T+1}, 1, v{T+1}", f"v_mad_u32_u24 v{VI}, v{T+1}, v{PP5}, v{T}")
        a(f"ds_read_u16 v{IP}, v{VI}")
    slotdec()
    for i in range(4):
        a(f"v_pk_mul_f32 {vr(QT+4*i,2)}, {vr(QT+4*i,2)}, s[66:67]", f"v_pk_mul_f32 {vr(QT+4*i+2,2)}, {vr(QT+4*i+2,2)}, s[66:67]")
        if i == 3: a(f"s_waitcnt lgkmcnt(3)", *gather(0, IP), "s_cmp_eq_u32 s73, 2", "s_cbranch_scc1 K2_NQ2")
        a(f"ds_write_b128 v1, {vr(QT+4*i,4)} offset:{16*QSTR*i}")
    a("s_branch K2_NQ2")
    a.label("K2_CT")
    st.k = stk
    C0, C1, H0, H1, T0, T1, HH, PS, L4, B0, B1_, LOB, HIB, HA, FOUR = [Q + i for i in range(15)]
    a(f"v_mov_b32 v{Z1+4}, {MARK:#x}", "s_lshl_b32 s60, s3, 12", f"s_add_u32 m0, s60, {L_WF + 9*1024}", f"s_add_u32 s60, s60, {WS_WF + 9*1024}")
    a(f"v_lshlrev_b32 v{L4}, 2, v0", f"v_add_u32 v{B0}, {L_ELL}, v{L4}", f"v_add_u32 v{B1_}, {L_ELL + 256}, v{L4}",
      f"v_mov_b32 v{LOB}, {(CAP-63)*ESTR}", f"v_mov_b32 v{HIB}, {CAP*ESTR}", f"v_mul_u32_u24 v{HA}, {ESTR}, v0", f"v_sub_u32 v{HA}, {L_ELL + HCOL + CAP*ESTR}, v{HA}", f"v_mov_b32 v{FOUR}, 4",
      f"s_mov_b32 s61, {L_ELL + HCOL}")
    AD2 = P + 8; AD3 = P + 24
    for k in range(16): a(f"v_mov_b32 v{AD+k}, -1")
    a("s_waitcnt vmcnt(6)")
    st()
    for j in range(4): a(f"v_cmp_ne_u32 s[{MK+2*j}:{MK+2*j+1}], -1, v{TG+j}")
    a(f"v_cmp_eq_u32 vcc, v{Z1+4}, v{TG}")
    for j in range(4): a(f"s_mov_b64 exec, s[{MK+2*j}:{MK+2*j+1}]", f"buffer_load_dwordx4 {vr(R+4*j,4)}, v3, {ws}, s62 offen offset:{16*j}")
    a("s_mov_b64 exec, -1")
    for j in range(4):
        a(f"s_cmp_eq_u64 s[{MK+2*j}:{MK+2*j+1}], 0", f"s_cbranch_scc1 K2_TS{j}")
        if j == 3: a("s_waitcnt lgkmcnt(8)")
        for k in range(4): a(f"v_lshlrev_b32_sdwa v{AD2+4*j+k}, 2, v{TG+j} dst_sel:DWORD dst_unused:UNUSED_PAD src0_sel:DWORD src1_sel:BYTE_{k}")
        for k in range(4): a(f"v_cmp_gt_u32 s[{MK+8+2*k}:{MK+9+2*k}], s64, v{AD2+4*j+k}")
        for k in range(4): a(f"s_mov_b64 exec, s[{MK+8+2*k}:{MK+9+2*k}]", f"ds_add_rtn_u32 v{AD+4*j+k}, v{AD2+4*j+k}, v5 offset:{L_CT2}")
        a("s_mov_b64 exec, -1", f"s_bitset1_b32 s70, {j}")
        a.label(f"K2_TS{j}")
    if opt.get("nowu"): a("s_mov_b64 exec, 0")
    for k in range(4): a(f"buffer_load_dwordx4 v6, {ws}, s60 offen offset:{1024*k} lds")
    if opt.get("nowu"): a("s_mov_b64 exec, -1")
    a("s_cbranch_vccnz K2_MARK")
    a.label("K2_MR")
    a("s_waitcnt vmcnt(8) lgkmcnt(0)", "s_barrier")
    st()
    a.label("K2_AB1T")
    a(f"v_and_b32 v{T0}, 0xfc, v{L4}", f"ds_read2st64_b32 {vr(C0,2)}, v{T0} offset0:{L_CTR//256} offset1:{L_CTR//256+1}", f"ds_read2st64_b32 {vr(H0,2)}, v{T0} offset0:{L_CTR//256+2} offset1:{L_CTR//256+3}", "s_setprio 3", "s_mov_b32 s56, -1", "s_mov_b32 s57, 3")
    a("s_waitcnt lgkmcnt(0)", f"v_readlane_b32 s23, v{C1}, 48", f"v_sub_u32 v{C0}, v{C0}, v{B0}", f"v_sub_u32 v{C1}, v{C1}, v{B1_}", f"v_add_u32 v{C0}, v{C0}, v{H0}", f"v_add_u32 v{C1}, v{C1}, v{H1}",
      "s_andn2_b32 s23, s23, s68", "s_cbranch_scc1 K2_RESCAN", "s_cmp_lg_u32 s3, 0", "s_cbranch_scc1 K2_TW")
    for c, h, t in ((C0, H0, T0), (C1, H1, T1)):
        if c == C1: a("s_mov_b64 exec, s[56:57]")
        a(f"v_med3_u32 v{h}, v{c}, v{LOB}, v{HIB}", f"v_add_u32 v{t}, s61, v{h}", f"ds_add_rtn_u32 v{t}, v{t}, v{FOUR}")
    a(f"v_cmp_gt_u32 s[{MK}:{MK+1}], v{C1}, v{HIB}", "s_mov_b64 exec, -1", f"ds_read_b32 v{HH}, v{HA}", f"v_cmp_gt_u32 vcc, v{C0}, v{HIB}")
    for c, h, b in ((C0, H0, B0), (C1, H1, B1_)):
        a(f"v_min_u32 v{c}, v{c}, v{HIB}", f"v_lshrrev_b32 v{c}, 2, v{c}", f"v_mul_u32_u24 v{c}, 509, v{c}", f"v_lshrrev_b32 v{c}, 16, v{c}",
          f"v_max_u32 v{h}, {CAP-63}, v{c}", f"v_sub_u32 v{h}, {CAP}, v{h}", f"v_lshlrev_b32 v{h}, 2, v{h}", f"v_lshl_or_b32 v{c}, v{c}, 17, v{b}")
    a(f"s_or_b64 vcc, vcc, s[{MK}:{MK+1}]", "s_waitcnt lgkmcnt(0)")
    a(f"v_add_u32_dpp v{PS}, v{HH}, v{HH} row_shr:1 row_mask:0xf bank_mask:0xf bound_ctrl:0")
    for k in (2, 4, 8): a(f"v_add_u32_dpp v{PS}, v{PS}, v{PS} row_shr:{k} row_mask:0xf bank_mask:0xf bound_ctrl:0")
    a(f"v_add_u32_dpp v{PS}, v{PS}, v{PS} row_bcast:15 row_mask:0xa bank_mask:0xf", f"v_add_u32_dpp v{PS}, v{PS}, v{PS} row_bcast:31 row_mask:0xc bank_mask:0xf")
    a(f"v_sub_u32 v{PS}, v{PS}, v{HH}", f"ds_bpermute_b32 v{H0}, v{H0}, v{PS}", f"ds_bpermute_b32 v{H1}, v{H1}, v{PS}")
    a(f"v_mov_b32 v{HH}, 0", "s_waitcnt lgkmcnt(1)", f"v_add_u32 v{H0}, v{H0}, v{T0}", f"ds_write_b32 v{H0}, v{C0} offset:{L_SLOT}",
      "s_waitcnt lgkmcnt(1)", "s_mov_b64 exec, s[56:57]", f"v_add_u32 v{H1}, v{H1}, v{T1}", f"ds_write_b32 v{H1}, v{C1} offset:{L_SLOT}", "s_mov_b64 exec, -1")
    a("s_cbranch_vccz K2_TW", f"ds_write_b32 v{HH}, v5 offset:{L_FLG}")
    a.label("K2_TW")
    a.label("K2_CWR")
    for r in range(4): a(f"v_cmp_eq_u32 s[{MK+4+2*r}:{MK+5+2*r}], {r}, v4")
    T = EX
    a(f"v_add_u32 v7, {L_WF + 8192}, v6")
    if st.on == 1: a("s_waitcnt lgkmcnt(0)", "s_memrealtime s[96:97]")
    a("s_waitcnt lgkmcnt(0)", "s_barrier")
    st()
    a(f"ds_read_b32 v{T}, v{BE+1} offset:{L_SLOT}", f"ds_read_b128 {vr(AE,4)}, v7")
    slotdec()
    a(f"s_waitcnt lgkmcnt(0)", *gather(0, IP))
    for j in range(4):
        a(f"s_bitcmp0_b32 s70, {j}", f"s_cbranch_scc1 K2_TR{j}")
        for k in range(4): a(f"ds_read_b32 v{AD3+k}, v{AD2+4*j+k} offset:{L_CTR}")
        for k in range(4): a(f"s_waitcnt lgkmcnt({3-k})", f"v_add_u32 v{AD+4*j+k}, v{AD+4*j+k}, v{AD3+k} clamp", f"v_min_u32 v{AD+4*j+k}, s65, v{AD+4*j+k}")
        a.label(f"K2_TR{j}")
    a("s_waitcnt vmcnt(6)")
    if st.on == 1: a("s_memrealtime s[100:101]", "s_waitcnt lgkmcnt(0)", "s_mov_b32 s97, s100")
    for j in range(4):
        a(f"s_bitcmp0_b32 s70, {j}", f"s_cbranch_scc1 K2_TW{j}")
        if j == 3: a("s_waitcnt lgkmcnt(4)")
        for k in range(4): a(f"ds_write_b32 v{AD+4*j+k}, v{R+4*j+k}")
        a.label(f"K2_TW{j}")
    a.label("K2_NQ2")
    def rde(t): return [f"ds_read_b32 v{BE+r}, v{VE+r} offset:{t*ESTR}" for r in range(4)]
    a(f"v_mov_b32 v{T+1}, 68", f"v_mad_u32_u24 v{T+2}, v{T}, v{T+1}, v{QC}")
    for r in range(4): a(f"v_cndmask_b32 v{VE+r}, v{BE+3}, v{VI}, s[{MK+4+2*r}:{MK+5+2*r}]")
    for i in range(16): a(f"v_mov_b32 v{NN+i}, 0")
    a("s_waitcnt vmcnt(2) lgkmcnt(0)", "s_barrier")
    a(f"ds_read_u16 v{T+3}, v{VI}")
    for k in range(1, RG + 1): a(f"ds_read_u16 v{IP+2*k}, v{VI} offset:{k*ESTR}")
    for k in range(4): a(f"ds_read_b128 {vr(Q+4*k,4)}, v{T+2} offset:{16*k}")
    a(*rde(0), f"ds_read_u16 v{IX}, v{VI} offset:{(RG+1)*ESTR}")
    a(f"s_waitcnt lgkmcnt({RG + 8})", f"v_cmp_ne_u32 vcc, v{T+3}, v{IP}", "s_cbranch_vccnz K2_G0R")
    a.label("K2_G0D")
    a(*gather(1, IP + 2))
    a(f"v_add_u32 v{LEN}, v{LEN}, v{EH}", f"v_lshrrev_b32 v{LEN}, v{SP}, v{LEN}", f"v_mad_u32_u24 v{AGA}, v{T}, 36, v{AC}")
    a(f"v_max_u32_dpp v{T+1}, v{LEN}, v{LEN} row_shr:4 row_mask:0xf bank_mask:0xf bound_ctrl:0")
    for i in range(8): a(f"v_mov_b32 v{DD+i}, 1.0")
    a(f"v_max_u32_dpp v{T+1}, v{T+1}, v{T+1} row_shr:8 row_mask:0xf bank_mask:0xf bound_ctrl:0")
    for i in range(8, 16): a(f"v_mov_b32 v{DD+i}, 1.0")
    a(f"v_readlane_b32 s69, v{T+1}, 15", f"v_readlane_b32 s70, v{T+1}, 31", f"v_readlane_b32 s64, v{T+1}, 47", f"v_readlane_b32 s65, v{T+1}, 63",
      "s_max_u32 s69, s69, s70", "s_max_u32 s64, s64, s65", "s_max_u32 s69, s69, s64", "s_mov_b32 s70, 0")
    a(f"s_lshl_b32 s23, s72, 12", f"s_add_u32 s23, s23, 1024", "v_add_u32 v7, s23, v7")
    a("s_cmp_eq_u32 s69, 0", "s_cbranch_scc1 K2_DONE0")
    a(f"s_waitcnt vmcnt(2) lgkmcnt(0)")
    st()
    if st.on == 1: a("s_memtime s[98:99]", "s_waitcnt lgkmcnt(0)")
    for k in range(2, RG): a(*gather(k, IP + 2*k))
    def sm(z, b, c): return f"v_mfma_f32_4x4x4_16b_bf16 {vr(z,4)}, {vr(AL,2)}, {vr(b,2)}, {vr(c,4)}"
    if small: a(*[sm(Z0+4*i, P+2*i, Q+4*i) for i in range(4)], mf32(Z0, AE, BE, Z0))
    else: a(mf32(Z0, AE, BE, Q), mf32(Z0, AL, P, Z0), mf32(Z0, AH, P + 4, Z0))
    a(*gather(0, IP + 2*RG), *rde(1), "s_nop 3")
    U = max(2, RG)
    a(f"s_branch K2_PRI{U-1}")
    a(".p2align 6")
    for u in range(U):
        a.label(f"K2_L{u}")
        zc = (Z0, Z1)[u % 2]; zn = (Z1, Z0)[u % 2]; p = P + 8 * ((u + 1) % RG)
        ex = [f"v_exp_f32 v{EX+i}, v{zc+i}" for i in range(16)]
        a(f"s_waitcnt vmcnt({2*RG-2}) lgkmcnt(0)")
        if small:
            s4 = [sm(zn+4*i, p+2*i, Q+4*i) for i in range(4)]
            a(s4[0], ex[0], s4[1], ex[1], s4[2], ex[2], s4[3], *ex[3:8], mf32(zn, AE, BE, zn), *ex[8:16])
        else: a(mf32(zn, AE, BE, Q), *ex[0:4], mf32(zn, AL, p, zn), *ex[4:8], mf32(zn, AH, p + 4, zn), *ex[8:16])
        a(*gather((u + 1) % RG, IX), *rde(u + 2), f"ds_read_u16 v{IX}, v{VI} offset:{(u+RG+2)*ESTR}")
        a(f"v_cmpx_lt_u32 vcc, s70, v{LEN}")
        for i in range(0, 16, 2): a(f"v_pk_fma_f32 {vr(NN+i,2)}, {vr(NN+i,2)}, {vr(EX+i,2)}, {vr(NN+i,2)}")
        for i in range(0, 16, 2): a(f"v_pk_fma_f32 {vr(NN+i,2)}, {vr(zc+i,2)}, {vr(DD+i,2)}, {vr(NN+i,2)}")
        for i in range(0, 16, 2): a(f"v_pk_fma_f32 {vr(DD+i,2)}, {vr(DD+i,2)}, {vr(EX+i,2)}, {vr(DD+i,2)}")
        a("s_mov_b64 exec, -1", "s_add_u32 s70, s70, 1", "s_cmp_ge_u32 s70, s64")
        if u < U - 1: a(f"s_cbranch_scc1 K2_PRI{u}")
        else:
            for rg in [VI] + [VE + r for r in range(4)]: a(f"v_add_u32 v{rg}, {U*ESTR}, v{rg}")
            a("s_cbranch_scc0 K2_L0")
    for u in list(range(U - 1, -1, -1)):
        a.label(f"K2_PRI{u}")
        nx = f"K2_L{(u+1)%U}"
        a("s_sub_u32 s65, s69, s70")
        for lv, th in zip((3, 2, 1), dp):
            a(f"s_setprio {lv}", f"s_sub_u32 s64, s69, {th}", f"s_cmp_gt_u32 s65, {th}", f"s_cbranch_scc1 {nx}")
        a("s_setprio 0", "s_mov_b32 s64, s69", "s_cmp_lg_u32 s65, 0", f"s_cbranch_scc1 {nx}")
        if u: a("s_branch K2_DONE")
    a.label("K2_DONE")
    st()
    if st.on == 1: a("s_memtime s[100:101]", "s_waitcnt lgkmcnt(0)", "s_sub_u32 s98, s100, s98")
    XF = Z0; ACC = Q
    a(f"v_xor_b32 v3, 64, v{ARX}")
    for i in range(16): a(f"v_rcp_f32 v{EX+i}, v{DD+i}")
    a("s_waitcnt lgkmcnt(0)")
    for k in range(4): a(f"ds_read_b128 {vr(WU+4*k,4)}, v7 offset:{1024*k}")
    for i in range(3): a(f"ds_read_b128 {vr(XF+8*i,4)}, v{ARX} offset:{6144*i}", f"ds_read_b128 {vr(XF+8*i+4,4)}, v3 offset:{6144*i}")
    a(f"s_mov_b32 s66, {NLN2:#x}", f"s_mov_b32 s67, {NLN2:#x}", f"s_mov_b32 s64, {f2u(2.0**120):#x}")
    for i in range(0, 16, 2): a(f"v_pk_mul_f32 {vr(NN+i,2)}, {vr(NN+i,2)}, s[66:67]")
    a(f"v_max3_f32 v2, v{DD}, v{DD+1}, v{DD+2}")
    for i in range(3, 15, 2): a(f"v_max3_f32 v2, v{DD+i}, v{DD+i+1}, v2")
    a(f"v_max_f32 v2, v{DD+15}, v2")
    for i in range(0, 16, 2): a(f"v_pk_mul_f32 {vr(NN+i,2)}, {vr(NN+i,2)}, {vr(EX+i,2)}")
    a(f"v_pk_mul_f32 {vr(DD,2)}, {vr(NN,2)}, 0")
    for i in range(2, 16, 2): a(f"v_pk_fma_f32 {vr(DD,2)}, {vr(NN+i,2)}, 0, {vr(DD,2)}")
    for i in range(16): a(f"v_fmac_f32_dpp v{NN+i}, v{NN+i}, v{MFL} row_shl:4 row_mask:0xf bank_mask:0xf bound_ctrl:0")
    a(f"v_cmp_u_f32 vcc, v{DD}, v{DD+1}", f"v_cmp_nlt_f32 s[{MK+2}:{MK+3}], v2, s64", f"s_or_b64 vcc, vcc, s[{MK+2}:{MK+3}]")
    for i in range(8): a(f"v_cvt_pk_bf16_f32 v{EX+i}, v{NN+2*i}, v{NN+2*i+1}")
    a("s_waitcnt lgkmcnt(0)", f"s_mov_b64 exec, s[58:59]", f"ds_write_b128 v{AGA}, {vr(EX,4)} offset:{L_AGB}", f"ds_write_b128 v{AGA}, {vr(EX+4,4)} offset:{L_AGB+16}")
    a("s_mov_b64 exec, vcc", "v_mov_b32 v2, 0", f"ds_write_b32 v2, v5 offset:{L_FLG}", "s_mov_b64 exec, -1")
    a(f"s_mov_b32 s66, {NLOG2E:#x}", f"s_mov_b32 s67, {NLOG2E:#x}", "v_mov_b32 v2, 0")
    for i in range(3): a(mf16(ACC+4*i, WU, XF+8*i, "0"))
    for i in range(3): a(mf16(ACC+4*i, WU+4, XF+8*i+4, ACC+4*i))
    a("s_waitcnt lgkmcnt(0)", "s_barrier")
    st()
    a.label("K2_EPI")
    B = Z0; O = EX; TT = NN; WU2 = WU + 8
    a(f"ds_read_b32 v3, v2 offset:{L_FLG}")
    for i in range(3):
        for s in range(2): a(f"ds_read_b128 {vr(B+8*i+4*s,4)}, v{ARD} offset:{L_AGB + 48*ASTR*i + 64*s}")
    a("s_waitcnt lgkmcnt(6)", "v_readfirstlane_b32 s23, v3", "s_andn2_b32 s23, s23, s71", "s_cbranch_scc1 K2_BF")
    def epi_tile(i):
        o = O + 4 * i; t = TT + 4 * i
        a(f"v_pk_mul_f32 {vr(t,2)}, {vr(o,2)}, s[66:67]", f"v_pk_mul_f32 {vr(t+2,2)}, {vr(o+2,2)}, s[66:67]")
        for k in range(4): a(f"v_exp_f32 v{t+k}, v{t+k}")
        a(f"v_pk_add_f32 {vr(t,2)}, {vr(t,2)}, 1.0 op_sel_hi:[1,0]", f"v_pk_add_f32 {vr(t+2,2)}, {vr(t+2,2)}, 1.0 op_sel_hi:[1,0]")
        for k in range(4): a(f"v_rcp_f32 v{t+k}, v{t+k}")
        a(f"v_pk_mul_f32 {vr(t,2)}, {vr(t,2)}, {vr(o,2)}", f"v_pk_mul_f32 {vr(t+2,2)}, {vr(t+2,2)}, {vr(o+2,2)}")
        a(f"v_cvt_pk_bf16_f32 v{o}, v{t}, v{t+1}", f"v_cvt_pk_bf16_f32 v{o+1}, v{t+2}, v{t+3}")
        a(f"buffer_store_dwordx2 {vr(o,2)}, v{OOF}, s[{SO}:{SO+3}], {('s74','s75','s22')[i]} offen")
    for i in range(3):
        a(f"s_waitcnt lgkmcnt({4-2*i})", mf16(O+4*i, WU2, B+8*i, ACC+4*i), mf16(O+4*i, WU2+4, B+8*i+4, O+4*i))
    epi_tile(0); epi_tile(1)
    a("s_cmp_lg_u32 s73, 0", "s_cbranch_scc1 K2_FIN")
    epi_tile(2)
    a.label("K2_FIN")
    if st.on: a("s_waitcnt vmcnt(0)")
    if opt.get("diag"):
        kind, M = opt["diag"]
        a("s_cmp_lg_u32 s3, 0", "s_cbranch_scc1 K2_END", "s_memrealtime s[40:41]", "s_lshl_b32 s42, s2, 10", f"s_add_u32 s42, s42, {WS_STAMP}", "s_add_u32 s44, s20, s42", "s_addc_u32 s45, s21, 0",
          "v_mov_b32 v2, 0", "global_load_dwordx4 v[8:11], v2, s[44:45]", "global_load_dwordx4 v[12:15], v2, s[44:45] offset:16", "s_waitcnt vmcnt(0) lgkmcnt(0)",
          "v_readfirstlane_b32 s46, v8", "v_readfirstlane_b32 s47, v13", "v_readfirstlane_b32 s48, v9", "v_readfirstlane_b32 s49, v10", "s_nop 4")
        a({"k1": "s_sub_u32 s46, s47, s46", "k12": "s_sub_u32 s46, s78, s46", "k2": "s_sub_u32 s46, s40, s78", "tot": "s_sub_u32 s46, s40, s46", "dst": "s_sub_u32 s46, s48, s46", "src": "s_sub_u32 s46, s49, s46",
           "kb3": "s_sub_u32 s46, s92, s80", "ent": "s_sub_u32 s46, s80, s78"}[kind])
        a("s_min_u32 s46, s46, 4000", f"s_mul_i32 s46, s46, {M}")
        a.label("K2_DG")
        a("s_sleep 2", "s_memrealtime s[42:43]", "s_waitcnt lgkmcnt(0)", "s_sub_u32 s42, s42, s40", "s_cmp_lt_u32 s42, s46", "s_cbranch_scc1 K2_DG")
    else: st.flush(20, 3, 2, 3)
    a.label("K2_END")
    a("s_endpgm")

    a.label("K2_G0R")
    a(f"v_mov_b32 v{IP}, v{EX+3}", *gather(0, IP), "s_branch K2_G0D")
    a.label("K2_DONE0")
    a("s_waitcnt vmcnt(0) lgkmcnt(0)", "s_branch K2_DONE")
    a.label("K2_MARK")
    T = Z1
    a("s_mov_b64 exec, vcc", f"v_mov_b32 v{T}, 0", f"v_mov_b32 v{T+1}, 1", f"ds_add_rtn_u32 v{T}, v{T}, v{T+1} offset:{L_OVC}", "s_waitcnt lgkmcnt(0)",
      f"v_and_b32 v{T}, 255, v{T}", f"v_lshlrev_b32 v{T}, 2, v{T}", f"ds_write_b32 v{T}, v0 offset:{L_OVL}", "s_mov_b64 exec, -1", "s_branch K2_MR")

    SD, SS, SE = 40, 44, 48
    a.label("K2_RESCAN")
    srd(a, SD, 10, 11, E * 4); srd(a, SS, 8, 9, E * 4); srd(a, SE, 6, 7, E * 2)
    a("s_mov_b32 s52, 0", f"s_mul_i32 s53, {BK}, {NB}", "s_min_u32 s23, s23, 256", "s_waitcnt lgkmcnt(0)")
    a.label("K2_RS1")
    T = Z1 + 8
    a("s_lshl_b32 s54, s52, 2", f"v_mov_b32 v{T}, s54", f"ds_read_b32 v{T}, v{T} offset:{L_OVL}", "s_waitcnt lgkmcnt(0)", f"v_readfirstlane_b32 s54, v{T}",
      "s_and_b32 s55, s54, 31", "s_lshl_b32 s55, s55, 3", "s_lshr_b32 s54, s54, 5", "s_add_u32 s54, s54, s55",
      f"s_mul_i32 s54, s54, {CH}", f"s_sub_u32 s55, {E}, s54", f"s_min_u32 s55, s55, {CH}",
      f"v_mov_b32 v{T}, v0")
    a.label("K2_RS2")
    a(f"v_add_u32 v{T+1}, s54, v{T}", f"v_lshlrev_b32 v{T+2}, 1, v{T+1}", f"v_lshlrev_b32 v{T+1}, 2, v{T+1}",
      f"buffer_load_dword v{T+3}, v{T+1}, s[{SD}:{SD+3}], 0 offen", f"buffer_load_dword v{T+4}, v{T+1}, s[{SS}:{SS+3}], 0 offen",
      f"buffer_load_ushort v{T+5}, v{T+2}, s[{SE}:{SE+3}], 0 offen", "s_waitcnt vmcnt(0)",
      f"v_subrev_u32 v{T+3}, s53, v{T+3}", f"v_cmp_gt_u32 vcc, {NB}, v{T+3}", f"v_cmp_gt_u32 s[56:57], s55, v{T}", "s_and_b64 exec, vcc, s[56:57]",
      f"v_lshlrev_b32 v{T+3}, 2, v{T+3}", f"ds_add_rtn_u32 v{T+3}, v{T+3}, v5 offset:{L_CTR}", f"v_lshl_or_b32 v{T+4}, v{T+5}, 16, v{T+4}",
      "s_waitcnt lgkmcnt(0)", f"v_min_u32 v{T+3}, s65, v{T+3}", f"ds_write_b32 v{T+3}, v{T+4}", "s_mov_b64 exec, -1",
      f"v_add_u32 v{T}, 768, v{T}", f"v_cmp_gt_u32 vcc, s55, v{T}", "s_cbranch_vccnz K2_RS2")
    a("s_add_u32 s52, s52, 1", "s_cmp_lt_u32 s52, s23", "s_cbranch_scc1 K2_RS1")
    a("s_mov_b32 s68, -1", "s_waitcnt lgkmcnt(0)", "s_barrier", "s_cmp_eq_u32 s73, 0", "s_cbranch_scc1 K2_AB1T", "s_branch K2_AB1")

    a.label("K2_BF")
    T = Z0
    a("s_waitcnt vmcnt(0) lgkmcnt(0)")
    srd(a, SD, 10, 11, E * 4); srd(a, SS, 8, 9, E * 4); srd(a, SE, 6, 7, E * 2); srd(a, 52, 12, 13, 129 * 128)
    for i in range(4): a(f"v_mov_b32 v{T+i}, 0")
    a(f"v_lshlrev_b32 v{T+4}, 4, v0", f"v_add_u32 v{T+4}, {L_ELL}, v{T+4}")
    for i in range(3): a(f"ds_write_b128 v{T+4}, {vr(T,4)} offset:{12288*i}")
    LN, F4, F2, PO, W3 = T + 4, T + 5, T + 6, T + 7, T + 8
    a(f"v_and_b32 v{LN}, 63, v0", f"v_lshlrev_b32 v{F4}, 2, v{LN}", f"v_lshlrev_b32 v{F2}, 1, v{LN}",
      f"v_and_b32 v{PO}, 8, v{LN}", f"v_lshlrev_b32 v{PO}, 3, v{PO}", f"v_and_b32 v{T}, 48, v{LN}", f"v_add_u32 v{PO}, v{PO}, v{T}",
      f"v_and_b32 v{T}, 7, v{LN}", f"v_lshl_add_u32 v{PO}, v{T}, 1, v{PO}",
      "s_movk_i32 s56, 16384", f"buffer_load_ushort v{W3}, v{F2}, s[52:55], s56 offen", "s_waitcnt vmcnt(0) lgkmcnt(0)",
      f"v_lshlrev_b32 v{W3}, 16, v{W3}", f"v_mul_f32 v{W3}, s66, v{W3}",
      f"s_mul_i32 s57, {BK}, {NB}", "s_mov_b32 s56, s3", "s_barrier")
    a.label("K2_BF1")
    DV, SV, EV = T + 9, T + 10, T + 11
    a("s_lshl_b32 s58, s56, 8", "s_lshl_b32 s59, s56, 7",
      f"buffer_load_dword v{DV}, v{F4}, s[{SD}:{SD+3}], s58 offen", "s_waitcnt vmcnt(0)",
      f"v_subrev_u32 v{DV}, s57, v{DV}", f"v_cmp_gt_u32 vcc, {NB}, v{DV}", "s_cbranch_vccz K2_BF3",
      f"buffer_load_dword v{SV}, v{F4}, s[{SS}:{SS+3}], s58 offen", f"buffer_load_ushort v{EV}, v{F2}, s[{SE}:{SE+3}], s59 offen",
      "s_mov_b64 s[60:61], vcc", "s_waitcnt vmcnt(0)")
    a.label("K2_BF2")
    a("s_ff1_i32_b64 s58, s[60:61]", "s_bitset0_b64 s[60:61], s58",
      f"v_readlane_b32 s59, v{SV}, s58", f"v_readlane_b32 s62, v{DV}, s58", f"v_readlane_b32 s63, v{EV}, s58",
      "s_min_u32 s59, s59, %d" % (N - 1), "s_lshl_b32 s59, s59, 7", f"buffer_load_ushort v{T}, v{PO}, s[{SWS}:{SWS+3}], s59 offen",
      f"s_mul_i32 s58, s62, {QSTR}", f"v_add_u32 v{T+1}, s58, v{F4}", f"ds_read_b32 v{T+1}, v{T+1} offset:{L_QS}",
      "s_lshl_b32 s63, s63, 16", "s_lshl_b32 s62, s62, 8", f"s_add_u32 s62, s62, {L_ELL}", f"v_add_u32 v{T+2}, s62, v{F4}",
      "s_waitcnt vmcnt(0) lgkmcnt(0)",
      f"v_lshlrev_b32 v{T}, 16, v{T}", f"v_add_f32 v{T}, v{T}, v{T+1}", f"v_fma_f32 v{T}, s63, v{W3}, v{T}",
      f"v_exp_f32 v{T+1}, v{T}", f"v_add_f32 v{T+1}, 1.0, v{T+1}", f"v_rcp_f32 v{T+1}, v{T+1}", f"v_mul_f32 v{T}, {NLN2:#x}, v{T}", f"v_mul_f32 v{T}, v{T}, v{T+1}",
      f"ds_add_f32 v{T+2}, v{T}", "s_cmp_lg_u64 s[60:61], 0", "s_cbranch_scc1 K2_BF2")
    a.label("K2_BF3")
    a("s_add_u32 s56, s56, 12", f"s_cmp_lt_u32 s56, {E//64}", "s_cbranch_scc1 K2_BF1")
    a("s_waitcnt lgkmcnt(0)", "s_barrier", f"v_mov_b32 v{T+4}, v0")
    a.label("K2_BF4")
    a(f"v_lshlrev_b32 v{T+5}, 3, v{T+4}", f"v_add_u32 v{T+5}, {L_ELL}, v{T+5}", f"ds_read_b64 {vr(T,2)}, v{T+5}",
      f"v_lshrrev_b32 v{T+5}, 5, v{T+4}", f"v_mul_u32_u24 v{T+5}, {ASTR}, v{T+5}", f"v_and_b32 v{T+6}, 31, v{T+4}", f"v_lshl_add_u32 v{T+5}, v{T+6}, 2, v{T+5}",
      "s_waitcnt lgkmcnt(0)", f"v_cvt_pk_bf16_f32 v{T}, v{T}, v{T+1}", f"ds_write_b32 v{T+5}, v{T} offset:{L_AGB}",
      f"v_add_u32 v{T+4}, 768, v{T+4}", f"v_cmpx_gt_u32 vcc, {NB*32}, v{T+4}", "s_cbranch_execnz K2_BF4")
    a("s_mov_b64 exec, -1", "s_mov_b32 s71, -1", "s_waitcnt lgkmcnt(0)", "s_barrier", "s_branch K2_EPI")
    return a.lines

def kd(name, vg, sg=102):
    return f""".amdhsa_kernel {name}
  .amdhsa_next_free_vgpr {vg}
  .amdhsa_next_free_sgpr {sg}
  .amdhsa_accum_offset {vg}
  .amdhsa_group_segment_fixed_size 0
  .amdhsa_kernarg_size 72
  .amdhsa_user_sgpr_count 2
  .amdhsa_user_sgpr_kernarg_segment_ptr 1
  .amdhsa_system_sgpr_workgroup_id_x 1
.end_amdhsa_kernel"""

def build(opt=None):
    opt = opt or {}
    out = ["; mpnn edge MLP: K1 bins edges by destination bucket and builds the P' table, K2 aggregates and updates",
           f"; @launch kernel=mpnn_bin_kernel grid=(256,1,1) block=(1024,1,1) lds={K1_LDS}",
           f"; @launch kernel=mpnn_msg_kernel grid=(256,1,1) block=(768,1,1) lds={K2_LDS}",
           '.amdgcn_target "amdgcn-amd-amdhsa--gfx950"', ".text"]
    for name, fn in (("mpnn_bin_kernel", gen_k1), ("mpnn_msg_kernel", gen_k2)):
        lines, nn = fix_hazards(fn(opt), verbose=opt.get("verbose"))
        out += [f".globl {name}", ".p2align 8", f".type {name},@function"] + lines
    out += ['.section .rodata,"a"', ".p2align 6", kd("mpnn_bin_kernel", 128), ".p2align 6", kd("mpnn_msg_kernel", 168)]
    return "\n".join(out) + "\n"

if __name__ == "__main__":
    import argparse
    ap = argparse.ArgumentParser(); ap.add_argument("-o", default="standalone__mpnn_edge_mlp__graph.s")
    ap.add_argument("--stamp", type=int, default=0); ap.add_argument("-v", action="store_true"); ap.add_argument("--opt", default="{}")
    g = ap.parse_args()
    open(g.o, "w").write(build({"stamp": g.stamp, "verbose": g.v, **eval(g.opt)}))
```

```python
import sys, struct, math
sys.path.insert(0, "gen")
from asmlib import *

N = 25000; E = 800000; NB = 98; CH = 3128; CAP = 72
WS_RA = 0x400000; WS_DA = 0x800000; WS_RB = 0xA00000; WS_WF = 0x380000; WS_END = WS_RB + 0x800000
MARK = 0xFEFEFEFE
WS_STAMP = 0x1400000
f2u = lambda f: struct.unpack("<I", struct.pack("<f", f))[0]
NLOG2E = f2u(-1.4426950408889634); NLN2 = f2u(-0.6931471805599453)
NTILE = (N + 15) // 16

def mf16(d, a, b, c): return f"v_mfma_f32_16x16x32_bf16 {vr(d,4)}, {vr(a,4)}, {vr(b,4)}, {c if isinstance(c,str) else vr(c,4)}"
def mf32(d, a, b, c): return f"v_mfma_f32_32x32x16_bf16 {vr(d,16)}, {vr(a,4)}, {vr(b,4)}, {vr(c,16)}"

class Stamps:
    def __init__(self, a, on, base, kidx, nw): self.a = a; self.on = on; self.base = base; self.k = 0; self.kidx = kidx; self.nw = nw
    def __call__(self):
        if not self.on: return
        r = self.base + 2 * self.k; self.k += 1
        if self.on == 3 and (self.k - 1) not in ((0, 5), (0, 1, 7, 8))[self.kidx]: return
        self.a(f"s_waitcnt lgkmcnt(0)", f"s_memrealtime s[{r}:{r+1}]", "s_waitcnt lgkmcnt(0)")
    def early(self):
        if not self.on: return
        r = self.base + 2 * self.k; self.k += 1
        self.a(f"s_memrealtime s[{r}:{r+1}]")
    def flush(self, ws, wave, t0, t1):
        if not self.on: return
        a = self.a
        self()
        a("s_mov_b64 exec, -1")
        a(f"v_mov_b32 v{t0}, 0")
        for k in range(self.k): a(f"v_writelane_b32 v{t0}, s{self.base+2*k}, {k}")
        if self.kidx == 1: a(f"v_writelane_b32 v{t0}, s98, 13", f"v_writelane_b32 v{t0}, s96, 12", f"v_writelane_b32 v{t0}, s97, 11", f"v_writelane_b32 v{t0}, s69, 15", f"s_getreg_b32 s69, hwreg(HW_REG_HW_ID)", f"v_writelane_b32 v{t0}, s69, 14")
        if self.on == 2 and self.kidx == 1:
            b = self.base
            a(f"s_add_u32 s{b}, s2, s{wave}", f"s_cmp_lg_u32 s{b}, 0", f"s_cbranch_scc1 STK{self.kidx}",
              f"s_load_dwordx2 s[{b}:{b+1}], s[0:1], 56", f"v_and_b32 v{t1}, 63, v0", f"v_lshlrev_b32 v{t1}, 2, v{t1}",
              f"v_add_u32 v{t1+1}, {WS_STAMP}, v{t1}", f"global_load_dword v{t1+1}, v{t1+1}, s[{ws}:{ws+1}]",
              "s_waitcnt vmcnt(0) lgkmcnt(0)", f"s_mov_b64 exec, 0x3ff", f"global_store_dword v{t1}, v{t0}, s[{b}:{b+1}] offset:24",
              f"s_mov_b64 exec, 0x3f", f"global_store_dword v{t1}, v{t1+1}, s[{b}:{b+1}]")
            a.label(f"STK{self.kidx}")
            return
        a(f"s_mul_i32 s{self.base}, s2, {self.nw}", f"s_add_u32 s{self.base}, s{self.base}, s{wave}", f"s_lshl_b32 s{self.base}, s{self.base}, 6",
          f"s_add_u32 s{self.base}, s{self.base}, {WS_STAMP + self.kidx * 0x100000}",
          f"v_and_b32 v{t1}, 63, v0", f"v_lshlrev_b32 v{t1}, 2, v{t1}", f"v_add_u32 v{t1}, s{self.base}, v{t1}",
          "s_mov_b64 exec, 0xffff", f"global_store_dword v{t1}, v{t0}, s[{ws}:{ws+1}]")

def srd(a, r, lo, hi, num, stride=0):
    a(f"s_mov_b32 s{r}, s{lo}")
    if stride: a(f"s_or_b32 s{r+1}, s{hi}, {stride << 16:#x}")
    else: a(f"s_mov_b32 s{r+1}, s{hi}")
    a(f"s_mov_b32 s{r+2}, {num}", f"s_mov_b32 s{r+3}, 0x20000")

K1_DA = 32768; K1_CNT = 40960; K1_LDS = K1_CNT + 1024
def gen_k1(opt):
    a = Asm(); st = Stamps(a, opt.get("stamp"), 70, 0, 16)
    a.label("mpnn_bin_kernel")
    if opt.get("cpf") == 2:
        a("s_getpc_b64 s[48:49]", "v_lshlrev_b32 v54, 7, v0", "v_min_u32 v54, K2_END-mpnn_bin_kernel-4, v54", "global_load_dword v55, v54, s[48:49]")
    a("s_cmp_ge_u32 s2, 256", "s_cbranch_scc1 K1_END")
    a("s_load_dwordx8 s[4:11], s[0:1], 0", "s_load_dwordx4 s[12:15], s[0:1], 32", "s_load_dwordx2 s[16:17], s[0:1], 64")
    a("v_lshrrev_b32 v1, 6, v0", "v_lshlrev_b32 v7, 4, v0", "v_readfirstlane_b32 s3, v1", "v_lshlrev_b32 v4, 3, v0")
    a("v_mov_b32 v46, -1", "v_mov_b32 v47, -1", f"ds_write_b64 v4, v[46:47] offset:{K1_DA}",
      "v_and_b32 v45, 255, v0", "v_lshlrev_b32 v44, 2, v45", "v_lshlrev_b32 v45, 5, v45", f"ds_write_b32 v44, v45 offset:{K1_CNT}")
    a("s_and_b32 s40, s2, 7", "s_lshr_b32 s41, s2, 3")
    a(f"s_mov_b32 s34, {WS_END}", "s_mov_b32 s35, 0x20000")
    CO = 44
    def co_addr():
        a("s_lshl_b32 s42, s40, 5", "s_add_u32 s42, s42, s41",
          "s_lshl_b32 s43, s42, 5", f"s_add_u32 s43, s43, {WS_DA}", "s_lshl_b32 s44, s42, 7", "s_lshl_b32 s42, s42, 6", f"s_add_u32 s44, s44, {WS_RB}", f"s_add_u32 s42, s42, {WS_RA}")
        a(f"v_lshrrev_b32 v{CO+6}, 2, v0", f"v_and_b32 v{CO+5}, 3, v0", f"v_lshlrev_b32 v{CO+1}, 13, v{CO+6}", f"v_lshl_add_u32 v{CO+1}, v{CO+5}, 3, v{CO+1}", f"v_lshlrev_b32 v{CO}, 1, v{CO+1}", f"v_lshl_add_u32 v{CO+8}, v{CO+6}, 14, v{CO}",
          f"v_lshlrev_b32 v{CO+2}, 7, v{CO+6}", f"v_lshl_add_u32 v{CO+2}, v{CO+5}, 4, v{CO+2}", f"v_and_b32 v{CO+3}, 64, v0", f"v_add_u32 v{CO+2}, v{CO+2}, v{CO+3}", f"v_xor_b32 v{CO+3}, 64, v{CO+2}",
          f"v_bfe_u32 v{CO+4}, v0, 4, 2", f"v_xor_b32 v{CO+5}, v{CO+5}, v{CO+4}", f"v_lshlrev_b32 v{CO+6}, 5, v{CO+6}", f"v_lshl_add_u32 v{CO+5}, v{CO+5}, 2, v{CO+6}", f"v_add_u32 v{CO+5}, 16, v{CO+5}",
          *([f"v_add_u32 v{CO+5}, 16, v{CO+6}"] if opt.get("bfull", 1) else []), f"v_add_u32 v{CO+6}, 32, v{CO+6}", f"v_and_b32 v{CO+4}, 0x3fc, v0", f"v_lshlrev_b32 v{CO+7}, 3, v0")
    a("s_cmp_ge_u32 s3, 13", "s_cbranch_scc1 K1_P")
    DST, SRC, EE, B, DL, S, LIM, REC = 8, 12, 16, 20, 24, 28, 32, 36
    a(f"s_mul_i32 s18, s2, {CH}", f"s_sub_u32 s19, {E}, s18", f"s_min_u32 s19, s19, {CH}", "s_lshl_b32 s36, s18, 2", "s_lshl_b32 s37, s18, 1")
    for r, n in ((20, E * 4), (24, E * 4), (28, E * 2)): a(f"s_mov_b32 s{r+2}, {n}", f"s_mov_b32 s{r+3}, 0x20000")
    a("v_lshlrev_b32 v1, 2, v0", "v_cmp_gt_u32 vcc, s19, v1")
    if opt.get("cpf") == 1:
        a("s_cmp_lg_u32 s3, 12", "s_cbranch_scc1 K1_NPF", "s_getpc_b64 s[48:49]")
        a.label("K1_PC")
        a("s_add_u32 s48, s48, mpnn_msg_kernel-K1_PC", "s_addc_u32 s49, s49, 0", "v_and_b32 v54, 63, v0", "v_lshlrev_b32 v54, 7, v54",
          "v_min_u32 v54, K2_END-mpnn_msg_kernel, v54", "global_load_dword v55, v54, s[48:49]")
        a.label("K1_NPF")
    a("s_waitcnt lgkmcnt(0)")
    st()
    a("s_mov_b32 s20, s10", "s_mov_b32 s21, s11", f"buffer_load_dwordx4 {vr(DST,4)}, v7, s[20:23], s36 offen {opt.get('lflag', '')}")
    a("s_mov_b32 s24, s8", "s_mov_b32 s25, s9", "s_mov_b32 s28, s6", "s_mov_b32 s29, s7", "s_mov_b32 s32, s16", "s_mov_b32 s33, s17")
    a("s_barrier")
    a(f"buffer_load_dwordx4 {vr(SRC,4)}, v7, s[24:27], s36 offen {opt.get('lflag', '')}", f"buffer_load_dwordx2 {vr(EE,2)}, v4, s[28:31], s37 offen {opt.get('lflag', '')}")
    co_addr()
    if opt.get("tlb"):
        a("s_cmp_lg_u32 s3, 12", "s_cbranch_scc1 K1_NT", "v_and_b32 v54, 63, v0", f"v_mul_u32_u24 v54, {opt['tlb']}, v54", "buffer_load_dword v55, v54, s[32:35], 0 offen", "s_waitcnt vmcnt(1)")
        a.label("K1_NT")
    a("v_mov_b32 v6, 1", "s_movk_i32 s38, -98", "s_mov_b32 s39, 0xffff0000")
    a("s_mov_b64 exec, vcc", "s_cbranch_execz K1_B1")
    a("s_waitcnt vmcnt(2)")
    st()
    for i in range(4):
        a(f"v_mul_u32_u24 v{B+i}, 21400, v{DST+i}", f"v_lshrrev_b32 v{B+i}, 21, v{B+i}", f"v_lshlrev_b32 v{S+i}, 2, v{B+i}",
          f"ds_add_rtn_u32 v{S+i}, v{S+i}, v6 offset:{K1_CNT}")
    for i in range(4): a(f"v_mad_i32_i24 v{DL+i}, v{B+i}, s38, v{DST+i}", f"v_lshl_or_b32 v{LIM+i}, v{B+i}, 5, 31", f"v_and_b32 v{B+i}, 31, v{B+i}")
    for i in range(4):
        a(f"s_waitcnt lgkmcnt(3)", f"v_min_u32 v{S+i}, v{S+i}, v{LIM+i}", f"v_xor_b32 v{S+i}, v{S+i}, v{B+i}", f"ds_write_b8 v{S+i}, v{DL+i} offset:{K1_DA}")
    for i in range(4): a(f"v_lshlrev_b32 v{LIM+i}, 2, v{S+i}")
    a("s_waitcnt vmcnt(0)")
    st()
    if opt.get("smask"):
        for i in range(4): a(f"v_and_b32 v{SRC+i}, {opt['smask']}, v{SRC+i}")
    for i in range(4):
        if i % 2 == 0: a(f"v_lshl_or_b32 v{REC+i}, v{EE+i//2}, 16, v{SRC+i}")
        else: a(f"v_and_or_b32 v{REC+i}, v{EE+i//2}, s39, v{SRC+i}")
        a(f"ds_write_b32 v{LIM+i}, v{REC+i}")
    a.label("K1_B1")
    a("s_mov_b64 exec, -1")
    st.k = 3; st()
    a("s_waitcnt lgkmcnt(0)", "s_barrier")
    st()
    a(f"ds_read_b128 v[8:11], v{CO+2}", f"ds_read_b32 v18, v{CO+4} offset:{K1_CNT}", f"ds_read_b64 v[16:17], v{CO+7} offset:{K1_DA}", f"ds_read_b128 v[12:15], v{CO+3}")
    a("s_waitcnt lgkmcnt(3)", f"buffer_store_dwordx4 v[8:11], v{CO}, s[32:35], s42 offen {opt.get('dflag', '')}")
    a("s_waitcnt lgkmcnt(1)", f"v_cmp_gt_u32 vcc, v18, v{CO+6}", f"v_cmp_gt_u32 s[46:47], v18, v{CO+5}", "s_cbranch_vccnz K1_OV")
    a.label("K1_OVR")
    x = opt.get("x1", "")
    if "d" not in x: a(f"buffer_store_dwordx2 v[16:17], v{CO+1}, s[32:35], s43 offen {opt.get('dflag', '')}")
    if "b" not in x: a("s_mov_b64 exec, s[46:47]", "s_waitcnt lgkmcnt(0)", f"buffer_store_dwordx4 v[12:15], v{CO+8}, s[32:35], s44 offen", *([] if opt.get("bhalf", 1) else [f"buffer_store_dwordx4 v[8:11], v{CO+8}, s[32:35], s44 offen offset:64"]))
    if st.on: a("s_waitcnt vmcnt(0)")
    st.flush(16, 3, 20, 21)
    if opt.get("kp"):
        a("s_mov_b64 exec, -1", f"s_mul_i32 s45, s41, {782*128}", "v_lshlrev_b32 v60, 7, v0", f"v_cmp_gt_u32 vcc, {opt['kp']}, v0", "s_and_b64 exec, exec, vcc", "s_cbranch_execz K1_END", "buffer_load_dword v61, v60, s[32:35], s45 offen")
    a.label("K1_END")
    a("s_endpgm")
    a.label("K1_OV")
    a(f"v_mov_b32 v18, {MARK:#x}", "v_cndmask_b32 v16, v16, v18, vcc", "v_cndmask_b32 v17, v17, v18, vcc", "s_branch K1_OVR")
    W, A, X, D, O, FR = 8, 40, 72, 96, 112, 120
    a.label("K1_P")
    a("v_and_b32 v1, 15, v0", "v_bfe_u32 v2, v0, 4, 2",
      "v_lshlrev_b32 v3, 10, v2", "v_lshl_add_u32 v5, v1, 1, v3", "v_lshl_add_u32 v3, v1, 3, v3",
      "v_lshlrev_b32 v4, 7, v1", "v_lshl_add_u32 v4, v2, 4, v4")
    a("s_mul_i32 s18, s41, 3", "s_add_u32 s18, s18, s3", "s_sub_u32 s18, s18, 13",
      "s_mul_i32 s36, s40, 196", "s_add_u32 s36, s36, s18",
      "s_lshl_b32 s36, s36, 11", f"s_add_u32 s37, s36, {96*2048}", f"s_add_u32 s38, s36, {192*2048}", "s_movk_i32 s39, 4096")
    for r, n in ((20, 129 * 128), (24, N * 128), (28, N * 128), (48, 128 * 128)): a(f"s_mov_b32 s{r+2}, {n}", f"s_mov_b32 s{r+3}, 0x20000")
    a("s_sub_u32 s19, s2, 16", "s_cmp_eq_u32 s3, 15", "s_cselect_b32 s19, s19, 100")
    a("s_waitcnt lgkmcnt(0)")
    st.k = 0; st()
    a("s_mov_b32 s24, s4", "s_mov_b32 s25, s5", "s_mov_b32 s20, s12", "s_mov_b32 s21, s13")
    a("s_cmp_le_u32 s19, 24", "s_cbranch_scc1 K1_FL")
    a.label("K1_FLR")
    for i in range(2):
        for s in range(2): a(f"buffer_load_dwordx4 {vr(X+8*i+4*s,4)}, v4, s[24:27], s{36+i} offen offset:{64*s} {opt.get('xflag', '')}")
    for s in range(2):
        for kk in range(8): a(f"buffer_load_dwordx2 {vr(W+16*s+2*kk,2)}, v3, s[20:23], {'s39' if s else '0'} offen offset:{128*kk}")
    a("s_cmp_lt_u32 s18, 4", "s_cselect_b64 exec, -1, 0")
    for s in range(2): a(f"buffer_load_dwordx4 {vr(X+16+4*s,4)}, v4, s[24:27], s38 offen offset:{64*s}")
    a("s_mov_b64 exec, -1")
    a("s_barrier")
    a("s_mov_b32 s28, s16", "s_mov_b32 s29, s17", "s_mov_b32 s32, s16", "s_mov_b32 s33, s17")
    a("s_mov_b32 s44, 0x05040100", "s_mov_b32 s45, 0x07060302", f"s_mov_b32 s46, {NLOG2E:#x}", f"s_mov_b32 s47, {NLOG2E:#x}")
    a("s_waitcnt vmcnt(2)")
    st()
    for tau in range(4):
        for s in range(2):
            for rr in range(4):
                a(f"v_perm_b32 v{A+8*tau+4*s+rr}, v{W+16*s+2*(2*rr+1)+tau//2}, v{W+16*s+2*(2*rr)+tau//2}, s{44+tau%2}")
    for i in range(3):
        if i == 2:
            a(f"s_cmp_ge_u32 s18, 4", "s_cbranch_scc1 K1_PD", "s_waitcnt vmcnt(4)")
        for tau in range(4): a(mf16(D+4*tau, A+8*tau, X+8*i, "0"))
        for tau in range(4): a(mf16(D+4*tau, A+8*tau+4, X+8*i+4, D+4*tau))
        for k in range(0, 16, 2): a(f"v_pk_mul_f32 {vr(D+k,2)}, {vr(D+k,2)}, s[46:47]")
        for r in range(4):
            for h in range(2): a(f"v_cvt_pk_bf16_f32 v{O+2*r+h}, v{D+4*(2*h)+r}, v{D+4*(2*h+1)+r}")
        a(f"buffer_store_dwordx4 {vr(O,4)}, v4, s[28:31], s{36+i} offen {opt.get('pflag', '')}", f"buffer_store_dwordx4 {vr(O+4,4)}, v4, s[28:31], s{36+i} offen offset:64 {opt.get('pflag', '')}")
    a.label("K1_PD")
    st()
    a("s_cmp_le_u32 s19, 24", "s_cbranch_scc1 K1_FS")
    a.label("K1_PE")
    if opt.get("cpf", 3) == 3:
        a("s_lshr_b32 s19, s2, 5", "s_add_u32 s19, s19, s3", "s_cmp_lg_u32 s19, 18", "s_cbranch_scc1 K1_NPF", "s_getpc_b64 s[48:49]")
        a.label("K1_PC")
        a("s_add_u32 s48, s48, mpnn_msg_kernel-K1_PC", "s_addc_u32 s49, s49, 0", "v_and_b32 v54, 63, v0", "v_lshlrev_b32 v54, 7, v54",
          "v_min_u32 v54, K2_END-mpnn_msg_kernel, v54", "global_load_dword v55, v54, s[48:49]")
        a.label("K1_NPF")
    co_addr()
    a("s_branch K1_B1")
    a.label("K1_FL")
    a("s_cmp_eq_u32 s19, 8", "s_cbranch_scc1 K1_FA", "s_cmp_gt_u32 s19, 8", "s_cbranch_scc1 K1_FU")
    a("s_lshr_b32 s42, s19, 1", "s_and_b32 s43, s19, 1", "s_lshl_b32 s42, s42, 5", "s_lshl_b32 s43, s43, 12", "s_add_u32 s43, s43, s42", "s_add_u32 s43, s43, 8192")
    for kk in range(8): a(f"buffer_load_ushort v{FR+kk}, v5, s[20:23], s43 offen offset:{128*kk}")
    a("s_branch K1_FLR")
    a.label("K1_FU")
    a("s_mov_b32 s48, s14", "s_mov_b32 s49, s15")
    a("s_sub_u32 s43, s19, 9", "s_lshr_b32 s42, s43, 2", "s_and_b32 s43, s43, 3", "s_lshl_b32 s42, s42, 5", "s_lshl_b32 s43, s43, 12", "s_add_u32 s43, s43, s42")
    for kk in range(8): a(f"buffer_load_ushort v{FR+kk}, v5, s[48:51], s43 offen offset:{128*kk}")
    a("s_branch K1_FLR")
    a.label("K1_FA")
    a("v_bfe_u32 v5, v0, 3, 2", "v_and_b32 v6, 3, v0", "v_lshl_add_u32 v5, v5, 2, v6", "v_lshlrev_b32 v5, 1, v5", "s_movk_i32 s43, 16384")
    for c in range(4): a(f"buffer_load_ushort v{FR+c}, v5, s[20:23], s43 offen offset:{32*c}")
    a("s_branch K1_FLR")
    a.label("K1_FS")
    a("v_and_b32 v5, 63, v0", "v_lshlrev_b32 v5, 4, v5", "s_lshl_b32 s36, s19, 10", f"s_add_u32 s36, s36, {WS_WF}")
    a("s_cmp_eq_u32 s19, 8", "s_cbranch_scc1 K1_AE")
    for rr in range(4): a(f"v_lshl_or_b32 v{W+rr}, v{FR+2*rr+1}, 16, v{FR+2*rr}")
    a(f"buffer_store_dwordx4 {vr(W,4)}, v5, s[32:35], s36 offen", "s_branch K1_PE")
    a.label("K1_AE")
    a("v_bfe_u32 v2, v0, 2, 1", "v_bfe_u32 v3, v0, 5, 1", "v_cmp_eq_u32 vcc, v2, v3")
    for c in range(4):
        a(f"v_lshlrev_b32 v{FR+c}, 16, v{FR+c}", f"v_mul_f32 v{FR+c}, s46, v{FR+c}", f"v_cvt_pk_bf16_f32 v{FR+c}, 0, v{FR+c}", f"v_cndmask_b32 v{W+c}, 0, v{FR+c}, vcc")
    a(f"buffer_store_dwordx4 {vr(W,4)}, v5, s[32:35], s36 offen", "s_branch K1_PE")
    return a.lines

L_AGB = 0; ASTR = 144
L_QS = L_AGB + 112 * ASTR; QSTR = 272
L_CTR = L_QS + 112 * QSTR; L_OVC = L_CTR + 448; L_FLG = L_CTR + 452; L_CT2 = L_CTR + 512; L_SLOT = L_CTR + 1024; L_OVL = L_SLOT + 512
L_XS = L_OVL + 1024; L_WF = L_XS + 14336
L_ELL = L_WF + 25600; ESTR = 516; EROWS = 83
K2_LDS = L_ELL + 3 * 768 * 16 + 6144
assert K2_LDS >= L_ELL + EROWS * ESTR and L_ELL % 16 == 0 and L_XS % 256 == 0 and L_CTR % 256 == 0 and L_ELL + 512 < (1 << 17), (L_XS, L_ELL)
ZCOL = 112 * 4; DUMP = L_ELL + CAP * ESTR + 400; HCOL = 116 * 4

def gen_k2(opt):
    a = Asm(); st = Stamps(a, opt.get("stamp"), 78, 1, 12)
    perm = opt.get("perm", [0, 1, 2, 3, 10, 6, 5, 4, 11, 9, 8, 7])
    RG = opt.get("ring", 2); small = opt.get("small", 1); dp = opt.get("dprio", [8, 4, 2])
    Q, P, Z0, Z1, NN, DD, EX, BE, AL, AH, AE, IX, VI, VE, LEN, AGA, MFL, OOF, ARD, ARX = \
        8, 24, 56, 72, 88, 104, 120, 136, 140, 144, 148, 152, 154, 155, 159, 160, 161, 162, 163, 164
    WU = BE
    R = Z0
    AD = NN
    TG = DD
    W2 = Q; X = P
    SP, PP5, EH, QC, AC = DD + 8, DD + 9, DD + 10, DD + 11, DD + 12
    SWS, SPT, SX, SO = 24, 28, 32, 36
    MK = 40
    BK = "s76"
    ws = f"s[{SWS}:{SWS+3}]"
    a.label("mpnn_msg_kernel")
    a("s_cmp_ge_u32 s2, 256", "s_cbranch_scc1 K2_END")
    st.early()
    a("s_load_dwordx2 s[20:21], s[0:1], 64", "s_load_dwordx16 s[4:19], s[0:1], 0")
    a("v_lshrrev_b32 v1, 6, v0", "v_lshlrev_b32 v2, 4, v0", "v_readfirstlane_b32 s3, v1")
    for i in range(4): a(f"v_mov_b32 v{Q+i}, 0")
    a(f"v_add_u32 v4, {L_ELL}, v2")
    a("v_and_b32 v5, 255, v0", "v_lshlrev_b32 v5, 2, v5", f"v_add_u32 v6, {L_ELL}, v5", f"v_cmp_gt_u32 vcc, {NB*4}, v5")
    a(f"s_and_b32 {BK}, s2, 7", f"s_lshl_b32 {BK}, {BK}, 5", "s_lshr_b32 s64, s2, 3", f"s_add_u32 {BK}, {BK}, s64")
    a("v_cndmask_b32 v6, 0, v6, vcc", f"ds_write_b32 v5, v6 offset:{L_CTR}")
    for i in range(3): a(f"ds_write_b128 v4, {vr(Q,4)} offset:{12288*i}")
    a(f"v_lshlrev_b32 v5, 3, v0", f"v_add_u32 v5, {L_ELL + 3*12288}, v5", f"ds_write_b64 v5, {vr(Q,2)}")
    a(f"s_lshl_b32 s64, {BK}, 14", f"s_lshl_b32 s62, {BK}, 15", f"s_add_u32 s62, s62, {WS_RB}", f"s_add_u32 s64, s64, {WS_RA - 4096}", "s_add_u32 s65, s64, 8192",
      f"s_lshl_b32 s66, {BK}, 13", f"s_and_b32 s67, {BK}, 16", "s_add_u32 s66, s66, s67", f"s_add_u32 s66, s66, {WS_DA}", "s_xor_b32 s60, s66, 16",
      "s_sub_u32 s66, s66, 2048", "s_add_u32 s67, s66, 4096")
    a(f"s_mul_i32 s69, {BK}, {NB}", f"s_sub_u32 s70, {N}, s69", f"s_min_u32 s70, s70, {NB}", "s_lshl_b32 s70, s70, 7", "s_lshl_b32 s71, s69, 7")
    a("s_and_b32 s72, s3, 3", "s_lshr_b32 s73, s3, 2")
    a(f"s_mov_b32 s{SWS+2}, {WS_END}", f"s_mov_b32 s{SWS+3}, 0x20000", f"s_mov_b32 s{SX+2}, s70", f"s_mov_b32 s{SX+3}, 0x20000")
    a(f"v_and_b32 v4, 3, v0", "v_and_b32 v6, 63, v0", "v_lshlrev_b32 v6, 4, v6")
    a("v_lshlrev_b32 v3, 5, v0", "v_lshrrev_b32 v5, 2, v0", "v_lshlrev_b32 v5, 5, v5", "v_lshl_add_u32 v5, v4, 2, v5")
    BS = opt.get("bs", 0); BP = opt.get("bp", "a")
    if BS: a("v_lshlrev_b32 v166, 3, v6", "s_andn2_b32 s77, s2, 7", "s_add_u32 s77, s77, s3", "s_sub_u32 s77, s77, 4", f"s_mul_i32 s77, s77, {BS*128}", "s_and_b32 s61, s2, 7", f"s_mul_i32 s61, s61, {(25000 - 256*BS)//7*128 if opt.get('xo', 1) else 0}", "s_add_u32 s77, s77, s61")
    def bulk(): a(f"s_mov_b64 exec, {(1 << BS) - 1 if BS < 64 else -1:#x}" if BS <= 32 else f"s_mov_b32 exec_hi, {(1 << (BS-32)) - 1:#x}", "buffer_load_dword v167, v166, s[24:27], s77 offen", "s_mov_b64 exec, -1")
    a("s_cmp_eq_u32 s73, 0")
    a("s_waitcnt lgkmcnt(0)")
    st()
    if opt.get("x1"): a("s_branch K2_FIN")
    a(f"s_mov_b32 s{SWS}, s20", f"s_mov_b32 s{SWS+1}, s21")
    a("s_cbranch_scc0 K2_A1")
    a(f"buffer_load_dwordx4 {vr(TG,4)}, v3, {ws}, s60 offen {opt.get('kflag', '')}")
    a(f"s_add_u32 s{SX}, s4, s71", f"s_addc_u32 s{SX+1}, s5, 0")
    a("v_bfe_u32 v7, v0, 4, 2", "v_lshlrev_b32 v7, 4, v7", "v_xor_b32 v7, v7, v6", "v_xor_b32 v5, 64, v7",
      "s_lshl_b32 s60, s3, 11", f"s_add_u32 s61, s60, {L_XS}", f"s_add_u32 m0, s60, {L_WF}", f"s_add_u32 s63, s60, {WS_WF}")
    a("s_barrier")
    sx = f"s[{SX}:{SX+3}]"
    a(f"buffer_load_dwordx4 v6, {ws}, s63 offen lds", f"buffer_load_dwordx4 v6, {ws}, s63 offen offset:1024 lds", "s_mov_b32 m0, s61", "v_lshlrev_b32 v3, 7, v0")
    a(f"buffer_load_dwordx4 v7, {sx}, s60 offen lds", f"buffer_load_dwordx4 v5, {sx}, s60 offen offset:1024 lds",
      "s_add_u32 m0, s61, 8192", "s_add_u32 s60, s60, 8192", "s_cmp_eq_u32 s3, 3", "s_cbranch_scc1 K2_A3",
      f"buffer_load_dwordx4 v7, {sx}, s60 offen lds", f"buffer_load_dwordx4 v5, {sx}, s60 offen offset:1024 lds")
    a("s_branch K2_A2")
    a.label("K2_A3")
    a(f"s_mov_b32 m0, {L_WF + 8192}", f"s_mov_b32 s60, {WS_WF + 8192}", f"buffer_load_dwordx4 v6, {ws}, s60 offen lds", "s_mov_b64 exec, 0", f"buffer_load_dwordx4 v6, {ws}, s60 offen lds", "s_mov_b64 exec, -1")
    a("s_branch K2_A2")
    a.label("K2_A1")
    a(f"buffer_load_dword v{TG}, v5, {ws}, s66 offen {opt.get('kflag', '')}", f"buffer_load_dword v{TG+1}, v5, {ws}, s67 offen {opt.get('kflag', '')}")
    a("s_barrier")
    a(f"buffer_load_dwordx4 {vr(R,4)}, v2, {ws}, s64 offen {opt.get('kflag', '')}", f"buffer_load_dwordx4 {vr(R+4,4)}, v2, {ws}, s65 offen {opt.get('kflag', '')}")
    if BS and BP == "a": bulk()
    a.label("K2_A2")
    a("s_lshl_b32 s74, s73, 11", f"s_add_u32 s75, s74, {3*2048}", f"s_add_u32 s22, s74, {6*2048}")
    srd(a, SPT, 20, 21, N, stride=128)
    a(f"s_add_u32 s{SO}, s16, s71", f"s_addc_u32 s{SO+1}, s17, 0", f"s_mov_b32 s{SO+2}, s70", f"s_mov_b32 s{SO+3}, 0x20000")
    T = Z1
    if small:
        a(f"v_and_b32 v{T}, 1, v0", f"v_lshlrev_b32 v{T}, 4, v{T}", f"v_mov_b32 v{T+1}, 0x3f80", f"v_lshlrev_b32 v{T}, v{T}, v{T+1}", "v_cmp_gt_u32 vcc, 2, v4",
          f"v_cndmask_b32 v{AL}, 0, v{T}, vcc", f"v_cndmask_b32 v{AL+1}, v{T}, 0, vcc")
    else:
        a(f"v_and_b32 v{T}, 1, v0", f"v_lshlrev_b32 v{T}, 4, v{T}", f"v_mov_b32 v{T+1}, 0x3f80", f"v_lshlrev_b32 v{T}, v{T}, v{T+1}",
          f"v_bfe_u32 v{T+1}, v0, 3, 2", f"v_bfe_u32 v{T+2}, v0, 1, 1", f"v_lshl_add_u32 v{T+1}, v{T+1}, 1, v{T+2}",
          f"v_bfe_u32 v{T+2}, v0, 2, 1", f"v_bfe_u32 v{T+3}, v0, 5, 1", f"v_xor_b32 v{T+2}, v{T+2}, v{T+3}", f"v_lshl_add_u32 v{T+1}, v{T+2}, 3, v{T+1}")
        for k in range(8): a(f"v_cmp_eq_u32 s[{MK+2*k}:{MK+2*k+1}], {k}, v{T+1}")
        for k in range(8): a(f"v_cndmask_b32 v{AL+k}, 0, v{T}, s[{MK+2*k}:{MK+2*k+1}]")
    J, QQ = T, T + 1
    a(f"v_and_b32 v{J}, 15, v0", f"v_bfe_u32 v{QQ}, v0, 4, 2", f"v_lshlrev_b32 v{OOF}, 7, v{J}",
      f"v_lshrrev_b32 v{ARX}, 1, v{J}", f"v_xor_b32 v{ARX}, v{ARX}, v{QQ}", f"v_lshl_add_u32 v{ARX}, v{ARX}, 4, v{OOF}",
      f"s_lshl_b32 s64, s72, 5", f"v_lshl_add_u32 v{OOF}, v{QQ}, 3, v{OOF}", f"v_add_u32 v{OOF}, s64, v{OOF}",
      f"s_mul_i32 s64, s73, {64*QSTR}", f"s_lshl_b32 s65, s72, 6", "s_add_u32 s64, s64, s65", f"s_add_u32 s64, s64, {L_QS - 64*QSTR}",
      f"v_mul_u32_u24 v1, {QSTR}, v{J}", f"v_lshl_add_u32 v1, v{QQ}, 4, v1", "v_add_u32 v1, s64, v1",
      f"s_lshl_b32 s64, s73, 13", f"s_add_u32 s64, s64, {L_XS - 8192}", f"v_add_u32 v2, s64, v{ARX}", "v_xor_b32 v7, 64, v2",
      f"s_lshl_b32 s64, s73, 4", f"v_add_u32 v{J}, s64, v{J}", f"v_mul_u32_u24 v{ARD}, {ASTR}, v{J}", f"v_lshl_add_u32 v{ARD}, v{QQ}, 4, v{ARD}",
      f"s_add_u32 s64, s74, {L_XS}", f"v_add_u32 v{ARX}, s64, v{ARX}")
    a(f"v_lshlrev_b32 v{IX+1}, 4, v4")
    a(f"v_mov_b32 v5, {ESTR}", f"s_movk_i32 s64, {NB*4}", f"s_mov_b32 s65, {DUMP}", "s_mov_b32 s68, 0", "s_mov_b32 s71, 0", "s_mov_b32 s70, 0")
    pk = sum(p << (4 * w) for w, p in enumerate(perm))
    a(f"s_mov_b32 s66, {pk & 0xffffffff:#x}", f"s_mov_b32 s67, {pk >> 32:#x}", "s_lshl_b32 s23, s3, 2", f"s_lshr_b64 s[66:67], s[66:67], s23",
      f"s_and_b32 s23, s66, 15", "s_lshl_b32 s23, s23, 4")
    a(f"v_bfe_u32 v{BE}, v0, 2, 4", f"v_add_u32 v{BE}, s23, v{BE}")
    a(f"v_and_b32 v{BE+2}, 1, v{BE}", f"v_cmp_gt_u32 vcc, 4, v{BE}", f"v_cmp_eq_u32 s[66:67], 0, v{BE+2}",
      f"v_lshlrev_b32 v{BE+1}, 1, v{BE}", f"v_and_b32 v{BE+1}, 0x1fc, v{BE+1}", f"v_subrev_u32 v{BE+1}, 8, v{BE+1}", f"v_lshlrev_b32 v{BE}, 2, v{BE}", f"v_add_u32 v{BE}, {(NB-4)*4}, v{BE}",
      f"s_or_b64 s[58:59], vcc, s[66:67]", f"s_andn2_b64 s[66:67], s[66:67], vcc",
      f"v_cndmask_b32 v{BE+1}, v{BE+1}, v{BE}, vcc",
      f"v_cndmask_b32 v{SP}, 1, 0, vcc", f"v_cndmask_b32 v{PP5}, v5, 0, s[58:59]", f"v_cndmask_b32 v{EH}, 0, 1, s[66:67]",
      f"v_cndmask_b32 v{MFL}, 0, 1.0, s[66:67]", f"v_mov_b32 v{BE+3}, {L_ELL + ZCOL}",
      f"v_lshlrev_b32 v{QC}, 6, v4", f"v_add_u32 v{QC}, {(L_QS - 68*L_ELL) & 0xffffffff:#x}, v{QC}", f"v_lshlrev_b32 v{AC}, 5, v4", f"v_add_u32 v{AC}, {(L_AGB - 36*L_ELL) & 0xffffffff:#x}, v{AC}")
    a(f"s_mov_b32 s66, {NLOG2E:#x}", f"s_mov_b32 s67, {NLOG2E:#x}")
    T = EX; IP = EX + 4
    for k in range(RG + 1): a(f"v_mov_b32 v{IP+2*k+1}, v{IX+1}")
    a("s_cmp_eq_u32 s73, 0", "s_cbranch_scc1 K2_CT")
    def a_round(ad, l, mk):
        for k in range(4): a(f"v_lshlrev_b32_sdwa v{ad+k}, 2, v{l} dst_sel:DWORD dst_unused:UNUSED_PAD src0_sel:DWORD src1_sel:BYTE_{k}")
        for k in range(4): a(f"v_cmp_gt_u32 s[{mk+2*k}:{mk+2*k+1}], s64, v{ad+k}")
        for k in range(4): a(f"s_mov_b64 exec, s[{mk+2*k}:{mk+2*k+1}]", f"ds_add_rtn_u32 v{ad+k}, v{ad+k}, v5 offset:{L_CTR}")
        a("s_mov_b64 exec, -1")
    stk = st.k
    ellpre = 0
    def ellw():
        for k in range(8):
            if k % 4 == 0: a(f"s_waitcnt vmcnt({1 - k//4 + (1 if BS else 0)})")
            if k == 4 and st.on == 1: a("s_memrealtime s[100:101]")
            a(f"v_min_u32 v{AD+k}, s65, v{AD+k}", f"ds_write_b32 v{AD+k}, v{R+k}")
    a(f"s_lshl_b32 s23, s72, 11", f"s_add_u32 s23, s23, {L_WF}", f"v_add_u32 v3, s23, v6", f"v_mov_b32 v{Z1+4}, 0")
    if BS and BP == "a2": bulk()
    a(f"s_waitcnt vmcnt({2 + (1 if BS and BP != 'b' else 0)})")
    st()
    if BS and BP == "b": bulk()
    a_round(AD, TG, MK); a_round(AD + 4, TG + 1, MK + 8)
    a("s_waitcnt lgkmcnt(0)")
    if ellpre: ellw()
    a("s_barrier")
    st()
    a.label("K2_AB1")
    T = Z1 + 4
    a(f"ds_read_b32 v{T+1}, v{T} offset:{L_OVC}")
    if not ellpre: ellw()
    a("s_waitcnt lgkmcnt(4)", f"v_readfirstlane_b32 s23, v{T+1}")
    a(f"ds_read_b128 {vr(W2,4)}, v3", f"ds_read_b128 {vr(W2+4,4)}, v3 offset:1024")
    for i in range(4): a(f"ds_read_b128 {vr(X+8*i,4)}, v2 offset:{2048*i}", f"ds_read_b128 {vr(X+8*i+4,4)}, v7 offset:{2048*i}")
    a("s_andn2_b32 s23, s23, s68", "s_cbranch_scc1 K2_RESCAN")
    QT = Z1; T = EX
    def gather(slot, ix):
        p = P + 8 * slot
        return [f"buffer_load_dwordx4 {vr(p,4)}, {vr(ix,2)}, s[{SPT}:{SPT+3}], 0 idxen offen",
                f"buffer_load_dwordx4 {vr(p+4,4)}, {vr(ix,2)}, s[{SPT}:{SPT+3}], 0 idxen offen offset:64"]
    stb = st.k
    for r in range(4): a(f"v_cmp_eq_u32 s[{MK+4+2*r}:{MK+5+2*r}], {r}, v4")
    a(f"v_add_u32 v7, {L_WF + 8192}, v6")
    if st.on == 1: a("s_memrealtime s[96:97]", "s_waitcnt lgkmcnt(0)", "s_mov_b32 s97, s100")
    a("s_waitcnt lgkmcnt(%d)" % (0 if st.on == 1 else 10), "s_barrier")
    st()
    a(f"ds_read_b32 v{T}, v{BE+1} offset:{L_SLOT}", f"ds_read_b128 {vr(AE,4)}, v7", "s_waitcnt lgkmcnt(2)")
    for i in range(4): a(mf16(QT+4*i, W2, X+8*i, "0"))
    for i in range(4): a(mf16(QT+4*i, W2+4, X+8*i+4, QT+4*i))
    def slotdec():
        a("s_waitcnt lgkmcnt(1)")
        a(f"v_lshrrev_b32 v{LEN}, 17, v{T}", f"v_add_u32 v{T+1}, v{LEN}, v{SP}", f"v_and_b32 v{T}, 0x1ffff, v{T}", f"v_lshrrev_b32 v{T+1}, 1, v{T+1}", f"v_mad_u32_u24 v{VI}, v{T+1}, v{PP5}, v{T}")
        a(f"ds_read_u16 v{IP}, v{VI}")
    slotdec()
    for i in range(4):
        a(f"v_pk_mul_f32 {vr(QT+4*i,2)}, {vr(QT+4*i,2)}, s[66:67]", f"v_pk_mul_f32 {vr(QT+4*i+2,2)}, {vr(QT+4*i+2,2)}, s[66:67]")
        if i == 3: a(f"s_waitcnt lgkmcnt(3)", *gather(0, IP), "s_cmp_eq_u32 s73, 2", "s_cbranch_scc1 K2_NQ2")
        a(f"ds_write_b128 v1, {vr(QT+4*i,4)} offset:{16*QSTR*i}")
    a("s_branch K2_NQ2")
    a.label("K2_CT")
    st.k = stk
    C0, C1, H0, H1, T0, T1, HH, PS, L4, B0, B1_, LOB, HIB, HA, FOUR = [Q + i for i in range(15)]
    a(f"v_mov_b32 v{Z1+4}, {MARK:#x}", "s_lshl_b32 s60, s3, 12", f"s_add_u32 m0, s60, {L_WF + 9*1024}", f"s_add_u32 s60, s60, {WS_WF + 9*1024}")
    a(f"v_lshlrev_b32 v{L4}, 2, v0", f"v_add_u32 v{B0}, {L_ELL}, v{L4}", f"v_add_u32 v{B1_}, {L_ELL + 256}, v{L4}",
      f"v_mov_b32 v{LOB}, {(CAP-63)*ESTR}", f"v_mov_b32 v{HIB}, {CAP*ESTR}", f"v_mul_u32_u24 v{HA}, {ESTR}, v0", f"v_sub_u32 v{HA}, {L_ELL + HCOL + CAP*ESTR}, v{HA}", f"v_mov_b32 v{FOUR}, 4",
      f"s_mov_b32 s61, {L_ELL + HCOL}")
    AD2 = P + 8; AD3 = P + 24
    for k in range(16): a(f"v_mov_b32 v{AD+k}, -1")
    a("s_waitcnt vmcnt(6)")
    st()
    for j in range(4): a(f"v_cmp_ne_u32 s[{MK+2*j}:{MK+2*j+1}], -1, v{TG+j}")
    a(f"v_cmp_eq_u32 vcc, v{Z1+4}, v{TG}")
    for j in range(4): a(f"s_mov_b64 exec, s[{MK+2*j}:{MK+2*j+1}]", f"buffer_load_dwordx4 {vr(R+4*j,4)}, v3, {ws}, s62 offen offset:{16*j}")
    a("s_mov_b64 exec, -1")
    for j in range(4):
        a(f"s_cmp_eq_u64 s[{MK+2*j}:{MK+2*j+1}], 0", f"s_cbranch_scc1 K2_TS{j}")
        if j == 3: a("s_waitcnt lgkmcnt(8)")
        for k in range(4): a(f"v_lshlrev_b32_sdwa v{AD2+4*j+k}, 2, v{TG+j} dst_sel:DWORD dst_unused:UNUSED_PAD src0_sel:DWORD src1_sel:BYTE_{k}")
        for k in range(4): a(f"v_cmp_gt_u32 s[{MK+8+2*k}:{MK+9+2*k}], s64, v{AD2+4*j+k}")
        for k in range(4): a(f"s_mov_b64 exec, s[{MK+8+2*k}:{MK+9+2*k}]", f"ds_add_rtn_u32 v{AD+4*j+k}, v{AD2+4*j+k}, v5 offset:{L_CT2}")
        a("s_mov_b64 exec, -1", f"s_bitset1_b32 s70, {j}")
        a.label(f"K2_TS{j}")
    if opt.get("nowu"): a("s_mov_b64 exec, 0")
    for k in range(4): a(f"buffer_load_dwordx4 v6, {ws}, s60 offen offset:{1024*k} lds")
    if opt.get("nowu"): a("s_mov_b64 exec, -1")
    a("s_cbranch_vccnz K2_MARK")
    a.label("K2_MR")
    a("s_waitcnt vmcnt(8) lgkmcnt(0)", "s_barrier")
    st()
    a.label("K2_AB1T")
    a(f"v_and_b32 v{T0}, 0xfc, v{L4}", f"ds_read2st64_b32 {vr(C0,2)}, v{T0} offset0:{L_CTR//256} offset1:{L_CTR//256+1}", f"ds_read2st64_b32 {vr(H0,2)}, v{T0} offset0:{L_CTR//256+2} offset1:{L_CTR//256+3}", "s_setprio 3", "s_mov_b32 s56, -1", "s_mov_b32 s57, 3")
    a("s_waitcnt lgkmcnt(0)", f"v_readlane_b32 s23, v{C1}, 48", f"v_sub_u32 v{C0}, v{C0}, v{B0}", f"v_sub_u32 v{C1}, v{C1}, v{B1_}", f"v_add_u32 v{C0}, v{C0}, v{H0}", f"v_add_u32 v{C1}, v{C1}, v{H1}",
      "s_andn2_b32 s23, s23, s68", "s_cbranch_scc1 K2_RESCAN", "s_cmp_lg_u32 s3, 0", "s_cbranch_scc1 K2_TW")
    for c, h, t in ((C0, H0, T0), (C1, H1, T1)):
        if c == C1: a("s_mov_b64 exec, s[56:57]")
        a(f"v_med3_u32 v{h}, v{c}, v{LOB}, v{HIB}", f"v_add_u32 v{t}, s61, v{h}", f"ds_add_rtn_u32 v{t}, v{t}, v{FOUR}")
    a(f"v_cmp_gt_u32 s[{MK}:{MK+1}], v{C1}, v{HIB}", "s_mov_b64 exec, -1", f"ds_read_b32 v{HH}, v{HA}", f"v_cmp_gt_u32 vcc, v{C0}, v{HIB}")
    for c, h, b in ((C0, H0, B0), (C1, H1, B1_)):
        a(f"v_min_u32 v{c}, v{c}, v{HIB}", f"v_lshrrev_b32 v{c}, 2, v{c}", f"v_mul_u32_u24 v{c}, 509, v{c}", f"v_lshrrev_b32 v{c}, 16, v{c}",
          f"v_max_u32 v{h}, {CAP-63}, v{c}", f"v_sub_u32 v{h}, {CAP}, v{h}", f"v_lshlrev_b32 v{h}, 2, v{h}", f"v_lshl_or_b32 v{c}, v{c}, 17, v{b}")
    a(f"s_or_b64 vcc, vcc, s[{MK}:{MK+1}]", "s_waitcnt lgkmcnt(0)")
    a(f"v_add_u32_dpp v{PS}, v{HH}, v{HH} row_shr:1 row_mask:0xf bank_mask:0xf bound_ctrl:0")
    for k in (2, 4, 8): a(f"v_add_u32_dpp v{PS}, v{PS}, v{PS} row_shr:{k} row_mask:0xf bank_mask:0xf bound_ctrl:0")
    a(f"v_add_u32_dpp v{PS}, v{PS}, v{PS} row_bcast:15 row_mask:0xa bank_mask:0xf", f"v_add_u32_dpp v{PS}, v{PS}, v{PS} row_bcast:31 row_mask:0xc bank_mask:0xf")
    a(f"v_sub_u32 v{PS}, v{PS}, v{HH}", f"ds_bpermute_b32 v{H0}, v{H0}, v{PS}", f"ds_bpermute_b32 v{H1}, v{H1}, v{PS}")
    a(f"v_mov_b32 v{HH}, 0", "s_waitcnt lgkmcnt(1)", f"v_add_u32 v{H0}, v{H0}, v{T0}", f"ds_write_b32 v{H0}, v{C0} offset:{L_SLOT}",
      "s_waitcnt lgkmcnt(1)", "s_mov_b64 exec, s[56:57]", f"v_add_u32 v{H1}, v{H1}, v{T1}", f"ds_write_b32 v{H1}, v{C1} offset:{L_SLOT}", "s_mov_b64 exec, -1")
    a("s_cbranch_vccz K2_TW", f"ds_write_b32 v{HH}, v5 offset:{L_FLG}")
    a.label("K2_TW")
    a.label("K2_CWR")
    for r in range(4): a(f"v_cmp_eq_u32 s[{MK+4+2*r}:{MK+5+2*r}], {r}, v4")
    T = EX
    a(f"v_add_u32 v7, {L_WF + 8192}, v6")
    if st.on == 1: a("s_waitcnt lgkmcnt(0)", "s_memrealtime s[96:97]")
    a("s_waitcnt lgkmcnt(0)", "s_barrier")
    st()
    a(f"ds_read_b32 v{T}, v{BE+1} offset:{L_SLOT}", f"ds_read_b128 {vr(AE,4)}, v7")
    slotdec()
    a(f"s_waitcnt lgkmcnt(0)", *gather(0, IP))
    for j in range(4):
        a(f"s_bitcmp0_b32 s70, {j}", f"s_cbranch_scc1 K2_TR{j}")
        for k in range(4): a(f"ds_read_b32 v{AD3+k}, v{AD2+4*j+k} offset:{L_CTR}")
        for k in range(4): a(f"s_waitcnt lgkmcnt({3-k})", f"v_add_u32 v{AD+4*j+k}, v{AD+4*j+k}, v{AD3+k} clamp", f"v_min_u32 v{AD+4*j+k}, s65, v{AD+4*j+k}")
        a.label(f"K2_TR{j}")
    a("s_waitcnt vmcnt(6)")
    if st.on == 1: a("s_memrealtime s[100:101]", "s_waitcnt lgkmcnt(0)", "s_mov_b32 s97, s100")
    for j in range(4):
        a(f"s_bitcmp0_b32 s70, {j}", f"s_cbranch_scc1 K2_TW{j}")
        if j == 3: a("s_waitcnt lgkmcnt(4)")
        for k in range(4): a(f"ds_write_b32 v{AD+4*j+k}, v{R+4*j+k}")
        a.label(f"K2_TW{j}")
    a.label("K2_NQ2")
    def rde(t): return [f"ds_read_b32 v{BE+r}, v{VE+r} offset:{t*ESTR}" for r in range(4)]
    a(f"v_mov_b32 v{T+1}, 68", f"v_mad_u32_u24 v{T+2}, v{T}, v{T+1}, v{QC}")
    for r in range(4): a(f"v_cndmask_b32 v{VE+r}, v{BE+3}, v{VI}, s[{MK+4+2*r}:{MK+5+2*r}]")
    for i in range(16): a(f"v_mov_b32 v{NN+i}, 0")
    a("s_waitcnt vmcnt(2) lgkmcnt(0)", "s_barrier")
    a(f"ds_read_u16 v{T+3}, v{VI}")
    for k in range(1, RG + 1): a(f"ds_read_u16 v{IP+2*k}, v{VI} offset:{k*ESTR}")
    for k in range(4): a(f"ds_read_b128 {vr(Q+4*k,4)}, v{T+2} offset:{16*k}")
    a(*rde(0), f"ds_read_u16 v{IX}, v{VI} offset:{(RG+1)*ESTR}")
    a(f"s_waitcnt lgkmcnt({RG + 8})", f"v_cmp_ne_u32 vcc, v{T+3}, v{IP}", "s_cbranch_vccnz K2_G0R")
    a.label("K2_G0D")
    a(*gather(1, IP + 2))
    a(f"v_add_u32 v{LEN}, v{LEN}, v{EH}", f"v_lshrrev_b32 v{LEN}, v{SP}, v{LEN}", f"v_mad_u32_u24 v{AGA}, v{T}, 36, v{AC}")
    a(f"v_max_u32_dpp v{T+1}, v{LEN}, v{LEN} row_shr:4 row_mask:0xf bank_mask:0xf bound_ctrl:0")
    for i in range(8): a(f"v_mov_b32 v{DD+i}, 1.0")
    a(f"v_max_u32_dpp v{T+1}, v{T+1}, v{T+1} row_shr:8 row_mask:0xf bank_mask:0xf bound_ctrl:0")
    for i in range(8, 16): a(f"v_mov_b32 v{DD+i}, 1.0")
    a(f"v_readlane_b32 s69, v{T+1}, 15", f"v_readlane_b32 s70, v{T+1}, 31", f"v_readlane_b32 s64, v{T+1}, 47", f"v_readlane_b32 s65, v{T+1}, 63",
      "s_max_u32 s69, s69, s70", "s_max_u32 s64, s64, s65", "s_max_u32 s69, s69, s64", "s_mov_b32 s70, 0")
    a(f"s_lshl_b32 s23, s72, 12", f"s_add_u32 s23, s23, 1024", "v_add_u32 v7, s23, v7")
    a("s_cmp_eq_u32 s69, 0", "s_cbranch_scc1 K2_DONE0")
    a(f"s_waitcnt vmcnt(2) lgkmcnt(0)")
    st()
    if st.on == 1: a("s_memtime s[98:99]", "s_waitcnt lgkmcnt(0)")
    for k in range(2, RG): a(*gather(k, IP + 2*k))
    def sm(z, b, c): return f"v_mfma_f32_4x4x4_16b_bf16 {vr(z,4)}, {vr(AL,2)}, {vr(b,2)}, {vr(c,4)}"
    if small: a(*[sm(Z0+4*i, P+2*i, Q+4*i) for i in range(4)], mf32(Z0, AE, BE, Z0))
    else: a(mf32(Z0, AE, BE, Q), mf32(Z0, AL, P, Z0), mf32(Z0, AH, P + 4, Z0))
    a(*gather(0, IP + 2*RG), *rde(1), "s_nop 3")
    U = max(2, RG)
    a(f"s_branch K2_PRI{U-1}")
    a(".p2align 6")
    for u in range(U):
        a.label(f"K2_L{u}")
        zc = (Z0, Z1)[u % 2]; zn = (Z1, Z0)[u % 2]; p = P + 8 * ((u + 1) % RG)
        ex = [f"v_exp_f32 v{EX+i}, v{zc+i}" for i in range(16)]
        a(f"s_waitcnt vmcnt({2*RG-2}) lgkmcnt(0)")
        if small:
            s4 = [sm(zn+4*i, p+2*i, Q+4*i) for i in range(4)]
            a(s4[0], ex[0], s4[1], ex[1], s4[2], ex[2], s4[3], *ex[3:8], mf32(zn, AE, BE, zn), *ex[8:16])
        else: a(mf32(zn, AE, BE, Q), *ex[0:4], mf32(zn, AL, p, zn), *ex[4:8], mf32(zn, AH, p + 4, zn), *ex[8:16])
        a(*gather((u + 1) % RG, IX), *rde(u + 2), f"ds_read_u16 v{IX}, v{VI} offset:{(u+RG+2)*ESTR}")
        a(f"v_cmpx_lt_u32 vcc, s70, v{LEN}")
        for i in range(0, 16, 2): a(f"v_pk_fma_f32 {vr(NN+i,2)}, {vr(NN+i,2)}, {vr(EX+i,2)}, {vr(NN+i,2)}")
        for i in range(0, 16, 2): a(f"v_pk_fma_f32 {vr(NN+i,2)}, {vr(zc+i,2)}, {vr(DD+i,2)}, {vr(NN+i,2)}")
        for i in range(0, 16, 2): a(f"v_pk_fma_f32 {vr(DD+i,2)}, {vr(DD+i,2)}, {vr(EX+i,2)}, {vr(DD+i,2)}")
        a("s_mov_b64 exec, -1", "s_add_u32 s70, s70, 1", "s_cmp_ge_u32 s70, s64")
        if u < U - 1: a(f"s_cbranch_scc1 K2_PRI{u}")
        else:
            for rg in [VI] + [VE + r for r in range(4)]: a(f"v_add_u32 v{rg}, {U*ESTR}, v{rg}")
            a("s_cbranch_scc0 K2_L0")
    for u in list(range(U - 1, -1, -1)):
        a.label(f"K2_PRI{u}")
        nx = f"K2_L{(u+1)%U}"
        a("s_sub_u32 s65, s69, s70")
        for lv, th in zip((3, 2, 1), dp):
            a(f"s_setprio {lv}", f"s_sub_u32 s64, s69, {th}", f"s_cmp_gt_u32 s65, {th}", f"s_cbranch_scc1 {nx}")
        a("s_setprio 0", "s_mov_b32 s64, s69", "s_cmp_lg_u32 s65, 0", f"s_cbranch_scc1 {nx}")
        if u: a("s_branch K2_DONE")
    a.label("K2_DONE")
    st()
    if st.on == 1: a("s_memtime s[100:101]", "s_waitcnt lgkmcnt(0)", "s_sub_u32 s98, s100, s98")
    XF = Z0; ACC = Q
    a(f"v_xor_b32 v3, 64, v{ARX}")
    for i in range(16): a(f"v_rcp_f32 v{EX+i}, v{DD+i}")
    a("s_waitcnt lgkmcnt(0)")
    for k in range(4): a(f"ds_read_b128 {vr(WU+4*k,4)}, v7 offset:{1024*k}")
    for i in range(3): a(f"ds_read_b128 {vr(XF+8*i,4)}, v{ARX} offset:{6144*i}", f"ds_read_b128 {vr(XF+8*i+4,4)}, v3 offset:{6144*i}")
    a(f"s_mov_b32 s66, {NLN2:#x}", f"s_mov_b32 s67, {NLN2:#x}", f"s_mov_b32 s64, {f2u(2.0**120):#x}")
    for i in range(0, 16, 2): a(f"v_pk_mul_f32 {vr(NN+i,2)}, {vr(NN+i,2)}, s[66:67]")
    a(f"v_max3_f32 v2, v{DD}, v{DD+1}, v{DD+2}")
    for i in range(3, 15, 2): a(f"v_max3_f32 v2, v{DD+i}, v{DD+i+1}, v2")
    a(f"v_max_f32 v2, v{DD+15}, v2")
    for i in range(0, 16, 2): a(f"v_pk_mul_f32 {vr(NN+i,2)}, {vr(NN+i,2)}, {vr(EX+i,2)}")
    a(f"v_pk_mul_f32 {vr(DD,2)}, {vr(NN,2)}, 0")
    for i in range(2, 16, 2): a(f"v_pk_fma_f32 {vr(DD,2)}, {vr(NN+i,2)}, 0, {vr(DD,2)}")
    for i in range(16): a(f"v_fmac_f32_dpp v{NN+i}, v{NN+i}, v{MFL} row_shl:4 row_mask:0xf bank_mask:0xf bound_ctrl:0")
    a(f"v_cmp_u_f32 vcc, v{DD}, v{DD+1}", f"v_cmp_nlt_f32 s[{MK+2}:{MK+3}], v2, s64", f"s_or_b64 vcc, vcc, s[{MK+2}:{MK+3}]")
    for i in range(8): a(f"v_cvt_pk_bf16_f32 v{EX+i}, v{NN+2*i}, v{NN+2*i+1}")
    a("s_waitcnt lgkmcnt(0)", f"s_mov_b64 exec, s[58:59]", f"ds_write_b128 v{AGA}, {vr(EX,4)} offset:{L_AGB}", f"ds_write_b128 v{AGA}, {vr(EX+4,4)} offset:{L_AGB+16}")
    a("s_mov_b64 exec, vcc", "v_mov_b32 v2, 0", f"ds_write_b32 v2, v5 offset:{L_FLG}", "s_mov_b64 exec, -1")
    a(f"s_mov_b32 s66, {NLOG2E:#x}", f"s_mov_b32 s67, {NLOG2E:#x}", "v_mov_b32 v2, 0")
    for i in range(3): a(mf16(ACC+4*i, WU, XF+8*i, "0"))
    for i in range(3): a(mf16(ACC+4*i, WU+4, XF+8*i+4, ACC+4*i))
    a("s_waitcnt lgkmcnt(0)", "s_barrier")
    st()
    a.label("K2_EPI")
    B = Z0; O = EX; TT = NN; WU2 = WU + 8
    a(f"ds_read_b32 v3, v2 offset:{L_FLG}")
    for i in range(3):
        for s in range(2): a(f"ds_read_b128 {vr(B+8*i+4*s,4)}, v{ARD} offset:{L_AGB + 48*ASTR*i + 64*s}")
    a("s_waitcnt lgkmcnt(6)", "v_readfirstlane_b32 s23, v3", "s_andn2_b32 s23, s23, s71", "s_cbranch_scc1 K2_BF")
    def epi_tile(i):
        o = O + 4 * i; t = TT + 4 * i
        a(f"v_pk_mul_f32 {vr(t,2)}, {vr(o,2)}, s[66:67]", f"v_pk_mul_f32 {vr(t+2,2)}, {vr(o+2,2)}, s[66:67]")
        for k in range(4): a(f"v_exp_f32 v{t+k}, v{t+k}")
        a(f"v_pk_add_f32 {vr(t,2)}, {vr(t,2)}, 1.0 op_sel_hi:[1,0]", f"v_pk_add_f32 {vr(t+2,2)}, {vr(t+2,2)}, 1.0 op_sel_hi:[1,0]")
        for k in range(4): a(f"v_rcp_f32 v{t+k}, v{t+k}")
        a(f"v_pk_mul_f32 {vr(t,2)}, {vr(t,2)}, {vr(o,2)}", f"v_pk_mul_f32 {vr(t+2,2)}, {vr(t+2,2)}, {vr(o+2,2)}")
        a(f"v_cvt_pk_bf16_f32 v{o}, v{t}, v{t+1}", f"v_cvt_pk_bf16_f32 v{o+1}, v{t+2}, v{t+3}")
        a(f"buffer_store_dwordx2 {vr(o,2)}, v{OOF}, s[{SO}:{SO+3}], {('s74','s75','s22')[i]} offen")
    for i in range(3):
        a(f"s_waitcnt lgkmcnt({4-2*i})", mf16(O+4*i, WU2, B+8*i, ACC+4*i), mf16(O+4*i, WU2+4, B+8*i+4, O+4*i))
    epi_tile(0); epi_tile(1)
    a("s_cmp_lg_u32 s73, 0", "s_cbranch_scc1 K2_FIN")
    epi_tile(2)
    a.label("K2_FIN")
    if st.on: a("s_waitcnt vmcnt(0)")
    if opt.get("diag"):
        kind, M = opt["diag"]
        a("s_cmp_lg_u32 s3, 0", "s_cbranch_scc1 K2_END", "s_memrealtime s[40:41]", "s_lshl_b32 s42, s2, 10", f"s_add_u32 s42, s42, {WS_STAMP}", "s_add_u32 s44, s20, s42", "s_addc_u32 s45, s21, 0",
          "v_mov_b32 v2, 0", "global_load_dwordx4 v[8:11], v2, s[44:45]", "global_load_dwordx4 v[12:15], v2, s[44:45] offset:16", "s_waitcnt vmcnt(0) lgkmcnt(0)",
          "v_readfirstlane_b32 s46, v8", "v_readfirstlane_b32 s47, v13", "v_readfirstlane_b32 s48, v9", "v_readfirstlane_b32 s49, v10", "s_nop 4")
        a({"k1": "s_sub_u32 s46, s47, s46", "k12": "s_sub_u32 s46, s78, s46", "k2": "s_sub_u32 s46, s40, s78", "tot": "s_sub_u32 s46, s40, s46", "dst": "s_sub_u32 s46, s48, s46", "src": "s_sub_u32 s46, s49, s46",
           "kb3": "s_sub_u32 s46, s92, s80", "xcc": "s_getreg_b32 s46, hwreg(HW_REG_XCC_ID)\ns_xor_b32 s46, s46, s2\ns_and_b32 s46, s46, 7", "ent": "s_sub_u32 s46, s80, s78"}.get(kind, "s_cmp_lg_u32 s2, 5\ns_cbranch_scc1 K2_END"))
        if kind.startswith("g"):
            a(f"s_add_u32 s44, s20, {WS_STAMP}", "s_addc_u32 s45, s21, 0", "v_lshlrev_b32 v2, 6, v0", "v_mov_b32 v16, 0", "v_mov_b32 v17, -1", "v_mov_b32 v18, -1", "v_mov_b32 v19, 0", "s_mov_b32 s47, 0")
            a.label("K2_DL")
            a("global_load_dword v8, v2, s[44:45]", f"global_load_dword v9, v2, s[44:45] offset:{opt.get('dk', 5)*4}", "v_add_u32 v2, 4096, v2", "s_waitcnt vmcnt(0)", "v_sub_u32 v8, s78, v8", "v_sub_u32 v9, s78, v9",
              "v_max_u32 v16, v16, v8", "v_min_u32 v17, v17, v8", "v_min_u32 v18, v18, v9", "v_max_u32 v19, v19, v9", "s_add_u32 s47, s47, 1", "s_cmp_lt_u32 s47, 63", "s_cbranch_scc1 K2_DL")
            a("s_mov_b32 s47, 0", "s_mov_b32 s50, 0", "s_mov_b32 s51, -1", "s_mov_b32 s52, -1", "s_mov_b32 s53, 0")
            a.label("K2_DM")
            a("v_readlane_b32 s54, v16, s47", "v_readlane_b32 s55, v17, s47", "v_readlane_b32 s56, v18, s47", "v_readlane_b32 s57, v19, s47", "s_max_u32 s50, s50, s54", "s_min_u32 s51, s51, s55", "s_min_u32 s52, s52, s56", "s_max_u32 s53, s53, s57",
              "s_add_u32 s47, s47, 1", "s_cmp_lt_u32 s47, 64", "s_cbranch_scc1 K2_DM")
            a({"gskew": "s_sub_u32 s46, s50, s51", "gk1": "s_sub_u32 s46, s50, s52", "ggap": "s_mov_b32 s46, s52", "g0": "s_mov_b32 s46, 0", "gfirst": "s_sub_u32 s46, s50, s53"}[kind])
            a("s_memrealtime s[40:41]", "s_waitcnt lgkmcnt(0)")
        a("s_min_u32 s46, s46, 4000", f"s_mul_i32 s46, s46, {M}")
        a.label("K2_DG")
        a("s_sleep 2", "s_memrealtime s[42:43]", "s_waitcnt lgkmcnt(0)", "s_sub_u32 s42, s42, s40", "s_cmp_lt_u32 s42, s46", "s_cbranch_scc1 K2_DG")
    else: st.flush(20, 3, 2, 3)
    a.label("K2_END")
    a("s_endpgm")

    a.label("K2_G0R")
    a(f"v_mov_b32 v{IP}, v{EX+3}", *gather(0, IP), "s_branch K2_G0D")
    a.label("K2_DONE0")
    a("s_waitcnt vmcnt(0) lgkmcnt(0)", "s_branch K2_DONE")
    a.label("K2_MARK")
    T = Z1
    a("s_mov_b64 exec, vcc", f"v_mov_b32 v{T}, 0", f"v_mov_b32 v{T+1}, 1", f"ds_add_rtn_u32 v{T}, v{T}, v{T+1} offset:{L_OVC}", "s_waitcnt lgkmcnt(0)",
      f"v_and_b32 v{T}, 255, v{T}", f"v_lshlrev_b32 v{T}, 2, v{T}", f"ds_write_b32 v{T}, v0 offset:{L_OVL}", "s_mov_b64 exec, -1", "s_branch K2_MR")

    SD, SS, SE = 40, 44, 48
    a.label("K2_RESCAN")
    srd(a, SD, 10, 11, E * 4); srd(a, SS, 8, 9, E * 4); srd(a, SE, 6, 7, E * 2)
    a("s_mov_b32 s52, 0", f"s_mul_i32 s53, {BK}, {NB}", "s_min_u32 s23, s23, 256", "s_waitcnt lgkmcnt(0)")
    a.label("K2_RS1")
    T = Z1 + 8
    a("s_lshl_b32 s54, s52, 2", f"v_mov_b32 v{T}, s54", f"ds_read_b32 v{T}, v{T} offset:{L_OVL}", "s_waitcnt lgkmcnt(0)", f"v_readfirstlane_b32 s54, v{T}",
      "s_and_b32 s55, s54, 31", "s_lshl_b32 s55, s55, 3", "s_lshr_b32 s54, s54, 5", "s_add_u32 s54, s54, s55",
      f"s_mul_i32 s54, s54, {CH}", f"s_sub_u32 s55, {E}, s54", f"s_min_u32 s55, s55, {CH}",
      f"v_mov_b32 v{T}, v0")
    a.label("K2_RS2")
    a(f"v_add_u32 v{T+1}, s54, v{T}", f"v_lshlrev_b32 v{T+2}, 1, v{T+1}", f"v_lshlrev_b32 v{T+1}, 2, v{T+1}",
      f"buffer_load_dword v{T+3}, v{T+1}, s[{SD}:{SD+3}], 0 offen", f"buffer_load_dword v{T+4}, v{T+1}, s[{SS}:{SS+3}], 0 offen",
      f"buffer_load_ushort v{T+5}, v{T+2}, s[{SE}:{SE+3}], 0 offen", "s_waitcnt vmcnt(0)",
      f"v_subrev_u32 v{T+3}, s53, v{T+3}", f"v_cmp_gt_u32 vcc, {NB}, v{T+3}", f"v_cmp_gt_u32 s[56:57], s55, v{T}", "s_and_b64 exec, vcc, s[56:57]",
      f"v_lshlrev_b32 v{T+3}, 2, v{T+3}", f"ds_add_rtn_u32 v{T+3}, v{T+3}, v5 offset:{L_CTR}", f"v_lshl_or_b32 v{T+4}, v{T+5}, 16, v{T+4}",
      "s_waitcnt lgkmcnt(0)", f"v_min_u32 v{T+3}, s65, v{T+3}", f"ds_write_b32 v{T+3}, v{T+4}", "s_mov_b64 exec, -1",
      f"v_add_u32 v{T}, 768, v{T}", f"v_cmp_gt_u32 vcc, s55, v{T}", "s_cbranch_vccnz K2_RS2")
    a("s_add_u32 s52, s52, 1", "s_cmp_lt_u32 s52, s23", "s_cbranch_scc1 K2_RS1")
    a("s_mov_b32 s68, -1", "s_waitcnt lgkmcnt(0)", "s_barrier", "s_cmp_eq_u32 s73, 0", "s_cbranch_scc1 K2_AB1T", "s_branch K2_AB1")

    a.label("K2_BF")
    T = Z0
    a("s_waitcnt vmcnt(0) lgkmcnt(0)")
    srd(a, SD, 10, 11, E * 4); srd(a, SS, 8, 9, E * 4); srd(a, SE, 6, 7, E * 2); srd(a, 52, 12, 13, 129 * 128)
    for i in range(4): a(f"v_mov_b32 v{T+i}, 0")
    a(f"v_lshlrev_b32 v{T+4}, 4, v0", f"v_add_u32 v{T+4}, {L_ELL}, v{T+4}")
    for i in range(3): a(f"ds_write_b128 v{T+4}, {vr(T,4)} offset:{12288*i}")
    LN, F4, F2, PO, W3 = T + 4, T + 5, T + 6, T + 7, T + 8
    a(f"v_and_b32 v{LN}, 63, v0", f"v_lshlrev_b32 v{F4}, 2, v{LN}", f"v_lshlrev_b32 v{F2}, 1, v{LN}",
      f"v_and_b32 v{PO}, 8, v{LN}", f"v_lshlrev_b32 v{PO}, 3, v{PO}", f"v_and_b32 v{T}, 48, v{LN}", f"v_add_u32 v{PO}, v{PO}, v{T}",
      f"v_and_b32 v{T}, 7, v{LN}", f"v_lshl_add_u32 v{PO}, v{T}, 1, v{PO}",
      "s_movk_i32 s56, 16384", f"buffer_load_ushort v{W3}, v{F2}, s[52:55], s56 offen", "s_waitcnt vmcnt(0) lgkmcnt(0)",
      f"v_lshlrev_b32 v{W3}, 16, v{W3}", f"v_mul_f32 v{W3}, s66, v{W3}",
      f"s_mul_i32 s57, {BK}, {NB}", "s_mov_b32 s56, s3", "s_barrier")
    a.label("K2_BF1")
    DV, SV, EV = T + 9, T + 10, T + 11
    a("s_lshl_b32 s58, s56, 8", "s_lshl_b32 s59, s56, 7",
      f"buffer_load_dword v{DV}, v{F4}, s[{SD}:{SD+3}], s58 offen", "s_waitcnt vmcnt(0)",
      f"v_subrev_u32 v{DV}, s57, v{DV}", f"v_cmp_gt_u32 vcc, {NB}, v{DV}", "s_cbranch_vccz K2_BF3",
      f"buffer_load_dword v{SV}, v{F4}, s[{SS}:{SS+3}], s58 offen", f"buffer_load_ushort v{EV}, v{F2}, s[{SE}:{SE+3}], s59 offen",
      "s_mov_b64 s[60:61], vcc", "s_waitcnt vmcnt(0)")
    a.label("K2_BF2")
    a("s_ff1_i32_b64 s58, s[60:61]", "s_bitset0_b64 s[60:61], s58",
      f"v_readlane_b32 s59, v{SV}, s58", f"v_readlane_b32 s62, v{DV}, s58", f"v_readlane_b32 s63, v{EV}, s58",
      "s_min_u32 s59, s59, %d" % (N - 1), "s_lshl_b32 s59, s59, 7", f"buffer_load_ushort v{T}, v{PO}, s[{SWS}:{SWS+3}], s59 offen",
      f"s_mul_i32 s58, s62, {QSTR}", f"v_add_u32 v{T+1}, s58, v{F4}", f"ds_read_b32 v{T+1}, v{T+1} offset:{L_QS}",
      "s_lshl_b32 s63, s63, 16", "s_lshl_b32 s62, s62, 8", f"s_add_u32 s62, s62, {L_ELL}", f"v_add_u32 v{T+2}, s62, v{F4}",
      "s_waitcnt vmcnt(0) lgkmcnt(0)",
      f"v_lshlrev_b32 v{T}, 16, v{T}", f"v_add_f32 v{T}, v{T}, v{T+1}", f"v_fma_f32 v{T}, s63, v{W3}, v{T}",
      f"v_exp_f32 v{T+1}, v{T}", f"v_add_f32 v{T+1}, 1.0, v{T+1}", f"v_rcp_f32 v{T+1}, v{T+1}", f"v_mul_f32 v{T}, {NLN2:#x}, v{T}", f"v_mul_f32 v{T}, v{T}, v{T+1}",
      f"ds_add_f32 v{T+2}, v{T}", "s_cmp_lg_u64 s[60:61], 0", "s_cbranch_scc1 K2_BF2")
    a.label("K2_BF3")
    a("s_add_u32 s56, s56, 12", f"s_cmp_lt_u32 s56, {E//64}", "s_cbranch_scc1 K2_BF1")
    a("s_waitcnt lgkmcnt(0)", "s_barrier", f"v_mov_b32 v{T+4}, v0")
    a.label("K2_BF4")
    a(f"v_lshlrev_b32 v{T+5}, 3, v{T+4}", f"v_add_u32 v{T+5}, {L_ELL}, v{T+5}", f"ds_read_b64 {vr(T,2)}, v{T+5}",
      f"v_lshrrev_b32 v{T+5}, 5, v{T+4}", f"v_mul_u32_u24 v{T+5}, {ASTR}, v{T+5}", f"v_and_b32 v{T+6}, 31, v{T+4}", f"v_lshl_add_u32 v{T+5}, v{T+6}, 2, v{T+5}",
      "s_waitcnt lgkmcnt(0)", f"v_cvt_pk_bf16_f32 v{T}, v{T}, v{T+1}", f"ds_write_b32 v{T+5}, v{T} offset:{L_AGB}",
      f"v_add_u32 v{T+4}, 768, v{T+4}", f"v_cmpx_gt_u32 vcc, {NB*32}, v{T+4}", "s_cbranch_execnz K2_BF4")
    a("s_mov_b64 exec, -1", "s_mov_b32 s71, -1", "s_waitcnt lgkmcnt(0)", "s_barrier", "s_branch K2_EPI")
    return a.lines

def kd(name, vg, sg=102):
    return f""".amdhsa_kernel {name}
  .amdhsa_next_free_vgpr {vg}
  .amdhsa_next_free_sgpr {sg}
  .amdhsa_accum_offset {vg}
  .amdhsa_group_segment_fixed_size 0
  .amdhsa_kernarg_size 72
  .amdhsa_user_sgpr_count 2
  .amdhsa_user_sgpr_kernarg_segment_ptr 1
  .amdhsa_system_sgpr_workgroup_id_x 1
.end_amdhsa_kernel"""

def build(opt=None):
    opt = opt or {}
    out = ["; mpnn edge MLP: K1 bins edges by destination bucket and builds the P' table, K2 aggregates and updates",
           f"; @launch kernel=mpnn_bin_kernel grid=(256,1,1) block=(1024,1,1) lds={K1_LDS}",
           f"; @launch kernel=mpnn_msg_kernel grid=(256,1,1) block=(768,1,1) lds={K2_LDS}",
           '.amdgcn_target "amdgcn-amd-amdhsa--gfx950"', ".text"]
    for name, fn in (("mpnn_bin_kernel", gen_k1), ("mpnn_msg_kernel", gen_k2)):
        lines, nn = fix_hazards(fn(opt), verbose=opt.get("verbose"))
        out += [f".globl {name}", ".p2align 8", f".type {name},@function"] + lines
    out += ['.section .rodata,"a"', ".p2align 6", kd("mpnn_bin_kernel", 128), ".p2align 6", kd("mpnn_msg_kernel", 168)]
    return "\n".join(out) + "\n"

if __name__ == "__main__":
    import argparse
    ap = argparse.ArgumentParser(); ap.add_argument("-o", default="standalone__mpnn_edge_mlp__graph.s")
    ap.add_argument("--stamp", type=int, default=0); ap.add_argument("-v", action="store_true"); ap.add_argument("--opt", default="{}")
    g = ap.parse_args()
    open(g.o, "w").write(build({"stamp": g.stamp, "verbose": g.v, **eval(g.opt)}))
```

```python
import sys, struct, math
sys.path.insert(0, "gen")
from asmlib import *

N = 25000; E = 800000; NB = 98; CH = 3128; CAP = 72
WS_RA = 0x400000; WS_DA = 0x800000; WS_RB = 0xA00000; WS_WF = 0x380000; WS_END = WS_RB + 0x800000
MARK = 0xFEFEFEFE
WS_STAMP = 0x1400000
f2u = lambda f: struct.unpack("<I", struct.pack("<f", f))[0]
NLOG2E = f2u(-1.4426950408889634); NLN2 = f2u(-0.6931471805599453)
NTILE = (N + 15) // 16

def mf16(d, a, b, c): return f"v_mfma_f32_16x16x32_bf16 {vr(d,4)}, {vr(a,4)}, {vr(b,4)}, {c if isinstance(c,str) else vr(c,4)}"
def mf32(d, a, b, c): return f"v_mfma_f32_32x32x16_bf16 {vr(d,16)}, {vr(a,4)}, {vr(b,4)}, {vr(c,16)}"

class Stamps:
    def __init__(self, a, on, base, kidx, nw): self.a = a; self.on = on; self.base = base; self.k = 0; self.kidx = kidx; self.nw = nw
    def __call__(self):
        if not self.on: return
        r = self.base + 2 * self.k; self.k += 1
        if self.on == 3 and (self.k - 1) not in ((0, 5), (0, 1, 7, 8))[self.kidx]: return
        self.a(f"s_waitcnt lgkmcnt(0)", f"s_memrealtime s[{r}:{r+1}]", "s_waitcnt lgkmcnt(0)")
    def early(self):
        if not self.on: return
        r = self.base + 2 * self.k; self.k += 1
        self.a(f"s_memrealtime s[{r}:{r+1}]")
    def flush(self, ws, wave, t0, t1):
        if not self.on: return
        a = self.a
        self()
        a("s_mov_b64 exec, -1")
        a(f"v_mov_b32 v{t0}, 0")
        for k in range(self.k): a(f"v_writelane_b32 v{t0}, s{self.base+2*k}, {k}")
        if self.kidx == 1: a(f"v_writelane_b32 v{t0}, s98, 13", f"v_writelane_b32 v{t0}, s96, 12", f"v_writelane_b32 v{t0}, s97, 11", f"v_writelane_b32 v{t0}, s69, 15", f"s_getreg_b32 s69, hwreg(HW_REG_HW_ID)", f"v_writelane_b32 v{t0}, s69, 14")
        if self.on == 2 and self.kidx == 1:
            b = self.base
            a(f"s_add_u32 s{b}, s2, s{wave}", f"s_cmp_lg_u32 s{b}, 0", f"s_cbranch_scc1 STK{self.kidx}",
              f"s_load_dwordx2 s[{b}:{b+1}], s[0:1], 56", f"v_and_b32 v{t1}, 63, v0", f"v_lshlrev_b32 v{t1}, 2, v{t1}",
              f"v_add_u32 v{t1+1}, {WS_STAMP}, v{t1}", f"global_load_dword v{t1+1}, v{t1+1}, s[{ws}:{ws+1}]",
              "s_waitcnt vmcnt(0) lgkmcnt(0)", f"s_mov_b64 exec, 0x3ff", f"global_store_dword v{t1}, v{t0}, s[{b}:{b+1}] offset:24",
              f"s_mov_b64 exec, 0x3f", f"global_store_dword v{t1}, v{t1+1}, s[{b}:{b+1}]")
            a.label(f"STK{self.kidx}")
            return
        a(f"s_mul_i32 s{self.base}, s2, {self.nw}", f"s_add_u32 s{self.base}, s{self.base}, s{wave}", f"s_lshl_b32 s{self.base}, s{self.base}, 6",
          f"s_add_u32 s{self.base}, s{self.base}, {WS_STAMP + self.kidx * 0x100000}",
          f"v_and_b32 v{t1}, 63, v0", f"v_lshlrev_b32 v{t1}, 2, v{t1}", f"v_add_u32 v{t1}, s{self.base}, v{t1}",
          "s_mov_b64 exec, 0xffff", f"global_store_dword v{t1}, v{t0}, s[{ws}:{ws+1}]")

def srd(a, r, lo, hi, num, stride=0):
    a(f"s_mov_b32 s{r}, s{lo}")
    if stride: a(f"s_or_b32 s{r+1}, s{hi}, {stride << 16:#x}")
    else: a(f"s_mov_b32 s{r+1}, s{hi}")
    a(f"s_mov_b32 s{r+2}, {num}", f"s_mov_b32 s{r+3}, 0x20000")

K1_DA = 32768; K1_CNT = 40960; K1_LDS = K1_CNT + 1024
def gen_k1(opt):
    a = Asm(); st = Stamps(a, opt.get("stamp"), 70, 0, 16)
    a.label("mpnn_bin_kernel")
    if opt.get("cpf") == 2:
        a("s_getpc_b64 s[48:49]", "v_lshlrev_b32 v54, 7, v0", "v_min_u32 v54, K2_END-mpnn_bin_kernel-4, v54", "global_load_dword v55, v54, s[48:49]")
    a("s_cmp_ge_u32 s2, 256", "s_cbranch_scc1 K1_END")
    a("s_load_dwordx8 s[4:11], s[0:1], 0", "s_load_dwordx4 s[12:15], s[0:1], 32", "s_load_dwordx2 s[16:17], s[0:1], 64")
    a("v_lshrrev_b32 v1, 6, v0", "v_lshlrev_b32 v7, 4, v0", "v_readfirstlane_b32 s3, v1", "v_lshlrev_b32 v4, 3, v0")
    a("v_mov_b32 v46, -1", "v_mov_b32 v47, -1", f"ds_write_b64 v4, v[46:47] offset:{K1_DA}",
      "v_and_b32 v45, 255, v0", "v_lshlrev_b32 v44, 2, v45", "v_lshlrev_b32 v45, 5, v45", f"ds_write_b32 v44, v45 offset:{K1_CNT}")
    a("s_and_b32 s40, s2, 7", "s_lshr_b32 s41, s2, 3")
    a(f"s_mov_b32 s34, {WS_END}", "s_mov_b32 s35, 0x20000")
    CO = 44
    def co_addr():
        a("s_lshl_b32 s42, s40, 5", "s_add_u32 s42, s42, s41",
          "s_lshl_b32 s43, s42, 5", f"s_add_u32 s43, s43, {WS_DA}", "s_lshl_b32 s44, s42, 7", "s_lshl_b32 s42, s42, 6", f"s_add_u32 s44, s44, {WS_RB}", f"s_add_u32 s42, s42, {WS_RA}")
        a(f"v_lshrrev_b32 v{CO+6}, 2, v0", f"v_and_b32 v{CO+5}, 3, v0", f"v_lshlrev_b32 v{CO+1}, 13, v{CO+6}", f"v_lshl_add_u32 v{CO+1}, v{CO+5}, 3, v{CO+1}", f"v_lshlrev_b32 v{CO}, 1, v{CO+1}", f"v_lshl_add_u32 v{CO+8}, v{CO+6}, 14, v{CO}",
          f"v_lshlrev_b32 v{CO+2}, 7, v{CO+6}", f"v_lshl_add_u32 v{CO+2}, v{CO+5}, 4, v{CO+2}", f"v_and_b32 v{CO+3}, 64, v0", f"v_add_u32 v{CO+2}, v{CO+2}, v{CO+3}", f"v_xor_b32 v{CO+3}, 64, v{CO+2}",
          f"v_bfe_u32 v{CO+4}, v0, 4, 2", f"v_xor_b32 v{CO+5}, v{CO+5}, v{CO+4}", f"v_lshlrev_b32 v{CO+6}, 5, v{CO+6}", f"v_lshl_add_u32 v{CO+5}, v{CO+5}, 2, v{CO+6}", f"v_add_u32 v{CO+5}, 16, v{CO+5}",
          *([f"v_add_u32 v{CO+5}, 16, v{CO+6}"] if opt.get("bfull", 1) else []), f"v_add_u32 v{CO+6}, 32, v{CO+6}", f"v_and_b32 v{CO+4}, 0x3fc, v0", f"v_lshlrev_b32 v{CO+7}, 3, v0")
    a("s_cmp_ge_u32 s3, 13", "s_cbranch_scc1 K1_P")
    DST, SRC, EE, B, DL, S, LIM, REC = 8, 12, 16, 20, 24, 28, 32, 36
    a(f"s_mul_i32 s18, s2, {CH}", f"s_sub_u32 s19, {E}, s18", f"s_min_u32 s19, s19, {CH}", "s_lshl_b32 s36, s18, 2", "s_lshl_b32 s37, s18, 1")
    for r, n in ((20, E * 4), (24, E * 4), (28, E * 2)): a(f"s_mov_b32 s{r+2}, {n}", f"s_mov_b32 s{r+3}, 0x20000")
    a("v_lshlrev_b32 v1, 2, v0", "v_cmp_gt_u32 vcc, s19, v1")
    if opt.get("cpf") == 1:
        a("s_cmp_lg_u32 s3, 12", "s_cbranch_scc1 K1_NPF", "s_getpc_b64 s[48:49]")
        a.label("K1_PC")
        a("s_add_u32 s48, s48, mpnn_msg_kernel-K1_PC", "s_addc_u32 s49, s49, 0", "v_and_b32 v54, 63, v0", "v_lshlrev_b32 v54, 7, v54",
          "v_min_u32 v54, K2_END-mpnn_msg_kernel, v54", "global_load_dword v55, v54, s[48:49]")
        a.label("K1_NPF")
    a("s_waitcnt lgkmcnt(0)")
    st()
    a("s_mov_b32 s20, s10", "s_mov_b32 s21, s11", f"buffer_load_dwordx4 {vr(DST,4)}, v7, s[20:23], s36 offen {opt.get('lflag', '')}")
    a("s_mov_b32 s24, s8", "s_mov_b32 s25, s9", "s_mov_b32 s28, s6", "s_mov_b32 s29, s7", "s_mov_b32 s32, s16", "s_mov_b32 s33, s17")
    a("s_barrier")
    a(f"buffer_load_dwordx4 {vr(SRC,4)}, v7, s[24:27], s36 offen {opt.get('lflag', '')}", f"buffer_load_dwordx2 {vr(EE,2)}, v4, s[28:31], s37 offen {opt.get('lflag', '')}")
    co_addr()
    if opt.get("tlb"):
        a("s_cmp_lg_u32 s3, 12", "s_cbranch_scc1 K1_NT", "v_and_b32 v54, 63, v0", f"v_mul_u32_u24 v54, {opt['tlb']}, v54", "buffer_load_dword v55, v54, s[32:35], 0 offen", "s_waitcnt vmcnt(1)")
        a.label("K1_NT")
    a("v_mov_b32 v6, 1", "s_movk_i32 s38, -98", "s_mov_b32 s39, 0xffff0000")
    a("s_mov_b64 exec, vcc", "s_cbranch_execz K1_B1")
    a("s_waitcnt vmcnt(2)")
    st()
    for i in range(4):
        a(f"v_mul_u32_u24 v{B+i}, 21400, v{DST+i}", f"v_lshrrev_b32 v{B+i}, 21, v{B+i}", f"v_lshlrev_b32 v{S+i}, 2, v{B+i}",
          f"ds_add_rtn_u32 v{S+i}, v{S+i}, v6 offset:{K1_CNT}")
    for i in range(4): a(f"v_mad_i32_i24 v{DL+i}, v{B+i}, s38, v{DST+i}", f"v_lshl_or_b32 v{LIM+i}, v{B+i}, 5, 31", f"v_and_b32 v{B+i}, 31, v{B+i}")
    for i in range(4):
        a(f"s_waitcnt lgkmcnt(3)", f"v_min_u32 v{S+i}, v{S+i}, v{LIM+i}", f"v_xor_b32 v{S+i}, v{S+i}, v{B+i}", f"ds_write_b8 v{S+i}, v{DL+i} offset:{K1_DA}")
    for i in range(4): a(f"v_lshlrev_b32 v{LIM+i}, 2, v{S+i}")
    a("s_waitcnt vmcnt(0)")
    st()
    if opt.get("smask"):
        for i in range(4): a(f"v_and_b32 v{SRC+i}, {opt['smask']}, v{SRC+i}")
    for i in range(4):
        if i % 2 == 0: a(f"v_lshl_or_b32 v{REC+i}, v{EE+i//2}, 16, v{SRC+i}")
        else: a(f"v_and_or_b32 v{REC+i}, v{EE+i//2}, s39, v{SRC+i}")
        a(f"ds_write_b32 v{LIM+i}, v{REC+i}")
    a.label("K1_B1")
    a("s_mov_b64 exec, -1")
    st.k = 3; st()
    a("s_waitcnt lgkmcnt(0)", "s_barrier")
    st()
    a(f"ds_read_b128 v[8:11], v{CO+2}", f"ds_read_b32 v18, v{CO+4} offset:{K1_CNT}", f"ds_read_b64 v[16:17], v{CO+7} offset:{K1_DA}", f"ds_read_b128 v[12:15], v{CO+3}")
    a("s_waitcnt lgkmcnt(3)", f"buffer_store_dwordx4 v[8:11], v{CO}, s[32:35], s42 offen {opt.get('dflag', '')}")
    a("s_waitcnt lgkmcnt(1)", f"v_cmp_gt_u32 vcc, v18, v{CO+6}", f"v_cmp_gt_u32 s[46:47], v18, v{CO+5}", "s_cbranch_vccnz K1_OV")
    a.label("K1_OVR")
    x = opt.get("x1", "")
    if "d" not in x: a(f"buffer_store_dwordx2 v[16:17], v{CO+1}, s[32:35], s43 offen {opt.get('dflag', '')}")
    if "b" not in x: a("s_mov_b64 exec, s[46:47]", "s_waitcnt lgkmcnt(0)", f"buffer_store_dwordx4 v[12:15], v{CO+8}, s[32:35], s44 offen", *([] if opt.get("bhalf", 1) else [f"buffer_store_dwordx4 v[8:11], v{CO+8}, s[32:35], s44 offen offset:64"]))
    if st.on: a("s_waitcnt vmcnt(0)")
    st.flush(16, 3, 20, 21)
    if opt.get("kp"):
        a("s_mov_b64 exec, -1", f"s_mul_i32 s45, s41, {782*128}", "v_lshlrev_b32 v60, 7, v0", f"v_cmp_gt_u32 vcc, {opt['kp']}, v0", "s_and_b64 exec, exec, vcc", "s_cbranch_execz K1_END", "buffer_load_dword v61, v60, s[32:35], s45 offen")
    a.label("K1_END")
    a("s_endpgm")
    a.label("K1_OV")
    a(f"v_mov_b32 v18, {MARK:#x}", "v_cndmask_b32 v16, v16, v18, vcc", "v_cndmask_b32 v17, v17, v18, vcc", "s_branch K1_OVR")
    W, A, X, D, O, FR = 8, 40, 72, 96, 112, 120
    a.label("K1_P")
    a("v_and_b32 v1, 15, v0", "v_bfe_u32 v2, v0, 4, 2",
      "v_lshlrev_b32 v3, 10, v2", "v_lshl_add_u32 v5, v1, 1, v3", "v_lshl_add_u32 v3, v1, 3, v3",
      "v_lshlrev_b32 v4, 7, v1", "v_lshl_add_u32 v4, v2, 4, v4")
    a("s_mul_i32 s18, s41, 3", "s_add_u32 s18, s18, s3", "s_sub_u32 s18, s18, 13",
      "s_mul_i32 s36, s40, 196", "s_add_u32 s36, s36, s18",
      "s_lshl_b32 s36, s36, 11", f"s_add_u32 s37, s36, {96*2048}", f"s_add_u32 s38, s36, {192*2048}", "s_movk_i32 s39, 4096")
    for r, n in ((20, 129 * 128), (24, N * 128), (28, N * 128), (48, 128 * 128)): a(f"s_mov_b32 s{r+2}, {n}", f"s_mov_b32 s{r+3}, 0x20000")
    a("s_sub_u32 s19, s2, 16", "s_cmp_eq_u32 s3, 15", "s_cselect_b32 s19, s19, 100")
    a("s_waitcnt lgkmcnt(0)")
    st.k = 0; st()
    a("s_mov_b32 s24, s4", "s_mov_b32 s25, s5", "s_mov_b32 s20, s12", "s_mov_b32 s21, s13")
    a("s_cmp_le_u32 s19, 24", "s_cbranch_scc1 K1_FL")
    a.label("K1_FLR")
    for i in range(2):
        for s in range(2): a(f"buffer_load_dwordx4 {vr(X+8*i+4*s,4)}, v4, s[24:27], s{36+i} offen offset:{64*s} {opt.get('xflag', '')}")
    for s in range(2):
        for kk in range(8): a(f"buffer_load_dwordx2 {vr(W+16*s+2*kk,2)}, v3, s[20:23], {'s39' if s else '0'} offen offset:{128*kk}")
    a("s_cmp_lt_u32 s18, 4", "s_cselect_b64 exec, -1, 0")
    for s in range(2): a(f"buffer_load_dwordx4 {vr(X+16+4*s,4)}, v4, s[24:27], s38 offen offset:{64*s}")
    a("s_mov_b64 exec, -1")
    a("s_barrier")
    a("s_mov_b32 s28, s16", "s_mov_b32 s29, s17", "s_mov_b32 s32, s16", "s_mov_b32 s33, s17")
    a("s_mov_b32 s44, 0x05040100", "s_mov_b32 s45, 0x07060302", f"s_mov_b32 s46, {NLOG2E:#x}", f"s_mov_b32 s47, {NLOG2E:#x}")
    a("s_waitcnt vmcnt(2)")
    st()
    for tau in range(4):
        for s in range(2):
            for rr in range(4):
                a(f"v_perm_b32 v{A+8*tau+4*s+rr}, v{W+16*s+2*(2*rr+1)+tau//2}, v{W+16*s+2*(2*rr)+tau//2}, s{44+tau%2}")
    for i in range(3):
        if i == 2:
            a(f"s_cmp_ge_u32 s18, 4", "s_cbranch_scc1 K1_PD", "s_waitcnt vmcnt(4)")
        for tau in range(4): a(mf16(D+4*tau, A+8*tau, X+8*i, "0"))
        for tau in range(4): a(mf16(D+4*tau, A+8*tau+4, X+8*i+4, D+4*tau))
        for k in range(0, 16, 2): a(f"v_pk_mul_f32 {vr(D+k,2)}, {vr(D+k,2)}, s[46:47]")
        for r in range(4):
            for h in range(2): a(f"v_cvt_pk_bf16_f32 v{O+2*r+h}, v{D+4*(2*h)+r}, v{D+4*(2*h+1)+r}")
        if "p" in opt.get("x1", ""): pass
        elif opt.get("pfull"): a("v_and_b32 v6, 63, v0", "v_lshlrev_b32 v6, 4, v6", f"buffer_store_dwordx4 {vr(O,4)}, v6, s[28:31], s{36+i} offen {opt.get('pflag', '')}", f"buffer_store_dwordx4 {vr(O+4,4)}, v6, s[28:31], s{36+i} offen offset:1024 {opt.get('pflag', '')}")
        else: a(f"buffer_store_dwordx4 {vr(O,4)}, v4, s[28:31], s{36+i} offen {opt.get('pflag', '')}", f"buffer_store_dwordx4 {vr(O+4,4)}, v4, s[28:31], s{36+i} offen offset:64 {opt.get('pflag', '')}")
    a.label("K1_PD")
    st()
    a("s_cmp_le_u32 s19, 24", "s_cbranch_scc1 K1_FS")
    a.label("K1_PE")
    if opt.get("cpf", 3) == 3:
        a("s_lshr_b32 s19, s2, 5", "s_add_u32 s19, s19, s3", "s_cmp_lg_u32 s19, 18", "s_cbranch_scc1 K1_NPF", "s_getpc_b64 s[48:49]")
        a.label("K1_PC")
        a("s_add_u32 s48, s48, mpnn_msg_kernel-K1_PC", "s_addc_u32 s49, s49, 0", "v_and_b32 v54, 63, v0", "v_lshlrev_b32 v54, 7, v54",
          "v_min_u32 v54, K2_END-mpnn_msg_kernel, v54", "global_load_dword v55, v54, s[48:49]")
        a.label("K1_NPF")
    co_addr()
    a("s_branch K1_B1")
    a.label("K1_FL")
    a("s_cmp_eq_u32 s19, 8", "s_cbranch_scc1 K1_FA", "s_cmp_gt_u32 s19, 8", "s_cbranch_scc1 K1_FU")
    a("s_lshr_b32 s42, s19, 1", "s_and_b32 s43, s19, 1", "s_lshl_b32 s42, s42, 5", "s_lshl_b32 s43, s43, 12", "s_add_u32 s43, s43, s42", "s_add_u32 s43, s43, 8192")
    for kk in range(8): a(f"buffer_load_ushort v{FR+kk}, v5, s[20:23], s43 offen offset:{128*kk}")
    a("s_branch K1_FLR")
    a.label("K1_FU")
    a("s_mov_b32 s48, s14", "s_mov_b32 s49, s15")
    a("s_sub_u32 s43, s19, 9", "s_lshr_b32 s42, s43, 2", "s_and_b32 s43, s43, 3", "s_lshl_b32 s42, s42, 5", "s_lshl_b32 s43, s43, 12", "s_add_u32 s43, s43, s42")
    for kk in range(8): a(f"buffer_load_ushort v{FR+kk}, v5, s[48:51], s43 offen offset:{128*kk}")
    a("s_branch K1_FLR")
    a.label("K1_FA")
    a("v_bfe_u32 v5, v0, 3, 2", "v_and_b32 v6, 3, v0", "v_lshl_add_u32 v5, v5, 2, v6", "v_lshlrev_b32 v5, 1, v5", "s_movk_i32 s43, 16384")
    for c in range(4): a(f"buffer_load_ushort v{FR+c}, v5, s[20:23], s43 offen offset:{32*c}")
    a("s_branch K1_FLR")
    a.label("K1_FS")
    a("v_and_b32 v5, 63, v0", "v_lshlrev_b32 v5, 4, v5", "s_lshl_b32 s36, s19, 10", f"s_add_u32 s36, s36, {WS_WF}")
    a("s_cmp_eq_u32 s19, 8", "s_cbranch_scc1 K1_AE")
    for rr in range(4): a(f"v_lshl_or_b32 v{W+rr}, v{FR+2*rr+1}, 16, v{FR+2*rr}")
    a(f"buffer_store_dwordx4 {vr(W,4)}, v5, s[32:35], s36 offen", "s_branch K1_PE")
    a.label("K1_AE")
    a("v_bfe_u32 v2, v0, 2, 1", "v_bfe_u32 v3, v0, 5, 1", "v_cmp_eq_u32 vcc, v2, v3")
    for c in range(4):
        a(f"v_lshlrev_b32 v{FR+c}, 16, v{FR+c}", f"v_mul_f32 v{FR+c}, s46, v{FR+c}", f"v_cvt_pk_bf16_f32 v{FR+c}, 0, v{FR+c}", f"v_cndmask_b32 v{W+c}, 0, v{FR+c}, vcc")
    a(f"buffer_store_dwordx4 {vr(W,4)}, v5, s[32:35], s36 offen", "s_branch K1_PE")
    return a.lines

L_AGB = 0; ASTR = 144
L_QS = L_AGB + 112 * ASTR; QSTR = 272
L_CTR = L_QS + 112 * QSTR; L_OVC = L_CTR + 448; L_FLG = L_CTR + 452; L_CT2 = L_CTR + 512; L_SLOT = L_CTR + 1024; L_OVL = L_SLOT + 512
L_XS = L_OVL + 1024; L_WF = L_XS + 14336
L_ELL = L_WF + 25600; ESTR = 516; EROWS = 83
K2_LDS = L_ELL + 3 * 768 * 16 + 6144
assert K2_LDS >= L_ELL + EROWS * ESTR and L_ELL % 16 == 0 and L_XS % 256 == 0 and L_CTR % 256 == 0 and L_ELL + 512 < (1 << 17), (L_XS, L_ELL)
ZCOL = 112 * 4; DUMP = L_ELL + CAP * ESTR + 400; HCOL = 116 * 4

def gen_k2(opt):
    a = Asm(); st = Stamps(a, opt.get("stamp"), 78, 1, 12)
    perm = opt.get("perm", [0, 1, 2, 3, 10, 6, 5, 4, 11, 9, 8, 7])
    RG = opt.get("ring", 2); small = opt.get("small", 1); dp = opt.get("dprio", [8, 4, 2])
    Q, P, Z0, Z1, NN, DD, EX, BE, AL, AH, AE, IX, VI, VE, LEN, AGA, MFL, OOF, ARD, ARX = \
        8, 24, 56, 72, 88, 104, 120, 136, 140, 144, 148, 152, 154, 155, 159, 160, 161, 162, 163, 164
    WU = BE
    R = Z0
    AD = NN
    TG = DD
    W2 = Q; X = P
    SP, PP5, EH, QC, AC = DD + 8, DD + 9, DD + 10, DD + 11, DD + 12
    SWS, SPT, SX, SO = 24, 28, 32, 36
    MK = 40
    BK = "s76"
    ws = f"s[{SWS}:{SWS+3}]"
    a.label("mpnn_msg_kernel")
    a("s_cmp_ge_u32 s2, 256", "s_cbranch_scc1 K2_END")
    st.early()
    a("s_load_dwordx2 s[20:21], s[0:1], 64", "s_load_dwordx16 s[4:19], s[0:1], 0")
    a("v_lshrrev_b32 v1, 6, v0", "v_lshlrev_b32 v2, 4, v0", "v_readfirstlane_b32 s3, v1")
    for i in range(4): a(f"v_mov_b32 v{Q+i}, 0")
    a(f"v_add_u32 v4, {L_ELL}, v2")
    a("v_and_b32 v5, 255, v0", "v_lshlrev_b32 v5, 2, v5", f"v_add_u32 v6, {L_ELL}, v5", f"v_cmp_gt_u32 vcc, {NB*4}, v5")
    a(f"s_and_b32 {BK}, s2, 7", f"s_lshl_b32 {BK}, {BK}, 5", "s_lshr_b32 s64, s2, 3", f"s_add_u32 {BK}, {BK}, s64")
    a("v_cndmask_b32 v6, 0, v6, vcc", f"ds_write_b32 v5, v6 offset:{L_CTR}")
    for i in range(3): a(f"ds_write_b128 v4, {vr(Q,4)} offset:{12288*i}")
    a(f"v_lshlrev_b32 v5, 3, v0", f"v_add_u32 v5, {L_ELL + 3*12288}, v5", f"ds_write_b64 v5, {vr(Q,2)}")
    a(f"s_lshl_b32 s64, {BK}, 14", f"s_lshl_b32 s62, {BK}, 15", f"s_add_u32 s62, s62, {WS_RB}", f"s_add_u32 s64, s64, {WS_RA - 4096}", "s_add_u32 s65, s64, 8192",
      f"s_lshl_b32 s66, {BK}, 13", f"s_and_b32 s67, {BK}, 16", "s_add_u32 s66, s66, s67", f"s_add_u32 s66, s66, {WS_DA}", "s_xor_b32 s60, s66, 16",
      "s_sub_u32 s66, s66, 2048", "s_add_u32 s67, s66, 4096")
    a(f"s_mul_i32 s69, {BK}, {NB}", f"s_sub_u32 s70, {N}, s69", f"s_min_u32 s70, s70, {NB}", "s_lshl_b32 s70, s70, 7", "s_lshl_b32 s71, s69, 7")
    a("s_and_b32 s72, s3, 3", "s_lshr_b32 s73, s3, 2")
    a(f"s_mov_b32 s{SWS+2}, {WS_END}", f"s_mov_b32 s{SWS+3}, 0x20000", f"s_mov_b32 s{SX+2}, s70", f"s_mov_b32 s{SX+3}, 0x20000")
    a(f"v_and_b32 v4, 3, v0", "v_and_b32 v6, 63, v0", "v_lshlrev_b32 v6, 4, v6")
    a("v_lshlrev_b32 v3, 5, v0", "v_lshrrev_b32 v5, 2, v0", "v_lshlrev_b32 v5, 5, v5", "v_lshl_add_u32 v5, v4, 2, v5")
    BS = opt.get("bs", 0); BP = opt.get("bp", "a")
    if BS: a("v_lshlrev_b32 v166, 3, v6", "s_andn2_b32 s77, s2, 7", "s_add_u32 s77, s77, s3", "s_sub_u32 s77, s77, 4", f"s_mul_i32 s77, s77, {BS*128}", "s_and_b32 s61, s2, 7", f"s_mul_i32 s61, s61, {(25000 - 256*BS)//7*128 if opt.get('xo', 1) else 0}", "s_add_u32 s77, s77, s61")
    def bulk(): a(f"s_mov_b64 exec, {(1 << BS) - 1 if BS < 64 else -1:#x}" if BS <= 32 else f"s_mov_b32 exec_hi, {(1 << (BS-32)) - 1:#x}", "buffer_load_dword v167, v166, s[24:27], s77 offen", "s_mov_b64 exec, -1")
    a("s_cmp_eq_u32 s73, 0")
    a("s_waitcnt lgkmcnt(0)")
    st()
    if opt.get("x1"): a("s_branch K2_FIN")
    a(f"s_mov_b32 s{SWS}, s20", f"s_mov_b32 s{SWS+1}, s21")
    a("s_cbranch_scc0 K2_A1")
    a(f"buffer_load_dwordx4 {vr(TG,4)}, v3, {ws}, s60 offen {opt.get('kflag', '')}")
    a(f"s_add_u32 s{SX}, s4, s71", f"s_addc_u32 s{SX+1}, s5, 0")
    a("v_bfe_u32 v7, v0, 4, 2", "v_lshlrev_b32 v7, 4, v7", "v_xor_b32 v7, v7, v6", "v_xor_b32 v5, 64, v7",
      "s_lshl_b32 s60, s3, 11", f"s_add_u32 s61, s60, {L_XS}", f"s_add_u32 m0, s60, {L_WF}", f"s_add_u32 s63, s60, {WS_WF}")
    a("s_barrier")
    sx = f"s[{SX}:{SX+3}]"
    a(f"buffer_load_dwordx4 v6, {ws}, s63 offen lds", f"buffer_load_dwordx4 v6, {ws}, s63 offen offset:1024 lds", "s_mov_b32 m0, s61", "v_lshlrev_b32 v3, 7, v0")
    a(f"buffer_load_dwordx4 v7, {sx}, s60 offen lds", f"buffer_load_dwordx4 v5, {sx}, s60 offen offset:1024 lds",
      "s_add_u32 m0, s61, 8192", "s_add_u32 s60, s60, 8192", "s_cmp_eq_u32 s3, 3", "s_cbranch_scc1 K2_A3",
      f"buffer_load_dwordx4 v7, {sx}, s60 offen lds", f"buffer_load_dwordx4 v5, {sx}, s60 offen offset:1024 lds")
    a("s_branch K2_A2")
    a.label("K2_A3")
    a(f"s_mov_b32 m0, {L_WF + 8192}", f"s_mov_b32 s60, {WS_WF + 8192}", f"buffer_load_dwordx4 v6, {ws}, s60 offen lds", "s_mov_b64 exec, 0", f"buffer_load_dwordx4 v6, {ws}, s60 offen lds", "s_mov_b64 exec, -1")
    a("s_branch K2_A2")
    a.label("K2_A1")
    a(f"buffer_load_dword v{TG}, v5, {ws}, s66 offen {opt.get('kflag', '')}", f"buffer_load_dword v{TG+1}, v5, {ws}, s67 offen {opt.get('kflag', '')}")
    a("s_barrier")
    a(f"buffer_load_dwordx4 {vr(R,4)}, v2, {ws}, s64 offen {opt.get('kflag', '')}", f"buffer_load_dwordx4 {vr(R+4,4)}, v2, {ws}, s65 offen {opt.get('kflag', '')}")
    if BS and BP == "a": bulk()
    a.label("K2_A2")
    a("s_lshl_b32 s74, s73, 11", f"s_add_u32 s75, s74, {3*2048}", f"s_add_u32 s22, s74, {6*2048}")
    srd(a, SPT, 20, 21, N, stride=128)
    a(f"s_add_u32 s{SO}, s16, s71", f"s_addc_u32 s{SO+1}, s17, 0", f"s_mov_b32 s{SO+2}, s70", f"s_mov_b32 s{SO+3}, 0x20000")
    T = Z1
    if small:
        a(f"v_and_b32 v{T}, 1, v0", f"v_lshlrev_b32 v{T}, 4, v{T}", f"v_mov_b32 v{T+1}, 0x3f80", f"v_lshlrev_b32 v{T}, v{T}, v{T+1}", "v_cmp_gt_u32 vcc, 2, v4",
          f"v_cndmask_b32 v{AL}, 0, v{T}, vcc", f"v_cndmask_b32 v{AL+1}, v{T}, 0, vcc")
    else:
        a(f"v_and_b32 v{T}, 1, v0", f"v_lshlrev_b32 v{T}, 4, v{T}", f"v_mov_b32 v{T+1}, 0x3f80", f"v_lshlrev_b32 v{T}, v{T}, v{T+1}",
          f"v_bfe_u32 v{T+1}, v0, 3, 2", f"v_bfe_u32 v{T+2}, v0, 1, 1", f"v_lshl_add_u32 v{T+1}, v{T+1}, 1, v{T+2}",
          f"v_bfe_u32 v{T+2}, v0, 2, 1", f"v_bfe_u32 v{T+3}, v0, 5, 1", f"v_xor_b32 v{T+2}, v{T+2}, v{T+3}", f"v_lshl_add_u32 v{T+1}, v{T+2}, 3, v{T+1}")
        for k in range(8): a(f"v_cmp_eq_u32 s[{MK+2*k}:{MK+2*k+1}], {k}, v{T+1}")
        for k in range(8): a(f"v_cndmask_b32 v{AL+k}, 0, v{T}, s[{MK+2*k}:{MK+2*k+1}]")
    J, QQ = T, T + 1
    a(f"v_and_b32 v{J}, 15, v0", f"v_bfe_u32 v{QQ}, v0, 4, 2", f"v_lshlrev_b32 v{OOF}, 7, v{J}",
      f"v_lshrrev_b32 v{ARX}, 1, v{J}", f"v_xor_b32 v{ARX}, v{ARX}, v{QQ}", f"v_lshl_add_u32 v{ARX}, v{ARX}, 4, v{OOF}",
      f"s_lshl_b32 s64, s72, 5", f"v_lshl_add_u32 v{OOF}, v{QQ}, 3, v{OOF}", f"v_add_u32 v{OOF}, s64, v{OOF}",
      f"s_mul_i32 s64, s73, {64*QSTR}", f"s_lshl_b32 s65, s72, 6", "s_add_u32 s64, s64, s65", f"s_add_u32 s64, s64, {L_QS - 64*QSTR}",
      f"v_mul_u32_u24 v1, {QSTR}, v{J}", f"v_lshl_add_u32 v1, v{QQ}, 4, v1", "v_add_u32 v1, s64, v1",
      f"s_lshl_b32 s64, s73, 13", f"s_add_u32 s64, s64, {L_XS - 8192}", f"v_add_u32 v2, s64, v{ARX}", "v_xor_b32 v7, 64, v2",
      f"s_lshl_b32 s64, s73, 4", f"v_add_u32 v{J}, s64, v{J}", f"v_mul_u32_u24 v{ARD}, {ASTR}, v{J}", f"v_lshl_add_u32 v{ARD}, v{QQ}, 4, v{ARD}",
      f"s_add_u32 s64, s74, {L_XS}", f"v_add_u32 v{ARX}, s64, v{ARX}")
    a(f"v_lshlrev_b32 v{IX+1}, 4, v4")
    a(f"v_mov_b32 v5, {ESTR}", f"s_movk_i32 s64, {NB*4}", f"s_mov_b32 s65, {DUMP}", "s_mov_b32 s68, 0", "s_mov_b32 s71, 0", "s_mov_b32 s70, 0")
    pk = sum(p << (4 * w) for w, p in enumerate(perm))
    a(f"s_mov_b32 s66, {pk & 0xffffffff:#x}", f"s_mov_b32 s67, {pk >> 32:#x}", "s_lshl_b32 s23, s3, 2", f"s_lshr_b64 s[66:67], s[66:67], s23",
      f"s_and_b32 s23, s66, 15", "s_lshl_b32 s23, s23, 4")
    a(f"v_bfe_u32 v{BE}, v0, 2, 4", f"v_add_u32 v{BE}, s23, v{BE}")
    a(f"v_and_b32 v{BE+2}, 1, v{BE}", f"v_cmp_gt_u32 vcc, 4, v{BE}", f"v_cmp_eq_u32 s[66:67], 0, v{BE+2}",
      f"v_lshlrev_b32 v{BE+1}, 1, v{BE}", f"v_and_b32 v{BE+1}, 0x1fc, v{BE+1}", f"v_subrev_u32 v{BE+1}, 8, v{BE+1}", f"v_lshlrev_b32 v{BE}, 2, v{BE}", f"v_add_u32 v{BE}, {(NB-4)*4}, v{BE}",
      f"s_or_b64 s[58:59], vcc, s[66:67]", f"s_andn2_b64 s[66:67], s[66:67], vcc",
      f"v_cndmask_b32 v{BE+1}, v{BE+1}, v{BE}, vcc",
      f"v_cndmask_b32 v{SP}, 1, 0, vcc", f"v_cndmask_b32 v{PP5}, v5, 0, s[58:59]", f"v_cndmask_b32 v{EH}, 0, 1, s[66:67]",
      f"v_cndmask_b32 v{MFL}, 0, 1.0, s[66:67]", f"v_mov_b32 v{BE+3}, {L_ELL + ZCOL}",
      f"v_lshlrev_b32 v{QC}, 6, v4", f"v_add_u32 v{QC}, {(L_QS - 68*L_ELL) & 0xffffffff:#x}, v{QC}", f"v_lshlrev_b32 v{AC}, 5, v4", f"v_add_u32 v{AC}, {(L_AGB - 36*L_ELL) & 0xffffffff:#x}, v{AC}")
    a(f"s_mov_b32 s66, {NLOG2E:#x}", f"s_mov_b32 s67, {NLOG2E:#x}")
    T = EX; IP = EX + 4
    for k in range(RG + 1): a(f"v_mov_b32 v{IP+2*k+1}, v{IX+1}")
    a("s_cmp_eq_u32 s73, 0", "s_cbranch_scc1 K2_CT")
    def a_round(ad, l, mk):
        for k in range(4): a(f"v_lshlrev_b32_sdwa v{ad+k}, 2, v{l} dst_sel:DWORD dst_unused:UNUSED_PAD src0_sel:DWORD src1_sel:BYTE_{k}")
        for k in range(4): a(f"v_cmp_gt_u32 s[{mk+2*k}:{mk+2*k+1}], s64, v{ad+k}")
        for k in range(4): a(f"s_mov_b64 exec, s[{mk+2*k}:{mk+2*k+1}]", f"ds_add_rtn_u32 v{ad+k}, v{ad+k}, v5 offset:{L_CTR}")
        a("s_mov_b64 exec, -1")
    stk = st.k
    ellpre = 0
    def ellw():
        for k in range(8):
            if k % 4 == 0: a(f"s_waitcnt vmcnt({1 - k//4 + (1 if BS else 0)})")
            if k == 4 and st.on == 1: a("s_memrealtime s[100:101]")
            a(f"v_min_u32 v{AD+k}, s65, v{AD+k}", f"ds_write_b32 v{AD+k}, v{R+k}")
    a(f"s_lshl_b32 s23, s72, 11", f"s_add_u32 s23, s23, {L_WF}", f"v_add_u32 v3, s23, v6", f"v_mov_b32 v{Z1+4}, 0")
    if BS and BP == "a2": bulk()
    a(f"s_waitcnt vmcnt({2 + (1 if BS and BP != 'b' else 0)})")
    st()
    if BS and BP == "b": bulk()
    a_round(AD, TG, MK); a_round(AD + 4, TG + 1, MK + 8)
    a("s_waitcnt lgkmcnt(0)")
    if ellpre: ellw()
    a("s_barrier")
    st()
    a.label("K2_AB1")
    T = Z1 + 4
    a(f"ds_read_b32 v{T+1}, v{T} offset:{L_OVC}")
    if not ellpre: ellw()
    a("s_waitcnt lgkmcnt(4)", f"v_readfirstlane_b32 s23, v{T+1}")
    a(f"ds_read_b128 {vr(W2,4)}, v3", f"ds_read_b128 {vr(W2+4,4)}, v3 offset:1024")
    for i in range(4): a(f"ds_read_b128 {vr(X+8*i,4)}, v2 offset:{2048*i}", f"ds_read_b128 {vr(X+8*i+4,4)}, v7 offset:{2048*i}")
    a("s_andn2_b32 s23, s23, s68", "s_cbranch_scc1 K2_RESCAN")
    QT = Z1; T = EX
    def gather(slot, ix):
        p = P + 8 * slot
        return [f"buffer_load_dwordx4 {vr(p,4)}, {vr(ix,2)}, s[{SPT}:{SPT+3}], 0 idxen offen",
                f"buffer_load_dwordx4 {vr(p+4,4)}, {vr(ix,2)}, s[{SPT}:{SPT+3}], 0 idxen offen offset:64"]
    stb = st.k
    for r in range(4): a(f"v_cmp_eq_u32 s[{MK+4+2*r}:{MK+5+2*r}], {r}, v4")
    a(f"v_add_u32 v7, {L_WF + 8192}, v6")
    if st.on == 1: a("s_memrealtime s[96:97]", "s_waitcnt lgkmcnt(0)", "s_mov_b32 s97, s100")
    a("s_waitcnt lgkmcnt(%d)" % (0 if st.on == 1 else 10), "s_barrier")
    st()
    a(f"ds_read_b32 v{T}, v{BE+1} offset:{L_SLOT}", f"ds_read_b128 {vr(AE,4)}, v7", "s_waitcnt lgkmcnt(2)")
    for i in range(4): a(mf16(QT+4*i, W2, X+8*i, "0"))
    for i in range(4): a(mf16(QT+4*i, W2+4, X+8*i+4, QT+4*i))
    def slotdec():
        a("s_waitcnt lgkmcnt(1)")
        a(f"v_lshrrev_b32 v{LEN}, 17, v{T}", f"v_add_u32 v{T+1}, v{LEN}, v{SP}", f"v_and_b32 v{T}, 0x1ffff, v{T}", f"v_lshrrev_b32 v{T+1}, 1, v{T+1}", f"v_mad_u32_u24 v{VI}, v{T+1}, v{PP5}, v{T}")
        a(f"ds_read_u16 v{IP}, v{VI}")
    slotdec()
    for i in range(4):
        a(f"v_pk_mul_f32 {vr(QT+4*i,2)}, {vr(QT+4*i,2)}, s[66:67]", f"v_pk_mul_f32 {vr(QT+4*i+2,2)}, {vr(QT+4*i+2,2)}, s[66:67]")
        if i == 3: a(f"s_waitcnt lgkmcnt(3)", *gather(0, IP), "s_cmp_eq_u32 s73, 2", "s_cbranch_scc1 K2_NQ2")
        a(f"ds_write_b128 v1, {vr(QT+4*i,4)} offset:{16*QSTR*i}")
    a("s_branch K2_NQ2")
    a.label("K2_CT")
    st.k = stk
    C0, C1, H0, H1, T0, T1, HH, PS, L4, B0, B1_, LOB, HIB, HA, FOUR = [Q + i for i in range(15)]
    a(f"v_mov_b32 v{Z1+4}, {MARK:#x}", "s_lshl_b32 s60, s3, 12", f"s_add_u32 m0, s60, {L_WF + 9*1024}", f"s_add_u32 s60, s60, {WS_WF + 9*1024}")
    a(f"v_lshlrev_b32 v{L4}, 2, v0", f"v_add_u32 v{B0}, {L_ELL}, v{L4}", f"v_add_u32 v{B1_}, {L_ELL + 256}, v{L4}",
      f"v_mov_b32 v{LOB}, {(CAP-63)*ESTR}", f"v_mov_b32 v{HIB}, {CAP*ESTR}", f"v_mul_u32_u24 v{HA}, {ESTR}, v0", f"v_sub_u32 v{HA}, {L_ELL + HCOL + CAP*ESTR}, v{HA}", f"v_mov_b32 v{FOUR}, 4",
      f"s_mov_b32 s61, {L_ELL + HCOL}")
    AD2 = P + 8; AD3 = P + 24
    for k in range(16): a(f"v_mov_b32 v{AD+k}, -1")
    a("s_waitcnt vmcnt(6)")
    st()
    for j in range(4): a(f"v_cmp_ne_u32 s[{MK+2*j}:{MK+2*j+1}], -1, v{TG+j}")
    a(f"v_cmp_eq_u32 vcc, v{Z1+4}, v{TG}")
    for j in range(4): a(f"s_mov_b64 exec, s[{MK+2*j}:{MK+2*j+1}]", f"buffer_load_dwordx4 {vr(R+4*j,4)}, v3, {ws}, s62 offen offset:{16*j} {opt.get('kflag', '')}")
    a("s_mov_b64 exec, -1")
    for j in range(4):
        a(f"s_cmp_eq_u64 s[{MK+2*j}:{MK+2*j+1}], 0", f"s_cbranch_scc1 K2_TS{j}")
        if j == 3: a("s_waitcnt lgkmcnt(8)")
        for k in range(4): a(f"v_lshlrev_b32_sdwa v{AD2+4*j+k}, 2, v{TG+j} dst_sel:DWORD dst_unused:UNUSED_PAD src0_sel:DWORD src1_sel:BYTE_{k}")
        for k in range(4): a(f"v_cmp_gt_u32 s[{MK+8+2*k}:{MK+9+2*k}], s64, v{AD2+4*j+k}")
        for k in range(4): a(f"s_mov_b64 exec, s[{MK+8+2*k}:{MK+9+2*k}]", f"ds_add_rtn_u32 v{AD+4*j+k}, v{AD2+4*j+k}, v5 offset:{L_CT2}")
        a("s_mov_b64 exec, -1", f"s_bitset1_b32 s70, {j}")
        a.label(f"K2_TS{j}")
    if opt.get("nowu"): a("s_mov_b64 exec, 0")
    for k in range(4): a(f"buffer_load_dwordx4 v6, {ws}, s60 offen offset:{1024*k} lds")
    if opt.get("nowu"): a("s_mov_b64 exec, -1")
    a("s_cbranch_vccnz K2_MARK")
    a.label("K2_MR")
    a("s_waitcnt vmcnt(8) lgkmcnt(0)", "s_barrier")
    st()
    a.label("K2_AB1T")
    a(f"v_and_b32 v{T0}, 0xfc, v{L4}", f"ds_read2st64_b32 {vr(C0,2)}, v{T0} offset0:{L_CTR//256} offset1:{L_CTR//256+1}", f"ds_read2st64_b32 {vr(H0,2)}, v{T0} offset0:{L_CTR//256+2} offset1:{L_CTR//256+3}", "s_setprio 3", "s_mov_b32 s56, -1", "s_mov_b32 s57, 3")
    a("s_waitcnt lgkmcnt(0)", f"v_readlane_b32 s23, v{C1}, 48", f"v_sub_u32 v{C0}, v{C0}, v{B0}", f"v_sub_u32 v{C1}, v{C1}, v{B1_}", f"v_add_u32 v{C0}, v{C0}, v{H0}", f"v_add_u32 v{C1}, v{C1}, v{H1}",
      "s_andn2_b32 s23, s23, s68", "s_cbranch_scc1 K2_RESCAN", "s_cmp_lg_u32 s3, 0", "s_cbranch_scc1 K2_TW")
    for c, h, t in ((C0, H0, T0), (C1, H1, T1)):
        if c == C1: a("s_mov_b64 exec, s[56:57]")
        a(f"v_med3_u32 v{h}, v{c}, v{LOB}, v{HIB}", f"v_add_u32 v{t}, s61, v{h}", f"ds_add_rtn_u32 v{t}, v{t}, v{FOUR}")
    a(f"v_cmp_gt_u32 s[{MK}:{MK+1}], v{C1}, v{HIB}", "s_mov_b64 exec, -1", f"ds_read_b32 v{HH}, v{HA}", f"v_cmp_gt_u32 vcc, v{C0}, v{HIB}")
    for c, h, b in ((C0, H0, B0), (C1, H1, B1_)):
        a(f"v_min_u32 v{c}, v{c}, v{HIB}", f"v_lshrrev_b32 v{c}, 2, v{c}", f"v_mul_u32_u24 v{c}, 509, v{c}", f"v_lshrrev_b32 v{c}, 16, v{c}",
          f"v_max_u32 v{h}, {CAP-63}, v{c}", f"v_sub_u32 v{h}, {CAP}, v{h}", f"v_lshlrev_b32 v{h}, 2, v{h}", f"v_lshl_or_b32 v{c}, v{c}, 17, v{b}")
    a(f"s_or_b64 vcc, vcc, s[{MK}:{MK+1}]", "s_waitcnt lgkmcnt(0)")
    a(f"v_add_u32_dpp v{PS}, v{HH}, v{HH} row_shr:1 row_mask:0xf bank_mask:0xf bound_ctrl:0")
    for k in (2, 4, 8): a(f"v_add_u32_dpp v{PS}, v{PS}, v{PS} row_shr:{k} row_mask:0xf bank_mask:0xf bound_ctrl:0")
    a(f"v_add_u32_dpp v{PS}, v{PS}, v{PS} row_bcast:15 row_mask:0xa bank_mask:0xf", f"v_add_u32_dpp v{PS}, v{PS}, v{PS} row_bcast:31 row_mask:0xc bank_mask:0xf")
    a(f"v_sub_u32 v{PS}, v{PS}, v{HH}", f"ds_bpermute_b32 v{H0}, v{H0}, v{PS}", f"ds_bpermute_b32 v{H1}, v{H1}, v{PS}")
    a(f"v_mov_b32 v{HH}, 0", "s_waitcnt lgkmcnt(1)", f"v_add_u32 v{H0}, v{H0}, v{T0}", f"ds_write_b32 v{H0}, v{C0} offset:{L_SLOT}",
      "s_waitcnt lgkmcnt(1)", "s_mov_b64 exec, s[56:57]", f"v_add_u32 v{H1}, v{H1}, v{T1}", f"ds_write_b32 v{H1}, v{C1} offset:{L_SLOT}", "s_mov_b64 exec, -1")
    a("s_cbranch_vccz K2_TW", f"ds_write_b32 v{HH}, v5 offset:{L_FLG}")
    a.label("K2_TW")
    a.label("K2_CWR")
    for r in range(4): a(f"v_cmp_eq_u32 s[{MK+4+2*r}:{MK+5+2*r}], {r}, v4")
    T = EX
    a(f"v_add_u32 v7, {L_WF + 8192}, v6")
    if st.on == 1: a("s_waitcnt lgkmcnt(0)", "s_memrealtime s[96:97]")
    a("s_waitcnt lgkmcnt(0)", "s_barrier")
    st()
    a(f"ds_read_b32 v{T}, v{BE+1} offset:{L_SLOT}", f"ds_read_b128 {vr(AE,4)}, v7")
    slotdec()
    a(f"s_waitcnt lgkmcnt(0)", *gather(0, IP))
    for j in range(4):
        a(f"s_bitcmp0_b32 s70, {j}", f"s_cbranch_scc1 K2_TR{j}")
        for k in range(4): a(f"ds_read_b32 v{AD3+k}, v{AD2+4*j+k} offset:{L_CTR}")
        for k in range(4): a(f"s_waitcnt lgkmcnt({3-k})", f"v_add_u32 v{AD+4*j+k}, v{AD+4*j+k}, v{AD3+k} clamp", f"v_min_u32 v{AD+4*j+k}, s65, v{AD+4*j+k}")
        a.label(f"K2_TR{j}")
    a("s_waitcnt vmcnt(6)")
    if st.on == 1: a("s_memrealtime s[100:101]", "s_waitcnt lgkmcnt(0)", "s_mov_b32 s97, s100")
    for j in range(4):
        a(f"s_bitcmp0_b32 s70, {j}", f"s_cbranch_scc1 K2_TW{j}")
        if j == 3: a("s_waitcnt lgkmcnt(4)")
        for k in range(4): a(f"ds_write_b32 v{AD+4*j+k}, v{R+4*j+k}")
        a.label(f"K2_TW{j}")
    a.label("K2_NQ2")
    def rde(t): return [f"ds_read_b32 v{BE+r}, v{VE+r} offset:{t*ESTR}" for r in range(4)]
    a(f"v_mov_b32 v{T+1}, 68", f"v_mad_u32_u24 v{T+2}, v{T}, v{T+1}, v{QC}")
    for r in range(4): a(f"v_cndmask_b32 v{VE+r}, v{BE+3}, v{VI}, s[{MK+4+2*r}:{MK+5+2*r}]")
    for i in range(16): a(f"v_mov_b32 v{NN+i}, 0")
    a("s_waitcnt vmcnt(2) lgkmcnt(0)", "s_barrier")
    a(f"ds_read_u16 v{T+3}, v{VI}")
    for k in range(1, RG + 1): a(f"ds_read_u16 v{IP+2*k}, v{VI} offset:{k*ESTR}")
    for k in range(4): a(f"ds_read_b128 {vr(Q+4*k,4)}, v{T+2} offset:{16*k}")
    a(*rde(0), f"ds_read_u16 v{IX}, v{VI} offset:{(RG+1)*ESTR}")
    a(f"s_waitcnt lgkmcnt({RG + 8})", f"v_cmp_ne_u32 vcc, v{T+3}, v{IP}", "s_cbranch_vccnz K2_G0R")
    a.label("K2_G0D")
    a(*gather(1, IP + 2))
    a(f"v_add_u32 v{LEN}, v{LEN}, v{EH}", f"v_lshrrev_b32 v{LEN}, v{SP}, v{LEN}", f"v_mad_u32_u24 v{AGA}, v{T}, 36, v{AC}")
    a(f"v_max_u32_dpp v{T+1}, v{LEN}, v{LEN} row_shr:4 row_mask:0xf bank_mask:0xf bound_ctrl:0")
    for i in range(8): a(f"v_mov_b32 v{DD+i}, 1.0")
    a(f"v_max_u32_dpp v{T+1}, v{T+1}, v{T+1} row_shr:8 row_mask:0xf bank_mask:0xf bound_ctrl:0")
    for i in range(8, 16): a(f"v_mov_b32 v{DD+i}, 1.0")
    a(f"v_readlane_b32 s69, v{T+1}, 15", f"v_readlane_b32 s70, v{T+1}, 31", f"v_readlane_b32 s64, v{T+1}, 47", f"v_readlane_b32 s65, v{T+1}, 63",
      "s_max_u32 s69, s69, s70", "s_max_u32 s64, s64, s65", "s_max_u32 s69, s69, s64", "s_mov_b32 s70, 0")
    a(f"s_lshl_b32 s23, s72, 12", f"s_add_u32 s23, s23, 1024", "v_add_u32 v7, s23, v7")
    a("s_cmp_eq_u32 s69, 0", "s_cbranch_scc1 K2_DONE0")
    a(f"s_waitcnt vmcnt(2) lgkmcnt(0)")
    st()
    if st.on == 1: a("s_memtime s[98:99]", "s_waitcnt lgkmcnt(0)")
    for k in range(2, RG): a(*gather(k, IP + 2*k))
    def sm(z, b, c): return f"v_mfma_f32_4x4x4_16b_bf16 {vr(z,4)}, {vr(AL,2)}, {vr(b,2)}, {vr(c,4)}"
    if small: a(*[sm(Z0+4*i, P+2*i, Q+4*i) for i in range(4)], mf32(Z0, AE, BE, Z0))
    else: a(mf32(Z0, AE, BE, Q), mf32(Z0, AL, P, Z0), mf32(Z0, AH, P + 4, Z0))
    a(*gather(0, IP + 2*RG), *rde(1), "s_nop 3")
    U = max(2, RG)
    a(f"s_branch K2_PRI{U-1}")
    a(".p2align 6")
    for u in range(U):
        a.label(f"K2_L{u}")
        zc = (Z0, Z1)[u % 2]; zn = (Z1, Z0)[u % 2]; p = P + 8 * ((u + 1) % RG)
        ex = [f"v_exp_f32 v{EX+i}, v{zc+i}" for i in range(16)]
        a(f"s_waitcnt vmcnt({2*RG-2}) lgkmcnt(0)")
        if small:
            s4 = [sm(zn+4*i, p+2*i, Q+4*i) for i in range(4)]
            a(s4[0], ex[0], s4[1], ex[1], s4[2], ex[2], s4[3], *ex[3:8], mf32(zn, AE, BE, zn), *ex[8:16])
        else: a(mf32(zn, AE, BE, Q), *ex[0:4], mf32(zn, AL, p, zn), *ex[4:8], mf32(zn, AH, p + 4, zn), *ex[8:16])
        a(*gather((u + 1) % RG, IX), *rde(u + 2), f"ds_read_u16 v{IX}, v{VI} offset:{(u+RG+2)*ESTR}")
        a(f"v_cmpx_lt_u32 vcc, s70, v{LEN}")
        for i in range(0, 16, 2): a(f"v_pk_fma_f32 {vr(NN+i,2)}, {vr(NN+i,2)}, {vr(EX+i,2)}, {vr(NN+i,2)}")
        for i in range(0, 16, 2): a(f"v_pk_fma_f32 {vr(NN+i,2)}, {vr(zc+i,2)}, {vr(DD+i,2)}, {vr(NN+i,2)}")
        for i in range(0, 16, 2): a(f"v_pk_fma_f32 {vr(DD+i,2)}, {vr(DD+i,2)}, {vr(EX+i,2)}, {vr(DD+i,2)}")
        a("s_mov_b64 exec, -1", "s_add_u32 s70, s70, 1", "s_cmp_ge_u32 s70, s64")
        if u < U - 1: a(f"s_cbranch_scc1 K2_PRI{u}")
        else:
            for rg in [VI] + [VE + r for r in range(4)]: a(f"v_add_u32 v{rg}, {U*ESTR}, v{rg}")
            a("s_cbranch_scc0 K2_L0")
    for u in list(range(U - 1, -1, -1)):
        a.label(f"K2_PRI{u}")
        nx = f"K2_L{(u+1)%U}"
        a("s_sub_u32 s65, s69, s70")
        for lv, th in zip((3, 2, 1), dp):
            a(f"s_setprio {lv}", f"s_sub_u32 s64, s69, {th}", f"s_cmp_gt_u32 s65, {th}", f"s_cbranch_scc1 {nx}")
        a("s_setprio 0", "s_mov_b32 s64, s69", "s_cmp_lg_u32 s65, 0", f"s_cbranch_scc1 {nx}")
        if u: a("s_branch K2_DONE")
    a.label("K2_DONE")
    st()
    if st.on == 1: a("s_memtime s[100:101]", "s_waitcnt lgkmcnt(0)", "s_sub_u32 s98, s100, s98")
    XF = Z0; ACC = Q
    a(f"v_xor_b32 v3, 64, v{ARX}")
    for i in range(16): a(f"v_rcp_f32 v{EX+i}, v{DD+i}")
    a("s_waitcnt lgkmcnt(0)")
    for k in range(4): a(f"ds_read_b128 {vr(WU+4*k,4)}, v7 offset:{1024*k}")
    for i in range(3): a(f"ds_read_b128 {vr(XF+8*i,4)}, v{ARX} offset:{6144*i}", f"ds_read_b128 {vr(XF+8*i+4,4)}, v3 offset:{6144*i}")
    a(f"s_mov_b32 s66, {NLN2:#x}", f"s_mov_b32 s67, {NLN2:#x}", f"s_mov_b32 s64, {f2u(2.0**120):#x}")
    for i in range(0, 16, 2): a(f"v_pk_mul_f32 {vr(NN+i,2)}, {vr(NN+i,2)}, s[66:67]")
    a(f"v_max3_f32 v2, v{DD}, v{DD+1}, v{DD+2}")
    for i in range(3, 15, 2): a(f"v_max3_f32 v2, v{DD+i}, v{DD+i+1}, v2")
    a(f"v_max_f32 v2, v{DD+15}, v2")
    for i in range(0, 16, 2): a(f"v_pk_mul_f32 {vr(NN+i,2)}, {vr(NN+i,2)}, {vr(EX+i,2)}")
    a(f"v_pk_mul_f32 {vr(DD,2)}, {vr(NN,2)}, 0")
    for i in range(2, 16, 2): a(f"v_pk_fma_f32 {vr(DD,2)}, {vr(NN+i,2)}, 0, {vr(DD,2)}")
    for i in range(16): a(f"v_fmac_f32_dpp v{NN+i}, v{NN+i}, v{MFL} row_shl:4 row_mask:0xf bank_mask:0xf bound_ctrl:0")
    a(f"v_cmp_u_f32 vcc, v{DD}, v{DD+1}", f"v_cmp_nlt_f32 s[{MK+2}:{MK+3}], v2, s64", f"s_or_b64 vcc, vcc, s[{MK+2}:{MK+3}]")
    for i in range(8): a(f"v_cvt_pk_bf16_f32 v{EX+i}, v{NN+2*i}, v{NN+2*i+1}")
    a("s_waitcnt lgkmcnt(0)", f"s_mov_b64 exec, s[58:59]", f"ds_write_b128 v{AGA}, {vr(EX,4)} offset:{L_AGB}", f"ds_write_b128 v{AGA}, {vr(EX+4,4)} offset:{L_AGB+16}")
    a("s_mov_b64 exec, vcc", "v_mov_b32 v2, 0", f"ds_write_b32 v2, v5 offset:{L_FLG}", "s_mov_b64 exec, -1")
    a(f"s_mov_b32 s66, {NLOG2E:#x}", f"s_mov_b32 s67, {NLOG2E:#x}", "v_mov_b32 v2, 0")
    for i in range(3): a(mf16(ACC+4*i, WU, XF+8*i, "0"))
    for i in range(3): a(mf16(ACC+4*i, WU+4, XF+8*i+4, ACC+4*i))
    a("s_waitcnt lgkmcnt(0)", "s_barrier")
    st()
    a.label("K2_EPI")
    B = Z0; O = EX; TT = NN; WU2 = WU + 8
    a(f"ds_read_b32 v3, v2 offset:{L_FLG}")
    for i in range(3):
        for s in range(2): a(f"ds_read_b128 {vr(B+8*i+4*s,4)}, v{ARD} offset:{L_AGB + 48*ASTR*i + 64*s}")
    a("s_waitcnt lgkmcnt(6)", "v_readfirstlane_b32 s23, v3", "s_andn2_b32 s23, s23, s71", "s_cbranch_scc1 K2_BF")
    def epi_tile(i):
        o = O + 4 * i; t = TT + 4 * i
        a(f"v_pk_mul_f32 {vr(t,2)}, {vr(o,2)}, s[66:67]", f"v_pk_mul_f32 {vr(t+2,2)}, {vr(o+2,2)}, s[66:67]")
        for k in range(4): a(f"v_exp_f32 v{t+k}, v{t+k}")
        a(f"v_pk_add_f32 {vr(t,2)}, {vr(t,2)}, 1.0 op_sel_hi:[1,0]", f"v_pk_add_f32 {vr(t+2,2)}, {vr(t+2,2)}, 1.0 op_sel_hi:[1,0]")
        for k in range(4): a(f"v_rcp_f32 v{t+k}, v{t+k}")
        a(f"v_pk_mul_f32 {vr(t,2)}, {vr(t,2)}, {vr(o,2)}", f"v_pk_mul_f32 {vr(t+2,2)}, {vr(t+2,2)}, {vr(o+2,2)}")
        a(f"v_cvt_pk_bf16_f32 v{o}, v{t}, v{t+1}", f"v_cvt_pk_bf16_f32 v{o+1}, v{t+2}, v{t+3}")
        a(f"buffer_store_dwordx2 {vr(o,2)}, v{OOF}, s[{SO}:{SO+3}], {('s74','s75','s22')[i]} offen")
    for i in range(3):
        a(f"s_waitcnt lgkmcnt({4-2*i})", mf16(O+4*i, WU2, B+8*i, ACC+4*i), mf16(O+4*i, WU2+4, B+8*i+4, O+4*i))
    epi_tile(0); epi_tile(1)
    a("s_cmp_lg_u32 s73, 0", "s_cbranch_scc1 K2_FIN")
    epi_tile(2)
    a.label("K2_FIN")
    if st.on: a("s_waitcnt vmcnt(0)")
    if opt.get("diag"):
        kind, M = opt["diag"]
        a("s_cmp_lg_u32 s3, 0", "s_cbranch_scc1 K2_END", "s_memrealtime s[40:41]", "s_lshl_b32 s42, s2, 10", f"s_add_u32 s42, s42, {WS_STAMP}", "s_add_u32 s44, s20, s42", "s_addc_u32 s45, s21, 0",
          "v_mov_b32 v2, 0", "global_load_dwordx4 v[8:11], v2, s[44:45]", "global_load_dwordx4 v[12:15], v2, s[44:45] offset:16", "s_waitcnt vmcnt(0) lgkmcnt(0)",
          "v_readfirstlane_b32 s46, v8", "v_readfirstlane_b32 s47, v13", "v_readfirstlane_b32 s48, v9", "v_readfirstlane_b32 s49, v10", "s_nop 4")
        a({"k1": "s_sub_u32 s46, s47, s46", "k12": "s_sub_u32 s46, s78, s46", "k2": "s_sub_u32 s46, s40, s78", "tot": "s_sub_u32 s46, s40, s46", "dst": "s_sub_u32 s46, s48, s46", "src": "s_sub_u32 s46, s49, s46",
           "kb3": "s_sub_u32 s46, s92, s80", "xcc": "s_getreg_b32 s46, hwreg(HW_REG_XCC_ID)\ns_xor_b32 s46, s46, s2\ns_and_b32 s46, s46, 7", "ent": "s_sub_u32 s46, s80, s78"}.get(kind, "s_cmp_lg_u32 s2, 5\ns_cbranch_scc1 K2_END"))
        if kind.startswith("g"):
            a(f"s_add_u32 s44, s20, {WS_STAMP}", "s_addc_u32 s45, s21, 0", "v_lshlrev_b32 v2, 6, v0", "v_mov_b32 v16, 0", "v_mov_b32 v17, -1", "v_mov_b32 v18, -1", "v_mov_b32 v19, 0", "s_mov_b32 s47, 0")
            a.label("K2_DL")
            a("global_load_dword v8, v2, s[44:45]", f"global_load_dword v9, v2, s[44:45] offset:{opt.get('dk', 5)*4}", "v_add_u32 v2, 4096, v2", "s_waitcnt vmcnt(0)", "v_sub_u32 v8, s78, v8", "v_sub_u32 v9, s78, v9",
              "v_max_u32 v16, v16, v8", "v_min_u32 v17, v17, v8", "v_min_u32 v18, v18, v9", "v_max_u32 v19, v19, v9", "s_add_u32 s47, s47, 1", "s_cmp_lt_u32 s47, 63", "s_cbranch_scc1 K2_DL")
            a("s_mov_b32 s47, 0", "s_mov_b32 s50, 0", "s_mov_b32 s51, -1", "s_mov_b32 s52, -1", "s_mov_b32 s53, 0")
            a.label("K2_DM")
            a("v_readlane_b32 s54, v16, s47", "v_readlane_b32 s55, v17, s47", "v_readlane_b32 s56, v18, s47", "v_readlane_b32 s57, v19, s47", "s_max_u32 s50, s50, s54", "s_min_u32 s51, s51, s55", "s_min_u32 s52, s52, s56", "s_max_u32 s53, s53, s57",
              "s_add_u32 s47, s47, 1", "s_cmp_lt_u32 s47, 64", "s_cbranch_scc1 K2_DM")
            a({"gskew": "s_sub_u32 s46, s50, s51", "gk1": "s_sub_u32 s46, s50, s52", "ggap": "s_mov_b32 s46, s52", "g0": "s_mov_b32 s46, 0", "gfirst": "s_sub_u32 s46, s50, s53"}[kind])
            a("s_memrealtime s[40:41]", "s_waitcnt lgkmcnt(0)")
        a("s_min_u32 s46, s46, 4000", f"s_mul_i32 s46, s46, {M}")
        a.label("K2_DG")
        a("s_sleep 2", "s_memrealtime s[42:43]", "s_waitcnt lgkmcnt(0)", "s_sub_u32 s42, s42, s40", "s_cmp_lt_u32 s42, s46", "s_cbranch_scc1 K2_DG")
    else: st.flush(20, 3, 2, 3)
    a.label("K2_END")
    a("s_endpgm")

    a.label("K2_G0R")
    a(f"v_mov_b32 v{IP}, v{EX+3}", *gather(0, IP), "s_branch K2_G0D")
    a.label("K2_DONE0")
    a("s_waitcnt vmcnt(0) lgkmcnt(0)", "s_branch K2_DONE")
    a.label("K2_MARK")
    T = Z1
    a("s_mov_b64 exec, vcc", f"v_mov_b32 v{T}, 0", f"v_mov_b32 v{T+1}, 1", f"ds_add_rtn_u32 v{T}, v{T}, v{T+1} offset:{L_OVC}", "s_waitcnt lgkmcnt(0)",
      f"v_and_b32 v{T}, 255, v{T}", f"v_lshlrev_b32 v{T}, 2, v{T}", f"ds_write_b32 v{T}, v0 offset:{L_OVL}", "s_mov_b64 exec, -1", "s_branch K2_MR")

    SD, SS, SE = 40, 44, 48
    a.label("K2_RESCAN")
    srd(a, SD, 10, 11, E * 4); srd(a, SS, 8, 9, E * 4); srd(a, SE, 6, 7, E * 2)
    a("s_mov_b32 s52, 0", f"s_mul_i32 s53, {BK}, {NB}", "s_min_u32 s23, s23, 256", "s_waitcnt lgkmcnt(0)")
    a.label("K2_RS1")
    T = Z1 + 8
    a("s_lshl_b32 s54, s52, 2", f"v_mov_b32 v{T}, s54", f"ds_read_b32 v{T}, v{T} offset:{L_OVL}", "s_waitcnt lgkmcnt(0)", f"v_readfirstlane_b32 s54, v{T}",
      "s_and_b32 s55, s54, 31", "s_lshl_b32 s55, s55, 3", "s_lshr_b32 s54, s54, 5", "s_add_u32 s54, s54, s55",
      f"s_mul_i32 s54, s54, {CH}", f"s_sub_u32 s55, {E}, s54", f"s_min_u32 s55, s55, {CH}",
      f"v_mov_b32 v{T}, v0")
    a.label("K2_RS2")
    a(f"v_add_u32 v{T+1}, s54, v{T}", f"v_lshlrev_b32 v{T+2}, 1, v{T+1}", f"v_lshlrev_b32 v{T+1}, 2, v{T+1}",
      f"buffer_load_dword v{T+3}, v{T+1}, s[{SD}:{SD+3}], 0 offen", f"buffer_load_dword v{T+4}, v{T+1}, s[{SS}:{SS+3}], 0 offen",
      f"buffer_load_ushort v{T+5}, v{T+2}, s[{SE}:{SE+3}], 0 offen", "s_waitcnt vmcnt(0)",
      f"v_subrev_u32 v{T+3}, s53, v{T+3}", f"v_cmp_gt_u32 vcc, {NB}, v{T+3}", f"v_cmp_gt_u32 s[56:57], s55, v{T}", "s_and_b64 exec, vcc, s[56:57]",
      f"v_lshlrev_b32 v{T+3}, 2, v{T+3}", f"ds_add_rtn_u32 v{T+3}, v{T+3}, v5 offset:{L_CTR}", f"v_lshl_or_b32 v{T+4}, v{T+5}, 16, v{T+4}",
      "s_waitcnt lgkmcnt(0)", f"v_min_u32 v{T+3}, s65, v{T+3}", f"ds_write_b32 v{T+3}, v{T+4}", "s_mov_b64 exec, -1",
      f"v_add_u32 v{T}, 768, v{T}", f"v_cmp_gt_u32 vcc, s55, v{T}", "s_cbranch_vccnz K2_RS2")
    a("s_add_u32 s52, s52, 1", "s_cmp_lt_u32 s52, s23", "s_cbranch_scc1 K2_RS1")
    a("s_mov_b32 s68, -1", "s_waitcnt lgkmcnt(0)", "s_barrier", "s_cmp_eq_u32 s73, 0", "s_cbranch_scc1 K2_AB1T", "s_branch K2_AB1")

    a.label("K2_BF")
    T = Z0
    a("s_waitcnt vmcnt(0) lgkmcnt(0)")
    srd(a, SD, 10, 11, E * 4); srd(a, SS, 8, 9, E * 4); srd(a, SE, 6, 7, E * 2); srd(a, 52, 12, 13, 129 * 128)
    for i in range(4): a(f"v_mov_b32 v{T+i}, 0")
    a(f"v_lshlrev_b32 v{T+4}, 4, v0", f"v_add_u32 v{T+4}, {L_ELL}, v{T+4}")
    for i in range(3): a(f"ds_write_b128 v{T+4}, {vr(T,4)} offset:{12288*i}")
    LN, F4, F2, PO, W3 = T + 4, T + 5, T + 6, T + 7, T + 8
    a(f"v_and_b32 v{LN}, 63, v0", f"v_lshlrev_b32 v{F4}, 2, v{LN}", f"v_lshlrev_b32 v{F2}, 1, v{LN}",
      f"v_and_b32 v{PO}, 8, v{LN}", f"v_lshlrev_b32 v{PO}, 3, v{PO}", f"v_and_b32 v{T}, 48, v{LN}", f"v_add_u32 v{PO}, v{PO}, v{T}",
      f"v_and_b32 v{T}, 7, v{LN}", f"v_lshl_add_u32 v{PO}, v{T}, 1, v{PO}",
      "s_movk_i32 s56, 16384", f"buffer_load_ushort v{W3}, v{F2}, s[52:55], s56 offen", "s_waitcnt vmcnt(0) lgkmcnt(0)",
      f"v_lshlrev_b32 v{W3}, 16, v{W3}", f"v_mul_f32 v{W3}, s66, v{W3}",
      f"s_mul_i32 s57, {BK}, {NB}", "s_mov_b32 s56, s3", "s_barrier")
    a.label("K2_BF1")
    DV, SV, EV = T + 9, T + 10, T + 11
    a("s_lshl_b32 s58, s56, 8", "s_lshl_b32 s59, s56, 7",
      f"buffer_load_dword v{DV}, v{F4}, s[{SD}:{SD+3}], s58 offen", "s_waitcnt vmcnt(0)",
      f"v_subrev_u32 v{DV}, s57, v{DV}", f"v_cmp_gt_u32 vcc, {NB}, v{DV}", "s_cbranch_vccz K2_BF3",
      f"buffer_load_dword v{SV}, v{F4}, s[{SS}:{SS+3}], s58 offen", f"buffer_load_ushort v{EV}, v{F2}, s[{SE}:{SE+3}], s59 offen",
      "s_mov_b64 s[60:61], vcc", "s_waitcnt vmcnt(0)")
    a.label("K2_BF2")
    a("s_ff1_i32_b64 s58, s[60:61]", "s_bitset0_b64 s[60:61], s58",
      f"v_readlane_b32 s59, v{SV}, s58", f"v_readlane_b32 s62, v{DV}, s58", f"v_readlane_b32 s63, v{EV}, s58",
      "s_min_u32 s59, s59, %d" % (N - 1), "s_lshl_b32 s59, s59, 7", f"buffer_load_ushort v{T}, v{PO}, s[{SWS}:{SWS+3}], s59 offen",
      f"s_mul_i32 s58, s62, {QSTR}", f"v_add_u32 v{T+1}, s58, v{F4}", f"ds_read_b32 v{T+1}, v{T+1} offset:{L_QS}",
      "s_lshl_b32 s63, s63, 16", "s_lshl_b32 s62, s62, 8", f"s_add_u32 s62, s62, {L_ELL}", f"v_add_u32 v{T+2}, s62, v{F4}",
      "s_waitcnt vmcnt(0) lgkmcnt(0)",
      f"v_lshlrev_b32 v{T}, 16, v{T}", f"v_add_f32 v{T}, v{T}, v{T+1}", f"v_fma_f32 v{T}, s63, v{W3}, v{T}",
      f"v_exp_f32 v{T+1}, v{T}", f"v_add_f32 v{T+1}, 1.0, v{T+1}", f"v_rcp_f32 v{T+1}, v{T+1}", f"v_mul_f32 v{T}, {NLN2:#x}, v{T}", f"v_mul_f32 v{T}, v{T}, v{T+1}",
      f"ds_add_f32 v{T+2}, v{T}", "s_cmp_lg_u64 s[60:61], 0", "s_cbranch_scc1 K2_BF2")
    a.label("K2_BF3")
    a("s_add_u32 s56, s56, 12", f"s_cmp_lt_u32 s56, {E//64}", "s_cbranch_scc1 K2_BF1")
    a("s_waitcnt lgkmcnt(0)", "s_barrier", f"v_mov_b32 v{T+4}, v0")
    a.label("K2_BF4")
    a(f"v_lshlrev_b32 v{T+5}, 3, v{T+4}", f"v_add_u32 v{T+5}, {L_ELL}, v{T+5}", f"ds_read_b64 {vr(T,2)}, v{T+5}",
      f"v_lshrrev_b32 v{T+5}, 5, v{T+4}", f"v_mul_u32_u24 v{T+5}, {ASTR}, v{T+5}", f"v_and_b32 v{T+6}, 31, v{T+4}", f"v_lshl_add_u32 v{T+5}, v{T+6}, 2, v{T+5}",
      "s_waitcnt lgkmcnt(0)", f"v_cvt_pk_bf16_f32 v{T}, v{T}, v{T+1}", f"ds_write_b32 v{T+5}, v{T} offset:{L_AGB}",
      f"v_add_u32 v{T+4}, 768, v{T+4}", f"v_cmpx_gt_u32 vcc, {NB*32}, v{T+4}", "s_cbranch_execnz K2_BF4")
    a("s_mov_b64 exec, -1", "s_mov_b32 s71, -1", "s_waitcnt lgkmcnt(0)", "s_barrier", "s_branch K2_EPI")
    return a.lines

def kd(name, vg, sg=102):
    return f""".amdhsa_kernel {name}
  .amdhsa_next_free_vgpr {vg}
  .amdhsa_next_free_sgpr {sg}
  .amdhsa_accum_offset {vg}
  .amdhsa_group_segment_fixed_size 0
  .amdhsa_kernarg_size 72
  .amdhsa_user_sgpr_count 2
  .amdhsa_user_sgpr_kernarg_segment_ptr 1
  .amdhsa_system_sgpr_workgroup_id_x 1
.end_amdhsa_kernel"""

def build(opt=None):
    opt = opt or {}
    out = ["; mpnn edge MLP: K1 bins edges by destination bucket and builds the P' table, K2 aggregates and updates",
           f"; @launch kernel=mpnn_bin_kernel grid=(256,1,1) block=(1024,1,1) lds={K1_LDS}",
           f"; @launch kernel=mpnn_msg_kernel grid=(256,1,1) block=(768,1,1) lds={K2_LDS}",
           '.amdgcn_target "amdgcn-amd-amdhsa--gfx950"', ".text"]
    for name, fn in (("mpnn_bin_kernel", gen_k1), ("mpnn_msg_kernel", gen_k2)):
        lines, nn = fix_hazards(fn(opt), verbose=opt.get("verbose"))
        out += [f".globl {name}", ".p2align 8", f".type {name},@function"] + lines
    out += ['.section .rodata,"a"', ".p2align 6", kd("mpnn_bin_kernel", 128), ".p2align 6", kd("mpnn_msg_kernel", 168)]
    return "\n".join(out) + "\n"

if __name__ == "__main__":
    import argparse
    ap = argparse.ArgumentParser(); ap.add_argument("-o", default="standalone__mpnn_edge_mlp__graph.s")
    ap.add_argument("--stamp", type=int, default=0); ap.add_argument("-v", action="store_true"); ap.add_argument("--opt", default="{}")
    g = ap.parse_args()
    open(g.o, "w").write(build({"stamp": g.stamp, "verbose": g.v, **eval(g.opt)}))
```

```python
import sys, struct, math
sys.path.insert(0, "gen")
from asmlib import *

N = 25000; E = 800000; NB = 98; CH = 3128; CAP = 72
WS_RA = 0x400000; WS_DA = 0x800000; WS_RB = 0xA00000; WS_WF = 0x380000; WS_END = WS_RB + 0x800000
MARK = 0xFEFEFEFE
WS_STAMP = 0x1400000
f2u = lambda f: struct.unpack("<I", struct.pack("<f", f))[0]
NLOG2E = f2u(-1.4426950408889634); NLN2 = f2u(-0.6931471805599453)
NTILE = (N + 15) // 16

def mf16(d, a, b, c): return f"v_mfma_f32_16x16x32_bf16 {vr(d,4)}, {vr(a,4)}, {vr(b,4)}, {c if isinstance(c,str) else vr(c,4)}"
def mf32(d, a, b, c): return f"v_mfma_f32_32x32x16_bf16 {vr(d,16)}, {vr(a,4)}, {vr(b,4)}, {vr(c,16)}"

class Stamps:
    def __init__(self, a, on, base, kidx, nw): self.a = a; self.on = on; self.base = base; self.k = 0; self.kidx = kidx; self.nw = nw
    def __call__(self):
        if not self.on: return
        r = self.base + 2 * self.k; self.k += 1
        if self.on == 3 and (self.k - 1) not in ((0, 5), (0, 1, 7, 8))[self.kidx]: return
        self.a(f"s_waitcnt lgkmcnt(0)", f"s_memrealtime s[{r}:{r+1}]", "s_waitcnt lgkmcnt(0)")
    def early(self):
        if not self.on: return
        r = self.base + 2 * self.k; self.k += 1
        self.a(f"s_memrealtime s[{r}:{r+1}]")
    def flush(self, ws, wave, t0, t1):
        if not self.on: return
        a = self.a
        self()
        a("s_mov_b64 exec, -1")
        a(f"v_mov_b32 v{t0}, 0")
        for k in range(self.k): a(f"v_writelane_b32 v{t0}, s{self.base+2*k}, {k}")
        if self.kidx == 1: a(f"v_writelane_b32 v{t0}, s98, 13", f"v_writelane_b32 v{t0}, s96, 12", f"v_writelane_b32 v{t0}, s97, 11", f"v_writelane_b32 v{t0}, s69, 15", f"s_getreg_b32 s69, hwreg(HW_REG_HW_ID)", f"v_writelane_b32 v{t0}, s69, 14")
        if self.on == 2 and self.kidx == 1:
            b = self.base
            a(f"s_add_u32 s{b}, s2, s{wave}", f"s_cmp_lg_u32 s{b}, 0", f"s_cbranch_scc1 STK{self.kidx}",
              f"s_load_dwordx2 s[{b}:{b+1}], s[0:1], 56", f"v_and_b32 v{t1}, 63, v0", f"v_lshlrev_b32 v{t1}, 2, v{t1}",
              f"v_add_u32 v{t1+1}, {WS_STAMP}, v{t1}", f"global_load_dword v{t1+1}, v{t1+1}, s[{ws}:{ws+1}]",
              "s_waitcnt vmcnt(0) lgkmcnt(0)", f"s_mov_b64 exec, 0x3ff", f"global_store_dword v{t1}, v{t0}, s[{b}:{b+1}] offset:24",
              f"s_mov_b64 exec, 0x3f", f"global_store_dword v{t1}, v{t1+1}, s[{b}:{b+1}]")
            a.label(f"STK{self.kidx}")
            return
        a(f"s_mul_i32 s{self.base}, s2, {self.nw}", f"s_add_u32 s{self.base}, s{self.base}, s{wave}", f"s_lshl_b32 s{self.base}, s{self.base}, 6",
          f"s_add_u32 s{self.base}, s{self.base}, {WS_STAMP + self.kidx * 0x100000}",
          f"v_and_b32 v{t1}, 63, v0", f"v_lshlrev_b32 v{t1}, 2, v{t1}", f"v_add_u32 v{t1}, s{self.base}, v{t1}",
          "s_mov_b64 exec, 0xffff", f"global_store_dword v{t1}, v{t0}, s[{ws}:{ws+1}]")

def srd(a, r, lo, hi, num, stride=0):
    a(f"s_mov_b32 s{r}, s{lo}")
    if stride: a(f"s_or_b32 s{r+1}, s{hi}, {stride << 16:#x}")
    else: a(f"s_mov_b32 s{r+1}, s{hi}")
    a(f"s_mov_b32 s{r+2}, {num}", f"s_mov_b32 s{r+3}, 0x20000")

K1_DA = 32768; K1_CNT = 40960; K1_LDS = K1_CNT + 1024
def gen_k1(opt):
    a = Asm(); st = Stamps(a, opt.get("stamp"), 70, 0, 16)
    a.label("mpnn_bin_kernel")
    if opt.get("cpf") == 2:
        a("s_getpc_b64 s[48:49]", "v_lshlrev_b32 v54, 7, v0", "v_min_u32 v54, K2_END-mpnn_bin_kernel-4, v54", "global_load_dword v55, v54, s[48:49]")
    a("s_cmp_ge_u32 s2, 256", "s_cbranch_scc1 K1_END")
    if opt.get("dly"):
        a("s_memrealtime s[4:5]", "s_waitcnt lgkmcnt(0)")
        a.label("K1_DL")
        a("s_sleep 1", "s_memrealtime s[6:7]", "s_waitcnt lgkmcnt(0)", "s_sub_u32 s6, s6, s4", f"s_cmp_lt_u32 s6, {opt['dly']}", "s_cbranch_scc1 K1_DL")
    a("s_load_dwordx8 s[4:11], s[0:1], 0", "s_load_dwordx4 s[12:15], s[0:1], 32", "s_load_dwordx2 s[16:17], s[0:1], 64")
    a("v_lshrrev_b32 v1, 6, v0", "v_lshlrev_b32 v7, 4, v0", "v_readfirstlane_b32 s3, v1", "v_lshlrev_b32 v4, 3, v0")
    a("v_mov_b32 v46, -1", "v_mov_b32 v47, -1", f"ds_write_b64 v4, v[46:47] offset:{K1_DA}",
      "v_and_b32 v45, 255, v0", "v_lshlrev_b32 v44, 2, v45", "v_lshlrev_b32 v45, 5, v45", f"ds_write_b32 v44, v45 offset:{K1_CNT}")
    a("s_and_b32 s40, s2, 7", "s_lshr_b32 s41, s2, 3")
    a(f"s_mov_b32 s34, {WS_END}", "s_mov_b32 s35, 0x20000")
    CO = 44
    def co_addr():
        a("s_lshl_b32 s42, s40, 5", "s_add_u32 s42, s42, s41",
          "s_lshl_b32 s43, s42, 5", f"s_add_u32 s43, s43, {WS_DA}", "s_lshl_b32 s44, s42, 7", "s_lshl_b32 s42, s42, 6", f"s_add_u32 s44, s44, {WS_RB}", f"s_add_u32 s42, s42, {WS_RA}")
        a(f"v_lshrrev_b32 v{CO+6}, 2, v0", f"v_and_b32 v{CO+5}, 3, v0", f"v_lshlrev_b32 v{CO+1}, 13, v{CO+6}", f"v_lshl_add_u32 v{CO+1}, v{CO+5}, 3, v{CO+1}", f"v_lshlrev_b32 v{CO}, 1, v{CO+1}", f"v_lshl_add_u32 v{CO+8}, v{CO+6}, 14, v{CO}",
          f"v_lshlrev_b32 v{CO+2}, 7, v{CO+6}", f"v_lshl_add_u32 v{CO+2}, v{CO+5}, 4, v{CO+2}", f"v_and_b32 v{CO+3}, 64, v0", f"v_add_u32 v{CO+2}, v{CO+2}, v{CO+3}", f"v_xor_b32 v{CO+3}, 64, v{CO+2}",
          f"v_bfe_u32 v{CO+4}, v0, 4, 2", f"v_xor_b32 v{CO+5}, v{CO+5}, v{CO+4}", f"v_lshlrev_b32 v{CO+6}, 5, v{CO+6}", f"v_lshl_add_u32 v{CO+5}, v{CO+5}, 2, v{CO+6}", f"v_add_u32 v{CO+5}, 16, v{CO+5}",
          *([f"v_add_u32 v{CO+5}, 16, v{CO+6}"] if opt.get("bfull", 1) else []), f"v_add_u32 v{CO+6}, 32, v{CO+6}", f"v_and_b32 v{CO+4}, 0x3fc, v0", f"v_lshlrev_b32 v{CO+7}, 3, v0")
    a("s_cmp_ge_u32 s3, 13", "s_cbranch_scc1 K1_P")
    DST, SRC, EE, B, DL, S, LIM, REC = 8, 12, 16, 20, 24, 28, 32, 36
    a(f"s_mul_i32 s18, s2, {CH}", f"s_sub_u32 s19, {E}, s18", f"s_min_u32 s19, s19, {CH}", "s_lshl_b32 s36, s18, 2", "s_lshl_b32 s37, s18, 1")
    for r, n in ((20, E * 4), (24, E * 4), (28, E * 2)): a(f"s_mov_b32 s{r+2}, {n}", f"s_mov_b32 s{r+3}, 0x20000")
    a("v_lshlrev_b32 v1, 2, v0", "v_cmp_gt_u32 vcc, s19, v1")
    if opt.get("cpf") == 1:
        a("s_cmp_lg_u32 s3, 12", "s_cbranch_scc1 K1_NPF", "s_getpc_b64 s[48:49]")
        a.label("K1_PC")
        a("s_add_u32 s48, s48, mpnn_msg_kernel-K1_PC", "s_addc_u32 s49, s49, 0", "v_and_b32 v54, 63, v0", "v_lshlrev_b32 v54, 7, v54",
          "v_min_u32 v54, K2_END-mpnn_msg_kernel, v54", "global_load_dword v55, v54, s[48:49]")
        a.label("K1_NPF")
    a("s_waitcnt lgkmcnt(0)")
    st()
    a("s_mov_b32 s20, s10", "s_mov_b32 s21, s11", f"buffer_load_dwordx4 {vr(DST,4)}, v7, s[20:23], s36 offen {opt.get('lflag', '')}")
    a("s_mov_b32 s24, s8", "s_mov_b32 s25, s9", "s_mov_b32 s28, s6", "s_mov_b32 s29, s7", "s_mov_b32 s32, s16", "s_mov_b32 s33, s17")
    a("s_barrier")
    a(f"buffer_load_dwordx4 {vr(SRC,4)}, v7, s[24:27], s36 offen {opt.get('lflag', '')}", f"buffer_load_dwordx2 {vr(EE,2)}, v4, s[28:31], s37 offen {opt.get('lflag', '')}")
    co_addr()
    if opt.get("tlb"):
        a("s_cmp_lg_u32 s3, 12", "s_cbranch_scc1 K1_NT", "v_and_b32 v54, 63, v0", f"v_mul_u32_u24 v54, {opt['tlb']}, v54", "buffer_load_dword v55, v54, s[32:35], 0 offen", "s_waitcnt vmcnt(1)")
        a.label("K1_NT")
    a("v_mov_b32 v6, 1", "s_movk_i32 s38, -98", "s_mov_b32 s39, 0xffff0000")
    a("s_mov_b64 exec, vcc", "s_cbranch_execz K1_B1")
    a("s_waitcnt vmcnt(2)")
    st()
    for i in range(4):
        a(f"v_mul_u32_u24 v{B+i}, 21400, v{DST+i}", f"v_lshrrev_b32 v{B+i}, 21, v{B+i}", f"v_lshlrev_b32 v{S+i}, 2, v{B+i}",
          f"ds_add_rtn_u32 v{S+i}, v{S+i}, v6 offset:{K1_CNT}")
    for i in range(4): a(f"v_mad_i32_i24 v{DL+i}, v{B+i}, s38, v{DST+i}", f"v_lshl_or_b32 v{LIM+i}, v{B+i}, 5, 31", f"v_and_b32 v{B+i}, 31, v{B+i}")
    for i in range(4):
        a(f"s_waitcnt lgkmcnt(3)", f"v_min_u32 v{S+i}, v{S+i}, v{LIM+i}", f"v_xor_b32 v{S+i}, v{S+i}, v{B+i}", f"ds_write_b8 v{S+i}, v{DL+i} offset:{K1_DA}")
    for i in range(4): a(f"v_lshlrev_b32 v{LIM+i}, 2, v{S+i}")
    a("s_waitcnt vmcnt(0)")
    st()
    if opt.get("smask"):
        for i in range(4): a(f"v_and_b32 v{SRC+i}, {opt['smask']}, v{SRC+i}")
    for i in range(4):
        if i % 2 == 0: a(f"v_lshl_or_b32 v{REC+i}, v{EE+i//2}, 16, v{SRC+i}")
        else: a(f"v_and_or_b32 v{REC+i}, v{EE+i//2}, s39, v{SRC+i}")
        a(f"ds_write_b32 v{LIM+i}, v{REC+i}")
    a.label("K1_B1")
    a("s_mov_b64 exec, -1")
    st.k = 3; st()
    a("s_waitcnt lgkmcnt(0)", "s_barrier")
    st()
    a(f"ds_read_b128 v[8:11], v{CO+2}", f"ds_read_b32 v18, v{CO+4} offset:{K1_CNT}", f"ds_read_b64 v[16:17], v{CO+7} offset:{K1_DA}", f"ds_read_b128 v[12:15], v{CO+3}")
    a("s_waitcnt lgkmcnt(3)", f"buffer_store_dwordx4 v[8:11], v{CO}, s[32:35], s42 offen {opt.get('dflag', '')}")
    a("s_waitcnt lgkmcnt(1)", f"v_cmp_gt_u32 vcc, v18, v{CO+6}", f"v_cmp_gt_u32 s[46:47], v18, v{CO+5}", "s_cbranch_vccnz K1_OV")
    a.label("K1_OVR")
    x = opt.get("x1", "")
    if "d" not in x: a(f"buffer_store_dwordx2 v[16:17], v{CO+1}, s[32:35], s43 offen {opt.get('dflag', '')}")
    if "b" not in x: a("s_mov_b64 exec, s[46:47]", "s_waitcnt lgkmcnt(0)", f"buffer_store_dwordx4 v[12:15], v{CO+8}, s[32:35], s44 offen", *([] if opt.get("bhalf", 1) else [f"buffer_store_dwordx4 v[8:11], v{CO+8}, s[32:35], s44 offen offset:64"]))
    if st.on or opt.get("kw"): a("s_waitcnt vmcnt(0)")
    st.flush(16, 3, 20, 21)
    if opt.get("kp"):
        a("s_mov_b64 exec, -1", f"s_mul_i32 s45, s41, {782*128}", "v_lshlrev_b32 v60, 7, v0", f"v_cmp_gt_u32 vcc, {opt['kp']}, v0", "s_and_b64 exec, exec, vcc", "s_cbranch_execz K1_END", "buffer_load_dword v61, v60, s[32:35], s45 offen")
    a.label("K1_END")
    a("s_endpgm")
    a.label("K1_OV")
    a(f"v_mov_b32 v18, {MARK:#x}", "v_cndmask_b32 v16, v16, v18, vcc", "v_cndmask_b32 v17, v17, v18, vcc", "s_branch K1_OVR")
    W, A, X, D, O, FR = 8, 40, 72, 96, 112, 120
    a.label("K1_P")
    a("v_and_b32 v1, 15, v0", "v_bfe_u32 v2, v0, 4, 2",
      "v_lshlrev_b32 v3, 10, v2", "v_lshl_add_u32 v5, v1, 1, v3", "v_lshl_add_u32 v3, v1, 3, v3",
      "v_lshlrev_b32 v4, 7, v1", "v_lshl_add_u32 v4, v2, 4, v4")
    a("s_mul_i32 s18, s41, 3", "s_add_u32 s18, s18, s3", "s_sub_u32 s18, s18, 13",
      "s_mul_i32 s36, s40, 196", "s_add_u32 s36, s36, s18",
      "s_lshl_b32 s36, s36, 11", f"s_add_u32 s37, s36, {96*2048}", f"s_add_u32 s38, s36, {192*2048}", "s_movk_i32 s39, 4096")
    for r, n in ((20, 129 * 128), (24, N * 128), (28, N * 128), (48, 128 * 128)): a(f"s_mov_b32 s{r+2}, {n}", f"s_mov_b32 s{r+3}, 0x20000")
    a("s_sub_u32 s19, s2, 16", "s_cmp_eq_u32 s3, 15", "s_cselect_b32 s19, s19, 100")
    a("s_waitcnt lgkmcnt(0)")
    st.k = 0; st()
    a("s_mov_b32 s24, s4", "s_mov_b32 s25, s5", "s_mov_b32 s20, s12", "s_mov_b32 s21, s13")
    a("s_cmp_le_u32 s19, 24", "s_cbranch_scc1 K1_FL")
    a.label("K1_FLR")
    for i in range(2):
        for s in range(2): a(f"buffer_load_dwordx4 {vr(X+8*i+4*s,4)}, v4, s[24:27], s{36+i} offen offset:{64*s} {opt.get('xflag', '')}")
    for s in range(2):
        for kk in range(8): a(f"buffer_load_dwordx2 {vr(W+16*s+2*kk,2)}, v3, s[20:23], {'s39' if s else '0'} offen offset:{128*kk}")
    a("s_cmp_lt_u32 s18, 4", "s_cselect_b64 exec, -1, 0")
    for s in range(2): a(f"buffer_load_dwordx4 {vr(X+16+4*s,4)}, v4, s[24:27], s38 offen offset:{64*s}")
    a("s_mov_b64 exec, -1")
    a("s_barrier")
    a("s_mov_b32 s28, s16", "s_mov_b32 s29, s17", "s_mov_b32 s32, s16", "s_mov_b32 s33, s17")
    a("s_mov_b32 s44, 0x05040100", "s_mov_b32 s45, 0x07060302", f"s_mov_b32 s46, {NLOG2E:#x}", f"s_mov_b32 s47, {NLOG2E:#x}")
    a("s_waitcnt vmcnt(2)")
    st()
    for tau in range(4):
        for s in range(2):
            for rr in range(4):
                a(f"v_perm_b32 v{A+8*tau+4*s+rr}, v{W+16*s+2*(2*rr+1)+tau//2}, v{W+16*s+2*(2*rr)+tau//2}, s{44+tau%2}")
    for i in range(3):
        if i == 2:
            a(f"s_cmp_ge_u32 s18, 4", "s_cbranch_scc1 K1_PD", "s_waitcnt vmcnt(4)")
        for tau in range(4): a(mf16(D+4*tau, A+8*tau, X+8*i, "0"))
        for tau in range(4): a(mf16(D+4*tau, A+8*tau+4, X+8*i+4, D+4*tau))
        for k in range(0, 16, 2): a(f"v_pk_mul_f32 {vr(D+k,2)}, {vr(D+k,2)}, s[46:47]")
        for r in range(4):
            for h in range(2): a(f"v_cvt_pk_bf16_f32 v{O+2*r+h}, v{D+4*(2*h)+r}, v{D+4*(2*h+1)+r}")
        if "p" in opt.get("x1", ""): pass
        elif opt.get("pfull"): a("v_and_b32 v6, 63, v0", "v_lshlrev_b32 v6, 4, v6", f"buffer_store_dwordx4 {vr(O,4)}, v6, s[28:31], s{36+i} offen {opt.get('pflag', '')}", f"buffer_store_dwordx4 {vr(O+4,4)}, v6, s[28:31], s{36+i} offen offset:1024 {opt.get('pflag', '')}")
        else: a(f"buffer_store_dwordx4 {vr(O,4)}, v4, s[28:31], s{36+i} offen {opt.get('pflag', '')}", f"buffer_store_dwordx4 {vr(O+4,4)}, v4, s[28:31], s{36+i} offen offset:64 {opt.get('pflag', '')}")
    a.label("K1_PD")
    st()
    a("s_cmp_le_u32 s19, 24", "s_cbranch_scc1 K1_FS")
    a.label("K1_PE")
    if opt.get("cpf", 3) == 3:
        a("s_lshr_b32 s19, s2, 5", "s_add_u32 s19, s19, s3", "s_cmp_lg_u32 s19, 18", "s_cbranch_scc1 K1_NPF", "s_getpc_b64 s[48:49]")
        a.label("K1_PC")
        a("s_add_u32 s48, s48, mpnn_msg_kernel-K1_PC", "s_addc_u32 s49, s49, 0", "v_and_b32 v54, 63, v0", "v_lshlrev_b32 v54, 7, v54",
          "v_min_u32 v54, K2_END-mpnn_msg_kernel, v54", "global_load_dword v55, v54, s[48:49]")
        a.label("K1_NPF")
    co_addr()
    a("s_branch K1_B1")
    a.label("K1_FL")
    a("s_cmp_eq_u32 s19, 8", "s_cbranch_scc1 K1_FA", "s_cmp_gt_u32 s19, 8", "s_cbranch_scc1 K1_FU")
    a("s_lshr_b32 s42, s19, 1", "s_and_b32 s43, s19, 1", "s_lshl_b32 s42, s42, 5", "s_lshl_b32 s43, s43, 12", "s_add_u32 s43, s43, s42", "s_add_u32 s43, s43, 8192")
    for kk in range(8): a(f"buffer_load_ushort v{FR+kk}, v5, s[20:23], s43 offen offset:{128*kk}")
    a("s_branch K1_FLR")
    a.label("K1_FU")
    a("s_mov_b32 s48, s14", "s_mov_b32 s49, s15")
    a("s_sub_u32 s43, s19, 9", "s_lshr_b32 s42, s43, 2", "s_and_b32 s43, s43, 3", "s_lshl_b32 s42, s42, 5", "s_lshl_b32 s43, s43, 12", "s_add_u32 s43, s43, s42")
    for kk in range(8): a(f"buffer_load_ushort v{FR+kk}, v5, s[48:51], s43 offen offset:{128*kk}")
    a("s_branch K1_FLR")
    a.label("K1_FA")
    a("v_bfe_u32 v5, v0, 3, 2", "v_and_b32 v6, 3, v0", "v_lshl_add_u32 v5, v5, 2, v6", "v_lshlrev_b32 v5, 1, v5", "s_movk_i32 s43, 16384")
    for c in range(4): a(f"buffer_load_ushort v{FR+c}, v5, s[20:23], s43 offen offset:{32*c}")
    a("s_branch K1_FLR")
    a.label("K1_FS")
    a("v_and_b32 v5, 63, v0", "v_lshlrev_b32 v5, 4, v5", "s_lshl_b32 s36, s19, 10", f"s_add_u32 s36, s36, {WS_WF}")
    a("s_cmp_eq_u32 s19, 8", "s_cbranch_scc1 K1_AE")
    for rr in range(4): a(f"v_lshl_or_b32 v{W+rr}, v{FR+2*rr+1}, 16, v{FR+2*rr}")
    a(f"buffer_store_dwordx4 {vr(W,4)}, v5, s[32:35], s36 offen", "s_branch K1_PE")
    a.label("K1_AE")
    a("v_bfe_u32 v2, v0, 2, 1", "v_bfe_u32 v3, v0, 5, 1", "v_cmp_eq_u32 vcc, v2, v3")
    for c in range(4):
        a(f"v_lshlrev_b32 v{FR+c}, 16, v{FR+c}", f"v_mul_f32 v{FR+c}, s46, v{FR+c}", f"v_cvt_pk_bf16_f32 v{FR+c}, 0, v{FR+c}", f"v_cndmask_b32 v{W+c}, 0, v{FR+c}, vcc")
    a(f"buffer_store_dwordx4 {vr(W,4)}, v5, s[32:35], s36 offen", "s_branch K1_PE")
    return a.lines

L_AGB = 0; ASTR = 144
L_QS = L_AGB + 112 * ASTR; QSTR = 272
L_CTR = L_QS + 112 * QSTR; L_OVC = L_CTR + 448; L_FLG = L_CTR + 452; L_CT2 = L_CTR + 512; L_SLOT = L_CTR + 1024; L_OVL = L_SLOT + 512
L_XS = L_OVL + 1024; L_WF = L_XS + 14336
L_ELL = L_WF + 25600; ESTR = 516; EROWS = 83
K2_LDS = L_ELL + 3 * 768 * 16 + 6144
assert K2_LDS >= L_ELL + EROWS * ESTR and L_ELL % 16 == 0 and L_XS % 256 == 0 and L_CTR % 256 == 0 and L_ELL + 512 < (1 << 17), (L_XS, L_ELL)
ZCOL = 112 * 4; DUMP = L_ELL + CAP * ESTR + 400; HCOL = 116 * 4

def gen_k2(opt):
    a = Asm(); st = Stamps(a, opt.get("stamp"), 78, 1, 12)
    perm = opt.get("perm", [0, 1, 2, 3, 10, 6, 5, 4, 11, 9, 8, 7])
    RG = opt.get("ring", 2); small = opt.get("small", 1); dp = opt.get("dprio", [8, 4, 2])
    Q, P, Z0, Z1, NN, DD, EX, BE, AL, AH, AE, IX, VI, VE, LEN, AGA, MFL, OOF, ARD, ARX = \
        8, 24, 56, 72, 88, 104, 120, 136, 140, 144, 148, 152, 154, 155, 159, 160, 161, 162, 163, 164
    WU = BE
    R = Z0
    AD = NN
    TG = DD
    W2 = Q; X = P
    SP, PP5, EH, QC, AC = DD + 8, DD + 9, DD + 10, DD + 11, DD + 12
    SWS, SPT, SX, SO = 24, 28, 32, 36
    MK = 40
    BK = "s76"
    ws = f"s[{SWS}:{SWS+3}]"
    a.label("mpnn_msg_kernel")
    a("s_cmp_ge_u32 s2, 256", "s_cbranch_scc1 K2_END")
    st.early()
    a("s_load_dwordx2 s[20:21], s[0:1], 64", "s_load_dwordx16 s[4:19], s[0:1], 0")
    a("v_lshrrev_b32 v1, 6, v0", "v_lshlrev_b32 v2, 4, v0", "v_readfirstlane_b32 s3, v1")
    for i in range(4): a(f"v_mov_b32 v{Q+i}, 0")
    a(f"v_add_u32 v4, {L_ELL}, v2")
    a("v_and_b32 v5, 255, v0", "v_lshlrev_b32 v5, 2, v5", f"v_add_u32 v6, {L_ELL}, v5", f"v_cmp_gt_u32 vcc, {NB*4}, v5")
    a(f"s_and_b32 {BK}, s2, 7", f"s_lshl_b32 {BK}, {BK}, 5", "s_lshr_b32 s64, s2, 3", f"s_add_u32 {BK}, {BK}, s64")
    a("v_cndmask_b32 v6, 0, v6, vcc", f"ds_write_b32 v5, v6 offset:{L_CTR}")
    for i in range(3): a(f"ds_write_b128 v4, {vr(Q,4)} offset:{12288*i}")
    a(f"v_lshlrev_b32 v5, 3, v0", f"v_add_u32 v5, {L_ELL + 3*12288}, v5", f"ds_write_b64 v5, {vr(Q,2)}")
    a(f"s_lshl_b32 s64, {BK}, 14", f"s_lshl_b32 s62, {BK}, 15", f"s_add_u32 s62, s62, {WS_RB}", f"s_add_u32 s64, s64, {WS_RA - 4096}", "s_add_u32 s65, s64, 8192",
      f"s_lshl_b32 s66, {BK}, 13", f"s_and_b32 s67, {BK}, 16", "s_add_u32 s66, s66, s67", f"s_add_u32 s66, s66, {WS_DA}", "s_xor_b32 s60, s66, 16",
      "s_sub_u32 s66, s66, 2048", "s_add_u32 s67, s66, 4096")
    a(f"s_mul_i32 s69, {BK}, {NB}", f"s_sub_u32 s70, {N}, s69", f"s_min_u32 s70, s70, {NB}", "s_lshl_b32 s70, s70, 7", "s_lshl_b32 s71, s69, 7")
    a("s_and_b32 s72, s3, 3", "s_lshr_b32 s73, s3, 2")
    a(f"s_mov_b32 s{SWS+2}, {WS_END}", f"s_mov_b32 s{SWS+3}, 0x20000", f"s_mov_b32 s{SX+2}, s70", f"s_mov_b32 s{SX+3}, 0x20000")
    a(f"v_and_b32 v4, 3, v0", "v_and_b32 v6, 63, v0", "v_lshlrev_b32 v6, 4, v6")
    a("v_lshlrev_b32 v3, 5, v0", "v_lshrrev_b32 v5, 2, v0", "v_lshlrev_b32 v5, 5, v5", "v_lshl_add_u32 v5, v4, 2, v5")
    BS = opt.get("bs", 0); BP = opt.get("bp", "a")
    if BS: a("v_lshlrev_b32 v166, 3, v6", "s_andn2_b32 s77, s2, 7", "s_add_u32 s77, s77, s3", "s_sub_u32 s77, s77, 4", f"s_mul_i32 s77, s77, {BS*128}", "s_and_b32 s61, s2, 7", f"s_mul_i32 s61, s61, {(25000 - 256*BS)//7*128 if opt.get('xo', 1) else 0}", "s_add_u32 s77, s77, s61")
    def bulk(): a(f"s_mov_b64 exec, {(1 << BS) - 1 if BS < 64 else -1:#x}" if BS <= 32 else f"s_mov_b32 exec_hi, {(1 << (BS-32)) - 1:#x}", "buffer_load_dword v167, v166, s[24:27], s77 offen", "s_mov_b64 exec, -1")
    a("s_cmp_eq_u32 s73, 0")
    a("s_waitcnt lgkmcnt(0)")
    st()
    if opt.get("x1"): a("s_branch K2_FIN")
    a(f"s_mov_b32 s{SWS}, s20", f"s_mov_b32 s{SWS+1}, s21")
    a("s_cbranch_scc0 K2_A1")
    a(f"buffer_load_dwordx4 {vr(TG,4)}, v3, {ws}, s60 offen {opt.get('kflag', '')}")
    a(f"s_add_u32 s{SX}, s4, s71", f"s_addc_u32 s{SX+1}, s5, 0")
    a("v_bfe_u32 v7, v0, 4, 2", "v_lshlrev_b32 v7, 4, v7", "v_xor_b32 v7, v7, v6", "v_xor_b32 v5, 64, v7",
      "s_lshl_b32 s60, s3, 11", f"s_add_u32 s61, s60, {L_XS}", f"s_add_u32 m0, s60, {L_WF}", f"s_add_u32 s63, s60, {WS_WF}")
    a("s_barrier")
    sx = f"s[{SX}:{SX+3}]"
    a(f"buffer_load_dwordx4 v6, {ws}, s63 offen lds", f"buffer_load_dwordx4 v6, {ws}, s63 offen offset:1024 lds", "s_mov_b32 m0, s61", "v_lshlrev_b32 v3, 7, v0")
    a(f"buffer_load_dwordx4 v7, {sx}, s60 offen lds", f"buffer_load_dwordx4 v5, {sx}, s60 offen offset:1024 lds",
      "s_add_u32 m0, s61, 8192", "s_add_u32 s60, s60, 8192", "s_cmp_eq_u32 s3, 3", "s_cbranch_scc1 K2_A3",
      f"buffer_load_dwordx4 v7, {sx}, s60 offen lds", f"buffer_load_dwordx4 v5, {sx}, s60 offen offset:1024 lds")
    a("s_branch K2_A2")
    a.label("K2_A3")
    a(f"s_mov_b32 m0, {L_WF + 8192}", f"s_mov_b32 s60, {WS_WF + 8192}", f"buffer_load_dwordx4 v6, {ws}, s60 offen lds", "s_mov_b64 exec, 0", f"buffer_load_dwordx4 v6, {ws}, s60 offen lds", "s_mov_b64 exec, -1")
    a("s_branch K2_A2")
    a.label("K2_A1")
    a(f"buffer_load_dword v{TG}, v5, {ws}, s66 offen {opt.get('kflag', '')}", f"buffer_load_dword v{TG+1}, v5, {ws}, s67 offen {opt.get('kflag', '')}")
    a("s_barrier")
    a(f"buffer_load_dwordx4 {vr(R,4)}, v2, {ws}, s64 offen {opt.get('kflag', '')}", f"buffer_load_dwordx4 {vr(R+4,4)}, v2, {ws}, s65 offen {opt.get('kflag', '')}")
    if BS and BP == "a": bulk()
    a.label("K2_A2")
    a("s_lshl_b32 s74, s73, 11", f"s_add_u32 s75, s74, {3*2048}", f"s_add_u32 s22, s74, {6*2048}")
    srd(a, SPT, 20, 21, N, stride=128)
    a(f"s_add_u32 s{SO}, s16, s71", f"s_addc_u32 s{SO+1}, s17, 0", f"s_mov_b32 s{SO+2}, s70", f"s_mov_b32 s{SO+3}, 0x20000")
    T = Z1
    if small:
        a(f"v_and_b32 v{T}, 1, v0", f"v_lshlrev_b32 v{T}, 4, v{T}", f"v_mov_b32 v{T+1}, 0x3f80", f"v_lshlrev_b32 v{T}, v{T}, v{T+1}", "v_cmp_gt_u32 vcc, 2, v4",
          f"v_cndmask_b32 v{AL}, 0, v{T}, vcc", f"v_cndmask_b32 v{AL+1}, v{T}, 0, vcc")
    else:
        a(f"v_and_b32 v{T}, 1, v0", f"v_lshlrev_b32 v{T}, 4, v{T}", f"v_mov_b32 v{T+1}, 0x3f80", f"v_lshlrev_b32 v{T}, v{T}, v{T+1}",
          f"v_bfe_u32 v{T+1}, v0, 3, 2", f"v_bfe_u32 v{T+2}, v0, 1, 1", f"v_lshl_add_u32 v{T+1}, v{T+1}, 1, v{T+2}",
          f"v_bfe_u32 v{T+2}, v0, 2, 1", f"v_bfe_u32 v{T+3}, v0, 5, 1", f"v_xor_b32 v{T+2}, v{T+2}, v{T+3}", f"v_lshl_add_u32 v{T+1}, v{T+2}, 3, v{T+1}")
        for k in range(8): a(f"v_cmp_eq_u32 s[{MK+2*k}:{MK+2*k+1}], {k}, v{T+1}")
        for k in range(8): a(f"v_cndmask_b32 v{AL+k}, 0, v{T}, s[{MK+2*k}:{MK+2*k+1}]")
    J, QQ = T, T + 1
    a(f"v_and_b32 v{J}, 15, v0", f"v_bfe_u32 v{QQ}, v0, 4, 2", f"v_lshlrev_b32 v{OOF}, 7, v{J}",
      f"v_lshrrev_b32 v{ARX}, 1, v{J}", f"v_xor_b32 v{ARX}, v{ARX}, v{QQ}", f"v_lshl_add_u32 v{ARX}, v{ARX}, 4, v{OOF}",
      f"s_lshl_b32 s64, s72, 5", f"v_lshl_add_u32 v{OOF}, v{QQ}, 3, v{OOF}", f"v_add_u32 v{OOF}, s64, v{OOF}",
      f"s_mul_i32 s64, s73, {64*QSTR}", f"s_lshl_b32 s65, s72, 6", "s_add_u32 s64, s64, s65", f"s_add_u32 s64, s64, {L_QS - 64*QSTR}",
      f"v_mul_u32_u24 v1, {QSTR}, v{J}", f"v_lshl_add_u32 v1, v{QQ}, 4, v1", "v_add_u32 v1, s64, v1",
      f"s_lshl_b32 s64, s73, 13", f"s_add_u32 s64, s64, {L_XS - 8192}", f"v_add_u32 v2, s64, v{ARX}", "v_xor_b32 v7, 64, v2",
      f"s_lshl_b32 s64, s73, 4", f"v_add_u32 v{J}, s64, v{J}", f"v_mul_u32_u24 v{ARD}, {ASTR}, v{J}", f"v_lshl_add_u32 v{ARD}, v{QQ}, 4, v{ARD}",
      f"s_add_u32 s64, s74, {L_XS}", f"v_add_u32 v{ARX}, s64, v{ARX}")
    a(f"v_lshlrev_b32 v{IX+1}, 4, v4")
    a(f"v_mov_b32 v5, {ESTR}", f"s_movk_i32 s64, {NB*4}", f"s_mov_b32 s65, {DUMP}", "s_mov_b32 s68, 0", "s_mov_b32 s71, 0", "s_mov_b32 s70, 0")
    pk = sum(p << (4 * w) for w, p in enumerate(perm))
    a(f"s_mov_b32 s66, {pk & 0xffffffff:#x}", f"s_mov_b32 s67, {pk >> 32:#x}", "s_lshl_b32 s23, s3, 2", f"s_lshr_b64 s[66:67], s[66:67], s23",
      f"s_and_b32 s23, s66, 15", "s_lshl_b32 s23, s23, 4")
    a(f"v_bfe_u32 v{BE}, v0, 2, 4", f"v_add_u32 v{BE}, s23, v{BE}")
    a(f"v_and_b32 v{BE+2}, 1, v{BE}", f"v_cmp_gt_u32 vcc, 4, v{BE}", f"v_cmp_eq_u32 s[66:67], 0, v{BE+2}",
      f"v_lshlrev_b32 v{BE+1}, 1, v{BE}", f"v_and_b32 v{BE+1}, 0x1fc, v{BE+1}", f"v_subrev_u32 v{BE+1}, 8, v{BE+1}", f"v_lshlrev_b32 v{BE}, 2, v{BE}", f"v_add_u32 v{BE}, {(NB-4)*4}, v{BE}",
      f"s_or_b64 s[58:59], vcc, s[66:67]", f"s_andn2_b64 s[66:67], s[66:67], vcc",
      f"v_cndmask_b32 v{BE+1}, v{BE+1}, v{BE}, vcc",
      f"v_cndmask_b32 v{SP}, 1, 0, vcc", f"v_cndmask_b32 v{PP5}, v5, 0, s[58:59]", f"v_cndmask_b32 v{EH}, 0, 1, s[66:67]",
      f"v_cndmask_b32 v{MFL}, 0, 1.0, s[66:67]", f"v_mov_b32 v{BE+3}, {L_ELL + ZCOL}",
      f"v_lshlrev_b32 v{QC}, 6, v4", f"v_add_u32 v{QC}, {(L_QS - 68*L_ELL) & 0xffffffff:#x}, v{QC}", f"v_lshlrev_b32 v{AC}, 5, v4", f"v_add_u32 v{AC}, {(L_AGB - 36*L_ELL) & 0xffffffff:#x}, v{AC}")
    a(f"s_mov_b32 s66, {NLOG2E:#x}", f"s_mov_b32 s67, {NLOG2E:#x}")
    T = EX; IP = EX + 4
    for k in range(RG + 1): a(f"v_mov_b32 v{IP+2*k+1}, v{IX+1}")
    a("s_cmp_eq_u32 s73, 0", "s_cbranch_scc1 K2_CT")
    def a_round(ad, l, mk):
        for k in range(4): a(f"v_lshlrev_b32_sdwa v{ad+k}, 2, v{l} dst_sel:DWORD dst_unused:UNUSED_PAD src0_sel:DWORD src1_sel:BYTE_{k}")
        for k in range(4): a(f"v_cmp_gt_u32 s[{mk+2*k}:{mk+2*k+1}], s64, v{ad+k}")
        for k in range(4): a(f"s_mov_b64 exec, s[{mk+2*k}:{mk+2*k+1}]", f"ds_add_rtn_u32 v{ad+k}, v{ad+k}, v5 offset:{L_CTR}")
        a("s_mov_b64 exec, -1")
    stk = st.k
    ellpre = 0
    def ellw():
        for k in range(8):
            if k % 4 == 0: a(f"s_waitcnt vmcnt({1 - k//4 + (1 if BS else 0)})")
            if k == 4 and st.on == 1: a("s_memrealtime s[100:101]")
            a(f"v_min_u32 v{AD+k}, s65, v{AD+k}", f"ds_write_b32 v{AD+k}, v{R+k}")
    a(f"s_lshl_b32 s23, s72, 11", f"s_add_u32 s23, s23, {L_WF}", f"v_add_u32 v3, s23, v6", f"v_mov_b32 v{Z1+4}, 0")
    if BS and BP == "a2": bulk()
    a(f"s_waitcnt vmcnt({2 + (1 if BS and BP != 'b' else 0)})")
    st()
    if BS and BP == "b": bulk()
    a_round(AD, TG, MK); a_round(AD + 4, TG + 1, MK + 8)
    a("s_waitcnt lgkmcnt(0)")
    if ellpre: ellw()
    a("s_barrier")
    st()
    a.label("K2_AB1")
    T = Z1 + 4
    a(f"ds_read_b32 v{T+1}, v{T} offset:{L_OVC}")
    if not ellpre: ellw()
    a("s_waitcnt lgkmcnt(4)", f"v_readfirstlane_b32 s23, v{T+1}")
    a(f"ds_read_b128 {vr(W2,4)}, v3", f"ds_read_b128 {vr(W2+4,4)}, v3 offset:1024")
    for i in range(4): a(f"ds_read_b128 {vr(X+8*i,4)}, v2 offset:{2048*i}", f"ds_read_b128 {vr(X+8*i+4,4)}, v7 offset:{2048*i}")
    a("s_andn2_b32 s23, s23, s68", "s_cbranch_scc1 K2_RESCAN")
    QT = Z1; T = EX
    def gather(slot, ix):
        p = P + 8 * slot
        return [f"buffer_load_dwordx4 {vr(p,4)}, {vr(ix,2)}, s[{SPT}:{SPT+3}], 0 idxen offen",
                f"buffer_load_dwordx4 {vr(p+4,4)}, {vr(ix,2)}, s[{SPT}:{SPT+3}], 0 idxen offen offset:64"]
    stb = st.k
    for r in range(4): a(f"v_cmp_eq_u32 s[{MK+4+2*r}:{MK+5+2*r}], {r}, v4")
    a(f"v_add_u32 v7, {L_WF + 8192}, v6")
    if st.on == 1: a("s_memrealtime s[96:97]", "s_waitcnt lgkmcnt(0)", "s_mov_b32 s97, s100")
    a("s_waitcnt lgkmcnt(%d)" % (0 if st.on == 1 else 10), "s_barrier")
    st()
    a(f"ds_read_b32 v{T}, v{BE+1} offset:{L_SLOT}", f"ds_read_b128 {vr(AE,4)}, v7", "s_waitcnt lgkmcnt(2)")
    for i in range(4): a(mf16(QT+4*i, W2, X+8*i, "0"))
    for i in range(4): a(mf16(QT+4*i, W2+4, X+8*i+4, QT+4*i))
    def slotdec():
        a("s_waitcnt lgkmcnt(1)")
        a(f"v_lshrrev_b32 v{LEN}, 17, v{T}", f"v_add_u32 v{T+1}, v{LEN}, v{SP}", f"v_and_b32 v{T}, 0x1ffff, v{T}", f"v_lshrrev_b32 v{T+1}, 1, v{T+1}", f"v_mad_u32_u24 v{VI}, v{T+1}, v{PP5}, v{T}")
        a(f"ds_read_u16 v{IP}, v{VI}")
    slotdec()
    for i in range(4):
        a(f"v_pk_mul_f32 {vr(QT+4*i,2)}, {vr(QT+4*i,2)}, s[66:67]", f"v_pk_mul_f32 {vr(QT+4*i+2,2)}, {vr(QT+4*i+2,2)}, s[66:67]")
        if i == 3: a(f"s_waitcnt lgkmcnt(3)", *gather(0, IP), "s_cmp_eq_u32 s73, 2", "s_cbranch_scc1 K2_NQ2")
        a(f"ds_write_b128 v1, {vr(QT+4*i,4)} offset:{16*QSTR*i}")
    a("s_branch K2_NQ2")
    a.label("K2_CT")
    st.k = stk
    C0, C1, H0, H1, T0, T1, HH, PS, L4, B0, B1_, LOB, HIB, HA, FOUR = [Q + i for i in range(15)]
    a(f"v_mov_b32 v{Z1+4}, {MARK:#x}", "s_lshl_b32 s60, s3, 12", f"s_add_u32 m0, s60, {L_WF + 9*1024}", f"s_add_u32 s60, s60, {WS_WF + 9*1024}")
    a(f"v_lshlrev_b32 v{L4}, 2, v0", f"v_add_u32 v{B0}, {L_ELL}, v{L4}", f"v_add_u32 v{B1_}, {L_ELL + 256}, v{L4}",
      f"v_mov_b32 v{LOB}, {(CAP-63)*ESTR}", f"v_mov_b32 v{HIB}, {CAP*ESTR}", f"v_mul_u32_u24 v{HA}, {ESTR}, v0", f"v_sub_u32 v{HA}, {L_ELL + HCOL + CAP*ESTR}, v{HA}", f"v_mov_b32 v{FOUR}, 4",
      f"s_mov_b32 s61, {L_ELL + HCOL}")
    AD2 = P + 8; AD3 = P + 24
    for k in range(16): a(f"v_mov_b32 v{AD+k}, -1")
    a("s_waitcnt vmcnt(6)")
    st()
    for j in range(4): a(f"v_cmp_ne_u32 s[{MK+2*j}:{MK+2*j+1}], -1, v{TG+j}")
    a(f"v_cmp_eq_u32 vcc, v{Z1+4}, v{TG}")
    for j in range(4): a(f"s_mov_b64 exec, s[{MK+2*j}:{MK+2*j+1}]", f"buffer_load_dwordx4 {vr(R+4*j,4)}, v3, {ws}, s62 offen offset:{16*j} {opt.get('kflag', '')}")
    a("s_mov_b64 exec, -1")
    for j in range(4):
        a(f"s_cmp_eq_u64 s[{MK+2*j}:{MK+2*j+1}], 0", f"s_cbranch_scc1 K2_TS{j}")
        if j == 3: a("s_waitcnt lgkmcnt(8)")
        for k in range(4): a(f"v_lshlrev_b32_sdwa v{AD2+4*j+k}, 2, v{TG+j} dst_sel:DWORD dst_unused:UNUSED_PAD src0_sel:DWORD src1_sel:BYTE_{k}")
        for k in range(4): a(f"v_cmp_gt_u32 s[{MK+8+2*k}:{MK+9+2*k}], s64, v{AD2+4*j+k}")
        for k in range(4): a(f"s_mov_b64 exec, s[{MK+8+2*k}:{MK+9+2*k}]", f"ds_add_rtn_u32 v{AD+4*j+k}, v{AD2+4*j+k}, v5 offset:{L_CT2}")
        a("s_mov_b64 exec, -1", f"s_bitset1_b32 s70, {j}")
        a.label(f"K2_TS{j}")
    if opt.get("nowu"): a("s_mov_b64 exec, 0")
    for k in range(4): a(f"buffer_load_dwordx4 v6, {ws}, s60 offen offset:{1024*k} lds")
    if opt.get("nowu"): a("s_mov_b64 exec, -1")
    a("s_cbranch_vccnz K2_MARK")
    a.label("K2_MR")
    a("s_waitcnt vmcnt(8) lgkmcnt(0)", "s_barrier")
    st()
    a.label("K2_AB1T")
    a(f"v_and_b32 v{T0}, 0xfc, v{L4}", f"ds_read2st64_b32 {vr(C0,2)}, v{T0} offset0:{L_CTR//256} offset1:{L_CTR//256+1}", f"ds_read2st64_b32 {vr(H0,2)}, v{T0} offset0:{L_CTR//256+2} offset1:{L_CTR//256+3}", "s_setprio 3", "s_mov_b32 s56, -1", "s_mov_b32 s57, 3")
    a("s_waitcnt lgkmcnt(0)", f"v_readlane_b32 s23, v{C1}, 48", f"v_sub_u32 v{C0}, v{C0}, v{B0}", f"v_sub_u32 v{C1}, v{C1}, v{B1_}", f"v_add_u32 v{C0}, v{C0}, v{H0}", f"v_add_u32 v{C1}, v{C1}, v{H1}",
      "s_andn2_b32 s23, s23, s68", "s_cbranch_scc1 K2_RESCAN", "s_cmp_lg_u32 s3, 0", "s_cbranch_scc1 K2_TW")
    for c, h, t in ((C0, H0, T0), (C1, H1, T1)):
        if c == C1: a("s_mov_b64 exec, s[56:57]")
        a(f"v_med3_u32 v{h}, v{c}, v{LOB}, v{HIB}", f"v_add_u32 v{t}, s61, v{h}", f"ds_add_rtn_u32 v{t}, v{t}, v{FOUR}")
    a(f"v_cmp_gt_u32 s[{MK}:{MK+1}], v{C1}, v{HIB}", "s_mov_b64 exec, -1", f"ds_read_b32 v{HH}, v{HA}", f"v_cmp_gt_u32 vcc, v{C0}, v{HIB}")
    for c, h, b in ((C0, H0, B0), (C1, H1, B1_)):
        a(f"v_min_u32 v{c}, v{c}, v{HIB}", f"v_lshrrev_b32 v{c}, 2, v{c}", f"v_mul_u32_u24 v{c}, 509, v{c}", f"v_lshrrev_b32 v{c}, 16, v{c}",
          f"v_max_u32 v{h}, {CAP-63}, v{c}", f"v_sub_u32 v{h}, {CAP}, v{h}", f"v_lshlrev_b32 v{h}, 2, v{h}", f"v_lshl_or_b32 v{c}, v{c}, 17, v{b}")
    a(f"s_or_b64 vcc, vcc, s[{MK}:{MK+1}]", "s_waitcnt lgkmcnt(0)")
    a(f"v_add_u32_dpp v{PS}, v{HH}, v{HH} row_shr:1 row_mask:0xf bank_mask:0xf bound_ctrl:0")
    for k in (2, 4, 8): a(f"v_add_u32_dpp v{PS}, v{PS}, v{PS} row_shr:{k} row_mask:0xf bank_mask:0xf bound_ctrl:0")
    a(f"v_add_u32_dpp v{PS}, v{PS}, v{PS} row_bcast:15 row_mask:0xa bank_mask:0xf", f"v_add_u32_dpp v{PS}, v{PS}, v{PS} row_bcast:31 row_mask:0xc bank_mask:0xf")
    a(f"v_sub_u32 v{PS}, v{PS}, v{HH}", f"ds_bpermute_b32 v{H0}, v{H0}, v{PS}", f"ds_bpermute_b32 v{H1}, v{H1}, v{PS}")
    a(f"v_mov_b32 v{HH}, 0", "s_waitcnt lgkmcnt(1)", f"v_add_u32 v{H0}, v{H0}, v{T0}", f"ds_write_b32 v{H0}, v{C0} offset:{L_SLOT}",
      "s_waitcnt lgkmcnt(1)", "s_mov_b64 exec, s[56:57]", f"v_add_u32 v{H1}, v{H1}, v{T1}", f"ds_write_b32 v{H1}, v{C1} offset:{L_SLOT}", "s_mov_b64 exec, -1")
    a("s_cbranch_vccz K2_TW", f"ds_write_b32 v{HH}, v5 offset:{L_FLG}")
    a.label("K2_TW")
    a.label("K2_CWR")
    for r in range(4): a(f"v_cmp_eq_u32 s[{MK+4+2*r}:{MK+5+2*r}], {r}, v4")
    T = EX
    a(f"v_add_u32 v7, {L_WF + 8192}, v6")
    if st.on == 1: a("s_waitcnt lgkmcnt(0)", "s_memrealtime s[96:97]")
    a("s_waitcnt lgkmcnt(0)", "s_barrier")
    st()
    a(f"ds_read_b32 v{T}, v{BE+1} offset:{L_SLOT}", f"ds_read_b128 {vr(AE,4)}, v7")
    slotdec()
    a(f"s_waitcnt lgkmcnt(0)", *gather(0, IP))
    for j in range(4):
        a(f"s_bitcmp0_b32 s70, {j}", f"s_cbranch_scc1 K2_TR{j}")
        for k in range(4): a(f"ds_read_b32 v{AD3+k}, v{AD2+4*j+k} offset:{L_CTR}")
        for k in range(4): a(f"s_waitcnt lgkmcnt({3-k})", f"v_add_u32 v{AD+4*j+k}, v{AD+4*j+k}, v{AD3+k} clamp", f"v_min_u32 v{AD+4*j+k}, s65, v{AD+4*j+k}")
        a.label(f"K2_TR{j}")
    a("s_waitcnt vmcnt(6)")
    if st.on == 1: a("s_memrealtime s[100:101]", "s_waitcnt lgkmcnt(0)", "s_mov_b32 s97, s100")
    for j in range(4):
        a(f"s_bitcmp0_b32 s70, {j}", f"s_cbranch_scc1 K2_TW{j}")
        if j == 3: a("s_waitcnt lgkmcnt(4)")
        for k in range(4): a(f"ds_write_b32 v{AD+4*j+k}, v{R+4*j+k}")
        a.label(f"K2_TW{j}")
    a.label("K2_NQ2")
    def rde(t): return [f"ds_read_b32 v{BE+r}, v{VE+r} offset:{t*ESTR}" for r in range(4)]
    a(f"v_mov_b32 v{T+1}, 68", f"v_mad_u32_u24 v{T+2}, v{T}, v{T+1}, v{QC}")
    for r in range(4): a(f"v_cndmask_b32 v{VE+r}, v{BE+3}, v{VI}, s[{MK+4+2*r}:{MK+5+2*r}]")
    for i in range(16): a(f"v_mov_b32 v{NN+i}, 0")
    a("s_waitcnt vmcnt(2) lgkmcnt(0)", "s_barrier")
    a(f"ds_read_u16 v{T+3}, v{VI}")
    for k in range(1, RG + 1): a(f"ds_read_u16 v{IP+2*k}, v{VI} offset:{k*ESTR}")
    for k in range(4): a(f"ds_read_b128 {vr(Q+4*k,4)}, v{T+2} offset:{16*k}")
    a(*rde(0), f"ds_read_u16 v{IX}, v{VI} offset:{(RG+1)*ESTR}")
    a(f"s_waitcnt lgkmcnt({RG + 8})", f"v_cmp_ne_u32 vcc, v{T+3}, v{IP}", "s_cbranch_vccnz K2_G0R")
    a.label("K2_G0D")
    a(*gather(1, IP + 2))
    a(f"v_add_u32 v{LEN}, v{LEN}, v{EH}", f"v_lshrrev_b32 v{LEN}, v{SP}, v{LEN}", f"v_mad_u32_u24 v{AGA}, v{T}, 36, v{AC}")
    a(f"v_max_u32_dpp v{T+1}, v{LEN}, v{LEN} row_shr:4 row_mask:0xf bank_mask:0xf bound_ctrl:0")
    for i in range(8): a(f"v_mov_b32 v{DD+i}, 1.0")
    a(f"v_max_u32_dpp v{T+1}, v{T+1}, v{T+1} row_shr:8 row_mask:0xf bank_mask:0xf bound_ctrl:0")
    for i in range(8, 16): a(f"v_mov_b32 v{DD+i}, 1.0")
    a(f"v_readlane_b32 s69, v{T+1}, 15", f"v_readlane_b32 s70, v{T+1}, 31", f"v_readlane_b32 s64, v{T+1}, 47", f"v_readlane_b32 s65, v{T+1}, 63",
      "s_max_u32 s69, s69, s70", "s_max_u32 s64, s64, s65", "s_max_u32 s69, s69, s64", "s_mov_b32 s70, 0")
    a(f"s_lshl_b32 s23, s72, 12", f"s_add_u32 s23, s23, 1024", "v_add_u32 v7, s23, v7")
    a("s_cmp_eq_u32 s69, 0", "s_cbranch_scc1 K2_DONE0")
    a(f"s_waitcnt vmcnt(2) lgkmcnt(0)")
    st()
    if st.on == 1: a("s_memtime s[98:99]", "s_waitcnt lgkmcnt(0)")
    for k in range(2, RG): a(*gather(k, IP + 2*k))
    def sm(z, b, c): return f"v_mfma_f32_4x4x4_16b_bf16 {vr(z,4)}, {vr(AL,2)}, {vr(b,2)}, {vr(c,4)}"
    if small: a(*[sm(Z0+4*i, P+2*i, Q+4*i) for i in range(4)], mf32(Z0, AE, BE, Z0))
    else: a(mf32(Z0, AE, BE, Q), mf32(Z0, AL, P, Z0), mf32(Z0, AH, P + 4, Z0))
    a(*gather(0, IP + 2*RG), *rde(1), "s_nop 3")
    U = max(2, RG)
    a(f"s_branch K2_PRI{U-1}")
    a(".p2align 6")
    for u in range(U):
        a.label(f"K2_L{u}")
        zc = (Z0, Z1)[u % 2]; zn = (Z1, Z0)[u % 2]; p = P + 8 * ((u + 1) % RG)
        ex = [f"v_exp_f32 v{EX+i}, v{zc+i}" for i in range(16)]
        a(f"s_waitcnt vmcnt({2*RG-2}) lgkmcnt(0)")
        if small:
            s4 = [sm(zn+4*i, p+2*i, Q+4*i) for i in range(4)]
            a(s4[0], ex[0], s4[1], ex[1], s4[2], ex[2], s4[3], *ex[3:8], mf32(zn, AE, BE, zn), *ex[8:16])
        else: a(mf32(zn, AE, BE, Q), *ex[0:4], mf32(zn, AL, p, zn), *ex[4:8], mf32(zn, AH, p + 4, zn), *ex[8:16])
        a(*gather((u + 1) % RG, IX), *rde(u + 2), f"ds_read_u16 v{IX}, v{VI} offset:{(u+RG+2)*ESTR}")
        a(f"v_cmpx_lt_u32 vcc, s70, v{LEN}")
        for i in range(0, 16, 2): a(f"v_pk_fma_f32 {vr(NN+i,2)}, {vr(NN+i,2)}, {vr(EX+i,2)}, {vr(NN+i,2)}")
        for i in range(0, 16, 2): a(f"v_pk_fma_f32 {vr(NN+i,2)}, {vr(zc+i,2)}, {vr(DD+i,2)}, {vr(NN+i,2)}")
        for i in range(0, 16, 2): a(f"v_pk_fma_f32 {vr(DD+i,2)}, {vr(DD+i,2)}, {vr(EX+i,2)}, {vr(DD+i,2)}")
        a("s_mov_b64 exec, -1", "s_add_u32 s70, s70, 1", "s_cmp_ge_u32 s70, s64")
        if u < U - 1: a(f"s_cbranch_scc1 K2_PRI{u}")
        else:
            for rg in [VI] + [VE + r for r in range(4)]: a(f"v_add_u32 v{rg}, {U*ESTR}, v{rg}")
            a("s_cbranch_scc0 K2_L0")
    for u in list(range(U - 1, -1, -1)):
        a.label(f"K2_PRI{u}")
        nx = f"K2_L{(u+1)%U}"
        a("s_sub_u32 s65, s69, s70")
        for lv, th in zip((3, 2, 1), dp):
            a(f"s_setprio {lv}", f"s_sub_u32 s64, s69, {th}", f"s_cmp_gt_u32 s65, {th}", f"s_cbranch_scc1 {nx}")
        a("s_setprio 0", "s_mov_b32 s64, s69", "s_cmp_lg_u32 s65, 0", f"s_cbranch_scc1 {nx}")
        if u: a("s_branch K2_DONE")
    a.label("K2_DONE")
    st()
    if st.on == 1: a("s_memtime s[100:101]", "s_waitcnt lgkmcnt(0)", "s_sub_u32 s98, s100, s98")
    XF = Z0; ACC = Q
    a(f"v_xor_b32 v3, 64, v{ARX}")
    for i in range(16): a(f"v_rcp_f32 v{EX+i}, v{DD+i}")
    a("s_waitcnt lgkmcnt(0)")
    for k in range(4): a(f"ds_read_b128 {vr(WU+4*k,4)}, v7 offset:{1024*k}")
    for i in range(3): a(f"ds_read_b128 {vr(XF+8*i,4)}, v{ARX} offset:{6144*i}", f"ds_read_b128 {vr(XF+8*i+4,4)}, v3 offset:{6144*i}")
    a(f"s_mov_b32 s66, {NLN2:#x}", f"s_mov_b32 s67, {NLN2:#x}", f"s_mov_b32 s64, {f2u(2.0**120):#x}")
    for i in range(0, 16, 2): a(f"v_pk_mul_f32 {vr(NN+i,2)}, {vr(NN+i,2)}, s[66:67]")
    a(f"v_max3_f32 v2, v{DD}, v{DD+1}, v{DD+2}")
    for i in range(3, 15, 2): a(f"v_max3_f32 v2, v{DD+i}, v{DD+i+1}, v2")
    a(f"v_max_f32 v2, v{DD+15}, v2")
    for i in range(0, 16, 2): a(f"v_pk_mul_f32 {vr(NN+i,2)}, {vr(NN+i,2)}, {vr(EX+i,2)}")
    a(f"v_pk_mul_f32 {vr(DD,2)}, {vr(NN,2)}, 0")
    for i in range(2, 16, 2): a(f"v_pk_fma_f32 {vr(DD,2)}, {vr(NN+i,2)}, 0, {vr(DD,2)}")
    for i in range(16): a(f"v_fmac_f32_dpp v{NN+i}, v{NN+i}, v{MFL} row_shl:4 row_mask:0xf bank_mask:0xf bound_ctrl:0")
    a(f"v_cmp_u_f32 vcc, v{DD}, v{DD+1}", f"v_cmp_nlt_f32 s[{MK+2}:{MK+3}], v2, s64", f"s_or_b64 vcc, vcc, s[{MK+2}:{MK+3}]")
    for i in range(8): a(f"v_cvt_pk_bf16_f32 v{EX+i}, v{NN+2*i}, v{NN+2*i+1}")
    a("s_waitcnt lgkmcnt(0)", f"s_mov_b64 exec, s[58:59]", f"ds_write_b128 v{AGA}, {vr(EX,4)} offset:{L_AGB}", f"ds_write_b128 v{AGA}, {vr(EX+4,4)} offset:{L_AGB+16}")
    a("s_mov_b64 exec, vcc", "v_mov_b32 v2, 0", f"ds_write_b32 v2, v5 offset:{L_FLG}", "s_mov_b64 exec, -1")
    a(f"s_mov_b32 s66, {NLOG2E:#x}", f"s_mov_b32 s67, {NLOG2E:#x}", "v_mov_b32 v2, 0")
    for i in range(3): a(mf16(ACC+4*i, WU, XF+8*i, "0"))
    for i in range(3): a(mf16(ACC+4*i, WU+4, XF+8*i+4, ACC+4*i))
    a("s_waitcnt lgkmcnt(0)", "s_barrier")
    st()
    a.label("K2_EPI")
    B = Z0; O = EX; TT = NN; WU2 = WU + 8
    a(f"ds_read_b32 v3, v2 offset:{L_FLG}")
    for i in range(3):
        for s in range(2): a(f"ds_read_b128 {vr(B+8*i+4*s,4)}, v{ARD} offset:{L_AGB + 48*ASTR*i + 64*s}")
    a("s_waitcnt lgkmcnt(6)", "v_readfirstlane_b32 s23, v3", "s_andn2_b32 s23, s23, s71", "s_cbranch_scc1 K2_BF")
    def epi_tile(i):
        o = O + 4 * i; t = TT + 4 * i
        a(f"v_pk_mul_f32 {vr(t,2)}, {vr(o,2)}, s[66:67]", f"v_pk_mul_f32 {vr(t+2,2)}, {vr(o+2,2)}, s[66:67]")
        for k in range(4): a(f"v_exp_f32 v{t+k}, v{t+k}")
        a(f"v_pk_add_f32 {vr(t,2)}, {vr(t,2)}, 1.0 op_sel_hi:[1,0]", f"v_pk_add_f32 {vr(t+2,2)}, {vr(t+2,2)}, 1.0 op_sel_hi:[1,0]")
        for k in range(4): a(f"v_rcp_f32 v{t+k}, v{t+k}")
        a(f"v_pk_mul_f32 {vr(t,2)}, {vr(t,2)}, {vr(o,2)}", f"v_pk_mul_f32 {vr(t+2,2)}, {vr(t+2,2)}, {vr(o+2,2)}")
        a(f"v_cvt_pk_bf16_f32 v{o}, v{t}, v{t+1}", f"v_cvt_pk_bf16_f32 v{o+1}, v{t+2}, v{t+3}")
        a(f"buffer_store_dwordx2 {vr(o,2)}, v{OOF}, s[{SO}:{SO+3}], {('s74','s75','s22')[i]} offen")
    for i in range(3):
        a(f"s_waitcnt lgkmcnt({4-2*i})", mf16(O+4*i, WU2, B+8*i, ACC+4*i), mf16(O+4*i, WU2+4, B+8*i+4, O+4*i))
    epi_tile(0); epi_tile(1)
    a("s_cmp_lg_u32 s73, 0", "s_cbranch_scc1 K2_FIN")
    epi_tile(2)
    a.label("K2_FIN")
    if st.on: a("s_waitcnt vmcnt(0)")
    if opt.get("diag"):
        kind, M = opt["diag"]
        a("s_cmp_lg_u32 s3, 0", "s_cbranch_scc1 K2_END", "s_memrealtime s[40:41]", "s_lshl_b32 s42, s2, 10", f"s_add_u32 s42, s42, {WS_STAMP}", "s_add_u32 s44, s20, s42", "s_addc_u32 s45, s21, 0",
          "v_mov_b32 v2, 0", "global_load_dwordx4 v[8:11], v2, s[44:45]", "global_load_dwordx4 v[12:15], v2, s[44:45] offset:16", "s_waitcnt vmcnt(0) lgkmcnt(0)",
          "v_readfirstlane_b32 s46, v8", "v_readfirstlane_b32 s47, v13", "v_readfirstlane_b32 s48, v9", "v_readfirstlane_b32 s49, v10", "s_nop 4")
        a({"k1": "s_sub_u32 s46, s47, s46", "k12": "s_sub_u32 s46, s78, s46", "k2": "s_sub_u32 s46, s40, s78", "tot": "s_sub_u32 s46, s40, s46", "dst": "s_sub_u32 s46, s48, s46", "src": "s_sub_u32 s46, s49, s46",
           "kb3": "s_sub_u32 s46, s92, s80", "xcc": "s_getreg_b32 s46, hwreg(HW_REG_XCC_ID)\ns_xor_b32 s46, s46, s2\ns_and_b32 s46, s46, 7", "ent": "s_sub_u32 s46, s80, s78"}.get(kind, "s_cmp_lg_u32 s2, 5\ns_cbranch_scc1 K2_END"))
        if kind.startswith("g"):
            a(f"s_add_u32 s44, s20, {WS_STAMP}", "s_addc_u32 s45, s21, 0", "v_lshlrev_b32 v2, 6, v0", "v_mov_b32 v16, 0", "v_mov_b32 v17, -1", "v_mov_b32 v18, -1", "v_mov_b32 v19, 0", "s_mov_b32 s47, 0")
            a.label("K2_DL")
            a("global_load_dword v8, v2, s[44:45]", f"global_load_dword v9, v2, s[44:45] offset:{opt.get('dk', 5)*4}", "v_add_u32 v2, 4096, v2", "s_waitcnt vmcnt(0)", "v_sub_u32 v8, s78, v8", "v_sub_u32 v9, s78, v9",
              "v_max_u32 v16, v16, v8", "v_min_u32 v17, v17, v8", "v_min_u32 v18, v18, v9", "v_max_u32 v19, v19, v9", "s_add_u32 s47, s47, 1", "s_cmp_lt_u32 s47, 63", "s_cbranch_scc1 K2_DL")
            a("s_mov_b32 s47, 0", "s_mov_b32 s50, 0", "s_mov_b32 s51, -1", "s_mov_b32 s52, -1", "s_mov_b32 s53, 0")
            a.label("K2_DM")
            a("v_readlane_b32 s54, v16, s47", "v_readlane_b32 s55, v17, s47", "v_readlane_b32 s56, v18, s47", "v_readlane_b32 s57, v19, s47", "s_max_u32 s50, s50, s54", "s_min_u32 s51, s51, s55", "s_min_u32 s52, s52, s56", "s_max_u32 s53, s53, s57",
              "s_add_u32 s47, s47, 1", "s_cmp_lt_u32 s47, 64", "s_cbranch_scc1 K2_DM")
            a({"gskew": "s_sub_u32 s46, s50, s51", "gk1": "s_sub_u32 s46, s50, s52", "ggap": "s_mov_b32 s46, s52", "g0": "s_mov_b32 s46, 0", "gfirst": "s_sub_u32 s46, s50, s53"}[kind])
            a("s_memrealtime s[40:41]", "s_waitcnt lgkmcnt(0)")
        a("s_min_u32 s46, s46, 4000", f"s_mul_i32 s46, s46, {M}")
        a.label("K2_DG")
        a("s_sleep 2", "s_memrealtime s[42:43]", "s_waitcnt lgkmcnt(0)", "s_sub_u32 s42, s42, s40", "s_cmp_lt_u32 s42, s46", "s_cbranch_scc1 K2_DG")
    else: st.flush(20, 3, 2, 3)
    a.label("K2_END")
    a("s_endpgm")

    a.label("K2_G0R")
    a(f"v_mov_b32 v{IP}, v{EX+3}", *gather(0, IP), "s_branch K2_G0D")
    a.label("K2_DONE0")
    a("s_waitcnt vmcnt(0) lgkmcnt(0)", "s_branch K2_DONE")
    a.label("K2_MARK")
    T = Z1
    a("s_mov_b64 exec, vcc", f"v_mov_b32 v{T}, 0", f"v_mov_b32 v{T+1}, 1", f"ds_add_rtn_u32 v{T}, v{T}, v{T+1} offset:{L_OVC}", "s_waitcnt lgkmcnt(0)",
      f"v_and_b32 v{T}, 255, v{T}", f"v_lshlrev_b32 v{T}, 2, v{T}", f"ds_write_b32 v{T}, v0 offset:{L_OVL}", "s_mov_b64 exec, -1", "s_branch K2_MR")

    SD, SS, SE = 40, 44, 48
    a.label("K2_RESCAN")
    srd(a, SD, 10, 11, E * 4); srd(a, SS, 8, 9, E * 4); srd(a, SE, 6, 7, E * 2)
    a("s_mov_b32 s52, 0", f"s_mul_i32 s53, {BK}, {NB}", "s_min_u32 s23, s23, 256", "s_waitcnt lgkmcnt(0)")
    a.label("K2_RS1")
    T = Z1 + 8
    a("s_lshl_b32 s54, s52, 2", f"v_mov_b32 v{T}, s54", f"ds_read_b32 v{T}, v{T} offset:{L_OVL}", "s_waitcnt lgkmcnt(0)", f"v_readfirstlane_b32 s54, v{T}",
      "s_and_b32 s55, s54, 31", "s_lshl_b32 s55, s55, 3", "s_lshr_b32 s54, s54, 5", "s_add_u32 s54, s54, s55",
      f"s_mul_i32 s54, s54, {CH}", f"s_sub_u32 s55, {E}, s54", f"s_min_u32 s55, s55, {CH}",
      f"v_mov_b32 v{T}, v0")
    a.label("K2_RS2")
    a(f"v_add_u32 v{T+1}, s54, v{T}", f"v_lshlrev_b32 v{T+2}, 1, v{T+1}", f"v_lshlrev_b32 v{T+1}, 2, v{T+1}",
      f"buffer_load_dword v{T+3}, v{T+1}, s[{SD}:{SD+3}], 0 offen", f"buffer_load_dword v{T+4}, v{T+1}, s[{SS}:{SS+3}], 0 offen",
      f"buffer_load_ushort v{T+5}, v{T+2}, s[{SE}:{SE+3}], 0 offen", "s_waitcnt vmcnt(0)",
      f"v_subrev_u32 v{T+3}, s53, v{T+3}", f"v_cmp_gt_u32 vcc, {NB}, v{T+3}", f"v_cmp_gt_u32 s[56:57], s55, v{T}", "s_and_b64 exec, vcc, s[56:57]",
      f"v_lshlrev_b32 v{T+3}, 2, v{T+3}", f"ds_add_rtn_u32 v{T+3}, v{T+3}, v5 offset:{L_CTR}", f"v_lshl_or_b32 v{T+4}, v{T+5}, 16, v{T+4}",
      "s_waitcnt lgkmcnt(0)", f"v_min_u32 v{T+3}, s65, v{T+3}", f"ds_write_b32 v{T+3}, v{T+4}", "s_mov_b64 exec, -1",
      f"v_add_u32 v{T}, 768, v{T}", f"v_cmp_gt_u32 vcc, s55, v{T}", "s_cbranch_vccnz K2_RS2")
    a("s_add_u32 s52, s52, 1", "s_cmp_lt_u32 s52, s23", "s_cbranch_scc1 K2_RS1")
    a("s_mov_b32 s68, -1", "s_waitcnt lgkmcnt(0)", "s_barrier", "s_cmp_eq_u32 s73, 0", "s_cbranch_scc1 K2_AB1T", "s_branch K2_AB1")

    a.label("K2_BF")
    T = Z0
    a("s_waitcnt vmcnt(0) lgkmcnt(0)")
    srd(a, SD, 10, 11, E * 4); srd(a, SS, 8, 9, E * 4); srd(a, SE, 6, 7, E * 2); srd(a, 52, 12, 13, 129 * 128)
    for i in range(4): a(f"v_mov_b32 v{T+i}, 0")
    a(f"v_lshlrev_b32 v{T+4}, 4, v0", f"v_add_u32 v{T+4}, {L_ELL}, v{T+4}")
    for i in range(3): a(f"ds_write_b128 v{T+4}, {vr(T,4)} offset:{12288*i}")
    LN, F4, F2, PO, W3 = T + 4, T + 5, T + 6, T + 7, T + 8
    a(f"v_and_b32 v{LN}, 63, v0", f"v_lshlrev_b32 v{F4}, 2, v{LN}", f"v_lshlrev_b32 v{F2}, 1, v{LN}",
      f"v_and_b32 v{PO}, 8, v{LN}", f"v_lshlrev_b32 v{PO}, 3, v{PO}", f"v_and_b32 v{T}, 48, v{LN}", f"v_add_u32 v{PO}, v{PO}, v{T}",
      f"v_and_b32 v{T}, 7, v{LN}", f"v_lshl_add_u32 v{PO}, v{T}, 1, v{PO}",
      "s_movk_i32 s56, 16384", f"buffer_load_ushort v{W3}, v{F2}, s[52:55], s56 offen", "s_waitcnt vmcnt(0) lgkmcnt(0)",
      f"v_lshlrev_b32 v{W3}, 16, v{W3}", f"v_mul_f32 v{W3}, s66, v{W3}",
      f"s_mul_i32 s57, {BK}, {NB}", "s_mov_b32 s56, s3", "s_barrier")
    a.label("K2_BF1")
    DV, SV, EV = T + 9, T + 10, T + 11
    a("s_lshl_b32 s58, s56, 8", "s_lshl_b32 s59, s56, 7",
      f"buffer_load_dword v{DV}, v{F4}, s[{SD}:{SD+3}], s58 offen", "s_waitcnt vmcnt(0)",
      f"v_subrev_u32 v{DV}, s57, v{DV}", f"v_cmp_gt_u32 vcc, {NB}, v{DV}", "s_cbranch_vccz K2_BF3",
      f"buffer_load_dword v{SV}, v{F4}, s[{SS}:{SS+3}], s58 offen", f"buffer_load_ushort v{EV}, v{F2}, s[{SE}:{SE+3}], s59 offen",
      "s_mov_b64 s[60:61], vcc", "s_waitcnt vmcnt(0)")
    a.label("K2_BF2")
    a("s_ff1_i32_b64 s58, s[60:61]", "s_bitset0_b64 s[60:61], s58",
      f"v_readlane_b32 s59, v{SV}, s58", f"v_readlane_b32 s62, v{DV}, s58", f"v_readlane_b32 s63, v{EV}, s58",
      "s_min_u32 s59, s59, %d" % (N - 1), "s_lshl_b32 s59, s59, 7", f"buffer_load_ushort v{T}, v{PO}, s[{SWS}:{SWS+3}], s59 offen",
      f"s_mul_i32 s58, s62, {QSTR}", f"v_add_u32 v{T+1}, s58, v{F4}", f"ds_read_b32 v{T+1}, v{T+1} offset:{L_QS}",
      "s_lshl_b32 s63, s63, 16", "s_lshl_b32 s62, s62, 8", f"s_add_u32 s62, s62, {L_ELL}", f"v_add_u32 v{T+2}, s62, v{F4}",
      "s_waitcnt vmcnt(0) lgkmcnt(0)",
      f"v_lshlrev_b32 v{T}, 16, v{T}", f"v_add_f32 v{T}, v{T}, v{T+1}", f"v_fma_f32 v{T}, s63, v{W3}, v{T}",
      f"v_exp_f32 v{T+1}, v{T}", f"v_add_f32 v{T+1}, 1.0, v{T+1}", f"v_rcp_f32 v{T+1}, v{T+1}", f"v_mul_f32 v{T}, {NLN2:#x}, v{T}", f"v_mul_f32 v{T}, v{T}, v{T+1}",
      f"ds_add_f32 v{T+2}, v{T}", "s_cmp_lg_u64 s[60:61], 0", "s_cbranch_scc1 K2_BF2")
    a.label("K2_BF3")
    a("s_add_u32 s56, s56, 12", f"s_cmp_lt_u32 s56, {E//64}", "s_cbranch_scc1 K2_BF1")
    a("s_waitcnt lgkmcnt(0)", "s_barrier", f"v_mov_b32 v{T+4}, v0")
    a.label("K2_BF4")
    a(f"v_lshlrev_b32 v{T+5}, 3, v{T+4}", f"v_add_u32 v{T+5}, {L_ELL}, v{T+5}", f"ds_read_b64 {vr(T,2)}, v{T+5}",
      f"v_lshrrev_b32 v{T+5}, 5, v{T+4}", f"v_mul_u32_u24 v{T+5}, {ASTR}, v{T+5}", f"v_and_b32 v{T+6}, 31, v{T+4}", f"v_lshl_add_u32 v{T+5}, v{T+6}, 2, v{T+5}",
      "s_waitcnt lgkmcnt(0)", f"v_cvt_pk_bf16_f32 v{T}, v{T}, v{T+1}", f"ds_write_b32 v{T+5}, v{T} offset:{L_AGB}",
      f"v_add_u32 v{T+4}, 768, v{T+4}", f"v_cmpx_gt_u32 vcc, {NB*32}, v{T+4}", "s_cbranch_execnz K2_BF4")
    a("s_mov_b64 exec, -1", "s_mov_b32 s71, -1", "s_waitcnt lgkmcnt(0)", "s_barrier", "s_branch K2_EPI")
    return a.lines

def kd(name, vg, sg=102):
    return f""".amdhsa_kernel {name}
  .amdhsa_next_free_vgpr {vg}
  .amdhsa_next_free_sgpr {sg}
  .amdhsa_accum_offset {vg}
  .amdhsa_group_segment_fixed_size 0
  .amdhsa_kernarg_size 72
  .amdhsa_user_sgpr_count 2
  .amdhsa_user_sgpr_kernarg_segment_ptr 1
  .amdhsa_system_sgpr_workgroup_id_x 1
.end_amdhsa_kernel"""

def build(opt=None):
    opt = opt or {}
    out = ["; mpnn edge MLP: K1 bins edges by destination bucket and builds the P' table, K2 aggregates and updates",
           f"; @launch kernel=mpnn_bin_kernel grid=(256,1,1) block=(1024,1,1) lds={K1_LDS}",
           f"; @launch kernel=mpnn_msg_kernel grid=(256,1,1) block=(768,1,1) lds={K2_LDS}",
           '.amdgcn_target "amdgcn-amd-amdhsa--gfx950"', ".text"]
    for name, fn in (("mpnn_bin_kernel", gen_k1), ("mpnn_msg_kernel", gen_k2)):
        lines, nn = fix_hazards(fn(opt), verbose=opt.get("verbose"))
        out += [f".globl {name}", ".p2align 8", f".type {name},@function"] + lines
    out += ['.section .rodata,"a"', ".p2align 6", kd("mpnn_bin_kernel", 128), ".p2align 6", kd("mpnn_msg_kernel", 168)]
    return "\n".join(out) + "\n"

if __name__ == "__main__":
    import argparse
    ap = argparse.ArgumentParser(); ap.add_argument("-o", default="standalone__mpnn_edge_mlp__graph.s")
    ap.add_argument("--stamp", type=int, default=0); ap.add_argument("-v", action="store_true"); ap.add_argument("--opt", default="{}")
    g = ap.parse_args()
    open(g.o, "w").write(build({"stamp": g.stamp, "verbose": g.v, **eval(g.opt)}))
```

```python
import sys, struct, math
sys.path.insert(0, "gen")
from asmlib import *

N = 25000; E = 800000; NB = 98; CH = 3128; CAP = 72
WS_RA = 0x400000; WS_DA = 0x800000; WS_RB = 0xA00000; WS_WF = 0x380000; WS_END = WS_RB + 0x800000
MARK = 0xFEFEFEFE
WS_PR = 0x2000000; WS_HDR = WS_WF + 0x8000
WS_STAMP = 0x1400000
f2u = lambda f: struct.unpack("<I", struct.pack("<f", f))[0]
NLOG2E = f2u(-1.4426950408889634); NLN2 = f2u(-0.6931471805599453)
NTILE = (N + 15) // 16

def mf16(d, a, b, c): return f"v_mfma_f32_16x16x32_bf16 {vr(d,4)}, {vr(a,4)}, {vr(b,4)}, {c if isinstance(c,str) else vr(c,4)}"
def mf32(d, a, b, c): return f"v_mfma_f32_32x32x16_bf16 {vr(d,16)}, {vr(a,4)}, {vr(b,4)}, {vr(c,16)}"

class Stamps:
    def __init__(self, a, on, base, kidx, nw): self.a = a; self.on = on; self.base = base; self.k = 0; self.kidx = kidx; self.nw = nw
    def __call__(self):
        if not self.on: return
        r = self.base + 2 * self.k; self.k += 1
        if self.on == 3 and (self.k - 1) not in ((0, 5), (0, 1, 7, 8))[self.kidx]: return
        self.a(f"s_waitcnt lgkmcnt(0)", f"s_memrealtime s[{r}:{r+1}]", "s_waitcnt lgkmcnt(0)")
    def early(self):
        if not self.on: return
        r = self.base + 2 * self.k; self.k += 1
        self.a(f"s_memrealtime s[{r}:{r+1}]")
    def flush(self, ws, wave, t0, t1):
        if not self.on: return
        a = self.a
        self()
        a("s_mov_b64 exec, -1")
        a(f"v_mov_b32 v{t0}, 0")
        for k in range(self.k): a(f"v_writelane_b32 v{t0}, s{self.base+2*k}, {k}")
        if self.kidx == 1: a(f"v_writelane_b32 v{t0}, s98, 13", f"v_writelane_b32 v{t0}, s96, 12", f"v_writelane_b32 v{t0}, s97, 11", f"v_writelane_b32 v{t0}, s69, 15", f"s_getreg_b32 s69, hwreg(HW_REG_HW_ID)", f"v_writelane_b32 v{t0}, s69, 14")
        if self.on == 2 and self.kidx == 1:
            b = self.base
            a(f"s_add_u32 s{b}, s2, s{wave}", f"s_cmp_lg_u32 s{b}, 0", f"s_cbranch_scc1 STK{self.kidx}",
              f"s_load_dwordx2 s[{b}:{b+1}], s[0:1], 56", f"v_and_b32 v{t1}, 63, v0", f"v_lshlrev_b32 v{t1}, 2, v{t1}",
              f"v_add_u32 v{t1+1}, {WS_STAMP}, v{t1}", f"global_load_dword v{t1+1}, v{t1+1}, s[{ws}:{ws+1}]",
              "s_waitcnt vmcnt(0) lgkmcnt(0)", f"s_mov_b64 exec, 0x3ff", f"global_store_dword v{t1}, v{t0}, s[{b}:{b+1}] offset:24",
              f"s_mov_b64 exec, 0x3f", f"global_store_dword v{t1}, v{t1+1}, s[{b}:{b+1}]")
            a.label(f"STK{self.kidx}")
            return
        a(f"s_mul_i32 s{self.base}, s2, {self.nw}", f"s_add_u32 s{self.base}, s{self.base}, s{wave}", f"s_lshl_b32 s{self.base}, s{self.base}, 6",
          f"s_add_u32 s{self.base}, s{self.base}, {WS_STAMP + self.kidx * 0x100000}",
          f"v_and_b32 v{t1}, 63, v0", f"v_lshlrev_b32 v{t1}, 2, v{t1}", f"v_add_u32 v{t1}, s{self.base}, v{t1}",
          "s_mov_b64 exec, 0xffff", f"global_store_dword v{t1}, v{t0}, s[{ws}:{ws+1}]")

def srd(a, r, lo, hi, num, stride=0):
    a(f"s_mov_b32 s{r}, s{lo}")
    if stride: a(f"s_or_b32 s{r+1}, s{hi}, {stride << 16:#x}")
    else: a(f"s_mov_b32 s{r+1}, s{hi}")
    a(f"s_mov_b32 s{r+2}, {num}", f"s_mov_b32 s{r+3}, 0x20000")

K1_DA = 32768; K1_CNT = 40960; K1_LDS = K1_CNT + 1024
def gen_k1(opt):
    a = Asm(); st = Stamps(a, opt.get("stamp"), 70, 0, 16)
    a.label("mpnn_bin_kernel")
    if opt.get("cpf") == 2:
        a("s_getpc_b64 s[48:49]", "v_lshlrev_b32 v54, 7, v0", "v_min_u32 v54, K2_END-mpnn_bin_kernel-4, v54", "global_load_dword v55, v54, s[48:49]")
    a("s_cmp_ge_u32 s2, 256", "s_cbranch_scc1 K1_END")
    if opt.get("dly"):
        a("s_memrealtime s[4:5]", "s_waitcnt lgkmcnt(0)")
        a.label("K1_DL")
        a("s_sleep 1", "s_memrealtime s[6:7]", "s_waitcnt lgkmcnt(0)", "s_sub_u32 s6, s6, s4", f"s_cmp_lt_u32 s6, {opt['dly']}", "s_cbranch_scc1 K1_DL")
    a("s_load_dwordx8 s[4:11], s[0:1], 0", "s_load_dwordx4 s[12:15], s[0:1], 32", "s_load_dwordx2 s[16:17], s[0:1], 64")
    a("v_lshrrev_b32 v1, 6, v0", "v_lshlrev_b32 v7, 4, v0", "v_readfirstlane_b32 s3, v1", "v_lshlrev_b32 v4, 3, v0")
    a("v_mov_b32 v46, -1", "v_mov_b32 v47, -1", f"ds_write_b64 v4, v[46:47] offset:{K1_DA}",
      "v_and_b32 v45, 255, v0", "v_lshlrev_b32 v44, 2, v45", "v_lshlrev_b32 v45, 5, v45", f"ds_write_b32 v44, v45 offset:{K1_CNT}")
    a("s_and_b32 s40, s2, 7", "s_lshr_b32 s41, s2, 3")
    a(f"s_mov_b32 s34, {WS_END}", "s_mov_b32 s35, 0x20000")
    CO = 44
    def co_addr():
        a("s_lshl_b32 s42, s40, 5", "s_add_u32 s42, s42, s41",
          "s_lshl_b32 s43, s42, 5", f"s_add_u32 s43, s43, {WS_DA}", "s_lshl_b32 s44, s42, 7", "s_lshl_b32 s42, s42, 6", f"s_add_u32 s44, s44, {WS_RB}", f"s_add_u32 s42, s42, {WS_RA}")
        a(f"v_lshrrev_b32 v{CO+6}, 2, v0", f"v_and_b32 v{CO+5}, 3, v0", f"v_lshlrev_b32 v{CO+1}, 13, v{CO+6}", f"v_lshl_add_u32 v{CO+1}, v{CO+5}, 3, v{CO+1}", f"v_lshlrev_b32 v{CO}, 1, v{CO+1}", f"v_lshl_add_u32 v{CO+8}, v{CO+6}, 14, v{CO}",
          f"v_lshlrev_b32 v{CO+2}, 7, v{CO+6}", f"v_lshl_add_u32 v{CO+2}, v{CO+5}, 4, v{CO+2}", f"v_and_b32 v{CO+3}, 64, v0", f"v_add_u32 v{CO+2}, v{CO+2}, v{CO+3}", f"v_xor_b32 v{CO+3}, 64, v{CO+2}",
          f"v_bfe_u32 v{CO+4}, v0, 4, 2", f"v_xor_b32 v{CO+5}, v{CO+5}, v{CO+4}", f"v_lshlrev_b32 v{CO+6}, 5, v{CO+6}", f"v_lshl_add_u32 v{CO+5}, v{CO+5}, 2, v{CO+6}", f"v_add_u32 v{CO+5}, 16, v{CO+5}",
          *([f"v_add_u32 v{CO+5}, 16, v{CO+6}"] if opt.get("bfull", 1) else []), f"v_add_u32 v{CO+6}, 32, v{CO+6}", f"v_and_b32 v{CO+4}, 0x3fc, v0", f"v_lshlrev_b32 v{CO+7}, 3, v0")
    a("s_cmp_ge_u32 s3, 13", "s_cbranch_scc1 K1_P")
    DST, SRC, EE, B, DL, S, LIM, REC = 8, 12, 16, 20, 24, 28, 32, 36
    a(f"s_mul_i32 s18, s2, {CH}", f"s_sub_u32 s19, {E}, s18", f"s_min_u32 s19, s19, {CH}", "s_lshl_b32 s36, s18, 2", "s_lshl_b32 s37, s18, 1")
    for r, n in ((20, E * 4), (24, E * 4), (28, E * 2)): a(f"s_mov_b32 s{r+2}, {n}", f"s_mov_b32 s{r+3}, 0x20000")
    a("v_lshlrev_b32 v1, 2, v0", "v_cmp_gt_u32 vcc, s19, v1")
    if opt.get("cpf") == 1:
        a("s_cmp_lg_u32 s3, 12", "s_cbranch_scc1 K1_NPF", "s_getpc_b64 s[48:49]")
        a.label("K1_PC")
        a("s_add_u32 s48, s48, mpnn_msg_kernel-K1_PC", "s_addc_u32 s49, s49, 0", "v_and_b32 v54, 63, v0", "v_lshlrev_b32 v54, 7, v54",
          "v_min_u32 v54, K2_END-mpnn_msg_kernel, v54", "global_load_dword v55, v54, s[48:49]")
        a.label("K1_NPF")
    a("s_waitcnt lgkmcnt(0)")
    st()
    a("s_mov_b32 s20, s10", "s_mov_b32 s21, s11", f"buffer_load_dwordx4 {vr(DST,4)}, v7, s[20:23], s36 offen {opt.get('lflag', '')}")
    a("s_mov_b32 s24, s8", "s_mov_b32 s25, s9", "s_mov_b32 s28, s6", "s_mov_b32 s29, s7", "s_mov_b32 s32, s16", "s_mov_b32 s33, s17")
    a("s_barrier")
    a(f"buffer_load_dwordx4 {vr(SRC,4)}, v7, s[24:27], s36 offen {opt.get('lflag', '')}", f"buffer_load_dwordx2 {vr(EE,2)}, v4, s[28:31], s37 offen {opt.get('lflag', '')}")
    co_addr()
    if opt.get("tlb"):
        a("s_cmp_lg_u32 s3, 12", "s_cbranch_scc1 K1_NT", "v_and_b32 v54, 63, v0", f"v_mul_u32_u24 v54, {opt['tlb']}, v54", "buffer_load_dword v55, v54, s[32:35], 0 offen", "s_waitcnt vmcnt(1)")
        a.label("K1_NT")
    a("v_mov_b32 v6, 1", "s_movk_i32 s38, -98", "s_mov_b32 s39, 0xffff0000")
    a("s_mov_b64 exec, vcc", "s_cbranch_execz K1_B1")
    a("s_waitcnt vmcnt(2)")
    st()
    for i in range(4):
        a(f"v_mul_u32_u24 v{B+i}, 21400, v{DST+i}", f"v_lshrrev_b32 v{B+i}, 21, v{B+i}", f"v_lshlrev_b32 v{S+i}, 2, v{B+i}",
          f"ds_add_rtn_u32 v{S+i}, v{S+i}, v6 offset:{K1_CNT}")
    for i in range(4): a(f"v_mad_i32_i24 v{DL+i}, v{B+i}, s38, v{DST+i}", f"v_lshl_or_b32 v{LIM+i}, v{B+i}, 5, 31", f"v_and_b32 v{B+i}, 31, v{B+i}")
    for i in range(4):
        a(f"s_waitcnt lgkmcnt(3)", f"v_min_u32 v{S+i}, v{S+i}, v{LIM+i}", f"v_xor_b32 v{S+i}, v{S+i}, v{B+i}", f"ds_write_b8 v{S+i}, v{DL+i} offset:{K1_DA}")
    for i in range(4): a(f"v_lshlrev_b32 v{LIM+i}, 2, v{S+i}")
    a("s_waitcnt vmcnt(0)")
    st()
    if opt.get("smask"):
        for i in range(4): a(f"v_and_b32 v{SRC+i}, {opt['smask']}, v{SRC+i}")
    for i in range(4):
        if i % 2 == 0: a(f"v_lshl_or_b32 v{REC+i}, v{EE+i//2}, 16, v{SRC+i}")
        else: a(f"v_and_or_b32 v{REC+i}, v{EE+i//2}, s39, v{SRC+i}")
        a(f"ds_write_b32 v{LIM+i}, v{REC+i}")
    a.label("K1_B1")
    a("s_mov_b64 exec, -1")
    st.k = 3; st()
    a("s_waitcnt lgkmcnt(0)", "s_barrier")
    st()
    a(f"ds_read_b128 v[8:11], v{CO+2}", f"ds_read_b32 v18, v{CO+4} offset:{K1_CNT}", f"ds_read_b64 v[16:17], v{CO+7} offset:{K1_DA}", f"ds_read_b128 v[12:15], v{CO+3}")
    a("s_waitcnt lgkmcnt(3)", f"buffer_store_dwordx4 v[8:11], v{CO}, s[32:35], s42 offen {opt.get('dflag', '')}")
    a("s_waitcnt lgkmcnt(1)", f"v_cmp_gt_u32 vcc, v18, v{CO+6}", f"v_cmp_gt_u32 s[46:47], v18, v{CO+5}", "s_cbranch_vccnz K1_OV")
    a.label("K1_OVR")
    x = opt.get("x1", "")
    if "d" not in x: a(f"buffer_store_dwordx2 v[16:17], v{CO+1}, s[32:35], s43 offen {opt.get('dflag', '')}")
    if "b" not in x: a("s_mov_b64 exec, s[46:47]", "s_waitcnt lgkmcnt(0)", f"buffer_store_dwordx4 v[12:15], v{CO+8}, s[32:35], s44 offen", *([] if opt.get("bhalf", 1) else [f"buffer_store_dwordx4 v[8:11], v{CO+8}, s[32:35], s44 offen offset:64"]))
    if st.on or opt.get("kw"): a("s_waitcnt vmcnt(0)")
    st.flush(16, 3, 20, 21)
    if opt.get("kp"):
        a("s_mov_b64 exec, -1", f"s_mul_i32 s45, s41, {782*128}", "v_lshlrev_b32 v60, 7, v0", f"v_cmp_gt_u32 vcc, {opt['kp']}, v0", "s_and_b64 exec, exec, vcc", "s_cbranch_execz K1_END", "buffer_load_dword v61, v60, s[32:35], s45 offen")
    a.label("K1_END")
    a("s_endpgm")
    a.label("K1_OV")
    a(f"v_mov_b32 v18, {MARK:#x}", "v_cndmask_b32 v16, v16, v18, vcc", "v_cndmask_b32 v17, v17, v18, vcc", "s_branch K1_OVR")
    W, A, X, D, O, FR = 8, 40, 72, 96, 112, 120
    a.label("K1_P")
    a("v_and_b32 v1, 15, v0", "v_bfe_u32 v2, v0, 4, 2",
      "v_lshlrev_b32 v3, 10, v2", "v_lshl_add_u32 v5, v1, 1, v3", "v_lshl_add_u32 v3, v1, 3, v3",
      "v_lshlrev_b32 v4, 7, v1", "v_lshl_add_u32 v4, v2, 4, v4")
    a("s_mul_i32 s18, s41, 3", "s_add_u32 s18, s18, s3", "s_sub_u32 s18, s18, 13",
      "s_mul_i32 s36, s40, 196", "s_add_u32 s36, s36, s18",
      "s_lshl_b32 s36, s36, 11", f"s_add_u32 s37, s36, {96*2048}", f"s_add_u32 s38, s36, {192*2048}", "s_movk_i32 s39, 4096")
    for r, n in ((20, 129 * 128), (24, N * 128), (28, N * 128), (48, 128 * 128)): a(f"s_mov_b32 s{r+2}, {n}", f"s_mov_b32 s{r+3}, 0x20000")
    a("s_sub_u32 s19, s2, 16", "s_cmp_eq_u32 s3, 15", "s_cselect_b32 s19, s19, 100")
    a("s_waitcnt lgkmcnt(0)")
    st.k = 0; st()
    a("s_mov_b32 s24, s4", "s_mov_b32 s25, s5", "s_mov_b32 s20, s12", "s_mov_b32 s21, s13")
    a("s_cmp_le_u32 s19, 24", "s_cbranch_scc1 K1_FL")
    a.label("K1_FLR")
    for i in range(2):
        for s in range(2): a(f"buffer_load_dwordx4 {vr(X+8*i+4*s,4)}, v4, s[24:27], s{36+i} offen offset:{64*s} {opt.get('xflag', '')}")
    for s in range(2):
        for kk in range(8): a(f"buffer_load_dwordx2 {vr(W+16*s+2*kk,2)}, v3, s[20:23], {'s39' if s else '0'} offen offset:{128*kk}")
    a("s_cmp_lt_u32 s18, 4", "s_cselect_b64 exec, -1, 0")
    for s in range(2): a(f"buffer_load_dwordx4 {vr(X+16+4*s,4)}, v4, s[24:27], s38 offen offset:{64*s}")
    a("s_mov_b64 exec, -1")
    a("s_barrier")
    if opt.get("rot"):
        a(*(["s_memrealtime s[52:53]", "s_waitcnt lgkmcnt(0)", "s_lshr_b32 s52, s52, 12"] if opt.get("trot") else ["s_lshr_b32 s52, s0, 4"]), "s_mul_i32 s52, s52, 0x9e3779b1", f"s_lshr_b32 s52, s52, {32 - opt['rot']}", "s_lshl_b32 s52, s52, 22", f"s_add_u32 s53, s52, {WS_PR}",
          "s_add_u32 s28, s16, s53", "s_addc_u32 s29, s17, 0", "s_mov_b32 s32, s16", "s_mov_b32 s33, s17")
    else: a("s_mov_b32 s28, s16", "s_mov_b32 s29, s17", "s_mov_b32 s32, s16", "s_mov_b32 s33, s17")
    a("s_mov_b32 s44, 0x05040100", "s_mov_b32 s45, 0x07060302", f"s_mov_b32 s46, {NLOG2E:#x}", f"s_mov_b32 s47, {NLOG2E:#x}")
    a("s_waitcnt vmcnt(2)")
    st()
    for tau in range(4):
        for s in range(2):
            for rr in range(4):
                a(f"v_perm_b32 v{A+8*tau+4*s+rr}, v{W+16*s+2*(2*rr+1)+tau//2}, v{W+16*s+2*(2*rr)+tau//2}, s{44+tau%2}")
    for i in range(3):
        if i == 2:
            a(f"s_cmp_ge_u32 s18, 4", "s_cbranch_scc1 K1_PD", "s_waitcnt vmcnt(4)")
        for tau in range(4): a(mf16(D+4*tau, A+8*tau, X+8*i, "0"))
        for tau in range(4): a(mf16(D+4*tau, A+8*tau+4, X+8*i+4, D+4*tau))
        for k in range(0, 16, 2): a(f"v_pk_mul_f32 {vr(D+k,2)}, {vr(D+k,2)}, s[46:47]")
        for r in range(4):
            for h in range(2): a(f"v_cvt_pk_bf16_f32 v{O+2*r+h}, v{D+4*(2*h)+r}, v{D+4*(2*h+1)+r}")
        if "p" in opt.get("x1", ""): pass
        elif opt.get("pfull"): a("v_and_b32 v6, 63, v0", "v_lshlrev_b32 v6, 4, v6", f"buffer_store_dwordx4 {vr(O,4)}, v6, s[28:31], s{36+i} offen {opt.get('pflag', '')}", f"buffer_store_dwordx4 {vr(O+4,4)}, v6, s[28:31], s{36+i} offen offset:1024 {opt.get('pflag', '')}")
        else: a(f"buffer_store_dwordx4 {vr(O,4)}, v4, s[28:31], s{36+i} offen {opt.get('pflag', '')}", f"buffer_store_dwordx4 {vr(O+4,4)}, v4, s[28:31], s{36+i} offen offset:64 {opt.get('pflag', '')}")
    a.label("K1_PD")
    st()
    a("s_cmp_le_u32 s19, 24", "s_cbranch_scc1 K1_FS")
    a.label("K1_PE")
    if opt.get("cpf", 3) == 3:
        a("s_lshr_b32 s19, s2, 5", "s_add_u32 s19, s19, s3", "s_cmp_lg_u32 s19, 18", "s_cbranch_scc1 K1_NPF", "s_getpc_b64 s[48:49]")
        a.label("K1_PC")
        a("s_add_u32 s48, s48, mpnn_msg_kernel-K1_PC", "s_addc_u32 s49, s49, 0", "v_and_b32 v54, 63, v0", "v_lshlrev_b32 v54, 7, v54",
          "v_min_u32 v54, K2_END-mpnn_msg_kernel, v54", "global_load_dword v55, v54, s[48:49]")
        a.label("K1_NPF")
    if opt.get("wb"):
        msk, slp = opt["wb"]
        a(f"s_and_b32 s19, s41, {msk}", "s_add_u32 s19, s19, s3", f"s_cmp_lg_u32 s19, {msk + 15}", "s_cbranch_scc1 K1_NWB", "s_waitcnt vmcnt(0)", *([f"s_sleep {slp}"] if slp else []), "buffer_wbl2 sc1")
        a.label("K1_NWB")
    co_addr()
    a("s_branch K1_B1")
    a.label("K1_FL")
    a("s_cmp_eq_u32 s19, 8", "s_cbranch_scc1 K1_FA", "s_cmp_gt_u32 s19, 8", "s_cbranch_scc1 K1_FU")
    a("s_lshr_b32 s42, s19, 1", "s_and_b32 s43, s19, 1", "s_lshl_b32 s42, s42, 5", "s_lshl_b32 s43, s43, 12", "s_add_u32 s43, s43, s42", "s_add_u32 s43, s43, 8192")
    for kk in range(8): a(f"buffer_load_ushort v{FR+kk}, v5, s[20:23], s43 offen offset:{128*kk}")
    a("s_branch K1_FLR")
    a.label("K1_FU")
    a("s_mov_b32 s48, s14", "s_mov_b32 s49, s15")
    a("s_sub_u32 s43, s19, 9", "s_lshr_b32 s42, s43, 2", "s_and_b32 s43, s43, 3", "s_lshl_b32 s42, s42, 5", "s_lshl_b32 s43, s43, 12", "s_add_u32 s43, s43, s42")
    for kk in range(8): a(f"buffer_load_ushort v{FR+kk}, v5, s[48:51], s43 offen offset:{128*kk}")
    a("s_branch K1_FLR")
    a.label("K1_FA")
    a("v_bfe_u32 v5, v0, 3, 2", "v_and_b32 v6, 3, v0", "v_lshl_add_u32 v5, v5, 2, v6", "v_lshlrev_b32 v5, 1, v5", "s_movk_i32 s43, 16384")
    for c in range(4): a(f"buffer_load_ushort v{FR+c}, v5, s[20:23], s43 offen offset:{32*c}")
    a("s_branch K1_FLR")
    a.label("K1_FS")
    a("v_and_b32 v5, 63, v0", "v_lshlrev_b32 v5, 4, v5", "s_lshl_b32 s36, s19, 10", f"s_add_u32 s36, s36, {WS_WF}")
    a("s_cmp_eq_u32 s19, 8", "s_cbranch_scc1 K1_AE")
    for rr in range(4): a(f"v_lshl_or_b32 v{W+rr}, v{FR+2*rr+1}, 16, v{FR+2*rr}")
    a(f"buffer_store_dwordx4 {vr(W,4)}, v5, s[32:35], s36 offen", "s_branch K1_PE")
    a.label("K1_AE")
    if opt.get("rot"): a("v_mov_b32 v2, s52", f"s_mov_b32 s53, {WS_HDR}", "buffer_store_dword v2, v5, s[32:35], s53 offen")
    a("v_bfe_u32 v2, v0, 2, 1", "v_bfe_u32 v3, v0, 5, 1", "v_cmp_eq_u32 vcc, v2, v3")
    for c in range(4):
        a(f"v_lshlrev_b32 v{FR+c}, 16, v{FR+c}", f"v_mul_f32 v{FR+c}, s46, v{FR+c}", f"v_cvt_pk_bf16_f32 v{FR+c}, 0, v{FR+c}", f"v_cndmask_b32 v{W+c}, 0, v{FR+c}, vcc")
    a(f"buffer_store_dwordx4 {vr(W,4)}, v5, s[32:35], s36 offen", "s_branch K1_PE")
    return a.lines

L_AGB = 0; ASTR = 144
L_QS = L_AGB + 112 * ASTR; QSTR = 272
L_CTR = L_QS + 112 * QSTR; L_OVC = L_CTR + 448; L_FLG = L_CTR + 452; L_CT2 = L_CTR + 512; L_SLOT = L_CTR + 1024; L_OVL = L_SLOT + 512
L_XS = L_OVL + 1024; L_WF = L_XS + 14336
L_ELL = L_WF + 25600; ESTR = 516; EROWS = 83
K2_LDS = L_ELL + 3 * 768 * 16 + 6144
assert K2_LDS >= L_ELL + EROWS * ESTR and L_ELL % 16 == 0 and L_XS % 256 == 0 and L_CTR % 256 == 0 and L_ELL + 512 < (1 << 17), (L_XS, L_ELL)
ZCOL = 112 * 4; DUMP = L_ELL + CAP * ESTR + 400; HCOL = 116 * 4

def gen_k2(opt):
    a = Asm(); st = Stamps(a, opt.get("stamp"), 78, 1, 12)
    perm = opt.get("perm", [0, 1, 2, 3, 10, 6, 5, 4, 11, 9, 8, 7])
    RG = opt.get("ring", 2); small = opt.get("small", 1); dp = opt.get("dprio", [8, 4, 2])
    Q, P, Z0, Z1, NN, DD, EX, BE, AL, AH, AE, IX, VI, VE, LEN, AGA, MFL, OOF, ARD, ARX = \
        8, 24, 56, 72, 88, 104, 120, 136, 140, 144, 148, 152, 154, 155, 159, 160, 161, 162, 163, 164
    WU = BE
    R = Z0
    AD = NN
    TG = DD
    W2 = Q; X = P
    SP, PP5, EH, QC, AC = DD + 8, DD + 9, DD + 10, DD + 11, DD + 12
    SWS, SPT, SX, SO = 24, 28, 32, 36
    MK = 40
    BK = "s76"
    ws = f"s[{SWS}:{SWS+3}]"
    a.label("mpnn_msg_kernel")
    a("s_cmp_ge_u32 s2, 256", "s_cbranch_scc1 K2_END")
    st.early()
    a("s_load_dwordx2 s[20:21], s[0:1], 64", "s_load_dwordx16 s[4:19], s[0:1], 0")
    a("v_lshrrev_b32 v1, 6, v0", "v_lshlrev_b32 v2, 4, v0", "v_readfirstlane_b32 s3, v1")
    for i in range(4): a(f"v_mov_b32 v{Q+i}, 0")
    a(f"v_add_u32 v4, {L_ELL}, v2")
    a("v_and_b32 v5, 255, v0", "v_lshlrev_b32 v5, 2, v5", f"v_add_u32 v6, {L_ELL}, v5", f"v_cmp_gt_u32 vcc, {NB*4}, v5")
    a(f"s_and_b32 {BK}, s2, 7", f"s_lshl_b32 {BK}, {BK}, 5", "s_lshr_b32 s64, s2, 3", f"s_add_u32 {BK}, {BK}, s64")
    a("v_cndmask_b32 v6, 0, v6, vcc", f"ds_write_b32 v5, v6 offset:{L_CTR}")
    for i in range(3): a(f"ds_write_b128 v4, {vr(Q,4)} offset:{12288*i}")
    a(f"v_lshlrev_b32 v5, 3, v0", f"v_add_u32 v5, {L_ELL + 3*12288}, v5", f"ds_write_b64 v5, {vr(Q,2)}")
    a(f"s_lshl_b32 s64, {BK}, 14", f"s_lshl_b32 s62, {BK}, 15", f"s_add_u32 s62, s62, {WS_RB}", f"s_add_u32 s64, s64, {WS_RA - 4096}", "s_add_u32 s65, s64, 8192",
      f"s_lshl_b32 s66, {BK}, 13", f"s_and_b32 s67, {BK}, 16", "s_add_u32 s66, s66, s67", f"s_add_u32 s66, s66, {WS_DA}", "s_xor_b32 s60, s66, 16",
      "s_sub_u32 s66, s66, 2048", "s_add_u32 s67, s66, 4096")
    a(f"s_mul_i32 s69, {BK}, {NB}", f"s_sub_u32 s70, {N}, s69", f"s_min_u32 s70, s70, {NB}", "s_lshl_b32 s70, s70, 7", "s_lshl_b32 s71, s69, 7")
    a("s_and_b32 s72, s3, 3", "s_lshr_b32 s73, s3, 2")
    a(f"s_mov_b32 s{SWS+2}, {WS_END}", f"s_mov_b32 s{SWS+3}, 0x20000", f"s_mov_b32 s{SX+2}, s70", f"s_mov_b32 s{SX+3}, 0x20000")
    a(f"v_and_b32 v4, 3, v0", "v_and_b32 v6, 63, v0", "v_lshlrev_b32 v6, 4, v6")
    a("v_lshlrev_b32 v3, 5, v0", "v_lshrrev_b32 v5, 2, v0", "v_lshlrev_b32 v5, 5, v5", "v_lshl_add_u32 v5, v4, 2, v5")
    BS = opt.get("bs", 0); BP = opt.get("bp", "a")
    if BS: a("v_lshlrev_b32 v166, 3, v6", "s_andn2_b32 s77, s2, 7", "s_add_u32 s77, s77, s3", "s_sub_u32 s77, s77, 4", f"s_mul_i32 s77, s77, {BS*128}", "s_and_b32 s61, s2, 7", f"s_mul_i32 s61, s61, {(25000 - 256*BS)//7*128 if opt.get('xo', 1) else 0}", "s_add_u32 s77, s77, s61")
    def bulk(): a(f"s_mov_b64 exec, {(1 << BS) - 1 if BS < 64 else -1:#x}" if BS <= 32 else f"s_mov_b32 exec_hi, {(1 << (BS-32)) - 1:#x}", "buffer_load_dword v167, v166, s[24:27], s77 offen", "s_mov_b64 exec, -1")
    a("s_cmp_eq_u32 s73, 0")
    a("s_waitcnt lgkmcnt(0)")
    st()
    if opt.get("x1"): a("s_branch K2_FIN")
    a(f"s_mov_b32 s{SWS}, s20", f"s_mov_b32 s{SWS+1}, s21")
    if opt.get("rot"): a(f"s_mov_b32 s23, {WS_HDR}", "s_load_dword s77, s[20:21], s23")
    a("s_cbranch_scc0 K2_A1")
    a(f"buffer_load_dwordx4 {vr(TG,4)}, v3, {ws}, s60 offen {opt.get('kflag', '')}")
    a(f"s_add_u32 s{SX}, s4, s71", f"s_addc_u32 s{SX+1}, s5, 0")
    a("v_bfe_u32 v7, v0, 4, 2", "v_lshlrev_b32 v7, 4, v7", "v_xor_b32 v7, v7, v6", "v_xor_b32 v5, 64, v7",
      "s_lshl_b32 s60, s3, 11", f"s_add_u32 s61, s60, {L_XS}", f"s_add_u32 m0, s60, {L_WF}", f"s_add_u32 s63, s60, {WS_WF}")
    a("s_barrier")
    sx = f"s[{SX}:{SX+3}]"
    a(f"buffer_load_dwordx4 v6, {ws}, s63 offen lds", f"buffer_load_dwordx4 v6, {ws}, s63 offen offset:1024 lds", "s_mov_b32 m0, s61", "v_lshlrev_b32 v3, 7, v0")
    a(f"buffer_load_dwordx4 v7, {sx}, s60 offen lds", f"buffer_load_dwordx4 v5, {sx}, s60 offen offset:1024 lds",
      "s_add_u32 m0, s61, 8192", "s_add_u32 s60, s60, 8192", "s_cmp_eq_u32 s3, 3", "s_cbranch_scc1 K2_A3",
      f"buffer_load_dwordx4 v7, {sx}, s60 offen lds", f"buffer_load_dwordx4 v5, {sx}, s60 offen offset:1024 lds")
    a("s_branch K2_A2")
    a.label("K2_A3")
    a(f"s_mov_b32 m0, {L_WF + 8192}", f"s_mov_b32 s60, {WS_WF + 8192}", f"buffer_load_dwordx4 v6, {ws}, s60 offen lds", "s_mov_b64 exec, 0", f"buffer_load_dwordx4 v6, {ws}, s60 offen lds", "s_mov_b64 exec, -1")
    a("s_branch K2_A2")
    a.label("K2_A1")
    a(f"buffer_load_dword v{TG}, v5, {ws}, s66 offen {opt.get('kflag', '')}", f"buffer_load_dword v{TG+1}, v5, {ws}, s67 offen {opt.get('kflag', '')}")
    a("s_barrier")
    a(f"buffer_load_dwordx4 {vr(R,4)}, v2, {ws}, s64 offen {opt.get('kflag', '')}", f"buffer_load_dwordx4 {vr(R+4,4)}, v2, {ws}, s65 offen {opt.get('kflag', '')}")
    if BS and BP == "a": bulk()
    a.label("K2_A2")
    a("s_lshl_b32 s74, s73, 11", f"s_add_u32 s75, s74, {3*2048}", f"s_add_u32 s22, s74, {6*2048}")
    srd(a, SPT, 20, 21, N, stride=128)
    a(f"s_add_u32 s{SO}, s16, s71", f"s_addc_u32 s{SO+1}, s17, 0", f"s_mov_b32 s{SO+2}, s70", f"s_mov_b32 s{SO+3}, 0x20000")
    T = Z1
    if small:
        a(f"v_and_b32 v{T}, 1, v0", f"v_lshlrev_b32 v{T}, 4, v{T}", f"v_mov_b32 v{T+1}, 0x3f80", f"v_lshlrev_b32 v{T}, v{T}, v{T+1}", "v_cmp_gt_u32 vcc, 2, v4",
          f"v_cndmask_b32 v{AL}, 0, v{T}, vcc", f"v_cndmask_b32 v{AL+1}, v{T}, 0, vcc")
    else:
        a(f"v_and_b32 v{T}, 1, v0", f"v_lshlrev_b32 v{T}, 4, v{T}", f"v_mov_b32 v{T+1}, 0x3f80", f"v_lshlrev_b32 v{T}, v{T}, v{T+1}",
          f"v_bfe_u32 v{T+1}, v0, 3, 2", f"v_bfe_u32 v{T+2}, v0, 1, 1", f"v_lshl_add_u32 v{T+1}, v{T+1}, 1, v{T+2}",
          f"v_bfe_u32 v{T+2}, v0, 2, 1", f"v_bfe_u32 v{T+3}, v0, 5, 1", f"v_xor_b32 v{T+2}, v{T+2}, v{T+3}", f"v_lshl_add_u32 v{T+1}, v{T+2}, 3, v{T+1}")
        for k in range(8): a(f"v_cmp_eq_u32 s[{MK+2*k}:{MK+2*k+1}], {k}, v{T+1}")
        for k in range(8): a(f"v_cndmask_b32 v{AL+k}, 0, v{T}, s[{MK+2*k}:{MK+2*k+1}]")
    J, QQ = T, T + 1
    a(f"v_and_b32 v{J}, 15, v0", f"v_bfe_u32 v{QQ}, v0, 4, 2", f"v_lshlrev_b32 v{OOF}, 7, v{J}",
      f"v_lshrrev_b32 v{ARX}, 1, v{J}", f"v_xor_b32 v{ARX}, v{ARX}, v{QQ}", f"v_lshl_add_u32 v{ARX}, v{ARX}, 4, v{OOF}",
      f"s_lshl_b32 s64, s72, 5", f"v_lshl_add_u32 v{OOF}, v{QQ}, 3, v{OOF}", f"v_add_u32 v{OOF}, s64, v{OOF}",
      f"s_mul_i32 s64, s73, {64*QSTR}", f"s_lshl_b32 s65, s72, 6", "s_add_u32 s64, s64, s65", f"s_add_u32 s64, s64, {L_QS - 64*QSTR}",
      f"v_mul_u32_u24 v1, {QSTR}, v{J}", f"v_lshl_add_u32 v1, v{QQ}, 4, v1", "v_add_u32 v1, s64, v1",
      f"s_lshl_b32 s64, s73, 13", f"s_add_u32 s64, s64, {L_XS - 8192}", f"v_add_u32 v2, s64, v{ARX}", "v_xor_b32 v7, 64, v2",
      f"s_lshl_b32 s64, s73, 4", f"v_add_u32 v{J}, s64, v{J}", f"v_mul_u32_u24 v{ARD}, {ASTR}, v{J}", f"v_lshl_add_u32 v{ARD}, v{QQ}, 4, v{ARD}",
      f"s_add_u32 s64, s74, {L_XS}", f"v_add_u32 v{ARX}, s64, v{ARX}")
    a(f"v_lshlrev_b32 v{IX+1}, 4, v4")
    a(f"v_mov_b32 v5, {ESTR}", f"s_movk_i32 s64, {NB*4}", f"s_mov_b32 s65, {DUMP}", "s_mov_b32 s68, 0", "s_mov_b32 s71, 0", "s_mov_b32 s70, 0")
    pk = sum(p << (4 * w) for w, p in enumerate(perm))
    a(f"s_mov_b32 s66, {pk & 0xffffffff:#x}", f"s_mov_b32 s67, {pk >> 32:#x}", "s_lshl_b32 s23, s3, 2", f"s_lshr_b64 s[66:67], s[66:67], s23",
      f"s_and_b32 s23, s66, 15", "s_lshl_b32 s23, s23, 4")
    a(f"v_bfe_u32 v{BE}, v0, 2, 4", f"v_add_u32 v{BE}, s23, v{BE}")
    a(f"v_and_b32 v{BE+2}, 1, v{BE}", f"v_cmp_gt_u32 vcc, 4, v{BE}", f"v_cmp_eq_u32 s[66:67], 0, v{BE+2}",
      f"v_lshlrev_b32 v{BE+1}, 1, v{BE}", f"v_and_b32 v{BE+1}, 0x1fc, v{BE+1}", f"v_subrev_u32 v{BE+1}, 8, v{BE+1}", f"v_lshlrev_b32 v{BE}, 2, v{BE}", f"v_add_u32 v{BE}, {(NB-4)*4}, v{BE}",
      f"s_or_b64 s[58:59], vcc, s[66:67]", f"s_andn2_b64 s[66:67], s[66:67], vcc",
      f"v_cndmask_b32 v{BE+1}, v{BE+1}, v{BE}, vcc",
      f"v_cndmask_b32 v{SP}, 1, 0, vcc", f"v_cndmask_b32 v{PP5}, v5, 0, s[58:59]", f"v_cndmask_b32 v{EH}, 0, 1, s[66:67]",
      f"v_cndmask_b32 v{MFL}, 0, 1.0, s[66:67]", f"v_mov_b32 v{BE+3}, {L_ELL + ZCOL}",
      f"v_lshlrev_b32 v{QC}, 6, v4", f"v_add_u32 v{QC}, {(L_QS - 68*L_ELL) & 0xffffffff:#x}, v{QC}", f"v_lshlrev_b32 v{AC}, 5, v4", f"v_add_u32 v{AC}, {(L_AGB - 36*L_ELL) & 0xffffffff:#x}, v{AC}")
    a(f"s_mov_b32 s66, {NLOG2E:#x}", f"s_mov_b32 s67, {NLOG2E:#x}")
    T = EX; IP = EX + 4
    for k in range(RG + 1): a(f"v_mov_b32 v{IP+2*k+1}, v{IX+1}")
    a("s_cmp_eq_u32 s73, 0", "s_cbranch_scc1 K2_CT")
    def a_round(ad, l, mk):
        for k in range(4): a(f"v_lshlrev_b32_sdwa v{ad+k}, 2, v{l} dst_sel:DWORD dst_unused:UNUSED_PAD src0_sel:DWORD src1_sel:BYTE_{k}")
        for k in range(4): a(f"v_cmp_gt_u32 s[{mk+2*k}:{mk+2*k+1}], s64, v{ad+k}")
        for k in range(4): a(f"s_mov_b64 exec, s[{mk+2*k}:{mk+2*k+1}]", f"ds_add_rtn_u32 v{ad+k}, v{ad+k}, v5 offset:{L_CTR}")
        a("s_mov_b64 exec, -1")
    stk = st.k
    ellpre = 0
    def ellw():
        for k in range(8):
            if k % 4 == 0: a(f"s_waitcnt vmcnt({1 - k//4 + (1 if BS else 0)})")
            if k == 4 and st.on == 1: a("s_memrealtime s[100:101]")
            a(f"v_min_u32 v{AD+k}, s65, v{AD+k}", f"ds_write_b32 v{AD+k}, v{R+k}")
    a(f"s_lshl_b32 s23, s72, 11", f"s_add_u32 s23, s23, {L_WF}", f"v_add_u32 v3, s23, v6", f"v_mov_b32 v{Z1+4}, 0")
    if BS and BP == "a2": bulk()
    a(f"s_waitcnt vmcnt({2 + (1 if BS and BP != 'b' else 0)})")
    st()
    if BS and BP == "b": bulk()
    a_round(AD, TG, MK); a_round(AD + 4, TG + 1, MK + 8)
    a("s_waitcnt lgkmcnt(0)")
    if ellpre: ellw()
    a("s_barrier")
    if opt.get("rot"): a(f"s_and_b32 s77, s77, {((1 << opt['rot']) - 1) << 22:#x}", f"s_add_u32 s77, s77, {WS_PR}", f"s_add_u32 s{SPT}, s20, s77", f"s_addc_u32 s{SPT+1}, s21, 0", f"s_or_b32 s{SPT+1}, s{SPT+1}, {128 << 16:#x}")
    st()
    a.label("K2_AB1")
    T = Z1 + 4
    a(f"ds_read_b32 v{T+1}, v{T} offset:{L_OVC}")
    if not ellpre: ellw()
    a("s_waitcnt lgkmcnt(4)", f"v_readfirstlane_b32 s23, v{T+1}")
    a(f"ds_read_b128 {vr(W2,4)}, v3", f"ds_read_b128 {vr(W2+4,4)}, v3 offset:1024")
    for i in range(4): a(f"ds_read_b128 {vr(X+8*i,4)}, v2 offset:{2048*i}", f"ds_read_b128 {vr(X+8*i+4,4)}, v7 offset:{2048*i}")
    a("s_andn2_b32 s23, s23, s68", "s_cbranch_scc1 K2_RESCAN")
    QT = Z1; T = EX
    def gather(slot, ix):
        p = P + 8 * slot
        return [f"buffer_load_dwordx4 {vr(p,4)}, {vr(ix,2)}, s[{SPT}:{SPT+3}], 0 idxen offen {opt.get('gflag', '')}",
                f"buffer_load_dwordx4 {vr(p+4,4)}, {vr(ix,2)}, s[{SPT}:{SPT+3}], 0 idxen offen offset:64 {opt.get('gflag', '')}"]
    stb = st.k
    for r in range(4): a(f"v_cmp_eq_u32 s[{MK+4+2*r}:{MK+5+2*r}], {r}, v4")
    a(f"v_add_u32 v7, {L_WF + 8192}, v6")
    if st.on == 1: a("s_memrealtime s[96:97]", "s_waitcnt lgkmcnt(0)", "s_mov_b32 s97, s100")
    a("s_waitcnt lgkmcnt(%d)" % (0 if st.on == 1 else 10), "s_barrier")
    st()
    a(f"ds_read_b32 v{T}, v{BE+1} offset:{L_SLOT}", f"ds_read_b128 {vr(AE,4)}, v7", "s_waitcnt lgkmcnt(2)")
    for i in range(4): a(mf16(QT+4*i, W2, X+8*i, "0"))
    for i in range(4): a(mf16(QT+4*i, W2+4, X+8*i+4, QT+4*i))
    def slotdec():
        a("s_waitcnt lgkmcnt(1)")
        a(f"v_lshrrev_b32 v{LEN}, 17, v{T}", f"v_add_u32 v{T+1}, v{LEN}, v{SP}", f"v_and_b32 v{T}, 0x1ffff, v{T}", f"v_lshrrev_b32 v{T+1}, 1, v{T+1}", f"v_mad_u32_u24 v{VI}, v{T+1}, v{PP5}, v{T}")
        a(f"ds_read_u16 v{IP}, v{VI}")
    slotdec()
    for i in range(4):
        a(f"v_pk_mul_f32 {vr(QT+4*i,2)}, {vr(QT+4*i,2)}, s[66:67]", f"v_pk_mul_f32 {vr(QT+4*i+2,2)}, {vr(QT+4*i+2,2)}, s[66:67]")
        if i == 3: a(f"s_waitcnt lgkmcnt(3)", *gather(0, IP), "s_cmp_eq_u32 s73, 2", "s_cbranch_scc1 K2_NQ2")
        a(f"ds_write_b128 v1, {vr(QT+4*i,4)} offset:{16*QSTR*i}")
    a("s_branch K2_NQ2")
    a.label("K2_CT")
    st.k = stk
    C0, C1, H0, H1, T0, T1, HH, PS, L4, B0, B1_, LOB, HIB, HA, FOUR = [Q + i for i in range(15)]
    a(f"v_mov_b32 v{Z1+4}, {MARK:#x}", "s_lshl_b32 s60, s3, 12", f"s_add_u32 m0, s60, {L_WF + 9*1024}", f"s_add_u32 s60, s60, {WS_WF + 9*1024}")
    a(f"v_lshlrev_b32 v{L4}, 2, v0", f"v_add_u32 v{B0}, {L_ELL}, v{L4}", f"v_add_u32 v{B1_}, {L_ELL + 256}, v{L4}",
      f"v_mov_b32 v{LOB}, {(CAP-63)*ESTR}", f"v_mov_b32 v{HIB}, {CAP*ESTR}", f"v_mul_u32_u24 v{HA}, {ESTR}, v0", f"v_sub_u32 v{HA}, {L_ELL + HCOL + CAP*ESTR}, v{HA}", f"v_mov_b32 v{FOUR}, 4",
      f"s_mov_b32 s61, {L_ELL + HCOL}")
    AD2 = P + 8; AD3 = P + 24
    for k in range(16): a(f"v_mov_b32 v{AD+k}, -1")
    a("s_waitcnt vmcnt(6)")
    st()
    for j in range(4): a(f"v_cmp_ne_u32 s[{MK+2*j}:{MK+2*j+1}], -1, v{TG+j}")
    a(f"v_cmp_eq_u32 vcc, v{Z1+4}, v{TG}")
    for j in range(4): a(f"s_mov_b64 exec, s[{MK+2*j}:{MK+2*j+1}]", f"buffer_load_dwordx4 {vr(R+4*j,4)}, v3, {ws}, s62 offen offset:{16*j} {opt.get('kflag', '')}")
    a("s_mov_b64 exec, -1")
    for j in range(4):
        a(f"s_cmp_eq_u64 s[{MK+2*j}:{MK+2*j+1}], 0", f"s_cbranch_scc1 K2_TS{j}")
        if j == 3: a("s_waitcnt lgkmcnt(8)")
        for k in range(4): a(f"v_lshlrev_b32_sdwa v{AD2+4*j+k}, 2, v{TG+j} dst_sel:DWORD dst_unused:UNUSED_PAD src0_sel:DWORD src1_sel:BYTE_{k}")
        for k in range(4): a(f"v_cmp_gt_u32 s[{MK+8+2*k}:{MK+9+2*k}], s64, v{AD2+4*j+k}")
        for k in range(4): a(f"s_mov_b64 exec, s[{MK+8+2*k}:{MK+9+2*k}]", f"ds_add_rtn_u32 v{AD+4*j+k}, v{AD2+4*j+k}, v5 offset:{L_CT2}")
        a("s_mov_b64 exec, -1", f"s_bitset1_b32 s70, {j}")
        a.label(f"K2_TS{j}")
    if opt.get("nowu"): a("s_mov_b64 exec, 0")
    for k in range(4): a(f"buffer_load_dwordx4 v6, {ws}, s60 offen offset:{1024*k} lds")
    if opt.get("nowu"): a("s_mov_b64 exec, -1")
    a("s_cbranch_vccnz K2_MARK")
    a.label("K2_MR")
    a("s_waitcnt lgkmcnt(0)")
    if opt.get("rot"): a(f"s_and_b32 s77, s77, {((1 << opt['rot']) - 1) << 22:#x}", f"s_add_u32 s77, s77, {WS_PR}", f"s_add_u32 s{SPT}, s20, s77", f"s_addc_u32 s{SPT+1}, s21, 0", f"s_or_b32 s{SPT+1}, s{SPT+1}, {128 << 16:#x}")
    a("s_waitcnt vmcnt(8)", "s_barrier")
    st()
    a.label("K2_AB1T")
    a(f"v_and_b32 v{T0}, 0xfc, v{L4}", f"ds_read2st64_b32 {vr(C0,2)}, v{T0} offset0:{L_CTR//256} offset1:{L_CTR//256+1}", f"ds_read2st64_b32 {vr(H0,2)}, v{T0} offset0:{L_CTR//256+2} offset1:{L_CTR//256+3}", "s_setprio 3", "s_mov_b32 s56, -1", "s_mov_b32 s57, 3")
    a("s_waitcnt lgkmcnt(0)", f"v_readlane_b32 s23, v{C1}, 48", f"v_sub_u32 v{C0}, v{C0}, v{B0}", f"v_sub_u32 v{C1}, v{C1}, v{B1_}", f"v_add_u32 v{C0}, v{C0}, v{H0}", f"v_add_u32 v{C1}, v{C1}, v{H1}",
      "s_andn2_b32 s23, s23, s68", "s_cbranch_scc1 K2_RESCAN", "s_cmp_lg_u32 s3, 0", "s_cbranch_scc1 K2_TW")
    for c, h, t in ((C0, H0, T0), (C1, H1, T1)):
        if c == C1: a("s_mov_b64 exec, s[56:57]")
        a(f"v_med3_u32 v{h}, v{c}, v{LOB}, v{HIB}", f"v_add_u32 v{t}, s61, v{h}", f"ds_add_rtn_u32 v{t}, v{t}, v{FOUR}")
    a(f"v_cmp_gt_u32 s[{MK}:{MK+1}], v{C1}, v{HIB}", "s_mov_b64 exec, -1", f"ds_read_b32 v{HH}, v{HA}", f"v_cmp_gt_u32 vcc, v{C0}, v{HIB}")
    for c, h, b in ((C0, H0, B0), (C1, H1, B1_)):
        a(f"v_min_u32 v{c}, v{c}, v{HIB}", f"v_lshrrev_b32 v{c}, 2, v{c}", f"v_mul_u32_u24 v{c}, 509, v{c}", f"v_lshrrev_b32 v{c}, 16, v{c}",
          f"v_max_u32 v{h}, {CAP-63}, v{c}", f"v_sub_u32 v{h}, {CAP}, v{h}", f"v_lshlrev_b32 v{h}, 2, v{h}", f"v_lshl_or_b32 v{c}, v{c}, 17, v{b}")
    a(f"s_or_b64 vcc, vcc, s[{MK}:{MK+1}]", "s_waitcnt lgkmcnt(0)")
    a(f"v_add_u32_dpp v{PS}, v{HH}, v{HH} row_shr:1 row_mask:0xf bank_mask:0xf bound_ctrl:0")
    for k in (2, 4, 8): a(f"v_add_u32_dpp v{PS}, v{PS}, v{PS} row_shr:{k} row_mask:0xf bank_mask:0xf bound_ctrl:0")
    a(f"v_add_u32_dpp v{PS}, v{PS}, v{PS} row_bcast:15 row_mask:0xa bank_mask:0xf", f"v_add_u32_dpp v{PS}, v{PS}, v{PS} row_bcast:31 row_mask:0xc bank_mask:0xf")
    a(f"v_sub_u32 v{PS}, v{PS}, v{HH}", f"ds_bpermute_b32 v{H0}, v{H0}, v{PS}", f"ds_bpermute_b32 v{H1}, v{H1}, v{PS}")
    a(f"v_mov_b32 v{HH}, 0", "s_waitcnt lgkmcnt(1)", f"v_add_u32 v{H0}, v{H0}, v{T0}", f"ds_write_b32 v{H0}, v{C0} offset:{L_SLOT}",
      "s_waitcnt lgkmcnt(1)", "s_mov_b64 exec, s[56:57]", f"v_add_u32 v{H1}, v{H1}, v{T1}", f"ds_write_b32 v{H1}, v{C1} offset:{L_SLOT}", "s_mov_b64 exec, -1")
    a("s_cbranch_vccz K2_TW", f"ds_write_b32 v{HH}, v5 offset:{L_FLG}")
    a.label("K2_TW")
    a.label("K2_CWR")
    for r in range(4): a(f"v_cmp_eq_u32 s[{MK+4+2*r}:{MK+5+2*r}], {r}, v4")
    T = EX
    a(f"v_add_u32 v7, {L_WF + 8192}, v6")
    if st.on == 1: a("s_waitcnt lgkmcnt(0)", "s_memrealtime s[96:97]")
    a("s_waitcnt lgkmcnt(0)", "s_barrier")
    st()
    a(f"ds_read_b32 v{T}, v{BE+1} offset:{L_SLOT}", f"ds_read_b128 {vr(AE,4)}, v7")
    slotdec()
    a(f"s_waitcnt lgkmcnt(0)", *gather(0, IP))
    for j in range(4):
        a(f"s_bitcmp0_b32 s70, {j}", f"s_cbranch_scc1 K2_TR{j}")
        for k in range(4): a(f"ds_read_b32 v{AD3+k}, v{AD2+4*j+k} offset:{L_CTR}")
        for k in range(4): a(f"s_waitcnt lgkmcnt({3-k})", f"v_add_u32 v{AD+4*j+k}, v{AD+4*j+k}, v{AD3+k} clamp", f"v_min_u32 v{AD+4*j+k}, s65, v{AD+4*j+k}")
        a.label(f"K2_TR{j}")
    a("s_waitcnt vmcnt(6)")
    if st.on == 1: a("s_memrealtime s[100:101]", "s_waitcnt lgkmcnt(0)", "s_mov_b32 s97, s100")
    for j in range(4):
        a(f"s_bitcmp0_b32 s70, {j}", f"s_cbranch_scc1 K2_TW{j}")
        if j == 3: a("s_waitcnt lgkmcnt(4)")
        for k in range(4): a(f"ds_write_b32 v{AD+4*j+k}, v{R+4*j+k}")
        a.label(f"K2_TW{j}")
    a.label("K2_NQ2")
    def rde(t): return [f"ds_read_b32 v{BE+r}, v{VE+r} offset:{t*ESTR}" for r in range(4)]
    a(f"v_mov_b32 v{T+1}, 68", f"v_mad_u32_u24 v{T+2}, v{T}, v{T+1}, v{QC}")
    for r in range(4): a(f"v_cndmask_b32 v{VE+r}, v{BE+3}, v{VI}, s[{MK+4+2*r}:{MK+5+2*r}]")
    for i in range(16): a(f"v_mov_b32 v{NN+i}, 0")
    a("s_waitcnt vmcnt(2) lgkmcnt(0)", "s_barrier")
    a(f"ds_read_u16 v{T+3}, v{VI}")
    for k in range(1, RG + 1): a(f"ds_read_u16 v{IP+2*k}, v{VI} offset:{k*ESTR}")
    for k in range(4): a(f"ds_read_b128 {vr(Q+4*k,4)}, v{T+2} offset:{16*k}")
    a(*rde(0), f"ds_read_u16 v{IX}, v{VI} offset:{(RG+1)*ESTR}")
    a(f"s_waitcnt lgkmcnt({RG + 8})", f"v_cmp_ne_u32 vcc, v{T+3}, v{IP}", "s_cbranch_vccnz K2_G0R")
    a.label("K2_G0D")
    a(*gather(1, IP + 2))
    a(f"v_add_u32 v{LEN}, v{LEN}, v{EH}", f"v_lshrrev_b32 v{LEN}, v{SP}, v{LEN}", f"v_mad_u32_u24 v{AGA}, v{T}, 36, v{AC}")
    a(f"v_max_u32_dpp v{T+1}, v{LEN}, v{LEN} row_shr:4 row_mask:0xf bank_mask:0xf bound_ctrl:0")
    for i in range(8): a(f"v_mov_b32 v{DD+i}, 1.0")
    a(f"v_max_u32_dpp v{T+1}, v{T+1}, v{T+1} row_shr:8 row_mask:0xf bank_mask:0xf bound_ctrl:0")
    for i in range(8, 16): a(f"v_mov_b32 v{DD+i}, 1.0")
    a(f"v_readlane_b32 s69, v{T+1}, 15", f"v_readlane_b32 s70, v{T+1}, 31", f"v_readlane_b32 s64, v{T+1}, 47", f"v_readlane_b32 s65, v{T+1}, 63",
      "s_max_u32 s69, s69, s70", "s_max_u32 s64, s64, s65", "s_max_u32 s69, s69, s64", "s_mov_b32 s70, 0")
    a(f"s_lshl_b32 s23, s72, 12", f"s_add_u32 s23, s23, 1024", "v_add_u32 v7, s23, v7")
    a("s_cmp_eq_u32 s69, 0", "s_cbranch_scc1 K2_DONE0")
    a(f"s_waitcnt vmcnt(2) lgkmcnt(0)")
    st()
    if st.on == 1: a("s_memtime s[98:99]", "s_waitcnt lgkmcnt(0)")
    for k in range(2, RG): a(*gather(k, IP + 2*k))
    def sm(z, b, c): return f"v_mfma_f32_4x4x4_16b_bf16 {vr(z,4)}, {vr(AL,2)}, {vr(b,2)}, {vr(c,4)}"
    if small: a(*[sm(Z0+4*i, P+2*i, Q+4*i) for i in range(4)], mf32(Z0, AE, BE, Z0))
    else: a(mf32(Z0, AE, BE, Q), mf32(Z0, AL, P, Z0), mf32(Z0, AH, P + 4, Z0))
    a(*gather(0, IP + 2*RG), *rde(1), "s_nop 3")
    U = max(2, RG)
    a(f"s_branch K2_PRI{U-1}")
    a(".p2align 6")
    for u in range(U):
        a.label(f"K2_L{u}")
        zc = (Z0, Z1)[u % 2]; zn = (Z1, Z0)[u % 2]; p = P + 8 * ((u + 1) % RG)
        ex = [f"v_exp_f32 v{EX+i}, v{zc+i}" for i in range(16)]
        a(f"s_waitcnt vmcnt({2*RG-2}) lgkmcnt(0)")
        if small:
            s4 = [sm(zn+4*i, p+2*i, Q+4*i) for i in range(4)]
            a(s4[0], ex[0], s4[1], ex[1], s4[2], ex[2], s4[3], *ex[3:8], mf32(zn, AE, BE, zn), *ex[8:16])
        else: a(mf32(zn, AE, BE, Q), *ex[0:4], mf32(zn, AL, p, zn), *ex[4:8], mf32(zn, AH, p + 4, zn), *ex[8:16])
        a(*gather((u + 1) % RG, IX), *rde(u + 2), f"ds_read_u16 v{IX}, v{VI} offset:{(u+RG+2)*ESTR}")
        a(f"v_cmpx_lt_u32 vcc, s70, v{LEN}")
        for i in range(0, 16, 2): a(f"v_pk_fma_f32 {vr(NN+i,2)}, {vr(NN+i,2)}, {vr(EX+i,2)}, {vr(NN+i,2)}")
        for i in range(0, 16, 2): a(f"v_pk_fma_f32 {vr(NN+i,2)}, {vr(zc+i,2)}, {vr(DD+i,2)}, {vr(NN+i,2)}")
        for i in range(0, 16, 2): a(f"v_pk_fma_f32 {vr(DD+i,2)}, {vr(DD+i,2)}, {vr(EX+i,2)}, {vr(DD+i,2)}")
        a("s_mov_b64 exec, -1", "s_add_u32 s70, s70, 1", "s_cmp_ge_u32 s70, s64")
        if u < U - 1: a(f"s_cbranch_scc1 K2_PRI{u}")
        else:
            for rg in [VI] + [VE + r for r in range(4)]: a(f"v_add_u32 v{rg}, {U*ESTR}, v{rg}")
            a("s_cbranch_scc0 K2_L0")
    for u in list(range(U - 1, -1, -1)):
        a.label(f"K2_PRI{u}")
        nx = f"K2_L{(u+1)%U}"
        a("s_sub_u32 s65, s69, s70")
        for lv, th in zip((3, 2, 1), dp):
            a(f"s_setprio {lv}", f"s_sub_u32 s64, s69, {th}", f"s_cmp_gt_u32 s65, {th}", f"s_cbranch_scc1 {nx}")
        a("s_setprio 0", "s_mov_b32 s64, s69", "s_cmp_lg_u32 s65, 0", f"s_cbranch_scc1 {nx}")
        if u: a("s_branch K2_DONE")
    a.label("K2_DONE")
    st()
    if st.on == 1: a("s_memtime s[100:101]", "s_waitcnt lgkmcnt(0)", "s_sub_u32 s98, s100, s98")
    XF = Z0; ACC = Q
    a(f"v_xor_b32 v3, 64, v{ARX}")
    for i in range(16): a(f"v_rcp_f32 v{EX+i}, v{DD+i}")
    a("s_waitcnt lgkmcnt(0)")
    for k in range(4): a(f"ds_read_b128 {vr(WU+4*k,4)}, v7 offset:{1024*k}")
    for i in range(3): a(f"ds_read_b128 {vr(XF+8*i,4)}, v{ARX} offset:{6144*i}", f"ds_read_b128 {vr(XF+8*i+4,4)}, v3 offset:{6144*i}")
    a(f"s_mov_b32 s66, {NLN2:#x}", f"s_mov_b32 s67, {NLN2:#x}", f"s_mov_b32 s64, {f2u(2.0**120):#x}")
    for i in range(0, 16, 2): a(f"v_pk_mul_f32 {vr(NN+i,2)}, {vr(NN+i,2)}, s[66:67]")
    a(f"v_max3_f32 v2, v{DD}, v{DD+1}, v{DD+2}")
    for i in range(3, 15, 2): a(f"v_max3_f32 v2, v{DD+i}, v{DD+i+1}, v2")
    a(f"v_max_f32 v2, v{DD+15}, v2")
    for i in range(0, 16, 2): a(f"v_pk_mul_f32 {vr(NN+i,2)}, {vr(NN+i,2)}, {vr(EX+i,2)}")
    a(f"v_pk_mul_f32 {vr(DD,2)}, {vr(NN,2)}, 0")
    for i in range(2, 16, 2): a(f"v_pk_fma_f32 {vr(DD,2)}, {vr(NN+i,2)}, 0, {vr(DD,2)}")
    for i in range(16): a(f"v_fmac_f32_dpp v{NN+i}, v{NN+i}, v{MFL} row_shl:4 row_mask:0xf bank_mask:0xf bound_ctrl:0")
    a(f"v_cmp_u_f32 vcc, v{DD}, v{DD+1}", f"v_cmp_nlt_f32 s[{MK+2}:{MK+3}], v2, s64", f"s_or_b64 vcc, vcc, s[{MK+2}:{MK+3}]")
    for i in range(8): a(f"v_cvt_pk_bf16_f32 v{EX+i}, v{NN+2*i}, v{NN+2*i+1}")
    a("s_waitcnt lgkmcnt(0)", f"s_mov_b64 exec, s[58:59]", f"ds_write_b128 v{AGA}, {vr(EX,4)} offset:{L_AGB}", f"ds_write_b128 v{AGA}, {vr(EX+4,4)} offset:{L_AGB+16}")
    a("s_mov_b64 exec, vcc", "v_mov_b32 v2, 0", f"ds_write_b32 v2, v5 offset:{L_FLG}", "s_mov_b64 exec, -1")
    a(f"s_mov_b32 s66, {NLOG2E:#x}", f"s_mov_b32 s67, {NLOG2E:#x}", "v_mov_b32 v2, 0")
    for i in range(3): a(mf16(ACC+4*i, WU, XF+8*i, "0"))
    for i in range(3): a(mf16(ACC+4*i, WU+4, XF+8*i+4, ACC+4*i))
    a("s_waitcnt lgkmcnt(0)", "s_barrier")
    st()
    a.label("K2_EPI")
    B = Z0; O = EX; TT = NN; WU2 = WU + 8
    a(f"ds_read_b32 v3, v2 offset:{L_FLG}")
    for i in range(3):
        for s in range(2): a(f"ds_read_b128 {vr(B+8*i+4*s,4)}, v{ARD} offset:{L_AGB + 48*ASTR*i + 64*s}")
    a("s_waitcnt lgkmcnt(6)", "v_readfirstlane_b32 s23, v3", "s_andn2_b32 s23, s23, s71", "s_cbranch_scc1 K2_BF")
    def epi_tile(i):
        o = O + 4 * i; t = TT + 4 * i
        a(f"v_pk_mul_f32 {vr(t,2)}, {vr(o,2)}, s[66:67]", f"v_pk_mul_f32 {vr(t+2,2)}, {vr(o+2,2)}, s[66:67]")
        for k in range(4): a(f"v_exp_f32 v{t+k}, v{t+k}")
        a(f"v_pk_add_f32 {vr(t,2)}, {vr(t,2)}, 1.0 op_sel_hi:[1,0]", f"v_pk_add_f32 {vr(t+2,2)}, {vr(t+2,2)}, 1.0 op_sel_hi:[1,0]")
        for k in range(4): a(f"v_rcp_f32 v{t+k}, v{t+k}")
        a(f"v_pk_mul_f32 {vr(t,2)}, {vr(t,2)}, {vr(o,2)}", f"v_pk_mul_f32 {vr(t+2,2)}, {vr(t+2,2)}, {vr(o+2,2)}")
        a(f"v_cvt_pk_bf16_f32 v{o}, v{t}, v{t+1}", f"v_cvt_pk_bf16_f32 v{o+1}, v{t+2}, v{t+3}")
        a(f"buffer_store_dwordx2 {vr(o,2)}, v{OOF}, s[{SO}:{SO+3}], {('s74','s75','s22')[i]} offen")
    for i in range(3):
        a(f"s_waitcnt lgkmcnt({4-2*i})", mf16(O+4*i, WU2, B+8*i, ACC+4*i), mf16(O+4*i, WU2+4, B+8*i+4, O+4*i))
    epi_tile(0); epi_tile(1)
    a("s_cmp_lg_u32 s73, 0", "s_cbranch_scc1 K2_FIN")
    epi_tile(2)
    a.label("K2_FIN")
    if st.on: a("s_waitcnt vmcnt(0)")
    if opt.get("diag"):
        kind, M = opt["diag"]
        a("s_cmp_lg_u32 s3, 0", "s_cbranch_scc1 K2_END", "s_memrealtime s[40:41]", "s_lshl_b32 s42, s2, 10", f"s_add_u32 s42, s42, {WS_STAMP}", "s_add_u32 s44, s20, s42", "s_addc_u32 s45, s21, 0",
          "v_mov_b32 v2, 0", "global_load_dwordx4 v[8:11], v2, s[44:45]", "global_load_dwordx4 v[12:15], v2, s[44:45] offset:16", "s_waitcnt vmcnt(0) lgkmcnt(0)",
          "v_readfirstlane_b32 s46, v8", "v_readfirstlane_b32 s47, v13", "v_readfirstlane_b32 s48, v9", "v_readfirstlane_b32 s49, v10", "s_nop 4")
        a({"k1": "s_sub_u32 s46, s47, s46", "k12": "s_sub_u32 s46, s78, s46", "k2": "s_sub_u32 s46, s40, s78", "tot": "s_sub_u32 s46, s40, s46", "dst": "s_sub_u32 s46, s48, s46", "src": "s_sub_u32 s46, s49, s46",
           "kb3": "s_sub_u32 s46, s92, s80", "reg": "s_lshr_b32 s46, s77, 22\ns_sub_u32 s46, s46, 8", "xcc": "s_getreg_b32 s46, hwreg(HW_REG_XCC_ID)\ns_xor_b32 s46, s46, s2\ns_and_b32 s46, s46, 7", "ent": "s_sub_u32 s46, s80, s78"}.get(kind, "s_cmp_lg_u32 s2, 5\ns_cbranch_scc1 K2_END"))
        if kind.startswith("g"):
            a(f"s_add_u32 s44, s20, {WS_STAMP}", "s_addc_u32 s45, s21, 0", "v_lshlrev_b32 v2, 6, v0", "v_mov_b32 v16, 0", "v_mov_b32 v17, -1", "v_mov_b32 v18, -1", "v_mov_b32 v19, 0", "s_mov_b32 s47, 0")
            a.label("K2_DL")
            a("global_load_dword v8, v2, s[44:45]", f"global_load_dword v9, v2, s[44:45] offset:{opt.get('dk', 5)*4}", "v_add_u32 v2, 4096, v2", "s_waitcnt vmcnt(0)", "v_sub_u32 v8, s78, v8", "v_sub_u32 v9, s78, v9",
              "v_max_u32 v16, v16, v8", "v_min_u32 v17, v17, v8", "v_min_u32 v18, v18, v9", "v_max_u32 v19, v19, v9", "s_add_u32 s47, s47, 1", "s_cmp_lt_u32 s47, 63", "s_cbranch_scc1 K2_DL")
            a("s_mov_b32 s47, 0", "s_mov_b32 s50, 0", "s_mov_b32 s51, -1", "s_mov_b32 s52, -1", "s_mov_b32 s53, 0")
            a.label("K2_DM")
            a("v_readlane_b32 s54, v16, s47", "v_readlane_b32 s55, v17, s47", "v_readlane_b32 s56, v18, s47", "v_readlane_b32 s57, v19, s47", "s_max_u32 s50, s50, s54", "s_min_u32 s51, s51, s55", "s_min_u32 s52, s52, s56", "s_max_u32 s53, s53, s57",
              "s_add_u32 s47, s47, 1", "s_cmp_lt_u32 s47, 64", "s_cbranch_scc1 K2_DM")
            a({"gskew": "s_sub_u32 s46, s50, s51", "gk1": "s_sub_u32 s46, s50, s52", "ggap": "s_mov_b32 s46, s52", "g0": "s_mov_b32 s46, 0", "gfirst": "s_sub_u32 s46, s50, s53"}[kind])
            a("s_memrealtime s[40:41]", "s_waitcnt lgkmcnt(0)")
        if opt.get("thr"): a(f"s_cmp_gt_u32 s46, {opt['thr']}", f"s_cselect_b32 s46, {M}, 0")
        else: a("s_min_u32 s46, s46, 4000", f"s_mul_i32 s46, s46, {M}")
        a.label("K2_DG")
        a("s_sleep 2", "s_memrealtime s[42:43]", "s_waitcnt lgkmcnt(0)", "s_sub_u32 s42, s42, s40", "s_cmp_lt_u32 s42, s46", "s_cbranch_scc1 K2_DG")
    else: st.flush(20, 3, 2, 3)
    a.label("K2_END")
    a("s_endpgm")

    a.label("K2_G0R")
    a(f"v_mov_b32 v{IP}, v{EX+3}", *gather(0, IP), "s_branch K2_G0D")
    a.label("K2_DONE0")
    a("s_waitcnt vmcnt(0) lgkmcnt(0)", "s_branch K2_DONE")
    a.label("K2_MARK")
    T = Z1
    a("s_mov_b64 exec, vcc", f"v_mov_b32 v{T}, 0", f"v_mov_b32 v{T+1}, 1", f"ds_add_rtn_u32 v{T}, v{T}, v{T+1} offset:{L_OVC}", "s_waitcnt lgkmcnt(0)",
      f"v_and_b32 v{T}, 255, v{T}", f"v_lshlrev_b32 v{T}, 2, v{T}", f"ds_write_b32 v{T}, v0 offset:{L_OVL}", "s_mov_b64 exec, -1", "s_branch K2_MR")

    SD, SS, SE = 40, 44, 48
    a.label("K2_RESCAN")
    srd(a, SD, 10, 11, E * 4); srd(a, SS, 8, 9, E * 4); srd(a, SE, 6, 7, E * 2)
    a("s_mov_b32 s52, 0", f"s_mul_i32 s53, {BK}, {NB}", "s_min_u32 s23, s23, 256", "s_waitcnt lgkmcnt(0)")
    a.label("K2_RS1")
    T = Z1 + 8
    a("s_lshl_b32 s54, s52, 2", f"v_mov_b32 v{T}, s54", f"ds_read_b32 v{T}, v{T} offset:{L_OVL}", "s_waitcnt lgkmcnt(0)", f"v_readfirstlane_b32 s54, v{T}",
      "s_and_b32 s55, s54, 31", "s_lshl_b32 s55, s55, 3", "s_lshr_b32 s54, s54, 5", "s_add_u32 s54, s54, s55",
      f"s_mul_i32 s54, s54, {CH}", f"s_sub_u32 s55, {E}, s54", f"s_min_u32 s55, s55, {CH}",
      f"v_mov_b32 v{T}, v0")
    a.label("K2_RS2")
    a(f"v_add_u32 v{T+1}, s54, v{T}", f"v_lshlrev_b32 v{T+2}, 1, v{T+1}", f"v_lshlrev_b32 v{T+1}, 2, v{T+1}",
      f"buffer_load_dword v{T+3}, v{T+1}, s[{SD}:{SD+3}], 0 offen", f"buffer_load_dword v{T+4}, v{T+1}, s[{SS}:{SS+3}], 0 offen",
      f"buffer_load_ushort v{T+5}, v{T+2}, s[{SE}:{SE+3}], 0 offen", "s_waitcnt vmcnt(0)",
      f"v_subrev_u32 v{T+3}, s53, v{T+3}", f"v_cmp_gt_u32 vcc, {NB}, v{T+3}", f"v_cmp_gt_u32 s[56:57], s55, v{T}", "s_and_b64 exec, vcc, s[56:57]",
      f"v_lshlrev_b32 v{T+3}, 2, v{T+3}", f"ds_add_rtn_u32 v{T+3}, v{T+3}, v5 offset:{L_CTR}", f"v_lshl_or_b32 v{T+4}, v{T+5}, 16, v{T+4}",
      "s_waitcnt lgkmcnt(0)", f"v_min_u32 v{T+3}, s65, v{T+3}", f"ds_write_b32 v{T+3}, v{T+4}", "s_mov_b64 exec, -1",
      f"v_add_u32 v{T}, 768, v{T}", f"v_cmp_gt_u32 vcc, s55, v{T}", "s_cbranch_vccnz K2_RS2")
    a("s_add_u32 s52, s52, 1", "s_cmp_lt_u32 s52, s23", "s_cbranch_scc1 K2_RS1")
    a("s_mov_b32 s68, -1", "s_waitcnt lgkmcnt(0)", "s_barrier", "s_cmp_eq_u32 s73, 0", "s_cbranch_scc1 K2_AB1T", "s_branch K2_AB1")

    a.label("K2_BF")
    T = Z0
    a("s_waitcnt vmcnt(0) lgkmcnt(0)")
    srd(a, SD, 10, 11, E * 4); srd(a, SS, 8, 9, E * 4); srd(a, SE, 6, 7, E * 2); srd(a, 52, 12, 13, 129 * 128)
    a(f"s_mov_b32 s{SX}, s{SPT}", f"s_and_b32 s{SX+1}, s{SPT+1}, 0xffff", f"s_mov_b32 s{SX+2}, {N*128}", f"s_mov_b32 s{SX+3}, 0x20000")
    for i in range(4): a(f"v_mov_b32 v{T+i}, 0")
    a(f"v_lshlrev_b32 v{T+4}, 4, v0", f"v_add_u32 v{T+4}, {L_ELL}, v{T+4}")
    for i in range(3): a(f"ds_write_b128 v{T+4}, {vr(T,4)} offset:{12288*i}")
    LN, F4, F2, PO, W3 = T + 4, T + 5, T + 6, T + 7, T + 8
    a(f"v_and_b32 v{LN}, 63, v0", f"v_lshlrev_b32 v{F4}, 2, v{LN}", f"v_lshlrev_b32 v{F2}, 1, v{LN}",
      f"v_and_b32 v{PO}, 8, v{LN}", f"v_lshlrev_b32 v{PO}, 3, v{PO}", f"v_and_b32 v{T}, 48, v{LN}", f"v_add_u32 v{PO}, v{PO}, v{T}",
      f"v_and_b32 v{T}, 7, v{LN}", f"v_lshl_add_u32 v{PO}, v{T}, 1, v{PO}",
      "s_movk_i32 s56, 16384", f"buffer_load_ushort v{W3}, v{F2}, s[52:55], s56 offen", "s_waitcnt vmcnt(0) lgkmcnt(0)",
      f"v_lshlrev_b32 v{W3}, 16, v{W3}", f"v_mul_f32 v{W3}, s66, v{W3}",
      f"s_mul_i32 s57, {BK}, {NB}", "s_mov_b32 s56, s3", "s_barrier")
    a.label("K2_BF1")
    DV, SV, EV = T + 9, T + 10, T + 11
    a("s_lshl_b32 s58, s56, 8", "s_lshl_b32 s59, s56, 7",
      f"buffer_load_dword v{DV}, v{F4}, s[{SD}:{SD+3}], s58 offen", "s_waitcnt vmcnt(0)",
      f"v_subrev_u32 v{DV}, s57, v{DV}", f"v_cmp_gt_u32 vcc, {NB}, v{DV}", "s_cbranch_vccz K2_BF3",
      f"buffer_load_dword v{SV}, v{F4}, s[{SS}:{SS+3}], s58 offen", f"buffer_load_ushort v{EV}, v{F2}, s[{SE}:{SE+3}], s59 offen",
      "s_mov_b64 s[60:61], vcc", "s_waitcnt vmcnt(0)")
    a.label("K2_BF2")
    a("s_ff1_i32_b64 s58, s[60:61]", "s_bitset0_b64 s[60:61], s58",
      f"v_readlane_b32 s59, v{SV}, s58", f"v_readlane_b32 s62, v{DV}, s58", f"v_readlane_b32 s63, v{EV}, s58",
      "s_min_u32 s59, s59, %d" % (N - 1), "s_lshl_b32 s59, s59, 7", f"buffer_load_ushort v{T}, v{PO}, s[{SX}:{SX+3}], s59 offen",
      f"s_mul_i32 s58, s62, {QSTR}", f"v_add_u32 v{T+1}, s58, v{F4}", f"ds_read_b32 v{T+1}, v{T+1} offset:{L_QS}",
      "s_lshl_b32 s63, s63, 16", "s_lshl_b32 s62, s62, 8", f"s_add_u32 s62, s62, {L_ELL}", f"v_add_u32 v{T+2}, s62, v{F4}",
      "s_waitcnt vmcnt(0) lgkmcnt(0)",
      f"v_lshlrev_b32 v{T}, 16, v{T}", f"v_add_f32 v{T}, v{T}, v{T+1}", f"v_fma_f32 v{T}, s63, v{W3}, v{T}",
      f"v_exp_f32 v{T+1}, v{T}", f"v_add_f32 v{T+1}, 1.0, v{T+1}", f"v_rcp_f32 v{T+1}, v{T+1}", f"v_mul_f32 v{T}, {NLN2:#x}, v{T}", f"v_mul_f32 v{T}, v{T}, v{T+1}",
      f"ds_add_f32 v{T+2}, v{T}", "s_cmp_lg_u64 s[60:61], 0", "s_cbranch_scc1 K2_BF2")
    a.label("K2_BF3")
    a("s_add_u32 s56, s56, 12", f"s_cmp_lt_u32 s56, {E//64}", "s_cbranch_scc1 K2_BF1")
    a("s_waitcnt lgkmcnt(0)", "s_barrier", f"v_mov_b32 v{T+4}, v0")
    a.label("K2_BF4")
    a(f"v_lshlrev_b32 v{T+5}, 3, v{T+4}", f"v_add_u32 v{T+5}, {L_ELL}, v{T+5}", f"ds_read_b64 {vr(T,2)}, v{T+5}",
      f"v_lshrrev_b32 v{T+5}, 5, v{T+4}", f"v_mul_u32_u24 v{T+5}, {ASTR}, v{T+5}", f"v_and_b32 v{T+6}, 31, v{T+4}", f"v_lshl_add_u32 v{T+5}, v{T+6}, 2, v{T+5}",
      "s_waitcnt lgkmcnt(0)", f"v_cvt_pk_bf16_f32 v{T}, v{T}, v{T+1}", f"ds_write_b32 v{T+5}, v{T} offset:{L_AGB}",
      f"v_add_u32 v{T+4}, 768, v{T+4}", f"v_cmpx_gt_u32 vcc, {NB*32}, v{T+4}", "s_cbranch_execnz K2_BF4")
    a("s_mov_b64 exec, -1", "s_mov_b32 s71, -1", "s_waitcnt lgkmcnt(0)", "s_barrier", "s_branch K2_EPI")
    return a.lines

def kd(name, vg, sg=102):
    return f""".amdhsa_kernel {name}
  .amdhsa_next_free_vgpr {vg}
  .amdhsa_next_free_sgpr {sg}
  .amdhsa_accum_offset {vg}
  .amdhsa_group_segment_fixed_size 0
  .amdhsa_kernarg_size 72
  .amdhsa_user_sgpr_count 2
  .amdhsa_user_sgpr_kernarg_segment_ptr 1
  .amdhsa_system_sgpr_workgroup_id_x 1
.end_amdhsa_kernel"""

def build(opt=None):
    opt = opt or {}
    out = ["; mpnn edge MLP: K1 bins edges by destination bucket and builds the P' table, K2 aggregates and updates",
           f"; @launch kernel=mpnn_bin_kernel grid=(256,1,1) block=(1024,1,1) lds={K1_LDS}",
           f"; @launch kernel=mpnn_msg_kernel grid=(256,1,1) block=(768,1,1) lds={K2_LDS}",
           '.amdgcn_target "amdgcn-amd-amdhsa--gfx950"', ".text"]
    for name, fn in (("mpnn_bin_kernel", gen_k1), ("mpnn_msg_kernel", gen_k2)):
        lines, nn = fix_hazards(fn(opt), verbose=opt.get("verbose"))
        out += [f".globl {name}", ".p2align 8", f".type {name},@function"] + lines
    out += ['.section .rodata,"a"', ".p2align 6", kd("mpnn_bin_kernel", 128), ".p2align 6", kd("mpnn_msg_kernel", 168)]
    return "\n".join(out) + "\n"

if __name__ == "__main__":
    import argparse
    ap = argparse.ArgumentParser(); ap.add_argument("-o", default="standalone__mpnn_edge_mlp__graph.s")
    ap.add_argument("--stamp", type=int, default=0); ap.add_argument("-v", action="store_true"); ap.add_argument("--opt", default="{}")
    g = ap.parse_args()
    open(g.o, "w").write(build({"stamp": g.stamp, "verbose": g.v, **eval(g.opt)}))
```

```python
import sys, struct, math
sys.path.insert(0, "gen")
from asmlib import *

N = 25000; E = 800000; NB = 98; CH = 3128; CAP = 72
WS_RA = 0x400000; WS_DA = 0x800000; WS_RB = 0xA00000; WS_WF = 0x380000; WS_END = WS_RB + 0x800000
MARK = 0xFEFEFEFE
WS_PR = 0x2000000; WS_HDR = WS_WF + 0x8000
WS_STAMP = 0x1400000
f2u = lambda f: struct.unpack("<I", struct.pack("<f", f))[0]
NLOG2E = f2u(-1.4426950408889634); NLN2 = f2u(-0.6931471805599453)
NTILE = (N + 15) // 16

def mf16(d, a, b, c): return f"v_mfma_f32_16x16x32_bf16 {vr(d,4)}, {vr(a,4)}, {vr(b,4)}, {c if isinstance(c,str) else vr(c,4)}"
def mf32(d, a, b, c): return f"v_mfma_f32_32x32x16_bf16 {vr(d,16)}, {vr(a,4)}, {vr(b,4)}, {vr(c,16)}"

class Stamps:
    def __init__(self, a, on, base, kidx, nw): self.a = a; self.on = on; self.base = base; self.k = 0; self.kidx = kidx; self.nw = nw
    def __call__(self):
        if not self.on: return
        r = self.base + 2 * self.k; self.k += 1
        if self.on == 3 and (self.k - 1) not in ((0, 5), (0, 1, 7, 8))[self.kidx]: return
        self.a(f"s_waitcnt lgkmcnt(0)", f"s_memrealtime s[{r}:{r+1}]", "s_waitcnt lgkmcnt(0)")
    def early(self):
        if not self.on: return
        r = self.base + 2 * self.k; self.k += 1
        self.a(f"s_memrealtime s[{r}:{r+1}]")
    def flush(self, ws, wave, t0, t1):
        if not self.on: return
        a = self.a
        self()
        a("s_mov_b64 exec, -1")
        a(f"v_mov_b32 v{t0}, 0")
        for k in range(self.k): a(f"v_writelane_b32 v{t0}, s{self.base+2*k}, {k}")
        if self.kidx == 1: a(f"v_writelane_b32 v{t0}, s98, 13", f"v_writelane_b32 v{t0}, s96, 12", f"v_writelane_b32 v{t0}, s97, 11", f"v_writelane_b32 v{t0}, s69, 15", f"s_getreg_b32 s69, hwreg(HW_REG_HW_ID)", f"v_writelane_b32 v{t0}, s69, 14")
        if self.on == 2 and self.kidx == 1:
            b = self.base
            a(f"s_add_u32 s{b}, s2, s{wave}", f"s_cmp_lg_u32 s{b}, 0", f"s_cbranch_scc1 STK{self.kidx}",
              f"s_load_dwordx2 s[{b}:{b+1}], s[0:1], 56", f"v_and_b32 v{t1}, 63, v0", f"v_lshlrev_b32 v{t1}, 2, v{t1}",
              f"v_add_u32 v{t1+1}, {WS_STAMP}, v{t1}", f"global_load_dword v{t1+1}, v{t1+1}, s[{ws}:{ws+1}]",
              "s_waitcnt vmcnt(0) lgkmcnt(0)", f"s_mov_b64 exec, 0x3ff", f"global_store_dword v{t1}, v{t0}, s[{b}:{b+1}] offset:24",
              f"s_mov_b64 exec, 0x3f", f"global_store_dword v{t1}, v{t1+1}, s[{b}:{b+1}]")
            a.label(f"STK{self.kidx}")
            return
        a(f"s_mul_i32 s{self.base}, s2, {self.nw}", f"s_add_u32 s{self.base}, s{self.base}, s{wave}", f"s_lshl_b32 s{self.base}, s{self.base}, 6",
          f"s_add_u32 s{self.base}, s{self.base}, {WS_STAMP + self.kidx * 0x100000}",
          f"v_and_b32 v{t1}, 63, v0", f"v_lshlrev_b32 v{t1}, 2, v{t1}", f"v_add_u32 v{t1}, s{self.base}, v{t1}",
          "s_mov_b64 exec, 0xffff", f"global_store_dword v{t1}, v{t0}, s[{ws}:{ws+1}]")

def srd(a, r, lo, hi, num, stride=0):
    a(f"s_mov_b32 s{r}, s{lo}")
    if stride: a(f"s_or_b32 s{r+1}, s{hi}, {stride << 16:#x}")
    else: a(f"s_mov_b32 s{r+1}, s{hi}")
    a(f"s_mov_b32 s{r+2}, {num}", f"s_mov_b32 s{r+3}, 0x20000")

K1_DA = 32768; K1_CNT = 40960; K1_LDS = K1_CNT + 1024
def gen_k1(opt):
    a = Asm(); st = Stamps(a, opt.get("stamp"), 70, 0, 16)
    a.label("mpnn_bin_kernel")
    if opt.get("cpf") == 2:
        a("s_getpc_b64 s[48:49]", "v_lshlrev_b32 v54, 7, v0", "v_min_u32 v54, K2_END-mpnn_bin_kernel-4, v54", "global_load_dword v55, v54, s[48:49]")
    a("s_cmp_ge_u32 s2, 256", "s_cbranch_scc1 K1_END")
    if opt.get("dly"):
        a("s_memrealtime s[4:5]", "s_waitcnt lgkmcnt(0)")
        a.label("K1_DL")
        a("s_sleep 1", "s_memrealtime s[6:7]", "s_waitcnt lgkmcnt(0)", "s_sub_u32 s6, s6, s4", f"s_cmp_lt_u32 s6, {opt['dly']}", "s_cbranch_scc1 K1_DL")
    a("s_load_dwordx8 s[4:11], s[0:1], 0", "s_load_dwordx4 s[12:15], s[0:1], 32", "s_load_dwordx2 s[16:17], s[0:1], 64")
    a("v_lshrrev_b32 v1, 6, v0", "v_lshlrev_b32 v7, 4, v0", "v_readfirstlane_b32 s3, v1", "v_lshlrev_b32 v4, 3, v0")
    a("v_mov_b32 v46, -1", "v_mov_b32 v47, -1", f"ds_write_b64 v4, v[46:47] offset:{K1_DA}",
      "v_and_b32 v45, 255, v0", "v_lshlrev_b32 v44, 2, v45", "v_lshlrev_b32 v45, 5, v45", f"ds_write_b32 v44, v45 offset:{K1_CNT}")
    a("s_and_b32 s40, s2, 7", "s_lshr_b32 s41, s2, 3")
    a(f"s_mov_b32 s34, {WS_END}", "s_mov_b32 s35, 0x20000")
    CO = 44
    def co_addr():
        a("s_lshl_b32 s42, s40, 5", "s_add_u32 s42, s42, s41",
          "s_lshl_b32 s43, s42, 5", f"s_add_u32 s43, s43, {WS_DA}", "s_lshl_b32 s44, s42, 7", "s_lshl_b32 s42, s42, 6", f"s_add_u32 s44, s44, {WS_RB}", f"s_add_u32 s42, s42, {WS_RA}")
        a(f"v_lshrrev_b32 v{CO+6}, 2, v0", f"v_and_b32 v{CO+5}, 3, v0", f"v_lshlrev_b32 v{CO+1}, 13, v{CO+6}", f"v_lshl_add_u32 v{CO+1}, v{CO+5}, 3, v{CO+1}", f"v_lshlrev_b32 v{CO}, 1, v{CO+1}", f"v_lshl_add_u32 v{CO+8}, v{CO+6}, 14, v{CO}",
          f"v_lshlrev_b32 v{CO+2}, 7, v{CO+6}", f"v_lshl_add_u32 v{CO+2}, v{CO+5}, 4, v{CO+2}", f"v_and_b32 v{CO+3}, 64, v0", f"v_add_u32 v{CO+2}, v{CO+2}, v{CO+3}", f"v_xor_b32 v{CO+3}, 64, v{CO+2}",
          f"v_bfe_u32 v{CO+4}, v0, 4, 2", f"v_xor_b32 v{CO+5}, v{CO+5}, v{CO+4}", f"v_lshlrev_b32 v{CO+6}, 5, v{CO+6}", f"v_lshl_add_u32 v{CO+5}, v{CO+5}, 2, v{CO+6}", f"v_add_u32 v{CO+5}, 16, v{CO+5}",
          *([f"v_add_u32 v{CO+5}, 16, v{CO+6}"] if opt.get("bfull", 1) else []), f"v_add_u32 v{CO+6}, 32, v{CO+6}", f"v_and_b32 v{CO+4}, 0x3fc, v0", f"v_lshlrev_b32 v{CO+7}, 3, v0")
    a("s_cmp_ge_u32 s3, 13", "s_cbranch_scc1 K1_P")
    DST, SRC, EE, B, DL, S, LIM, REC = 8, 12, 16, 20, 24, 28, 32, 36
    a(f"s_mul_i32 s18, s2, {CH}", f"s_sub_u32 s19, {E}, s18", f"s_min_u32 s19, s19, {CH}", "s_lshl_b32 s36, s18, 2", "s_lshl_b32 s37, s18, 1")
    for r, n in ((20, E * 4), (24, E * 4), (28, E * 2)): a(f"s_mov_b32 s{r+2}, {n}", f"s_mov_b32 s{r+3}, 0x20000")
    a("v_lshlrev_b32 v1, 2, v0", "v_cmp_gt_u32 vcc, s19, v1")
    if opt.get("cpf") == 1:
        a("s_cmp_lg_u32 s3, 12", "s_cbranch_scc1 K1_NPF", "s_getpc_b64 s[48:49]")
        a.label("K1_PC")
        a("s_add_u32 s48, s48, mpnn_msg_kernel-K1_PC", "s_addc_u32 s49, s49, 0", "v_and_b32 v54, 63, v0", "v_lshlrev_b32 v54, 7, v54",
          "v_min_u32 v54, K2_END-mpnn_msg_kernel, v54", "global_load_dword v55, v54, s[48:49]")
        a.label("K1_NPF")
    a("s_waitcnt lgkmcnt(0)")
    st()
    a("s_mov_b32 s20, s10", "s_mov_b32 s21, s11", f"buffer_load_dwordx4 {vr(DST,4)}, v7, s[20:23], s36 offen {opt.get('lflag', '')}")
    a("s_mov_b32 s24, s8", "s_mov_b32 s25, s9", "s_mov_b32 s28, s6", "s_mov_b32 s29, s7", "s_mov_b32 s32, s16", "s_mov_b32 s33, s17")
    a("s_barrier")
    a(f"buffer_load_dwordx4 {vr(SRC,4)}, v7, s[24:27], s36 offen {opt.get('lflag', '')}", f"buffer_load_dwordx2 {vr(EE,2)}, v4, s[28:31], s37 offen {opt.get('lflag', '')}")
    co_addr()
    if opt.get("tlb"):
        a("s_cmp_lg_u32 s3, 12", "s_cbranch_scc1 K1_NT", "v_and_b32 v54, 63, v0", f"v_mul_u32_u24 v54, {opt['tlb']}, v54", "buffer_load_dword v55, v54, s[32:35], 0 offen", "s_waitcnt vmcnt(1)")
        a.label("K1_NT")
    a("v_mov_b32 v6, 1", "s_movk_i32 s38, -98", "s_mov_b32 s39, 0xffff0000")
    a("s_mov_b64 exec, vcc", "s_cbranch_execz K1_B1")
    a("s_waitcnt vmcnt(2)")
    st()
    for i in range(4):
        a(f"v_mul_u32_u24 v{B+i}, 21400, v{DST+i}", f"v_lshrrev_b32 v{B+i}, 21, v{B+i}", f"v_lshlrev_b32 v{S+i}, 2, v{B+i}",
          f"ds_add_rtn_u32 v{S+i}, v{S+i}, v6 offset:{K1_CNT}")
    for i in range(4): a(f"v_mad_i32_i24 v{DL+i}, v{B+i}, s38, v{DST+i}", f"v_lshl_or_b32 v{LIM+i}, v{B+i}, 5, 31", f"v_and_b32 v{B+i}, 31, v{B+i}")
    for i in range(4):
        a(f"s_waitcnt lgkmcnt(3)", f"v_min_u32 v{S+i}, v{S+i}, v{LIM+i}", f"v_xor_b32 v{S+i}, v{S+i}, v{B+i}", f"ds_write_b8 v{S+i}, v{DL+i} offset:{K1_DA}")
    for i in range(4): a(f"v_lshlrev_b32 v{LIM+i}, 2, v{S+i}")
    a("s_waitcnt vmcnt(0)")
    st()
    if opt.get("smask"):
        for i in range(4): a(f"v_and_b32 v{SRC+i}, {opt['smask']}, v{SRC+i}")
    for i in range(4):
        if i % 2 == 0: a(f"v_lshl_or_b32 v{REC+i}, v{EE+i//2}, 16, v{SRC+i}")
        else: a(f"v_and_or_b32 v{REC+i}, v{EE+i//2}, s39, v{SRC+i}")
        a(f"ds_write_b32 v{LIM+i}, v{REC+i}")
    a.label("K1_B1")
    a("s_mov_b64 exec, -1")
    st.k = 3; st()
    a("s_waitcnt lgkmcnt(0)", "s_barrier")
    st()
    a(f"ds_read_b128 v[8:11], v{CO+2}", f"ds_read_b32 v18, v{CO+4} offset:{K1_CNT}", f"ds_read_b64 v[16:17], v{CO+7} offset:{K1_DA}", f"ds_read_b128 v[12:15], v{CO+3}")
    a("s_waitcnt lgkmcnt(3)", f"buffer_store_dwordx4 v[8:11], v{CO}, s[32:35], s42 offen {opt.get('dflag', '')}")
    a("s_waitcnt lgkmcnt(1)", f"v_cmp_gt_u32 vcc, v18, v{CO+6}", f"v_cmp_gt_u32 s[46:47], v18, v{CO+5}", "s_cbranch_vccnz K1_OV")
    a.label("K1_OVR")
    x = opt.get("x1", "")
    if "d" not in x: a(f"buffer_store_dwordx2 v[16:17], v{CO+1}, s[32:35], s43 offen {opt.get('dflag', '')}")
    if "b" not in x: a("s_mov_b64 exec, s[46:47]", "s_waitcnt lgkmcnt(0)", f"buffer_store_dwordx4 v[12:15], v{CO+8}, s[32:35], s44 offen", *([] if opt.get("bhalf", 1) else [f"buffer_store_dwordx4 v[8:11], v{CO+8}, s[32:35], s44 offen offset:64"]))
    if st.on or opt.get("kw"): a("s_waitcnt vmcnt(0)")
    st.flush(16, 3, 20, 21)
    if opt.get("kp"):
        a("s_mov_b64 exec, -1", f"s_mul_i32 s45, s41, {782*128}", "v_lshlrev_b32 v60, 7, v0", f"v_cmp_gt_u32 vcc, {opt['kp']}, v0", "s_and_b64 exec, exec, vcc", "s_cbranch_execz K1_END", "buffer_load_dword v61, v60, s[32:35], s45 offen")
    a.label("K1_END")
    a("s_endpgm")
    a.label("K1_OV")
    a(f"v_mov_b32 v18, {MARK:#x}", "v_cndmask_b32 v16, v16, v18, vcc", "v_cndmask_b32 v17, v17, v18, vcc", "s_branch K1_OVR")
    W, A, X, D, O, FR = 8, 40, 72, 96, 112, 120
    a.label("K1_P")
    a("v_and_b32 v1, 15, v0", "v_bfe_u32 v2, v0, 4, 2",
      "v_lshlrev_b32 v3, 10, v2", "v_lshl_add_u32 v5, v1, 1, v3", "v_lshl_add_u32 v3, v1, 3, v3",
      "v_lshlrev_b32 v4, 7, v1", "v_lshl_add_u32 v4, v2, 4, v4")
    a("s_mul_i32 s18, s41, 3", "s_add_u32 s18, s18, s3", "s_sub_u32 s18, s18, 13",
      "s_mul_i32 s36, s40, 196", "s_add_u32 s36, s36, s18",
      "s_lshl_b32 s36, s36, 11", f"s_add_u32 s37, s36, {96*2048}", f"s_add_u32 s38, s36, {192*2048}", "s_movk_i32 s39, 4096")
    for r, n in ((20, 129 * 128), (24, N * 128), (28, N * 128), (48, 128 * 128)): a(f"s_mov_b32 s{r+2}, {n}", f"s_mov_b32 s{r+3}, 0x20000")
    a("s_sub_u32 s19, s2, 16", "s_cmp_eq_u32 s3, 15", "s_cselect_b32 s19, s19, 100")
    a("s_waitcnt lgkmcnt(0)")
    st.k = 0; st()
    a("s_mov_b32 s24, s4", "s_mov_b32 s25, s5", "s_mov_b32 s20, s12", "s_mov_b32 s21, s13")
    a("s_cmp_le_u32 s19, 24", "s_cbranch_scc1 K1_FL")
    a.label("K1_FLR")
    for i in range(2):
        for s in range(2): a(f"buffer_load_dwordx4 {vr(X+8*i+4*s,4)}, v4, s[24:27], s{36+i} offen offset:{64*s} {opt.get('xflag', '')}")
    for s in range(2):
        for kk in range(8): a(f"buffer_load_dwordx2 {vr(W+16*s+2*kk,2)}, v3, s[20:23], {'s39' if s else '0'} offen offset:{128*kk}")
    a("s_cmp_lt_u32 s18, 4", "s_cselect_b64 exec, -1, 0")
    for s in range(2): a(f"buffer_load_dwordx4 {vr(X+16+4*s,4)}, v4, s[24:27], s38 offen offset:{64*s}")
    a("s_mov_b64 exec, -1")
    a("s_barrier")
    if opt.get("rot"):
        a(*(["s_memrealtime s[52:53]", "s_waitcnt lgkmcnt(0)", "s_lshr_b32 s52, s52, 12"] if opt.get("trot") else ["s_lshr_b32 s52, s0, 4"]), "s_mul_i32 s52, s52, 0x9e3779b1", f"s_lshr_b32 s52, s52, {32 - opt['rot']}", "s_lshl_b32 s52, s52, 22", f"s_add_u32 s53, s52, {WS_PR}",
          "s_add_u32 s28, s16, s53", "s_addc_u32 s29, s17, 0", "s_mov_b32 s32, s16", "s_mov_b32 s33, s17")
    else: a("s_mov_b32 s28, s16", "s_mov_b32 s29, s17", "s_mov_b32 s32, s16", "s_mov_b32 s33, s17")
    a("s_mov_b32 s44, 0x05040100", "s_mov_b32 s45, 0x07060302", f"s_mov_b32 s46, {NLOG2E:#x}", f"s_mov_b32 s47, {NLOG2E:#x}")
    a("s_waitcnt vmcnt(2)")
    st()
    for tau in range(4):
        for s in range(2):
            for rr in range(4):
                a(f"v_perm_b32 v{A+8*tau+4*s+rr}, v{W+16*s+2*(2*rr+1)+tau//2}, v{W+16*s+2*(2*rr)+tau//2}, s{44+tau%2}")
    for i in range(3):
        if i == 2:
            a(f"s_cmp_ge_u32 s18, 4", "s_cbranch_scc1 K1_PD", "s_waitcnt vmcnt(4)")
        for tau in range(4): a(mf16(D+4*tau, A+8*tau, X+8*i, "0"))
        for tau in range(4): a(mf16(D+4*tau, A+8*tau+4, X+8*i+4, D+4*tau))
        for k in range(0, 16, 2): a(f"v_pk_mul_f32 {vr(D+k,2)}, {vr(D+k,2)}, s[46:47]")
        for r in range(4):
            for h in range(2): a(f"v_cvt_pk_bf16_f32 v{O+2*r+h}, v{D+4*(2*h)+r}, v{D+4*(2*h+1)+r}")
        if "p" in opt.get("x1", ""): pass
        elif opt.get("pfull"): a("v_and_b32 v6, 63, v0", "v_lshlrev_b32 v6, 4, v6", f"buffer_store_dwordx4 {vr(O,4)}, v6, s[28:31], s{36+i} offen {opt.get('pflag', '')}", f"buffer_store_dwordx4 {vr(O+4,4)}, v6, s[28:31], s{36+i} offen offset:1024 {opt.get('pflag', '')}")
        else: a(f"buffer_store_dwordx4 {vr(O,4)}, v4, s[28:31], s{36+i} offen {opt.get('pflag', '')}", f"buffer_store_dwordx4 {vr(O+4,4)}, v4, s[28:31], s{36+i} offen offset:64 {opt.get('pflag', '')}")
    a.label("K1_PD")
    st()
    a("s_cmp_le_u32 s19, 24", "s_cbranch_scc1 K1_FS")
    a.label("K1_PE")
    if opt.get("cpf", 3) == 3:
        a("s_lshr_b32 s19, s2, 5", "s_add_u32 s19, s19, s3", "s_cmp_lg_u32 s19, 18", "s_cbranch_scc1 K1_NPF", "s_getpc_b64 s[48:49]")
        a.label("K1_PC")
        a("s_add_u32 s48, s48, mpnn_msg_kernel-K1_PC", "s_addc_u32 s49, s49, 0", "v_and_b32 v54, 63, v0", "v_lshlrev_b32 v54, 7, v54",
          "v_min_u32 v54, K2_END-mpnn_msg_kernel, v54", "global_load_dword v55, v54, s[48:49]")
        a.label("K1_NPF")
    co_addr()
    a("s_branch K1_B1")
    a.label("K1_FL")
    a("s_cmp_eq_u32 s19, 8", "s_cbranch_scc1 K1_FA", "s_cmp_gt_u32 s19, 8", "s_cbranch_scc1 K1_FU")
    a("s_lshr_b32 s42, s19, 1", "s_and_b32 s43, s19, 1", "s_lshl_b32 s42, s42, 5", "s_lshl_b32 s43, s43, 12", "s_add_u32 s43, s43, s42", "s_add_u32 s43, s43, 8192")
    for kk in range(8): a(f"buffer_load_ushort v{FR+kk}, v5, s[20:23], s43 offen offset:{128*kk}")
    a("s_branch K1_FLR")
    a.label("K1_FU")
    a("s_mov_b32 s48, s14", "s_mov_b32 s49, s15")
    a("s_sub_u32 s43, s19, 9", "s_lshr_b32 s42, s43, 2", "s_and_b32 s43, s43, 3", "s_lshl_b32 s42, s42, 5", "s_lshl_b32 s43, s43, 12", "s_add_u32 s43, s43, s42")
    for kk in range(8): a(f"buffer_load_ushort v{FR+kk}, v5, s[48:51], s43 offen offset:{128*kk}")
    a("s_branch K1_FLR")
    a.label("K1_FA")
    a("v_bfe_u32 v5, v0, 3, 2", "v_and_b32 v6, 3, v0", "v_lshl_add_u32 v5, v5, 2, v6", "v_lshlrev_b32 v5, 1, v5", "s_movk_i32 s43, 16384")
    for c in range(4): a(f"buffer_load_ushort v{FR+c}, v5, s[20:23], s43 offen offset:{32*c}")
    a("s_branch K1_FLR")
    a.label("K1_FS")
    a("v_and_b32 v5, 63, v0", "v_lshlrev_b32 v5, 4, v5", "s_lshl_b32 s36, s19, 10", f"s_add_u32 s36, s36, {WS_WF}")
    a("s_cmp_eq_u32 s19, 8", "s_cbranch_scc1 K1_AE")
    for rr in range(4): a(f"v_lshl_or_b32 v{W+rr}, v{FR+2*rr+1}, 16, v{FR+2*rr}")
    a(f"buffer_store_dwordx4 {vr(W,4)}, v5, s[32:35], s36 offen", "s_branch K1_PE")
    a.label("K1_AE")
    if opt.get("rot"): a("v_mov_b32 v2, s52", f"s_mov_b32 s53, {WS_HDR}", "buffer_store_dword v2, v5, s[32:35], s53 offen")
    a("v_bfe_u32 v2, v0, 2, 1", "v_bfe_u32 v3, v0, 5, 1", "v_cmp_eq_u32 vcc, v2, v3")
    for c in range(4):
        a(f"v_lshlrev_b32 v{FR+c}, 16, v{FR+c}", f"v_mul_f32 v{FR+c}, s46, v{FR+c}", f"v_cvt_pk_bf16_f32 v{FR+c}, 0, v{FR+c}", f"v_cndmask_b32 v{W+c}, 0, v{FR+c}, vcc")
    a(f"buffer_store_dwordx4 {vr(W,4)}, v5, s[32:35], s36 offen", "s_branch K1_PE")
    return a.lines

L_AGB = 0; ASTR = 144
L_QS = L_AGB + 112 * ASTR; QSTR = 272
L_CTR = L_QS + 112 * QSTR; L_OVC = L_CTR + 448; L_FLG = L_CTR + 452; L_CT2 = L_CTR + 512; L_SLOT = L_CTR + 1024; L_OVL = L_SLOT + 512
L_XS = L_OVL + 1024; L_WF = L_XS + 14336
L_ELL = L_WF + 25600; ESTR = 516; EROWS = 83
K2_LDS = L_ELL + 3 * 768 * 16 + 6144
assert K2_LDS >= L_ELL + EROWS * ESTR and L_ELL % 16 == 0 and L_XS % 256 == 0 and L_CTR % 256 == 0 and L_ELL + 512 < (1 << 17), (L_XS, L_ELL)
ZCOL = 112 * 4; DUMP = L_ELL + CAP * ESTR + 400; HCOL = 116 * 4

def gen_k2(opt):
    a = Asm(); st = Stamps(a, opt.get("stamp"), 78, 1, 12)
    perm = opt.get("perm", [0, 1, 2, 3, 10, 6, 5, 4, 11, 9, 8, 7])
    RG = opt.get("ring", 2); small = opt.get("small", 1); dp = opt.get("dprio", [8, 4, 2])
    Q, P, Z0, Z1, NN, DD, EX, BE, AL, AH, AE, IX, VI, VE, LEN, AGA, MFL, OOF, ARD, ARX = \
        8, 24, 56, 72, 88, 104, 120, 136, 140, 144, 148, 152, 154, 155, 159, 160, 161, 162, 163, 164
    WU = BE
    R = Z0
    AD = NN
    TG = DD
    W2 = Q; X = P
    SP, PP5, EH, QC, AC = DD + 8, DD + 9, DD + 10, DD + 11, DD + 12
    SWS, SPT, SX, SO = 24, 28, 32, 36
    MK = 40
    BK = "s76"
    ws = f"s[{SWS}:{SWS+3}]"
    a.label("mpnn_msg_kernel")
    a("s_cmp_ge_u32 s2, 256", "s_cbranch_scc1 K2_END")
    st.early()
    a("s_load_dwordx2 s[20:21], s[0:1], 64", "s_load_dwordx16 s[4:19], s[0:1], 0")
    a("v_lshrrev_b32 v1, 6, v0", "v_lshlrev_b32 v2, 4, v0", "v_readfirstlane_b32 s3, v1")
    for i in range(4): a(f"v_mov_b32 v{Q+i}, 0")
    a(f"v_add_u32 v4, {L_ELL}, v2")
    a("v_and_b32 v5, 255, v0", "v_lshlrev_b32 v5, 2, v5", f"v_add_u32 v6, {L_ELL}, v5", f"v_cmp_gt_u32 vcc, {NB*4}, v5")
    a(f"s_and_b32 {BK}, s2, 7", f"s_lshl_b32 {BK}, {BK}, 5", "s_lshr_b32 s64, s2, 3", f"s_add_u32 {BK}, {BK}, s64")
    a("v_cndmask_b32 v6, 0, v6, vcc", f"ds_write_b32 v5, v6 offset:{L_CTR}")
    for i in range(3): a(f"ds_write_b128 v4, {vr(Q,4)} offset:{12288*i}")
    a(f"v_lshlrev_b32 v5, 3, v0", f"v_add_u32 v5, {L_ELL + 3*12288}, v5", f"ds_write_b64 v5, {vr(Q,2)}")
    a(f"s_lshl_b32 s64, {BK}, 14", f"s_lshl_b32 s62, {BK}, 15", f"s_add_u32 s62, s62, {WS_RB}", f"s_add_u32 s64, s64, {WS_RA - 4096}", "s_add_u32 s65, s64, 8192",
      f"s_lshl_b32 s66, {BK}, 13", f"s_and_b32 s67, {BK}, 16", "s_add_u32 s66, s66, s67", f"s_add_u32 s66, s66, {WS_DA}", "s_xor_b32 s60, s66, 16",
      "s_sub_u32 s66, s66, 2048", "s_add_u32 s67, s66, 4096")
    a(f"s_mul_i32 s69, {BK}, {NB}", f"s_sub_u32 s70, {N}, s69", f"s_min_u32 s70, s70, {NB}", "s_lshl_b32 s70, s70, 7", "s_lshl_b32 s71, s69, 7")
    a("s_and_b32 s72, s3, 3", "s_lshr_b32 s73, s3, 2")
    a(f"s_mov_b32 s{SWS+2}, {WS_END}", f"s_mov_b32 s{SWS+3}, 0x20000", f"s_mov_b32 s{SX+2}, s70", f"s_mov_b32 s{SX+3}, 0x20000")
    a(f"v_and_b32 v4, 3, v0", "v_and_b32 v6, 63, v0", "v_lshlrev_b32 v6, 4, v6")
    a("v_lshlrev_b32 v3, 5, v0", "v_lshrrev_b32 v5, 2, v0", "v_lshlrev_b32 v5, 5, v5", "v_lshl_add_u32 v5, v4, 2, v5")
    BS = opt.get("bs", 0); BP = opt.get("bp", "a")
    if BS: a("v_lshlrev_b32 v166, 3, v6", "s_andn2_b32 s77, s2, 7", "s_add_u32 s77, s77, s3", "s_sub_u32 s77, s77, 4", f"s_mul_i32 s77, s77, {BS*128}", "s_and_b32 s61, s2, 7", f"s_mul_i32 s61, s61, {(25000 - 256*BS)//7*128 if opt.get('xo', 1) else 0}", "s_add_u32 s77, s77, s61")
    def bulk(): a(f"s_mov_b64 exec, {(1 << BS) - 1 if BS < 64 else -1:#x}" if BS <= 32 else f"s_mov_b32 exec_hi, {(1 << (BS-32)) - 1:#x}", "buffer_load_dword v167, v166, s[24:27], s77 offen", "s_mov_b64 exec, -1")
    a("s_cmp_eq_u32 s73, 0")
    a("s_waitcnt lgkmcnt(0)")
    st()
    if opt.get("x1"): a("s_branch K2_FIN")
    a(f"s_mov_b32 s{SWS}, s20", f"s_mov_b32 s{SWS+1}, s21")
    if opt.get("rot"): a(f"s_mov_b32 s23, {WS_HDR}", "s_load_dword s77, s[20:21], s23")
    a("s_cbranch_scc0 K2_A1")
    a(f"buffer_load_dwordx4 {vr(TG,4)}, v3, {ws}, s60 offen {opt.get('kflag', '')}")
    a(f"s_add_u32 s{SX}, s4, s71", f"s_addc_u32 s{SX+1}, s5, 0")
    a("v_bfe_u32 v7, v0, 4, 2", "v_lshlrev_b32 v7, 4, v7", "v_xor_b32 v7, v7, v6", "v_xor_b32 v5, 64, v7",
      "s_lshl_b32 s60, s3, 11", f"s_add_u32 s61, s60, {L_XS}", f"s_add_u32 m0, s60, {L_WF}", f"s_add_u32 s63, s60, {WS_WF}")
    a("s_barrier")
    sx = f"s[{SX}:{SX+3}]"
    a(f"buffer_load_dwordx4 v6, {ws}, s63 offen lds", f"buffer_load_dwordx4 v6, {ws}, s63 offen offset:1024 lds", "s_mov_b32 m0, s61", "v_lshlrev_b32 v3, 7, v0")
    a(f"buffer_load_dwordx4 v7, {sx}, s60 offen lds", f"buffer_load_dwordx4 v5, {sx}, s60 offen offset:1024 lds",
      "s_add_u32 m0, s61, 8192", "s_add_u32 s60, s60, 8192", "s_cmp_eq_u32 s3, 3", "s_cbranch_scc1 K2_A3",
      f"buffer_load_dwordx4 v7, {sx}, s60 offen lds", f"buffer_load_dwordx4 v5, {sx}, s60 offen offset:1024 lds")
    a("s_branch K2_A2")
    a.label("K2_A3")
    a(f"s_mov_b32 m0, {L_WF + 8192}", f"s_mov_b32 s60, {WS_WF + 8192}", f"buffer_load_dwordx4 v6, {ws}, s60 offen lds", "s_mov_b64 exec, 0", f"buffer_load_dwordx4 v6, {ws}, s60 offen lds", "s_mov_b64 exec, -1")
    a("s_branch K2_A2")
    a.label("K2_A1")
    a(f"buffer_load_dword v{TG}, v5, {ws}, s66 offen {opt.get('kflag', '')}", f"buffer_load_dword v{TG+1}, v5, {ws}, s67 offen {opt.get('kflag', '')}")
    a("s_barrier")
    a(f"buffer_load_dwordx4 {vr(R,4)}, v2, {ws}, s64 offen {opt.get('kflag', '')}", f"buffer_load_dwordx4 {vr(R+4,4)}, v2, {ws}, s65 offen {opt.get('kflag', '')}")
    if BS and BP == "a": bulk()
    a.label("K2_A2")
    a("s_lshl_b32 s74, s73, 11", f"s_add_u32 s75, s74, {3*2048}", f"s_add_u32 s22, s74, {6*2048}")
    srd(a, SPT, 20, 21, N, stride=128)
    a(f"s_add_u32 s{SO}, s16, s71", f"s_addc_u32 s{SO+1}, s17, 0", f"s_mov_b32 s{SO+2}, s70", f"s_mov_b32 s{SO+3}, 0x20000")
    T = Z1
    if small:
        a(f"v_and_b32 v{T}, 1, v0", f"v_lshlrev_b32 v{T}, 4, v{T}", f"v_mov_b32 v{T+1}, 0x3f80", f"v_lshlrev_b32 v{T}, v{T}, v{T+1}", "v_cmp_gt_u32 vcc, 2, v4",
          f"v_cndmask_b32 v{AL}, 0, v{T}, vcc", f"v_cndmask_b32 v{AL+1}, v{T}, 0, vcc")
    else:
        a(f"v_and_b32 v{T}, 1, v0", f"v_lshlrev_b32 v{T}, 4, v{T}", f"v_mov_b32 v{T+1}, 0x3f80", f"v_lshlrev_b32 v{T}, v{T}, v{T+1}",
          f"v_bfe_u32 v{T+1}, v0, 3, 2", f"v_bfe_u32 v{T+2}, v0, 1, 1", f"v_lshl_add_u32 v{T+1}, v{T+1}, 1, v{T+2}",
          f"v_bfe_u32 v{T+2}, v0, 2, 1", f"v_bfe_u32 v{T+3}, v0, 5, 1", f"v_xor_b32 v{T+2}, v{T+2}, v{T+3}", f"v_lshl_add_u32 v{T+1}, v{T+2}, 3, v{T+1}")
        for k in range(8): a(f"v_cmp_eq_u32 s[{MK+2*k}:{MK+2*k+1}], {k}, v{T+1}")
        for k in range(8): a(f"v_cndmask_b32 v{AL+k}, 0, v{T}, s[{MK+2*k}:{MK+2*k+1}]")
    J, QQ = T, T + 1
    a(f"v_and_b32 v{J}, 15, v0", f"v_bfe_u32 v{QQ}, v0, 4, 2", f"v_lshlrev_b32 v{OOF}, 7, v{J}",
      f"v_lshrrev_b32 v{ARX}, 1, v{J}", f"v_xor_b32 v{ARX}, v{ARX}, v{QQ}", f"v_lshl_add_u32 v{ARX}, v{ARX}, 4, v{OOF}",
      f"s_lshl_b32 s64, s72, 5", f"v_lshl_add_u32 v{OOF}, v{QQ}, 3, v{OOF}", f"v_add_u32 v{OOF}, s64, v{OOF}",
      f"s_mul_i32 s64, s73, {64*QSTR}", f"s_lshl_b32 s65, s72, 6", "s_add_u32 s64, s64, s65", f"s_add_u32 s64, s64, {L_QS - 64*QSTR}",
      f"v_mul_u32_u24 v1, {QSTR}, v{J}", f"v_lshl_add_u32 v1, v{QQ}, 4, v1", "v_add_u32 v1, s64, v1",
      f"s_lshl_b32 s64, s73, 13", f"s_add_u32 s64, s64, {L_XS - 8192}", f"v_add_u32 v2, s64, v{ARX}", "v_xor_b32 v7, 64, v2",
      f"s_lshl_b32 s64, s73, 4", f"v_add_u32 v{J}, s64, v{J}", f"v_mul_u32_u24 v{ARD}, {ASTR}, v{J}", f"v_lshl_add_u32 v{ARD}, v{QQ}, 4, v{ARD}",
      f"s_add_u32 s64, s74, {L_XS}", f"v_add_u32 v{ARX}, s64, v{ARX}")
    a(f"v_lshlrev_b32 v{IX+1}, 4, v4")
    a(f"v_mov_b32 v5, {ESTR}", f"s_movk_i32 s64, {NB*4}", f"s_mov_b32 s65, {DUMP}", "s_mov_b32 s68, 0", "s_mov_b32 s71, 0", "s_mov_b32 s70, 0")
    pk = sum(p << (4 * w) for w, p in enumerate(perm))
    a(f"s_mov_b32 s66, {pk & 0xffffffff:#x}", f"s_mov_b32 s67, {pk >> 32:#x}", "s_lshl_b32 s23, s3, 2", f"s_lshr_b64 s[66:67], s[66:67], s23",
      f"s_and_b32 s23, s66, 15", "s_lshl_b32 s23, s23, 4")
    a(f"v_bfe_u32 v{BE}, v0, 2, 4", f"v_add_u32 v{BE}, s23, v{BE}")
    a(f"v_and_b32 v{BE+2}, 1, v{BE}", f"v_cmp_gt_u32 vcc, 4, v{BE}", f"v_cmp_eq_u32 s[66:67], 0, v{BE+2}",
      f"v_lshlrev_b32 v{BE+1}, 1, v{BE}", f"v_and_b32 v{BE+1}, 0x1fc, v{BE+1}", f"v_subrev_u32 v{BE+1}, 8, v{BE+1}", f"v_lshlrev_b32 v{BE}, 2, v{BE}", f"v_add_u32 v{BE}, {(NB-4)*4}, v{BE}",
      f"s_or_b64 s[58:59], vcc, s[66:67]", f"s_andn2_b64 s[66:67], s[66:67], vcc",
      f"v_cndmask_b32 v{BE+1}, v{BE+1}, v{BE}, vcc",
      f"v_cndmask_b32 v{SP}, 1, 0, vcc", f"v_cndmask_b32 v{PP5}, v5, 0, s[58:59]", f"v_cndmask_b32 v{EH}, 0, 1, s[66:67]",
      f"v_cndmask_b32 v{MFL}, 0, 1.0, s[66:67]", f"v_mov_b32 v{BE+3}, {L_ELL + ZCOL}",
      f"v_lshlrev_b32 v{QC}, 6, v4", f"v_add_u32 v{QC}, {(L_QS - 68*L_ELL) & 0xffffffff:#x}, v{QC}", f"v_lshlrev_b32 v{AC}, 5, v4", f"v_add_u32 v{AC}, {(L_AGB - 36*L_ELL) & 0xffffffff:#x}, v{AC}")
    a(f"s_mov_b32 s66, {NLOG2E:#x}", f"s_mov_b32 s67, {NLOG2E:#x}")
    T = EX; IP = EX + 4
    for k in range(RG + 1): a(f"v_mov_b32 v{IP+2*k+1}, v{IX+1}")
    a("s_cmp_eq_u32 s73, 0", "s_cbranch_scc1 K2_CT")
    def a_round(ad, l, mk):
        for k in range(4): a(f"v_lshlrev_b32_sdwa v{ad+k}, 2, v{l} dst_sel:DWORD dst_unused:UNUSED_PAD src0_sel:DWORD src1_sel:BYTE_{k}")
        for k in range(4): a(f"v_cmp_gt_u32 s[{mk+2*k}:{mk+2*k+1}], s64, v{ad+k}")
        for k in range(4): a(f"s_mov_b64 exec, s[{mk+2*k}:{mk+2*k+1}]", f"ds_add_rtn_u32 v{ad+k}, v{ad+k}, v5 offset:{L_CTR}")
        a("s_mov_b64 exec, -1")
    stk = st.k
    ellpre = 0
    def ellw():
        for k in range(8):
            if k % 4 == 0: a(f"s_waitcnt vmcnt({1 - k//4 + (1 if BS else 0)})")
            if k == 4 and st.on == 1: a("s_memrealtime s[100:101]")
            a(f"v_min_u32 v{AD+k}, s65, v{AD+k}", f"ds_write_b32 v{AD+k}, v{R+k}")
    a(f"s_lshl_b32 s23, s72, 11", f"s_add_u32 s23, s23, {L_WF}", f"v_add_u32 v3, s23, v6", f"v_mov_b32 v{Z1+4}, 0")
    if BS and BP == "a2": bulk()
    a(f"s_waitcnt vmcnt({2 + (1 if BS and BP != 'b' else 0)})")
    st()
    if BS and BP == "b": bulk()
    a_round(AD, TG, MK); a_round(AD + 4, TG + 1, MK + 8)
    a("s_waitcnt lgkmcnt(0)")
    if ellpre: ellw()
    a("s_barrier")
    if opt.get("rot"): a(f"s_and_b32 s77, s77, {((1 << opt['rot']) - 1) << 22:#x}", f"s_add_u32 s77, s77, {WS_PR}", f"s_add_u32 s{SPT}, s20, s77", f"s_addc_u32 s{SPT+1}, s21, 0", f"s_or_b32 s{SPT+1}, s{SPT+1}, {128 << 16:#x}")
    st()
    a.label("K2_AB1")
    T = Z1 + 4
    a(f"ds_read_b32 v{T+1}, v{T} offset:{L_OVC}")
    if not ellpre: ellw()
    a("s_waitcnt lgkmcnt(4)", f"v_readfirstlane_b32 s23, v{T+1}")
    a(f"ds_read_b128 {vr(W2,4)}, v3", f"ds_read_b128 {vr(W2+4,4)}, v3 offset:1024")
    for i in range(4): a(f"ds_read_b128 {vr(X+8*i,4)}, v2 offset:{2048*i}", f"ds_read_b128 {vr(X+8*i+4,4)}, v7 offset:{2048*i}")
    a("s_andn2_b32 s23, s23, s68", "s_cbranch_scc1 K2_RESCAN")
    QT = Z1; T = EX
    def gather(slot, ix):
        p = P + 8 * slot
        return [f"buffer_load_dwordx4 {vr(p,4)}, {vr(ix,2)}, s[{SPT}:{SPT+3}], 0 idxen offen",
                f"buffer_load_dwordx4 {vr(p+4,4)}, {vr(ix,2)}, s[{SPT}:{SPT+3}], 0 idxen offen offset:64"]
    stb = st.k
    for r in range(4): a(f"v_cmp_eq_u32 s[{MK+4+2*r}:{MK+5+2*r}], {r}, v4")
    a(f"v_add_u32 v7, {L_WF + 8192}, v6")
    if st.on == 1: a("s_memrealtime s[96:97]", "s_waitcnt lgkmcnt(0)", "s_mov_b32 s97, s100")
    a("s_waitcnt lgkmcnt(%d)" % (0 if st.on == 1 else 10), "s_barrier")
    st()
    a(f"ds_read_b32 v{T}, v{BE+1} offset:{L_SLOT}", f"ds_read_b128 {vr(AE,4)}, v7", "s_waitcnt lgkmcnt(2)")
    for i in range(4): a(mf16(QT+4*i, W2, X+8*i, "0"))
    for i in range(4): a(mf16(QT+4*i, W2+4, X+8*i+4, QT+4*i))
    def slotdec():
        a("s_waitcnt lgkmcnt(1)")
        a(f"v_lshrrev_b32 v{LEN}, 17, v{T}", f"v_add_u32 v{T+1}, v{LEN}, v{SP}", f"v_and_b32 v{T}, 0x1ffff, v{T}", f"v_lshrrev_b32 v{T+1}, 1, v{T+1}", f"v_mad_u32_u24 v{VI}, v{T+1}, v{PP5}, v{T}")
        a(f"ds_read_u16 v{IP}, v{VI}")
    slotdec()
    for i in range(4):
        a(f"v_pk_mul_f32 {vr(QT+4*i,2)}, {vr(QT+4*i,2)}, s[66:67]", f"v_pk_mul_f32 {vr(QT+4*i+2,2)}, {vr(QT+4*i+2,2)}, s[66:67]")
        if i == 3: a(f"s_waitcnt lgkmcnt(3)", *gather(0, IP), "s_cmp_eq_u32 s73, 2", "s_cbranch_scc1 K2_NQ2")
        a(f"ds_write_b128 v1, {vr(QT+4*i,4)} offset:{16*QSTR*i}")
    a("s_branch K2_NQ2")
    a.label("K2_CT")
    st.k = stk
    C0, C1, H0, H1, T0, T1, HH, PS, L4, B0, B1_, LOB, HIB, HA, FOUR = [Q + i for i in range(15)]
    a(f"v_mov_b32 v{Z1+4}, {MARK:#x}", "s_lshl_b32 s60, s3, 12", f"s_add_u32 m0, s60, {L_WF + 9*1024}", f"s_add_u32 s60, s60, {WS_WF + 9*1024}")
    a(f"v_lshlrev_b32 v{L4}, 2, v0", f"v_add_u32 v{B0}, {L_ELL}, v{L4}", f"v_add_u32 v{B1_}, {L_ELL + 256}, v{L4}",
      f"v_mov_b32 v{LOB}, {(CAP-63)*ESTR}", f"v_mov_b32 v{HIB}, {CAP*ESTR}", f"v_mul_u32_u24 v{HA}, {ESTR}, v0", f"v_sub_u32 v{HA}, {L_ELL + HCOL + CAP*ESTR}, v{HA}", f"v_mov_b32 v{FOUR}, 4",
      f"s_mov_b32 s61, {L_ELL + HCOL}")
    AD2 = P + 8; AD3 = P + 24
    for k in range(16): a(f"v_mov_b32 v{AD+k}, -1")
    a("s_waitcnt vmcnt(6)")
    st()
    for j in range(4): a(f"v_cmp_ne_u32 s[{MK+2*j}:{MK+2*j+1}], -1, v{TG+j}")
    a(f"v_cmp_eq_u32 vcc, v{Z1+4}, v{TG}")
    for j in range(4): a(f"s_mov_b64 exec, s[{MK+2*j}:{MK+2*j+1}]", f"buffer_load_dwordx4 {vr(R+4*j,4)}, v3, {ws}, s62 offen offset:{16*j} {opt.get('kflag', '')}")
    a("s_mov_b64 exec, -1")
    for j in range(4):
        a(f"s_cmp_eq_u64 s[{MK+2*j}:{MK+2*j+1}], 0", f"s_cbranch_scc1 K2_TS{j}")
        if j == 3: a("s_waitcnt lgkmcnt(8)")
        for k in range(4): a(f"v_lshlrev_b32_sdwa v{AD2+4*j+k}, 2, v{TG+j} dst_sel:DWORD dst_unused:UNUSED_PAD src0_sel:DWORD src1_sel:BYTE_{k}")
        for k in range(4): a(f"v_cmp_gt_u32 s[{MK+8+2*k}:{MK+9+2*k}], s64, v{AD2+4*j+k}")
        for k in range(4): a(f"s_mov_b64 exec, s[{MK+8+2*k}:{MK+9+2*k}]", f"ds_add_rtn_u32 v{AD+4*j+k}, v{AD2+4*j+k}, v5 offset:{L_CT2}")
        a("s_mov_b64 exec, -1", f"s_bitset1_b32 s70, {j}")
        a.label(f"K2_TS{j}")
    if opt.get("nowu"): a("s_mov_b64 exec, 0")
    for k in range(4): a(f"buffer_load_dwordx4 v6, {ws}, s60 offen offset:{1024*k} lds")
    if opt.get("nowu"): a("s_mov_b64 exec, -1")
    a("s_cbranch_vccnz K2_MARK")
    a.label("K2_MR")
    a("s_waitcnt lgkmcnt(0)")
    if opt.get("rot"): a(f"s_and_b32 s77, s77, {((1 << opt['rot']) - 1) << 22:#x}", f"s_add_u32 s77, s77, {WS_PR}", f"s_add_u32 s{SPT}, s20, s77", f"s_addc_u32 s{SPT+1}, s21, 0", f"s_or_b32 s{SPT+1}, s{SPT+1}, {128 << 16:#x}")
    a("s_waitcnt vmcnt(8)", "s_barrier")
    st()
    a.label("K2_AB1T")
    a(f"v_and_b32 v{T0}, 0xfc, v{L4}", f"ds_read2st64_b32 {vr(C0,2)}, v{T0} offset0:{L_CTR//256} offset1:{L_CTR//256+1}", f"ds_read2st64_b32 {vr(H0,2)}, v{T0} offset0:{L_CTR//256+2} offset1:{L_CTR//256+3}", "s_setprio 3", "s_mov_b32 s56, -1", "s_mov_b32 s57, 3")
    a("s_waitcnt lgkmcnt(0)", f"v_readlane_b32 s23, v{C1}, 48", f"v_sub_u32 v{C0}, v{C0}, v{B0}", f"v_sub_u32 v{C1}, v{C1}, v{B1_}", f"v_add_u32 v{C0}, v{C0}, v{H0}", f"v_add_u32 v{C1}, v{C1}, v{H1}",
      "s_andn2_b32 s23, s23, s68", "s_cbranch_scc1 K2_RESCAN", "s_cmp_lg_u32 s3, 0", "s_cbranch_scc1 K2_TW")
    for c, h, t in ((C0, H0, T0), (C1, H1, T1)):
        if c == C1: a("s_mov_b64 exec, s[56:57]")
        a(f"v_med3_u32 v{h}, v{c}, v{LOB}, v{HIB}", f"v_add_u32 v{t}, s61, v{h}", f"ds_add_rtn_u32 v{t}, v{t}, v{FOUR}")
    a(f"v_cmp_gt_u32 s[{MK}:{MK+1}], v{C1}, v{HIB}", "s_mov_b64 exec, -1", f"ds_read_b32 v{HH}, v{HA}", f"v_cmp_gt_u32 vcc, v{C0}, v{HIB}")
    for c, h, b in ((C0, H0, B0), (C1, H1, B1_)):
        a(f"v_min_u32 v{c}, v{c}, v{HIB}", f"v_lshrrev_b32 v{c}, 2, v{c}", f"v_mul_u32_u24 v{c}, 509, v{c}", f"v_lshrrev_b32 v{c}, 16, v{c}",
          f"v_max_u32 v{h}, {CAP-63}, v{c}", f"v_sub_u32 v{h}, {CAP}, v{h}", f"v_lshlrev_b32 v{h}, 2, v{h}", f"v_lshl_or_b32 v{c}, v{c}, 17, v{b}")
    a(f"s_or_b64 vcc, vcc, s[{MK}:{MK+1}]", "s_waitcnt lgkmcnt(0)")
    a(f"v_add_u32_dpp v{PS}, v{HH}, v{HH} row_shr:1 row_mask:0xf bank_mask:0xf bound_ctrl:0")
    for k in (2, 4, 8): a(f"v_add_u32_dpp v{PS}, v{PS}, v{PS} row_shr:{k} row_mask:0xf bank_mask:0xf bound_ctrl:0")
    a(f"v_add_u32_dpp v{PS}, v{PS}, v{PS} row_bcast:15 row_mask:0xa bank_mask:0xf", f"v_add_u32_dpp v{PS}, v{PS}, v{PS} row_bcast:31 row_mask:0xc bank_mask:0xf")
    a(f"v_sub_u32 v{PS}, v{PS}, v{HH}", f"ds_bpermute_b32 v{H0}, v{H0}, v{PS}", f"ds_bpermute_b32 v{H1}, v{H1}, v{PS}")
    a(f"v_mov_b32 v{HH}, 0", "s_waitcnt lgkmcnt(1)", f"v_add_u32 v{H0}, v{H0}, v{T0}", f"ds_write_b32 v{H0}, v{C0} offset:{L_SLOT}",
      "s_waitcnt lgkmcnt(1)", "s_mov_b64 exec, s[56:57]", f"v_add_u32 v{H1}, v{H1}, v{T1}", f"ds_write_b32 v{H1}, v{C1} offset:{L_SLOT}", "s_mov_b64 exec, -1")
    a("s_cbranch_vccz K2_TW", f"ds_write_b32 v{HH}, v5 offset:{L_FLG}")
    a.label("K2_TW")
    a.label("K2_CWR")
    for r in range(4): a(f"v_cmp_eq_u32 s[{MK+4+2*r}:{MK+5+2*r}], {r}, v4")
    T = EX
    a(f"v_add_u32 v7, {L_WF + 8192}, v6")
    if st.on == 1: a("s_waitcnt lgkmcnt(0)", "s_memrealtime s[96:97]")
    a("s_waitcnt lgkmcnt(0)", "s_barrier")
    st()
    a(f"ds_read_b32 v{T}, v{BE+1} offset:{L_SLOT}", f"ds_read_b128 {vr(AE,4)}, v7")
    slotdec()
    a(f"s_waitcnt lgkmcnt(0)", *gather(0, IP))
    for j in range(4):
        a(f"s_bitcmp0_b32 s70, {j}", f"s_cbranch_scc1 K2_TR{j}")
        for k in range(4): a(f"ds_read_b32 v{AD3+k}, v{AD2+4*j+k} offset:{L_CTR}")
        for k in range(4): a(f"s_waitcnt lgkmcnt({3-k})", f"v_add_u32 v{AD+4*j+k}, v{AD+4*j+k}, v{AD3+k} clamp", f"v_min_u32 v{AD+4*j+k}, s65, v{AD+4*j+k}")
        a.label(f"K2_TR{j}")
    a("s_waitcnt vmcnt(6)")
    if st.on == 1: a("s_memrealtime s[100:101]", "s_waitcnt lgkmcnt(0)", "s_mov_b32 s97, s100")
    for j in range(4):
        a(f"s_bitcmp0_b32 s70, {j}", f"s_cbranch_scc1 K2_TW{j}")
        if j == 3: a("s_waitcnt lgkmcnt(4)")
        for k in range(4): a(f"ds_write_b32 v{AD+4*j+k}, v{R+4*j+k}")
        a.label(f"K2_TW{j}")
    a.label("K2_NQ2")
    def rde(t): return [f"ds_read_b32 v{BE+r}, v{VE+r} offset:{t*ESTR}" for r in range(4)]
    a(f"v_mov_b32 v{T+1}, 68", f"v_mad_u32_u24 v{T+2}, v{T}, v{T+1}, v{QC}")
    for r in range(4): a(f"v_cndmask_b32 v{VE+r}, v{BE+3}, v{VI}, s[{MK+4+2*r}:{MK+5+2*r}]")
    for i in range(16): a(f"v_mov_b32 v{NN+i}, 0")
    a("s_waitcnt vmcnt(2) lgkmcnt(0)", "s_barrier")
    a(f"ds_read_u16 v{T+3}, v{VI}")
    for k in range(1, RG + 1): a(f"ds_read_u16 v{IP+2*k}, v{VI} offset:{k*ESTR}")
    for k in range(4): a(f"ds_read_b128 {vr(Q+4*k,4)}, v{T+2} offset:{16*k}")
    a(*rde(0), f"ds_read_u16 v{IX}, v{VI} offset:{(RG+1)*ESTR}")
    a(f"s_waitcnt lgkmcnt({RG + 8})", f"v_cmp_ne_u32 vcc, v{T+3}, v{IP}", "s_cbranch_vccnz K2_G0R")
    a.label("K2_G0D")
    a(*gather(1, IP + 2))
    a(f"v_add_u32 v{LEN}, v{LEN}, v{EH}", f"v_lshrrev_b32 v{LEN}, v{SP}, v{LEN}", f"v_mad_u32_u24 v{AGA}, v{T}, 36, v{AC}")
    a(f"v_max_u32_dpp v{T+1}, v{LEN}, v{LEN} row_shr:4 row_mask:0xf bank_mask:0xf bound_ctrl:0")
    for i in range(8): a(f"v_mov_b32 v{DD+i}, 1.0")
    a(f"v_max_u32_dpp v{T+1}, v{T+1}, v{T+1} row_shr:8 row_mask:0xf bank_mask:0xf bound_ctrl:0")
    for i in range(8, 16): a(f"v_mov_b32 v{DD+i}, 1.0")
    a(f"v_readlane_b32 s69, v{T+1}, 15", f"v_readlane_b32 s70, v{T+1}, 31", f"v_readlane_b32 s64, v{T+1}, 47", f"v_readlane_b32 s65, v{T+1}, 63",
      "s_max_u32 s69, s69, s70", "s_max_u32 s64, s64, s65", "s_max_u32 s69, s69, s64", "s_mov_b32 s70, 0")
    a(f"s_lshl_b32 s23, s72, 12", f"s_add_u32 s23, s23, 1024", "v_add_u32 v7, s23, v7")
    a("s_cmp_eq_u32 s69, 0", "s_cbranch_scc1 K2_DONE0")
    a(f"s_waitcnt vmcnt(2) lgkmcnt(0)")
    st()
    if st.on == 1: a("s_memtime s[98:99]", "s_waitcnt lgkmcnt(0)")
    for k in range(2, RG): a(*gather(k, IP + 2*k))
    def sm(z, b, c): return f"v_mfma_f32_4x4x4_16b_bf16 {vr(z,4)}, {vr(AL,2)}, {vr(b,2)}, {vr(c,4)}"
    if small: a(*[sm(Z0+4*i, P+2*i, Q+4*i) for i in range(4)], mf32(Z0, AE, BE, Z0))
    else: a(mf32(Z0, AE, BE, Q), mf32(Z0, AL, P, Z0), mf32(Z0, AH, P + 4, Z0))
    a(*gather(0, IP + 2*RG), *rde(1), "s_nop 3")
    U = max(2, RG)
    a(f"s_branch K2_PRI{U-1}")
    a(".p2align 6")
    for u in range(U):
        a.label(f"K2_L{u}")
        zc = (Z0, Z1)[u % 2]; zn = (Z1, Z0)[u % 2]; p = P + 8 * ((u + 1) % RG)
        ex = [f"v_exp_f32 v{EX+i}, v{zc+i}" for i in range(16)]
        a(f"s_waitcnt vmcnt({2*RG-2}) lgkmcnt(0)")
        if small:
            s4 = [sm(zn+4*i, p+2*i, Q+4*i) for i in range(4)]
            a(s4[0], ex[0], s4[1], ex[1], s4[2], ex[2], s4[3], *ex[3:8], mf32(zn, AE, BE, zn), *ex[8:16])
        else: a(mf32(zn, AE, BE, Q), *ex[0:4], mf32(zn, AL, p, zn), *ex[4:8], mf32(zn, AH, p + 4, zn), *ex[8:16])
        a(*gather((u + 1) % RG, IX), *rde(u + 2), f"ds_read_u16 v{IX}, v{VI} offset:{(u+RG+2)*ESTR}")
        a(f"v_cmpx_lt_u32 vcc, s70, v{LEN}")
        for i in range(0, 16, 2): a(f"v_pk_fma_f32 {vr(NN+i,2)}, {vr(NN+i,2)}, {vr(EX+i,2)}, {vr(NN+i,2)}")
        for i in range(0, 16, 2): a(f"v_pk_fma_f32 {vr(NN+i,2)}, {vr(zc+i,2)}, {vr(DD+i,2)}, {vr(NN+i,2)}")
        for i in range(0, 16, 2): a(f"v_pk_fma_f32 {vr(DD+i,2)}, {vr(DD+i,2)}, {vr(EX+i,2)}, {vr(DD+i,2)}")
        a("s_mov_b64 exec, -1", "s_add_u32 s70, s70, 1", "s_cmp_ge_u32 s70, s64")
        if u < U - 1: a(f"s_cbranch_scc1 K2_PRI{u}")
        else:
            for rg in [VI] + [VE + r for r in range(4)]: a(f"v_add_u32 v{rg}, {U*ESTR}, v{rg}")
            a("s_cbranch_scc0 K2_L0")
    for u in list(range(U - 1, -1, -1)):
        a.label(f"K2_PRI{u}")
        nx = f"K2_L{(u+1)%U}"
        a("s_sub_u32 s65, s69, s70")
        for lv, th in zip((3, 2, 1), dp):
            a(f"s_setprio {lv}", f"s_sub_u32 s64, s69, {th}", f"s_cmp_gt_u32 s65, {th}", f"s_cbranch_scc1 {nx}")
        a("s_setprio 0", "s_mov_b32 s64, s69", "s_cmp_lg_u32 s65, 0", f"s_cbranch_scc1 {nx}")
        if u: a("s_branch K2_DONE")
    a.label("K2_DONE")
    st()
    if st.on == 1: a("s_memtime s[100:101]", "s_waitcnt lgkmcnt(0)", "s_sub_u32 s98, s100, s98")
    XF = Z0; ACC = Q
    a(f"v_xor_b32 v3, 64, v{ARX}")
    for i in range(16): a(f"v_rcp_f32 v{EX+i}, v{DD+i}")
    a("s_waitcnt lgkmcnt(0)")
    for k in range(4): a(f"ds_read_b128 {vr(WU+4*k,4)}, v7 offset:{1024*k}")
    for i in range(3): a(f"ds_read_b128 {vr(XF+8*i,4)}, v{ARX} offset:{6144*i}", f"ds_read_b128 {vr(XF+8*i+4,4)}, v3 offset:{6144*i}")
    a(f"s_mov_b32 s66, {NLN2:#x}", f"s_mov_b32 s67, {NLN2:#x}", f"s_mov_b32 s64, {f2u(2.0**120):#x}")
    for i in range(0, 16, 2): a(f"v_pk_mul_f32 {vr(NN+i,2)}, {vr(NN+i,2)}, s[66:67]")
    a(f"v_max3_f32 v2, v{DD}, v{DD+1}, v{DD+2}")
    for i in range(3, 15, 2): a(f"v_max3_f32 v2, v{DD+i}, v{DD+i+1}, v2")
    a(f"v_max_f32 v2, v{DD+15}, v2")
    for i in range(0, 16, 2): a(f"v_pk_mul_f32 {vr(NN+i,2)}, {vr(NN+i,2)}, {vr(EX+i,2)}")
    a(f"v_pk_mul_f32 {vr(DD,2)}, {vr(NN,2)}, 0")
    for i in range(2, 16, 2): a(f"v_pk_fma_f32 {vr(DD,2)}, {vr(NN+i,2)}, 0, {vr(DD,2)}")
    for i in range(16): a(f"v_fmac_f32_dpp v{NN+i}, v{NN+i}, v{MFL} row_shl:4 row_mask:0xf bank_mask:0xf bound_ctrl:0")
    a(f"v_cmp_u_f32 vcc, v{DD}, v{DD+1}", f"v_cmp_nlt_f32 s[{MK+2}:{MK+3}], v2, s64", f"s_or_b64 vcc, vcc, s[{MK+2}:{MK+3}]")
    for i in range(8): a(f"v_cvt_pk_bf16_f32 v{EX+i}, v{NN+2*i}, v{NN+2*i+1}")
    a("s_waitcnt lgkmcnt(0)", f"s_mov_b64 exec, s[58:59]", f"ds_write_b128 v{AGA}, {vr(EX,4)} offset:{L_AGB}", f"ds_write_b128 v{AGA}, {vr(EX+4,4)} offset:{L_AGB+16}")
    a("s_mov_b64 exec, vcc", "v_mov_b32 v2, 0", f"ds_write_b32 v2, v5 offset:{L_FLG}", "s_mov_b64 exec, -1")
    a(f"s_mov_b32 s66, {NLOG2E:#x}", f"s_mov_b32 s67, {NLOG2E:#x}", "v_mov_b32 v2, 0")
    for i in range(3): a(mf16(ACC+4*i, WU, XF+8*i, "0"))
    for i in range(3): a(mf16(ACC+4*i, WU+4, XF+8*i+4, ACC+4*i))
    a("s_waitcnt lgkmcnt(0)", "s_barrier")
    st()
    a.label("K2_EPI")
    B = Z0; O = EX; TT = NN; WU2 = WU + 8
    a(f"ds_read_b32 v3, v2 offset:{L_FLG}")
    for i in range(3):
        for s in range(2): a(f"ds_read_b128 {vr(B+8*i+4*s,4)}, v{ARD} offset:{L_AGB + 48*ASTR*i + 64*s}")
    a("s_waitcnt lgkmcnt(6)", "v_readfirstlane_b32 s23, v3", "s_andn2_b32 s23, s23, s71", "s_cbranch_scc1 K2_BF")
    def epi_tile(i):
        o = O + 4 * i; t = TT + 4 * i
        a(f"v_pk_mul_f32 {vr(t,2)}, {vr(o,2)}, s[66:67]", f"v_pk_mul_f32 {vr(t+2,2)}, {vr(o+2,2)}, s[66:67]")
        for k in range(4): a(f"v_exp_f32 v{t+k}, v{t+k}")
        a(f"v_pk_add_f32 {vr(t,2)}, {vr(t,2)}, 1.0 op_sel_hi:[1,0]", f"v_pk_add_f32 {vr(t+2,2)}, {vr(t+2,2)}, 1.0 op_sel_hi:[1,0]")
        for k in range(4): a(f"v_rcp_f32 v{t+k}, v{t+k}")
        a(f"v_pk_mul_f32 {vr(t,2)}, {vr(t,2)}, {vr(o,2)}", f"v_pk_mul_f32 {vr(t+2,2)}, {vr(t+2,2)}, {vr(o+2,2)}")
        a(f"v_cvt_pk_bf16_f32 v{o}, v{t}, v{t+1}", f"v_cvt_pk_bf16_f32 v{o+1}, v{t+2}, v{t+3}")
        a(f"buffer_store_dwordx2 {vr(o,2)}, v{OOF}, s[{SO}:{SO+3}], {('s74','s75','s22')[i]} offen")
    for i in range(3):
        a(f"s_waitcnt lgkmcnt({4-2*i})", mf16(O+4*i, WU2, B+8*i, ACC+4*i), mf16(O+4*i, WU2+4, B+8*i+4, O+4*i))
    epi_tile(0); epi_tile(1)
    a("s_cmp_lg_u32 s73, 0", "s_cbranch_scc1 K2_FIN")
    epi_tile(2)
    a.label("K2_FIN")
    if st.on: a("s_waitcnt vmcnt(0)")
    if opt.get("diag"):
        kind, M = opt["diag"]
        a("s_cmp_lg_u32 s3, 0", "s_cbranch_scc1 K2_END", "s_memrealtime s[40:41]", "s_lshl_b32 s42, s2, 10", f"s_add_u32 s42, s42, {WS_STAMP}", "s_add_u32 s44, s20, s42", "s_addc_u32 s45, s21, 0",
          "v_mov_b32 v2, 0", "global_load_dwordx4 v[8:11], v2, s[44:45]", "global_load_dwordx4 v[12:15], v2, s[44:45] offset:16", "s_waitcnt vmcnt(0) lgkmcnt(0)",
          "v_readfirstlane_b32 s46, v8", "v_readfirstlane_b32 s47, v13", "v_readfirstlane_b32 s48, v9", "v_readfirstlane_b32 s49, v10", "s_nop 4")
        a({"k1": "s_sub_u32 s46, s47, s46", "k12": "s_sub_u32 s46, s78, s46", "k2": "s_sub_u32 s46, s40, s78", "tot": "s_sub_u32 s46, s40, s46", "dst": "s_sub_u32 s46, s48, s46", "src": "s_sub_u32 s46, s49, s46",
           "kb3": "s_sub_u32 s46, s92, s80", "reg": "s_lshr_b32 s46, s77, 22\ns_sub_u32 s46, s46, 8", "xcc": "s_getreg_b32 s46, hwreg(HW_REG_XCC_ID)\ns_xor_b32 s46, s46, s2\ns_and_b32 s46, s46, 7", "ent": "s_sub_u32 s46, s80, s78"}.get(kind, "s_cmp_lg_u32 s2, 5\ns_cbranch_scc1 K2_END"))
        if kind.startswith("g"):
            a(f"s_add_u32 s44, s20, {WS_STAMP}", "s_addc_u32 s45, s21, 0", "v_lshlrev_b32 v2, 6, v0", "v_mov_b32 v16, 0", "v_mov_b32 v17, -1", "v_mov_b32 v18, -1", "v_mov_b32 v19, 0", "s_mov_b32 s47, 0")
            a.label("K2_DL")
            a("global_load_dword v8, v2, s[44:45]", f"global_load_dword v9, v2, s[44:45] offset:{opt.get('dk', 5)*4}", "v_add_u32 v2, 4096, v2", "s_waitcnt vmcnt(0)", "v_sub_u32 v8, s78, v8", "v_sub_u32 v9, s78, v9",
              "v_max_u32 v16, v16, v8", "v_min_u32 v17, v17, v8", "v_min_u32 v18, v18, v9", "v_max_u32 v19, v19, v9", "s_add_u32 s47, s47, 1", "s_cmp_lt_u32 s47, 63", "s_cbranch_scc1 K2_DL")
            a("s_mov_b32 s47, 0", "s_mov_b32 s50, 0", "s_mov_b32 s51, -1", "s_mov_b32 s52, -1", "s_mov_b32 s53, 0")
            a.label("K2_DM")
            a("v_readlane_b32 s54, v16, s47", "v_readlane_b32 s55, v17, s47", "v_readlane_b32 s56, v18, s47", "v_readlane_b32 s57, v19, s47", "s_max_u32 s50, s50, s54", "s_min_u32 s51, s51, s55", "s_min_u32 s52, s52, s56", "s_max_u32 s53, s53, s57",
              "s_add_u32 s47, s47, 1", "s_cmp_lt_u32 s47, 64", "s_cbranch_scc1 K2_DM")
            a({"gskew": "s_sub_u32 s46, s50, s51", "gk1": "s_sub_u32 s46, s50, s52", "ggap": "s_mov_b32 s46, s52", "g0": "s_mov_b32 s46, 0", "gfirst": "s_sub_u32 s46, s50, s53"}[kind])
            a("s_memrealtime s[40:41]", "s_waitcnt lgkmcnt(0)")
        if opt.get("thr"): a(f"s_cmp_gt_u32 s46, {opt['thr']}", f"s_cselect_b32 s46, {M}, 0")
        else: a("s_min_u32 s46, s46, 4000", f"s_mul_i32 s46, s46, {M}")
        a.label("K2_DG")
        a("s_sleep 2", "s_memrealtime s[42:43]", "s_waitcnt lgkmcnt(0)", "s_sub_u32 s42, s42, s40", "s_cmp_lt_u32 s42, s46", "s_cbranch_scc1 K2_DG")
    else: st.flush(20, 3, 2, 3)
    a.label("K2_END")
    a("s_endpgm")

    a.label("K2_G0R")
    a(f"v_mov_b32 v{IP}, v{EX+3}", *gather(0, IP), "s_branch K2_G0D")
    a.label("K2_DONE0")
    a("s_waitcnt vmcnt(0) lgkmcnt(0)", "s_branch K2_DONE")
    a.label("K2_MARK")
    T = Z1
    a("s_mov_b64 exec, vcc", f"v_mov_b32 v{T}, 0", f"v_mov_b32 v{T+1}, 1", f"ds_add_rtn_u32 v{T}, v{T}, v{T+1} offset:{L_OVC}", "s_waitcnt lgkmcnt(0)",
      f"v_and_b32 v{T}, 255, v{T}", f"v_lshlrev_b32 v{T}, 2, v{T}", f"ds_write_b32 v{T}, v0 offset:{L_OVL}", "s_mov_b64 exec, -1", "s_branch K2_MR")

    SD, SS, SE = 40, 44, 48
    a.label("K2_RESCAN")
    srd(a, SD, 10, 11, E * 4); srd(a, SS, 8, 9, E * 4); srd(a, SE, 6, 7, E * 2)
    a("s_mov_b32 s52, 0", f"s_mul_i32 s53, {BK}, {NB}", "s_min_u32 s23, s23, 256", "s_waitcnt lgkmcnt(0)")
    a.label("K2_RS1")
    T = Z1 + 8
    a("s_lshl_b32 s54, s52, 2", f"v_mov_b32 v{T}, s54", f"ds_read_b32 v{T}, v{T} offset:{L_OVL}", "s_waitcnt lgkmcnt(0)", f"v_readfirstlane_b32 s54, v{T}",
      "s_and_b32 s55, s54, 31", "s_lshl_b32 s55, s55, 3", "s_lshr_b32 s54, s54, 5", "s_add_u32 s54, s54, s55",
      f"s_mul_i32 s54, s54, {CH}", f"s_sub_u32 s55, {E}, s54", f"s_min_u32 s55, s55, {CH}",
      f"v_mov_b32 v{T}, v0")
    a.label("K2_RS2")
    a(f"v_add_u32 v{T+1}, s54, v{T}", f"v_lshlrev_b32 v{T+2}, 1, v{T+1}", f"v_lshlrev_b32 v{T+1}, 2, v{T+1}",
      f"buffer_load_dword v{T+3}, v{T+1}, s[{SD}:{SD+3}], 0 offen", f"buffer_load_dword v{T+4}, v{T+1}, s[{SS}:{SS+3}], 0 offen",
      f"buffer_load_ushort v{T+5}, v{T+2}, s[{SE}:{SE+3}], 0 offen", "s_waitcnt vmcnt(0)",
      f"v_subrev_u32 v{T+3}, s53, v{T+3}", f"v_cmp_gt_u32 vcc, {NB}, v{T+3}", f"v_cmp_gt_u32 s[56:57], s55, v{T}", "s_and_b64 exec, vcc, s[56:57]",
      f"v_lshlrev_b32 v{T+3}, 2, v{T+3}", f"ds_add_rtn_u32 v{T+3}, v{T+3}, v5 offset:{L_CTR}", f"v_lshl_or_b32 v{T+4}, v{T+5}, 16, v{T+4}",
      "s_waitcnt lgkmcnt(0)", f"v_min_u32 v{T+3}, s65, v{T+3}", f"ds_write_b32 v{T+3}, v{T+4}", "s_mov_b64 exec, -1",
      f"v_add_u32 v{T}, 768, v{T}", f"v_cmp_gt_u32 vcc, s55, v{T}", "s_cbranch_vccnz K2_RS2")
    a("s_add_u32 s52, s52, 1", "s_cmp_lt_u32 s52, s23", "s_cbranch_scc1 K2_RS1")
    a("s_mov_b32 s68, -1", "s_waitcnt lgkmcnt(0)", "s_barrier", "s_cmp_eq_u32 s73, 0", "s_cbranch_scc1 K2_AB1T", "s_branch K2_AB1")

    a.label("K2_BF")
    T = Z0
    a("s_waitcnt vmcnt(0) lgkmcnt(0)")
    srd(a, SD, 10, 11, E * 4); srd(a, SS, 8, 9, E * 4); srd(a, SE, 6, 7, E * 2); srd(a, 52, 12, 13, 129 * 128)
    a(f"s_mov_b32 s{SX}, s{SPT}", f"s_and_b32 s{SX+1}, s{SPT+1}, 0xffff", f"s_mov_b32 s{SX+2}, {N*128}", f"s_mov_b32 s{SX+3}, 0x20000")
    for i in range(4): a(f"v_mov_b32 v{T+i}, 0")
    a(f"v_lshlrev_b32 v{T+4}, 4, v0", f"v_add_u32 v{T+4}, {L_ELL}, v{T+4}")
    for i in range(3): a(f"ds_write_b128 v{T+4}, {vr(T,4)} offset:{12288*i}")
    LN, F4, F2, PO, W3 = T + 4, T + 5, T + 6, T + 7, T + 8
    a(f"v_and_b32 v{LN}, 63, v0", f"v_lshlrev_b32 v{F4}, 2, v{LN}", f"v_lshlrev_b32 v{F2}, 1, v{LN}",
      f"v_and_b32 v{PO}, 8, v{LN}", f"v_lshlrev_b32 v{PO}, 3, v{PO}", f"v_and_b32 v{T}, 48, v{LN}", f"v_add_u32 v{PO}, v{PO}, v{T}",
      f"v_and_b32 v{T}, 7, v{LN}", f"v_lshl_add_u32 v{PO}, v{T}, 1, v{PO}",
      "s_movk_i32 s56, 16384", f"buffer_load_ushort v{W3}, v{F2}, s[52:55], s56 offen", "s_waitcnt vmcnt(0) lgkmcnt(0)",
      f"v_lshlrev_b32 v{W3}, 16, v{W3}", f"v_mul_f32 v{W3}, s66, v{W3}",
      f"s_mul_i32 s57, {BK}, {NB}", "s_mov_b32 s56, s3", "s_barrier")
    a.label("K2_BF1")
    DV, SV, EV = T + 9, T + 10, T + 11
    a("s_lshl_b32 s58, s56, 8", "s_lshl_b32 s59, s56, 7",
      f"buffer_load_dword v{DV}, v{F4}, s[{SD}:{SD+3}], s58 offen", "s_waitcnt vmcnt(0)",
      f"v_subrev_u32 v{DV}, s57, v{DV}", f"v_cmp_gt_u32 vcc, {NB}, v{DV}", "s_cbranch_vccz K2_BF3",
      f"buffer_load_dword v{SV}, v{F4}, s[{SS}:{SS+3}], s58 offen", f"buffer_load_ushort v{EV}, v{F2}, s[{SE}:{SE+3}], s59 offen",
      "s_mov_b64 s[60:61], vcc", "s_waitcnt vmcnt(0)")
    a.label("K2_BF2")
    a("s_ff1_i32_b64 s58, s[60:61]", "s_bitset0_b64 s[60:61], s58",
      f"v_readlane_b32 s59, v{SV}, s58", f"v_readlane_b32 s62, v{DV}, s58", f"v_readlane_b32 s63, v{EV}, s58",
      "s_min_u32 s59, s59, %d" % (N - 1), "s_lshl_b32 s59, s59, 7", f"buffer_load_ushort v{T}, v{PO}, s[{SX}:{SX+3}], s59 offen",
      f"s_mul_i32 s58, s62, {QSTR}", f"v_add_u32 v{T+1}, s58, v{F4}", f"ds_read_b32 v{T+1}, v{T+1} offset:{L_QS}",
      "s_lshl_b32 s63, s63, 16", "s_lshl_b32 s62, s62, 8", f"s_add_u32 s62, s62, {L_ELL}", f"v_add_u32 v{T+2}, s62, v{F4}",
      "s_waitcnt vmcnt(0) lgkmcnt(0)",
      f"v_lshlrev_b32 v{T}, 16, v{T}", f"v_add_f32 v{T}, v{T}, v{T+1}", f"v_fma_f32 v{T}, s63, v{W3}, v{T}",
      f"v_exp_f32 v{T+1}, v{T}", f"v_add_f32 v{T+1}, 1.0, v{T+1}", f"v_rcp_f32 v{T+1}, v{T+1}", f"v_mul_f32 v{T}, {NLN2:#x}, v{T}", f"v_mul_f32 v{T}, v{T}, v{T+1}",
      f"ds_add_f32 v{T+2}, v{T}", "s_cmp_lg_u64 s[60:61], 0", "s_cbranch_scc1 K2_BF2")
    a.label("K2_BF3")
    a("s_add_u32 s56, s56, 12", f"s_cmp_lt_u32 s56, {E//64}", "s_cbranch_scc1 K2_BF1")
    a("s_waitcnt lgkmcnt(0)", "s_barrier", f"v_mov_b32 v{T+4}, v0")
    a.label("K2_BF4")
    a(f"v_lshlrev_b32 v{T+5}, 3, v{T+4}", f"v_add_u32 v{T+5}, {L_ELL}, v{T+5}", f"ds_read_b64 {vr(T,2)}, v{T+5}",
      f"v_lshrrev_b32 v{T+5}, 5, v{T+4}", f"v_mul_u32_u24 v{T+5}, {ASTR}, v{T+5}", f"v_and_b32 v{T+6}, 31, v{T+4}", f"v_lshl_add_u32 v{T+5}, v{T+6}, 2, v{T+5}",
      "s_waitcnt lgkmcnt(0)", f"v_cvt_pk_bf16_f32 v{T}, v{T}, v{T+1}", f"ds_write_b32 v{T+5}, v{T} offset:{L_AGB}",
      f"v_add_u32 v{T+4}, 768, v{T+4}", f"v_cmpx_gt_u32 vcc, {NB*32}, v{T+4}", "s_cbranch_execnz K2_BF4")
    a("s_mov_b64 exec, -1", "s_mov_b32 s71, -1", "s_waitcnt lgkmcnt(0)", "s_barrier", "s_branch K2_EPI")
    return a.lines

def kd(name, vg, sg=102):
    return f""".amdhsa_kernel {name}
  .amdhsa_next_free_vgpr {vg}
  .amdhsa_next_free_sgpr {sg}
  .amdhsa_accum_offset {vg}
  .amdhsa_group_segment_fixed_size 0
  .amdhsa_kernarg_size 72
  .amdhsa_user_sgpr_count 2
  .amdhsa_user_sgpr_kernarg_segment_ptr 1
  .amdhsa_system_sgpr_workgroup_id_x 1
.end_amdhsa_kernel"""

def build(opt=None):
    opt = opt or {}
    out = ["; mpnn edge MLP: K1 bins edges by destination bucket and builds the P' table, K2 aggregates and updates",
           f"; @launch kernel=mpnn_bin_kernel grid=(256,1,1) block=(1024,1,1) lds={K1_LDS}",
           f"; @launch kernel=mpnn_msg_kernel grid=(256,1,1) block=(768,1,1) lds={K2_LDS}",
           '.amdgcn_target "amdgcn-amd-amdhsa--gfx950"', ".text"]
    for name, fn in (("mpnn_bin_kernel", gen_k1), ("mpnn_msg_kernel", gen_k2)):
        lines, nn = fix_hazards(fn(opt), verbose=opt.get("verbose"))
        out += [f".globl {name}", ".p2align 8", f".type {name},@function"] + lines
    out += ['.section .rodata,"a"', ".p2align 6", kd("mpnn_bin_kernel", 128), ".p2align 6", kd("mpnn_msg_kernel", 168)]
    return "\n".join(out) + "\n"

if __name__ == "__main__":
    import argparse
    ap = argparse.ArgumentParser(); ap.add_argument("-o", default="standalone__mpnn_edge_mlp__graph.s")
    ap.add_argument("--stamp", type=int, default=0); ap.add_argument("-v", action="store_true"); ap.add_argument("--opt", default="{}")
    g = ap.parse_args()
    open(g.o, "w").write(build({"stamp": g.stamp, "verbose": g.v, **eval(g.opt)}))
```

```python
import sys, struct, math
sys.path.insert(0, "gen")
from asmlib import *

N = 25000; E = 800000; NB = 98; CH = 3128; CAP = 72
WS_RA = 0x400000; WS_DA = 0x800000; WS_RB = 0xA00000; WS_WF = 0x380000; WS_END = WS_RB + 0x800000
MARK = 0xFEFEFEFE
WS_PR = 0x2000000; WS_HDR = WS_WF + 0x8000
WS_STAMP = 0x1400000
f2u = lambda f: struct.unpack("<I", struct.pack("<f", f))[0]
NLOG2E = f2u(-1.4426950408889634); NLN2 = f2u(-0.6931471805599453)
NTILE = (N + 15) // 16

def mf16(d, a, b, c): return f"v_mfma_f32_16x16x32_bf16 {vr(d,4)}, {vr(a,4)}, {vr(b,4)}, {c if isinstance(c,str) else vr(c,4)}"
def mf32(d, a, b, c): return f"v_mfma_f32_32x32x16_bf16 {vr(d,16)}, {vr(a,4)}, {vr(b,4)}, {vr(c,16)}"

class Stamps:
    def __init__(self, a, on, base, kidx, nw): self.a = a; self.on = on; self.base = base; self.k = 0; self.kidx = kidx; self.nw = nw
    def __call__(self):
        if not self.on: return
        r = self.base + 2 * self.k; self.k += 1
        if self.on == 3 and (self.k - 1) not in ((0, 5), (0, 1, 7, 8))[self.kidx]: return
        self.a(f"s_waitcnt lgkmcnt(0)", f"s_memrealtime s[{r}:{r+1}]", "s_waitcnt lgkmcnt(0)")
    def early(self):
        if not self.on: return
        r = self.base + 2 * self.k; self.k += 1
        self.a(f"s_memrealtime s[{r}:{r+1}]")
    def flush(self, ws, wave, t0, t1):
        if not self.on: return
        a = self.a
        self()
        a("s_mov_b64 exec, -1")
        a(f"v_mov_b32 v{t0}, 0")
        for k in range(self.k): a(f"v_writelane_b32 v{t0}, s{self.base+2*k}, {k}")
        if self.kidx == 1: a(f"v_writelane_b32 v{t0}, s98, 13", f"v_writelane_b32 v{t0}, s96, 12", f"v_writelane_b32 v{t0}, s97, 11", f"v_writelane_b32 v{t0}, s69, 15", f"s_getreg_b32 s69, hwreg(HW_REG_HW_ID)", f"v_writelane_b32 v{t0}, s69, 14")
        if self.on == 2 and self.kidx == 1:
            b = self.base
            a(f"s_add_u32 s{b}, s2, s{wave}", f"s_cmp_lg_u32 s{b}, 0", f"s_cbranch_scc1 STK{self.kidx}",
              f"s_load_dwordx2 s[{b}:{b+1}], s[0:1], 56", f"v_and_b32 v{t1}, 63, v0", f"v_lshlrev_b32 v{t1}, 2, v{t1}",
              f"v_add_u32 v{t1+1}, {WS_STAMP}, v{t1}", f"global_load_dword v{t1+1}, v{t1+1}, s[{ws}:{ws+1}]",
              "s_waitcnt vmcnt(0) lgkmcnt(0)", f"s_mov_b64 exec, 0x3ff", f"global_store_dword v{t1}, v{t0}, s[{b}:{b+1}] offset:24",
              f"s_mov_b64 exec, 0x3f", f"global_store_dword v{t1}, v{t1+1}, s[{b}:{b+1}]")
            a.label(f"STK{self.kidx}")
            return
        a(f"s_mul_i32 s{self.base}, s2, {self.nw}", f"s_add_u32 s{self.base}, s{self.base}, s{wave}", f"s_lshl_b32 s{self.base}, s{self.base}, 6",
          f"s_add_u32 s{self.base}, s{self.base}, {WS_STAMP + self.kidx * 0x100000}",
          f"v_and_b32 v{t1}, 63, v0", f"v_lshlrev_b32 v{t1}, 2, v{t1}", f"v_add_u32 v{t1}, s{self.base}, v{t1}",
          "s_mov_b64 exec, 0xffff", f"global_store_dword v{t1}, v{t0}, s[{ws}:{ws+1}]")

def srd(a, r, lo, hi, num, stride=0):
    a(f"s_mov_b32 s{r}, s{lo}")
    if stride: a(f"s_or_b32 s{r+1}, s{hi}, {stride << 16:#x}")
    else: a(f"s_mov_b32 s{r+1}, s{hi}")
    a(f"s_mov_b32 s{r+2}, {num}", f"s_mov_b32 s{r+3}, 0x20000")

K1_DA = 32768; K1_CNT = 40960; K1_LDS = K1_CNT + 1024
def gen_k1(opt):
    a = Asm(); st = Stamps(a, opt.get("stamp"), 70, 0, 16)
    a.label("mpnn_bin_kernel")
    if opt.get("cpf") == 2:
        a("s_getpc_b64 s[48:49]", "v_lshlrev_b32 v54, 7, v0", "v_min_u32 v54, K2_END-mpnn_bin_kernel-4, v54", "global_load_dword v55, v54, s[48:49]")
    a("s_cmp_ge_u32 s2, 256", "s_cbranch_scc1 K1_END")
    if opt.get("dly"):
        a("s_memrealtime s[4:5]", "s_waitcnt lgkmcnt(0)")
        a.label("K1_DL")
        a("s_sleep 1", "s_memrealtime s[6:7]", "s_waitcnt lgkmcnt(0)", "s_sub_u32 s6, s6, s4", f"s_cmp_lt_u32 s6, {opt['dly']}", "s_cbranch_scc1 K1_DL")
    a("s_load_dwordx8 s[4:11], s[0:1], 0", "s_load_dwordx4 s[12:15], s[0:1], 32", "s_load_dwordx2 s[16:17], s[0:1], 64")
    if opt.get("pw0"): a(f"v_add_u32 v0, {64*opt['pw0']}, v0", "v_and_b32 v0, 1023, v0")
    a("v_lshrrev_b32 v1, 6, v0", "v_lshlrev_b32 v7, 4, v0", "v_readfirstlane_b32 s3, v1", "v_lshlrev_b32 v4, 3, v0")
    a("v_mov_b32 v46, -1", "v_mov_b32 v47, -1", f"ds_write_b64 v4, v[46:47] offset:{K1_DA}",
      "v_and_b32 v45, 255, v0", "v_lshlrev_b32 v44, 2, v45", "v_lshlrev_b32 v45, 5, v45", f"ds_write_b32 v44, v45 offset:{K1_CNT}")
    a("s_and_b32 s40, s2, 7", "s_lshr_b32 s41, s2, 3")
    a(f"s_mov_b32 s34, {WS_END}", "s_mov_b32 s35, 0x20000")
    CO = 44
    def co_addr():
        a("s_lshl_b32 s42, s40, 5", "s_add_u32 s42, s42, s41",
          "s_lshl_b32 s43, s42, 5", f"s_add_u32 s43, s43, {WS_DA}", "s_lshl_b32 s44, s42, 7", "s_lshl_b32 s42, s42, 6", f"s_add_u32 s44, s44, {WS_RB}", f"s_add_u32 s42, s42, {WS_RA}")
        a(f"v_lshrrev_b32 v{CO+6}, 2, v0", f"v_and_b32 v{CO+5}, 3, v0", f"v_lshlrev_b32 v{CO+1}, 13, v{CO+6}", f"v_lshl_add_u32 v{CO+1}, v{CO+5}, 3, v{CO+1}", f"v_lshlrev_b32 v{CO}, 1, v{CO+1}", f"v_lshl_add_u32 v{CO+8}, v{CO+6}, 14, v{CO}",
          f"v_lshlrev_b32 v{CO+2}, 7, v{CO+6}", f"v_lshl_add_u32 v{CO+2}, v{CO+5}, 4, v{CO+2}", f"v_and_b32 v{CO+3}, 64, v0", f"v_add_u32 v{CO+2}, v{CO+2}, v{CO+3}", f"v_xor_b32 v{CO+3}, 64, v{CO+2}",
          f"v_bfe_u32 v{CO+4}, v0, 4, 2", f"v_xor_b32 v{CO+5}, v{CO+5}, v{CO+4}", f"v_lshlrev_b32 v{CO+6}, 5, v{CO+6}", f"v_lshl_add_u32 v{CO+5}, v{CO+5}, 2, v{CO+6}", f"v_add_u32 v{CO+5}, 16, v{CO+5}",
          *([f"v_add_u32 v{CO+5}, 16, v{CO+6}"] if opt.get("bfull", 1) else []), f"v_add_u32 v{CO+6}, 32, v{CO+6}", f"v_and_b32 v{CO+4}, 0x3fc, v0", f"v_lshlrev_b32 v{CO+7}, 3, v0")
    a("s_cmp_ge_u32 s3, 13", "s_cbranch_scc1 K1_P")
    DST, SRC, EE, B, DL, S, LIM, REC = 8, 12, 16, 20, 24, 28, 32, 36
    a(f"s_mul_i32 s18, s2, {CH}", f"s_sub_u32 s19, {E}, s18", f"s_min_u32 s19, s19, {CH}", "s_lshl_b32 s36, s18, 2", "s_lshl_b32 s37, s18, 1")
    for r, n in ((20, E * 4), (24, E * 4), (28, E * 2)): a(f"s_mov_b32 s{r+2}, {n}", f"s_mov_b32 s{r+3}, 0x20000")
    a("v_lshlrev_b32 v1, 2, v0", "v_cmp_gt_u32 vcc, s19, v1")
    if opt.get("cpf") == 1:
        a("s_cmp_lg_u32 s3, 12", "s_cbranch_scc1 K1_NPF", "s_getpc_b64 s[48:49]")
        a.label("K1_PC")
        a("s_add_u32 s48, s48, mpnn_msg_kernel-K1_PC", "s_addc_u32 s49, s49, 0", "v_and_b32 v54, 63, v0", "v_lshlrev_b32 v54, 7, v54",
          "v_min_u32 v54, K2_END-mpnn_msg_kernel, v54", "global_load_dword v55, v54, s[48:49]")
        a.label("K1_NPF")
    a("s_waitcnt lgkmcnt(0)")
    st()
    a("s_mov_b32 s20, s10", "s_mov_b32 s21, s11", f"buffer_load_dwordx4 {vr(DST,4)}, v7, s[20:23], s36 offen {opt.get('lflag', '')}")
    a("s_mov_b32 s24, s8", "s_mov_b32 s25, s9", "s_mov_b32 s28, s6", "s_mov_b32 s29, s7", "s_mov_b32 s32, s16", "s_mov_b32 s33, s17")
    a("s_barrier")
    a(f"buffer_load_dwordx4 {vr(SRC,4)}, v7, s[24:27], s36 offen {opt.get('lflag', '')}", f"buffer_load_dwordx2 {vr(EE,2)}, v4, s[28:31], s37 offen {opt.get('lflag', '')}")
    co_addr()
    if opt.get("tlb"):
        a("s_cmp_lg_u32 s3, 12", "s_cbranch_scc1 K1_NT", "v_and_b32 v54, 63, v0", f"v_mul_u32_u24 v54, {opt['tlb']}, v54", "buffer_load_dword v55, v54, s[32:35], 0 offen", "s_waitcnt vmcnt(1)")
        a.label("K1_NT")
    a("v_mov_b32 v6, 1", "s_movk_i32 s38, -98", "s_mov_b32 s39, 0xffff0000")
    a("s_mov_b64 exec, vcc", "s_cbranch_execz K1_B1")
    a("s_waitcnt vmcnt(2)")
    st()
    for i in range(4):
        a(f"v_mul_u32_u24 v{B+i}, 21400, v{DST+i}", f"v_lshrrev_b32 v{B+i}, 21, v{B+i}", f"v_lshlrev_b32 v{S+i}, 2, v{B+i}",
          f"ds_add_rtn_u32 v{S+i}, v{S+i}, v6 offset:{K1_CNT}")
    for i in range(4): a(f"v_mad_i32_i24 v{DL+i}, v{B+i}, s38, v{DST+i}", f"v_lshl_or_b32 v{LIM+i}, v{B+i}, 5, 31", f"v_and_b32 v{B+i}, 31, v{B+i}")
    for i in range(4):
        a(f"s_waitcnt lgkmcnt(3)", f"v_min_u32 v{S+i}, v{S+i}, v{LIM+i}", f"v_xor_b32 v{S+i}, v{S+i}, v{B+i}", f"ds_write_b8 v{S+i}, v{DL+i} offset:{K1_DA}")
    for i in range(4): a(f"v_lshlrev_b32 v{LIM+i}, 2, v{S+i}")
    a("s_waitcnt vmcnt(0)")
    st()
    if opt.get("smask"):
        for i in range(4): a(f"v_and_b32 v{SRC+i}, {opt['smask']}, v{SRC+i}")
    for i in range(4):
        if i % 2 == 0: a(f"v_lshl_or_b32 v{REC+i}, v{EE+i//2}, 16, v{SRC+i}")
        else: a(f"v_and_or_b32 v{REC+i}, v{EE+i//2}, s39, v{SRC+i}")
        a(f"ds_write_b32 v{LIM+i}, v{REC+i}")
    a.label("K1_B1")
    a("s_mov_b64 exec, -1")
    st.k = 3; st()
    a("s_waitcnt lgkmcnt(0)", "s_barrier")
    st()
    a(f"ds_read_b128 v[8:11], v{CO+2}", f"ds_read_b32 v18, v{CO+4} offset:{K1_CNT}", f"ds_read_b64 v[16:17], v{CO+7} offset:{K1_DA}", f"ds_read_b128 v[12:15], v{CO+3}")
    a("s_waitcnt lgkmcnt(3)", f"buffer_store_dwordx4 v[8:11], v{CO}, s[32:35], s42 offen {opt.get('dflag', '')}")
    a("s_waitcnt lgkmcnt(1)", f"v_cmp_gt_u32 vcc, v18, v{CO+6}", f"v_cmp_gt_u32 s[46:47], v18, v{CO+5}", "s_cbranch_vccnz K1_OV")
    a.label("K1_OVR")
    x = opt.get("x1", "")
    if "d" not in x: a(f"buffer_store_dwordx2 v[16:17], v{CO+1}, s[32:35], s43 offen {opt.get('dflag', '')}")
    if "b" not in x: a("s_mov_b64 exec, s[46:47]", "s_waitcnt lgkmcnt(0)", f"buffer_store_dwordx4 v[12:15], v{CO+8}, s[32:35], s44 offen", *([] if opt.get("bhalf", 1) else [f"buffer_store_dwordx4 v[8:11], v{CO+8}, s[32:35], s44 offen offset:64"]))
    if st.on or opt.get("kw"): a("s_waitcnt vmcnt(0)")
    st.flush(16, 3, 20, 21)
    if opt.get("kp"):
        a("s_mov_b64 exec, -1", f"s_mul_i32 s45, s41, {782*128}", "v_lshlrev_b32 v60, 7, v0", f"v_cmp_gt_u32 vcc, {opt['kp']}, v0", "s_and_b64 exec, exec, vcc", "s_cbranch_execz K1_END", "buffer_load_dword v61, v60, s[32:35], s45 offen")
    a.label("K1_END")
    a("s_endpgm")
    a.label("K1_OV")
    a(f"v_mov_b32 v18, {MARK:#x}", "v_cndmask_b32 v16, v16, v18, vcc", "v_cndmask_b32 v17, v17, v18, vcc", "s_branch K1_OVR")
    W, A, X, D, O, FR = 8, 40, 72, 96, 112, 120
    a.label("K1_P")
    a("v_and_b32 v1, 15, v0", "v_bfe_u32 v2, v0, 4, 2",
      "v_lshlrev_b32 v3, 10, v2", "v_lshl_add_u32 v5, v1, 1, v3", "v_lshl_add_u32 v3, v1, 3, v3",
      "v_lshlrev_b32 v4, 7, v1", "v_lshl_add_u32 v4, v2, 4, v4")
    a("s_mul_i32 s18, s41, 3", "s_add_u32 s18, s18, s3", "s_sub_u32 s18, s18, 13",
      "s_mul_i32 s36, s40, 196", "s_add_u32 s36, s36, s18",
      "s_lshl_b32 s36, s36, 11", f"s_add_u32 s37, s36, {96*2048}", f"s_add_u32 s38, s36, {192*2048}", "s_movk_i32 s39, 4096")
    for r, n in ((20, 129 * 128), (24, N * 128), (28, N * 128), (48, 128 * 128)): a(f"s_mov_b32 s{r+2}, {n}", f"s_mov_b32 s{r+3}, 0x20000")
    a("s_sub_u32 s19, s2, 16", "s_cmp_eq_u32 s3, 15", "s_cselect_b32 s19, s19, 100")
    a("s_waitcnt lgkmcnt(0)")
    st.k = 0; st()
    a("s_mov_b32 s24, s4", "s_mov_b32 s25, s5", "s_mov_b32 s20, s12", "s_mov_b32 s21, s13")
    a("s_cmp_le_u32 s19, 24", "s_cbranch_scc1 K1_FL")
    a.label("K1_FLR")
    for i in range(2):
        for s in range(2): a(f"buffer_load_dwordx4 {vr(X+8*i+4*s,4)}, v4, s[24:27], s{36+i} offen offset:{64*s} {opt.get('xflag', '')}")
    for s in range(2):
        for kk in range(8): a(f"buffer_load_dwordx2 {vr(W+16*s+2*kk,2)}, v3, s[20:23], {'s39' if s else '0'} offen offset:{128*kk}")
    a("s_cmp_lt_u32 s18, 4", "s_cselect_b64 exec, -1, 0")
    for s in range(2): a(f"buffer_load_dwordx4 {vr(X+16+4*s,4)}, v4, s[24:27], s38 offen offset:{64*s}")
    a("s_mov_b64 exec, -1")
    a("s_barrier")
    if opt.get("rot"):
        a(*(["s_memrealtime s[52:53]", "s_waitcnt lgkmcnt(0)", "s_lshr_b32 s52, s52, 12"] if opt.get("trot") else ["s_lshr_b32 s52, s0, 4"]), "s_mul_i32 s52, s52, 0x9e3779b1", f"s_lshr_b32 s52, s52, {32 - opt['rot']}", "s_lshl_b32 s52, s52, 22", f"s_add_u32 s53, s52, {WS_PR}",
          "s_add_u32 s28, s16, s53", "s_addc_u32 s29, s17, 0", "s_mov_b32 s32, s16", "s_mov_b32 s33, s17")
    else: a("s_mov_b32 s28, s16", "s_mov_b32 s29, s17", "s_mov_b32 s32, s16", "s_mov_b32 s33, s17")
    a("s_mov_b32 s44, 0x05040100", "s_mov_b32 s45, 0x07060302", f"s_mov_b32 s46, {NLOG2E:#x}", f"s_mov_b32 s47, {NLOG2E:#x}")
    a("s_waitcnt vmcnt(2)")
    st()
    for tau in range(4):
        for s in range(2):
            for rr in range(4):
                a(f"v_perm_b32 v{A+8*tau+4*s+rr}, v{W+16*s+2*(2*rr+1)+tau//2}, v{W+16*s+2*(2*rr)+tau//2}, s{44+tau%2}")
    for i in range(3):
        if i == 2:
            a(f"s_cmp_ge_u32 s18, 4", "s_cbranch_scc1 K1_PD", "s_waitcnt vmcnt(4)")
        for tau in range(4): a(mf16(D+4*tau, A+8*tau, X+8*i, "0"))
        for tau in range(4): a(mf16(D+4*tau, A+8*tau+4, X+8*i+4, D+4*tau))
        for k in range(0, 16, 2): a(f"v_pk_mul_f32 {vr(D+k,2)}, {vr(D+k,2)}, s[46:47]")
        for r in range(4):
            for h in range(2): a(f"v_cvt_pk_bf16_f32 v{O+2*r+h}, v{D+4*(2*h)+r}, v{D+4*(2*h+1)+r}")
        if "p" in opt.get("x1", ""): pass
        elif opt.get("pfull"): a("v_and_b32 v6, 63, v0", "v_lshlrev_b32 v6, 4, v6", f"buffer_store_dwordx4 {vr(O,4)}, v6, s[28:31], s{36+i} offen {opt.get('pflag', '')}", f"buffer_store_dwordx4 {vr(O+4,4)}, v6, s[28:31], s{36+i} offen offset:1024 {opt.get('pflag', '')}")
        else: a(f"buffer_store_dwordx4 {vr(O,4)}, v4, s[28:31], s{36+i} offen {opt.get('pflag', '')}", f"buffer_store_dwordx4 {vr(O+4,4)}, v4, s[28:31], s{36+i} offen offset:64 {opt.get('pflag', '')}")
    a.label("K1_PD")
    st()
    a("s_cmp_le_u32 s19, 24", "s_cbranch_scc1 K1_FS")
    a.label("K1_PE")
    if opt.get("cpf", 3) == 3:
        a("s_lshr_b32 s19, s2, 5", "s_add_u32 s19, s19, s3", "s_cmp_lg_u32 s19, 18", "s_cbranch_scc1 K1_NPF", "s_getpc_b64 s[48:49]")
        a.label("K1_PC")
        a("s_add_u32 s48, s48, mpnn_msg_kernel-K1_PC", "s_addc_u32 s49, s49, 0", "v_and_b32 v54, 63, v0", "v_lshlrev_b32 v54, 7, v54",
          "v_min_u32 v54, K2_END-mpnn_msg_kernel, v54", "global_load_dword v55, v54, s[48:49]")
        a.label("K1_NPF")
    if opt.get("wb"):
        msk, slp = opt["wb"]
        a(f"s_and_b32 s19, s41, {msk}", "s_add_u32 s19, s19, s3", f"s_cmp_lg_u32 s19, {msk + 15}", "s_cbranch_scc1 K1_NWB", "s_waitcnt vmcnt(0)", *([f"s_sleep {slp}"] if slp else []), "buffer_wbl2 sc1")
        a.label("K1_NWB")
    co_addr()
    a("s_branch K1_B1")
    a.label("K1_FL")
    a("s_cmp_eq_u32 s19, 8", "s_cbranch_scc1 K1_FA", "s_cmp_gt_u32 s19, 8", "s_cbranch_scc1 K1_FU")
    a("s_lshr_b32 s42, s19, 1", "s_and_b32 s43, s19, 1", "s_lshl_b32 s42, s42, 5", "s_lshl_b32 s43, s43, 12", "s_add_u32 s43, s43, s42", "s_add_u32 s43, s43, 8192")
    for kk in range(8): a(f"buffer_load_ushort v{FR+kk}, v5, s[20:23], s43 offen offset:{128*kk}")
    a("s_branch K1_FLR")
    a.label("K1_FU")
    a("s_mov_b32 s48, s14", "s_mov_b32 s49, s15")
    a("s_sub_u32 s43, s19, 9", "s_lshr_b32 s42, s43, 2", "s_and_b32 s43, s43, 3", "s_lshl_b32 s42, s42, 5", "s_lshl_b32 s43, s43, 12", "s_add_u32 s43, s43, s42")
    for kk in range(8): a(f"buffer_load_ushort v{FR+kk}, v5, s[48:51], s43 offen offset:{128*kk}")
    a("s_branch K1_FLR")
    a.label("K1_FA")
    a("v_bfe_u32 v5, v0, 3, 2", "v_and_b32 v6, 3, v0", "v_lshl_add_u32 v5, v5, 2, v6", "v_lshlrev_b32 v5, 1, v5", "s_movk_i32 s43, 16384")
    for c in range(4): a(f"buffer_load_ushort v{FR+c}, v5, s[20:23], s43 offen offset:{32*c}")
    a("s_branch K1_FLR")
    a.label("K1_FS")
    a("v_and_b32 v5, 63, v0", "v_lshlrev_b32 v5, 4, v5", "s_lshl_b32 s36, s19, 10", f"s_add_u32 s36, s36, {WS_WF}")
    a("s_cmp_eq_u32 s19, 8", "s_cbranch_scc1 K1_AE")
    for rr in range(4): a(f"v_lshl_or_b32 v{W+rr}, v{FR+2*rr+1}, 16, v{FR+2*rr}")
    a(f"buffer_store_dwordx4 {vr(W,4)}, v5, s[32:35], s36 offen", "s_branch K1_PE")
    a.label("K1_AE")
    if opt.get("rot"): a("v_mov_b32 v2, s52", f"s_mov_b32 s53, {WS_HDR}", "buffer_store_dword v2, v5, s[32:35], s53 offen")
    a("v_bfe_u32 v2, v0, 2, 1", "v_bfe_u32 v3, v0, 5, 1", "v_cmp_eq_u32 vcc, v2, v3")
    for c in range(4):
        a(f"v_lshlrev_b32 v{FR+c}, 16, v{FR+c}", f"v_mul_f32 v{FR+c}, s46, v{FR+c}", f"v_cvt_pk_bf16_f32 v{FR+c}, 0, v{FR+c}", f"v_cndmask_b32 v{W+c}, 0, v{FR+c}, vcc")
    a(f"buffer_store_dwordx4 {vr(W,4)}, v5, s[32:35], s36 offen", "s_branch K1_PE")
    return a.lines

L_AGB = 0; ASTR = 144
L_QS = L_AGB + 112 * ASTR; QSTR = 272
L_CTR = L_QS + 112 * QSTR; L_OVC = L_CTR + 448; L_FLG = L_CTR + 452; L_CT2 = L_CTR + 512; L_SLOT = L_CTR + 1024; L_OVL = L_SLOT + 512
L_XS = L_OVL + 1024; L_WF = L_XS + 14336
L_ELL = L_WF + 25600; ESTR = 516; EROWS = 83
K2_LDS = L_ELL + 3 * 768 * 16 + 6144
assert K2_LDS >= L_ELL + EROWS * ESTR and L_ELL % 16 == 0 and L_XS % 256 == 0 and L_CTR % 256 == 0 and L_ELL + 512 < (1 << 17), (L_XS, L_ELL)
ZCOL = 112 * 4; DUMP = L_ELL + CAP * ESTR + 400; HCOL = 116 * 4

def gen_k2(opt):
    a = Asm(); st = Stamps(a, opt.get("stamp"), 78, 1, 12)
    perm = opt.get("perm", [0, 1, 2, 3, 10, 6, 5, 4, 11, 9, 8, 7])
    RG = opt.get("ring", 2); small = opt.get("small", 1); dp = opt.get("dprio", [8, 4, 2])
    Q, P, Z0, Z1, NN, DD, EX, BE, AL, AH, AE, IX, VI, VE, LEN, AGA, MFL, OOF, ARD, ARX = \
        8, 24, 56, 72, 88, 104, 120, 136, 140, 144, 148, 152, 154, 155, 159, 160, 161, 162, 163, 164
    WU = BE
    R = Z0
    AD = NN
    TG = DD
    W2 = Q; X = P
    SP, PP5, EH, QC, AC = DD + 8, DD + 9, DD + 10, DD + 11, DD + 12
    SWS, SPT, SX, SO = 24, 28, 32, 36
    MK = 40
    BK = "s76"
    ws = f"s[{SWS}:{SWS+3}]"
    a.label("mpnn_msg_kernel")
    a("s_cmp_ge_u32 s2, 256", "s_cbranch_scc1 K2_END")
    st.early()
    a("s_load_dwordx2 s[20:21], s[0:1], 64", "s_load_dwordx16 s[4:19], s[0:1], 0")
    a("v_lshrrev_b32 v1, 6, v0", "v_lshlrev_b32 v2, 4, v0", "v_readfirstlane_b32 s3, v1")
    for i in range(4): a(f"v_mov_b32 v{Q+i}, 0")
    a(f"v_add_u32 v4, {L_ELL}, v2")
    a("v_and_b32 v5, 255, v0", "v_lshlrev_b32 v5, 2, v5", f"v_add_u32 v6, {L_ELL}, v5", f"v_cmp_gt_u32 vcc, {NB*4}, v5")
    a(f"s_and_b32 {BK}, s2, 7", f"s_lshl_b32 {BK}, {BK}, 5", "s_lshr_b32 s64, s2, 3", f"s_add_u32 {BK}, {BK}, s64")
    a("v_cndmask_b32 v6, 0, v6, vcc", f"ds_write_b32 v5, v6 offset:{L_CTR}")
    for i in range(3): a(f"ds_write_b128 v4, {vr(Q,4)} offset:{12288*i}")
    a(f"v_lshlrev_b32 v5, 3, v0", f"v_add_u32 v5, {L_ELL + 3*12288}, v5", f"ds_write_b64 v5, {vr(Q,2)}")
    a(f"s_lshl_b32 s64, {BK}, 14", f"s_lshl_b32 s62, {BK}, 15", f"s_add_u32 s62, s62, {WS_RB}", f"s_add_u32 s64, s64, {WS_RA - 4096}", "s_add_u32 s65, s64, 8192",
      f"s_lshl_b32 s66, {BK}, 13", f"s_and_b32 s67, {BK}, 16", "s_add_u32 s66, s66, s67", f"s_add_u32 s66, s66, {WS_DA}", "s_xor_b32 s60, s66, 16",
      "s_sub_u32 s66, s66, 2048", "s_add_u32 s67, s66, 4096")
    a(f"s_mul_i32 s69, {BK}, {NB}", f"s_sub_u32 s70, {N}, s69", f"s_min_u32 s70, s70, {NB}", "s_lshl_b32 s70, s70, 7", "s_lshl_b32 s71, s69, 7")
    a("s_and_b32 s72, s3, 3", "s_lshr_b32 s73, s3, 2")
    a(f"s_mov_b32 s{SWS+2}, {WS_END}", f"s_mov_b32 s{SWS+3}, 0x20000", f"s_mov_b32 s{SX+2}, s70", f"s_mov_b32 s{SX+3}, 0x20000")
    a(f"v_and_b32 v4, 3, v0", "v_and_b32 v6, 63, v0", "v_lshlrev_b32 v6, 4, v6")
    a("v_lshlrev_b32 v3, 5, v0", "v_lshrrev_b32 v5, 2, v0", "v_lshlrev_b32 v5, 5, v5", "v_lshl_add_u32 v5, v4, 2, v5")
    BS = opt.get("bs", 0); BP = opt.get("bp", "a")
    if BS: a("v_lshlrev_b32 v166, 3, v6", "s_andn2_b32 s77, s2, 7", "s_add_u32 s77, s77, s3", "s_sub_u32 s77, s77, 4", f"s_mul_i32 s77, s77, {BS*128}", "s_and_b32 s61, s2, 7", f"s_mul_i32 s61, s61, {(25000 - 256*BS)//7*128 if opt.get('xo', 1) else 0}", "s_add_u32 s77, s77, s61")
    def bulk(): a(f"s_mov_b64 exec, {(1 << BS) - 1 if BS < 64 else -1:#x}" if BS <= 32 else f"s_mov_b32 exec_hi, {(1 << (BS-32)) - 1:#x}", "buffer_load_dword v167, v166, s[24:27], s77 offen", "s_mov_b64 exec, -1")
    a("s_cmp_eq_u32 s73, 0")
    a("s_waitcnt lgkmcnt(0)")
    st()
    if opt.get("x1"): a("s_branch K2_FIN")
    a(f"s_mov_b32 s{SWS}, s20", f"s_mov_b32 s{SWS+1}, s21")
    if opt.get("rot"): a(f"s_mov_b32 s23, {WS_HDR}", "s_load_dword s77, s[20:21], s23")
    a("s_cbranch_scc0 K2_A1")
    a(f"buffer_load_dwordx4 {vr(TG,4)}, v3, {ws}, s60 offen {opt.get('kflag', '')}")
    a(f"s_add_u32 s{SX}, s4, s71", f"s_addc_u32 s{SX+1}, s5, 0")
    a("v_bfe_u32 v7, v0, 4, 2", "v_lshlrev_b32 v7, 4, v7", "v_xor_b32 v7, v7, v6", "v_xor_b32 v5, 64, v7",
      "s_lshl_b32 s60, s3, 11", f"s_add_u32 s61, s60, {L_XS}", f"s_add_u32 m0, s60, {L_WF}", f"s_add_u32 s63, s60, {WS_WF}")
    a("s_barrier")
    sx = f"s[{SX}:{SX+3}]"
    a(f"buffer_load_dwordx4 v6, {ws}, s63 offen lds", f"buffer_load_dwordx4 v6, {ws}, s63 offen offset:1024 lds", "s_mov_b32 m0, s61", "v_lshlrev_b32 v3, 7, v0")
    a(f"buffer_load_dwordx4 v7, {sx}, s60 offen lds", f"buffer_load_dwordx4 v5, {sx}, s60 offen offset:1024 lds",
      "s_add_u32 m0, s61, 8192", "s_add_u32 s60, s60, 8192", "s_cmp_eq_u32 s3, 3", "s_cbranch_scc1 K2_A3",
      f"buffer_load_dwordx4 v7, {sx}, s60 offen lds", f"buffer_load_dwordx4 v5, {sx}, s60 offen offset:1024 lds")
    a("s_branch K2_A2")
    a.label("K2_A3")
    a(f"s_mov_b32 m0, {L_WF + 8192}", f"s_mov_b32 s60, {WS_WF + 8192}", f"buffer_load_dwordx4 v6, {ws}, s60 offen lds", "s_mov_b64 exec, 0", f"buffer_load_dwordx4 v6, {ws}, s60 offen lds", "s_mov_b64 exec, -1")
    a("s_branch K2_A2")
    a.label("K2_A1")
    a(f"buffer_load_dword v{TG}, v5, {ws}, s66 offen {opt.get('kflag', '')}", f"buffer_load_dword v{TG+1}, v5, {ws}, s67 offen {opt.get('kflag', '')}")
    a("s_barrier")
    a(f"buffer_load_dwordx4 {vr(R,4)}, v2, {ws}, s64 offen {opt.get('kflag', '')}", f"buffer_load_dwordx4 {vr(R+4,4)}, v2, {ws}, s65 offen {opt.get('kflag', '')}")
    if BS and BP == "a": bulk()
    a.label("K2_A2")
    a("s_lshl_b32 s74, s73, 11", f"s_add_u32 s75, s74, {3*2048}", f"s_add_u32 s22, s74, {6*2048}")
    srd(a, SPT, 20, 21, N, stride=128)
    a(f"s_add_u32 s{SO}, s16, s71", f"s_addc_u32 s{SO+1}, s17, 0", f"s_mov_b32 s{SO+2}, s70", f"s_mov_b32 s{SO+3}, 0x20000")
    T = Z1
    if small:
        a(f"v_and_b32 v{T}, 1, v0", f"v_lshlrev_b32 v{T}, 4, v{T}", f"v_mov_b32 v{T+1}, 0x3f80", f"v_lshlrev_b32 v{T}, v{T}, v{T+1}", "v_cmp_gt_u32 vcc, 2, v4",
          f"v_cndmask_b32 v{AL}, 0, v{T}, vcc", f"v_cndmask_b32 v{AL+1}, v{T}, 0, vcc")
    else:
        a(f"v_and_b32 v{T}, 1, v0", f"v_lshlrev_b32 v{T}, 4, v{T}", f"v_mov_b32 v{T+1}, 0x3f80", f"v_lshlrev_b32 v{T}, v{T}, v{T+1}",
          f"v_bfe_u32 v{T+1}, v0, 3, 2", f"v_bfe_u32 v{T+2}, v0, 1, 1", f"v_lshl_add_u32 v{T+1}, v{T+1}, 1, v{T+2}",
          f"v_bfe_u32 v{T+2}, v0, 2, 1", f"v_bfe_u32 v{T+3}, v0, 5, 1", f"v_xor_b32 v{T+2}, v{T+2}, v{T+3}", f"v_lshl_add_u32 v{T+1}, v{T+2}, 3, v{T+1}")
        for k in range(8): a(f"v_cmp_eq_u32 s[{MK+2*k}:{MK+2*k+1}], {k}, v{T+1}")
        for k in range(8): a(f"v_cndmask_b32 v{AL+k}, 0, v{T}, s[{MK+2*k}:{MK+2*k+1}]")
    J, QQ = T, T + 1
    a(f"v_and_b32 v{J}, 15, v0", f"v_bfe_u32 v{QQ}, v0, 4, 2", f"v_lshlrev_b32 v{OOF}, 7, v{J}",
      f"v_lshrrev_b32 v{ARX}, 1, v{J}", f"v_xor_b32 v{ARX}, v{ARX}, v{QQ}", f"v_lshl_add_u32 v{ARX}, v{ARX}, 4, v{OOF}",
      f"s_lshl_b32 s64, s72, 5", f"v_lshl_add_u32 v{OOF}, v{QQ}, 3, v{OOF}", f"v_add_u32 v{OOF}, s64, v{OOF}",
      f"s_mul_i32 s64, s73, {64*QSTR}", f"s_lshl_b32 s65, s72, 6", "s_add_u32 s64, s64, s65", f"s_add_u32 s64, s64, {L_QS - 64*QSTR}",
      f"v_mul_u32_u24 v1, {QSTR}, v{J}", f"v_lshl_add_u32 v1, v{QQ}, 4, v1", "v_add_u32 v1, s64, v1",
      f"s_lshl_b32 s64, s73, 13", f"s_add_u32 s64, s64, {L_XS - 8192}", f"v_add_u32 v2, s64, v{ARX}", "v_xor_b32 v7, 64, v2",
      f"s_lshl_b32 s64, s73, 4", f"v_add_u32 v{J}, s64, v{J}", f"v_mul_u32_u24 v{ARD}, {ASTR}, v{J}", f"v_lshl_add_u32 v{ARD}, v{QQ}, 4, v{ARD}",
      f"s_add_u32 s64, s74, {L_XS}", f"v_add_u32 v{ARX}, s64, v{ARX}")
    a(f"v_lshlrev_b32 v{IX+1}, 4, v4")
    a(f"v_mov_b32 v5, {ESTR}", f"s_movk_i32 s64, {NB*4}", f"s_mov_b32 s65, {DUMP}", "s_mov_b32 s68, 0", "s_mov_b32 s71, 0", "s_mov_b32 s70, 0")
    pk = sum(p << (4 * w) for w, p in enumerate(perm))
    a(f"s_mov_b32 s66, {pk & 0xffffffff:#x}", f"s_mov_b32 s67, {pk >> 32:#x}", "s_lshl_b32 s23, s3, 2", f"s_lshr_b64 s[66:67], s[66:67], s23",
      f"s_and_b32 s23, s66, 15", "s_lshl_b32 s23, s23, 4")
    a(f"v_bfe_u32 v{BE}, v0, 2, 4", f"v_add_u32 v{BE}, s23, v{BE}")
    a(f"v_and_b32 v{BE+2}, 1, v{BE}", f"v_cmp_gt_u32 vcc, 4, v{BE}", f"v_cmp_eq_u32 s[66:67], 0, v{BE+2}",
      f"v_lshlrev_b32 v{BE+1}, 1, v{BE}", f"v_and_b32 v{BE+1}, 0x1fc, v{BE+1}", f"v_subrev_u32 v{BE+1}, 8, v{BE+1}", f"v_lshlrev_b32 v{BE}, 2, v{BE}", f"v_add_u32 v{BE}, {(NB-4)*4}, v{BE}",
      f"s_or_b64 s[58:59], vcc, s[66:67]", f"s_andn2_b64 s[66:67], s[66:67], vcc",
      f"v_cndmask_b32 v{BE+1}, v{BE+1}, v{BE}, vcc",
      f"v_cndmask_b32 v{SP}, 1, 0, vcc", f"v_cndmask_b32 v{PP5}, v5, 0, s[58:59]", f"v_cndmask_b32 v{EH}, 0, 1, s[66:67]",
      f"v_cndmask_b32 v{MFL}, 0, 1.0, s[66:67]", f"v_mov_b32 v{BE+3}, {L_ELL + ZCOL}",
      f"v_lshlrev_b32 v{QC}, 6, v4", f"v_add_u32 v{QC}, {(L_QS - 68*L_ELL) & 0xffffffff:#x}, v{QC}", f"v_lshlrev_b32 v{AC}, 5, v4", f"v_add_u32 v{AC}, {(L_AGB - 36*L_ELL) & 0xffffffff:#x}, v{AC}")
    a(f"s_mov_b32 s66, {NLOG2E:#x}", f"s_mov_b32 s67, {NLOG2E:#x}")
    T = EX; IP = EX + 4
    for k in range(RG + 1): a(f"v_mov_b32 v{IP+2*k+1}, v{IX+1}")
    a("s_cmp_eq_u32 s73, 0", "s_cbranch_scc1 K2_CT")
    def a_round(ad, l, mk):
        for k in range(4): a(f"v_lshlrev_b32_sdwa v{ad+k}, 2, v{l} dst_sel:DWORD dst_unused:UNUSED_PAD src0_sel:DWORD src1_sel:BYTE_{k}")
        for k in range(4): a(f"v_cmp_gt_u32 s[{mk+2*k}:{mk+2*k+1}], s64, v{ad+k}")
        for k in range(4): a(f"s_mov_b64 exec, s[{mk+2*k}:{mk+2*k+1}]", f"ds_add_rtn_u32 v{ad+k}, v{ad+k}, v5 offset:{L_CTR}")
        a("s_mov_b64 exec, -1")
    stk = st.k
    ellpre = 0
    def ellw():
        for k in range(8):
            if k % 4 == 0: a(f"s_waitcnt vmcnt({1 - k//4 + (1 if BS else 0)})")
            if k == 4 and st.on == 1: a("s_memrealtime s[100:101]")
            a(f"v_min_u32 v{AD+k}, s65, v{AD+k}", f"ds_write_b32 v{AD+k}, v{R+k}")
    a(f"s_lshl_b32 s23, s72, 11", f"s_add_u32 s23, s23, {L_WF}", f"v_add_u32 v3, s23, v6", f"v_mov_b32 v{Z1+4}, 0")
    if BS and BP == "a2": bulk()
    a(f"s_waitcnt vmcnt({2 + (1 if BS and BP != 'b' else 0)})")
    st()
    if BS and BP == "b": bulk()
    a_round(AD, TG, MK); a_round(AD + 4, TG + 1, MK + 8)
    a("s_waitcnt lgkmcnt(0)")
    if ellpre: ellw()
    a("s_barrier")
    if opt.get("rot"): a(f"s_and_b32 s77, s77, {((1 << opt['rot']) - 1) << 22:#x}", f"s_add_u32 s77, s77, {WS_PR}", f"s_add_u32 s{SPT}, s20, s77", f"s_addc_u32 s{SPT+1}, s21, 0", f"s_or_b32 s{SPT+1}, s{SPT+1}, {128 << 16:#x}")
    st()
    a.label("K2_AB1")
    T = Z1 + 4
    a(f"ds_read_b32 v{T+1}, v{T} offset:{L_OVC}")
    if not ellpre: ellw()
    a("s_waitcnt lgkmcnt(4)", f"v_readfirstlane_b32 s23, v{T+1}")
    a(f"ds_read_b128 {vr(W2,4)}, v3", f"ds_read_b128 {vr(W2+4,4)}, v3 offset:1024")
    for i in range(4): a(f"ds_read_b128 {vr(X+8*i,4)}, v2 offset:{2048*i}", f"ds_read_b128 {vr(X+8*i+4,4)}, v7 offset:{2048*i}")
    a("s_andn2_b32 s23, s23, s68", "s_cbranch_scc1 K2_RESCAN")
    QT = Z1; T = EX
    def gather(slot, ix):
        p = P + 8 * slot
        return [f"buffer_load_dwordx4 {vr(p,4)}, {vr(ix,2)}, s[{SPT}:{SPT+3}], 0 idxen offen {opt.get('gflag', '')}",
                f"buffer_load_dwordx4 {vr(p+4,4)}, {vr(ix,2)}, s[{SPT}:{SPT+3}], 0 idxen offen offset:64 {opt.get('gflag', '')}"]
    stb = st.k
    for r in range(4): a(f"v_cmp_eq_u32 s[{MK+4+2*r}:{MK+5+2*r}], {r}, v4")
    a(f"v_add_u32 v7, {L_WF + 8192}, v6")
    if st.on == 1: a("s_memrealtime s[96:97]", "s_waitcnt lgkmcnt(0)", "s_mov_b32 s97, s100")
    a("s_waitcnt lgkmcnt(%d)" % (0 if st.on == 1 else 10), "s_barrier")
    st()
    a(f"ds_read_b32 v{T}, v{BE+1} offset:{L_SLOT}", f"ds_read_b128 {vr(AE,4)}, v7", "s_waitcnt lgkmcnt(2)")
    for i in range(4): a(mf16(QT+4*i, W2, X+8*i, "0"))
    for i in range(4): a(mf16(QT+4*i, W2+4, X+8*i+4, QT+4*i))
    def slotdec():
        a("s_waitcnt lgkmcnt(1)")
        a(f"v_lshrrev_b32 v{LEN}, 17, v{T}", f"v_add_u32 v{T+1}, v{LEN}, v{SP}", f"v_and_b32 v{T}, 0x1ffff, v{T}", f"v_lshrrev_b32 v{T+1}, 1, v{T+1}", f"v_mad_u32_u24 v{VI}, v{T+1}, v{PP5}, v{T}")
        a(f"ds_read_u16 v{IP}, v{VI}")
    slotdec()
    for i in range(4):
        a(f"v_pk_mul_f32 {vr(QT+4*i,2)}, {vr(QT+4*i,2)}, s[66:67]", f"v_pk_mul_f32 {vr(QT+4*i+2,2)}, {vr(QT+4*i+2,2)}, s[66:67]")
        if i == 3: a(f"s_waitcnt lgkmcnt(3)", *gather(0, IP), "s_cmp_eq_u32 s73, 2", "s_cbranch_scc1 K2_NQ2")
        a(f"ds_write_b128 v1, {vr(QT+4*i,4)} offset:{16*QSTR*i}")
    a("s_branch K2_NQ2")
    a.label("K2_CT")
    st.k = stk
    C0, C1, H0, H1, T0, T1, HH, PS, L4, B0, B1_, LOB, HIB, HA, FOUR = [Q + i for i in range(15)]
    a(f"v_mov_b32 v{Z1+4}, {MARK:#x}", "s_lshl_b32 s60, s3, 12", f"s_add_u32 m0, s60, {L_WF + 9*1024}", f"s_add_u32 s60, s60, {WS_WF + 9*1024}")
    a(f"v_lshlrev_b32 v{L4}, 2, v0", f"v_add_u32 v{B0}, {L_ELL}, v{L4}", f"v_add_u32 v{B1_}, {L_ELL + 256}, v{L4}",
      f"v_mov_b32 v{LOB}, {(CAP-63)*ESTR}", f"v_mov_b32 v{HIB}, {CAP*ESTR}", f"v_mul_u32_u24 v{HA}, {ESTR}, v0", f"v_sub_u32 v{HA}, {L_ELL + HCOL + CAP*ESTR}, v{HA}", f"v_mov_b32 v{FOUR}, 4",
      f"s_mov_b32 s61, {L_ELL + HCOL}")
    AD2 = P + 8; AD3 = P + 24
    for k in range(16): a(f"v_mov_b32 v{AD+k}, -1")
    a("s_waitcnt vmcnt(6)")
    st()
    for j in range(4): a(f"v_cmp_ne_u32 s[{MK+2*j}:{MK+2*j+1}], -1, v{TG+j}")
    a(f"v_cmp_eq_u32 vcc, v{Z1+4}, v{TG}")
    for j in range(4): a(f"s_mov_b64 exec, s[{MK+2*j}:{MK+2*j+1}]", f"buffer_load_dwordx4 {vr(R+4*j,4)}, v3, {ws}, s62 offen offset:{16*j} {opt.get('kflag', '')}")
    a("s_mov_b64 exec, -1")
    for j in range(4):
        a(f"s_cmp_eq_u64 s[{MK+2*j}:{MK+2*j+1}], 0", f"s_cbranch_scc1 K2_TS{j}")
        if j == 3: a("s_waitcnt lgkmcnt(8)")
        for k in range(4): a(f"v_lshlrev_b32_sdwa v{AD2+4*j+k}, 2, v{TG+j} dst_sel:DWORD dst_unused:UNUSED_PAD src0_sel:DWORD src1_sel:BYTE_{k}")
        for k in range(4): a(f"v_cmp_gt_u32 s[{MK+8+2*k}:{MK+9+2*k}], s64, v{AD2+4*j+k}")
        for k in range(4): a(f"s_mov_b64 exec, s[{MK+8+2*k}:{MK+9+2*k}]", f"ds_add_rtn_u32 v{AD+4*j+k}, v{AD2+4*j+k}, v5 offset:{L_CT2}")
        a("s_mov_b64 exec, -1", f"s_bitset1_b32 s70, {j}")
        a.label(f"K2_TS{j}")
    if opt.get("nowu"): a("s_mov_b64 exec, 0")
    for k in range(4): a(f"buffer_load_dwordx4 v6, {ws}, s60 offen offset:{1024*k} lds")
    if opt.get("nowu"): a("s_mov_b64 exec, -1")
    a("s_cbranch_vccnz K2_MARK")
    a.label("K2_MR")
    a("s_waitcnt lgkmcnt(0)")
    if opt.get("rot"): a(f"s_and_b32 s77, s77, {((1 << opt['rot']) - 1) << 22:#x}", f"s_add_u32 s77, s77, {WS_PR}", f"s_add_u32 s{SPT}, s20, s77", f"s_addc_u32 s{SPT+1}, s21, 0", f"s_or_b32 s{SPT+1}, s{SPT+1}, {128 << 16:#x}")
    a("s_waitcnt vmcnt(8)", "s_barrier")
    st()
    a.label("K2_AB1T")
    a(f"v_and_b32 v{T0}, 0xfc, v{L4}", f"ds_read2st64_b32 {vr(C0,2)}, v{T0} offset0:{L_CTR//256} offset1:{L_CTR//256+1}", f"ds_read2st64_b32 {vr(H0,2)}, v{T0} offset0:{L_CTR//256+2} offset1:{L_CTR//256+3}", "s_setprio 3", "s_mov_b32 s56, -1", "s_mov_b32 s57, 3")
    a("s_waitcnt lgkmcnt(0)", f"v_readlane_b32 s23, v{C1}, 48", f"v_sub_u32 v{C0}, v{C0}, v{B0}", f"v_sub_u32 v{C1}, v{C1}, v{B1_}", f"v_add_u32 v{C0}, v{C0}, v{H0}", f"v_add_u32 v{C1}, v{C1}, v{H1}",
      "s_andn2_b32 s23, s23, s68", "s_cbranch_scc1 K2_RESCAN", "s_cmp_lg_u32 s3, 0", "s_cbranch_scc1 K2_TW")
    for c, h, t in ((C0, H0, T0), (C1, H1, T1)):
        if c == C1: a("s_mov_b64 exec, s[56:57]")
        a(f"v_med3_u32 v{h}, v{c}, v{LOB}, v{HIB}", f"v_add_u32 v{t}, s61, v{h}", f"ds_add_rtn_u32 v{t}, v{t}, v{FOUR}")
    a(f"v_cmp_gt_u32 s[{MK}:{MK+1}], v{C1}, v{HIB}", "s_mov_b64 exec, -1", f"ds_read_b32 v{HH}, v{HA}", f"v_cmp_gt_u32 vcc, v{C0}, v{HIB}")
    for c, h, b in ((C0, H0, B0), (C1, H1, B1_)):
        a(f"v_min_u32 v{c}, v{c}, v{HIB}", f"v_lshrrev_b32 v{c}, 2, v{c}", f"v_mul_u32_u24 v{c}, 509, v{c}", f"v_lshrrev_b32 v{c}, 16, v{c}",
          f"v_max_u32 v{h}, {CAP-63}, v{c}", f"v_sub_u32 v{h}, {CAP}, v{h}", f"v_lshlrev_b32 v{h}, 2, v{h}", f"v_lshl_or_b32 v{c}, v{c}, 17, v{b}")
    a(f"s_or_b64 vcc, vcc, s[{MK}:{MK+1}]", "s_waitcnt lgkmcnt(0)")
    a(f"v_add_u32_dpp v{PS}, v{HH}, v{HH} row_shr:1 row_mask:0xf bank_mask:0xf bound_ctrl:0")
    for k in (2, 4, 8): a(f"v_add_u32_dpp v{PS}, v{PS}, v{PS} row_shr:{k} row_mask:0xf bank_mask:0xf bound_ctrl:0")
    a(f"v_add_u32_dpp v{PS}, v{PS}, v{PS} row_bcast:15 row_mask:0xa bank_mask:0xf", f"v_add_u32_dpp v{PS}, v{PS}, v{PS} row_bcast:31 row_mask:0xc bank_mask:0xf")
    a(f"v_sub_u32 v{PS}, v{PS}, v{HH}", f"ds_bpermute_b32 v{H0}, v{H0}, v{PS}", f"ds_bpermute_b32 v{H1}, v{H1}, v{PS}")
    a(f"v_mov_b32 v{HH}, 0", "s_waitcnt lgkmcnt(1)", f"v_add_u32 v{H0}, v{H0}, v{T0}", f"ds_write_b32 v{H0}, v{C0} offset:{L_SLOT}",
      "s_waitcnt lgkmcnt(1)", "s_mov_b64 exec, s[56:57]", f"v_add_u32 v{H1}, v{H1}, v{T1}", f"ds_write_b32 v{H1}, v{C1} offset:{L_SLOT}", "s_mov_b64 exec, -1")
    a("s_cbranch_vccz K2_TW", f"ds_write_b32 v{HH}, v5 offset:{L_FLG}")
    a.label("K2_TW")
    a.label("K2_CWR")
    for r in range(4): a(f"v_cmp_eq_u32 s[{MK+4+2*r}:{MK+5+2*r}], {r}, v4")
    T = EX
    a(f"v_add_u32 v7, {L_WF + 8192}, v6")
    if st.on == 1: a("s_waitcnt lgkmcnt(0)", "s_memrealtime s[96:97]")
    a("s_waitcnt lgkmcnt(0)", "s_barrier")
    st()
    a(f"ds_read_b32 v{T}, v{BE+1} offset:{L_SLOT}", f"ds_read_b128 {vr(AE,4)}, v7")
    slotdec()
    a(f"s_waitcnt lgkmcnt(0)", *gather(0, IP))
    for j in range(4):
        a(f"s_bitcmp0_b32 s70, {j}", f"s_cbranch_scc1 K2_TR{j}")
        for k in range(4): a(f"ds_read_b32 v{AD3+k}, v{AD2+4*j+k} offset:{L_CTR}")
        for k in range(4): a(f"s_waitcnt lgkmcnt({3-k})", f"v_add_u32 v{AD+4*j+k}, v{AD+4*j+k}, v{AD3+k} clamp", f"v_min_u32 v{AD+4*j+k}, s65, v{AD+4*j+k}")
        a.label(f"K2_TR{j}")
    a("s_waitcnt vmcnt(6)")
    if st.on == 1: a("s_memrealtime s[100:101]", "s_waitcnt lgkmcnt(0)", "s_mov_b32 s97, s100")
    for j in range(4):
        a(f"s_bitcmp0_b32 s70, {j}", f"s_cbranch_scc1 K2_TW{j}")
        if j == 3: a("s_waitcnt lgkmcnt(4)")
        for k in range(4): a(f"ds_write_b32 v{AD+4*j+k}, v{R+4*j+k}")
        a.label(f"K2_TW{j}")
    a.label("K2_NQ2")
    def rde(t): return [f"ds_read_b32 v{BE+r}, v{VE+r} offset:{t*ESTR}" for r in range(4)]
    a(f"v_mov_b32 v{T+1}, 68", f"v_mad_u32_u24 v{T+2}, v{T}, v{T+1}, v{QC}")
    for r in range(4): a(f"v_cndmask_b32 v{VE+r}, v{BE+3}, v{VI}, s[{MK+4+2*r}:{MK+5+2*r}]")
    for i in range(16): a(f"v_mov_b32 v{NN+i}, 0")
    a("s_waitcnt vmcnt(2) lgkmcnt(0)", "s_barrier")
    a(f"ds_read_u16 v{T+3}, v{VI}")
    for k in range(1, RG + 1): a(f"ds_read_u16 v{IP+2*k}, v{VI} offset:{k*ESTR}")
    for k in range(4): a(f"ds_read_b128 {vr(Q+4*k,4)}, v{T+2} offset:{16*k}")
    a(*rde(0), f"ds_read_u16 v{IX}, v{VI} offset:{(RG+1)*ESTR}")
    a(f"s_waitcnt lgkmcnt({RG + 8})", f"v_cmp_ne_u32 vcc, v{T+3}, v{IP}", "s_cbranch_vccnz K2_G0R")
    a.label("K2_G0D")
    a(*gather(1, IP + 2))
    a(f"v_add_u32 v{LEN}, v{LEN}, v{EH}", f"v_lshrrev_b32 v{LEN}, v{SP}, v{LEN}", f"v_mad_u32_u24 v{AGA}, v{T}, 36, v{AC}")
    a(f"v_max_u32_dpp v{T+1}, v{LEN}, v{LEN} row_shr:4 row_mask:0xf bank_mask:0xf bound_ctrl:0")
    for i in range(8): a(f"v_mov_b32 v{DD+i}, 1.0")
    a(f"v_max_u32_dpp v{T+1}, v{T+1}, v{T+1} row_shr:8 row_mask:0xf bank_mask:0xf bound_ctrl:0")
    for i in range(8, 16): a(f"v_mov_b32 v{DD+i}, 1.0")
    a(f"v_readlane_b32 s69, v{T+1}, 15", f"v_readlane_b32 s70, v{T+1}, 31", f"v_readlane_b32 s64, v{T+1}, 47", f"v_readlane_b32 s65, v{T+1}, 63",
      "s_max_u32 s69, s69, s70", "s_max_u32 s64, s64, s65", "s_max_u32 s69, s69, s64", "s_mov_b32 s70, 0")
    a(f"s_lshl_b32 s23, s72, 12", f"s_add_u32 s23, s23, 1024", "v_add_u32 v7, s23, v7")
    a("s_cmp_eq_u32 s69, 0", "s_cbranch_scc1 K2_DONE0")
    a(f"s_waitcnt vmcnt(2) lgkmcnt(0)")
    st()
    if st.on == 1: a("s_memtime s[98:99]", "s_waitcnt lgkmcnt(0)")
    for k in range(2, RG): a(*gather(k, IP + 2*k))
    def sm(z, b, c): return f"v_mfma_f32_4x4x4_16b_bf16 {vr(z,4)}, {vr(AL,2)}, {vr(b,2)}, {vr(c,4)}"
    if small: a(*[sm(Z0+4*i, P+2*i, Q+4*i) for i in range(4)], mf32(Z0, AE, BE, Z0))
    else: a(mf32(Z0, AE, BE, Q), mf32(Z0, AL, P, Z0), mf32(Z0, AH, P + 4, Z0))
    a(*gather(0, IP + 2*RG), *rde(1), "s_nop 3")
    U = max(2, RG)
    a(f"s_branch K2_PRI{U-1}")
    a(".p2align 6")
    for u in range(U):
        a.label(f"K2_L{u}")
        zc = (Z0, Z1)[u % 2]; zn = (Z1, Z0)[u % 2]; p = P + 8 * ((u + 1) % RG)
        ex = [f"v_exp_f32 v{EX+i}, v{zc+i}" for i in range(16)]
        a(f"s_waitcnt vmcnt({2*RG-2}) lgkmcnt(0)")
        if small:
            s4 = [sm(zn+4*i, p+2*i, Q+4*i) for i in range(4)]
            a(s4[0], ex[0], s4[1], ex[1], s4[2], ex[2], s4[3], *ex[3:8], mf32(zn, AE, BE, zn), *ex[8:16])
        else: a(mf32(zn, AE, BE, Q), *ex[0:4], mf32(zn, AL, p, zn), *ex[4:8], mf32(zn, AH, p + 4, zn), *ex[8:16])
        a(*gather((u + 1) % RG, IX), *rde(u + 2), f"ds_read_u16 v{IX}, v{VI} offset:{(u+RG+2)*ESTR}")
        a(f"v_cmpx_lt_u32 vcc, s70, v{LEN}")
        for i in range(0, 16, 2): a(f"v_pk_fma_f32 {vr(NN+i,2)}, {vr(NN+i,2)}, {vr(EX+i,2)}, {vr(NN+i,2)}")
        for i in range(0, 16, 2): a(f"v_pk_fma_f32 {vr(NN+i,2)}, {vr(zc+i,2)}, {vr(DD+i,2)}, {vr(NN+i,2)}")
        for i in range(0, 16, 2): a(f"v_pk_fma_f32 {vr(DD+i,2)}, {vr(DD+i,2)}, {vr(EX+i,2)}, {vr(DD+i,2)}")
        a("s_mov_b64 exec, -1", "s_add_u32 s70, s70, 1", "s_cmp_ge_u32 s70, s64")
        if u < U - 1: a(f"s_cbranch_scc1 K2_PRI{u}")
        else:
            for rg in [VI] + [VE + r for r in range(4)]: a(f"v_add_u32 v{rg}, {U*ESTR}, v{rg}")
            a("s_cbranch_scc0 K2_L0")
    for u in list(range(U - 1, -1, -1)):
        a.label(f"K2_PRI{u}")
        nx = f"K2_L{(u+1)%U}"
        a("s_sub_u32 s65, s69, s70")
        for lv, th in zip((3, 2, 1), dp):
            a(f"s_setprio {lv}", f"s_sub_u32 s64, s69, {th}", f"s_cmp_gt_u32 s65, {th}", f"s_cbranch_scc1 {nx}")
        a("s_setprio 0", "s_mov_b32 s64, s69", "s_cmp_lg_u32 s65, 0", f"s_cbranch_scc1 {nx}")
        if u: a("s_branch K2_DONE")
    a.label("K2_DONE")
    st()
    if st.on == 1: a("s_memtime s[100:101]", "s_waitcnt lgkmcnt(0)", "s_sub_u32 s98, s100, s98")
    XF = Z0; ACC = Q
    a(f"v_xor_b32 v3, 64, v{ARX}")
    for i in range(16): a(f"v_rcp_f32 v{EX+i}, v{DD+i}")
    a("s_waitcnt lgkmcnt(0)")
    for k in range(4): a(f"ds_read_b128 {vr(WU+4*k,4)}, v7 offset:{1024*k}")
    for i in range(3): a(f"ds_read_b128 {vr(XF+8*i,4)}, v{ARX} offset:{6144*i}", f"ds_read_b128 {vr(XF+8*i+4,4)}, v3 offset:{6144*i}")
    a(f"s_mov_b32 s66, {NLN2:#x}", f"s_mov_b32 s67, {NLN2:#x}", f"s_mov_b32 s64, {f2u(2.0**120):#x}")
    for i in range(0, 16, 2): a(f"v_pk_mul_f32 {vr(NN+i,2)}, {vr(NN+i,2)}, s[66:67]")
    a(f"v_max3_f32 v2, v{DD}, v{DD+1}, v{DD+2}")
    for i in range(3, 15, 2): a(f"v_max3_f32 v2, v{DD+i}, v{DD+i+1}, v2")
    a(f"v_max_f32 v2, v{DD+15}, v2")
    for i in range(0, 16, 2): a(f"v_pk_mul_f32 {vr(NN+i,2)}, {vr(NN+i,2)}, {vr(EX+i,2)}")
    a(f"v_pk_mul_f32 {vr(DD,2)}, {vr(NN,2)}, 0")
    for i in range(2, 16, 2): a(f"v_pk_fma_f32 {vr(DD,2)}, {vr(NN+i,2)}, 0, {vr(DD,2)}")
    for i in range(16): a(f"v_fmac_f32_dpp v{NN+i}, v{NN+i}, v{MFL} row_shl:4 row_mask:0xf bank_mask:0xf bound_ctrl:0")
    a(f"v_cmp_u_f32 vcc, v{DD}, v{DD+1}", f"v_cmp_nlt_f32 s[{MK+2}:{MK+3}], v2, s64", f"s_or_b64 vcc, vcc, s[{MK+2}:{MK+3}]")
    for i in range(8): a(f"v_cvt_pk_bf16_f32 v{EX+i}, v{NN+2*i}, v{NN+2*i+1}")
    a("s_waitcnt lgkmcnt(0)", f"s_mov_b64 exec, s[58:59]", f"ds_write_b128 v{AGA}, {vr(EX,4)} offset:{L_AGB}", f"ds_write_b128 v{AGA}, {vr(EX+4,4)} offset:{L_AGB+16}")
    a("s_mov_b64 exec, vcc", "v_mov_b32 v2, 0", f"ds_write_b32 v2, v5 offset:{L_FLG}", "s_mov_b64 exec, -1")
    a(f"s_mov_b32 s66, {NLOG2E:#x}", f"s_mov_b32 s67, {NLOG2E:#x}", "v_mov_b32 v2, 0")
    for i in range(3): a(mf16(ACC+4*i, WU, XF+8*i, "0"))
    for i in range(3): a(mf16(ACC+4*i, WU+4, XF+8*i+4, ACC+4*i))
    a("s_waitcnt lgkmcnt(0)", "s_barrier")
    st()
    a.label("K2_EPI")
    B = Z0; O = EX; TT = NN; WU2 = WU + 8
    a(f"ds_read_b32 v3, v2 offset:{L_FLG}")
    for i in range(3):
        for s in range(2): a(f"ds_read_b128 {vr(B+8*i+4*s,4)}, v{ARD} offset:{L_AGB + 48*ASTR*i + 64*s}")
    a("s_waitcnt lgkmcnt(6)", "v_readfirstlane_b32 s23, v3", "s_andn2_b32 s23, s23, s71", "s_cbranch_scc1 K2_BF")
    def epi_tile(i):
        o = O + 4 * i; t = TT + 4 * i
        a(f"v_pk_mul_f32 {vr(t,2)}, {vr(o,2)}, s[66:67]", f"v_pk_mul_f32 {vr(t+2,2)}, {vr(o+2,2)}, s[66:67]")
        for k in range(4): a(f"v_exp_f32 v{t+k}, v{t+k}")
        a(f"v_pk_add_f32 {vr(t,2)}, {vr(t,2)}, 1.0 op_sel_hi:[1,0]", f"v_pk_add_f32 {vr(t+2,2)}, {vr(t+2,2)}, 1.0 op_sel_hi:[1,0]")
        for k in range(4): a(f"v_rcp_f32 v{t+k}, v{t+k}")
        a(f"v_pk_mul_f32 {vr(t,2)}, {vr(t,2)}, {vr(o,2)}", f"v_pk_mul_f32 {vr(t+2,2)}, {vr(t+2,2)}, {vr(o+2,2)}")
        a(f"v_cvt_pk_bf16_f32 v{o}, v{t}, v{t+1}", f"v_cvt_pk_bf16_f32 v{o+1}, v{t+2}, v{t+3}")
        a(f"buffer_store_dwordx2 {vr(o,2)}, v{OOF}, s[{SO}:{SO+3}], {('s74','s75','s22')[i]} offen {opt.get('oflag', '')}")
    for i in range(3):
        a(f"s_waitcnt lgkmcnt({4-2*i})", mf16(O+4*i, WU2, B+8*i, ACC+4*i), mf16(O+4*i, WU2+4, B+8*i+4, O+4*i))
    epi_tile(0); epi_tile(1)
    a("s_cmp_lg_u32 s73, 0", "s_cbranch_scc1 K2_FIN")
    epi_tile(2)
    a.label("K2_FIN")
    if st.on: a("s_waitcnt vmcnt(0)")
    if opt.get("edly") is not None:
        a("s_cmp_lg_u32 s3, 0", "s_cbranch_scc1 K2_END", "s_memrealtime s[40:41]", "s_waitcnt lgkmcnt(0)")
        a.label("K2_DG")
        a("s_sleep 1", "s_memrealtime s[42:43]", "s_waitcnt lgkmcnt(0)", "s_sub_u32 s42, s42, s40", f"s_cmp_lt_u32 s42, {opt['edly']}", "s_cbranch_scc1 K2_DG")
    if opt.get("diag"):
        kind, M = opt["diag"]
        a("s_cmp_lg_u32 s3, 0", "s_cbranch_scc1 K2_END", "s_memrealtime s[40:41]", "s_lshl_b32 s42, s2, 10", f"s_add_u32 s42, s42, {WS_STAMP}", "s_add_u32 s44, s20, s42", "s_addc_u32 s45, s21, 0",
          "v_mov_b32 v2, 0", "global_load_dwordx4 v[8:11], v2, s[44:45]", "global_load_dwordx4 v[12:15], v2, s[44:45] offset:16", "s_waitcnt vmcnt(0) lgkmcnt(0)",
          "v_readfirstlane_b32 s46, v8", "v_readfirstlane_b32 s47, v13", "v_readfirstlane_b32 s48, v9", "v_readfirstlane_b32 s49, v10", "s_nop 4")
        a({"k1": "s_sub_u32 s46, s47, s46", "k12": "s_sub_u32 s46, s78, s46", "k2": "s_sub_u32 s46, s40, s78", "tot": "s_sub_u32 s46, s40, s46", "dst": "s_sub_u32 s46, s48, s46", "src": "s_sub_u32 s46, s49, s46",
           "kb3": "s_sub_u32 s46, s92, s80", "reg": "s_lshr_b32 s46, s77, 22\ns_sub_u32 s46, s46, 8", "xcc": "s_getreg_b32 s46, hwreg(HW_REG_XCC_ID)\ns_xor_b32 s46, s46, s2\ns_and_b32 s46, s46, 7", "ent": "s_sub_u32 s46, s80, s78"}.get(kind, "s_cmp_lg_u32 s2, 5\ns_cbranch_scc1 K2_END"))
        if kind.startswith("g"):
            a(f"s_add_u32 s44, s20, {WS_STAMP}", "s_addc_u32 s45, s21, 0", "v_lshlrev_b32 v2, 6, v0", "v_mov_b32 v16, 0", "v_mov_b32 v17, -1", "v_mov_b32 v18, -1", "v_mov_b32 v19, 0", "s_mov_b32 s47, 0")
            a.label("K2_DL")
            a("global_load_dword v8, v2, s[44:45]", f"global_load_dword v9, v2, s[44:45] offset:{opt.get('dk', 5)*4}", "v_add_u32 v2, 4096, v2", "s_waitcnt vmcnt(0)", "v_sub_u32 v8, s78, v8", "v_sub_u32 v9, s78, v9",
              "v_max_u32 v16, v16, v8", "v_min_u32 v17, v17, v8", "v_min_u32 v18, v18, v9", "v_max_u32 v19, v19, v9", "s_add_u32 s47, s47, 1", "s_cmp_lt_u32 s47, 63", "s_cbranch_scc1 K2_DL")
            a("s_mov_b32 s47, 0", "s_mov_b32 s50, 0", "s_mov_b32 s51, -1", "s_mov_b32 s52, -1", "s_mov_b32 s53, 0")
            a.label("K2_DM")
            a("v_readlane_b32 s54, v16, s47", "v_readlane_b32 s55, v17, s47", "v_readlane_b32 s56, v18, s47", "v_readlane_b32 s57, v19, s47", "s_max_u32 s50, s50, s54", "s_min_u32 s51, s51, s55", "s_min_u32 s52, s52, s56", "s_max_u32 s53, s53, s57",
              "s_add_u32 s47, s47, 1", "s_cmp_lt_u32 s47, 64", "s_cbranch_scc1 K2_DM")
            a({"gskew": "s_sub_u32 s46, s50, s51", "gk1": "s_sub_u32 s46, s50, s52", "ggap": "s_mov_b32 s46, s52", "g0": "s_mov_b32 s46, 0", "gfirst": "s_sub_u32 s46, s50, s53"}[kind])
            a("s_memrealtime s[40:41]", "s_waitcnt lgkmcnt(0)")
        if opt.get("thr"): a(f"s_cmp_gt_u32 s46, {opt['thr']}", f"s_cselect_b32 s46, {M}, 0")
        else: a("s_min_u32 s46, s46, 4000", f"s_mul_i32 s46, s46, {M}")
        a.label("K2_DG")
        a("s_sleep 2", "s_memrealtime s[42:43]", "s_waitcnt lgkmcnt(0)", "s_sub_u32 s42, s42, s40", "s_cmp_lt_u32 s42, s46", "s_cbranch_scc1 K2_DG")
    else: st.flush(20, 3, 2, 3)
    a.label("K2_END")
    a("s_endpgm")

    a.label("K2_G0R")
    a(f"v_mov_b32 v{IP}, v{EX+3}", *gather(0, IP), "s_branch K2_G0D")
    a.label("K2_DONE0")
    a("s_waitcnt vmcnt(0) lgkmcnt(0)", "s_branch K2_DONE")
    a.label("K2_MARK")
    T = Z1
    a("s_mov_b64 exec, vcc", f"v_mov_b32 v{T}, 0", f"v_mov_b32 v{T+1}, 1", f"ds_add_rtn_u32 v{T}, v{T}, v{T+1} offset:{L_OVC}", "s_waitcnt lgkmcnt(0)",
      f"v_and_b32 v{T}, 255, v{T}", f"v_lshlrev_b32 v{T}, 2, v{T}", f"ds_write_b32 v{T}, v0 offset:{L_OVL}", "s_mov_b64 exec, -1", "s_branch K2_MR")

    SD, SS, SE = 40, 44, 48
    a.label("K2_RESCAN")
    srd(a, SD, 10, 11, E * 4); srd(a, SS, 8, 9, E * 4); srd(a, SE, 6, 7, E * 2)
    a("s_mov_b32 s52, 0", f"s_mul_i32 s53, {BK}, {NB}", "s_min_u32 s23, s23, 256", "s_waitcnt lgkmcnt(0)")
    a.label("K2_RS1")
    T = Z1 + 8
    a("s_lshl_b32 s54, s52, 2", f"v_mov_b32 v{T}, s54", f"ds_read_b32 v{T}, v{T} offset:{L_OVL}", "s_waitcnt lgkmcnt(0)", f"v_readfirstlane_b32 s54, v{T}",
      "s_and_b32 s55, s54, 31", "s_lshl_b32 s55, s55, 3", "s_lshr_b32 s54, s54, 5", "s_add_u32 s54, s54, s55",
      f"s_mul_i32 s54, s54, {CH}", f"s_sub_u32 s55, {E}, s54", f"s_min_u32 s55, s55, {CH}",
      f"v_mov_b32 v{T}, v0")
    a.label("K2_RS2")
    a(f"v_add_u32 v{T+1}, s54, v{T}", f"v_lshlrev_b32 v{T+2}, 1, v{T+1}", f"v_lshlrev_b32 v{T+1}, 2, v{T+1}",
      f"buffer_load_dword v{T+3}, v{T+1}, s[{SD}:{SD+3}], 0 offen", f"buffer_load_dword v{T+4}, v{T+1}, s[{SS}:{SS+3}], 0 offen",
      f"buffer_load_ushort v{T+5}, v{T+2}, s[{SE}:{SE+3}], 0 offen", "s_waitcnt vmcnt(0)",
      f"v_subrev_u32 v{T+3}, s53, v{T+3}", f"v_cmp_gt_u32 vcc, {NB}, v{T+3}", f"v_cmp_gt_u32 s[56:57], s55, v{T}", "s_and_b64 exec, vcc, s[56:57]",
      f"v_lshlrev_b32 v{T+3}, 2, v{T+3}", f"ds_add_rtn_u32 v{T+3}, v{T+3}, v5 offset:{L_CTR}", f"v_lshl_or_b32 v{T+4}, v{T+5}, 16, v{T+4}",
      "s_waitcnt lgkmcnt(0)", f"v_min_u32 v{T+3}, s65, v{T+3}", f"ds_write_b32 v{T+3}, v{T+4}", "s_mov_b64 exec, -1",
      f"v_add_u32 v{T}, 768, v{T}", f"v_cmp_gt_u32 vcc, s55, v{T}", "s_cbranch_vccnz K2_RS2")
    a("s_add_u32 s52, s52, 1", "s_cmp_lt_u32 s52, s23", "s_cbranch_scc1 K2_RS1")
    a("s_mov_b32 s68, -1", "s_waitcnt lgkmcnt(0)", "s_barrier", "s_cmp_eq_u32 s73, 0", "s_cbranch_scc1 K2_AB1T", "s_branch K2_AB1")

    a.label("K2_BF")
    T = Z0
    a("s_waitcnt vmcnt(0) lgkmcnt(0)")
    srd(a, SD, 10, 11, E * 4); srd(a, SS, 8, 9, E * 4); srd(a, SE, 6, 7, E * 2); srd(a, 52, 12, 13, 129 * 128)
    a(f"s_mov_b32 s{SX}, s{SPT}", f"s_and_b32 s{SX+1}, s{SPT+1}, 0xffff", f"s_mov_b32 s{SX+2}, {N*128}", f"s_mov_b32 s{SX+3}, 0x20000")
    for i in range(4): a(f"v_mov_b32 v{T+i}, 0")
    a(f"v_lshlrev_b32 v{T+4}, 4, v0", f"v_add_u32 v{T+4}, {L_ELL}, v{T+4}")
    for i in range(3): a(f"ds_write_b128 v{T+4}, {vr(T,4)} offset:{12288*i}")
    LN, F4, F2, PO, W3 = T + 4, T + 5, T + 6, T + 7, T + 8
    a(f"v_and_b32 v{LN}, 63, v0", f"v_lshlrev_b32 v{F4}, 2, v{LN}", f"v_lshlrev_b32 v{F2}, 1, v{LN}",
      f"v_and_b32 v{PO}, 8, v{LN}", f"v_lshlrev_b32 v{PO}, 3, v{PO}", f"v_and_b32 v{T}, 48, v{LN}", f"v_add_u32 v{PO}, v{PO}, v{T}",
      f"v_and_b32 v{T}, 7, v{LN}", f"v_lshl_add_u32 v{PO}, v{T}, 1, v{PO}",
      "s_movk_i32 s56, 16384", f"buffer_load_ushort v{W3}, v{F2}, s[52:55], s56 offen", "s_waitcnt vmcnt(0) lgkmcnt(0)",
      f"v_lshlrev_b32 v{W3}, 16, v{W3}", f"v_mul_f32 v{W3}, s66, v{W3}",
      f"s_mul_i32 s57, {BK}, {NB}", "s_mov_b32 s56, s3", "s_barrier")
    a.label("K2_BF1")
    DV, SV, EV = T + 9, T + 10, T + 11
    a("s_lshl_b32 s58, s56, 8", "s_lshl_b32 s59, s56, 7",
      f"buffer_load_dword v{DV}, v{F4}, s[{SD}:{SD+3}], s58 offen", "s_waitcnt vmcnt(0)",
      f"v_subrev_u32 v{DV}, s57, v{DV}", f"v_cmp_gt_u32 vcc, {NB}, v{DV}", "s_cbranch_vccz K2_BF3",
      f"buffer_load_dword v{SV}, v{F4}, s[{SS}:{SS+3}], s58 offen", f"buffer_load_ushort v{EV}, v{F2}, s[{SE}:{SE+3}], s59 offen",
      "s_mov_b64 s[60:61], vcc", "s_waitcnt vmcnt(0)")
    a.label("K2_BF2")
    a("s_ff1_i32_b64 s58, s[60:61]", "s_bitset0_b64 s[60:61], s58",
      f"v_readlane_b32 s59, v{SV}, s58", f"v_readlane_b32 s62, v{DV}, s58", f"v_readlane_b32 s63, v{EV}, s58",
      "s_min_u32 s59, s59, %d" % (N - 1), "s_lshl_b32 s59, s59, 7", f"buffer_load_ushort v{T}, v{PO}, s[{SX}:{SX+3}], s59 offen",
      f"s_mul_i32 s58, s62, {QSTR}", f"v_add_u32 v{T+1}, s58, v{F4}", f"ds_read_b32 v{T+1}, v{T+1} offset:{L_QS}",
      "s_lshl_b32 s63, s63, 16", "s_lshl_b32 s62, s62, 8", f"s_add_u32 s62, s62, {L_ELL}", f"v_add_u32 v{T+2}, s62, v{F4}",
      "s_waitcnt vmcnt(0) lgkmcnt(0)",
      f"v_lshlrev_b32 v{T}, 16, v{T}", f"v_add_f32 v{T}, v{T}, v{T+1}", f"v_fma_f32 v{T}, s63, v{W3}, v{T}",
      f"v_exp_f32 v{T+1}, v{T}", f"v_add_f32 v{T+1}, 1.0, v{T+1}", f"v_rcp_f32 v{T+1}, v{T+1}", f"v_mul_f32 v{T}, {NLN2:#x}, v{T}", f"v_mul_f32 v{T}, v{T}, v{T+1}",
      f"ds_add_f32 v{T+2}, v{T}", "s_cmp_lg_u64 s[60:61], 0", "s_cbranch_scc1 K2_BF2")
    a.label("K2_BF3")
    a("s_add_u32 s56, s56, 12", f"s_cmp_lt_u32 s56, {E//64}", "s_cbranch_scc1 K2_BF1")
    a("s_waitcnt lgkmcnt(0)", "s_barrier", f"v_mov_b32 v{T+4}, v0")
    a.label("K2_BF4")
    a(f"v_lshlrev_b32 v{T+5}, 3, v{T+4}", f"v_add_u32 v{T+5}, {L_ELL}, v{T+5}", f"ds_read_b64 {vr(T,2)}, v{T+5}",
      f"v_lshrrev_b32 v{T+5}, 5, v{T+4}", f"v_mul_u32_u24 v{T+5}, {ASTR}, v{T+5}", f"v_and_b32 v{T+6}, 31, v{T+4}", f"v_lshl_add_u32 v{T+5}, v{T+6}, 2, v{T+5}",
      "s_waitcnt lgkmcnt(0)", f"v_cvt_pk_bf16_f32 v{T}, v{T}, v{T+1}", f"ds_write_b32 v{T+5}, v{T} offset:{L_AGB}",
      f"v_add_u32 v{T+4}, 768, v{T+4}", f"v_cmpx_gt_u32 vcc, {NB*32}, v{T+4}", "s_cbranch_execnz K2_BF4")
    a("s_mov_b64 exec, -1", "s_mov_b32 s71, -1", "s_waitcnt lgkmcnt(0)", "s_barrier", "s_branch K2_EPI")
    return a.lines

def kd(name, vg, sg=102):
    return f""".amdhsa_kernel {name}
  .amdhsa_next_free_vgpr {vg}
  .amdhsa_next_free_sgpr {sg}
  .amdhsa_accum_offset {vg}
  .amdhsa_group_segment_fixed_size 0
  .amdhsa_kernarg_size 72
  .amdhsa_user_sgpr_count 2
  .amdhsa_user_sgpr_kernarg_segment_ptr 1
  .amdhsa_system_sgpr_workgroup_id_x 1
.end_amdhsa_kernel"""

def build(opt=None):
    opt = opt or {}
    out = ["; mpnn edge MLP: K1 bins edges by destination bucket and builds the P' table, K2 aggregates and updates",
           f"; @launch kernel=mpnn_bin_kernel grid=(256,1,1) block=(1024,1,1) lds={K1_LDS}",
           f"; @launch kernel=mpnn_msg_kernel grid=(256,1,1) block=(768,1,1) lds={K2_LDS}",
           '.amdgcn_target "amdgcn-amd-amdhsa--gfx950"', ".text"]
    for name, fn in (("mpnn_bin_kernel", gen_k1), ("mpnn_msg_kernel", gen_k2)):
        lines, nn = fix_hazards(fn(opt), verbose=opt.get("verbose"))
        out += [f".globl {name}", ".p2align 8", f".type {name},@function"] + lines
    out += ['.section .rodata,"a"', ".p2align 6", kd("mpnn_bin_kernel", 128), ".p2align 6", kd("mpnn_msg_kernel", 168)]
    return "\n".join(out) + "\n"

if __name__ == "__main__":
    import argparse
    ap = argparse.ArgumentParser(); ap.add_argument("-o", default="standalone__mpnn_edge_mlp__graph.s")
    ap.add_argument("--stamp", type=int, default=0); ap.add_argument("-v", action="store_true"); ap.add_argument("--opt", default="{}")
    g = ap.parse_args()
    open(g.o, "w").write(build({"stamp": g.stamp, "verbose": g.v, **eval(g.opt)}))
```

```python
import sys, struct, math
sys.path.insert(0, "gen")
from asmlib import *

N = 25000; E = 800000; NB = 98; CH = 3128; CAP = 72
WS_RA = 0x400000; WS_DA = 0x800000; WS_RB = 0xA00000; WS_WF = 0x380000; WS_END = WS_RB + 0x800000
MARK = 0xFEFEFEFE
WS_PR = 0x2000000; WS_HDR = WS_WF + 0x8000
WS_STAMP = 0x1400000
f2u = lambda f: struct.unpack("<I", struct.pack("<f", f))[0]
NLOG2E = f2u(-1.4426950408889634); NLN2 = f2u(-0.6931471805599453)
NTILE = (N + 15) // 16

def mf16(d, a, b, c): return f"v_mfma_f32_16x16x32_bf16 {vr(d,4)}, {vr(a,4)}, {vr(b,4)}, {c if isinstance(c,str) else vr(c,4)}"
def mf32(d, a, b, c): return f"v_mfma_f32_32x32x16_bf16 {vr(d,16)}, {vr(a,4)}, {vr(b,4)}, {vr(c,16)}"

class Stamps:
    def __init__(self, a, on, base, kidx, nw): self.a = a; self.on = on; self.base = base; self.k = 0; self.kidx = kidx; self.nw = nw
    def __call__(self):
        if not self.on: return
        r = self.base + 2 * self.k; self.k += 1
        if self.on == 3 and (self.k - 1) not in ((0, 5), (0, 1, 7, 8))[self.kidx]: return
        self.a(f"s_waitcnt lgkmcnt(0)", f"s_memrealtime s[{r}:{r+1}]", "s_waitcnt lgkmcnt(0)")
    def early(self):
        if not self.on: return
        r = self.base + 2 * self.k; self.k += 1
        self.a(f"s_memrealtime s[{r}:{r+1}]")
    def flush(self, ws, wave, t0, t1):
        if not self.on: return
        a = self.a
        self()
        a("s_mov_b64 exec, -1")
        a(f"v_mov_b32 v{t0}, 0")
        for k in range(self.k): a(f"v_writelane_b32 v{t0}, s{self.base+2*k}, {k}")
        if self.kidx == 1 and self.on == 1: a(f"v_writelane_b32 v{t0}, s60, 9", f"v_writelane_b32 v{t0}, s62, 10")
        if self.kidx == 1: a(f"v_writelane_b32 v{t0}, s98, 13", f"v_writelane_b32 v{t0}, s96, 12", f"v_writelane_b32 v{t0}, s97, 11", f"v_writelane_b32 v{t0}, s69, 15", f"s_getreg_b32 s69, hwreg(HW_REG_HW_ID)", f"v_writelane_b32 v{t0}, s69, 14")
        if self.on == 2 and self.kidx == 1:
            b = self.base
            a(f"s_add_u32 s{b}, s2, s{wave}", f"s_cmp_lg_u32 s{b}, 0", f"s_cbranch_scc1 STK{self.kidx}",
              f"s_load_dwordx2 s[{b}:{b+1}], s[0:1], 56", f"v_and_b32 v{t1}, 63, v0", f"v_lshlrev_b32 v{t1}, 2, v{t1}",
              f"v_add_u32 v{t1+1}, {WS_STAMP}, v{t1}", f"global_load_dword v{t1+1}, v{t1+1}, s[{ws}:{ws+1}]",
              "s_waitcnt vmcnt(0) lgkmcnt(0)", f"s_mov_b64 exec, 0x3ff", f"global_store_dword v{t1}, v{t0}, s[{b}:{b+1}] offset:24",
              f"s_mov_b64 exec, 0x3f", f"global_store_dword v{t1}, v{t1+1}, s[{b}:{b+1}]")
            a.label(f"STK{self.kidx}")
            return
        a(f"s_mul_i32 s{self.base}, s2, {self.nw}", f"s_add_u32 s{self.base}, s{self.base}, s{wave}", f"s_lshl_b32 s{self.base}, s{self.base}, 6",
          f"s_add_u32 s{self.base}, s{self.base}, {WS_STAMP + self.kidx * 0x100000}",
          f"v_and_b32 v{t1}, 63, v0", f"v_lshlrev_b32 v{t1}, 2, v{t1}", f"v_add_u32 v{t1}, s{self.base}, v{t1}",
          "s_mov_b64 exec, 0xffff", f"global_store_dword v{t1}, v{t0}, s[{ws}:{ws+1}]")

def srd(a, r, lo, hi, num, stride=0):
    a(f"s_mov_b32 s{r}, s{lo}")
    if stride: a(f"s_or_b32 s{r+1}, s{hi}, {stride << 16:#x}")
    else: a(f"s_mov_b32 s{r+1}, s{hi}")
    a(f"s_mov_b32 s{r+2}, {num}", f"s_mov_b32 s{r+3}, 0x20000")

K1_DA = 32768; K1_CNT = 40960; K1_LDS = K1_CNT + 1024
def gen_k1(opt):
    a = Asm(); st = Stamps(a, opt.get("stamp"), 70, 0, 16)
    a.label("mpnn_bin_kernel")
    if opt.get("cpf") == 2:
        a("s_getpc_b64 s[48:49]", "v_lshlrev_b32 v54, 7, v0", "v_min_u32 v54, K2_END-mpnn_bin_kernel-4, v54", "global_load_dword v55, v54, s[48:49]")
    a("s_cmp_ge_u32 s2, 256", "s_cbranch_scc1 K1_END")
    if opt.get("dly"):
        a("s_memrealtime s[4:5]", "s_waitcnt lgkmcnt(0)")
        a.label("K1_DL")
        a("s_sleep 1", "s_memrealtime s[6:7]", "s_waitcnt lgkmcnt(0)", "s_sub_u32 s6, s6, s4", f"s_cmp_lt_u32 s6, {opt['dly']}", "s_cbranch_scc1 K1_DL")
    a("s_load_dwordx8 s[4:11], s[0:1], 0", "s_load_dwordx4 s[12:15], s[0:1], 32", "s_load_dwordx2 s[16:17], s[0:1], 64")
    if opt.get("pw0"): a(f"v_add_u32 v0, {64*opt['pw0']}, v0", "v_and_b32 v0, 1023, v0")
    a("v_lshrrev_b32 v1, 6, v0", "v_lshlrev_b32 v7, 4, v0", "v_readfirstlane_b32 s3, v1", "v_lshlrev_b32 v4, 3, v0")
    a("v_mov_b32 v46, -1", "v_mov_b32 v47, -1", f"ds_write_b64 v4, v[46:47] offset:{K1_DA}",
      "v_and_b32 v45, 255, v0", "v_lshlrev_b32 v44, 2, v45", "v_lshlrev_b32 v45, 5, v45", f"ds_write_b32 v44, v45 offset:{K1_CNT}")
    a("s_and_b32 s40, s2, 7", "s_lshr_b32 s41, s2, 3")
    a(f"s_mov_b32 s34, {WS_END}", "s_mov_b32 s35, 0x20000")
    CO = 44
    def co_addr():
        a("s_lshl_b32 s42, s40, 5", "s_add_u32 s42, s42, s41",
          "s_lshl_b32 s43, s42, 5", f"s_add_u32 s43, s43, {WS_DA}", "s_lshl_b32 s44, s42, 7", "s_lshl_b32 s42, s42, 6", f"s_add_u32 s44, s44, {WS_RB}", f"s_add_u32 s42, s42, {WS_RA}")
        a(f"v_lshrrev_b32 v{CO+6}, 2, v0", f"v_and_b32 v{CO+5}, 3, v0", f"v_lshlrev_b32 v{CO+1}, 13, v{CO+6}", f"v_lshl_add_u32 v{CO+1}, v{CO+5}, 3, v{CO+1}", f"v_lshlrev_b32 v{CO}, 1, v{CO+1}", f"v_lshl_add_u32 v{CO+8}, v{CO+6}, 14, v{CO}",
          f"v_lshlrev_b32 v{CO+2}, 7, v{CO+6}", f"v_lshl_add_u32 v{CO+2}, v{CO+5}, 4, v{CO+2}", f"v_and_b32 v{CO+3}, 64, v0", f"v_add_u32 v{CO+2}, v{CO+2}, v{CO+3}", f"v_xor_b32 v{CO+3}, 64, v{CO+2}",
          f"v_bfe_u32 v{CO+4}, v0, 4, 2", f"v_xor_b32 v{CO+5}, v{CO+5}, v{CO+4}", f"v_lshlrev_b32 v{CO+6}, 5, v{CO+6}", f"v_lshl_add_u32 v{CO+5}, v{CO+5}, 2, v{CO+6}", f"v_add_u32 v{CO+5}, 16, v{CO+5}",
          *([f"v_add_u32 v{CO+5}, 16, v{CO+6}"] if opt.get("bfull", 1) else []), f"v_add_u32 v{CO+6}, 32, v{CO+6}", f"v_and_b32 v{CO+4}, 0x3fc, v0", f"v_lshlrev_b32 v{CO+7}, 3, v0")
    a("s_cmp_ge_u32 s3, 13", "s_cbranch_scc1 K1_P")
    DST, SRC, EE, B, DL, S, LIM, REC = 8, 12, 16, 20, 24, 28, 32, 36
    a(f"s_mul_i32 s18, s2, {CH}", f"s_sub_u32 s19, {E}, s18", f"s_min_u32 s19, s19, {CH}", "s_lshl_b32 s36, s18, 2", "s_lshl_b32 s37, s18, 1")
    for r, n in ((20, E * 4), (24, E * 4), (28, E * 2)): a(f"s_mov_b32 s{r+2}, {n}", f"s_mov_b32 s{r+3}, 0x20000")
    a("v_lshlrev_b32 v1, 2, v0", "v_cmp_gt_u32 vcc, s19, v1")
    if opt.get("cpf") == 1:
        a("s_cmp_lg_u32 s3, 12", "s_cbranch_scc1 K1_NPF", "s_getpc_b64 s[48:49]")
        a.label("K1_PC")
        a("s_add_u32 s48, s48, mpnn_msg_kernel-K1_PC", "s_addc_u32 s49, s49, 0", "v_and_b32 v54, 63, v0", "v_lshlrev_b32 v54, 7, v54",
          "v_min_u32 v54, K2_END-mpnn_msg_kernel, v54", "global_load_dword v55, v54, s[48:49]")
        a.label("K1_NPF")
    a("s_waitcnt lgkmcnt(0)")
    st()
    a("s_mov_b32 s20, s10", "s_mov_b32 s21, s11", f"buffer_load_dwordx4 {vr(DST,4)}, v7, s[20:23], s36 offen {opt.get('lflag', '')}")
    a("s_mov_b32 s24, s8", "s_mov_b32 s25, s9", "s_mov_b32 s28, s6", "s_mov_b32 s29, s7", "s_mov_b32 s32, s16", "s_mov_b32 s33, s17")
    a("s_barrier")
    a(f"buffer_load_dwordx4 {vr(SRC,4)}, v7, s[24:27], s36 offen {opt.get('lflag', '')}", f"buffer_load_dwordx2 {vr(EE,2)}, v4, s[28:31], s37 offen {opt.get('lflag', '')}")
    co_addr()
    if opt.get("tlb"):
        a("s_cmp_lg_u32 s3, 12", "s_cbranch_scc1 K1_NT", "v_and_b32 v54, 63, v0", f"v_mul_u32_u24 v54, {opt['tlb']}, v54", "buffer_load_dword v55, v54, s[32:35], 0 offen", "s_waitcnt vmcnt(1)")
        a.label("K1_NT")
    a("v_mov_b32 v6, 1", "s_movk_i32 s38, -98", "s_mov_b32 s39, 0xffff0000")
    a("s_mov_b64 exec, vcc", "s_cbranch_execz K1_B1")
    a("s_waitcnt vmcnt(2)")
    st()
    for i in range(4):
        a(f"v_mul_u32_u24 v{B+i}, 21400, v{DST+i}", f"v_lshrrev_b32 v{B+i}, 21, v{B+i}", f"v_lshlrev_b32 v{S+i}, 2, v{B+i}",
          f"ds_add_rtn_u32 v{S+i}, v{S+i}, v6 offset:{K1_CNT}")
    for i in range(4): a(f"v_mad_i32_i24 v{DL+i}, v{B+i}, s38, v{DST+i}", f"v_lshl_or_b32 v{LIM+i}, v{B+i}, 5, 31", f"v_and_b32 v{B+i}, 31, v{B+i}")
    for i in range(4):
        a(f"s_waitcnt lgkmcnt(3)", f"v_min_u32 v{S+i}, v{S+i}, v{LIM+i}", f"v_xor_b32 v{S+i}, v{S+i}, v{B+i}", f"ds_write_b8 v{S+i}, v{DL+i} offset:{K1_DA}")
    for i in range(4): a(f"v_lshlrev_b32 v{LIM+i}, 2, v{S+i}")
    a("s_waitcnt vmcnt(0)")
    st()
    if opt.get("smask"):
        for i in range(4): a(f"v_and_b32 v{SRC+i}, {opt['smask']}, v{SRC+i}")
    for i in range(4):
        if i % 2 == 0: a(f"v_lshl_or_b32 v{REC+i}, v{EE+i//2}, 16, v{SRC+i}")
        else: a(f"v_and_or_b32 v{REC+i}, v{EE+i//2}, s39, v{SRC+i}")
        a(f"ds_write_b32 v{LIM+i}, v{REC+i}")
    a.label("K1_B1")
    a("s_mov_b64 exec, -1")
    st.k = 3; st()
    a("s_waitcnt lgkmcnt(0)", "s_barrier")
    st()
    a(f"ds_read_b128 v[8:11], v{CO+2}", f"ds_read_b32 v18, v{CO+4} offset:{K1_CNT}", f"ds_read_b64 v[16:17], v{CO+7} offset:{K1_DA}", f"ds_read_b128 v[12:15], v{CO+3}")
    a("s_waitcnt lgkmcnt(3)", f"buffer_store_dwordx4 v[8:11], v{CO}, s[32:35], s42 offen {opt.get('dflag', '')}")
    a("s_waitcnt lgkmcnt(1)", f"v_cmp_gt_u32 vcc, v18, v{CO+6}", f"v_cmp_gt_u32 s[46:47], v18, v{CO+5}", "s_cbranch_vccnz K1_OV")
    a.label("K1_OVR")
    x = opt.get("x1", "")
    if "d" not in x: a(f"buffer_store_dwordx2 v[16:17], v{CO+1}, s[32:35], s43 offen {opt.get('dflag', '')}")
    if "b" not in x: a("s_mov_b64 exec, s[46:47]", "s_waitcnt lgkmcnt(0)", f"buffer_store_dwordx4 v[12:15], v{CO+8}, s[32:35], s44 offen", *([] if opt.get("bhalf", 1) else [f"buffer_store_dwordx4 v[8:11], v{CO+8}, s[32:35], s44 offen offset:64"]))
    if st.on or opt.get("kw"): a("s_waitcnt vmcnt(0)")
    st.flush(16, 3, 20, 21)
    if opt.get("kp"):
        a("s_mov_b64 exec, -1", f"s_mul_i32 s45, s41, {782*128}", "v_lshlrev_b32 v60, 7, v0", f"v_cmp_gt_u32 vcc, {opt['kp']}, v0", "s_and_b64 exec, exec, vcc", "s_cbranch_execz K1_END", "buffer_load_dword v61, v60, s[32:35], s45 offen")
    a.label("K1_END")
    a("s_endpgm")
    a.label("K1_OV")
    a(f"v_mov_b32 v18, {MARK:#x}", "v_cndmask_b32 v16, v16, v18, vcc", "v_cndmask_b32 v17, v17, v18, vcc", "s_branch K1_OVR")
    W, A, X, D, O, FR = 8, 40, 72, 96, 112, 120
    a.label("K1_P")
    a("v_and_b32 v1, 15, v0", "v_bfe_u32 v2, v0, 4, 2",
      "v_lshlrev_b32 v3, 10, v2", "v_lshl_add_u32 v5, v1, 1, v3", "v_lshl_add_u32 v3, v1, 3, v3",
      "v_lshlrev_b32 v4, 7, v1", "v_lshl_add_u32 v4, v2, 4, v4")
    a("s_mul_i32 s18, s41, 3", "s_add_u32 s18, s18, s3", "s_sub_u32 s18, s18, 13",
      "s_mul_i32 s36, s40, 196", "s_add_u32 s36, s36, s18",
      "s_lshl_b32 s36, s36, 11", f"s_add_u32 s37, s36, {96*2048}", f"s_add_u32 s38, s36, {192*2048}", "s_movk_i32 s39, 4096")
    for r, n in ((20, 129 * 128), (24, N * 128), (28, N * 128), (48, 128 * 128)): a(f"s_mov_b32 s{r+2}, {n}", f"s_mov_b32 s{r+3}, 0x20000")
    a("s_sub_u32 s19, s2, 16", "s_cmp_eq_u32 s3, 15", "s_cselect_b32 s19, s19, 100")
    a("s_waitcnt lgkmcnt(0)")
    st.k = 0; st()
    a("s_mov_b32 s24, s4", "s_mov_b32 s25, s5", "s_mov_b32 s20, s12", "s_mov_b32 s21, s13")
    a("s_cmp_le_u32 s19, 24", "s_cbranch_scc1 K1_FL")
    a.label("K1_FLR")
    for i in range(2):
        for s in range(2): a(f"buffer_load_dwordx4 {vr(X+8*i+4*s,4)}, v4, s[24:27], s{36+i} offen offset:{64*s} {opt.get('xflag', '')}")
    for s in range(2):
        for kk in range(8): a(f"buffer_load_dwordx2 {vr(W+16*s+2*kk,2)}, v3, s[20:23], {'s39' if s else '0'} offen offset:{128*kk}")
    a("s_cmp_lt_u32 s18, 4", "s_cselect_b64 exec, -1, 0")
    for s in range(2): a(f"buffer_load_dwordx4 {vr(X+16+4*s,4)}, v4, s[24:27], s38 offen offset:{64*s}")
    a("s_mov_b64 exec, -1")
    a("s_barrier")
    if opt.get("rot"):
        a(*(["s_memrealtime s[52:53]", "s_waitcnt lgkmcnt(0)", "s_lshr_b32 s52, s52, 12"] if opt.get("trot") else ["s_lshr_b32 s52, s0, 4"]), "s_mul_i32 s52, s52, 0x9e3779b1", f"s_lshr_b32 s52, s52, {32 - opt['rot']}", "s_lshl_b32 s52, s52, 22", f"s_add_u32 s53, s52, {WS_PR}",
          "s_add_u32 s28, s16, s53", "s_addc_u32 s29, s17, 0", "s_mov_b32 s32, s16", "s_mov_b32 s33, s17")
    else: a("s_mov_b32 s28, s16", "s_mov_b32 s29, s17", "s_mov_b32 s32, s16", "s_mov_b32 s33, s17")
    a("s_mov_b32 s44, 0x05040100", "s_mov_b32 s45, 0x07060302", f"s_mov_b32 s46, {NLOG2E:#x}", f"s_mov_b32 s47, {NLOG2E:#x}")
    a("s_waitcnt vmcnt(2)")
    st()
    for tau in range(4):
        for s in range(2):
            for rr in range(4):
                a(f"v_perm_b32 v{A+8*tau+4*s+rr}, v{W+16*s+2*(2*rr+1)+tau//2}, v{W+16*s+2*(2*rr)+tau//2}, s{44+tau%2}")
    for i in range(3):
        if i == 2:
            a(f"s_cmp_ge_u32 s18, 4", "s_cbranch_scc1 K1_PD", "s_waitcnt vmcnt(4)")
        for tau in range(4): a(mf16(D+4*tau, A+8*tau, X+8*i, "0"))
        for tau in range(4): a(mf16(D+4*tau, A+8*tau+4, X+8*i+4, D+4*tau))
        for k in range(0, 16, 2): a(f"v_pk_mul_f32 {vr(D+k,2)}, {vr(D+k,2)}, s[46:47]")
        for r in range(4):
            for h in range(2): a(f"v_cvt_pk_bf16_f32 v{O+2*r+h}, v{D+4*(2*h)+r}, v{D+4*(2*h+1)+r}")
        if "p" in opt.get("x1", ""): pass
        elif opt.get("pfull"): a("v_and_b32 v6, 63, v0", "v_lshlrev_b32 v6, 4, v6", f"buffer_store_dwordx4 {vr(O,4)}, v6, s[28:31], s{36+i} offen {opt.get('pflag', '')}", f"buffer_store_dwordx4 {vr(O+4,4)}, v6, s[28:31], s{36+i} offen offset:1024 {opt.get('pflag', '')}")
        else: a(f"buffer_store_dwordx4 {vr(O,4)}, v4, s[28:31], s{36+i} offen {opt.get('pflag', '')}", f"buffer_store_dwordx4 {vr(O+4,4)}, v4, s[28:31], s{36+i} offen offset:64 {opt.get('pflag', '')}")
    a.label("K1_PD")
    st()
    a("s_cmp_le_u32 s19, 24", "s_cbranch_scc1 K1_FS")
    a.label("K1_PE")
    if opt.get("cpf", 3) == 3:
        a("s_lshr_b32 s19, s2, 5", "s_add_u32 s19, s19, s3", "s_cmp_lg_u32 s19, 18", "s_cbranch_scc1 K1_NPF", "s_getpc_b64 s[48:49]")
        a.label("K1_PC")
        a("s_add_u32 s48, s48, mpnn_msg_kernel-K1_PC", "s_addc_u32 s49, s49, 0", "v_and_b32 v54, 63, v0", "v_lshlrev_b32 v54, 7, v54",
          "v_min_u32 v54, K2_END-mpnn_msg_kernel, v54", "global_load_dword v55, v54, s[48:49]")
        a.label("K1_NPF")
    if opt.get("wb"):
        msk, slp = opt["wb"]
        a(f"s_and_b32 s19, s41, {msk}", "s_add_u32 s19, s19, s3", f"s_cmp_lg_u32 s19, {msk + 15}", "s_cbranch_scc1 K1_NWB", "s_waitcnt vmcnt(0)", *([f"s_sleep {slp}"] if slp else []), "buffer_wbl2 sc1")
        a.label("K1_NWB")
    co_addr()
    a("s_branch K1_B1")
    a.label("K1_FL")
    a("s_cmp_eq_u32 s19, 8", "s_cbranch_scc1 K1_FA", "s_cmp_gt_u32 s19, 8", "s_cbranch_scc1 K1_FU")
    a("s_lshr_b32 s42, s19, 1", "s_and_b32 s43, s19, 1", "s_lshl_b32 s42, s42, 5", "s_lshl_b32 s43, s43, 12", "s_add_u32 s43, s43, s42", "s_add_u32 s43, s43, 8192")
    for kk in range(8): a(f"buffer_load_ushort v{FR+kk}, v5, s[20:23], s43 offen offset:{128*kk}")
    a("s_branch K1_FLR")
    a.label("K1_FU")
    a("s_mov_b32 s48, s14", "s_mov_b32 s49, s15")
    a("s_sub_u32 s43, s19, 9", "s_lshr_b32 s42, s43, 2", "s_and_b32 s43, s43, 3", "s_lshl_b32 s42, s42, 5", "s_lshl_b32 s43, s43, 12", "s_add_u32 s43, s43, s42")
    for kk in range(8): a(f"buffer_load_ushort v{FR+kk}, v5, s[48:51], s43 offen offset:{128*kk}")
    a("s_branch K1_FLR")
    a.label("K1_FA")
    a("v_bfe_u32 v5, v0, 3, 2", "v_and_b32 v6, 3, v0", "v_lshl_add_u32 v5, v5, 2, v6", "v_lshlrev_b32 v5, 1, v5", "s_movk_i32 s43, 16384")
    for c in range(4): a(f"buffer_load_ushort v{FR+c}, v5, s[20:23], s43 offen offset:{32*c}")
    a("s_branch K1_FLR")
    a.label("K1_FS")
    a("v_and_b32 v5, 63, v0", "v_lshlrev_b32 v5, 4, v5", "s_lshl_b32 s36, s19, 10", f"s_add_u32 s36, s36, {WS_WF}")
    a("s_cmp_eq_u32 s19, 8", "s_cbranch_scc1 K1_AE")
    if opt.get("wsc"):
        msk = sum(1 << t for t in range(9, 25) if (t - 9) & 2 == 0) | (0xff if opt["wsc"] & 2 else 0)
        a(f"s_mov_b32 s37, {msk:#x}", "s_bitcmp0_b32 s37, s19", "s_cbranch_scc1 K1_FR")
        for c in range(8): a(f"v_lshlrev_b32 v{FR+c}, 16, v{FR+c}", f"v_mul_f32 v{FR+c}, s46, v{FR+c}")
        for rr in range(4): a(f"v_cvt_pk_bf16_f32 v{W+rr}, v{FR+2*rr}, v{FR+2*rr+1}")
        a(f"buffer_store_dwordx4 {vr(W,4)}, v5, s[32:35], s36 offen", "s_branch K1_PE")
        a.label("K1_FR")
    for rr in range(4): a(f"v_lshl_or_b32 v{W+rr}, v{FR+2*rr+1}, 16, v{FR+2*rr}")
    a(f"buffer_store_dwordx4 {vr(W,4)}, v5, s[32:35], s36 offen", "s_branch K1_PE")
    a.label("K1_AE")
    if opt.get("rot"): a("v_mov_b32 v2, s52", f"s_mov_b32 s53, {WS_HDR}", "buffer_store_dword v2, v5, s[32:35], s53 offen")
    a("v_bfe_u32 v2, v0, 2, 1", "v_bfe_u32 v3, v0, 5, 1", "v_cmp_eq_u32 vcc, v2, v3")
    for c in range(4):
        a(f"v_lshlrev_b32 v{FR+c}, 16, v{FR+c}", f"v_mul_f32 v{FR+c}, s46, v{FR+c}", f"v_cvt_pk_bf16_f32 v{FR+c}, 0, v{FR+c}", f"v_cndmask_b32 v{W+c}, 0, v{FR+c}, vcc")
    a(f"buffer_store_dwordx4 {vr(W,4)}, v5, s[32:35], s36 offen", "s_branch K1_PE")
    return a.lines

import os
L_AGB = 0; ASTR = int(os.environ.get('ASTR', 160))
L_QS = L_AGB + 112 * ASTR; QSTR = 272
L_CTR = L_QS + 112 * QSTR; L_OVC = L_CTR + 448; L_FLG = L_CTR + 452; L_CT2 = L_CTR + 512; L_SLOT = L_CTR + 1024; L_OVL = L_SLOT + 512
L_XS = L_OVL + 1024; L_WF = L_XS + 14336
L_ELL = L_WF + 25600; ESTR = 516; EROWS = 83
K2_LDS = L_ELL + 3 * 768 * 16 + 6144
assert K2_LDS >= L_ELL + EROWS * ESTR and L_ELL % 16 == 0 and L_XS % 256 == 0 and L_CTR % 256 == 0 and L_ELL + 512 < (1 << 17), (L_XS, L_ELL)
ZCOL = 112 * 4; DUMP = L_ELL + CAP * ESTR + 400; HCOL = 116 * 4

def gen_k2(opt):
    a = Asm(); st = Stamps(a, opt.get("stamp"), 78, 1, 12)
    perm = opt.get("perm", [0, 1, 2, 3, 10, 6, 5, 4, 11, 9, 8, 7])
    RG = opt.get("ring", 2); small = opt.get("small", 1); dp = opt.get("dprio", [8, 4, 2])
    Q, P, Z0, Z1, NN, DD, EX, BE, AL, AH, AE, IX, VI, VE, LEN, AGA, MFL, OOF, ARD, ARX = \
        8, 24, 56, 72, 88, 104, 120, 136, 140, 144, 148, 152, 154, 155, 159, 160, 161, 162, 163, 164
    WU = BE
    R = Z0
    AD = NN
    TG = DD
    W2 = Q; X = P
    SP, PP5, EH, QC, AC = DD + 8, DD + 9, DD + 10, DD + 11, DD + 12
    SWS, SPT, SX, SO = 24, 28, 32, 36
    MK = 40
    BK = "s76"
    ws = f"s[{SWS}:{SWS+3}]"
    a.label("mpnn_msg_kernel")
    a("s_cmp_ge_u32 s2, 256", "s_cbranch_scc1 K2_END")
    st.early()
    a("s_load_dwordx2 s[20:21], s[0:1], 64", "s_load_dwordx16 s[4:19], s[0:1], 0")
    a("v_lshrrev_b32 v1, 6, v0", "v_lshlrev_b32 v2, 4, v0", "v_readfirstlane_b32 s3, v1")
    for i in range(4): a(f"v_mov_b32 v{Q+i}, 0")
    a(f"v_add_u32 v4, {L_ELL}, v2")
    a("v_and_b32 v5, 255, v0", "v_lshlrev_b32 v5, 2, v5", f"v_add_u32 v6, {L_ELL}, v5", f"v_cmp_gt_u32 vcc, {NB*4}, v5")
    a(f"s_and_b32 {BK}, s2, 7", f"s_lshl_b32 {BK}, {BK}, 5", "s_lshr_b32 s64, s2, 3", f"s_add_u32 {BK}, {BK}, s64")
    a("v_cndmask_b32 v6, 0, v6, vcc", f"ds_write_b32 v5, v6 offset:{L_CTR}")
    for i in range(3): a(f"ds_write_b128 v4, {vr(Q,4)} offset:{12288*i}")
    a(f"v_lshlrev_b32 v5, 3, v0", f"v_add_u32 v5, {L_ELL + 3*12288}, v5", f"ds_write_b64 v5, {vr(Q,2)}")
    a(f"s_lshl_b32 s64, {BK}, 14", f"s_lshl_b32 s62, {BK}, 15", f"s_add_u32 s62, s62, {WS_RB}", f"s_add_u32 s64, s64, {WS_RA - 4096}", "s_add_u32 s65, s64, 8192",
      f"s_lshl_b32 s66, {BK}, 13", f"s_and_b32 s67, {BK}, 16", "s_add_u32 s66, s66, s67", f"s_add_u32 s66, s66, {WS_DA}", "s_xor_b32 s60, s66, 16",
      "s_sub_u32 s66, s66, 2048", "s_add_u32 s67, s66, 4096")
    a(f"s_mul_i32 s69, {BK}, {NB}", f"s_sub_u32 s70, {N}, s69", f"s_min_u32 s70, s70, {NB}", "s_lshl_b32 s70, s70, 7", "s_lshl_b32 s71, s69, 7")
    a("s_and_b32 s72, s3, 3", "s_lshr_b32 s73, s3, 2")
    a(f"s_mov_b32 s{SWS+2}, {WS_END}", f"s_mov_b32 s{SWS+3}, 0x20000", f"s_mov_b32 s{SX+2}, s70", f"s_mov_b32 s{SX+3}, 0x20000")
    a(f"v_and_b32 v4, 3, v0", "v_and_b32 v6, 63, v0", "v_lshlrev_b32 v6, 4, v6")
    a("v_lshlrev_b32 v3, 5, v0", "v_lshrrev_b32 v5, 2, v0", "v_lshlrev_b32 v5, 5, v5", "v_lshl_add_u32 v5, v4, 2, v5")
    BS = opt.get("bs", 0); BP = opt.get("bp", "a")
    if BS: a("v_lshlrev_b32 v166, 3, v6", "s_andn2_b32 s77, s2, 7", "s_add_u32 s77, s77, s3", "s_sub_u32 s77, s77, 4", f"s_mul_i32 s77, s77, {BS*128}", "s_and_b32 s61, s2, 7", f"s_mul_i32 s61, s61, {(25000 - 256*BS)//7*128 if opt.get('xo', 1) else 0}", "s_add_u32 s77, s77, s61")
    def bulk(): a(f"s_mov_b64 exec, {(1 << BS) - 1 if BS < 64 else -1:#x}" if BS <= 32 else f"s_mov_b32 exec_hi, {(1 << (BS-32)) - 1:#x}", "buffer_load_dword v167, v166, s[24:27], s77 offen", "s_mov_b64 exec, -1")
    a("s_cmp_eq_u32 s73, 0")
    a("s_waitcnt lgkmcnt(0)")
    st()
    if opt.get("x1"): a("s_branch K2_FIN")
    a(f"s_mov_b32 s{SWS}, s20", f"s_mov_b32 s{SWS+1}, s21")
    if opt.get("rot"): a(f"s_mov_b32 s23, {WS_HDR}", "s_load_dword s77, s[20:21], s23")
    a("s_cbranch_scc0 K2_A1")
    a(f"buffer_load_dwordx4 {vr(TG,4)}, v3, {ws}, s60 offen {opt.get('kflag', '')}")
    a(f"s_add_u32 s{SX}, s4, s71", f"s_addc_u32 s{SX+1}, s5, 0")
    a("v_bfe_u32 v7, v0, 4, 2", "v_lshlrev_b32 v7, 4, v7", "v_xor_b32 v7, v7, v6", "v_xor_b32 v5, 64, v7",
      "s_lshl_b32 s60, s3, 11", f"s_add_u32 s61, s60, {L_XS}", f"s_add_u32 m0, s60, {L_WF}", f"s_add_u32 s63, s60, {WS_WF}")
    a("s_barrier")
    sx = f"s[{SX}:{SX+3}]"
    a(f"buffer_load_dwordx4 v6, {ws}, s63 offen lds", f"buffer_load_dwordx4 v6, {ws}, s63 offen offset:1024 lds", "s_mov_b32 m0, s61", "v_lshlrev_b32 v3, 7, v0")
    a(f"buffer_load_dwordx4 v7, {sx}, s60 offen lds", f"buffer_load_dwordx4 v5, {sx}, s60 offen offset:1024 lds",
      "s_add_u32 m0, s61, 8192", "s_add_u32 s60, s60, 8192", "s_cmp_eq_u32 s3, 3", "s_cbranch_scc1 K2_A3",
      f"buffer_load_dwordx4 v7, {sx}, s60 offen lds", f"buffer_load_dwordx4 v5, {sx}, s60 offen offset:1024 lds")
    a("s_branch K2_A2")
    a.label("K2_A3")
    a(f"s_mov_b32 m0, {L_WF + 8192}", f"s_mov_b32 s60, {WS_WF + 8192}", f"buffer_load_dwordx4 v6, {ws}, s60 offen lds", "s_mov_b64 exec, 0", f"buffer_load_dwordx4 v6, {ws}, s60 offen lds", "s_mov_b64 exec, -1")
    a("s_branch K2_A2")
    a.label("K2_A1")
    a(f"buffer_load_dword v{TG}, v5, {ws}, s66 offen {opt.get('kflag', '')}", f"buffer_load_dword v{TG+1}, v5, {ws}, s67 offen {opt.get('kflag', '')}")
    a("s_barrier")
    a(f"buffer_load_dwordx4 {vr(R,4)}, v2, {ws}, s64 offen {opt.get('kflag', '')}", f"buffer_load_dwordx4 {vr(R+4,4)}, v2, {ws}, s65 offen {opt.get('kflag', '')}")
    if BS and BP == "a": bulk()
    a.label("K2_A2")
    a("s_lshl_b32 s74, s73, 11", f"s_add_u32 s75, s74, {3*2048}", f"s_add_u32 s22, s74, {6*2048}")
    srd(a, SPT, 20, 21, N, stride=128)
    a(f"s_add_u32 s{SO}, s16, s71", f"s_addc_u32 s{SO+1}, s17, 0", f"s_mov_b32 s{SO+2}, s70", f"s_mov_b32 s{SO+3}, 0x20000")
    T = Z1
    SMF = opt.get("smf", 0)
    if SMF:
        a(f"v_bfe_u32 v{T}, v0, 2, 1", f"v_bfe_u32 v{T+1}, v0, 3, 1", f"v_lshl_add_u32 v{T}, v{T}, 1, v{T+1}",
          f"v_lshrrev_b32 v{T+1}, 1, v0", f"v_xor_b32 v{T+1}, v{T+1}, v0", f"v_and_or_b32 v{T}, v{T+1}, 16, v{T}", f"v_mov_b32 v{T+1}, 0x3f80", f"v_mul_u32_u24 v{AH}, 0x5555, v4")
        for k in range(4): a(f"v_cmp_eq_u32 s[{MK+2*k}:{MK+2*k+1}], {k}, v{T}")
        for k in range(4): a(f"v_cndmask_b32 v{AL+k}, 0, v{T+1}, s[{MK+2*k}:{MK+2*k+1}]")
    elif small:
        a(f"v_and_b32 v{T}, 1, v0", f"v_lshlrev_b32 v{T}, 4, v{T}", f"v_mov_b32 v{T+1}, 0x3f80", f"v_lshlrev_b32 v{T}, v{T}, v{T+1}", "v_cmp_gt_u32 vcc, 2, v4",
          f"v_cndmask_b32 v{AL}, 0, v{T}, vcc", f"v_cndmask_b32 v{AL+1}, v{T}, 0, vcc")
    else:
        a(f"v_and_b32 v{T}, 1, v0", f"v_lshlrev_b32 v{T}, 4, v{T}", f"v_mov_b32 v{T+1}, 0x3f80", f"v_lshlrev_b32 v{T}, v{T}, v{T+1}",
          f"v_bfe_u32 v{T+1}, v0, 3, 2", f"v_bfe_u32 v{T+2}, v0, 1, 1", f"v_lshl_add_u32 v{T+1}, v{T+1}, 1, v{T+2}",
          f"v_bfe_u32 v{T+2}, v0, 2, 1", f"v_bfe_u32 v{T+3}, v0, 5, 1", f"v_xor_b32 v{T+2}, v{T+2}, v{T+3}", f"v_lshl_add_u32 v{T+1}, v{T+2}, 3, v{T+1}")
        for k in range(8): a(f"v_cmp_eq_u32 s[{MK+2*k}:{MK+2*k+1}], {k}, v{T+1}")
        for k in range(8): a(f"v_cndmask_b32 v{AL+k}, 0, v{T}, s[{MK+2*k}:{MK+2*k+1}]")
    J, QQ = T, T + 1
    a(f"v_and_b32 v{J}, 15, v0", f"v_bfe_u32 v{QQ}, v0, 4, 2", f"v_lshlrev_b32 v{OOF}, 7, v{J}",
      f"v_lshrrev_b32 v{ARX}, 1, v{J}", f"v_xor_b32 v{ARX}, v{ARX}, v{QQ}", f"v_lshl_add_u32 v{ARX}, v{ARX}, 4, v{OOF}",
      f"s_lshl_b32 s64, s72, 5", f"v_lshl_add_u32 v{OOF}, v{QQ}, 3, v{OOF}", f"v_add_u32 v{OOF}, s64, v{OOF}",
      f"s_mul_i32 s64, s73, {64*QSTR}", f"s_lshl_b32 s65, s72, 6", "s_add_u32 s64, s64, s65", f"s_add_u32 s64, s64, {L_QS - 64*QSTR}",
      f"v_mul_u32_u24 v1, {QSTR}, v{J}", f"v_lshl_add_u32 v1, v{QQ}, 4, v1", "v_add_u32 v1, s64, v1",
      f"s_lshl_b32 s64, s73, 13", f"s_add_u32 s64, s64, {L_XS - 8192}", f"v_add_u32 v2, s64, v{ARX}", "v_xor_b32 v7, 64, v2",
      f"s_lshl_b32 s64, s73, 4", f"v_add_u32 v{J}, s64, v{J}", f"v_mul_u32_u24 v{ARD}, {ASTR}, v{J}", f"v_lshl_add_u32 v{ARD}, v{QQ}, 4, v{ARD}",
      f"s_add_u32 s64, s74, {L_XS}", f"v_add_u32 v{ARX}, s64, v{ARX}")
    a(f"v_lshlrev_b32 v{IX+1}, 4, v4")
    a(f"v_mov_b32 v5, {ESTR}", f"s_movk_i32 s64, {NB*4}", f"s_mov_b32 s65, {DUMP}", "s_mov_b32 s68, 0", "s_mov_b32 s71, 0", "s_mov_b32 s70, 0")
    pk = sum(p << (4 * w) for w, p in enumerate(perm))
    a(f"s_mov_b32 s66, {pk & 0xffffffff:#x}", f"s_mov_b32 s67, {pk >> 32:#x}", "s_lshl_b32 s23, s3, 2", f"s_lshr_b64 s[66:67], s[66:67], s23",
      f"s_and_b32 s23, s66, 15", "s_lshl_b32 s23, s23, 4")
    a(f"v_bfe_u32 v{BE}, v0, 2, 4", f"v_add_u32 v{BE}, s23, v{BE}")
    a(f"v_and_b32 v{BE+2}, 1, v{BE}", f"v_cmp_gt_u32 vcc, 4, v{BE}", f"v_cmp_eq_u32 s[66:67], 0, v{BE+2}",
      f"v_lshlrev_b32 v{BE+1}, 1, v{BE}", f"v_and_b32 v{BE+1}, 0x1fc, v{BE+1}", f"v_subrev_u32 v{BE+1}, 8, v{BE+1}", f"v_lshlrev_b32 v{BE}, 2, v{BE}", f"v_add_u32 v{BE}, {(NB-4)*4}, v{BE}",
      f"s_or_b64 s[58:59], vcc, s[66:67]", f"s_andn2_b64 s[66:67], s[66:67], vcc",
      f"v_cndmask_b32 v{BE+1}, v{BE+1}, v{BE}, vcc",
      f"v_cndmask_b32 v{SP}, 1, 0, vcc", f"v_cndmask_b32 v{PP5}, v5, 0, s[58:59]", f"v_cndmask_b32 v{EH}, 0, 1, s[66:67]",
      f"v_cndmask_b32 v{MFL}, 0, 1.0, s[66:67]", f"v_mov_b32 v{BE+3}, {L_ELL + ZCOL}",
      f"v_lshlrev_b32 v{QC}, 6, v4", f"v_add_u32 v{QC}, {(L_QS - 68*L_ELL) & 0xffffffff:#x}, v{QC}", f"v_lshlrev_b32 v{AC}, 5, v4", f"v_add_u32 v{AC}, {(L_AGB - ASTR//4*L_ELL) & 0xffffffff:#x}, v{AC}")
    a(f"s_mov_b32 s66, {NLOG2E:#x}", f"s_mov_b32 s67, {NLOG2E:#x}")
    T = EX; IP = EX + 4
    for k in range(RG + 1): a(f"v_mov_b32 v{IP+2*k+1}, v{IX+1}")
    a("s_cmp_eq_u32 s73, 0", "s_cbranch_scc1 K2_CT")
    def a_round(ad, l, mk):
        for k in range(4): a(f"v_lshlrev_b32_sdwa v{ad+k}, 2, v{l} dst_sel:DWORD dst_unused:UNUSED_PAD src0_sel:DWORD src1_sel:BYTE_{k}")
        for k in range(4): a(f"v_cmp_gt_u32 s[{mk+2*k}:{mk+2*k+1}], s64, v{ad+k}")
        for k in range(4): a(f"s_mov_b64 exec, s[{mk+2*k}:{mk+2*k+1}]", f"ds_add_rtn_u32 v{ad+k}, v{ad+k}, v5 offset:{L_CTR}")
        a("s_mov_b64 exec, -1")
    stk = st.k
    ellpre = 0
    def ellw():
        for k in range(8):
            if k % 4 == 0: a(f"s_waitcnt vmcnt({1 - k//4 + (1 if BS else 0)})")
            if k == 4 and st.on == 1: a("s_memrealtime s[100:101]")
            a(f"v_min_u32 v{AD+k}, s65, v{AD+k}", f"ds_write_b32 v{AD+k}, v{R+k}")
    a(f"s_lshl_b32 s23, s72, 11", f"s_add_u32 s23, s23, {L_WF}", f"v_add_u32 v3, s23, v6", f"v_mov_b32 v{Z1+4}, 0")
    if BS and BP == "a2": bulk()
    a(f"s_waitcnt vmcnt({2 + (1 if BS and BP != 'b' else 0)})")
    st()
    if BS and BP == "b": bulk()
    a_round(AD, TG, MK); a_round(AD + 4, TG + 1, MK + 8)
    a("s_waitcnt lgkmcnt(0)")
    if ellpre: ellw()
    a("s_barrier")
    if opt.get("rot"): a(f"s_and_b32 s77, s77, {((1 << opt['rot']) - 1) << 22:#x}", f"s_add_u32 s77, s77, {WS_PR}", f"s_add_u32 s{SPT}, s20, s77", f"s_addc_u32 s{SPT+1}, s21, 0", f"s_or_b32 s{SPT+1}, s{SPT+1}, {128 << 16:#x}")
    st()
    a.label("K2_AB1")
    T = Z1 + 4
    a(f"ds_read_b32 v{T+1}, v{T} offset:{L_OVC}")
    if not ellpre: ellw()
    a("s_waitcnt lgkmcnt(4)", f"v_readfirstlane_b32 s23, v{T+1}")
    a(f"ds_read_b128 {vr(W2,4)}, v3", f"ds_read_b128 {vr(W2+4,4)}, v3 offset:1024")
    for i in range(4): a(f"ds_read_b128 {vr(X+8*i,4)}, v2 offset:{2048*i}", f"ds_read_b128 {vr(X+8*i+4,4)}, v7 offset:{2048*i}")
    a("s_andn2_b32 s23, s23, s68", "s_cbranch_scc1 K2_RESCAN")
    QT = Z1; T = EX
    def gather(slot, ix):
        p = P + 8 * slot
        return [f"buffer_load_dwordx4 {vr(p,4)}, {vr(ix,2)}, s[{SPT}:{SPT+3}], 0 idxen offen {opt.get('gflag', '')}",
                f"buffer_load_dwordx4 {vr(p+4,4)}, {vr(ix,2)}, s[{SPT}:{SPT+3}], 0 idxen offen offset:64 {opt.get('gflag', '')}"]
    stb = st.k
    for r in range(4): a(f"v_cmp_eq_u32 s[{MK+4+2*r}:{MK+5+2*r}], {r}, v4")
    a(f"v_add_u32 v7, {L_WF + 8192}, v6")
    if st.on == 1: a("s_memrealtime s[96:97]", "s_waitcnt lgkmcnt(0)", "s_mov_b32 s97, s100")
    a("s_waitcnt lgkmcnt(%d)" % (0 if st.on == 1 else 10), "s_barrier")
    st()
    a(f"ds_read_b32 v{T}, v{BE+1} offset:{L_SLOT}", f"ds_read_b128 {vr(AE,4)}, v7", "s_waitcnt lgkmcnt(2)")
    for i in range(4): a(mf16(QT+4*i, W2, X+8*i, "0"))
    for i in range(4): a(mf16(QT+4*i, W2+4, X+8*i+4, QT+4*i))
    def slotdec():
        a("s_waitcnt lgkmcnt(1)")
        a(f"v_lshrrev_b32 v{LEN}, 17, v{T}", f"v_add_u32 v{T+1}, v{LEN}, v{SP}", f"v_and_b32 v{T}, 0x1ffff, v{T}", f"v_lshrrev_b32 v{T+1}, 1, v{T+1}", f"v_mad_u32_u24 v{VI}, v{T+1}, v{PP5}, v{T}")
        a(f"ds_read_u16 v{IP}, v{VI}")
    slotdec()
    for i in range(4):
        if not opt.get("wsc", 0) & 2: a(f"v_pk_mul_f32 {vr(QT+4*i,2)}, {vr(QT+4*i,2)}, s[66:67]", f"v_pk_mul_f32 {vr(QT+4*i+2,2)}, {vr(QT+4*i+2,2)}, s[66:67]")
        if i == 3: a(f"s_waitcnt lgkmcnt(3)", *gather(0, IP), "s_cmp_eq_u32 s73, 2", "s_cbranch_scc1 K2_NQ2")
        a(f"ds_write_b128 v1, {vr(QT+4*i,4)} offset:{16*QSTR*i}")
    a("s_branch K2_NQ2")
    a.label("K2_CT")
    st.k = stk
    C0, C1, H0, H1, T0, T1, HH, PS, L4, B0, B1_, LOB, HIB, HA, FOUR = [Q + i for i in range(15)]
    a(f"v_mov_b32 v{Z1+4}, {MARK:#x}", "s_lshl_b32 s60, s3, 12", f"s_add_u32 m0, s60, {L_WF + 9*1024}", f"s_add_u32 s60, s60, {WS_WF + 9*1024}")
    a(f"v_lshlrev_b32 v{L4}, 2, v0", f"v_add_u32 v{B0}, {L_ELL}, v{L4}", f"v_add_u32 v{B1_}, {L_ELL + 256}, v{L4}",
      f"v_mov_b32 v{LOB}, {(CAP-63)*ESTR}", f"v_mov_b32 v{HIB}, {CAP*ESTR}", f"v_mul_u32_u24 v{HA}, {ESTR}, v0", f"v_sub_u32 v{HA}, {L_ELL + HCOL + CAP*ESTR}, v{HA}", f"v_mov_b32 v{FOUR}, 4",
      f"s_mov_b32 s61, {L_ELL + HCOL}")
    AD2 = P + 8; AD3 = P + 24
    for k in range(16): a(f"v_mov_b32 v{AD+k}, -1")
    a("s_waitcnt vmcnt(6)")
    st()
    for j in range(4): a(f"v_cmp_ne_u32 s[{MK+2*j}:{MK+2*j+1}], -1, v{TG+j}")
    a(f"v_cmp_eq_u32 vcc, v{Z1+4}, v{TG}")
    for j in range(4): a(f"s_mov_b64 exec, s[{MK+2*j}:{MK+2*j+1}]", f"buffer_load_dwordx4 {vr(R+4*j,4)}, v3, {ws}, s62 offen offset:{16*j} {opt.get('kflag', '')}")
    a("s_mov_b64 exec, -1")
    for j in range(4):
        a(f"s_cmp_eq_u64 s[{MK+2*j}:{MK+2*j+1}], 0", f"s_cbranch_scc1 K2_TS{j}")
        if j == 3: a("s_waitcnt lgkmcnt(8)")
        for k in range(4): a(f"v_lshlrev_b32_sdwa v{AD2+4*j+k}, 2, v{TG+j} dst_sel:DWORD dst_unused:UNUSED_PAD src0_sel:DWORD src1_sel:BYTE_{k}")
        for k in range(4): a(f"v_cmp_gt_u32 s[{MK+8+2*k}:{MK+9+2*k}], s64, v{AD2+4*j+k}")
        for k in range(4): a(f"s_mov_b64 exec, s[{MK+8+2*k}:{MK+9+2*k}]", f"ds_add_rtn_u32 v{AD+4*j+k}, v{AD2+4*j+k}, v5 offset:{L_CT2}")
        a("s_mov_b64 exec, -1", f"s_bitset1_b32 s70, {j}")
        a.label(f"K2_TS{j}")
    if opt.get("nowu"): a("s_mov_b64 exec, 0")
    for k in range(4): a(f"buffer_load_dwordx4 v6, {ws}, s60 offen offset:{1024*k} lds")
    if opt.get("nowu"): a("s_mov_b64 exec, -1")
    a("s_cbranch_vccnz K2_MARK")
    a.label("K2_MR")
    a("s_waitcnt lgkmcnt(0)")
    if opt.get("rot"): a(f"s_and_b32 s77, s77, {((1 << opt['rot']) - 1) << 22:#x}", f"s_add_u32 s77, s77, {WS_PR}", f"s_add_u32 s{SPT}, s20, s77", f"s_addc_u32 s{SPT+1}, s21, 0", f"s_or_b32 s{SPT+1}, s{SPT+1}, {128 << 16:#x}")
    a("s_waitcnt vmcnt(8)", "s_barrier")
    st()
    a.label("K2_AB1T")
    a(f"v_and_b32 v{T0}, 0xfc, v{L4}", f"ds_read2st64_b32 {vr(C0,2)}, v{T0} offset0:{L_CTR//256} offset1:{L_CTR//256+1}", f"ds_read2st64_b32 {vr(H0,2)}, v{T0} offset0:{L_CTR//256+2} offset1:{L_CTR//256+3}", "s_setprio 3", "s_mov_b32 s56, -1", "s_mov_b32 s57, 3")
    a("s_waitcnt lgkmcnt(0)", f"v_readlane_b32 s23, v{C1}, 48", f"v_sub_u32 v{C0}, v{C0}, v{B0}", f"v_sub_u32 v{C1}, v{C1}, v{B1_}", f"v_add_u32 v{C0}, v{C0}, v{H0}", f"v_add_u32 v{C1}, v{C1}, v{H1}",
      "s_andn2_b32 s23, s23, s68", "s_cbranch_scc1 K2_RESCAN", "s_cmp_lg_u32 s3, 0", "s_cbranch_scc1 K2_TW")
    for c, h, t in ((C0, H0, T0), (C1, H1, T1)):
        if c == C1: a("s_mov_b64 exec, s[56:57]")
        a(f"v_med3_u32 v{h}, v{c}, v{LOB}, v{HIB}", f"v_add_u32 v{t}, s61, v{h}", f"ds_add_rtn_u32 v{t}, v{t}, v{FOUR}")
    a(f"v_cmp_gt_u32 s[{MK}:{MK+1}], v{C1}, v{HIB}", "s_mov_b64 exec, -1", f"ds_read_b32 v{HH}, v{HA}", f"v_cmp_gt_u32 vcc, v{C0}, v{HIB}")
    for c, h, b in ((C0, H0, B0), (C1, H1, B1_)):
        a(f"v_min_u32 v{c}, v{c}, v{HIB}", f"v_lshrrev_b32 v{c}, 2, v{c}", f"v_mul_u32_u24 v{c}, 509, v{c}", f"v_lshrrev_b32 v{c}, 16, v{c}",
          f"v_max_u32 v{h}, {CAP-63}, v{c}", f"v_sub_u32 v{h}, {CAP}, v{h}", f"v_lshlrev_b32 v{h}, 2, v{h}", f"v_lshl_or_b32 v{c}, v{c}, 17, v{b}")
    a(f"s_or_b64 vcc, vcc, s[{MK}:{MK+1}]", "s_waitcnt lgkmcnt(0)")
    a(f"v_add_u32_dpp v{PS}, v{HH}, v{HH} row_shr:1 row_mask:0xf bank_mask:0xf bound_ctrl:0")
    for k in (2, 4, 8): a(f"v_add_u32_dpp v{PS}, v{PS}, v{PS} row_shr:{k} row_mask:0xf bank_mask:0xf bound_ctrl:0")
    a(f"v_add_u32_dpp v{PS}, v{PS}, v{PS} row_bcast:15 row_mask:0xa bank_mask:0xf", f"v_add_u32_dpp v{PS}, v{PS}, v{PS} row_bcast:31 row_mask:0xc bank_mask:0xf")
    a(f"v_sub_u32 v{PS}, v{PS}, v{HH}", f"ds_bpermute_b32 v{H0}, v{H0}, v{PS}", f"ds_bpermute_b32 v{H1}, v{H1}, v{PS}")
    a(f"v_mov_b32 v{HH}, 0", "s_waitcnt lgkmcnt(1)", f"v_add_u32 v{H0}, v{H0}, v{T0}", f"ds_write_b32 v{H0}, v{C0} offset:{L_SLOT}",
      "s_waitcnt lgkmcnt(1)", "s_mov_b64 exec, s[56:57]", f"v_add_u32 v{H1}, v{H1}, v{T1}", f"ds_write_b32 v{H1}, v{C1} offset:{L_SLOT}", "s_mov_b64 exec, -1")
    a("s_cbranch_vccz K2_TW", f"ds_write_b32 v{HH}, v5 offset:{L_FLG}")
    a.label("K2_TW")
    a.label("K2_CWR")
    for r in range(4): a(f"v_cmp_eq_u32 s[{MK+4+2*r}:{MK+5+2*r}], {r}, v4")
    T = EX
    a(f"v_add_u32 v7, {L_WF + 8192}, v6")
    if st.on == 1: a("s_waitcnt lgkmcnt(0)", "s_memrealtime s[96:97]")
    a("s_waitcnt lgkmcnt(0)", "s_barrier")
    st()
    a(f"ds_read_b32 v{T}, v{BE+1} offset:{L_SLOT}", f"ds_read_b128 {vr(AE,4)}, v7")
    slotdec()
    a(f"s_waitcnt lgkmcnt(0)", *gather(0, IP))
    for j in range(4):
        a(f"s_bitcmp0_b32 s70, {j}", f"s_cbranch_scc1 K2_TR{j}")
        for k in range(4): a(f"ds_read_b32 v{AD3+k}, v{AD2+4*j+k} offset:{L_CTR}")
        for k in range(4): a(f"s_waitcnt lgkmcnt({3-k})", f"v_add_u32 v{AD+4*j+k}, v{AD+4*j+k}, v{AD3+k} clamp", f"v_min_u32 v{AD+4*j+k}, s65, v{AD+4*j+k}")
        a.label(f"K2_TR{j}")
    a("s_waitcnt vmcnt(6)")
    if st.on == 1: a("s_memrealtime s[100:101]", "s_waitcnt lgkmcnt(0)", "s_mov_b32 s97, s100")
    for j in range(4):
        a(f"s_bitcmp0_b32 s70, {j}", f"s_cbranch_scc1 K2_TW{j}")
        if j == 3: a("s_waitcnt lgkmcnt(4)")
        for k in range(4): a(f"ds_write_b32 v{AD+4*j+k}, v{R+4*j+k}")
        a.label(f"K2_TW{j}")
    a.label("K2_NQ2")
    LV = opt.get("lv", 0); ME = LV & 1; MC = LV & 2
    def rde(t, cur=None):
        if not ME: return [f"ds_read_b32 v{BE+r}, v{VE+r} offset:{t*ESTR}" for r in range(4)]
        o = []
        for r in range(4): o += [f"s_and_b64 exec, {cur}, s[{MK+4+2*r}:{MK+5+2*r}]" if cur else f"s_mov_b64 exec, s[{MK+4+2*r}:{MK+5+2*r}]", f"ds_read_b32 v{BE+r}, v{VI} offset:{t*ESTR}"]
        return o + [f"s_mov_b64 exec, {cur or -1}"]
    a(f"v_mov_b32 v{T+1}, 68", f"v_mad_u32_u24 v{T+2}, v{T}, v{T+1}, v{QC}")
    for r in range(4): a(f"v_mov_b32 v{BE+r}, 0" if ME else f"v_cndmask_b32 v{VE+r}, v{BE+3}, v{VI}, s[{MK+4+2*r}:{MK+5+2*r}]")
    for i in range(16): a(f"v_mov_b32 v{NN+i}, 0")
    if st.on == 1: a("s_waitcnt lgkmcnt(0)", "s_memrealtime s[62:63]")
    a("s_waitcnt vmcnt(2) lgkmcnt(0)", "s_barrier")
    if st.on == 1: a("s_memrealtime s[60:61]", "s_waitcnt lgkmcnt(0)")
    a(f"ds_read_u16 v{T+3}, v{VI}")
    for k in range(1, RG + 1): a(f"ds_read_u16 v{IP+2*k}, v{VI} offset:{k*ESTR}")
    for k in range(4): a(f"ds_read_b128 {vr(Q+4*k,4)}, v{T+2} offset:{16*k}")
    a(*rde(0), f"ds_read_u16 v{IX}, v{VI} offset:{(RG+1)*ESTR}")
    a(f"s_waitcnt lgkmcnt({RG + 8})", f"v_cmp_ne_u32 vcc, v{T+3}, v{IP}", "s_cbranch_vccnz K2_G0R")
    a.label("K2_G0D")
    a(*gather(1, IP + 2))
    a(f"v_add_u32 v{LEN}, v{LEN}, v{EH}", f"v_lshrrev_b32 v{LEN}, v{SP}, v{LEN}", f"v_mad_u32_u24 v{AGA}, v{T}, {ASTR//4}, v{AC}")
    a(f"v_max_u32_dpp v{T+1}, v{LEN}, v{LEN} row_shr:4 row_mask:0xf bank_mask:0xf bound_ctrl:0")
    if MC: a(f"v_min_u32_dpp v{T+2}, v{LEN}, v{LEN} row_shr:4 row_mask:0xf bank_mask:0xf bound_ctrl:0")
    for i in range(8): a(f"v_mov_b32 v{DD+i}, 1.0")
    a(f"v_max_u32_dpp v{T+1}, v{T+1}, v{T+1} row_shr:8 row_mask:0xf bank_mask:0xf bound_ctrl:0")
    if MC: a(f"v_min_u32_dpp v{T+2}, v{T+2}, v{T+2} row_shr:8 row_mask:0xf bank_mask:0xf bound_ctrl:0")
    for i in range(8, 16): a(f"v_mov_b32 v{DD+i}, 1.0")
    a(f"v_readlane_b32 s69, v{T+1}, 15", f"v_readlane_b32 s70, v{T+1}, 31", f"v_readlane_b32 s64, v{T+1}, 47", f"v_readlane_b32 s65, v{T+1}, 63",
      "s_max_u32 s69, s69, s70", "s_max_u32 s64, s64, s65", "s_max_u32 s69, s69, s64")
    if MC: a(f"v_readlane_b32 s56, v{T+2}, 15", f"v_readlane_b32 s70, v{T+2}, 31", f"v_readlane_b32 s64, v{T+2}, 47", f"v_readlane_b32 s65, v{T+2}, 63",
      "s_min_u32 s56, s56, s70", "s_min_u32 s64, s64, s65", "s_min_u32 s56, s56, s64")
    TG3 = LV & 4; TL = LV & 24
    if TG3: a("s_sub_u32 s64, s69, 3", "s_max_i32 s64, s64, 0", "s_min_u32 s56, s56, s64")
    elif TL: a("s_sub_u32 s64, s69, 1", "s_min_u32 s56, s56, s64")
    a("s_mov_b32 s70, 0")
    a(f"s_lshl_b32 s23, s72, 12", f"s_add_u32 s23, s23, 1024", "v_add_u32 v7, s23, v7")
    a("s_cmp_eq_u32 s69, 0", "s_cbranch_scc1 K2_DONE0")
    a(f"s_waitcnt vmcnt(2) lgkmcnt(0)")
    st()
    if st.on == 1: a("s_memtime s[98:99]", "s_waitcnt lgkmcnt(0)")
    for k in range(2, RG): a(*gather(k, IP + 2*k))
    def sm(z, b, c): return f"v_mfma_f32_4x4x4_16b_bf16 {vr(z,4)}, {vr(AL,2)}, {vr(b,2)}, {vr(c,4)}"
    def smf(z, b): return f"v_smfmac_f32_32x32x32_bf16 {vr(z,16)}, {vr(AL,4)}, {vr(b,8)}, v{AH}"
    if SMF: a(mf32(Z0, AE, BE, Q), smf(Z0, P))
    elif small: a(*[sm(Z0+4*i, P+2*i, Q+4*i) for i in range(4)], mf32(Z0, AE, BE, Z0))
    else: a(mf32(Z0, AE, BE, Q), mf32(Z0, AL, P, Z0), mf32(Z0, AH, P + 4, Z0))
    a(*gather(0, IP + 2*RG), *rde(1), "s_nop 3")
    U = max(2, RG)
    a(f"s_branch K2_PRI{U-1}")
    a(".p2align 6")
    late = []
    def fmas(zc):
        for i in range(0, 16, 2): a(f"v_pk_fma_f32 {vr(NN+i,2)}, {vr(NN+i,2)}, {vr(EX+i,2)}, {vr(NN+i,2)}")
        for i in range(0, 16, 2): a(f"v_pk_fma_f32 {vr(NN+i,2)}, {vr(zc+i,2)}, {vr(DD+i,2)}, {vr(NN+i,2)}")
        for i in range(0, 16, 2): a(f"v_pk_fma_f32 {vr(DD+i,2)}, {vr(DD+i,2)}, {vr(EX+i,2)}, {vr(DD+i,2)}")
    def body(L, u):
        tail = L == "M"
        a.label(f"K2_{L}{u}")
        zc = (Z0, Z1)[u % 2]; zn = (Z1, Z0)[u % 2]; p = P + 8 * ((u + 1) % RG)
        ex = [f"v_exp_f32 v{EX+i}, v{zc+i}" for i in range(16)]
        if tail:
            a(f"v_cmpx_lt_u32 vcc, s70, v{LEN}", "s_sub_u32 s65, s69, s70", *ex[13:16]); ex = ex[:13]
            if TL: a("s_cmp_eq_u32 s65, 1", f"s_cbranch_scc1 K2_MS{u}"); late.append((u, ex))
        if SMF:
            a("s_waitcnt lgkmcnt(0)", mf32(zn, AE, BE, Q), *ex[0:SMF], f"s_waitcnt vmcnt({2*RG-2})", smf(zn, p), *ex[SMF:16])
        elif opt.get("bf"):
            k = opt["bf"] - (3 if tail else 0)
            s4 = [sm(zn+4*i, p+2*i, zn+4*i) for i in range(4)]
            a("s_waitcnt lgkmcnt(0)", mf32(zn, AE, BE, Q), *ex[0:k], f"s_waitcnt vmcnt({2*RG-2})", s4[0], ex[k], s4[1], ex[k+1], s4[2], ex[k+2], s4[3], *ex[k+3:16])
        else:
            a(f"s_waitcnt vmcnt({2*RG-2}) lgkmcnt(0)")
            s4 = [sm(zn+4*i, p+2*i, Q+4*i) for i in range(4)]
            a(s4[0], ex[0], s4[1], ex[1], s4[2], ex[2], s4[3], *ex[3:8], mf32(zn, AE, BE, zn), *ex[8:16])
        if tail and TG3: a("s_cmp_gt_u32 s65, 3", "s_cselect_b64 exec, vcc, 0")
        a(*gather((u + 1) % RG, IX), f"ds_read_u16 v{IX}, v{VI} offset:{(u+RG+2)*ESTR}", *rde(u + 2, "vcc" if tail else None)) if ME else a(*gather((u + 1) % RG, IX), *rde(u + 2), f"ds_read_u16 v{IX}, v{VI} offset:{(u+RG+2)*ESTR}")
        if not MC: a(f"v_cmpx_lt_u32 vcc, s70, v{LEN}")
        if tail and TL == 8: a.label(f"K2_MF{u}")
        fmas(zc)
        if not MC: a("s_mov_b64 exec, -1")
        a("s_add_u32 s70, s70, 1", "s_cmp_ge_u32 s70, s64")
        if u < U - 1: a(f"s_cbranch_scc1 K2_PRI{u}")
        else:
            for rg in [VI] + ([] if ME else [VE + r for r in range(4)]): a(f"v_add_u32 v{rg}, {U*ESTR}, v{rg}")
            a(f"s_cbranch_scc0 K2_{L}0")
            if tail: a(f"s_branch K2_PRI{u}")
    for u in range(U): body("L", u)
    for u in list(range(U - 1, -1, -1)):
        a.label(f"K2_PRI{u}")
        nx = f"K2_X{u}" if MC else f"K2_L{(u+1)%U}"
        a("s_sub_u32 s65, s69, s70")
        for lv, th in zip((3, 2, 1), dp):
            a(f"s_setprio {lv}", f"s_sub_u32 s64, s69, {th}", f"s_cmp_gt_u32 s65, {th}", f"s_cbranch_scc1 {nx}")
        if MC:
            a("s_setprio 0", "s_mov_b32 s64, s69", "s_cmp_eq_u32 s65, 0", f"s_cbranch_scc1 K2_DONEX")
            a.label(nx)
            a("s_cmp_ge_u32 s70, s56", f"s_cbranch_scc1 K2_M{(u+1)%U}", "s_min_u32 s64, s64, s56", f"s_branch K2_L{(u+1)%U}")
        else:
            a("s_setprio 0", "s_mov_b32 s64, s69", "s_cmp_lg_u32 s65, 0", f"s_cbranch_scc1 {nx}")
            if u: a("s_branch K2_DONE")
    if MC:
        a(".p2align 6")
        for u in range(U): body("M", u)
        for u, ex in late:
            a.label(f"K2_MS{u}")
            if TL == 8: a(*ex, f"s_branch K2_MF{u}")
            else:
                a(*ex); fmas((Z0, Z1)[u % 2])
                if u != U - 1: a("s_branch K2_DONEX")
        a.label("K2_DONEX")
        a("s_mov_b64 exec, -1")
    a.label("K2_DONE")
    st()
    if st.on == 1: a("s_memtime s[100:101]", "s_waitcnt lgkmcnt(0)", "s_sub_u32 s98, s100, s98")
    XF = Z0; ACC = Q
    EP = opt.get("ep", 0)
    if not EP:
        a(f"v_xor_b32 v3, 64, v{ARX}")
        for i in range(16): a(f"v_rcp_f32 v{EX+i}, v{DD+i}")
        a("s_waitcnt lgkmcnt(0)")
        for k in range(4): a(f"ds_read_b128 {vr(WU+4*k,4)}, v7 offset:{1024*k}")
        for i in range(3): a(f"ds_read_b128 {vr(XF+8*i,4)}, v{ARX} offset:{6144*i}", f"ds_read_b128 {vr(XF+8*i+4,4)}, v3 offset:{6144*i}")
        a(f"s_mov_b32 s66, {NLN2:#x}", f"s_mov_b32 s67, {NLN2:#x}", f"s_mov_b32 s64, {f2u(2.0**120):#x}")
        for i in range(0, 16, 2): a(f"v_pk_mul_f32 {vr(NN+i,2)}, {vr(NN+i,2)}, s[66:67]")
        a(f"v_max3_f32 v2, v{DD}, v{DD+1}, v{DD+2}")
        for i in range(3, 15, 2): a(f"v_max3_f32 v2, v{DD+i}, v{DD+i+1}, v2")
        a(f"v_max_f32 v2, v{DD+15}, v2")
        for i in range(0, 16, 2): a(f"v_pk_mul_f32 {vr(NN+i,2)}, {vr(NN+i,2)}, {vr(EX+i,2)}")
        a(f"v_pk_mul_f32 {vr(DD,2)}, {vr(NN,2)}, 0")
        for i in range(2, 16, 2): a(f"v_pk_fma_f32 {vr(DD,2)}, {vr(NN+i,2)}, 0, {vr(DD,2)}")
        for i in range(16): a(f"v_fmac_f32_dpp v{NN+i}, v{NN+i}, v{MFL} row_shl:4 row_mask:0xf bank_mask:0xf bound_ctrl:0")
        a(f"v_cmp_u_f32 vcc, v{DD}, v{DD+1}", f"v_cmp_nlt_f32 s[{MK+2}:{MK+3}], v2, s64", f"s_or_b64 vcc, vcc, s[{MK+2}:{MK+3}]")
        for i in range(8): a(f"v_cvt_pk_bf16_f32 v{EX+i}, v{NN+2*i}, v{NN+2*i+1}")
        a("s_waitcnt lgkmcnt(0)", f"s_mov_b64 exec, s[58:59]", f"ds_write_b128 v{AGA}, {vr(EX,4)} offset:{L_AGB}", f"ds_write_b128 v{AGA}, {vr(EX+4,4)} offset:{L_AGB+16}")
        a("s_mov_b64 exec, vcc", "v_mov_b32 v2, 0", f"ds_write_b32 v2, v5 offset:{L_FLG}", "s_mov_b64 exec, -1")
        a(f"s_mov_b32 s66, {NLOG2E:#x}", f"s_mov_b32 s67, {NLOG2E:#x}", "v_mov_b32 v2, 0")
        for i in range(3): a(mf16(ACC+4*i, WU, XF+8*i, "0"))
        for i in range(3): a(mf16(ACC+4*i, WU+4, XF+8*i+4, ACC+4*i))
        a("s_waitcnt lgkmcnt(0)", "s_barrier")
        st()
        a.label("K2_EPI")
        B = Z0; O = EX; TT = NN; WU2 = WU + 8
        a(f"ds_read_b32 v3, v2 offset:{L_FLG}")
        for i in range(3):
            for s in range(2): a(f"ds_read_b128 {vr(B+8*i+4*s,4)}, v{ARD} offset:{L_AGB + 48*ASTR*i + 64*s}")
        a("s_waitcnt lgkmcnt(6)", "v_readfirstlane_b32 s23, v3", "s_andn2_b32 s23, s23, s71", "s_cbranch_scc1 K2_BF")
        def epi_tile(i):
            o = O + 4 * i; t = TT + 4 * i
            a(f"v_pk_mul_f32 {vr(t,2)}, {vr(o,2)}, s[66:67]", f"v_pk_mul_f32 {vr(t+2,2)}, {vr(o+2,2)}, s[66:67]")
            for k in range(4): a(f"v_exp_f32 v{t+k}, v{t+k}")
            a(f"v_pk_add_f32 {vr(t,2)}, {vr(t,2)}, 1.0 op_sel_hi:[1,0]", f"v_pk_add_f32 {vr(t+2,2)}, {vr(t+2,2)}, 1.0 op_sel_hi:[1,0]")
            for k in range(4): a(f"v_rcp_f32 v{t+k}, v{t+k}")
            a(f"v_pk_mul_f32 {vr(t,2)}, {vr(t,2)}, {vr(o,2)}", f"v_pk_mul_f32 {vr(t+2,2)}, {vr(t+2,2)}, {vr(o+2,2)}")
            a(f"v_cvt_pk_bf16_f32 v{o}, v{t}, v{t+1}", f"v_cvt_pk_bf16_f32 v{o+1}, v{t+2}, v{t+3}")
            a(f"buffer_store_dwordx2 {vr(o,2)}, v{OOF}, s[{SO}:{SO+3}], {('s74','s75','s22')[i]} offen {opt.get('oflag', '')}")
        for i in range(3):
            a(f"s_waitcnt lgkmcnt({4-2*i})", mf16(O+4*i, WU2, B+8*i, ACC+4*i), mf16(O+4*i, WU2+4, B+8*i+4, O+4*i))
        epi_tile(0); epi_tile(1)
        a("s_cmp_lg_u32 s73, 0", "s_cbranch_scc1 K2_FIN")
        epi_tile(2)
    else:
        n3 = EP & 2
        a(f"v_xor_b32 v3, 64, v{ARX}", "s_waitcnt lgkmcnt(0)")
        if n3: a("s_cmp_eq_u32 s73, 0", "s_cselect_b64 s[44:45], -1, 0")
        for k in range(2): a(f"ds_read_b128 {vr(WU+4*k,4)}, v7 offset:{1024*k}")
        for i in range(3):
            if i == 2 and n3: a("s_mov_b64 exec, s[44:45]")
            a(f"ds_read_b128 {vr(XF+8*i,4)}, v{ARX} offset:{6144*i}", f"ds_read_b128 {vr(XF+8*i+4,4)}, v3 offset:{6144*i}")
        if n3: a("s_mov_b64 exec, -1")
        for k in range(2, 4): a(f"ds_read_b128 {vr(WU+4*k,4)}, v7 offset:{1024*k}")
        for i in range(16): a(f"v_rcp_f32 v{EX+i}, v{DD+i}")
        a(f"v_pk_mul_f32 v[2:3], {vr(NN,2)}, {vr(DD,2)}")
        for i in range(2, 16, 2): a(f"v_pk_fma_f32 v[2:3], {vr(NN+i,2)}, {vr(DD+i,2)}, v[2:3]")
        a("s_waitcnt lgkmcnt(2)")
        nt = 2 if n3 else 3
        mfx = [mf16(ACC+4*i, WU, XF+8*i, "0") for i in range(3)] + [mf16(ACC+4*i, WU+4, XF+8*i+4, ACC+4*i) for i in range(3)]
        for i in range(0, 16, 2):
            a(f"v_pk_mul_f32 {vr(NN+i,2)}, {vr(NN+i,2)}, {vr(EX+i,2)}")
            if i % 4 == 0 and i < 4 * nt: a(mfx[i // 4])
        a("s_movk_i32 s64, 0x207", "v_add_f32 v2, v2, v3")
        for i in range(16):
            a(f"v_fmac_f32_dpp v{NN+i}, v{NN+i}, v{MFL} row_shl:4 row_mask:0xf bank_mask:0xf bound_ctrl:0")
            if i % 4 == 0 and i < 4 * nt: a(mfx[3 + i // 4])
        a(f"v_cmp_class_f32 vcc, v2, s64")
        for i in range(8): a(f"v_cvt_pk_bf16_f32 v{EX+i}, v{NN+2*i}, v{NN+2*i+1}")
        a(f"s_mov_b64 exec, s[58:59]", f"ds_write_b128 v{AGA}, {vr(EX,4)} offset:{L_AGB}", f"ds_write_b128 v{AGA}, {vr(EX+4,4)} offset:{L_AGB+16}")
        a("s_mov_b64 exec, vcc", "v_mov_b32 v2, 0", f"ds_write_b32 v2, v5 offset:{L_FLG}", "s_mov_b64 exec, -1", "v_mov_b32 v2, 0")
        if n3:
            a("s_cbranch_scc0 K2_N3", mfx[2], mfx[5])
            if not opt.get("wsc"): a(*[f"v_pk_mul_f32 {vr(ACC+i,2)}, {vr(ACC+i,2)}, s[66:67]" for i in (8, 10)])
            a.label("K2_N3")
        if not opt.get("wsc"):
            for i in range(0, 4 * nt, 2): a(f"v_pk_mul_f32 {vr(ACC+i,2)}, {vr(ACC+i,2)}, s[66:67]")
        a("s_waitcnt lgkmcnt(0)", "s_barrier")
        st()
        a.label("K2_EPI")
        B = Z0; O = EX; TT = NN; WU2 = WU + 8
        a(f"ds_read_b32 v3, v2 offset:{L_FLG}")
        for i in range(3):
            if i == 2 and n3: a("s_cmp_eq_u32 s73, 0", "s_cselect_b64 exec, -1, 0")
            for s in range(2): a(f"ds_read_b128 {vr(B+8*i+4*s,4)}, v{ARD} offset:{L_AGB + 48*ASTR*i + 64*s}")
        if n3: a("s_mov_b64 exec, -1")
        a("s_waitcnt lgkmcnt(6)", "v_readfirstlane_b32 s23, v3", "s_andn2_b32 s23, s23, s71", "s_cbranch_scc1 K2_BF")
        def epi_tile(i):
            o = O + 4 * i; t = TT + 4 * i
            for k in range(4): a(f"v_exp_f32 v{t+k}, v{o+k}")
            a(f"v_pk_fma_f32 {vr(t,2)}, {vr(t,2)}, s[66:67], s[66:67]", f"v_pk_fma_f32 {vr(t+2,2)}, {vr(t+2,2)}, s[66:67], s[66:67]")
            for k in range(4): a(f"v_rcp_f32 v{t+k}, v{t+k}")
            a(f"v_pk_mul_f32 {vr(t,2)}, {vr(t,2)}, {vr(o,2)}", f"v_pk_mul_f32 {vr(t+2,2)}, {vr(t+2,2)}, {vr(o+2,2)}")
            a(f"v_cvt_pk_bf16_f32 v{o}, v{t}, v{t+1}", f"v_cvt_pk_bf16_f32 v{o+1}, v{t+2}, v{t+3}")
            a(f"buffer_store_dwordx2 {vr(o,2)}, v{OOF}, s[{SO}:{SO+3}], {('s74','s75','s22')[i]} offen {opt.get('oflag', '')}")
        def emf(i): a(f"s_waitcnt lgkmcnt({4-2*i})", mf16(O+4*i, WU2, B+8*i, ACC+4*i), mf16(O+4*i, WU2+4, B+8*i+4, O+4*i))
        for i in range(nt): emf(i)
        if n3:
            a("s_cmp_lg_u32 s73, 0", "s_cbranch_scc1 K2_N4"); emf(2); a.label("K2_N4")
        epi_tile(0); epi_tile(1)
        a("s_cmp_lg_u32 s73, 0", "s_cbranch_scc1 K2_FIN")
        epi_tile(2)
    a.label("K2_FIN")
    if st.on: a("s_waitcnt vmcnt(0)")
    if opt.get("edly") is not None:
        a("s_cmp_lg_u32 s3, 0", "s_cbranch_scc1 K2_END", "s_memrealtime s[40:41]", "s_waitcnt lgkmcnt(0)")
        a.label("K2_DG")
        a("s_sleep 1", "s_memrealtime s[42:43]", "s_waitcnt lgkmcnt(0)", "s_sub_u32 s42, s42, s40", f"s_cmp_lt_u32 s42, {opt['edly']}", "s_cbranch_scc1 K2_DG")
    if opt.get("diag"):
        kind, M = opt["diag"]
        a("s_cmp_lg_u32 s3, 0", "s_cbranch_scc1 K2_END", "s_memrealtime s[40:41]", "s_lshl_b32 s42, s2, 10", f"s_add_u32 s42, s42, {WS_STAMP}", "s_add_u32 s44, s20, s42", "s_addc_u32 s45, s21, 0",
          "v_mov_b32 v2, 0", "global_load_dwordx4 v[8:11], v2, s[44:45]", "global_load_dwordx4 v[12:15], v2, s[44:45] offset:16", "s_waitcnt vmcnt(0) lgkmcnt(0)",
          "v_readfirstlane_b32 s46, v8", "v_readfirstlane_b32 s47, v13", "v_readfirstlane_b32 s48, v9", "v_readfirstlane_b32 s49, v10", "s_nop 4")
        a({"k1": "s_sub_u32 s46, s47, s46", "k12": "s_sub_u32 s46, s78, s46", "k2": "s_sub_u32 s46, s40, s78", "tot": "s_sub_u32 s46, s40, s46", "dst": "s_sub_u32 s46, s48, s46", "src": "s_sub_u32 s46, s49, s46",
           "kb3": "s_sub_u32 s46, s92, s80", "reg": "s_lshr_b32 s46, s77, 22\ns_sub_u32 s46, s46, 8", "xcc": "s_getreg_b32 s46, hwreg(HW_REG_XCC_ID)\ns_xor_b32 s46, s46, s2\ns_and_b32 s46, s46, 7", "ent": "s_sub_u32 s46, s80, s78"}.get(kind, "s_cmp_lg_u32 s2, 5\ns_cbranch_scc1 K2_END"))
        if kind.startswith("g"):
            a(f"s_add_u32 s44, s20, {WS_STAMP}", "s_addc_u32 s45, s21, 0", "v_lshlrev_b32 v2, 6, v0", "v_mov_b32 v16, 0", "v_mov_b32 v17, -1", "v_mov_b32 v18, -1", "v_mov_b32 v19, 0", "s_mov_b32 s47, 0")
            a.label("K2_DL")
            a("global_load_dword v8, v2, s[44:45]", f"global_load_dword v9, v2, s[44:45] offset:{opt.get('dk', 5)*4}", "v_add_u32 v2, 4096, v2", "s_waitcnt vmcnt(0)", "v_sub_u32 v8, s78, v8", "v_sub_u32 v9, s78, v9",
              "v_max_u32 v16, v16, v8", "v_min_u32 v17, v17, v8", "v_min_u32 v18, v18, v9", "v_max_u32 v19, v19, v9", "s_add_u32 s47, s47, 1", "s_cmp_lt_u32 s47, 63", "s_cbranch_scc1 K2_DL")
            a("s_mov_b32 s47, 0", "s_mov_b32 s50, 0", "s_mov_b32 s51, -1", "s_mov_b32 s52, -1", "s_mov_b32 s53, 0")
            a.label("K2_DM")
            a("v_readlane_b32 s54, v16, s47", "v_readlane_b32 s55, v17, s47", "v_readlane_b32 s56, v18, s47", "v_readlane_b32 s57, v19, s47", "s_max_u32 s50, s50, s54", "s_min_u32 s51, s51, s55", "s_min_u32 s52, s52, s56", "s_max_u32 s53, s53, s57",
              "s_add_u32 s47, s47, 1", "s_cmp_lt_u32 s47, 64", "s_cbranch_scc1 K2_DM")
            a({"gskew": "s_sub_u32 s46, s50, s51", "gk1": "s_sub_u32 s46, s50, s52", "ggap": "s_mov_b32 s46, s52", "g0": "s_mov_b32 s46, 0", "gfirst": "s_sub_u32 s46, s50, s53"}[kind])
            a("s_memrealtime s[40:41]", "s_waitcnt lgkmcnt(0)")
        if opt.get("thr"): a(f"s_cmp_gt_u32 s46, {opt['thr']}", f"s_cselect_b32 s46, {M}, 0")
        else: a("s_min_u32 s46, s46, 4000", f"s_mul_i32 s46, s46, {M}")
        a.label("K2_DG")
        a("s_sleep 2", "s_memrealtime s[42:43]", "s_waitcnt lgkmcnt(0)", "s_sub_u32 s42, s42, s40", "s_cmp_lt_u32 s42, s46", "s_cbranch_scc1 K2_DG")
    else: st.flush(20, 3, 2, 3)
    a.label("K2_END")
    a("s_endpgm")

    a.label("K2_G0R")
    a(f"v_mov_b32 v{IP}, v{EX+3}", *gather(0, IP), "s_branch K2_G0D")
    a.label("K2_DONE0")
    a("s_waitcnt vmcnt(0) lgkmcnt(0)", "s_branch K2_DONE")
    a.label("K2_MARK")
    T = Z1
    a("s_mov_b64 exec, vcc", f"v_mov_b32 v{T}, 0", f"v_mov_b32 v{T+1}, 1", f"ds_add_rtn_u32 v{T}, v{T}, v{T+1} offset:{L_OVC}", "s_waitcnt lgkmcnt(0)",
      f"v_and_b32 v{T}, 255, v{T}", f"v_lshlrev_b32 v{T}, 2, v{T}", f"ds_write_b32 v{T}, v0 offset:{L_OVL}", "s_mov_b64 exec, -1", "s_branch K2_MR")

    SD, SS, SE = 40, 44, 48
    a.label("K2_RESCAN")
    srd(a, SD, 10, 11, E * 4); srd(a, SS, 8, 9, E * 4); srd(a, SE, 6, 7, E * 2)
    a("s_mov_b32 s52, 0", f"s_mul_i32 s53, {BK}, {NB}", "s_min_u32 s23, s23, 256", "s_waitcnt lgkmcnt(0)")
    a.label("K2_RS1")
    T = Z1 + 8
    a("s_lshl_b32 s54, s52, 2", f"v_mov_b32 v{T}, s54", f"ds_read_b32 v{T}, v{T} offset:{L_OVL}", "s_waitcnt lgkmcnt(0)", f"v_readfirstlane_b32 s54, v{T}",
      "s_and_b32 s55, s54, 31", "s_lshl_b32 s55, s55, 3", "s_lshr_b32 s54, s54, 5", "s_add_u32 s54, s54, s55",
      f"s_mul_i32 s54, s54, {CH}", f"s_sub_u32 s55, {E}, s54", f"s_min_u32 s55, s55, {CH}",
      f"v_mov_b32 v{T}, v0")
    a.label("K2_RS2")
    a(f"v_add_u32 v{T+1}, s54, v{T}", f"v_lshlrev_b32 v{T+2}, 1, v{T+1}", f"v_lshlrev_b32 v{T+1}, 2, v{T+1}",
      f"buffer_load_dword v{T+3}, v{T+1}, s[{SD}:{SD+3}], 0 offen", f"buffer_load_dword v{T+4}, v{T+1}, s[{SS}:{SS+3}], 0 offen",
      f"buffer_load_ushort v{T+5}, v{T+2}, s[{SE}:{SE+3}], 0 offen", "s_waitcnt vmcnt(0)",
      f"v_subrev_u32 v{T+3}, s53, v{T+3}", f"v_cmp_gt_u32 vcc, {NB}, v{T+3}", f"v_cmp_gt_u32 s[56:57], s55, v{T}", "s_and_b64 exec, vcc, s[56:57]",
      f"v_lshlrev_b32 v{T+3}, 2, v{T+3}", f"ds_add_rtn_u32 v{T+3}, v{T+3}, v5 offset:{L_CTR}", f"v_lshl_or_b32 v{T+4}, v{T+5}, 16, v{T+4}",
      "s_waitcnt lgkmcnt(0)", f"v_min_u32 v{T+3}, s65, v{T+3}", f"ds_write_b32 v{T+3}, v{T+4}", "s_mov_b64 exec, -1",
      f"v_add_u32 v{T}, 768, v{T}", f"v_cmp_gt_u32 vcc, s55, v{T}", "s_cbranch_vccnz K2_RS2")
    a("s_add_u32 s52, s52, 1", "s_cmp_lt_u32 s52, s23", "s_cbranch_scc1 K2_RS1")
    a("s_mov_b32 s68, -1", "s_waitcnt lgkmcnt(0)", "s_barrier", "s_cmp_eq_u32 s73, 0", "s_cbranch_scc1 K2_AB1T", "s_branch K2_AB1")

    a.label("K2_BF")
    T = Z0
    a("s_waitcnt vmcnt(0) lgkmcnt(0)")
    srd(a, SD, 10, 11, E * 4); srd(a, SS, 8, 9, E * 4); srd(a, SE, 6, 7, E * 2); srd(a, 52, 12, 13, 129 * 128)
    a(f"s_mov_b32 s{SX}, s{SPT}", f"s_and_b32 s{SX+1}, s{SPT+1}, 0xffff", f"s_mov_b32 s{SX+2}, {N*128}", f"s_mov_b32 s{SX+3}, 0x20000")
    for i in range(4): a(f"v_mov_b32 v{T+i}, 0")
    a(f"v_lshlrev_b32 v{T+4}, 4, v0", f"v_add_u32 v{T+4}, {L_ELL}, v{T+4}")
    for i in range(3): a(f"ds_write_b128 v{T+4}, {vr(T,4)} offset:{12288*i}")
    LN, F4, F2, PO, W3 = T + 4, T + 5, T + 6, T + 7, T + 8
    a(f"v_and_b32 v{LN}, 63, v0", f"v_lshlrev_b32 v{F4}, 2, v{LN}", f"v_lshlrev_b32 v{F2}, 1, v{LN}",
      f"v_and_b32 v{PO}, 8, v{LN}", f"v_lshlrev_b32 v{PO}, 3, v{PO}", f"v_and_b32 v{T}, 48, v{LN}", f"v_add_u32 v{PO}, v{PO}, v{T}",
      f"v_and_b32 v{T}, 7, v{LN}", f"v_lshl_add_u32 v{PO}, v{T}, 1, v{PO}",
      "s_movk_i32 s56, 16384", f"buffer_load_ushort v{W3}, v{F2}, s[52:55], s56 offen", "s_waitcnt vmcnt(0) lgkmcnt(0)",
      f"v_lshlrev_b32 v{W3}, 16, v{W3}", f"v_mul_f32 v{W3}, s66, v{W3}",
      f"s_mul_i32 s57, {BK}, {NB}", "s_mov_b32 s56, s3", "s_barrier")
    a.label("K2_BF1")
    DV, SV, EV = T + 9, T + 10, T + 11
    a("s_lshl_b32 s58, s56, 8", "s_lshl_b32 s59, s56, 7",
      f"buffer_load_dword v{DV}, v{F4}, s[{SD}:{SD+3}], s58 offen", "s_waitcnt vmcnt(0)",
      f"v_subrev_u32 v{DV}, s57, v{DV}", f"v_cmp_gt_u32 vcc, {NB}, v{DV}", "s_cbranch_vccz K2_BF3",
      f"buffer_load_dword v{SV}, v{F4}, s[{SS}:{SS+3}], s58 offen", f"buffer_load_ushort v{EV}, v{F2}, s[{SE}:{SE+3}], s59 offen",
      "s_mov_b64 s[60:61], vcc", "s_waitcnt vmcnt(0)")
    a.label("K2_BF2")
    a("s_ff1_i32_b64 s58, s[60:61]", "s_bitset0_b64 s[60:61], s58",
      f"v_readlane_b32 s59, v{SV}, s58", f"v_readlane_b32 s62, v{DV}, s58", f"v_readlane_b32 s63, v{EV}, s58",
      "s_min_u32 s59, s59, %d" % (N - 1), "s_lshl_b32 s59, s59, 7", f"buffer_load_ushort v{T}, v{PO}, s[{SX}:{SX+3}], s59 offen",
      f"s_mul_i32 s58, s62, {QSTR}", f"v_add_u32 v{T+1}, s58, v{F4}", f"ds_read_b32 v{T+1}, v{T+1} offset:{L_QS}",
      "s_lshl_b32 s63, s63, 16", "s_lshl_b32 s62, s62, 8", f"s_add_u32 s62, s62, {L_ELL}", f"v_add_u32 v{T+2}, s62, v{F4}",
      "s_waitcnt vmcnt(0) lgkmcnt(0)",
      f"v_lshlrev_b32 v{T}, 16, v{T}", f"v_add_f32 v{T}, v{T}, v{T+1}", f"v_fma_f32 v{T}, s63, v{W3}, v{T}",
      f"v_exp_f32 v{T+1}, v{T}", f"v_add_f32 v{T+1}, 1.0, v{T+1}", f"v_rcp_f32 v{T+1}, v{T+1}", *([] if EP else [f"v_mul_f32 v{T}, {NLN2:#x}, v{T}"]), f"v_mul_f32 v{T}, v{T}, v{T+1}",
      f"ds_add_f32 v{T+2}, v{T}", "s_cmp_lg_u64 s[60:61], 0", "s_cbranch_scc1 K2_BF2")
    a.label("K2_BF3")
    a("s_add_u32 s56, s56, 12", f"s_cmp_lt_u32 s56, {E//64}", "s_cbranch_scc1 K2_BF1")
    a("s_waitcnt lgkmcnt(0)", "s_barrier", f"v_mov_b32 v{T+4}, v0")
    a.label("K2_BF4")
    a(f"v_lshlrev_b32 v{T+5}, 3, v{T+4}", f"v_add_u32 v{T+5}, {L_ELL}, v{T+5}", f"ds_read_b64 {vr(T,2)}, v{T+5}",
      f"v_lshrrev_b32 v{T+5}, 5, v{T+4}", f"v_mul_u32_u24 v{T+5}, {ASTR}, v{T+5}", f"v_and_b32 v{T+6}, 31, v{T+4}", f"v_lshl_add_u32 v{T+5}, v{T+6}, 2, v{T+5}",
      "s_waitcnt lgkmcnt(0)", f"v_cvt_pk_bf16_f32 v{T}, v{T}, v{T+1}", f"ds_write_b32 v{T+5}, v{T} offset:{L_AGB}",
      f"v_add_u32 v{T+4}, 768, v{T+4}", f"v_cmpx_gt_u32 vcc, {NB*32}, v{T+4}", "s_cbranch_execnz K2_BF4")
    a("s_mov_b64 exec, -1", "s_mov_b32 s71, -1", "s_waitcnt lgkmcnt(0)", "s_barrier", "s_branch K2_EPI")
    return a.lines

def kd(name, vg, sg=102):
    return f""".amdhsa_kernel {name}
  .amdhsa_next_free_vgpr {vg}
  .amdhsa_next_free_sgpr {sg}
  .amdhsa_accum_offset {vg}
  .amdhsa_group_segment_fixed_size 0
  .amdhsa_kernarg_size 72
  .amdhsa_user_sgpr_count 2
  .amdhsa_user_sgpr_kernarg_segment_ptr 1
  .amdhsa_system_sgpr_workgroup_id_x 1
.end_amdhsa_kernel"""

def build(opt=None):
    opt = opt or {}
    out = ["; mpnn edge MLP: K1 bins edges by destination bucket and builds the P' table, K2 aggregates and updates",
           f"; @launch kernel=mpnn_bin_kernel grid=(256,1,1) block=(1024,1,1) lds={K1_LDS}",
           f"; @launch kernel=mpnn_msg_kernel grid=(256,1,1) block=(768,1,1) lds={K2_LDS}",
           '.amdgcn_target "amdgcn-amd-amdhsa--gfx950"', ".text"]
    for name, fn in (("mpnn_bin_kernel", gen_k1), ("mpnn_msg_kernel", gen_k2)):
        lines, nn = fix_hazards(fn(opt), verbose=opt.get("verbose"))
        out += [f".globl {name}", ".p2align 8", f".type {name},@function"] + lines
    out += ['.section .rodata,"a"', ".p2align 6", kd("mpnn_bin_kernel", 128), ".p2align 6", kd("mpnn_msg_kernel", 168)]
    return "\n".join(out) + "\n"

if __name__ == "__main__":
    import argparse
    ap = argparse.ArgumentParser(); ap.add_argument("-o", default="standalone__mpnn_edge_mlp__graph.s")
    ap.add_argument("--stamp", type=int, default=0); ap.add_argument("-v", action="store_true"); ap.add_argument("--opt", default="{}")
    g = ap.parse_args()
    open(g.o, "w").write(build({"stamp": g.stamp, "verbose": g.v, **eval(g.opt)}))
```

```python
import sys, struct, math
sys.path.insert(0, "gen")
from asmlib import *

N = 25000; E = 800000; NB = 98; CH = 3128; CAP = 72
WS_RA = 0x400000; WS_DA = 0x800000; WS_RB = 0xA00000; WS_WF = 0x380000; WS_END = WS_RB + 0x800000
MARK = 0xFEFEFEFE
WS_PR = 0x2000000; WS_HDR = WS_WF + 0x8000
WS_STAMP = 0x1400000
f2u = lambda f: struct.unpack("<I", struct.pack("<f", f))[0]
NLOG2E = f2u(-1.4426950408889634); NLN2 = f2u(-0.6931471805599453)
NTILE = (N + 15) // 16

def mf16(d, a, b, c): return f"v_mfma_f32_16x16x32_bf16 {vr(d,4)}, {vr(a,4)}, {vr(b,4)}, {c if isinstance(c,str) else vr(c,4)}"
def mf32(d, a, b, c): return f"v_mfma_f32_32x32x16_bf16 {vr(d,16)}, {vr(a,4)}, {vr(b,4)}, {vr(c,16)}"

class Stamps:
    def __init__(self, a, on, base, kidx, nw): self.a = a; self.on = on; self.base = base; self.k = 0; self.kidx = kidx; self.nw = nw
    def __call__(self):
        if not self.on: return
        r = self.base + 2 * self.k; self.k += 1
        if self.on == 3 and (self.k - 1) not in ((0, 5), (0, 1, 7, 8))[self.kidx]: return
        self.a(f"s_waitcnt lgkmcnt(0)", f"s_memrealtime s[{r}:{r+1}]", "s_waitcnt lgkmcnt(0)")
    def early(self):
        if not self.on: return
        r = self.base + 2 * self.k; self.k += 1
        self.a(f"s_memrealtime s[{r}:{r+1}]")
    def flush(self, ws, wave, t0, t1):
        if not self.on: return
        a = self.a
        self()
        a("s_mov_b64 exec, -1")
        a(f"v_mov_b32 v{t0}, 0")
        for k in range(self.k): a(f"v_writelane_b32 v{t0}, s{self.base+2*k}, {k}")
        if self.kidx == 1: a(f"v_writelane_b32 v{t0}, s60, 9", f"v_writelane_b32 v{t0}, s62, 10")
        if self.kidx == 1: a(f"v_writelane_b32 v{t0}, s98, 13", f"v_writelane_b32 v{t0}, s96, 12", f"v_writelane_b32 v{t0}, s97, 11", f"v_writelane_b32 v{t0}, s69, 15", f"s_getreg_b32 s69, hwreg(HW_REG_HW_ID)", f"v_writelane_b32 v{t0}, s69, 14")
        if self.on == 2 and self.kidx == 1:
            b = self.base
            a(f"s_add_u32 s{b}, s2, s{wave}", f"s_cmp_lg_u32 s{b}, 0", f"s_cbranch_scc1 STK{self.kidx}",
              f"s_load_dwordx2 s[{b}:{b+1}], s[0:1], 56", f"v_and_b32 v{t1}, 63, v0", f"v_lshlrev_b32 v{t1}, 2, v{t1}",
              f"v_add_u32 v{t1+1}, {WS_STAMP}, v{t1}", f"global_load_dword v{t1+1}, v{t1+1}, s[{ws}:{ws+1}]",
              "s_waitcnt vmcnt(0) lgkmcnt(0)", f"s_mov_b64 exec, 0x3ff", f"global_store_dword v{t1}, v{t0}, s[{b}:{b+1}] offset:24",
              f"s_mov_b64 exec, 0x3f", f"global_store_dword v{t1}, v{t1+1}, s[{b}:{b+1}]")
            a.label(f"STK{self.kidx}")
            return
        a(f"s_mul_i32 s{self.base}, s2, {self.nw}", f"s_add_u32 s{self.base}, s{self.base}, s{wave}", f"s_lshl_b32 s{self.base}, s{self.base}, 6",
          f"s_add_u32 s{self.base}, s{self.base}, {WS_STAMP + self.kidx * 0x100000}",
          f"v_and_b32 v{t1}, 63, v0", f"v_lshlrev_b32 v{t1}, 2, v{t1}", f"v_add_u32 v{t1}, s{self.base}, v{t1}",
          "s_mov_b64 exec, 0xffff", f"global_store_dword v{t1}, v{t0}, s[{ws}:{ws+1}]")

def srd(a, r, lo, hi, num, stride=0):
    a(f"s_mov_b32 s{r}, s{lo}")
    if stride: a(f"s_or_b32 s{r+1}, s{hi}, {stride << 16:#x}")
    else: a(f"s_mov_b32 s{r+1}, s{hi}")
    a(f"s_mov_b32 s{r+2}, {num}", f"s_mov_b32 s{r+3}, 0x20000")

K1_DA = 32768; K1_CNT = 40960; K1_XS = K1_CNT + 1024; K1_LDS = K1_XS + 3 * 6144
def gen_k1(opt):
    a = Asm(); st = Stamps(a, opt.get("stamp"), 70, 0, 16)
    a.label("mpnn_bin_kernel")
    if opt.get("cpf") == 2:
        a("s_getpc_b64 s[48:49]", "v_lshlrev_b32 v54, 7, v0", "v_min_u32 v54, K2_END-mpnn_bin_kernel-4, v54", "global_load_dword v55, v54, s[48:49]")
    a("s_cmp_ge_u32 s2, 256", "s_cbranch_scc1 K1_END")
    if opt.get("dly"):
        a("s_memrealtime s[4:5]", "s_waitcnt lgkmcnt(0)")
        a.label("K1_DL")
        a("s_sleep 1", "s_memrealtime s[6:7]", "s_waitcnt lgkmcnt(0)", "s_sub_u32 s6, s6, s4", f"s_cmp_lt_u32 s6, {opt['dly']}", "s_cbranch_scc1 K1_DL")
    a("s_load_dwordx8 s[4:11], s[0:1], 0", "s_load_dwordx4 s[12:15], s[0:1], 32", "s_load_dwordx2 s[16:17], s[0:1], 64")
    if opt.get("pw0"): a(f"v_add_u32 v0, {64*opt['pw0']}, v0", "v_and_b32 v0, 1023, v0")
    a("v_lshrrev_b32 v1, 6, v0", "v_lshlrev_b32 v7, 4, v0", "v_readfirstlane_b32 s3, v1", "v_lshlrev_b32 v4, 3, v0")
    a("v_mov_b32 v46, -1", "v_mov_b32 v47, -1", f"ds_write_b64 v4, v[46:47] offset:{K1_DA}",
      "v_and_b32 v45, 255, v0", "v_lshlrev_b32 v44, 2, v45", "v_lshlrev_b32 v45, 5, v45", f"ds_write_b32 v44, v45 offset:{K1_CNT}")
    a("s_and_b32 s40, s2, 7", "s_lshr_b32 s41, s2, 3")
    a(f"s_mov_b32 s34, {WS_END}", "s_mov_b32 s35, 0x20000")
    CO = 44
    def co_addr():
        a("s_lshl_b32 s42, s40, 5", "s_add_u32 s42, s42, s41",
          "s_lshl_b32 s43, s42, 5", f"s_add_u32 s43, s43, {WS_DA}", "s_lshl_b32 s44, s42, 7", "s_lshl_b32 s42, s42, 6", f"s_add_u32 s44, s44, {WS_RB}", f"s_add_u32 s42, s42, {WS_RA}")
        a(f"v_lshrrev_b32 v{CO+6}, 2, v0", f"v_and_b32 v{CO+5}, 3, v0", f"v_lshlrev_b32 v{CO+1}, 13, v{CO+6}", f"v_lshl_add_u32 v{CO+1}, v{CO+5}, 3, v{CO+1}", f"v_lshlrev_b32 v{CO}, 1, v{CO+1}", f"v_lshl_add_u32 v{CO+8}, v{CO+6}, 14, v{CO}",
          f"v_lshlrev_b32 v{CO+2}, 7, v{CO+6}", f"v_lshl_add_u32 v{CO+2}, v{CO+5}, 4, v{CO+2}", f"v_and_b32 v{CO+3}, 64, v0", f"v_add_u32 v{CO+2}, v{CO+2}, v{CO+3}", f"v_xor_b32 v{CO+3}, 64, v{CO+2}",
          f"v_bfe_u32 v{CO+4}, v0, 4, 2", f"v_xor_b32 v{CO+5}, v{CO+5}, v{CO+4}", f"v_lshlrev_b32 v{CO+6}, 5, v{CO+6}", f"v_lshl_add_u32 v{CO+5}, v{CO+5}, 2, v{CO+6}", f"v_add_u32 v{CO+5}, 16, v{CO+5}",
          *([f"v_add_u32 v{CO+5}, 16, v{CO+6}"] if opt.get("bfull", 1) else []), f"v_add_u32 v{CO+6}, 32, v{CO+6}", f"v_and_b32 v{CO+4}, 0x3fc, v0", f"v_lshlrev_b32 v{CO+7}, 3, v0")
    a("s_cmp_ge_u32 s3, 13", "s_cbranch_scc1 K1_P")
    DST, SRC, EE, B, DL, S, LIM, REC = 8, 12, 16, 20, 24, 28, 32, 36
    a(f"s_mul_i32 s18, s2, {CH}", f"s_sub_u32 s19, {E}, s18", f"s_min_u32 s19, s19, {CH}", "s_lshl_b32 s36, s18, 2", "s_lshl_b32 s37, s18, 1")
    for r, n in ((20, E * 4), (24, E * 4), (28, E * 2)): a(f"s_mov_b32 s{r+2}, {n}", f"s_mov_b32 s{r+3}, 0x20000")
    a("v_lshlrev_b32 v1, 2, v0", "v_cmp_gt_u32 vcc, s19, v1")
    if opt.get("cpf") == 1:
        a("s_cmp_lg_u32 s3, 12", "s_cbranch_scc1 K1_NPF", "s_getpc_b64 s[48:49]")
        a.label("K1_PC")
        a("s_add_u32 s48, s48, mpnn_msg_kernel-K1_PC", "s_addc_u32 s49, s49, 0", "v_and_b32 v54, 63, v0", "v_lshlrev_b32 v54, 7, v54",
          "v_min_u32 v54, K2_END-mpnn_msg_kernel, v54", "global_load_dword v55, v54, s[48:49]")
        a.label("K1_NPF")
    a("s_waitcnt lgkmcnt(0)")
    st()
    a("s_mov_b32 s20, s10", "s_mov_b32 s21, s11", f"buffer_load_dwordx4 {vr(DST,4)}, v7, s[20:23], s36 offen {opt.get('lflag', '')}")
    a("s_mov_b32 s24, s8", "s_mov_b32 s25, s9", "s_mov_b32 s28, s6", "s_mov_b32 s29, s7", "s_mov_b32 s32, s16", "s_mov_b32 s33, s17")
    a("s_barrier")
    a(f"buffer_load_dwordx4 {vr(SRC,4)}, v7, s[24:27], s36 offen {opt.get('lflag', '')}", f"buffer_load_dwordx2 {vr(EE,2)}, v4, s[28:31], s37 offen {opt.get('lflag', '')}")
    co_addr()
    if opt.get("tlb"):
        a("s_cmp_lg_u32 s3, 12", "s_cbranch_scc1 K1_NT", "v_and_b32 v54, 63, v0", f"v_mul_u32_u24 v54, {opt['tlb']}, v54", "buffer_load_dword v55, v54, s[32:35], 0 offen", "s_waitcnt vmcnt(1)")
        a.label("K1_NT")
    a("v_mov_b32 v6, 1", "s_movk_i32 s38, -98", "s_mov_b32 s39, 0xffff0000")
    a("s_mov_b64 exec, vcc", "s_cbranch_execz K1_B1")
    a("s_waitcnt vmcnt(2)")
    st()
    for i in range(4):
        a(f"v_mul_u32_u24 v{B+i}, 21400, v{DST+i}", f"v_lshrrev_b32 v{B+i}, 21, v{B+i}", f"v_lshlrev_b32 v{S+i}, 2, v{B+i}",
          f"ds_add_rtn_u32 v{S+i}, v{S+i}, v6 offset:{K1_CNT}")
    for i in range(4): a(f"v_mad_i32_i24 v{DL+i}, v{B+i}, s38, v{DST+i}", f"v_lshl_or_b32 v{LIM+i}, v{B+i}, 5, 31", f"v_and_b32 v{B+i}, 31, v{B+i}")
    for i in range(4):
        a(f"s_waitcnt lgkmcnt(3)", f"v_min_u32 v{S+i}, v{S+i}, v{LIM+i}", f"v_xor_b32 v{S+i}, v{S+i}, v{B+i}", f"ds_write_b8 v{S+i}, v{DL+i} offset:{K1_DA}")
    for i in range(4): a(f"v_lshlrev_b32 v{LIM+i}, 2, v{S+i}")
    a("s_waitcnt vmcnt(0)")
    st()
    if opt.get("smask"):
        for i in range(4): a(f"v_and_b32 v{SRC+i}, {opt['smask']}, v{SRC+i}")
    for i in range(4):
        if i % 2 == 0: a(f"v_lshl_or_b32 v{REC+i}, v{EE+i//2}, 16, v{SRC+i}")
        else: a(f"v_and_or_b32 v{REC+i}, v{EE+i//2}, s39, v{SRC+i}")
        a(f"ds_write_b32 v{LIM+i}, v{REC+i}")
    a.label("K1_B1")
    a("s_mov_b64 exec, -1")
    st.k = 3; st()
    a("s_waitcnt lgkmcnt(0)", "s_barrier")
    st()
    a(f"ds_read_b128 v[8:11], v{CO+2}", f"ds_read_b32 v18, v{CO+4} offset:{K1_CNT}", f"ds_read_b64 v[16:17], v{CO+7} offset:{K1_DA}", f"ds_read_b128 v[12:15], v{CO+3}")
    a("s_waitcnt lgkmcnt(3)", f"buffer_store_dwordx4 v[8:11], v{CO}, s[32:35], s42 offen {opt.get('dflag', '')}")
    a("s_waitcnt lgkmcnt(1)", f"v_cmp_gt_u32 vcc, v18, v{CO+6}", f"v_cmp_gt_u32 s[46:47], v18, v{CO+5}", "s_cbranch_vccnz K1_OV")
    a.label("K1_OVR")
    x = opt.get("x1", "")
    if "d" not in x: a(f"buffer_store_dwordx2 v[16:17], v{CO+1}, s[32:35], s43 offen {opt.get('dflag', '')}")
    if "b" not in x: a("s_mov_b64 exec, s[46:47]", "s_waitcnt lgkmcnt(0)", f"buffer_store_dwordx4 v[12:15], v{CO+8}, s[32:35], s44 offen", *([] if opt.get("bhalf", 1) else [f"buffer_store_dwordx4 v[8:11], v{CO+8}, s[32:35], s44 offen offset:64"]))
    if st.on or opt.get("kw"): a("s_waitcnt vmcnt(0)")
    st.flush(16, 3, 20, 21)
    if opt.get("kp"):
        a("s_mov_b64 exec, -1", f"s_mul_i32 s45, s41, {782*128}", "v_lshlrev_b32 v60, 7, v0", f"v_cmp_gt_u32 vcc, {opt['kp']}, v0", "s_and_b64 exec, exec, vcc", "s_cbranch_execz K1_END", "buffer_load_dword v61, v60, s[32:35], s45 offen")
    a.label("K1_END")
    a("s_endpgm")
    a.label("K1_OV")
    a(f"v_mov_b32 v18, {MARK:#x}", "v_cndmask_b32 v16, v16, v18, vcc", "v_cndmask_b32 v17, v17, v18, vcc", "s_branch K1_OVR")
    W, A, X, D, O, FR = 8, 40, 72, 96, 112, 120
    a.label("K1_P")
    a("v_and_b32 v1, 15, v0", "v_bfe_u32 v2, v0, 4, 2",
      "v_lshlrev_b32 v3, 10, v2", "v_lshl_add_u32 v5, v1, 1, v3", "v_lshl_add_u32 v3, v1, 3, v3",
      "v_lshlrev_b32 v4, 7, v1", "v_lshl_add_u32 v4, v2, 4, v4")
    PC = opt.get("pc", 0)
    if PC & 1:
        a("v_bfe_u32 v6, v0, 1, 2", "v_lshlrev_b32 v3, 10, v2", "v_lshl_add_u32 v3, v6, 5, v3", "v_and_b32 v6, 8, v0", "v_lshl_add_u32 v3, v6, 1, v3", "v_and_b32 v6, 1, v0", "v_lshl_add_u32 v3, v6, 3, v3",
          "v_lshlrev_b32 v7, 9, v2", "v_lshl_add_u32 v7, v1, 3, v7")
    if PC & 2:
        a("v_and_b32 v55, 63, v0", "v_xor_b32 v55, v55, v2", "v_lshlrev_b32 v55, 4, v55", "v_xor_b32 v56, 64, v55",
          "s_mul_i32 s52, s3, 6144", f"s_add_u32 s52, s52, {K1_XS - 13*6144}",
          "v_lshrrev_b32 v4, 1, v1", "v_xor_b32 v4, v4, v2", "v_lshlrev_b32 v4, 4, v4", "v_lshl_add_u32 v4, v1, 7, v4", "v_add_u32 v4, s52, v4")
    a("s_mul_i32 s18, s41, 3", "s_add_u32 s18, s18, s3", "s_sub_u32 s18, s18, 13",
      "s_mul_i32 s36, s40, 196", "s_add_u32 s36, s36, s18",
      "s_lshl_b32 s36, s36, 11", f"s_add_u32 s37, s36, {96*2048}", f"s_add_u32 s38, s36, {192*2048}", "s_movk_i32 s39, 4096")
    for r, n in ((20, 129 * 128), (24, N * 128), (28, N * 128), (48, 128 * 128)): a(f"s_mov_b32 s{r+2}, {n}", f"s_mov_b32 s{r+3}, 0x20000")
    a("s_sub_u32 s19, s2, 16", "s_cmp_eq_u32 s3, 15", "s_cselect_b32 s19, s19, 100")
    a("s_waitcnt lgkmcnt(0)")
    st.k = 0; st()
    a("s_mov_b32 s24, s4", "s_mov_b32 s25, s5", "s_mov_b32 s20, s12", "s_mov_b32 s21, s13")
    a("s_cmp_le_u32 s19, 24", "s_cbranch_scc1 K1_FL")
    a.label("K1_FLR")
    def xload(i):
        if PC & 2: a(f"s_add_u32 m0, s52, {2048*i}", f"buffer_load_dwordx4 v55, s[24:27], s{36+i} offen lds", f"buffer_load_dwordx4 v56, s[24:27], s{36+i} offen offset:1024 lds")
        else:
            for s in range(2): a(f"buffer_load_dwordx4 {vr(X+8*i+4*s,4)}, v4, s[24:27], s{36+i} offen offset:{64*s} {opt.get('xflag', '')}")
    def xread(i):
        if PC & 2: a(f"ds_read_b128 {vr(X+8*i,4)}, v4 offset:{2048*i}", f"ds_read_b128 {vr(X+8*i+4,4)}, v3 offset:{2048*i}")
    for i in range(2): xload(i)
    for s in range(2):
        for kk in range(8): a(f"buffer_load_dwordx2 {vr(W+16*s+2*kk,2)}, v3, s[20:23], {'s39' if s else '0'} offen offset:{128*kk}")
    a("s_cmp_lt_u32 s18, 4", "s_cselect_b64 exec, -1, 0")
    xload(2)
    a("s_mov_b64 exec, -1")
    assert PC != 2
    if PC & 2: a("v_xor_b32 v3, 64, v4")
    a("s_barrier")
    if opt.get("rot"):
        a(*(["s_memrealtime s[52:53]", "s_waitcnt lgkmcnt(0)", "s_lshr_b32 s52, s52, 12"] if opt.get("trot") else ["s_lshr_b32 s52, s0, 4"]), "s_mul_i32 s52, s52, 0x9e3779b1", f"s_lshr_b32 s52, s52, {32 - opt['rot']}", "s_lshl_b32 s52, s52, 22", f"s_add_u32 s53, s52, {WS_PR}",
          "s_add_u32 s28, s16, s53", "s_addc_u32 s29, s17, 0", "s_mov_b32 s32, s16", "s_mov_b32 s33, s17")
    else: a("s_mov_b32 s28, s16", "s_mov_b32 s29, s17", "s_mov_b32 s32, s16", "s_mov_b32 s33, s17")
    a("s_mov_b32 s44, 0x05040100", "s_mov_b32 s45, 0x07060302", f"s_mov_b32 s46, {NLOG2E:#x}", f"s_mov_b32 s47, {NLOG2E:#x}")
    a("s_waitcnt vmcnt(2)")
    st()
    xread(0); xread(1)
    for tau in range(4):
        for s in range(2):
            for rr in range(4):
                a(f"v_perm_b32 v{A+8*tau+4*s+rr}, v{W+16*s+2*(2*rr+1)+tau//2}, v{W+16*s+2*(2*rr)+tau//2}, s{44+tau%2}")
    for i in range(3):
        if i == 2:
            a(f"s_cmp_ge_u32 s18, 4", "s_cbranch_scc1 K1_PD", "s_waitcnt vmcnt(%d)" % (8 if PC & 1 else 4))
            xread(2)
        if PC & 2 and i != 1: a("s_waitcnt lgkmcnt(0)")
        sw = (lambda w, x: (x, w)) if PC & 1 else (lambda w, x: (w, x))
        for tau in range(4): a(mf16(D+4*tau, *sw(A+8*tau, X+8*i), "0"))
        for tau in range(4): a(mf16(D+4*tau, *sw(A+8*tau+4, X+8*i+4), D+4*tau))
        for k in range(0, 16, 2): a(f"v_pk_mul_f32 {vr(D+k,2)}, {vr(D+k,2)}, s[46:47]")
        for r in range(4):
            for h in range(2): a(f"v_cvt_pk_bf16_f32 v{O+2*r+h}, v{D+4*(2*h)+r}, v{D+4*(2*h+1)+r}")
        if "p" in opt.get("x1", ""): pass
        elif PC & 1:
            for r in range(4): a(f"buffer_store_dwordx2 {vr(O+2*r,2)}, v7, s[28:31], s{36+i} offen offset:{128*r} {opt.get('pflag', '')}")
        elif opt.get("pfull"): a("v_and_b32 v6, 63, v0", "v_lshlrev_b32 v6, 4, v6", f"buffer_store_dwordx4 {vr(O,4)}, v6, s[28:31], s{36+i} offen {opt.get('pflag', '')}", f"buffer_store_dwordx4 {vr(O+4,4)}, v6, s[28:31], s{36+i} offen offset:1024 {opt.get('pflag', '')}")
        else: a(f"buffer_store_dwordx4 {vr(O,4)}, v4, s[28:31], s{36+i} offen {opt.get('pflag', '')}", f"buffer_store_dwordx4 {vr(O+4,4)}, v4, s[28:31], s{36+i} offen offset:64 {opt.get('pflag', '')}")
    a.label("K1_PD")
    st()
    a("s_cmp_le_u32 s19, 24", "s_cbranch_scc1 K1_FS")
    a.label("K1_PE")
    if opt.get("cpf", 3) == 3:
        a("s_lshr_b32 s19, s2, 5", "s_add_u32 s19, s19, s3", "s_cmp_lg_u32 s19, 18", "s_cbranch_scc1 K1_NPF", "s_getpc_b64 s[48:49]")
        a.label("K1_PC")
        a("s_add_u32 s48, s48, mpnn_msg_kernel-K1_PC", "s_addc_u32 s49, s49, 0", "v_and_b32 v54, 63, v0", "v_lshlrev_b32 v54, 7, v54",
          "v_min_u32 v54, K2_END-mpnn_msg_kernel, v54", "global_load_dword v55, v54, s[48:49]")
        a.label("K1_NPF")
    if opt.get("wb"):
        msk, slp = opt["wb"]
        a(f"s_and_b32 s19, s41, {msk}", "s_add_u32 s19, s19, s3", f"s_cmp_lg_u32 s19, {msk + 15}", "s_cbranch_scc1 K1_NWB", "s_waitcnt vmcnt(0)", *([f"s_sleep {slp}"] if slp else []), "buffer_wbl2 sc1")
        a.label("K1_NWB")
    co_addr()
    a("s_branch K1_B1")
    a.label("K1_FL")
    a("s_cmp_eq_u32 s19, 8", "s_cbranch_scc1 K1_FA", "s_cmp_gt_u32 s19, 8", "s_cbranch_scc1 K1_FU")
    a("s_lshr_b32 s42, s19, 1", "s_and_b32 s43, s19, 1", "s_lshl_b32 s42, s42, 5", "s_lshl_b32 s43, s43, 12", "s_add_u32 s43, s43, s42", "s_add_u32 s43, s43, 8192")
    for kk in range(8): a(f"buffer_load_ushort v{FR+kk}, v5, s[20:23], s43 offen offset:{128*kk}")
    a("s_branch K1_FLR")
    a.label("K1_FU")
    a("s_mov_b32 s48, s14", "s_mov_b32 s49, s15")
    if opt.get("ep", 0) & 8:
        a("s_sub_u32 s43, s19, 9", "s_lshr_b32 s42, s43, 3", "s_lshl_b32 s42, s42, 6", "s_bfe_u32 s44, s43, 0x10002", "s_lshl_b32 s44, s44, 1", "s_add_u32 s42, s42, s44",
          "s_and_b32 s43, s43, 3", "s_lshl_b32 s43, s43, 12", "s_add_u32 s43, s43, s42", "v_lshl_add_u32 v5, v1, 1, v5")
    else: a("s_sub_u32 s43, s19, 9", "s_lshr_b32 s42, s43, 2", "s_and_b32 s43, s43, 3", "s_lshl_b32 s42, s42, 5", "s_lshl_b32 s43, s43, 12", "s_add_u32 s43, s43, s42")
    for kk in range(8): a(f"buffer_load_ushort v{FR+kk}, v5, s[48:51], s43 offen offset:{128*kk}")
    a("s_branch K1_FLR")
    a.label("K1_FA")
    a("v_bfe_u32 v5, v0, 3, 2", "v_and_b32 v6, 3, v0", "v_lshl_add_u32 v5, v5, 2, v6", "v_lshlrev_b32 v5, 1, v5", "s_movk_i32 s43, 16384")
    for c in range(4): a(f"buffer_load_ushort v{FR+c}, v5, s[20:23], s43 offen offset:{32*c}")
    a("s_branch K1_FLR")
    a.label("K1_FS")
    a("v_and_b32 v5, 63, v0", "v_lshlrev_b32 v5, 4, v5", "s_lshl_b32 s36, s19, 10", f"s_add_u32 s36, s36, {WS_WF}")
    a("s_cmp_eq_u32 s19, 8", "s_cbranch_scc1 K1_AE")
    if opt.get("wsc"):
        msk = sum(1 << t for t in range(9, 25) if (t - 9) & 2 == 0) | (0xff if opt["wsc"] & 2 else 0)
        a(f"s_mov_b32 s37, {msk:#x}", "s_bitcmp0_b32 s37, s19", "s_cbranch_scc1 K1_FR")
        for c in range(8): a(f"v_lshlrev_b32 v{FR+c}, 16, v{FR+c}", f"v_mul_f32 v{FR+c}, s46, v{FR+c}")
        for rr in range(4): a(f"v_cvt_pk_bf16_f32 v{W+rr}, v{FR+2*rr}, v{FR+2*rr+1}")
        a(f"buffer_store_dwordx4 {vr(W,4)}, v5, s[32:35], s36 offen", "s_branch K1_PE")
        a.label("K1_FR")
    for rr in range(4): a(f"v_lshl_or_b32 v{W+rr}, v{FR+2*rr+1}, 16, v{FR+2*rr}")
    a(f"buffer_store_dwordx4 {vr(W,4)}, v5, s[32:35], s36 offen", "s_branch K1_PE")
    a.label("K1_AE")
    if opt.get("rot"): a("v_mov_b32 v2, s52", f"s_mov_b32 s53, {WS_HDR}", "buffer_store_dword v2, v5, s[32:35], s53 offen")
    a("v_bfe_u32 v2, v0, 2, 1", "v_bfe_u32 v3, v0, 5, 1", "v_cmp_eq_u32 vcc, v2, v3")
    for c in range(4):
        a(f"v_lshlrev_b32 v{FR+c}, 16, v{FR+c}", f"v_mul_f32 v{FR+c}, s46, v{FR+c}", f"v_cvt_pk_bf16_f32 v{FR+c}, 0, v{FR+c}", f"v_cndmask_b32 v{W+c}, 0, v{FR+c}, vcc")
    a(f"buffer_store_dwordx4 {vr(W,4)}, v5, s[32:35], s36 offen", "s_branch K1_PE")
    return a.lines

import os
L_AGB = 0; ASTR = int(os.environ.get('ASTR', 144))
L_QS = L_AGB + 112 * ASTR; QSTR = 272
L_CTR = L_QS + 112 * QSTR; L_OVC = L_CTR + 448; L_FLG = L_CTR + 452; L_CT2 = L_CTR + 512; L_SLOT = L_CTR + 1024; L_OVL = L_SLOT + 512
L_XS = L_OVL + 1024; L_WF = L_XS + 14336
L_ELL = L_WF + 25600; ESTR = 516; EROWS = 83
K2_LDS = L_ELL + 3 * 768 * 16 + 6144
assert K2_LDS >= L_ELL + EROWS * ESTR and L_ELL % 16 == 0 and L_XS % 256 == 0 and L_CTR % 256 == 0 and L_ELL + 512 < (1 << 17), (L_XS, L_ELL)
ZCOL = 112 * 4; DUMP = L_ELL + CAP * ESTR + 400; HCOL = 116 * 4

def gen_k2(opt):
    a = Asm(); st = Stamps(a, opt.get("stamp"), 78, 1, 12)
    perm = opt.get("perm", [0, 1, 2, 3, 10, 6, 5, 4, 11, 9, 8, 7])
    RG = opt.get("ring", 2); small = opt.get("small", 1); dp = opt.get("dprio", [8, 4, 2])
    Q, P, Z0, Z1, NN, DD, EX, BE, AL, AH, AE, IX, VI, VE, LEN, AGA, MFL, OOF, ARD, ARX = \
        8, 24, 56, 72, 88, 104, 120, 136, 140, 144, 148, 152, 154, 155, 159, 160, 161, 162, 163, 164
    WU = BE
    R = Z0
    AD = NN
    TG = DD
    W2 = Q; X = P
    SP, PP5, EH, QC, AC = DD + 8, DD + 9, DD + 10, DD + 11, DD + 12
    SWS, SPT, SX, SO = 24, 28, 32, 36
    MK = 40
    BK = "s76"
    ws = f"s[{SWS}:{SWS+3}]"
    a.label("mpnn_msg_kernel")
    a("s_cmp_ge_u32 s2, 256", "s_cbranch_scc1 K2_END")
    st.early()
    a("s_load_dwordx2 s[20:21], s[0:1], 64", "s_load_dwordx16 s[4:19], s[0:1], 0")
    a("v_lshrrev_b32 v1, 6, v0", "v_lshlrev_b32 v2, 4, v0", "v_readfirstlane_b32 s3, v1")
    for i in range(4): a(f"v_mov_b32 v{Q+i}, 0")
    a(f"v_add_u32 v4, {L_ELL}, v2")
    a("v_and_b32 v5, 255, v0", "v_lshlrev_b32 v5, 2, v5", f"v_add_u32 v6, {L_ELL}, v5", f"v_cmp_gt_u32 vcc, {NB*4}, v5")
    a(f"s_and_b32 {BK}, s2, 7", f"s_lshl_b32 {BK}, {BK}, 5", "s_lshr_b32 s64, s2, 3", f"s_add_u32 {BK}, {BK}, s64")
    a("v_cndmask_b32 v6, 0, v6, vcc", f"ds_write_b32 v5, v6 offset:{L_CTR}")
    for i in range(3): a(f"ds_write_b128 v4, {vr(Q,4)} offset:{12288*i}")
    a(f"v_lshlrev_b32 v5, 3, v0", f"v_add_u32 v5, {L_ELL + 3*12288}, v5", f"ds_write_b64 v5, {vr(Q,2)}")
    a(f"s_lshl_b32 s64, {BK}, 14", f"s_lshl_b32 s62, {BK}, 15", f"s_add_u32 s62, s62, {WS_RB}", f"s_add_u32 s64, s64, {WS_RA - 4096}", "s_add_u32 s65, s64, 8192",
      f"s_lshl_b32 s66, {BK}, 13", f"s_and_b32 s67, {BK}, 16", "s_add_u32 s66, s66, s67", f"s_add_u32 s66, s66, {WS_DA}", "s_xor_b32 s60, s66, 16",
      "s_sub_u32 s66, s66, 2048", "s_add_u32 s67, s66, 4096")
    a(f"s_mul_i32 s69, {BK}, {NB}", f"s_sub_u32 s70, {N}, s69", f"s_min_u32 s70, s70, {NB}", "s_lshl_b32 s70, s70, 7", "s_lshl_b32 s71, s69, 7")
    a("s_and_b32 s72, s3, 3", "s_lshr_b32 s73, s3, 2")
    a(f"s_mov_b32 s{SWS+2}, {WS_END}", f"s_mov_b32 s{SWS+3}, 0x20000", f"s_mov_b32 s{SX+2}, s70", f"s_mov_b32 s{SX+3}, 0x20000")
    a(f"v_and_b32 v4, 3, v0", "v_and_b32 v6, 63, v0", "v_lshlrev_b32 v6, 4, v6")
    a("v_lshlrev_b32 v3, 5, v0", "v_lshrrev_b32 v5, 2, v0", "v_lshlrev_b32 v5, 5, v5", "v_lshl_add_u32 v5, v4, 2, v5")
    BS = opt.get("bs", 0); BP = opt.get("bp", "a")
    if BS: a("v_lshlrev_b32 v166, 3, v6", "s_andn2_b32 s77, s2, 7", "s_add_u32 s77, s77, s3", "s_sub_u32 s77, s77, 4", f"s_mul_i32 s77, s77, {BS*128}", "s_and_b32 s61, s2, 7", f"s_mul_i32 s61, s61, {(25000 - 256*BS)//7*128 if opt.get('xo', 1) else 0}", "s_add_u32 s77, s77, s61")
    def bulk(): a(f"s_mov_b64 exec, {(1 << BS) - 1 if BS < 64 else -1:#x}" if BS <= 32 else f"s_mov_b32 exec_hi, {(1 << (BS-32)) - 1:#x}", "buffer_load_dword v167, v166, s[24:27], s77 offen", "s_mov_b64 exec, -1")
    a("s_cmp_eq_u32 s73, 0")
    a("s_waitcnt lgkmcnt(0)")
    st()
    if opt.get("x1"): a("s_branch K2_FIN")
    a(f"s_mov_b32 s{SWS}, s20", f"s_mov_b32 s{SWS+1}, s21")
    if opt.get("rot"): a(f"s_mov_b32 s23, {WS_HDR}", "s_load_dword s77, s[20:21], s23")
    a("s_cbranch_scc0 K2_A1")
    a(f"buffer_load_dwordx4 {vr(TG,4)}, v3, {ws}, s60 offen {opt.get('kflag', '')}")
    a(f"s_add_u32 s{SX}, s4, s71", f"s_addc_u32 s{SX+1}, s5, 0")
    a("v_bfe_u32 v7, v0, 4, 2", "v_lshlrev_b32 v7, 4, v7", "v_xor_b32 v7, v7, v6", "v_xor_b32 v5, 64, v7",
      "s_lshl_b32 s60, s3, 11", f"s_add_u32 s61, s60, {L_XS}", f"s_add_u32 m0, s60, {L_WF}", f"s_add_u32 s63, s60, {WS_WF}")
    a("s_barrier")
    sx = f"s[{SX}:{SX+3}]"
    a(f"buffer_load_dwordx4 v6, {ws}, s63 offen lds", f"buffer_load_dwordx4 v6, {ws}, s63 offen offset:1024 lds", "s_mov_b32 m0, s61", "v_lshlrev_b32 v3, 7, v0")
    a(f"buffer_load_dwordx4 v7, {sx}, s60 offen lds", f"buffer_load_dwordx4 v5, {sx}, s60 offen offset:1024 lds",
      "s_add_u32 m0, s61, 8192", "s_add_u32 s60, s60, 8192", "s_cmp_eq_u32 s3, 3", "s_cbranch_scc1 K2_A3",
      f"buffer_load_dwordx4 v7, {sx}, s60 offen lds", f"buffer_load_dwordx4 v5, {sx}, s60 offen offset:1024 lds")
    a("s_branch K2_A2")
    a.label("K2_A3")
    a(f"s_mov_b32 m0, {L_WF + 8192}", f"s_mov_b32 s60, {WS_WF + 8192}", f"buffer_load_dwordx4 v6, {ws}, s60 offen lds", "s_mov_b64 exec, 0", f"buffer_load_dwordx4 v6, {ws}, s60 offen lds", "s_mov_b64 exec, -1")
    a("s_branch K2_A2")
    a.label("K2_A1")
    a(f"buffer_load_dword v{TG}, v5, {ws}, s66 offen {opt.get('kflag', '')}", f"buffer_load_dword v{TG+1}, v5, {ws}, s67 offen {opt.get('kflag', '')}")
    a("s_barrier")
    a(f"buffer_load_dwordx4 {vr(R,4)}, v2, {ws}, s64 offen {opt.get('kflag', '')}", f"buffer_load_dwordx4 {vr(R+4,4)}, v2, {ws}, s65 offen {opt.get('kflag', '')}")
    if BS and BP == "a": bulk()
    a.label("K2_A2")
    E8 = opt.get("ep", 0) & 8
    if E8: a("s_lshr_b32 s22, s3, 1", "s_lshl_b32 s74, s22, 11", "s_lshl_b32 s75, s22, 7", f"s_add_u32 s75, s75, {96*128}")
    else: a("s_lshl_b32 s74, s73, 11", f"s_add_u32 s75, s74, {3*2048}", f"s_add_u32 s22, s74, {6*2048}")
    srd(a, SPT, 20, 21, N, stride=128)
    a(f"s_add_u32 s{SO}, s16, s71", f"s_addc_u32 s{SO+1}, s17, 0", f"s_mov_b32 s{SO+2}, s70", f"s_mov_b32 s{SO+3}, 0x20000")
    T = Z1
    SMF = opt.get("smf", 0)
    if SMF:
        a(f"v_bfe_u32 v{T}, v0, 2, 1", f"v_bfe_u32 v{T+1}, v0, 3, 1", f"v_lshl_add_u32 v{T}, v{T}, 1, v{T+1}",
          f"v_lshrrev_b32 v{T+1}, 1, v0", f"v_xor_b32 v{T+1}, v{T+1}, v0", f"v_and_or_b32 v{T}, v{T+1}, 16, v{T}", f"v_mov_b32 v{T+1}, 0x3f80", f"v_mul_u32_u24 v{AH}, 0x5555, v4")
        for k in range(4): a(f"v_cmp_eq_u32 s[{MK+2*k}:{MK+2*k+1}], {k}, v{T}")
        for k in range(4): a(f"v_cndmask_b32 v{AL+k}, 0, v{T+1}, s[{MK+2*k}:{MK+2*k+1}]")
    elif small:
        a(f"v_and_b32 v{T}, 1, v0", f"v_lshlrev_b32 v{T}, 4, v{T}", f"v_mov_b32 v{T+1}, 0x3f80", f"v_lshlrev_b32 v{T}, v{T}, v{T+1}", "v_cmp_gt_u32 vcc, 2, v4",
          f"v_cndmask_b32 v{AL}, 0, v{T}, vcc", f"v_cndmask_b32 v{AL+1}, v{T}, 0, vcc")
    else:
        a(f"v_and_b32 v{T}, 1, v0", f"v_lshlrev_b32 v{T}, 4, v{T}", f"v_mov_b32 v{T+1}, 0x3f80", f"v_lshlrev_b32 v{T}, v{T}, v{T+1}",
          f"v_bfe_u32 v{T+1}, v0, 3, 2", f"v_bfe_u32 v{T+2}, v0, 1, 1", f"v_lshl_add_u32 v{T+1}, v{T+1}, 1, v{T+2}",
          f"v_bfe_u32 v{T+2}, v0, 2, 1", f"v_bfe_u32 v{T+3}, v0, 5, 1", f"v_xor_b32 v{T+2}, v{T+2}, v{T+3}", f"v_lshl_add_u32 v{T+1}, v{T+2}, 3, v{T+1}")
        for k in range(8): a(f"v_cmp_eq_u32 s[{MK+2*k}:{MK+2*k+1}], {k}, v{T+1}")
        for k in range(8): a(f"v_cndmask_b32 v{AL+k}, 0, v{T}, s[{MK+2*k}:{MK+2*k+1}]")
    J, QQ = T, T + 1
    a(f"v_and_b32 v{J}, 15, v0", f"v_bfe_u32 v{QQ}, v0, 4, 2", f"v_lshlrev_b32 v{OOF}, 7, v{J}",
      f"v_lshrrev_b32 v{ARX}, 1, v{J}", f"v_xor_b32 v{ARX}, v{ARX}, v{QQ}", f"v_lshl_add_u32 v{ARX}, v{ARX}, 4, v{OOF}",
      *([f"v_and_b32 v{OOF}, 64, v0", f"v_lshl_add_u32 v{OOF}, v{J}, 2, v{OOF}", f"v_lshl_add_u32 v{OOF}, v{QQ}, 9, v{OOF}"] if E8 else
        [f"s_lshl_b32 s64, s72, 5", f"v_lshl_add_u32 v{OOF}, v{QQ}, 3, v{OOF}", f"v_add_u32 v{OOF}, s64, v{OOF}"]),
      f"s_mul_i32 s64, s73, {64*QSTR}", f"s_lshl_b32 s65, s72, 6", "s_add_u32 s64, s64, s65", f"s_add_u32 s64, s64, {L_QS - 64*QSTR}",
      f"v_mul_u32_u24 v1, {QSTR}, v{J}", f"v_lshl_add_u32 v1, v{QQ}, 4, v1", "v_add_u32 v1, s64, v1",
      f"s_lshl_b32 s64, s73, 13", f"s_add_u32 s64, s64, {L_XS - 8192}", f"v_add_u32 v2, s64, v{ARX}", "v_xor_b32 v7, 64, v2",
      f"s_lshl_b32 s64, {'s22' if E8 else 's73'}, 4", f"v_add_u32 v{J}, s64, v{J}", f"v_mul_u32_u24 v{ARD}, {ASTR}, v{J}", f"v_lshl_add_u32 v{ARD}, v{QQ}, 4, v{ARD}",
      f"s_add_u32 s64, s74, {L_XS}", f"v_add_u32 v{ARX}, s64, v{ARX}")
    a(f"v_lshlrev_b32 v{IX+1}, 4, v4")
    a(f"v_mov_b32 v5, {ESTR}", f"s_movk_i32 s64, {NB*4}", f"s_mov_b32 s65, {DUMP}", "s_mov_b32 s68, 0", "s_mov_b32 s71, 0", "s_mov_b32 s70, 0")
    pk = sum(p << (4 * w) for w, p in enumerate(perm))
    a(f"s_mov_b32 s66, {pk & 0xffffffff:#x}", f"s_mov_b32 s67, {pk >> 32:#x}", "s_lshl_b32 s23, s3, 2", f"s_lshr_b64 s[66:67], s[66:67], s23",
      f"s_and_b32 s23, s66, 15", "s_lshl_b32 s23, s23, 4")
    a(f"v_bfe_u32 v{BE}, v0, 2, 4", f"v_add_u32 v{BE}, s23, v{BE}")
    if opt.get("n4"): a("s_movk_i32 s23, 187")
    N4 = opt.get("n4", 0); KM = DD + 13
    if N4:
        a(f"v_cmp_gt_u32 vcc, 6, v{BE}", f"v_cmp_lt_u32 s[66:67], 187, v{BE}".replace("187", "s23"),
          f"v_lshlrev_b32 v{BE+1}, 1, v{BE}", f"v_and_b32 v{BE+1}, 0x1fc, v{BE+1}", f"v_subrev_u32 v{BE+1}, 8, v{BE+1}", f"v_lshlrev_b32 v{BE+2}, 2, v{BE}", f"v_add_u32 v{BE+2}, {(NB-6)*4}, v{BE+2}",
          f"v_cndmask_b32 v{BE+1}, v{BE+1}, v{BE+2}, vcc", f"v_cndmask_b32 v{BE+1}, v{BE+1}, 0, s[66:67]",
          f"v_cndmask_b32 v{SP}, 1, 0, vcc", f"v_cndmask_b32 v{KM}, v{SP}, 3, s[66:67]", f"v_cndmask_b32 v{SP}, v{SP}, 2, s[66:67]",
          f"v_and_b32 v{PP5}, v{BE}, v{KM}", f"v_sub_u32 v{EH}, v{KM}, v{PP5}", f"v_cmp_eq_u32 s[58:59], 0, v{PP5}", f"v_and_b32 v{MFL}, 1, v{EH}", f"v_cvt_f32_u32 v{MFL}, v{MFL}")
    else:
        a(f"v_and_b32 v{BE+2}, 1, v{BE}", f"v_cmp_gt_u32 vcc, 4, v{BE}", f"v_cmp_eq_u32 s[66:67], 0, v{BE+2}",
          f"v_lshlrev_b32 v{BE+1}, 1, v{BE}", f"v_and_b32 v{BE+1}, 0x1fc, v{BE+1}", f"v_subrev_u32 v{BE+1}, 8, v{BE+1}", f"v_lshlrev_b32 v{BE}, 2, v{BE}", f"v_add_u32 v{BE}, {(NB-4)*4}, v{BE}",
          f"s_or_b64 s[58:59], vcc, s[66:67]", f"s_andn2_b64 s[66:67], s[66:67], vcc",
          f"v_cndmask_b32 v{BE+1}, v{BE+1}, v{BE}, vcc",
          f"v_cndmask_b32 v{SP}, 1, 0, vcc", f"v_cndmask_b32 v{PP5}, v5, 0, s[58:59]", f"v_cndmask_b32 v{EH}, 0, 1, s[66:67]",
          f"v_cndmask_b32 v{MFL}, 0, 1.0, s[66:67]", f"v_mov_b32 v{BE+3}, {L_ELL + ZCOL}")
    a(
      f"v_lshlrev_b32 v{QC}, 6, v4", f"v_add_u32 v{QC}, {(L_QS - 68*L_ELL) & 0xffffffff:#x}, v{QC}", f"v_lshlrev_b32 v{AC}, 5, v4", f"v_add_u32 v{AC}, {(L_AGB - ASTR//4*L_ELL) & 0xffffffff:#x}, v{AC}")
    a(f"s_mov_b32 s66, {NLOG2E:#x}", f"s_mov_b32 s67, {NLOG2E:#x}")
    T = EX; IP = EX + 4
    for k in range(RG + 1): a(f"v_mov_b32 v{IP+2*k+1}, v{IX+1}")
    a("s_cmp_eq_u32 s73, 0", "s_cbranch_scc1 K2_CT")
    def a_round(ad, l, mk):
        for k in range(4): a(f"v_lshlrev_b32_sdwa v{ad+k}, 2, v{l} dst_sel:DWORD dst_unused:UNUSED_PAD src0_sel:DWORD src1_sel:BYTE_{k}")
        for k in range(4): a(f"v_cmp_gt_u32 s[{mk+2*k}:{mk+2*k+1}], s64, v{ad+k}")
        for k in range(4): a(f"s_mov_b64 exec, s[{mk+2*k}:{mk+2*k+1}]", f"ds_add_rtn_u32 v{ad+k}, v{ad+k}, v5 offset:{L_CTR}")
        a("s_mov_b64 exec, -1")
    stk = st.k
    ellpre = 0
    def ellw():
        for k in range(8):
            if k % 4 == 0: a(f"s_waitcnt vmcnt({1 - k//4 + (1 if BS else 0)})")
            if k == 4 and st.on == 1: a("s_memrealtime s[100:101]")
            a(f"v_min_u32 v{AD+k}, s65, v{AD+k}", f"ds_write_b32 v{AD+k}, v{R+k}")
    a(f"s_lshl_b32 s23, s72, 11", f"s_add_u32 s23, s23, {L_WF}", f"v_add_u32 v3, s23, v6", f"v_mov_b32 v{Z1+4}, 0")
    if BS and BP == "a2": bulk()
    a(f"s_waitcnt vmcnt({2 + (1 if BS and BP != 'b' else 0)})")
    st()
    if BS and BP == "b": bulk()
    a_round(AD, TG, MK); a_round(AD + 4, TG + 1, MK + 8)
    a("s_waitcnt lgkmcnt(0)")
    if ellpre: ellw()
    a("s_barrier")
    if opt.get("rot"): a(f"s_and_b32 s77, s77, {((1 << opt['rot']) - 1) << 22:#x}", f"s_add_u32 s77, s77, {WS_PR}", f"s_add_u32 s{SPT}, s20, s77", f"s_addc_u32 s{SPT+1}, s21, 0", f"s_or_b32 s{SPT+1}, s{SPT+1}, {128 << 16:#x}")
    st()
    a.label("K2_AB1")
    T = Z1 + 4
    a(f"ds_read_b32 v{T+1}, v{T} offset:{L_OVC}")
    if not ellpre: ellw()
    a("s_waitcnt lgkmcnt(4)", f"v_readfirstlane_b32 s23, v{T+1}")
    a(f"ds_read_b128 {vr(W2,4)}, v3", f"ds_read_b128 {vr(W2+4,4)}, v3 offset:1024")
    for i in range(4): a(f"ds_read_b128 {vr(X+8*i,4)}, v2 offset:{2048*i}", f"ds_read_b128 {vr(X+8*i+4,4)}, v7 offset:{2048*i}")
    a("s_andn2_b32 s23, s23, s68", "s_cbranch_scc1 K2_RESCAN")
    QT = Z1; T = EX
    def gather(slot, ix):
        p = P + 8 * slot
        return [f"buffer_load_dwordx4 {vr(p,4)}, {vr(ix,2)}, s[{SPT}:{SPT+3}], 0 idxen offen {opt.get('gflag', '')}",
                f"buffer_load_dwordx4 {vr(p+4,4)}, {vr(ix,2)}, s[{SPT}:{SPT+3}], 0 idxen offen offset:64 {opt.get('gflag', '')}"]
    stb = st.k
    for r in range(4): a(f"v_cmp_eq_u32 s[{MK+4+2*r}:{MK+5+2*r}], {r}, v4")
    a(f"v_add_u32 v7, {L_WF + 8192}, v6")
    if st.on == 1: a("s_memrealtime s[96:97]", "s_waitcnt lgkmcnt(0)", "s_mov_b32 s97, s100")
    a("s_waitcnt lgkmcnt(%d)" % (0 if st.on == 1 else 10), "s_barrier")
    st()
    a(f"ds_read_b32 v{T}, v{BE+1} offset:{L_SLOT}", f"ds_read_b128 {vr(AE,4)}, v7", "s_waitcnt lgkmcnt(2)")
    for i in range(4): a(mf16(QT+4*i, W2, X+8*i, "0"))
    for i in range(4): a(mf16(QT+4*i, W2+4, X+8*i+4, QT+4*i))
    def slotdec():
        a("s_waitcnt lgkmcnt(1)")
        if N4: a(f"v_lshrrev_b32 v{LEN}, 17, v{T}", f"v_and_b32 v{T}, 0x1ffff, v{T}", f"v_and_b32 v{T+2}, v{LEN}, v{KM}", f"v_lshrrev_b32 v{T+1}, v{SP}, v{LEN}", f"v_min_u32 v{T+2}, v{T+2}, v{PP5}",
                 f"v_mad_u32_u24 v{T+1}, v{T+1}, v{PP5}, v{T+2}", f"v_mad_u32_u24 v{VI}, v{T+1}, v5, v{T}")
        else: a(f"v_lshrrev_b32 v{LEN}, 17, v{T}", f"v_add_u32 v{T+1}, v{LEN}, v{SP}", f"v_and_b32 v{T}, 0x1ffff, v{T}", f"v_lshrrev_b32 v{T+1}, 1, v{T+1}", f"v_mad_u32_u24 v{VI}, v{T+1}, v{PP5}, v{T}")
        a(f"ds_read_u16 v{IP}, v{VI}")
    slotdec()
    for i in range(4):
        if not opt.get("wsc", 0) & 2: a(f"v_pk_mul_f32 {vr(QT+4*i,2)}, {vr(QT+4*i,2)}, s[66:67]", f"v_pk_mul_f32 {vr(QT+4*i+2,2)}, {vr(QT+4*i+2,2)}, s[66:67]")
        if i == 3: a(f"s_waitcnt lgkmcnt(3)", *gather(0, IP), "s_cmp_eq_u32 s73, 2", "s_cbranch_scc1 K2_NQ2")
        a(f"ds_write_b128 v1, {vr(QT+4*i,4)} offset:{16*QSTR*i}")
    a("s_branch K2_NQ2")
    a.label("K2_CT")
    st.k = stk
    C0, C1, H0, H1, T0, T1, HH, PS, L4, B0, B1_, LOB, HIB, HA, FOUR = [Q + i for i in range(15)]
    a(f"v_mov_b32 v{Z1+4}, {MARK:#x}", "s_lshl_b32 s60, s3, 12", f"s_add_u32 m0, s60, {L_WF + 9*1024}", f"s_add_u32 s60, s60, {WS_WF + 9*1024}")
    a(f"v_lshlrev_b32 v{L4}, 2, v0", f"v_add_u32 v{B0}, {L_ELL}, v{L4}", f"v_add_u32 v{B1_}, {L_ELL + 256}, v{L4}",
      f"v_mov_b32 v{LOB}, {(CAP-63)*ESTR}", f"v_mov_b32 v{HIB}, {CAP*ESTR}", f"v_mul_u32_u24 v{HA}, {ESTR}, v0", f"v_sub_u32 v{HA}, {L_ELL + HCOL + CAP*ESTR}, v{HA}", f"v_mov_b32 v{FOUR}, 4",
      f"s_mov_b32 s61, {L_ELL + HCOL}")
    AD2 = P + 8; AD3 = P + 24
    for k in range(16): a(f"v_mov_b32 v{AD+k}, -1")
    a("s_waitcnt vmcnt(6)")
    st()
    for j in range(4): a(f"v_cmp_ne_u32 s[{MK+2*j}:{MK+2*j+1}], -1, v{TG+j}")
    a(f"v_cmp_eq_u32 vcc, v{Z1+4}, v{TG}")
    for j in range(4): a(f"s_mov_b64 exec, s[{MK+2*j}:{MK+2*j+1}]", f"buffer_load_dwordx4 {vr(R+4*j,4)}, v3, {ws}, s62 offen offset:{16*j} {opt.get('kflag', '')}")
    a("s_mov_b64 exec, -1")
    for j in range(4):
        a(f"s_cmp_eq_u64 s[{MK+2*j}:{MK+2*j+1}], 0", f"s_cbranch_scc1 K2_TS{j}")
        if j == 3: a("s_waitcnt lgkmcnt(8)")
        for k in range(4): a(f"v_lshlrev_b32_sdwa v{AD2+4*j+k}, 2, v{TG+j} dst_sel:DWORD dst_unused:UNUSED_PAD src0_sel:DWORD src1_sel:BYTE_{k}")
        for k in range(4): a(f"v_cmp_gt_u32 s[{MK+8+2*k}:{MK+9+2*k}], s64, v{AD2+4*j+k}")
        for k in range(4): a(f"s_mov_b64 exec, s[{MK+8+2*k}:{MK+9+2*k}]", f"ds_add_rtn_u32 v{AD+4*j+k}, v{AD2+4*j+k}, v5 offset:{L_CT2}")
        a("s_mov_b64 exec, -1", f"s_bitset1_b32 s70, {j}")
        a.label(f"K2_TS{j}")
    if opt.get("nowu"): a("s_mov_b64 exec, 0")
    for k in range(4): a(f"buffer_load_dwordx4 v6, {ws}, s60 offen offset:{1024*k} lds")
    if opt.get("nowu"): a("s_mov_b64 exec, -1")
    a("s_cbranch_vccnz K2_MARK")
    a.label("K2_MR")
    a("s_waitcnt lgkmcnt(0)")
    if opt.get("rot"): a(f"s_and_b32 s77, s77, {((1 << opt['rot']) - 1) << 22:#x}", f"s_add_u32 s77, s77, {WS_PR}", f"s_add_u32 s{SPT}, s20, s77", f"s_addc_u32 s{SPT+1}, s21, 0", f"s_or_b32 s{SPT+1}, s{SPT+1}, {128 << 16:#x}")
    a("s_waitcnt vmcnt(8)", "s_barrier")
    st()
    a.label("K2_AB1T")
    a(f"v_and_b32 v{T0}, 0xfc, v{L4}", f"ds_read2st64_b32 {vr(C0,2)}, v{T0} offset0:{L_CTR//256} offset1:{L_CTR//256+1}", f"ds_read2st64_b32 {vr(H0,2)}, v{T0} offset0:{L_CTR//256+2} offset1:{L_CTR//256+3}", "s_setprio 3", "s_mov_b32 s56, -1", "s_mov_b32 s57, 3")
    a("s_waitcnt lgkmcnt(0)", f"v_readlane_b32 s23, v{C1}, 48", f"v_sub_u32 v{C0}, v{C0}, v{B0}", f"v_sub_u32 v{C1}, v{C1}, v{B1_}", f"v_add_u32 v{C0}, v{C0}, v{H0}", f"v_add_u32 v{C1}, v{C1}, v{H1}",
      "s_andn2_b32 s23, s23, s68", "s_cbranch_scc1 K2_RESCAN", "s_cmp_lg_u32 s3, 0", "s_cbranch_scc1 K2_TW")
    for c, h, t in ((C0, H0, T0), (C1, H1, T1)):
        if c == C1: a("s_mov_b64 exec, s[56:57]")
        a(f"v_med3_u32 v{h}, v{c}, v{LOB}, v{HIB}", f"v_add_u32 v{t}, s61, v{h}", f"ds_add_rtn_u32 v{t}, v{t}, v{FOUR}")
    a(f"v_cmp_gt_u32 s[{MK}:{MK+1}], v{C1}, v{HIB}", "s_mov_b64 exec, -1", f"ds_read_b32 v{HH}, v{HA}", f"v_cmp_gt_u32 vcc, v{C0}, v{HIB}")
    for c, h, b in ((C0, H0, B0), (C1, H1, B1_)):
        a(f"v_min_u32 v{c}, v{c}, v{HIB}", f"v_lshrrev_b32 v{c}, 2, v{c}", f"v_mul_u32_u24 v{c}, 509, v{c}", f"v_lshrrev_b32 v{c}, 16, v{c}",
          f"v_max_u32 v{h}, {CAP-63}, v{c}", f"v_sub_u32 v{h}, {CAP}, v{h}", f"v_lshlrev_b32 v{h}, 2, v{h}", f"v_lshl_or_b32 v{c}, v{c}, 17, v{b}")
    a(f"s_or_b64 vcc, vcc, s[{MK}:{MK+1}]", "s_waitcnt lgkmcnt(0)")
    a(f"v_add_u32_dpp v{PS}, v{HH}, v{HH} row_shr:1 row_mask:0xf bank_mask:0xf bound_ctrl:0")
    for k in (2, 4, 8): a(f"v_add_u32_dpp v{PS}, v{PS}, v{PS} row_shr:{k} row_mask:0xf bank_mask:0xf bound_ctrl:0")
    a(f"v_add_u32_dpp v{PS}, v{PS}, v{PS} row_bcast:15 row_mask:0xa bank_mask:0xf", f"v_add_u32_dpp v{PS}, v{PS}, v{PS} row_bcast:31 row_mask:0xc bank_mask:0xf")
    a(f"v_sub_u32 v{PS}, v{PS}, v{HH}", f"ds_bpermute_b32 v{H0}, v{H0}, v{PS}", f"ds_bpermute_b32 v{H1}, v{H1}, v{PS}")
    a(f"v_mov_b32 v{HH}, 0", "s_waitcnt lgkmcnt(1)", f"v_add_u32 v{H0}, v{H0}, v{T0}", f"ds_write_b32 v{H0}, v{C0} offset:{L_SLOT}",
      "s_waitcnt lgkmcnt(1)", "s_mov_b64 exec, s[56:57]", f"v_add_u32 v{H1}, v{H1}, v{T1}", f"ds_write_b32 v{H1}, v{C1} offset:{L_SLOT}", "s_mov_b64 exec, -1")
    a("s_cbranch_vccz K2_TW", f"ds_write_b32 v{HH}, v5 offset:{L_FLG}")
    a.label("K2_TW")
    a.label("K2_CWR")
    for r in range(4): a(f"v_cmp_eq_u32 s[{MK+4+2*r}:{MK+5+2*r}], {r}, v4")
    T = EX
    a(f"v_add_u32 v7, {L_WF + 8192}, v6")
    if st.on == 1: a("s_waitcnt lgkmcnt(0)", "s_memrealtime s[96:97]")
    a("s_waitcnt lgkmcnt(0)", "s_barrier")
    st()
    a(f"ds_read_b32 v{T}, v{BE+1} offset:{L_SLOT}", f"ds_read_b128 {vr(AE,4)}, v7")
    slotdec()
    a(f"s_waitcnt lgkmcnt(0)", *gather(0, IP))
    for j in range(4):
        a(f"s_bitcmp0_b32 s70, {j}", f"s_cbranch_scc1 K2_TR{j}")
        for k in range(4): a(f"ds_read_b32 v{AD3+k}, v{AD2+4*j+k} offset:{L_CTR}")
        for k in range(4): a(f"s_waitcnt lgkmcnt({3-k})", f"v_add_u32 v{AD+4*j+k}, v{AD+4*j+k}, v{AD3+k} clamp", f"v_min_u32 v{AD+4*j+k}, s65, v{AD+4*j+k}")
        a.label(f"K2_TR{j}")
    a("s_waitcnt vmcnt(6)")
    if st.on == 1: a("s_memrealtime s[100:101]", "s_waitcnt lgkmcnt(0)", "s_mov_b32 s97, s100")
    for j in range(4):
        a(f"s_bitcmp0_b32 s70, {j}", f"s_cbranch_scc1 K2_TW{j}")
        if j == 3: a("s_waitcnt lgkmcnt(4)")
        for k in range(4): a(f"ds_write_b32 v{AD+4*j+k}, v{R+4*j+k}")
        a.label(f"K2_TW{j}")
    a.label("K2_NQ2")
    LV = opt.get("lv", 0); ME = LV & 1; MC = LV & 2
    def rde(t, cur=None):
        if not ME: return [f"ds_read_b32 v{BE+r}, v{VE+r} offset:{t*ESTR}" for r in range(4)]
        o = []
        for r in range(4): o += [f"s_and_b64 exec, {cur}, s[{MK+4+2*r}:{MK+5+2*r}]" if cur else f"s_mov_b64 exec, s[{MK+4+2*r}:{MK+5+2*r}]", f"ds_read_b32 v{BE+r}, v{VI} offset:{t*ESTR}"]
        return o + [f"s_mov_b64 exec, {cur or -1}"]
    a(f"v_mov_b32 v{T+1}, 68", f"v_mad_u32_u24 v{T+2}, v{T}, v{T+1}, v{QC}")
    for r in range(4): a(f"v_mov_b32 v{BE+r}, 0" if ME else f"v_cndmask_b32 v{VE+r}, v{BE+3}, v{VI}, s[{MK+4+2*r}:{MK+5+2*r}]")
    for i in range(16): a(f"v_mov_b32 v{NN+i}, 0")
    if st.on == 1: a("s_waitcnt lgkmcnt(0)", "s_memrealtime s[62:63]")
    a("s_waitcnt vmcnt(2) lgkmcnt(0)", "s_barrier")
    if st.on == 1: a("s_memrealtime s[60:61]", "s_waitcnt lgkmcnt(0)")
    a(f"ds_read_u16 v{T+3}, v{VI}")
    for k in range(1, RG + 1): a(f"ds_read_u16 v{IP+2*k}, v{VI} offset:{k*ESTR}")
    for k in range(4): a(f"ds_read_b128 {vr(Q+4*k,4)}, v{T+2} offset:{16*k}")
    a(*rde(0), f"ds_read_u16 v{IX}, v{VI} offset:{(RG+1)*ESTR}")
    a(f"s_waitcnt lgkmcnt({RG + 8})", f"v_cmp_ne_u32 vcc, v{T+3}, v{IP}", "s_cbranch_vccnz K2_G0R")
    a.label("K2_G0D")
    a(*gather(1, IP + 2))
    a(f"v_add_u32 v{LEN}, v{LEN}, v{EH}", f"v_lshrrev_b32 v{LEN}, v{SP}, v{LEN}", f"v_mad_u32_u24 v{AGA}, v{T}, {ASTR//4}, v{AC}")
    a(f"v_max_u32_dpp v{T+1}, v{LEN}, v{LEN} row_shr:4 row_mask:0xf bank_mask:0xf bound_ctrl:0")
    if MC: a(f"v_min_u32_dpp v{T+2}, v{LEN}, v{LEN} row_shr:4 row_mask:0xf bank_mask:0xf bound_ctrl:0")
    for i in range(8): a(f"v_mov_b32 v{DD+i}, 1.0")
    a(f"v_max_u32_dpp v{T+1}, v{T+1}, v{T+1} row_shr:8 row_mask:0xf bank_mask:0xf bound_ctrl:0")
    if MC: a(f"v_min_u32_dpp v{T+2}, v{T+2}, v{T+2} row_shr:8 row_mask:0xf bank_mask:0xf bound_ctrl:0")
    for i in range(8, 16): a(f"v_mov_b32 v{DD+i}, 1.0")
    a(f"v_readlane_b32 s69, v{T+1}, 15", f"v_readlane_b32 s70, v{T+1}, 31", f"v_readlane_b32 s64, v{T+1}, 47", f"v_readlane_b32 s65, v{T+1}, 63",
      "s_max_u32 s69, s69, s70", "s_max_u32 s64, s64, s65", "s_max_u32 s69, s69, s64")
    if MC: a(f"v_readlane_b32 s56, v{T+2}, 15", f"v_readlane_b32 s70, v{T+2}, 31", f"v_readlane_b32 s64, v{T+2}, 47", f"v_readlane_b32 s65, v{T+2}, 63",
      "s_min_u32 s56, s56, s70", "s_min_u32 s64, s64, s65", "s_min_u32 s56, s56, s64")
    TG3 = LV & 4; TL = LV & 24
    if TG3: a("s_sub_u32 s64, s69, 3", "s_max_i32 s64, s64, 0", "s_min_u32 s56, s56, s64")
    elif TL: a("s_sub_u32 s64, s69, 1", "s_min_u32 s56, s56, s64")
    a("s_mov_b32 s70, 0")
    if E8: a("s_and_b32 s23, s3, 1", "s_lshl_b32 s23, s23, 13", f"s_add_u32 s23, s23, 1024", "v_add_u32 v7, s23, v7")
    else: a(f"s_lshl_b32 s23, s72, 12", f"s_add_u32 s23, s23, 1024", "v_add_u32 v7, s23, v7")
    a("s_cmp_eq_u32 s69, 0", "s_cbranch_scc1 K2_DONE0")
    a(f"s_waitcnt vmcnt(2) lgkmcnt(0)")
    st()
    if st.on == 1: a("s_memtime s[98:99]", "s_waitcnt lgkmcnt(0)")
    for k in range(2, RG): a(*gather(k, IP + 2*k))
    def sm(z, b, c): return f"v_mfma_f32_4x4x4_16b_bf16 {vr(z,4)}, {vr(AL,2)}, {vr(b,2)}, {vr(c,4)}"
    def smf(z, b): return f"v_smfmac_f32_32x32x32_bf16 {vr(z,16)}, {vr(AL,4)}, {vr(b,8)}, v{AH}"
    if SMF: a(mf32(Z0, AE, BE, Q), smf(Z0, P))
    elif small: a(*[sm(Z0+4*i, P+2*i, Q+4*i) for i in range(4)], mf32(Z0, AE, BE, Z0))
    else: a(mf32(Z0, AE, BE, Q), mf32(Z0, AL, P, Z0), mf32(Z0, AH, P + 4, Z0))
    a(*gather(0, IP + 2*RG), *rde(1), "s_nop 3")
    U = max(2, RG)
    a(f"s_branch K2_PRI{U-1}")
    a(".p2align 6")
    late = []
    def fmas(zc):
        for i in range(0, 16, 2): a(f"v_pk_fma_f32 {vr(NN+i,2)}, {vr(NN+i,2)}, {vr(EX+i,2)}, {vr(NN+i,2)}")
        for i in range(0, 16, 2): a(f"v_pk_fma_f32 {vr(NN+i,2)}, {vr(zc+i,2)}, {vr(DD+i,2)}, {vr(NN+i,2)}")
        for i in range(0, 16, 2): a(f"v_pk_fma_f32 {vr(DD+i,2)}, {vr(DD+i,2)}, {vr(EX+i,2)}, {vr(DD+i,2)}")
    def body(L, u):
        tail = L == "M"
        a.label(f"K2_{L}{u}")
        zc = (Z0, Z1)[u % 2]; zn = (Z1, Z0)[u % 2]; p = P + 8 * ((u + 1) % RG)
        ex = [f"v_exp_f32 v{EX+i}, v{zc+i}" for i in range(16)]
        if tail:
            a(f"v_cmpx_lt_u32 vcc, s70, v{LEN}", "s_sub_u32 s65, s69, s70", *ex[13:16]); ex = ex[:13]
            if TL: a("s_cmp_eq_u32 s65, 1", f"s_cbranch_scc1 K2_MS{u}"); late.append((u, ex))
        if SMF:
            a("s_waitcnt lgkmcnt(0)", mf32(zn, AE, BE, Q), *ex[0:SMF], f"s_waitcnt vmcnt({2*RG-2})", smf(zn, p), *ex[SMF:16])
        elif opt.get("bf"):
            k = opt["bf"] - (3 if tail else 0)
            s4 = [sm(zn+4*i, p+2*i, zn+4*i) for i in range(4)]
            a("s_waitcnt lgkmcnt(0)", mf32(zn, AE, BE, Q), *ex[0:k], f"s_waitcnt vmcnt({2*RG-2})", s4[0], ex[k], s4[1], ex[k+1], s4[2], ex[k+2], s4[3], *ex[k+3:16])
        else:
            a(f"s_waitcnt vmcnt({2*RG-2}) lgkmcnt(0)")
            s4 = [sm(zn+4*i, p+2*i, Q+4*i) for i in range(4)]
            a(s4[0], ex[0], s4[1], ex[1], s4[2], ex[2], s4[3], *ex[3:8], mf32(zn, AE, BE, zn), *ex[8:16])
        if tail and TG3: a("s_cmp_gt_u32 s65, 3", "s_cselect_b64 exec, vcc, 0")
        a(*gather((u + 1) % RG, IX), f"ds_read_u16 v{IX}, v{VI} offset:{(u+RG+2)*ESTR}", *rde(u + 2, "vcc" if tail else None)) if ME else a(*gather((u + 1) % RG, IX), *rde(u + 2), f"ds_read_u16 v{IX}, v{VI} offset:{(u+RG+2)*ESTR}")
        if not MC: a(f"v_cmpx_lt_u32 vcc, s70, v{LEN}")
        if tail and TL == 8: a.label(f"K2_MF{u}")
        fmas(zc)
        if not MC: a("s_mov_b64 exec, -1")
        a("s_add_u32 s70, s70, 1", "s_cmp_ge_u32 s70, s64")
        if u < U - 1: a(f"s_cbranch_scc1 K2_PRI{u}")
        else:
            for rg in [VI] + ([] if ME else [VE + r for r in range(4)]): a(f"v_add_u32 v{rg}, {U*ESTR}, v{rg}")
            a(f"s_cbranch_scc0 K2_{L}0")
            if tail: a(f"s_branch K2_PRI{u}")
    for u in range(U): body("L", u)
    for u in list(range(U - 1, -1, -1)):
        a.label(f"K2_PRI{u}")
        nx = f"K2_X{u}" if MC else f"K2_L{(u+1)%U}"
        a("s_sub_u32 s65, s69, s70")
        for lv, th in zip((3, 2, 1), dp):
            a(f"s_setprio {lv}", f"s_sub_u32 s64, s69, {th}", f"s_cmp_gt_u32 s65, {th}", f"s_cbranch_scc1 {nx}")
        if MC:
            a("s_setprio 0", "s_mov_b32 s64, s69", "s_cmp_eq_u32 s65, 0", f"s_cbranch_scc1 K2_DONEX")
            a.label(nx)
            a("s_cmp_ge_u32 s70, s56", f"s_cbranch_scc1 K2_M{(u+1)%U}", "s_min_u32 s64, s64, s56", f"s_branch K2_L{(u+1)%U}")
        else:
            a("s_setprio 0", "s_mov_b32 s64, s69", "s_cmp_lg_u32 s65, 0", f"s_cbranch_scc1 {nx}")
            if u: a("s_branch K2_DONE")
    if MC:
        a(".p2align 6")
        for u in range(U): body("M", u)
        for u, ex in late:
            a.label(f"K2_MS{u}")
            if TL == 8: a(*ex, f"s_branch K2_MF{u}")
            else:
                a(*ex); fmas((Z0, Z1)[u % 2])
                if u != U - 1: a("s_branch K2_DONEX")
        a.label("K2_DONEX")
        a("s_mov_b64 exec, -1")
    a.label("K2_DONE")
    st()
    if st.on == 1: a("s_memtime s[100:101]", "s_waitcnt lgkmcnt(0)", "s_sub_u32 s98, s100, s98")
    XF = Z0; ACC = Q
    EP = opt.get("ep", 0)
    if not EP:
        a(f"v_xor_b32 v3, 64, v{ARX}")
        for i in range(16): a(f"v_rcp_f32 v{EX+i}, v{DD+i}")
        a("s_waitcnt lgkmcnt(0)")
        for k in range(4): a(f"ds_read_b128 {vr(WU+4*k,4)}, v7 offset:{1024*k}")
        for i in range(3): a(f"ds_read_b128 {vr(XF+8*i,4)}, v{ARX} offset:{6144*i}", f"ds_read_b128 {vr(XF+8*i+4,4)}, v3 offset:{6144*i}")
        a(f"s_mov_b32 s66, {NLN2:#x}", f"s_mov_b32 s67, {NLN2:#x}", f"s_mov_b32 s64, {f2u(2.0**120):#x}")
        for i in range(0, 16, 2): a(f"v_pk_mul_f32 {vr(NN+i,2)}, {vr(NN+i,2)}, s[66:67]")
        a(f"v_max3_f32 v2, v{DD}, v{DD+1}, v{DD+2}")
        for i in range(3, 15, 2): a(f"v_max3_f32 v2, v{DD+i}, v{DD+i+1}, v2")
        a(f"v_max_f32 v2, v{DD+15}, v2")
        for i in range(0, 16, 2): a(f"v_pk_mul_f32 {vr(NN+i,2)}, {vr(NN+i,2)}, {vr(EX+i,2)}")
        a(f"v_pk_mul_f32 {vr(DD,2)}, {vr(NN,2)}, 0")
        for i in range(2, 16, 2): a(f"v_pk_fma_f32 {vr(DD,2)}, {vr(NN+i,2)}, 0, {vr(DD,2)}")
        for i in range(16): a(f"v_fmac_f32_dpp v{NN+i}, v{NN+i}, v{MFL} row_shl:4 row_mask:0xf bank_mask:0xf bound_ctrl:0")
        a(f"v_cmp_u_f32 vcc, v{DD}, v{DD+1}", f"v_cmp_nlt_f32 s[{MK+2}:{MK+3}], v2, s64", f"s_or_b64 vcc, vcc, s[{MK+2}:{MK+3}]")
        for i in range(8): a(f"v_cvt_pk_bf16_f32 v{EX+i}, v{NN+2*i}, v{NN+2*i+1}")
        a("s_waitcnt lgkmcnt(0)", f"s_mov_b64 exec, s[58:59]", f"ds_write_b128 v{AGA}, {vr(EX,4)} offset:{L_AGB}", f"ds_write_b128 v{AGA}, {vr(EX+4,4)} offset:{L_AGB+16}")
        a("s_mov_b64 exec, vcc", "v_mov_b32 v2, 0", f"ds_write_b32 v2, v5 offset:{L_FLG}", "s_mov_b64 exec, -1")
        a(f"s_mov_b32 s66, {NLOG2E:#x}", f"s_mov_b32 s67, {NLOG2E:#x}", "v_mov_b32 v2, 0")
        for i in range(3): a(mf16(ACC+4*i, WU, XF+8*i, "0"))
        for i in range(3): a(mf16(ACC+4*i, WU+4, XF+8*i+4, ACC+4*i))
        a("s_waitcnt lgkmcnt(0)", "s_barrier")
        st()
        a.label("K2_EPI")
        B = Z0; O = EX; TT = NN; WU2 = WU + 8
        a(f"ds_read_b32 v3, v2 offset:{L_FLG}")
        for i in range(3):
            for s in range(2): a(f"ds_read_b128 {vr(B+8*i+4*s,4)}, v{ARD} offset:{L_AGB + 48*ASTR*i + 64*s}")
        a("s_waitcnt lgkmcnt(6)", "v_readfirstlane_b32 s23, v3", "s_andn2_b32 s23, s23, s71", "s_cbranch_scc1 K2_BF")
        def epi_tile(i):
            o = O + 4 * i; t = TT + 4 * i
            a(f"v_pk_mul_f32 {vr(t,2)}, {vr(o,2)}, s[66:67]", f"v_pk_mul_f32 {vr(t+2,2)}, {vr(o+2,2)}, s[66:67]")
            for k in range(4): a(f"v_exp_f32 v{t+k}, v{t+k}")
            a(f"v_pk_add_f32 {vr(t,2)}, {vr(t,2)}, 1.0 op_sel_hi:[1,0]", f"v_pk_add_f32 {vr(t+2,2)}, {vr(t+2,2)}, 1.0 op_sel_hi:[1,0]")
            for k in range(4): a(f"v_rcp_f32 v{t+k}, v{t+k}")
            a(f"v_pk_mul_f32 {vr(t,2)}, {vr(t,2)}, {vr(o,2)}", f"v_pk_mul_f32 {vr(t+2,2)}, {vr(t+2,2)}, {vr(o+2,2)}")
            a(f"v_cvt_pk_bf16_f32 v{o}, v{t}, v{t+1}", f"v_cvt_pk_bf16_f32 v{o+1}, v{t+2}, v{t+3}")
            a(f"buffer_store_dwordx2 {vr(o,2)}, v{OOF}, s[{SO}:{SO+3}], {('s74','s75','s22')[i]} offen {opt.get('oflag', '')}")
        for i in range(3):
            a(f"s_waitcnt lgkmcnt({4-2*i})", mf16(O+4*i, WU2, B+8*i, ACC+4*i), mf16(O+4*i, WU2+4, B+8*i+4, O+4*i))
        epi_tile(0); epi_tile(1)
        a("s_cmp_lg_u32 s73, 0", "s_cbranch_scc1 K2_FIN")
        epi_tile(2)
    elif E8:
        assert opt.get("wsc") and not N4
        WX = P + 16; WA = BE; AR6 = 165
        a(f"v_xor_b32 v3, 64, v{ARX}", "v_and_b32 v2, 48, v0", f"s_add_u32 s64, s75, {L_XS}", f"s_mul_i32 s65, s22, {ASTR}", f"s_add_u32 s65, s65, {L_AGB + 96*ASTR}",
          f"v_add_u32 v{AR6}, s65, v2", "v_add_u32 v2, s64, v2", "s_cmp_eq_u32 s73, 0", "s_waitcnt lgkmcnt(0)")
        a(f"ds_read_b128 {vr(XF,4)}, v{ARX}", f"ds_read_b128 {vr(XF+4,4)}, v3")
        for h in range(2):
            for k in range(2): a(f"ds_read_b128 {vr(WX+8*h+4*k,4)}, v7 offset:{4096*h + 1024*k}")
        a("s_cselect_b64 exec, -1, 0", f"ds_read_b128 {vr(XF+8,4)}, v2", f"ds_read_b128 {vr(XF+12,4)}, v2 offset:64", "s_mov_b64 exec, -1")
        for h in range(2):
            for k in range(2): a(f"ds_read_b128 {vr(WA+8*h+4*k,4)}, v7 offset:{4096*h + 1024*k + 2048}")
        for i in range(16): a(f"v_rcp_f32 v{EX+i}, v{DD+i}")
        a(f"v_pk_mul_f32 v[2:3], {vr(NN,2)}, {vr(DD,2)}")
        for i in range(2, 16, 2): a(f"v_pk_fma_f32 v[2:3], {vr(NN+i,2)}, {vr(DD+i,2)}, v[2:3]")
        a("s_waitcnt lgkmcnt(4)")
        def mx(t, h, k): return mf16(ACC+8*t+4*h, XF+8*t+4*k, WX+8*h+4*k, "0" if k == 0 else ACC+8*t+4*h)
        for i in range(0, 16, 2):
            a(f"v_pk_mul_f32 {vr(NN+i,2)}, {vr(NN+i,2)}, {vr(EX+i,2)}")
            if i % 8 == 0: a(mx(0, i // 8, 0))
        a("s_movk_i32 s64, 0x207", "v_add_f32 v2, v2, v3")
        for i in range(16):
            a(f"v_fmac_f32_dpp v{NN+i}, v{NN+i}, v{MFL} row_shl:4 row_mask:0xf bank_mask:0xf bound_ctrl:0")
            if i % 8 == 0: a(mx(0, i // 8, 1))
        a(f"v_cmp_class_f32 vcc, v2, s64")
        for i in range(8): a(f"v_cvt_pk_bf16_f32 v{EX+i}, v{NN+2*i}, v{NN+2*i+1}")
        a(f"s_mov_b64 exec, s[58:59]", f"ds_write_b128 v{AGA}, {vr(EX,4)} offset:{L_AGB}", f"ds_write_b128 v{AGA}, {vr(EX+4,4)} offset:{L_AGB+16}")
        a("s_mov_b64 exec, vcc", "v_mov_b32 v2, 0", f"ds_write_b32 v2, v5 offset:{L_FLG}", "s_mov_b64 exec, -1", "v_mov_b32 v2, 0")
        a("s_cbranch_scc0 K2_N3", mx(1, 0, 0), mx(1, 1, 0), mx(1, 0, 1), mx(1, 1, 1))
        a.label("K2_N3")
        a("s_waitcnt lgkmcnt(0)", "s_barrier")
        st()
        a.label("K2_EPI")
        B = Z0; O = EX; TT = NN
        a(f"ds_read_b128 {vr(B,4)}, v{ARD} offset:{L_AGB}", f"ds_read_b128 {vr(B+4,4)}, v{ARD} offset:{L_AGB+64}", f"ds_read_b32 v3, v2 offset:{L_FLG}")
        a("s_cmp_eq_u32 s73, 0", "s_cselect_b64 exec, -1, 0", f"ds_read_b128 {vr(B+8,4)}, v{AR6}", f"ds_read_b128 {vr(B+12,4)}, v{AR6} offset:64", "s_mov_b64 exec, -1")
        if opt.get("es"): a("s_waitcnt lgkmcnt(0)", "s_memrealtime s[60:61]")
        def ma(t, h, k): return mf16(O+8*t+4*h, B+8*t+4*k, WA+8*h+4*k, ACC+8*t+4*h if k == 0 else O+8*t+4*h)
        a("s_waitcnt lgkmcnt(4)", ma(0, 0, 0), ma(0, 1, 0), "s_waitcnt lgkmcnt(3)", ma(0, 0, 1), ma(0, 1, 1))
        a("s_cbranch_scc0 K2_N4", "s_waitcnt lgkmcnt(0)", ma(1, 0, 0), ma(1, 1, 0), ma(1, 0, 1), ma(1, 1, 1))
        a.label("K2_N4")
        a("s_waitcnt lgkmcnt(2)", "v_readfirstlane_b32 s23, v3", "s_andn2_b32 s23, s23, s71", "s_cbranch_scc1 K2_BF")
        so = f"s[{SO}:{SO+3}]"
        for g in range(2):
            rs = [O+2*g, O+2*g+1, O+4+2*g, O+5+2*g]; t = TT + 4 * g
            for k in range(4): a(f"v_exp_f32 v{t+k}, v{rs[k]}")
            a(f"v_pk_fma_f32 {vr(t,2)}, {vr(t,2)}, s[66:67], s[66:67]", f"v_pk_fma_f32 {vr(t+2,2)}, {vr(t+2,2)}, s[66:67], s[66:67]")
            for k in range(4): a(f"v_rcp_f32 v{t+k}, v{t+k}")
            a(f"v_pk_mul_f32 {vr(t,2)}, {vr(t,2)}, {vr(rs[0],2)}", f"v_pk_mul_f32 {vr(t+2,2)}, {vr(t+2,2)}, {vr(rs[2],2)}")
            a(f"v_cvt_pk_bf16_f32 v{t}, v{t}, v{t+2}", f"v_cvt_pk_bf16_f32 v{t+1}, v{t+1}, v{t+3}")
            for k in range(2): a(f"buffer_store_dword v{t+k}, v{OOF}, {so}, s74 offen offset:{128*(2*g+k)} {opt.get('oflag', '')}")
        a("s_cmp_lg_u32 s73, 0", "s_cbranch_scc1 K2_FIN")
        t = TT + 8
        a("s_mov_b64 exec, 0xffff", f"v_exp_f32 v{t}, v{O+8}", f"v_exp_f32 v{t+1}, v{O+12}", f"v_pk_fma_f32 {vr(t,2)}, {vr(t,2)}, s[66:67], s[66:67]", f"v_rcp_f32 v{t}, v{t}", f"v_rcp_f32 v{t+1}, v{t+1}",
          f"v_mul_f32 v{t}, v{t}, v{O+8}", f"v_mul_f32 v{t+1}, v{t+1}, v{O+12}", f"v_cvt_pk_bf16_f32 v{t}, v{t}, v{t+1}", f"buffer_store_dword v{t}, v{OOF}, {so}, s75 offen {opt.get('oflag', '')}")
    else:
        n3 = EP & 2
        a(f"v_xor_b32 v3, 64, v{ARX}", "s_waitcnt lgkmcnt(0)")
        if n3: a("s_cmp_eq_u32 s73, 0", "s_cselect_b64 s[44:45], -1, 0")
        for k in range(2): a(f"ds_read_b128 {vr(WU+4*k,4)}, v7 offset:{1024*k}")
        for i in range(3):
            if i == 2 and n3: a("s_mov_b64 exec, s[44:45]")
            a(f"ds_read_b128 {vr(XF+8*i,4)}, v{ARX} offset:{6144*i}", f"ds_read_b128 {vr(XF+8*i+4,4)}, v3 offset:{6144*i}")
        if n3: a("s_mov_b64 exec, -1")
        for k in range(2, 4): a(f"ds_read_b128 {vr(WU+4*k,4)}, v7 offset:{1024*k}")
        for i in range(16): a(f"v_rcp_f32 v{EX+i}, v{DD+i}")
        a(f"v_pk_mul_f32 v[2:3], {vr(NN,2)}, {vr(DD,2)}")
        for i in range(2, 16, 2): a(f"v_pk_fma_f32 v[2:3], {vr(NN+i,2)}, {vr(DD+i,2)}, v[2:3]")
        GR = EP & 4
        if GR:
            a(f"s_mov_b32 s64, {NLN2:#x}", f"s_mov_b32 s65, {NLN2:#x}")
            for i in range(0, 16, 2): a(f"v_pk_mul_f32 {vr(NN+i,2)}, {vr(NN+i,2)}, s[64:65]")
        a("s_waitcnt lgkmcnt(2)")
        nt = 2 if n3 else 3
        mfx = [mf16(ACC+4*i, WU, XF+8*i, "0") for i in range(3)] + [mf16(ACC+4*i, WU+4, XF+8*i+4, ACC+4*i) for i in range(3)]
        for i in range(0, 16, 2):
            a(f"v_pk_mul_f32 {vr(NN+i,2)}, {vr(NN+i,2)}, {vr(EX+i,2)}")
            if i % 4 == 0 and i < 4 * nt: a(mfx[i // 4])
        a("s_movk_i32 s64, 0x207", "v_add_f32 v2, v2, v3")
        for i in range(16):
            a(f"v_fmac_f32_dpp v{NN+i}, v{NN+i}, v{MFL} row_shl:4 row_mask:0xf bank_mask:0xf bound_ctrl:0")
            if i % 4 == 0 and i < 4 * nt: a(mfx[3 + i // 4])
        a(f"v_cmp_class_f32 vcc, v2, s64")
        if N4:
            a(f"s_cmp_eq_u32 s3, {perm.index(11)}", "s_cbranch_scc1 K2_QD")
            a.label("K2_QDR")
            if n3: a("s_cmp_eq_u32 s73, 0")
        for i in range(8): a(f"v_cvt_pk_bf16_f32 v{EX+i}, v{NN+2*i}, v{NN+2*i+1}")
        a(f"s_mov_b64 exec, s[58:59]", f"ds_write_b128 v{AGA}, {vr(EX,4)} offset:{L_AGB}", f"ds_write_b128 v{AGA}, {vr(EX+4,4)} offset:{L_AGB+16}")
        a("s_mov_b64 exec, vcc", "v_mov_b32 v2, 0", f"ds_write_b32 v2, v5 offset:{L_FLG}", "s_mov_b64 exec, -1", "v_mov_b32 v2, 0")
        if n3:
            a("s_cbranch_scc0 K2_N3", mfx[2], mfx[5])
            if not opt.get("wsc") and not GR: a(*[f"v_pk_mul_f32 {vr(ACC+i,2)}, {vr(ACC+i,2)}, s[66:67]" for i in (8, 10)])
            a.label("K2_N3")
        if not opt.get("wsc") and not GR:
            for i in range(0, 4 * nt, 2): a(f"v_pk_mul_f32 {vr(ACC+i,2)}, {vr(ACC+i,2)}, s[66:67]")
        a("s_waitcnt lgkmcnt(0)", "s_barrier")
        st()
        a.label("K2_EPI")
        B = Z0; O = EX; TT = NN; WU2 = WU + 8
        a(f"ds_read_b32 v3, v2 offset:{L_FLG}")
        for i in range(3):
            if i == 2 and n3: a("s_cmp_eq_u32 s73, 0", "s_cselect_b64 exec, -1, 0")
            for s in range(2): a(f"ds_read_b128 {vr(B+8*i+4*s,4)}, v{ARD} offset:{L_AGB + 48*ASTR*i + 64*s}")
        if n3: a("s_mov_b64 exec, -1")
        a("s_waitcnt lgkmcnt(6)", "v_readfirstlane_b32 s23, v3", "s_andn2_b32 s23, s23, s71", "s_cbranch_scc1 K2_BF")
        def epi_tile(i):
            o = O + 4 * i; t = TT + 4 * i
            if GR:
                a(f"v_pk_mul_f32 {vr(t,2)}, {vr(o,2)}, s[66:67]", f"v_pk_mul_f32 {vr(t+2,2)}, {vr(o+2,2)}, s[66:67]")
                for k in range(4): a(f"v_exp_f32 v{t+k}, v{t+k}")
                a(f"v_pk_add_f32 {vr(t,2)}, {vr(t,2)}, 1.0 op_sel_hi:[1,0]", f"v_pk_add_f32 {vr(t+2,2)}, {vr(t+2,2)}, 1.0 op_sel_hi:[1,0]")
            else:
                for k in range(4): a(f"v_exp_f32 v{t+k}, v{o+k}")
                a(f"v_pk_fma_f32 {vr(t,2)}, {vr(t,2)}, s[66:67], s[66:67]", f"v_pk_fma_f32 {vr(t+2,2)}, {vr(t+2,2)}, s[66:67], s[66:67]")
            for k in range(4): a(f"v_rcp_f32 v{t+k}, v{t+k}")
            a(f"v_pk_mul_f32 {vr(t,2)}, {vr(t,2)}, {vr(o,2)}", f"v_pk_mul_f32 {vr(t+2,2)}, {vr(t+2,2)}, {vr(o+2,2)}")
            a(f"v_cvt_pk_bf16_f32 v{o}, v{t}, v{t+1}", f"v_cvt_pk_bf16_f32 v{o+1}, v{t+2}, v{t+3}")
            a(f"buffer_store_dwordx2 {vr(o,2)}, v{OOF}, s[{SO}:{SO+3}], {('s74','s75','s22')[i]} offen {opt.get('oflag', '')}")
        def emf(i): a(f"s_waitcnt lgkmcnt({4-2*i})", mf16(O+4*i, WU2, B+8*i, ACC+4*i), mf16(O+4*i, WU2+4, B+8*i+4, O+4*i))
        if opt.get("es"): a("s_waitcnt lgkmcnt(0)", "s_memrealtime s[60:61]")
        for i in range(nt): emf(i)
        if n3:
            a("s_cmp_lg_u32 s73, 0", "s_cbranch_scc1 K2_N4"); emf(2); a.label("K2_N4")
        epi_tile(0); epi_tile(1)
        a("s_cmp_lg_u32 s73, 0", "s_cbranch_scc1 K2_FIN")
        epi_tile(2)
    a.label("K2_FIN")
    if opt.get("es"): a("s_memrealtime s[62:63]")
    if st.on: a("s_waitcnt vmcnt(0)")
    if opt.get("edly") is not None:
        a("s_cmp_lg_u32 s3, 0", "s_cbranch_scc1 K2_END", "s_memrealtime s[40:41]", "s_waitcnt lgkmcnt(0)")
        a.label("K2_DG")
        a("s_sleep 1", "s_memrealtime s[42:43]", "s_waitcnt lgkmcnt(0)", "s_sub_u32 s42, s42, s40", f"s_cmp_lt_u32 s42, {opt['edly']}", "s_cbranch_scc1 K2_DG")
    if opt.get("diag"):
        kind, M = opt["diag"]
        a("s_cmp_lg_u32 s3, 0", "s_cbranch_scc1 K2_END", "s_memrealtime s[40:41]", "s_lshl_b32 s42, s2, 10", f"s_add_u32 s42, s42, {WS_STAMP}", "s_add_u32 s44, s20, s42", "s_addc_u32 s45, s21, 0",
          "v_mov_b32 v2, 0", "global_load_dwordx4 v[8:11], v2, s[44:45]", "global_load_dwordx4 v[12:15], v2, s[44:45] offset:16", "s_waitcnt vmcnt(0) lgkmcnt(0)",
          "v_readfirstlane_b32 s46, v8", "v_readfirstlane_b32 s47, v13", "v_readfirstlane_b32 s48, v9", "v_readfirstlane_b32 s49, v10", "s_nop 4")
        a({"k1": "s_sub_u32 s46, s47, s46", "k12": "s_sub_u32 s46, s78, s46", "k2": "s_sub_u32 s46, s40, s78", "tot": "s_sub_u32 s46, s40, s46", "dst": "s_sub_u32 s46, s48, s46", "src": "s_sub_u32 s46, s49, s46",
           "kb3": "s_sub_u32 s46, s92, s80", "reg": "s_lshr_b32 s46, s77, 22\ns_sub_u32 s46, s46, 8", "xcc": "s_getreg_b32 s46, hwreg(HW_REG_XCC_ID)\ns_xor_b32 s46, s46, s2\ns_and_b32 s46, s46, 7", "ent": "s_sub_u32 s46, s80, s78"}.get(kind, "s_cmp_lg_u32 s2, 5\ns_cbranch_scc1 K2_END"))
        if kind.startswith("g"):
            a(f"s_add_u32 s44, s20, {WS_STAMP}", "s_addc_u32 s45, s21, 0", "v_lshlrev_b32 v2, 6, v0", "v_mov_b32 v16, 0", "v_mov_b32 v17, -1", "v_mov_b32 v18, -1", "v_mov_b32 v19, 0", "s_mov_b32 s47, 0")
            a.label("K2_DL")
            a("global_load_dword v8, v2, s[44:45]", f"global_load_dword v9, v2, s[44:45] offset:{opt.get('dk', 5)*4}", "v_add_u32 v2, 4096, v2", "s_waitcnt vmcnt(0)", "v_sub_u32 v8, s78, v8", "v_sub_u32 v9, s78, v9",
              "v_max_u32 v16, v16, v8", "v_min_u32 v17, v17, v8", "v_min_u32 v18, v18, v9", "v_max_u32 v19, v19, v9", "s_add_u32 s47, s47, 1", "s_cmp_lt_u32 s47, 63", "s_cbranch_scc1 K2_DL")
            a("s_mov_b32 s47, 0", "s_mov_b32 s50, 0", "s_mov_b32 s51, -1", "s_mov_b32 s52, -1", "s_mov_b32 s53, 0")
            a.label("K2_DM")
            a("v_readlane_b32 s54, v16, s47", "v_readlane_b32 s55, v17, s47", "v_readlane_b32 s56, v18, s47", "v_readlane_b32 s57, v19, s47", "s_max_u32 s50, s50, s54", "s_min_u32 s51, s51, s55", "s_min_u32 s52, s52, s56", "s_max_u32 s53, s53, s57",
              "s_add_u32 s47, s47, 1", "s_cmp_lt_u32 s47, 64", "s_cbranch_scc1 K2_DM")
            a({"gskew": "s_sub_u32 s46, s50, s51", "gk1": "s_sub_u32 s46, s50, s52", "ggap": "s_mov_b32 s46, s52", "g0": "s_mov_b32 s46, 0", "gfirst": "s_sub_u32 s46, s50, s53"}[kind])
            a("s_memrealtime s[40:41]", "s_waitcnt lgkmcnt(0)")
        if opt.get("thr"): a(f"s_cmp_gt_u32 s46, {opt['thr']}", f"s_cselect_b32 s46, {M}, 0")
        else: a("s_min_u32 s46, s46, 4000", f"s_mul_i32 s46, s46, {M}")
        a.label("K2_DG")
        a("s_sleep 2", "s_memrealtime s[42:43]", "s_waitcnt lgkmcnt(0)", "s_sub_u32 s42, s42, s40", "s_cmp_lt_u32 s42, s46", "s_cbranch_scc1 K2_DG")
    else: st.flush(20, 3, 2, 3)
    a.label("K2_END")
    a("s_endpgm")

    if N4:
        a.label("K2_QD")
        for i in range(16): a(f"v_add_f32_dpp v{NN+i}, v{NN+i}, v{NN+i} row_shl:8 row_mask:0x8 bank_mask:0x1")
        a("s_branch K2_QDR")
    a.label("K2_G0R")
    a(f"v_mov_b32 v{IP}, v{EX+3}", *gather(0, IP), "s_branch K2_G0D")
    a.label("K2_DONE0")
    a("s_waitcnt vmcnt(0) lgkmcnt(0)", "s_branch K2_DONE")
    a.label("K2_MARK")
    T = Z1
    a("s_mov_b64 exec, vcc", f"v_mov_b32 v{T}, 0", f"v_mov_b32 v{T+1}, 1", f"ds_add_rtn_u32 v{T}, v{T}, v{T+1} offset:{L_OVC}", "s_waitcnt lgkmcnt(0)",
      f"v_and_b32 v{T}, 255, v{T}", f"v_lshlrev_b32 v{T}, 2, v{T}", f"ds_write_b32 v{T}, v0 offset:{L_OVL}", "s_mov_b64 exec, -1", "s_branch K2_MR")

    SD, SS, SE = 40, 44, 48
    a.label("K2_RESCAN")
    srd(a, SD, 10, 11, E * 4); srd(a, SS, 8, 9, E * 4); srd(a, SE, 6, 7, E * 2)
    a("s_mov_b32 s52, 0", f"s_mul_i32 s53, {BK}, {NB}", "s_min_u32 s23, s23, 256", "s_waitcnt lgkmcnt(0)")
    a.label("K2_RS1")
    T = Z1 + 8
    a("s_lshl_b32 s54, s52, 2", f"v_mov_b32 v{T}, s54", f"ds_read_b32 v{T}, v{T} offset:{L_OVL}", "s_waitcnt lgkmcnt(0)", f"v_readfirstlane_b32 s54, v{T}",
      "s_and_b32 s55, s54, 31", "s_lshl_b32 s55, s55, 3", "s_lshr_b32 s54, s54, 5", "s_add_u32 s54, s54, s55",
      f"s_mul_i32 s54, s54, {CH}", f"s_sub_u32 s55, {E}, s54", f"s_min_u32 s55, s55, {CH}",
      f"v_mov_b32 v{T}, v0")
    a.label("K2_RS2")
    a(f"v_add_u32 v{T+1}, s54, v{T}", f"v_lshlrev_b32 v{T+2}, 1, v{T+1}", f"v_lshlrev_b32 v{T+1}, 2, v{T+1}",
      f"buffer_load_dword v{T+3}, v{T+1}, s[{SD}:{SD+3}], 0 offen", f"buffer_load_dword v{T+4}, v{T+1}, s[{SS}:{SS+3}], 0 offen",
      f"buffer_load_ushort v{T+5}, v{T+2}, s[{SE}:{SE+3}], 0 offen", "s_waitcnt vmcnt(0)",
      f"v_subrev_u32 v{T+3}, s53, v{T+3}", f"v_cmp_gt_u32 vcc, {NB}, v{T+3}", f"v_cmp_gt_u32 s[56:57], s55, v{T}", "s_and_b64 exec, vcc, s[56:57]",
      f"v_lshlrev_b32 v{T+3}, 2, v{T+3}", f"ds_add_rtn_u32 v{T+3}, v{T+3}, v5 offset:{L_CTR}", f"v_lshl_or_b32 v{T+4}, v{T+5}, 16, v{T+4}",
      "s_waitcnt lgkmcnt(0)", f"v_min_u32 v{T+3}, s65, v{T+3}", f"ds_write_b32 v{T+3}, v{T+4}", "s_mov_b64 exec, -1",
      f"v_add_u32 v{T}, 768, v{T}", f"v_cmp_gt_u32 vcc, s55, v{T}", "s_cbranch_vccnz K2_RS2")
    a("s_add_u32 s52, s52, 1", "s_cmp_lt_u32 s52, s23", "s_cbranch_scc1 K2_RS1")
    a("s_mov_b32 s68, -1", "s_waitcnt lgkmcnt(0)", "s_barrier", "s_cmp_eq_u32 s73, 0", "s_cbranch_scc1 K2_AB1T", "s_branch K2_AB1")

    a.label("K2_BF")
    T = Z0
    a("s_waitcnt vmcnt(0) lgkmcnt(0)")
    srd(a, SD, 10, 11, E * 4); srd(a, SS, 8, 9, E * 4); srd(a, SE, 6, 7, E * 2); srd(a, 52, 12, 13, 129 * 128)
    a(f"s_mov_b32 s{SX}, s{SPT}", f"s_and_b32 s{SX+1}, s{SPT+1}, 0xffff", f"s_mov_b32 s{SX+2}, {N*128}", f"s_mov_b32 s{SX+3}, 0x20000")
    for i in range(4): a(f"v_mov_b32 v{T+i}, 0")
    a(f"v_lshlrev_b32 v{T+4}, 4, v0", f"v_add_u32 v{T+4}, {L_ELL}, v{T+4}")
    for i in range(3): a(f"ds_write_b128 v{T+4}, {vr(T,4)} offset:{12288*i}")
    LN, F4, F2, PO, W3 = T + 4, T + 5, T + 6, T + 7, T + 8
    a(f"v_and_b32 v{LN}, 63, v0", f"v_lshlrev_b32 v{F4}, 2, v{LN}", f"v_lshlrev_b32 v{F2}, 1, v{LN}",
      f"v_and_b32 v{PO}, 8, v{LN}", f"v_lshlrev_b32 v{PO}, 3, v{PO}", f"v_and_b32 v{T}, 48, v{LN}", f"v_add_u32 v{PO}, v{PO}, v{T}",
      f"v_and_b32 v{T}, 7, v{LN}", f"v_lshl_add_u32 v{PO}, v{T}, 1, v{PO}",
      "s_movk_i32 s56, 16384", f"buffer_load_ushort v{W3}, v{F2}, s[52:55], s56 offen", "s_waitcnt vmcnt(0) lgkmcnt(0)",
      f"v_lshlrev_b32 v{W3}, 16, v{W3}", f"v_mul_f32 v{W3}, s66, v{W3}",
      f"s_mul_i32 s57, {BK}, {NB}", "s_mov_b32 s56, s3", "s_barrier")
    a.label("K2_BF1")
    DV, SV, EV = T + 9, T + 10, T + 11
    a("s_lshl_b32 s58, s56, 8", "s_lshl_b32 s59, s56, 7",
      f"buffer_load_dword v{DV}, v{F4}, s[{SD}:{SD+3}], s58 offen", "s_waitcnt vmcnt(0)",
      f"v_subrev_u32 v{DV}, s57, v{DV}", f"v_cmp_gt_u32 vcc, {NB}, v{DV}", "s_cbranch_vccz K2_BF3",
      f"buffer_load_dword v{SV}, v{F4}, s[{SS}:{SS+3}], s58 offen", f"buffer_load_ushort v{EV}, v{F2}, s[{SE}:{SE+3}], s59 offen",
      "s_mov_b64 s[60:61], vcc", "s_waitcnt vmcnt(0)")
    a.label("K2_BF2")
    a("s_ff1_i32_b64 s58, s[60:61]", "s_bitset0_b64 s[60:61], s58",
      f"v_readlane_b32 s59, v{SV}, s58", f"v_readlane_b32 s62, v{DV}, s58", f"v_readlane_b32 s63, v{EV}, s58",
      "s_min_u32 s59, s59, %d" % (N - 1), "s_lshl_b32 s59, s59, 7", f"buffer_load_ushort v{T}, v{PO}, s[{SX}:{SX+3}], s59 offen",
      f"s_mul_i32 s58, s62, {QSTR}", f"v_add_u32 v{T+1}, s58, v{F4}", f"ds_read_b32 v{T+1}, v{T+1} offset:{L_QS}",
      "s_lshl_b32 s63, s63, 16", "s_lshl_b32 s62, s62, 8", f"s_add_u32 s62, s62, {L_ELL}", f"v_add_u32 v{T+2}, s62, v{F4}",
      "s_waitcnt vmcnt(0) lgkmcnt(0)",
      f"v_lshlrev_b32 v{T}, 16, v{T}", f"v_add_f32 v{T}, v{T}, v{T+1}", f"v_fma_f32 v{T}, s63, v{W3}, v{T}",
      f"v_exp_f32 v{T+1}, v{T}", f"v_add_f32 v{T+1}, 1.0, v{T+1}", f"v_rcp_f32 v{T+1}, v{T+1}", *([] if EP and not EP & 4 else [f"v_mul_f32 v{T}, {NLN2:#x}, v{T}"]), f"v_mul_f32 v{T}, v{T}, v{T+1}",
      f"ds_add_f32 v{T+2}, v{T}", "s_cmp_lg_u64 s[60:61], 0", "s_cbranch_scc1 K2_BF2")
    a.label("K2_BF3")
    a("s_add_u32 s56, s56, 12", f"s_cmp_lt_u32 s56, {E//64}", "s_cbranch_scc1 K2_BF1")
    a("s_waitcnt lgkmcnt(0)", "s_barrier", f"v_mov_b32 v{T+4}, v0")
    a.label("K2_BF4")
    a(f"v_lshlrev_b32 v{T+5}, 3, v{T+4}", f"v_add_u32 v{T+5}, {L_ELL}, v{T+5}", f"ds_read_b64 {vr(T,2)}, v{T+5}",
      f"v_lshrrev_b32 v{T+5}, 5, v{T+4}", f"v_mul_u32_u24 v{T+5}, {ASTR}, v{T+5}", f"v_and_b32 v{T+6}, 31, v{T+4}", f"v_lshl_add_u32 v{T+5}, v{T+6}, 2, v{T+5}",
      "s_waitcnt lgkmcnt(0)", f"v_cvt_pk_bf16_f32 v{T}, v{T}, v{T+1}", f"ds_write_b32 v{T+5}, v{T} offset:{L_AGB}",
      f"v_add_u32 v{T+4}, 768, v{T+4}", f"v_cmpx_gt_u32 vcc, {NB*32}, v{T+4}", "s_cbranch_execnz K2_BF4")
    a("s_mov_b64 exec, -1", "s_mov_b32 s71, -1", "s_waitcnt lgkmcnt(0)", "s_barrier", "s_branch K2_EPI")
    return a.lines

def kd(name, vg, sg=102):
    return f""".amdhsa_kernel {name}
  .amdhsa_next_free_vgpr {vg}
  .amdhsa_next_free_sgpr {sg}
  .amdhsa_accum_offset {vg}
  .amdhsa_group_segment_fixed_size 0
  .amdhsa_kernarg_size 72
  .amdhsa_user_sgpr_count 2
  .amdhsa_user_sgpr_kernarg_segment_ptr 1
  .amdhsa_system_sgpr_workgroup_id_x 1
.end_amdhsa_kernel"""

def build(opt=None):
    opt = opt or {}
    out = ["; mpnn edge MLP: K1 bins edges by destination bucket and builds the P' table, K2 aggregates and updates",
           f"; @launch kernel=mpnn_bin_kernel grid=(256,1,1) block=(1024,1,1) lds={K1_LDS}",
           f"; @launch kernel=mpnn_msg_kernel grid=(256,1,1) block=(768,1,1) lds={K2_LDS}",
           '.amdgcn_target "amdgcn-amd-amdhsa--gfx950"', ".text"]
    for name, fn in (("mpnn_bin_kernel", gen_k1), ("mpnn_msg_kernel", gen_k2)):
        lines, nn = fix_hazards(fn(opt), verbose=opt.get("verbose"))
        out += [f".globl {name}", ".p2align 8", f".type {name},@function"] + lines
    out += ['.section .rodata,"a"', ".p2align 6", kd("mpnn_bin_kernel", 128), ".p2align 6", kd("mpnn_msg_kernel", 168)]
    return "\n".join(out) + "\n"

if __name__ == "__main__":
    import argparse
    ap = argparse.ArgumentParser(); ap.add_argument("-o", default="standalone__mpnn_edge_mlp__graph.s")
    ap.add_argument("--stamp", type=int, default=0); ap.add_argument("-v", action="store_true"); ap.add_argument("--opt", default="{}")
    g = ap.parse_args()
    open(g.o, "w").write(build({"stamp": g.stamp, "verbose": g.v, **eval(g.opt)}))
```

```python
import sys, struct, math
sys.path.insert(0, "gen")
from asmlib import *

N = 25000; E = 800000; NB = 98; CH = 3128; CAP = 72
WS_RA = 0x400000; WS_DA = 0x800000; WS_RB = 0xA00000; WS_WF = 0x380000; WS_END = WS_RB + 0x800000
MARK = 0xFEFEFEFE
WS_PR = 0x2000000; WS_HDR = WS_WF + 0x8000
WS_STAMP = 0x1400000
f2u = lambda f: struct.unpack("<I", struct.pack("<f", f))[0]
NLOG2E = f2u(-1.4426950408889634); NLN2 = f2u(-0.6931471805599453)
NTILE = (N + 15) // 16

def mf16(d, a, b, c): return f"v_mfma_f32_16x16x32_bf16 {vr(d,4)}, {vr(a,4)}, {vr(b,4)}, {c if isinstance(c,str) else vr(c,4)}"
def mf32(d, a, b, c): return f"v_mfma_f32_32x32x16_bf16 {vr(d,16)}, {vr(a,4)}, {vr(b,4)}, {vr(c,16)}"

class Stamps:
    def __init__(self, a, on, base, kidx, nw): self.a = a; self.on = on; self.base = base; self.k = 0; self.kidx = kidx; self.nw = nw
    def __call__(self):
        if not self.on: return
        r = self.base + 2 * self.k; self.k += 1
        if self.on == 3 and (self.k - 1) not in ((0, 5), (0, 1, 7, 8))[self.kidx]: return
        self.a(f"s_waitcnt lgkmcnt(0)", f"s_memrealtime s[{r}:{r+1}]", "s_waitcnt lgkmcnt(0)")
    def early(self):
        if not self.on: return
        r = self.base + 2 * self.k; self.k += 1
        self.a(f"s_memrealtime s[{r}:{r+1}]")
    def flush(self, ws, wave, t0, t1):
        if not self.on: return
        a = self.a
        self()
        a("s_mov_b64 exec, -1")
        a(f"v_mov_b32 v{t0}, 0")
        for k in range(self.k): a(f"v_writelane_b32 v{t0}, s{self.base+2*k}, {k}")
        if self.kidx == 1: a(f"v_writelane_b32 v{t0}, s60, 9", f"v_writelane_b32 v{t0}, s62, 10")
        if self.kidx == 1: a(f"v_writelane_b32 v{t0}, s98, 13", f"v_writelane_b32 v{t0}, s96, 12", f"v_writelane_b32 v{t0}, s97, 11", f"v_writelane_b32 v{t0}, s69, 15", f"s_getreg_b32 s69, hwreg(HW_REG_HW_ID)", f"v_writelane_b32 v{t0}, s69, 14")
        if self.on == 2 and self.kidx == 1:
            b = self.base
            a(f"s_add_u32 s{b}, s2, s{wave}", f"s_cmp_lg_u32 s{b}, 0", f"s_cbranch_scc1 STK{self.kidx}",
              f"s_load_dwordx2 s[{b}:{b+1}], s[0:1], 56", f"v_and_b32 v{t1}, 63, v0", f"v_lshlrev_b32 v{t1}, 2, v{t1}",
              f"v_add_u32 v{t1+1}, {WS_STAMP}, v{t1}", f"global_load_dword v{t1+1}, v{t1+1}, s[{ws}:{ws+1}]",
              "s_waitcnt vmcnt(0) lgkmcnt(0)", f"s_mov_b64 exec, 0x3ff", f"global_store_dword v{t1}, v{t0}, s[{b}:{b+1}] offset:24",
              f"s_mov_b64 exec, 0x3f", f"global_store_dword v{t1}, v{t1+1}, s[{b}:{b+1}]")
            a.label(f"STK{self.kidx}")
            return
        a(f"s_mul_i32 s{self.base}, s2, {self.nw}", f"s_add_u32 s{self.base}, s{self.base}, s{wave}", f"s_lshl_b32 s{self.base}, s{self.base}, 6",
          f"s_add_u32 s{self.base}, s{self.base}, {WS_STAMP + self.kidx * 0x100000}",
          f"v_and_b32 v{t1}, 63, v0", f"v_lshlrev_b32 v{t1}, 2, v{t1}", f"v_add_u32 v{t1}, s{self.base}, v{t1}",
          "s_mov_b64 exec, 0xffff", f"global_store_dword v{t1}, v{t0}, s[{ws}:{ws+1}]")

def srd(a, r, lo, hi, num, stride=0):
    a(f"s_mov_b32 s{r}, s{lo}")
    if stride: a(f"s_or_b32 s{r+1}, s{hi}, {stride << 16:#x}")
    else: a(f"s_mov_b32 s{r+1}, s{hi}")
    a(f"s_mov_b32 s{r+2}, {num}", f"s_mov_b32 s{r+3}, 0x20000")

K1_DA = 32768; K1_CNT = 40960; K1_XS = K1_CNT + 1024; K1_LDS = K1_XS + 3 * 6144
def gen_k1(opt):
    a = Asm(); st = Stamps(a, opt.get("stamp"), 70, 0, 16)
    a.label("mpnn_bin_kernel")
    if opt.get("cpf") == 2:
        a("s_getpc_b64 s[48:49]", "v_lshlrev_b32 v54, 7, v0", "v_min_u32 v54, K2_END-mpnn_bin_kernel-4, v54", "global_load_dword v55, v54, s[48:49]")
    a("s_cmp_ge_u32 s2, 256", "s_cbranch_scc1 K1_END")
    if opt.get("dly"):
        a("s_memrealtime s[4:5]", "s_waitcnt lgkmcnt(0)")
        a.label("K1_DL")
        a("s_sleep 1", "s_memrealtime s[6:7]", "s_waitcnt lgkmcnt(0)", "s_sub_u32 s6, s6, s4", f"s_cmp_lt_u32 s6, {opt['dly']}", "s_cbranch_scc1 K1_DL")
    a("s_load_dwordx8 s[4:11], s[0:1], 0", "s_load_dwordx4 s[12:15], s[0:1], 32", "s_load_dwordx2 s[16:17], s[0:1], 64")
    if opt.get("pw0"): a(f"v_add_u32 v0, {64*opt['pw0']}, v0", "v_and_b32 v0, 1023, v0")
    a("v_lshrrev_b32 v1, 6, v0", "v_lshlrev_b32 v7, 4, v0", "v_readfirstlane_b32 s3, v1", "v_lshlrev_b32 v4, 3, v0")
    a("v_mov_b32 v46, -1", "v_mov_b32 v47, -1", f"ds_write_b64 v4, v[46:47] offset:{K1_DA}",
      "v_and_b32 v45, 255, v0", "v_lshlrev_b32 v44, 2, v45", "v_lshlrev_b32 v45, 5, v45", f"ds_write_b32 v44, v45 offset:{K1_CNT}")
    a("s_and_b32 s40, s2, 7", "s_lshr_b32 s41, s2, 3")
    a(f"s_mov_b32 s34, {WS_END}", "s_mov_b32 s35, 0x20000")
    CO = 44
    def co_addr():
        IL = opt.get("il", 0); RBS = opt.get("rbs", 7)
        a("s_lshl_b32 s42, s40, 5", "s_add_u32 s42, s42, s41",
          "s_lshl_b32 s43, s42, 5", f"s_add_u32 s43, s43, {WS_RA + 16384 if IL else WS_DA}", f"s_lshl_b32 s44, s42, {RBS}", "s_lshl_b32 s42, s42, 6", f"s_add_u32 s44, s44, {WS_RA + 24576 if IL else WS_RB}", f"s_add_u32 s42, s42, {WS_RA}")
        a(f"v_lshrrev_b32 v{CO+6}, 2, v0", f"v_and_b32 v{CO+5}, 3, v0")
        if IL: a(f"v_mul_u32_u24 v{CO}, {IL}, v{CO+6}", f"v_lshl_add_u32 v{CO+1}, v{CO+5}, 3, v{CO}", f"v_lshl_add_u32 v{CO}, v{CO+5}, 4, v{CO}", f"v_mov_b32 v{CO+8}, v{CO}")
        else: a(f"v_lshlrev_b32 v{CO+1}, 13, v{CO+6}", f"v_lshl_add_u32 v{CO+1}, v{CO+5}, 3, v{CO+1}", f"v_lshlrev_b32 v{CO}, 1, v{CO+1}", f"v_lshl_add_u32 v{CO+8}, v{CO+6}, 14, v{CO}")
        a(
          f"v_lshlrev_b32 v{CO+2}, 7, v{CO+6}", f"v_lshl_add_u32 v{CO+2}, v{CO+5}, 4, v{CO+2}", f"v_and_b32 v{CO+3}, 64, v0", f"v_add_u32 v{CO+2}, v{CO+2}, v{CO+3}", f"v_xor_b32 v{CO+3}, 64, v{CO+2}",
          f"v_bfe_u32 v{CO+4}, v0, 4, 2", f"v_xor_b32 v{CO+5}, v{CO+5}, v{CO+4}", f"v_lshlrev_b32 v{CO+6}, 5, v{CO+6}", f"v_lshl_add_u32 v{CO+5}, v{CO+5}, 2, v{CO+6}", f"v_add_u32 v{CO+5}, 16, v{CO+5}",
          *([f"v_add_u32 v{CO+5}, 16, v{CO+6}"] if opt.get("bfull", 1) else []), f"v_add_u32 v{CO+6}, 32, v{CO+6}", f"v_and_b32 v{CO+4}, 0x3fc, v0", f"v_lshlrev_b32 v{CO+7}, 3, v0")
    a("s_cmp_ge_u32 s3, 13", "s_cbranch_scc1 K1_P")
    DST, SRC, EE, B, DL, S, LIM, REC = 8, 12, 16, 20, 24, 28, 32, 36
    a(f"s_mul_i32 s18, s2, {CH}", f"s_sub_u32 s19, {E}, s18", f"s_min_u32 s19, s19, {CH}", "s_lshl_b32 s36, s18, 2", "s_lshl_b32 s37, s18, 1")
    for r, n in ((20, E * 4), (24, E * 4), (28, E * 2)): a(f"s_mov_b32 s{r+2}, {n}", f"s_mov_b32 s{r+3}, 0x20000")
    a("v_lshlrev_b32 v1, 2, v0", "v_cmp_gt_u32 vcc, s19, v1")
    if opt.get("cpf") == 1:
        a("s_cmp_lg_u32 s3, 12", "s_cbranch_scc1 K1_NPF", "s_getpc_b64 s[48:49]")
        a.label("K1_PC")
        a("s_add_u32 s48, s48, mpnn_msg_kernel-K1_PC", "s_addc_u32 s49, s49, 0", "v_and_b32 v54, 63, v0", "v_lshlrev_b32 v54, 7, v54",
          "v_min_u32 v54, K2_END-mpnn_msg_kernel, v54", "global_load_dword v55, v54, s[48:49]")
        a.label("K1_NPF")
    a("s_waitcnt lgkmcnt(0)")
    st()
    a("s_mov_b32 s20, s10", "s_mov_b32 s21, s11", f"buffer_load_dwordx4 {vr(DST,4)}, v7, s[20:23], s36 offen {opt.get('lflag', '')}")
    a("s_mov_b32 s24, s8", "s_mov_b32 s25, s9", "s_mov_b32 s28, s6", "s_mov_b32 s29, s7", "s_mov_b32 s32, s16", "s_mov_b32 s33, s17")
    a("s_barrier")
    a(f"buffer_load_dwordx4 {vr(SRC,4)}, v7, s[24:27], s36 offen {opt.get('lflag', '')}", f"buffer_load_dwordx2 {vr(EE,2)}, v4, s[28:31], s37 offen {opt.get('lflag', '')}")
    co_addr()
    if opt.get("tlb"):
        a("s_cmp_lg_u32 s3, 12", "s_cbranch_scc1 K1_NT", "v_and_b32 v54, 63, v0", f"v_mul_u32_u24 v54, {opt['tlb']}, v54", "buffer_load_dword v55, v54, s[32:35], 0 offen", "s_waitcnt vmcnt(1)")
        a.label("K1_NT")
    a("v_mov_b32 v6, 1", "s_movk_i32 s38, -98", "s_mov_b32 s39, 0xffff0000")
    a("s_mov_b64 exec, vcc", "s_cbranch_execz K1_B1")
    a("s_waitcnt vmcnt(2)")
    st()
    for i in range(4):
        a(f"v_mul_u32_u24 v{B+i}, 21400, v{DST+i}", f"v_lshrrev_b32 v{B+i}, 21, v{B+i}", f"v_lshlrev_b32 v{S+i}, 2, v{B+i}",
          f"ds_add_rtn_u32 v{S+i}, v{S+i}, v6 offset:{K1_CNT}")
    for i in range(4): a(f"v_mad_i32_i24 v{DL+i}, v{B+i}, s38, v{DST+i}", f"v_lshl_or_b32 v{LIM+i}, v{B+i}, 5, 31", f"v_and_b32 v{B+i}, 31, v{B+i}")
    for i in range(4):
        a(f"s_waitcnt lgkmcnt(3)", f"v_min_u32 v{S+i}, v{S+i}, v{LIM+i}", f"v_xor_b32 v{S+i}, v{S+i}, v{B+i}", f"ds_write_b8 v{S+i}, v{DL+i} offset:{K1_DA}")
    for i in range(4): a(f"v_lshlrev_b32 v{LIM+i}, 2, v{S+i}")
    a("s_waitcnt vmcnt(0)")
    st()
    if opt.get("smask"):
        for i in range(4): a(f"v_and_b32 v{SRC+i}, {opt['smask']}, v{SRC+i}")
    for i in range(4):
        if i % 2 == 0: a(f"v_lshl_or_b32 v{REC+i}, v{EE+i//2}, 16, v{SRC+i}")
        else: a(f"v_and_or_b32 v{REC+i}, v{EE+i//2}, s39, v{SRC+i}")
        a(f"ds_write_b32 v{LIM+i}, v{REC+i}")
    a.label("K1_B1")
    a("s_mov_b64 exec, -1")
    st.k = 3; st()
    a("s_waitcnt lgkmcnt(0)", "s_barrier")
    st()
    a(f"ds_read_b128 v[8:11], v{CO+2}", f"ds_read_b32 v18, v{CO+4} offset:{K1_CNT}", f"ds_read_b64 v[16:17], v{CO+7} offset:{K1_DA}", f"ds_read_b128 v[12:15], v{CO+3}")
    if "r" in opt.get("x1", ""): a("s_lshl_b32 s42, s2, 14", f"s_add_u32 s42, s42, {WS_RA}", f"v_lshlrev_b32 v{CO}, 4, v0")
    a("s_waitcnt lgkmcnt(3)")
    if "a" not in opt.get("x1", ""): a(f"buffer_store_dwordx4 v[8:11], v{CO}, s[32:35], s42 offen {opt.get('dflag', '')}")
    a("s_waitcnt lgkmcnt(1)", f"v_cmp_gt_u32 vcc, v18, v{CO+6}", f"v_cmp_gt_u32 s[46:47], v18, v{CO+5}", "s_cbranch_vccnz K1_OV")
    a.label("K1_OVR")
    x = opt.get("x1", "")
    if "c" in x:
        a("s_lshl_b32 s43, s2, 13", f"s_add_u32 s43, s43, {WS_DA}", f"buffer_store_dwordx2 v[16:17], v{CO+7}, s[32:35], s43 offen {opt.get('dflag', '')}")
    elif "h" in x:
        a(f"s_sub_u32 s43, s43, {WS_DA}", "s_lshr_b32 s43, s43, 1", f"s_add_u32 s43, s43, {WS_DA}", f"v_lshrrev_b32 v{CO+1}, 1, v{CO+1}", f"buffer_store_dword v16, v{CO+1}, s[32:35], s43 offen {opt.get('dflag', '')}")
    elif "d" not in x: a(f"buffer_store_dwordx2 v[16:17], v{CO+1}, s[32:35], s43 offen {opt.get('dflag', '')}")
    if "b" not in x: a("s_mov_b64 exec, s[46:47]", "s_waitcnt lgkmcnt(0)", f"buffer_store_dwordx4 v[12:15], v{CO+8}, s[32:35], s44 offen", *([] if opt.get("bhalf", 1) else [f"buffer_store_dwordx4 v[8:11], v{CO+8}, s[32:35], s44 offen offset:64"]))
    if st.on or opt.get("kw"): a("s_waitcnt vmcnt(0)")
    st.flush(16, 3, 20, 21)
    if opt.get("kp"):
        a("s_mov_b64 exec, -1", f"s_mul_i32 s45, s41, {782*128}", "v_lshlrev_b32 v60, 7, v0", f"v_cmp_gt_u32 vcc, {opt['kp']}, v0", "s_and_b64 exec, exec, vcc", "s_cbranch_execz K1_END", "buffer_load_dword v61, v60, s[32:35], s45 offen")
    a.label("K1_END")
    a("s_endpgm")
    a.label("K1_OV")
    a(f"v_mov_b32 v18, {MARK:#x}", "v_cndmask_b32 v16, v16, v18, vcc", "v_cndmask_b32 v17, v17, v18, vcc", "s_branch K1_OVR")
    W, A, X, D, O, FR = 8, 40, 72, 96, 112, 120
    a.label("K1_P")
    a("v_and_b32 v1, 15, v0", "v_bfe_u32 v2, v0, 4, 2",
      "v_lshlrev_b32 v3, 10, v2", "v_lshl_add_u32 v5, v1, 1, v3", "v_lshl_add_u32 v3, v1, 3, v3",
      "v_lshlrev_b32 v4, 7, v1", "v_lshl_add_u32 v4, v2, 4, v4")
    PC = opt.get("pc", 0)
    if PC & 1:
        a("v_bfe_u32 v6, v0, 1, 2", "v_lshlrev_b32 v3, 10, v2", "v_lshl_add_u32 v3, v6, 5, v3", "v_and_b32 v6, 8, v0", "v_lshl_add_u32 v3, v6, 1, v3", "v_and_b32 v6, 1, v0", "v_lshl_add_u32 v3, v6, 3, v3",
          "v_lshlrev_b32 v7, 9, v2", "v_lshl_add_u32 v7, v1, 3, v7")
    if PC & 2:
        a("v_and_b32 v55, 63, v0", "v_xor_b32 v55, v55, v2", "v_lshlrev_b32 v55, 4, v55", "v_xor_b32 v56, 64, v55",
          "s_mul_i32 s52, s3, 6144", f"s_add_u32 s52, s52, {K1_XS - 13*6144}",
          "v_lshrrev_b32 v4, 1, v1", "v_xor_b32 v4, v4, v2", "v_lshlrev_b32 v4, 4, v4", "v_lshl_add_u32 v4, v1, 7, v4", "v_add_u32 v4, s52, v4")
    a("s_mul_i32 s18, s41, 3", "s_add_u32 s18, s18, s3", "s_sub_u32 s18, s18, 13",
      "s_mul_i32 s36, s40, 196", "s_add_u32 s36, s36, s18",
      "s_lshl_b32 s36, s36, 11", f"s_add_u32 s37, s36, {96*2048}", f"s_add_u32 s38, s36, {192*2048}", "s_movk_i32 s39, 4096")
    for r, n in ((20, 129 * 128), (24, N * 128), (28, N * 128), (48, 128 * 128)): a(f"s_mov_b32 s{r+2}, {n}", f"s_mov_b32 s{r+3}, 0x20000")
    a("s_sub_u32 s19, s2, 16", "s_cmp_eq_u32 s3, 15", "s_cselect_b32 s19, s19, 100")
    a("s_waitcnt lgkmcnt(0)")
    st.k = 0; st()
    a("s_mov_b32 s24, s4", "s_mov_b32 s25, s5", "s_mov_b32 s20, s12", "s_mov_b32 s21, s13")
    a("s_cmp_le_u32 s19, 24", "s_cbranch_scc1 K1_FL")
    a.label("K1_FLR")
    def xload(i):
        if PC & 2: a(f"s_add_u32 m0, s52, {2048*i}", f"buffer_load_dwordx4 v55, s[24:27], s{36+i} offen lds", f"buffer_load_dwordx4 v56, s[24:27], s{36+i} offen offset:1024 lds")
        else:
            for s in range(2): a(f"buffer_load_dwordx4 {vr(X+8*i+4*s,4)}, v4, s[24:27], s{36+i} offen offset:{64*s} {opt.get('xflag', '')}")
    def xread(i):
        if PC & 2: a(f"ds_read_b128 {vr(X+8*i,4)}, v4 offset:{2048*i}", f"ds_read_b128 {vr(X+8*i+4,4)}, v3 offset:{2048*i}")
    for i in range(2): xload(i)
    for s in range(2):
        for kk in range(8): a(f"buffer_load_dwordx2 {vr(W+16*s+2*kk,2)}, v3, s[20:23], {'s39' if s else '0'} offen offset:{128*kk}")
    a("s_cmp_lt_u32 s18, 4", "s_cselect_b64 exec, -1, 0")
    xload(2)
    a("s_mov_b64 exec, -1")
    assert PC != 2
    if PC & 2: a("v_xor_b32 v3, 64, v4")
    a("s_barrier")
    if opt.get("rot"):
        a(*(["s_memrealtime s[52:53]", "s_waitcnt lgkmcnt(0)", "s_lshr_b32 s52, s52, 12"] if opt.get("trot") else ["s_lshr_b32 s52, s0, 4"]), "s_mul_i32 s52, s52, 0x9e3779b1", f"s_lshr_b32 s52, s52, {32 - opt['rot']}", "s_lshl_b32 s52, s52, 22", f"s_add_u32 s53, s52, {WS_PR}",
          "s_add_u32 s28, s16, s53", "s_addc_u32 s29, s17, 0", "s_mov_b32 s32, s16", "s_mov_b32 s33, s17")
    else: a("s_mov_b32 s28, s16", "s_mov_b32 s29, s17", "s_mov_b32 s32, s16", "s_mov_b32 s33, s17")
    a("s_mov_b32 s44, 0x05040100", "s_mov_b32 s45, 0x07060302", f"s_mov_b32 s46, {NLOG2E:#x}", f"s_mov_b32 s47, {NLOG2E:#x}")
    a("s_waitcnt vmcnt(2)")
    st()
    xread(0); xread(1)
    for tau in range(4):
        for s in range(2):
            for rr in range(4):
                a(f"v_perm_b32 v{A+8*tau+4*s+rr}, v{W+16*s+2*(2*rr+1)+tau//2}, v{W+16*s+2*(2*rr)+tau//2}, s{44+tau%2}")
    for i in range(3):
        if i == 2:
            a(f"s_cmp_ge_u32 s18, 4", "s_cbranch_scc1 K1_PD", "s_waitcnt vmcnt(%d)" % (8 if PC & 1 else 4))
            xread(2)
        if PC & 2 and i != 1: a("s_waitcnt lgkmcnt(0)")
        sw = (lambda w, x: (x, w)) if PC & 1 else (lambda w, x: (w, x))
        for tau in range(4): a(mf16(D+4*tau, *sw(A+8*tau, X+8*i), "0"))
        for tau in range(4): a(mf16(D+4*tau, *sw(A+8*tau+4, X+8*i+4), D+4*tau))
        for k in range(0, 16, 2): a(f"v_pk_mul_f32 {vr(D+k,2)}, {vr(D+k,2)}, s[46:47]")
        for r in range(4):
            for h in range(2): a(f"v_cvt_pk_bf16_f32 v{O+2*r+h}, v{D+4*(2*h)+r}, v{D+4*(2*h+1)+r}")
        if "p" in opt.get("x1", ""): pass
        elif PC & 1:
            for r in range(4): a(f"buffer_store_dwordx2 {vr(O+2*r,2)}, v7, s[28:31], s{36+i} offen offset:{128*r} {opt.get('pflag', '')}")
        elif opt.get("pfull"): a("v_and_b32 v6, 63, v0", "v_lshlrev_b32 v6, 4, v6", f"buffer_store_dwordx4 {vr(O,4)}, v6, s[28:31], s{36+i} offen {opt.get('pflag', '')}", f"buffer_store_dwordx4 {vr(O+4,4)}, v6, s[28:31], s{36+i} offen offset:1024 {opt.get('pflag', '')}")
        else: a(f"buffer_store_dwordx4 {vr(O,4)}, v4, s[28:31], s{36+i} offen {opt.get('pflag', '')}", f"buffer_store_dwordx4 {vr(O+4,4)}, v4, s[28:31], s{36+i} offen offset:64 {opt.get('pflag', '')}")
    a.label("K1_PD")
    st()
    a("s_cmp_le_u32 s19, 24", "s_cbranch_scc1 K1_FS")
    a.label("K1_PE")
    if opt.get("cpf", 3) == 3:
        a("s_lshr_b32 s19, s2, 5", "s_add_u32 s19, s19, s3", "s_cmp_lg_u32 s19, 18", "s_cbranch_scc1 K1_NPF", "s_getpc_b64 s[48:49]")
        a.label("K1_PC")
        a("s_add_u32 s48, s48, mpnn_msg_kernel-K1_PC", "s_addc_u32 s49, s49, 0", "v_and_b32 v54, 63, v0", "v_lshlrev_b32 v54, 7, v54",
          "v_min_u32 v54, K2_END-mpnn_msg_kernel, v54", "global_load_dword v55, v54, s[48:49]")
        a.label("K1_NPF")
    if opt.get("wb"):
        msk, slp = opt["wb"]
        a(f"s_and_b32 s19, s41, {msk}", "s_add_u32 s19, s19, s3", f"s_cmp_lg_u32 s19, {msk + 15}", "s_cbranch_scc1 K1_NWB", "s_waitcnt vmcnt(0)", *([f"s_sleep {slp}"] if slp else []), "buffer_wbl2 sc1")
        a.label("K1_NWB")
    co_addr()
    a("s_branch K1_B1")
    a.label("K1_FL")
    a("s_cmp_eq_u32 s19, 8", "s_cbranch_scc1 K1_FA", "s_cmp_gt_u32 s19, 8", "s_cbranch_scc1 K1_FU")
    a("s_lshr_b32 s42, s19, 1", "s_and_b32 s43, s19, 1", "s_lshl_b32 s42, s42, 5", "s_lshl_b32 s43, s43, 12", "s_add_u32 s43, s43, s42", "s_add_u32 s43, s43, 8192")
    for kk in range(8): a(f"buffer_load_ushort v{FR+kk}, v5, s[20:23], s43 offen offset:{128*kk}")
    a("s_branch K1_FLR")
    a.label("K1_FU")
    a("s_mov_b32 s48, s14", "s_mov_b32 s49, s15")
    if opt.get("ep", 0) & 8:
        a("s_sub_u32 s43, s19, 9", "s_lshr_b32 s42, s43, 3", "s_lshl_b32 s42, s42, 6", "s_bfe_u32 s44, s43, 0x10002", "s_lshl_b32 s44, s44, 1", "s_add_u32 s42, s42, s44",
          "s_and_b32 s43, s43, 3", "s_lshl_b32 s43, s43, 12", "s_add_u32 s43, s43, s42", "v_lshl_add_u32 v5, v1, 1, v5")
    else: a("s_sub_u32 s43, s19, 9", "s_lshr_b32 s42, s43, 2", "s_and_b32 s43, s43, 3", "s_lshl_b32 s42, s42, 5", "s_lshl_b32 s43, s43, 12", "s_add_u32 s43, s43, s42")
    for kk in range(8): a(f"buffer_load_ushort v{FR+kk}, v5, s[48:51], s43 offen offset:{128*kk}")
    a("s_branch K1_FLR")
    a.label("K1_FA")
    a("v_bfe_u32 v5, v0, 3, 2", "v_and_b32 v6, 3, v0", "v_lshl_add_u32 v5, v5, 2, v6", "v_lshlrev_b32 v5, 1, v5", "s_movk_i32 s43, 16384")
    for c in range(4): a(f"buffer_load_ushort v{FR+c}, v5, s[20:23], s43 offen offset:{32*c}")
    a("s_branch K1_FLR")
    a.label("K1_FS")
    a("v_and_b32 v5, 63, v0", "v_lshlrev_b32 v5, 4, v5", "s_lshl_b32 s36, s19, 10", f"s_add_u32 s36, s36, {WS_WF}")
    a("s_cmp_eq_u32 s19, 8", "s_cbranch_scc1 K1_AE")
    if opt.get("wsc"):
        msk = sum(1 << t for t in range(9, 25) if (t - 9) & 2 == 0) | (0xff if opt["wsc"] & 2 else 0)
        a(f"s_mov_b32 s37, {msk:#x}", "s_bitcmp0_b32 s37, s19", "s_cbranch_scc1 K1_FR")
        for c in range(8): a(f"v_lshlrev_b32 v{FR+c}, 16, v{FR+c}", f"v_mul_f32 v{FR+c}, s46, v{FR+c}")
        for rr in range(4): a(f"v_cvt_pk_bf16_f32 v{W+rr}, v{FR+2*rr}, v{FR+2*rr+1}")
        a(f"buffer_store_dwordx4 {vr(W,4)}, v5, s[32:35], s36 offen", "s_branch K1_PE")
        a.label("K1_FR")
    for rr in range(4): a(f"v_lshl_or_b32 v{W+rr}, v{FR+2*rr+1}, 16, v{FR+2*rr}")
    a(f"buffer_store_dwordx4 {vr(W,4)}, v5, s[32:35], s36 offen", "s_branch K1_PE")
    a.label("K1_AE")
    if opt.get("rot"): a("v_mov_b32 v2, s52", f"s_mov_b32 s53, {WS_HDR}", "buffer_store_dword v2, v5, s[32:35], s53 offen")
    a("v_bfe_u32 v2, v0, 2, 1", "v_bfe_u32 v3, v0, 5, 1", "v_cmp_eq_u32 vcc, v2, v3")
    for c in range(4):
        a(f"v_lshlrev_b32 v{FR+c}, 16, v{FR+c}", f"v_mul_f32 v{FR+c}, s46, v{FR+c}", f"v_cvt_pk_bf16_f32 v{FR+c}, 0, v{FR+c}", f"v_cndmask_b32 v{W+c}, 0, v{FR+c}, vcc")
    a(f"buffer_store_dwordx4 {vr(W,4)}, v5, s[32:35], s36 offen", "s_branch K1_PE")
    return a.lines

import os
L_AGB = 0; ASTR = int(os.environ.get('ASTR', 144))
L_QS = L_AGB + 112 * ASTR; QSTR = 272
L_CTR = L_QS + 112 * QSTR; L_OVC = L_CTR + 448; L_FLG = L_CTR + 452; L_CT2 = L_CTR + 512; L_SLOT = L_CTR + 1024; L_OVL = L_SLOT + 512
L_XS = L_OVL + 1024; L_WF = L_XS + 14336
L_ELL = L_WF + 25600; ESTR = 516; EROWS = 83
K2_LDS = L_ELL + 3 * 768 * 16 + 6144
assert K2_LDS >= L_ELL + EROWS * ESTR and L_ELL % 16 == 0 and L_XS % 256 == 0 and L_CTR % 256 == 0 and L_ELL + 512 < (1 << 17), (L_XS, L_ELL)
ZCOL = 112 * 4; DUMP = L_ELL + CAP * ESTR + 400; HCOL = 116 * 4

def gen_k2(opt):
    a = Asm(); st = Stamps(a, opt.get("stamp"), 78, 1, 12)
    perm = opt.get("perm", [0, 1, 2, 3, 10, 6, 5, 4, 11, 9, 8, 7])
    RG = opt.get("ring", 2); small = opt.get("small", 1); dp = opt.get("dprio", [8, 4, 2])
    Q, P, Z0, Z1, NN, DD, EX, BE, AL, AH, AE, IX, VI, VE, LEN, AGA, MFL, OOF, ARD, ARX = \
        8, 24, 56, 72, 88, 104, 120, 136, 140, 144, 148, 152, 154, 155, 159, 160, 161, 162, 163, 164
    WU = BE
    R = Z0
    AD = NN
    TG = DD
    W2 = Q; X = P
    SP, PP5, EH, QC, AC = DD + 8, DD + 9, DD + 10, DD + 11, DD + 12
    SWS, SPT, SX, SO = 24, 28, 32, 36
    MK = 40
    BK = "s76"
    ws = f"s[{SWS}:{SWS+3}]"
    a.label("mpnn_msg_kernel")
    a("s_cmp_ge_u32 s2, 256", "s_cbranch_scc1 K2_END")
    st.early()
    a("s_load_dwordx2 s[20:21], s[0:1], 64", "s_load_dwordx16 s[4:19], s[0:1], 0")
    a("v_lshrrev_b32 v1, 6, v0", "v_lshlrev_b32 v2, 4, v0", "v_readfirstlane_b32 s3, v1")
    for i in range(4): a(f"v_mov_b32 v{Q+i}, 0")
    a(f"v_add_u32 v4, {L_ELL}, v2")
    a("v_and_b32 v5, 255, v0", "v_lshlrev_b32 v5, 2, v5", f"v_add_u32 v6, {L_ELL}, v5", f"v_cmp_gt_u32 vcc, {NB*4}, v5")
    a(f"s_and_b32 {BK}, s2, 7", f"s_lshl_b32 {BK}, {BK}, 5", "s_lshr_b32 s64, s2, 3", f"s_add_u32 {BK}, {BK}, s64")
    a("v_cndmask_b32 v6, 0, v6, vcc", f"ds_write_b32 v5, v6 offset:{L_CTR}")
    for i in range(3): a(f"ds_write_b128 v4, {vr(Q,4)} offset:{12288*i}")
    a(f"v_lshlrev_b32 v5, 3, v0", f"v_add_u32 v5, {L_ELL + 3*12288}, v5", f"ds_write_b64 v5, {vr(Q,2)}")
    IL = opt.get("il", 0); RBS = opt.get("rbs", 7)
    assert WS_RA + 256 * IL <= WS_END and (not IL or IL >= 24576 + (256 << RBS))
    if IL: a(f"s_mul_i32 s66, {BK}, {IL}", f"s_add_u32 s62, s66, {WS_RA + 24576}", f"s_add_u32 s64, s66, {WS_RA - 4096}", "s_add_u32 s65, s64, 8192",
      f"s_and_b32 s67, {BK}, 16", "s_add_u32 s66, s66, s67", f"s_add_u32 s66, s66, {WS_RA + 16384}", "s_xor_b32 s60, s66, 16",
      "s_sub_u32 s66, s66, 2048", "s_add_u32 s67, s66, 4096")
    else: a(f"s_lshl_b32 s64, {BK}, 14", f"s_lshl_b32 s62, {BK}, 15", f"s_add_u32 s62, s62, {WS_RB}", f"s_add_u32 s64, s64, {WS_RA - 4096}", "s_add_u32 s65, s64, 8192",
      f"s_lshl_b32 s66, {BK}, 13", f"s_and_b32 s67, {BK}, 16", "s_add_u32 s66, s66, s67", f"s_add_u32 s66, s66, {WS_DA}", "s_xor_b32 s60, s66, 16",
      "s_sub_u32 s66, s66, 2048", "s_add_u32 s67, s66, 4096")
    a(f"s_mul_i32 s69, {BK}, {NB}", f"s_sub_u32 s70, {N}, s69", f"s_min_u32 s70, s70, {NB}", "s_lshl_b32 s70, s70, 7", "s_lshl_b32 s71, s69, 7")
    a("s_and_b32 s72, s3, 3", "s_lshr_b32 s73, s3, 2")
    a(f"s_mov_b32 s{SWS+2}, {WS_END}", f"s_mov_b32 s{SWS+3}, 0x20000", f"s_mov_b32 s{SX+2}, s70", f"s_mov_b32 s{SX+3}, 0x20000")
    a(f"v_and_b32 v4, 3, v0", "v_and_b32 v6, 63, v0", "v_lshlrev_b32 v6, 4, v6")
    a("v_lshlrev_b32 v3, 5, v0", "v_lshrrev_b32 v5, 2, v0", "v_lshlrev_b32 v5, 5, v5", "v_lshl_add_u32 v5, v4, 2, v5")
    BS = opt.get("bs", 0); BP = opt.get("bp", "a")
    if BS: a("v_lshlrev_b32 v166, 3, v6", "s_andn2_b32 s77, s2, 7", "s_add_u32 s77, s77, s3", "s_sub_u32 s77, s77, 4", f"s_mul_i32 s77, s77, {BS*128}", "s_and_b32 s61, s2, 7", f"s_mul_i32 s61, s61, {(25000 - 256*BS)//7*128 if opt.get('xo', 1) else 0}", "s_add_u32 s77, s77, s61")
    def bulk(): a(f"s_mov_b64 exec, {(1 << BS) - 1 if BS < 64 else -1:#x}" if BS <= 32 else f"s_mov_b32 exec_hi, {(1 << (BS-32)) - 1:#x}", "buffer_load_dword v167, v166, s[24:27], s77 offen", "s_mov_b64 exec, -1")
    a("s_cmp_eq_u32 s73, 0")
    a("s_waitcnt lgkmcnt(0)")
    st()
    if opt.get("x1"): a("s_branch K2_FIN")
    if opt.get("x2") == 3:
        a("s_movk_i32 s64, 60")
        a.label("K2_SPIN")
        for i in range(16): a(f"v_exp_f32 v{EX+i}, v{Z0+i}")
        for r in range(3):
            for i in range(0, 16, 2): a(f"v_pk_fma_f32 {vr(NN+i,2)}, {vr(NN+i,2)}, {vr(EX+i,2)}, {vr(DD+i,2)}")
        a("s_sub_u32 s64, s64, 3", "s_cmp_gt_u32 s64, 0", "s_cbranch_scc1 K2_SPIN", "s_branch K2_FIN")
    a(f"s_mov_b32 s{SWS}, s20", f"s_mov_b32 s{SWS+1}, s21")
    if opt.get("rot"): a(f"s_mov_b32 s23, {WS_HDR}", "s_load_dword s77, s[20:21], s23")
    a("s_cbranch_scc0 K2_A1")
    a(f"buffer_load_dwordx4 {vr(TG,4)}, v3, {ws}, s60 offen {opt.get('kflag', '')}")
    a(f"s_add_u32 s{SX}, s4, s71", f"s_addc_u32 s{SX+1}, s5, 0")
    a("v_bfe_u32 v7, v0, 4, 2", "v_lshlrev_b32 v7, 4, v7", "v_xor_b32 v7, v7, v6", "v_xor_b32 v5, 64, v7",
      "s_lshl_b32 s60, s3, 11", f"s_add_u32 s61, s60, {L_XS}", f"s_add_u32 m0, s60, {L_WF}", f"s_add_u32 s63, s60, {WS_WF}")
    a("s_barrier")
    sx = f"s[{SX}:{SX+3}]"
    a(f"buffer_load_dwordx4 v6, {ws}, s63 offen lds", f"buffer_load_dwordx4 v6, {ws}, s63 offen offset:1024 lds", "s_mov_b32 m0, s61", f"v_lshlrev_b32 v3, {RBS}, v0")
    a(f"buffer_load_dwordx4 v7, {sx}, s60 offen lds", f"buffer_load_dwordx4 v5, {sx}, s60 offen offset:1024 lds",
      "s_add_u32 m0, s61, 8192", "s_add_u32 s60, s60, 8192", "s_cmp_eq_u32 s3, 3", "s_cbranch_scc1 K2_A3",
      f"buffer_load_dwordx4 v7, {sx}, s60 offen lds", f"buffer_load_dwordx4 v5, {sx}, s60 offen offset:1024 lds")
    a("s_branch K2_A2")
    a.label("K2_A3")
    a(f"s_mov_b32 m0, {L_WF + 8192}", f"s_mov_b32 s60, {WS_WF + 8192}", f"buffer_load_dwordx4 v6, {ws}, s60 offen lds", "s_mov_b64 exec, 0", f"buffer_load_dwordx4 v6, {ws}, s60 offen lds", "s_mov_b64 exec, -1")
    a("s_branch K2_A2")
    a.label("K2_A1")
    a(f"buffer_load_dword v{TG}, v5, {ws}, s66 offen {opt.get('kflag', '')}", f"buffer_load_dword v{TG+1}, v5, {ws}, s67 offen {opt.get('kflag', '')}")
    a("s_barrier")
    a(f"buffer_load_dwordx4 {vr(R,4)}, v2, {ws}, s64 offen {opt.get('kflag', '')}", f"buffer_load_dwordx4 {vr(R+4,4)}, v2, {ws}, s65 offen {opt.get('kflag', '')}")
    if BS and BP == "a": bulk()
    a.label("K2_A2")
    E8 = opt.get("ep", 0) & 8
    if E8: a("s_lshr_b32 s22, s3, 1", "s_lshl_b32 s74, s22, 11", "s_lshl_b32 s75, s22, 7", f"s_add_u32 s75, s75, {96*128}")
    else: a("s_lshl_b32 s74, s73, 11", f"s_add_u32 s75, s74, {3*2048}", f"s_add_u32 s22, s74, {6*2048}")
    srd(a, SPT, 20, 21, N, stride=128)
    a(f"s_add_u32 s{SO}, s16, s71", f"s_addc_u32 s{SO+1}, s17, 0", f"s_mov_b32 s{SO+2}, s70", f"s_mov_b32 s{SO+3}, 0x20000")
    T = Z1
    SMF = opt.get("smf", 0)
    if SMF:
        a(f"v_bfe_u32 v{T}, v0, 2, 1", f"v_bfe_u32 v{T+1}, v0, 3, 1", f"v_lshl_add_u32 v{T}, v{T}, 1, v{T+1}",
          f"v_lshrrev_b32 v{T+1}, 1, v0", f"v_xor_b32 v{T+1}, v{T+1}, v0", f"v_and_or_b32 v{T}, v{T+1}, 16, v{T}", f"v_mov_b32 v{T+1}, 0x3f80", f"v_mul_u32_u24 v{AH}, 0x5555, v4")
        for k in range(4): a(f"v_cmp_eq_u32 s[{MK+2*k}:{MK+2*k+1}], {k}, v{T}")
        for k in range(4): a(f"v_cndmask_b32 v{AL+k}, 0, v{T+1}, s[{MK+2*k}:{MK+2*k+1}]")
    elif small:
        a(f"v_and_b32 v{T}, 1, v0", f"v_lshlrev_b32 v{T}, 4, v{T}", f"v_mov_b32 v{T+1}, 0x3f80", f"v_lshlrev_b32 v{T}, v{T}, v{T+1}", "v_cmp_gt_u32 vcc, 2, v4",
          f"v_cndmask_b32 v{AL}, 0, v{T}, vcc", f"v_cndmask_b32 v{AL+1}, v{T}, 0, vcc")
    else:
        a(f"v_and_b32 v{T}, 1, v0", f"v_lshlrev_b32 v{T}, 4, v{T}", f"v_mov_b32 v{T+1}, 0x3f80", f"v_lshlrev_b32 v{T}, v{T}, v{T+1}",
          f"v_bfe_u32 v{T+1}, v0, 3, 2", f"v_bfe_u32 v{T+2}, v0, 1, 1", f"v_lshl_add_u32 v{T+1}, v{T+1}, 1, v{T+2}",
          f"v_bfe_u32 v{T+2}, v0, 2, 1", f"v_bfe_u32 v{T+3}, v0, 5, 1", f"v_xor_b32 v{T+2}, v{T+2}, v{T+3}", f"v_lshl_add_u32 v{T+1}, v{T+2}, 3, v{T+1}")
        for k in range(8): a(f"v_cmp_eq_u32 s[{MK+2*k}:{MK+2*k+1}], {k}, v{T+1}")
        for k in range(8): a(f"v_cndmask_b32 v{AL+k}, 0, v{T}, s[{MK+2*k}:{MK+2*k+1}]")
    J, QQ = T, T + 1
    a(f"v_and_b32 v{J}, 15, v0", f"v_bfe_u32 v{QQ}, v0, 4, 2", f"v_lshlrev_b32 v{OOF}, 7, v{J}",
      f"v_lshrrev_b32 v{ARX}, 1, v{J}", f"v_xor_b32 v{ARX}, v{ARX}, v{QQ}", f"v_lshl_add_u32 v{ARX}, v{ARX}, 4, v{OOF}",
      *([f"v_and_b32 v{OOF}, 64, v0", f"v_lshl_add_u32 v{OOF}, v{J}, 2, v{OOF}", f"v_lshl_add_u32 v{OOF}, v{QQ}, 9, v{OOF}"] if E8 else
        [f"s_lshl_b32 s64, s72, 5", f"v_lshl_add_u32 v{OOF}, v{QQ}, 3, v{OOF}", f"v_add_u32 v{OOF}, s64, v{OOF}"]),
      f"s_mul_i32 s64, s73, {64*QSTR}", f"s_lshl_b32 s65, s72, 6", "s_add_u32 s64, s64, s65", f"s_add_u32 s64, s64, {L_QS - 64*QSTR}",
      f"v_mul_u32_u24 v1, {QSTR}, v{J}", f"v_lshl_add_u32 v1, v{QQ}, 4, v1", "v_add_u32 v1, s64, v1",
      f"s_lshl_b32 s64, s73, 13", f"s_add_u32 s64, s64, {L_XS - 8192}", f"v_add_u32 v2, s64, v{ARX}", "v_xor_b32 v7, 64, v2",
      f"s_lshl_b32 s64, {'s22' if E8 else 's73'}, 4", f"v_add_u32 v{J}, s64, v{J}", f"v_mul_u32_u24 v{ARD}, {ASTR}, v{J}", f"v_lshl_add_u32 v{ARD}, v{QQ}, 4, v{ARD}",
      f"s_add_u32 s64, s74, {L_XS}", f"v_add_u32 v{ARX}, s64, v{ARX}")
    a(f"v_lshlrev_b32 v{IX+1}, 4, v4")
    a(f"v_mov_b32 v5, {ESTR}", f"s_movk_i32 s64, {NB*4}", f"s_mov_b32 s65, {DUMP}", "s_mov_b32 s68, 0", "s_mov_b32 s71, 0", "s_mov_b32 s70, 0")
    pk = sum(p << (4 * w) for w, p in enumerate(perm))
    a(f"s_mov_b32 s66, {pk & 0xffffffff:#x}", f"s_mov_b32 s67, {pk >> 32:#x}", "s_lshl_b32 s23, s3, 2", f"s_lshr_b64 s[66:67], s[66:67], s23",
      f"s_and_b32 s23, s66, 15", "s_lshl_b32 s23, s23, 4")
    a(f"v_bfe_u32 v{BE}, v0, 2, 4", f"v_add_u32 v{BE}, s23, v{BE}")
    if opt.get("n4"): a("s_movk_i32 s23, 187")
    N4 = opt.get("n4", 0); KM = DD + 13
    if N4:
        a(f"v_cmp_gt_u32 vcc, 6, v{BE}", f"v_cmp_lt_u32 s[66:67], 187, v{BE}".replace("187", "s23"),
          f"v_lshlrev_b32 v{BE+1}, 1, v{BE}", f"v_and_b32 v{BE+1}, 0x1fc, v{BE+1}", f"v_subrev_u32 v{BE+1}, 8, v{BE+1}", f"v_lshlrev_b32 v{BE+2}, 2, v{BE}", f"v_add_u32 v{BE+2}, {(NB-6)*4}, v{BE+2}",
          f"v_cndmask_b32 v{BE+1}, v{BE+1}, v{BE+2}, vcc", f"v_cndmask_b32 v{BE+1}, v{BE+1}, 0, s[66:67]",
          f"v_cndmask_b32 v{SP}, 1, 0, vcc", f"v_cndmask_b32 v{KM}, v{SP}, 3, s[66:67]", f"v_cndmask_b32 v{SP}, v{SP}, 2, s[66:67]",
          f"v_and_b32 v{PP5}, v{BE}, v{KM}", f"v_sub_u32 v{EH}, v{KM}, v{PP5}", f"v_cmp_eq_u32 s[58:59], 0, v{PP5}", f"v_and_b32 v{MFL}, 1, v{EH}", f"v_cvt_f32_u32 v{MFL}, v{MFL}")
    else:
        a(f"v_and_b32 v{BE+2}, 1, v{BE}", f"v_cmp_gt_u32 vcc, 4, v{BE}", f"v_cmp_eq_u32 s[66:67], 0, v{BE+2}",
          f"v_lshlrev_b32 v{BE+1}, 1, v{BE}", f"v_and_b32 v{BE+1}, 0x1fc, v{BE+1}", f"v_subrev_u32 v{BE+1}, 8, v{BE+1}", f"v_lshlrev_b32 v{BE}, 2, v{BE}", f"v_add_u32 v{BE}, {(NB-4)*4}, v{BE}",
          f"s_or_b64 s[58:59], vcc, s[66:67]", f"s_andn2_b64 s[66:67], s[66:67], vcc",
          f"v_cndmask_b32 v{BE+1}, v{BE+1}, v{BE}, vcc",
          f"v_cndmask_b32 v{SP}, 1, 0, vcc", f"v_cndmask_b32 v{PP5}, v5, 0, s[58:59]", f"v_cndmask_b32 v{EH}, 0, 1, s[66:67]",
          f"v_cndmask_b32 v{MFL}, 0, 1.0, s[66:67]", f"v_mov_b32 v{BE+3}, {L_ELL + ZCOL}")
    a(
      f"v_lshlrev_b32 v{QC}, 6, v4", f"v_add_u32 v{QC}, {(L_QS - 68*L_ELL) & 0xffffffff:#x}, v{QC}", f"v_lshlrev_b32 v{AC}, 5, v4", f"v_add_u32 v{AC}, {(L_AGB - ASTR//4*L_ELL) & 0xffffffff:#x}, v{AC}")
    a(f"s_mov_b32 s66, {NLOG2E:#x}", f"s_mov_b32 s67, {NLOG2E:#x}")
    T = EX; IP = EX + 4
    for k in range(RG + 1): a(f"v_mov_b32 v{IP+2*k+1}, v{IX+1}")
    a("s_cmp_eq_u32 s73, 0", "s_cbranch_scc1 K2_CT")
    def a_round(ad, l, mk):
        for k in range(4): a(f"v_lshlrev_b32_sdwa v{ad+k}, 2, v{l} dst_sel:DWORD dst_unused:UNUSED_PAD src0_sel:DWORD src1_sel:BYTE_{k}")
        for k in range(4): a(f"v_cmp_gt_u32 s[{mk+2*k}:{mk+2*k+1}], s64, v{ad+k}")
        for k in range(4): a(f"s_mov_b64 exec, s[{mk+2*k}:{mk+2*k+1}]", f"ds_add_rtn_u32 v{ad+k}, v{ad+k}, v5 offset:{L_CTR}")
        a("s_mov_b64 exec, -1")
    stk = st.k
    ellpre = 0
    def ellw():
        for k in range(8):
            if k % 4 == 0: a(f"s_waitcnt vmcnt({1 - k//4 + (1 if BS else 0)})")
            if k == 4 and st.on == 1: a("s_memrealtime s[100:101]")
            a(f"v_min_u32 v{AD+k}, s65, v{AD+k}", f"ds_write_b32 v{AD+k}, v{R+k}")
    a(f"s_lshl_b32 s23, s72, 11", f"s_add_u32 s23, s23, {L_WF}", f"v_add_u32 v3, s23, v6", f"v_mov_b32 v{Z1+4}, 0")
    if BS and BP == "a2": bulk()
    a(f"s_waitcnt vmcnt({2 + (1 if BS and BP != 'b' else 0)})")
    st()
    if BS and BP == "b": bulk()
    a_round(AD, TG, MK); a_round(AD + 4, TG + 1, MK + 8)
    a("s_waitcnt lgkmcnt(0)")
    if ellpre: ellw()
    a("s_barrier")
    if opt.get("rot"): a(f"s_and_b32 s77, s77, {((1 << opt['rot']) - 1) << 22:#x}", f"s_add_u32 s77, s77, {WS_PR}", f"s_add_u32 s{SPT}, s20, s77", f"s_addc_u32 s{SPT+1}, s21, 0", f"s_or_b32 s{SPT+1}, s{SPT+1}, {128 << 16:#x}")
    st()
    a.label("K2_AB1")
    T = Z1 + 4
    a(f"ds_read_b32 v{T+1}, v{T} offset:{L_OVC}")
    if not ellpre: ellw()
    a("s_waitcnt lgkmcnt(4)", f"v_readfirstlane_b32 s23, v{T+1}")
    a(f"ds_read_b128 {vr(W2,4)}, v3", f"ds_read_b128 {vr(W2+4,4)}, v3 offset:1024")
    for i in range(4): a(f"ds_read_b128 {vr(X+8*i,4)}, v2 offset:{2048*i}", f"ds_read_b128 {vr(X+8*i+4,4)}, v7 offset:{2048*i}")
    a("s_andn2_b32 s23, s23, s68", "s_cbranch_scc1 K2_RESCAN")
    QT = Z1; T = EX
    def gather(slot, ix):
        p = P + 8 * slot
        return [f"buffer_load_dwordx4 {vr(p,4)}, {vr(ix,2)}, s[{SPT}:{SPT+3}], 0 idxen offen {opt.get('gflag', '')}",
                f"buffer_load_dwordx4 {vr(p+4,4)}, {vr(ix,2)}, s[{SPT}:{SPT+3}], 0 idxen offen offset:64 {opt.get('gflag', '')}"]
    stb = st.k
    for r in range(4): a(f"v_cmp_eq_u32 s[{MK+4+2*r}:{MK+5+2*r}], {r}, v4")
    a(f"v_add_u32 v7, {L_WF + 8192}, v6")
    if st.on == 1: a("s_memrealtime s[96:97]", "s_waitcnt lgkmcnt(0)", "s_mov_b32 s97, s100")
    a("s_waitcnt lgkmcnt(%d)" % (0 if st.on == 1 else 10), "s_barrier")
    st()
    a(f"ds_read_b32 v{T}, v{BE+1} offset:{L_SLOT}", f"ds_read_b128 {vr(AE,4)}, v7", "s_waitcnt lgkmcnt(2)")
    for i in range(4): a(mf16(QT+4*i, W2, X+8*i, "0"))
    for i in range(4): a(mf16(QT+4*i, W2+4, X+8*i+4, QT+4*i))
    def slotdec():
        a("s_waitcnt lgkmcnt(1)")
        if N4: a(f"v_lshrrev_b32 v{LEN}, 17, v{T}", f"v_and_b32 v{T}, 0x1ffff, v{T}", f"v_and_b32 v{T+2}, v{LEN}, v{KM}", f"v_lshrrev_b32 v{T+1}, v{SP}, v{LEN}", f"v_min_u32 v{T+2}, v{T+2}, v{PP5}",
                 f"v_mad_u32_u24 v{T+1}, v{T+1}, v{PP5}, v{T+2}", f"v_mad_u32_u24 v{VI}, v{T+1}, v5, v{T}")
        else: a(f"v_lshrrev_b32 v{LEN}, 17, v{T}", f"v_add_u32 v{T+1}, v{LEN}, v{SP}", f"v_and_b32 v{T}, 0x1ffff, v{T}", f"v_lshrrev_b32 v{T+1}, 1, v{T+1}", f"v_mad_u32_u24 v{VI}, v{T+1}, v{PP5}, v{T}")
        a(f"ds_read_u16 v{IP}, v{VI}")
    slotdec()
    for i in range(4):
        if not opt.get("wsc", 0) & 2: a(f"v_pk_mul_f32 {vr(QT+4*i,2)}, {vr(QT+4*i,2)}, s[66:67]", f"v_pk_mul_f32 {vr(QT+4*i+2,2)}, {vr(QT+4*i+2,2)}, s[66:67]")
        if i == 3: a(f"s_waitcnt lgkmcnt(3)", *gather(0, IP), "s_cmp_eq_u32 s73, 2", "s_cbranch_scc1 K2_NQ2")
        a(f"ds_write_b128 v1, {vr(QT+4*i,4)} offset:{16*QSTR*i}")
    a("s_branch K2_NQ2")
    a.label("K2_CT")
    st.k = stk
    C0, C1, H0, H1, T0, T1, HH, PS, L4, B0, B1_, LOB, HIB, HA, FOUR = [Q + i for i in range(15)]
    a(f"v_mov_b32 v{Z1+4}, {MARK:#x}", "s_lshl_b32 s60, s3, 12", f"s_add_u32 m0, s60, {L_WF + 9*1024}", f"s_add_u32 s60, s60, {WS_WF + 9*1024}")
    a(f"v_lshlrev_b32 v{L4}, 2, v0", f"v_add_u32 v{B0}, {L_ELL}, v{L4}", f"v_add_u32 v{B1_}, {L_ELL + 256}, v{L4}",
      f"v_mov_b32 v{LOB}, {(CAP-63)*ESTR}", f"v_mov_b32 v{HIB}, {CAP*ESTR}", f"v_mul_u32_u24 v{HA}, {ESTR}, v0", f"v_sub_u32 v{HA}, {L_ELL + HCOL + CAP*ESTR}, v{HA}", f"v_mov_b32 v{FOUR}, 4",
      f"s_mov_b32 s61, {L_ELL + HCOL}")
    AD2 = P + 8; AD3 = P + 24
    for k in range(16): a(f"v_mov_b32 v{AD+k}, -1")
    a("s_waitcnt vmcnt(6)")
    st()
    for j in range(4): a(f"v_cmp_ne_u32 s[{MK+2*j}:{MK+2*j+1}], -1, v{TG+j}")
    a(f"v_cmp_eq_u32 vcc, v{Z1+4}, v{TG}")
    for j in range(4): a(f"s_mov_b64 exec, s[{MK+2*j}:{MK+2*j+1}]", f"buffer_load_dwordx4 {vr(R+4*j,4)}, v3, {ws}, s62 offen offset:{16*j} {opt.get('kflag', '')}")
    a("s_mov_b64 exec, -1")
    for j in range(4):
        a(f"s_cmp_eq_u64 s[{MK+2*j}:{MK+2*j+1}], 0", f"s_cbranch_scc1 K2_TS{j}")
        if j == 3: a("s_waitcnt lgkmcnt(8)")
        for k in range(4): a(f"v_lshlrev_b32_sdwa v{AD2+4*j+k}, 2, v{TG+j} dst_sel:DWORD dst_unused:UNUSED_PAD src0_sel:DWORD src1_sel:BYTE_{k}")
        for k in range(4): a(f"v_cmp_gt_u32 s[{MK+8+2*k}:{MK+9+2*k}], s64, v{AD2+4*j+k}")
        for k in range(4): a(f"s_mov_b64 exec, s[{MK+8+2*k}:{MK+9+2*k}]", f"ds_add_rtn_u32 v{AD+4*j+k}, v{AD2+4*j+k}, v5 offset:{L_CT2}")
        a("s_mov_b64 exec, -1", f"s_bitset1_b32 s70, {j}")
        a.label(f"K2_TS{j}")
    if opt.get("nowu"): a("s_mov_b64 exec, 0")
    for k in range(4): a(f"buffer_load_dwordx4 v6, {ws}, s60 offen offset:{1024*k} lds")
    if opt.get("nowu"): a("s_mov_b64 exec, -1")
    a("s_cbranch_vccnz K2_MARK")
    a.label("K2_MR")
    a("s_waitcnt lgkmcnt(0)")
    if opt.get("rot"): a(f"s_and_b32 s77, s77, {((1 << opt['rot']) - 1) << 22:#x}", f"s_add_u32 s77, s77, {WS_PR}", f"s_add_u32 s{SPT}, s20, s77", f"s_addc_u32 s{SPT+1}, s21, 0", f"s_or_b32 s{SPT+1}, s{SPT+1}, {128 << 16:#x}")
    a("s_waitcnt vmcnt(8)", "s_barrier")
    st()
    a.label("K2_AB1T")
    a(f"v_and_b32 v{T0}, 0xfc, v{L4}", f"ds_read2st64_b32 {vr(C0,2)}, v{T0} offset0:{L_CTR//256} offset1:{L_CTR//256+1}", f"ds_read2st64_b32 {vr(H0,2)}, v{T0} offset0:{L_CTR//256+2} offset1:{L_CTR//256+3}", "s_setprio 3", "s_mov_b32 s56, -1", "s_mov_b32 s57, 3")
    a("s_waitcnt lgkmcnt(0)", f"v_readlane_b32 s23, v{C1}, 48", f"v_sub_u32 v{C0}, v{C0}, v{B0}", f"v_sub_u32 v{C1}, v{C1}, v{B1_}", f"v_add_u32 v{C0}, v{C0}, v{H0}", f"v_add_u32 v{C1}, v{C1}, v{H1}",
      "s_andn2_b32 s23, s23, s68", "s_cbranch_scc1 K2_RESCAN", "s_cmp_lg_u32 s3, 0", "s_cbranch_scc1 K2_TW")
    for c, h, t in ((C0, H0, T0), (C1, H1, T1)):
        if c == C1: a("s_mov_b64 exec, s[56:57]")
        a(f"v_med3_u32 v{h}, v{c}, v{LOB}, v{HIB}", f"v_add_u32 v{t}, s61, v{h}", f"ds_add_rtn_u32 v{t}, v{t}, v{FOUR}")
    a(f"v_cmp_gt_u32 s[{MK}:{MK+1}], v{C1}, v{HIB}", "s_mov_b64 exec, -1", f"ds_read_b32 v{HH}, v{HA}", f"v_cmp_gt_u32 vcc, v{C0}, v{HIB}")
    for c, h, b in ((C0, H0, B0), (C1, H1, B1_)):
        a(f"v_min_u32 v{c}, v{c}, v{HIB}", f"v_lshrrev_b32 v{c}, 2, v{c}", f"v_mul_u32_u24 v{c}, 509, v{c}", f"v_lshrrev_b32 v{c}, 16, v{c}",
          f"v_max_u32 v{h}, {CAP-63}, v{c}", f"v_sub_u32 v{h}, {CAP}, v{h}", f"v_lshlrev_b32 v{h}, 2, v{h}", f"v_lshl_or_b32 v{c}, v{c}, 17, v{b}")
    a(f"s_or_b64 vcc, vcc, s[{MK}:{MK+1}]", "s_waitcnt lgkmcnt(0)")
    a(f"v_add_u32_dpp v{PS}, v{HH}, v{HH} row_shr:1 row_mask:0xf bank_mask:0xf bound_ctrl:0")
    for k in (2, 4, 8): a(f"v_add_u32_dpp v{PS}, v{PS}, v{PS} row_shr:{k} row_mask:0xf bank_mask:0xf bound_ctrl:0")
    a(f"v_add_u32_dpp v{PS}, v{PS}, v{PS} row_bcast:15 row_mask:0xa bank_mask:0xf", f"v_add_u32_dpp v{PS}, v{PS}, v{PS} row_bcast:31 row_mask:0xc bank_mask:0xf")
    a(f"v_sub_u32 v{PS}, v{PS}, v{HH}", f"ds_bpermute_b32 v{H0}, v{H0}, v{PS}", f"ds_bpermute_b32 v{H1}, v{H1}, v{PS}")
    a(f"v_mov_b32 v{HH}, 0", "s_waitcnt lgkmcnt(1)", f"v_add_u32 v{H0}, v{H0}, v{T0}", f"ds_write_b32 v{H0}, v{C0} offset:{L_SLOT}",
      "s_waitcnt lgkmcnt(1)", "s_mov_b64 exec, s[56:57]", f"v_add_u32 v{H1}, v{H1}, v{T1}", f"ds_write_b32 v{H1}, v{C1} offset:{L_SLOT}", "s_mov_b64 exec, -1")
    a("s_cbranch_vccz K2_TW", f"ds_write_b32 v{HH}, v5 offset:{L_FLG}")
    a.label("K2_TW")
    a.label("K2_CWR")
    if opt.get("dg") == 1: a("s_waitcnt vmcnt(4)", "s_memrealtime s[100:101]", "s_waitcnt lgkmcnt(0)", "s_mov_b32 s97, s100", "s_mov_b32 s101, s100")
    for r in range(4): a(f"v_cmp_eq_u32 s[{MK+4+2*r}:{MK+5+2*r}], {r}, v4")
    T = EX
    a(f"v_add_u32 v7, {L_WF + 8192}, v6")
    if st.on == 1: a("s_waitcnt lgkmcnt(0)", "s_memrealtime s[96:97]")
    a("s_waitcnt lgkmcnt(0)", "s_barrier")
    st()
    a(f"ds_read_b32 v{T}, v{BE+1} offset:{L_SLOT}", f"ds_read_b128 {vr(AE,4)}, v7")
    slotdec()
    a(f"s_waitcnt lgkmcnt(0)", *gather(0, IP))
    for j in range(4):
        a(f"s_bitcmp0_b32 s70, {j}", f"s_cbranch_scc1 K2_TR{j}")
        for k in range(4): a(f"ds_read_b32 v{AD3+k}, v{AD2+4*j+k} offset:{L_CTR}")
        for k in range(4): a(f"s_waitcnt lgkmcnt({3-k})", f"v_add_u32 v{AD+4*j+k}, v{AD+4*j+k}, v{AD3+k} clamp", f"v_min_u32 v{AD+4*j+k}, s65, v{AD+4*j+k}")
        a.label(f"K2_TR{j}")
    a("s_waitcnt vmcnt(6)")
    if st.on == 1 and opt.get("dg") == 1: a("s_mov_b32 s97, s101")
    elif st.on == 1: a("s_memrealtime s[100:101]", "s_waitcnt lgkmcnt(0)", "s_mov_b32 s97, s100")
    for j in range(4):
        a(f"s_bitcmp0_b32 s70, {j}", f"s_cbranch_scc1 K2_TW{j}")
        if j == 3: a("s_waitcnt lgkmcnt(4)")
        for k in range(4): a(f"ds_write_b32 v{AD+4*j+k}, v{R+4*j+k}")
        a.label(f"K2_TW{j}")
    a.label("K2_NQ2")
    LV = opt.get("lv", 0); ME = LV & 1; MC = LV & 2
    def rde(t, cur=None):
        if not ME: return [f"ds_read_b32 v{BE+r}, v{VE+r} offset:{t*ESTR}" for r in range(4)]
        o = []
        for r in range(4): o += [f"s_and_b64 exec, {cur}, s[{MK+4+2*r}:{MK+5+2*r}]" if cur else f"s_mov_b64 exec, s[{MK+4+2*r}:{MK+5+2*r}]", f"ds_read_b32 v{BE+r}, v{VI} offset:{t*ESTR}"]
        return o + [f"s_mov_b64 exec, {cur or -1}"]
    a(f"v_mov_b32 v{T+1}, 68", f"v_mad_u32_u24 v{T+2}, v{T}, v{T+1}, v{QC}")
    for r in range(4): a(f"v_mov_b32 v{BE+r}, 0" if ME else f"v_cndmask_b32 v{VE+r}, v{BE+3}, v{VI}, s[{MK+4+2*r}:{MK+5+2*r}]")
    for i in range(16): a(f"v_mov_b32 v{NN+i}, 0")
    if opt.get("dg") == 2: a("s_waitcnt vmcnt(0)")
    if st.on == 1: a("s_waitcnt lgkmcnt(0)", "s_memrealtime s[62:63]")
    a("s_waitcnt vmcnt(2) lgkmcnt(0)", "s_barrier")
    if st.on == 1: a("s_memrealtime s[60:61]", "s_waitcnt lgkmcnt(0)")
    if opt.get("x2") == 1: a("s_waitcnt vmcnt(0)", "s_branch K2_FIN")
    a(f"ds_read_u16 v{T+3}, v{VI}")
    for k in range(1, RG + 1): a(f"ds_read_u16 v{IP+2*k}, v{VI} offset:{k*ESTR}")
    for k in range(4): a(f"ds_read_b128 {vr(Q+4*k,4)}, v{T+2} offset:{16*k}")
    a(*rde(0), f"ds_read_u16 v{IX}, v{VI} offset:{(RG+1)*ESTR}")
    a(f"s_waitcnt lgkmcnt({RG + 8})", f"v_cmp_ne_u32 vcc, v{T+3}, v{IP}", "s_cbranch_vccnz K2_G0R")
    a.label("K2_G0D")
    a(*gather(1, IP + 2))
    a(f"v_add_u32 v{LEN}, v{LEN}, v{EH}", f"v_lshrrev_b32 v{LEN}, v{SP}, v{LEN}", f"v_mad_u32_u24 v{AGA}, v{T}, {ASTR//4}, v{AC}")
    a(f"v_max_u32_dpp v{T+1}, v{LEN}, v{LEN} row_shr:4 row_mask:0xf bank_mask:0xf bound_ctrl:0")
    if MC: a(f"v_min_u32_dpp v{T+2}, v{LEN}, v{LEN} row_shr:4 row_mask:0xf bank_mask:0xf bound_ctrl:0")
    for i in range(8): a(f"v_mov_b32 v{DD+i}, 1.0")
    a(f"v_max_u32_dpp v{T+1}, v{T+1}, v{T+1} row_shr:8 row_mask:0xf bank_mask:0xf bound_ctrl:0")
    if MC: a(f"v_min_u32_dpp v{T+2}, v{T+2}, v{T+2} row_shr:8 row_mask:0xf bank_mask:0xf bound_ctrl:0")
    for i in range(8, 16): a(f"v_mov_b32 v{DD+i}, 1.0")
    a(f"v_readlane_b32 s69, v{T+1}, 15", f"v_readlane_b32 s70, v{T+1}, 31", f"v_readlane_b32 s64, v{T+1}, 47", f"v_readlane_b32 s65, v{T+1}, 63",
      "s_max_u32 s69, s69, s70", "s_max_u32 s64, s64, s65", "s_max_u32 s69, s69, s64")
    if MC: a(f"v_readlane_b32 s56, v{T+2}, 15", f"v_readlane_b32 s70, v{T+2}, 31", f"v_readlane_b32 s64, v{T+2}, 47", f"v_readlane_b32 s65, v{T+2}, 63",
      "s_min_u32 s56, s56, s70", "s_min_u32 s64, s64, s65", "s_min_u32 s56, s56, s64")
    TG3 = LV & 4; TL = LV & 24
    if TG3: a("s_sub_u32 s64, s69, 3", "s_max_i32 s64, s64, 0", "s_min_u32 s56, s56, s64")
    elif TL: a("s_sub_u32 s64, s69, 1", "s_min_u32 s56, s56, s64")
    a("s_mov_b32 s70, 0")
    if E8: a("s_and_b32 s23, s3, 1", "s_lshl_b32 s23, s23, 13", f"s_add_u32 s23, s23, 1024", "v_add_u32 v7, s23, v7")
    else: a(f"s_lshl_b32 s23, s72, 12", f"s_add_u32 s23, s23, 1024", "v_add_u32 v7, s23, v7")
    a("s_cmp_eq_u32 s69, 0", "s_cbranch_scc1 K2_DONE0")
    a(f"s_waitcnt vmcnt(2) lgkmcnt(0)")
    st()
    if st.on == 1: a("s_memtime s[98:99]", "s_waitcnt lgkmcnt(0)")
    for k in range(2, RG): a(*gather(k, IP + 2*k))
    def sm(z, b, c): return f"v_mfma_f32_4x4x4_16b_bf16 {vr(z,4)}, {vr(AL,2)}, {vr(b,2)}, {vr(c,4)}"
    def smf(z, b): return f"v_smfmac_f32_32x32x32_bf16 {vr(z,16)}, {vr(AL,4)}, {vr(b,8)}, v{AH}"
    if SMF: a(mf32(Z0, AE, BE, Q), smf(Z0, P))
    elif small: a(*[sm(Z0+4*i, P+2*i, Q+4*i) for i in range(4)], mf32(Z0, AE, BE, Z0))
    else: a(mf32(Z0, AE, BE, Q), mf32(Z0, AL, P, Z0), mf32(Z0, AH, P + 4, Z0))
    a(*gather(0, IP + 2*RG), *rde(1), "s_nop 3")
    U = max(2, RG)
    a(f"s_branch K2_PRI{U-1}")
    a(".p2align 6")
    late = []
    def fmas(zc):
        for i in range(0, 16, 2): a(f"v_pk_fma_f32 {vr(NN+i,2)}, {vr(NN+i,2)}, {vr(EX+i,2)}, {vr(NN+i,2)}")
        for i in range(0, 16, 2): a(f"v_pk_fma_f32 {vr(NN+i,2)}, {vr(zc+i,2)}, {vr(DD+i,2)}, {vr(NN+i,2)}")
        for i in range(0, 16, 2): a(f"v_pk_fma_f32 {vr(DD+i,2)}, {vr(DD+i,2)}, {vr(EX+i,2)}, {vr(DD+i,2)}")
    def body(L, u):
        tail = L == "M"
        a.label(f"K2_{L}{u}")
        zc = (Z0, Z1)[u % 2]; zn = (Z1, Z0)[u % 2]; p = P + 8 * ((u + 1) % RG)
        ex = [f"v_exp_f32 v{EX+i}, v{zc+i}" for i in range(16)]
        if tail:
            a(f"v_cmpx_lt_u32 vcc, s70, v{LEN}", "s_sub_u32 s65, s69, s70", *ex[13:16]); ex = ex[:13]
            if TL: a("s_cmp_eq_u32 s65, 1", f"s_cbranch_scc1 K2_MS{u}"); late.append((u, ex))
        if SMF:
            a("s_waitcnt lgkmcnt(0)", mf32(zn, AE, BE, Q), *ex[0:SMF], f"s_waitcnt vmcnt({2*RG-2})", smf(zn, p), *ex[SMF:16])
        elif opt.get("bf"):
            k = opt["bf"] - (3 if tail else 0)
            s4 = [sm(zn+4*i, p+2*i, zn+4*i) for i in range(4)]
            a("s_waitcnt lgkmcnt(0)", mf32(zn, AE, BE, Q), *ex[0:k], f"s_waitcnt vmcnt({2*RG-2})", s4[0], ex[k], s4[1], ex[k+1], s4[2], ex[k+2], s4[3], *ex[k+3:16])
        else:
            a(f"s_waitcnt vmcnt({2*RG-2}) lgkmcnt(0)")
            s4 = [sm(zn+4*i, p+2*i, Q+4*i) for i in range(4)]
            a(s4[0], ex[0], s4[1], ex[1], s4[2], ex[2], s4[3], *ex[3:8], mf32(zn, AE, BE, zn), *ex[8:16])
        if tail and TG3: a("s_cmp_gt_u32 s65, 3", "s_cselect_b64 exec, vcc, 0")
        a(*gather((u + 1) % RG, IX), f"ds_read_u16 v{IX}, v{VI} offset:{(u+RG+2)*ESTR}", *rde(u + 2, "vcc" if tail else None)) if ME else a(*gather((u + 1) % RG, IX), *rde(u + 2), f"ds_read_u16 v{IX}, v{VI} offset:{(u+RG+2)*ESTR}")
        if not MC: a(f"v_cmpx_lt_u32 vcc, s70, v{LEN}")
        if tail and TL == 8: a.label(f"K2_MF{u}")
        fmas(zc)
        if not MC: a("s_mov_b64 exec, -1")
        a("s_add_u32 s70, s70, 1", "s_cmp_ge_u32 s70, s64")
        if u < U - 1: a(f"s_cbranch_scc1 K2_PRI{u}")
        else:
            for rg in [VI] + ([] if ME else [VE + r for r in range(4)]): a(f"v_add_u32 v{rg}, {U*ESTR}, v{rg}")
            a(f"s_cbranch_scc0 K2_{L}0")
            if tail: a(f"s_branch K2_PRI{u}")
    for u in range(U): body("L", u)
    for u in list(range(U - 1, -1, -1)):
        a.label(f"K2_PRI{u}")
        nx = f"K2_X{u}" if MC else f"K2_L{(u+1)%U}"
        a("s_sub_u32 s65, s69, s70")
        for lv, th in zip((3, 2, 1), dp):
            a(f"s_setprio {lv}", f"s_sub_u32 s64, s69, {th}", f"s_cmp_gt_u32 s65, {th}", f"s_cbranch_scc1 {nx}")
        if MC:
            a("s_setprio 0", "s_mov_b32 s64, s69", "s_cmp_eq_u32 s65, 0", f"s_cbranch_scc1 K2_DONEX")
            a.label(nx)
            a("s_cmp_ge_u32 s70, s56", f"s_cbranch_scc1 K2_M{(u+1)%U}", "s_min_u32 s64, s64, s56", f"s_branch K2_L{(u+1)%U}")
        else:
            a("s_setprio 0", "s_mov_b32 s64, s69", "s_cmp_lg_u32 s65, 0", f"s_cbranch_scc1 {nx}")
            if u: a("s_branch K2_DONE")
    if MC:
        a(".p2align 6")
        for u in range(U): body("M", u)
        for u, ex in late:
            a.label(f"K2_MS{u}")
            if TL == 8: a(*ex, f"s_branch K2_MF{u}")
            else:
                a(*ex); fmas((Z0, Z1)[u % 2])
                if u != U - 1: a("s_branch K2_DONEX")
        a.label("K2_DONEX")
        a("s_mov_b64 exec, -1")
    a.label("K2_DONE")
    st()
    if st.on == 1: a("s_memtime s[100:101]", "s_waitcnt lgkmcnt(0)", "s_sub_u32 s98, s100, s98")
    XF = Z0; ACC = Q
    EP = opt.get("ep", 0)
    if not EP:
        a(f"v_xor_b32 v3, 64, v{ARX}")
        for i in range(16): a(f"v_rcp_f32 v{EX+i}, v{DD+i}")
        a("s_waitcnt lgkmcnt(0)")
        for k in range(4): a(f"ds_read_b128 {vr(WU+4*k,4)}, v7 offset:{1024*k}")
        for i in range(3): a(f"ds_read_b128 {vr(XF+8*i,4)}, v{ARX} offset:{6144*i}", f"ds_read_b128 {vr(XF+8*i+4,4)}, v3 offset:{6144*i}")
        a(f"s_mov_b32 s66, {NLN2:#x}", f"s_mov_b32 s67, {NLN2:#x}", f"s_mov_b32 s64, {f2u(2.0**120):#x}")
        for i in range(0, 16, 2): a(f"v_pk_mul_f32 {vr(NN+i,2)}, {vr(NN+i,2)}, s[66:67]")
        a(f"v_max3_f32 v2, v{DD}, v{DD+1}, v{DD+2}")
        for i in range(3, 15, 2): a(f"v_max3_f32 v2, v{DD+i}, v{DD+i+1}, v2")
        a(f"v_max_f32 v2, v{DD+15}, v2")
        for i in range(0, 16, 2): a(f"v_pk_mul_f32 {vr(NN+i,2)}, {vr(NN+i,2)}, {vr(EX+i,2)}")
        a(f"v_pk_mul_f32 {vr(DD,2)}, {vr(NN,2)}, 0")
        for i in range(2, 16, 2): a(f"v_pk_fma_f32 {vr(DD,2)}, {vr(NN+i,2)}, 0, {vr(DD,2)}")
        for i in range(16): a(f"v_fmac_f32_dpp v{NN+i}, v{NN+i}, v{MFL} row_shl:4 row_mask:0xf bank_mask:0xf bound_ctrl:0")
        a(f"v_cmp_u_f32 vcc, v{DD}, v{DD+1}", f"v_cmp_nlt_f32 s[{MK+2}:{MK+3}], v2, s64", f"s_or_b64 vcc, vcc, s[{MK+2}:{MK+3}]")
        for i in range(8): a(f"v_cvt_pk_bf16_f32 v{EX+i}, v{NN+2*i}, v{NN+2*i+1}")
        a("s_waitcnt lgkmcnt(0)", f"s_mov_b64 exec, s[58:59]", f"ds_write_b128 v{AGA}, {vr(EX,4)} offset:{L_AGB}", f"ds_write_b128 v{AGA}, {vr(EX+4,4)} offset:{L_AGB+16}")
        a("s_mov_b64 exec, vcc", "v_mov_b32 v2, 0", f"ds_write_b32 v2, v5 offset:{L_FLG}", "s_mov_b64 exec, -1")
        a(f"s_mov_b32 s66, {NLOG2E:#x}", f"s_mov_b32 s67, {NLOG2E:#x}", "v_mov_b32 v2, 0")
        for i in range(3): a(mf16(ACC+4*i, WU, XF+8*i, "0"))
        for i in range(3): a(mf16(ACC+4*i, WU+4, XF+8*i+4, ACC+4*i))
        a("s_waitcnt lgkmcnt(0)", "s_barrier")
        st()
        a.label("K2_EPI")
        B = Z0; O = EX; TT = NN; WU2 = WU + 8
        a(f"ds_read_b32 v3, v2 offset:{L_FLG}")
        for i in range(3):
            for s in range(2): a(f"ds_read_b128 {vr(B+8*i+4*s,4)}, v{ARD} offset:{L_AGB + 48*ASTR*i + 64*s}")
        a("s_waitcnt lgkmcnt(6)", "v_readfirstlane_b32 s23, v3", "s_andn2_b32 s23, s23, s71", "s_cbranch_scc1 K2_BF")
        def epi_tile(i):
            o = O + 4 * i; t = TT + 4 * i
            a(f"v_pk_mul_f32 {vr(t,2)}, {vr(o,2)}, s[66:67]", f"v_pk_mul_f32 {vr(t+2,2)}, {vr(o+2,2)}, s[66:67]")
            for k in range(4): a(f"v_exp_f32 v{t+k}, v{t+k}")
            a(f"v_pk_add_f32 {vr(t,2)}, {vr(t,2)}, 1.0 op_sel_hi:[1,0]", f"v_pk_add_f32 {vr(t+2,2)}, {vr(t+2,2)}, 1.0 op_sel_hi:[1,0]")
            for k in range(4): a(f"v_rcp_f32 v{t+k}, v{t+k}")
            a(f"v_pk_mul_f32 {vr(t,2)}, {vr(t,2)}, {vr(o,2)}", f"v_pk_mul_f32 {vr(t+2,2)}, {vr(t+2,2)}, {vr(o+2,2)}")
            a(f"v_cvt_pk_bf16_f32 v{o}, v{t}, v{t+1}", f"v_cvt_pk_bf16_f32 v{o+1}, v{t+2}, v{t+3}")
            a(f"buffer_store_dwordx2 {vr(o,2)}, v{OOF}, s[{SO}:{SO+3}], {('s74','s75','s22')[i]} offen {opt.get('oflag', '')}")
        for i in range(3):
            a(f"s_waitcnt lgkmcnt({4-2*i})", mf16(O+4*i, WU2, B+8*i, ACC+4*i), mf16(O+4*i, WU2+4, B+8*i+4, O+4*i))
        epi_tile(0); epi_tile(1)
        a("s_cmp_lg_u32 s73, 0", "s_cbranch_scc1 K2_FIN")
        epi_tile(2)
    elif E8:
        assert opt.get("wsc") and not N4
        WX = P + 16; WA = BE; AR6 = 165
        a(f"v_xor_b32 v3, 64, v{ARX}", "v_and_b32 v2, 48, v0", f"s_add_u32 s64, s75, {L_XS}", f"s_mul_i32 s65, s22, {ASTR}", f"s_add_u32 s65, s65, {L_AGB + 96*ASTR}",
          f"v_add_u32 v{AR6}, s65, v2", "v_add_u32 v2, s64, v2", "s_cmp_eq_u32 s73, 0", "s_waitcnt lgkmcnt(0)")
        a(f"ds_read_b128 {vr(XF,4)}, v{ARX}", f"ds_read_b128 {vr(XF+4,4)}, v3")
        for h in range(2):
            for k in range(2): a(f"ds_read_b128 {vr(WX+8*h+4*k,4)}, v7 offset:{4096*h + 1024*k}")
        a("s_cselect_b64 exec, -1, 0", f"ds_read_b128 {vr(XF+8,4)}, v2", f"ds_read_b128 {vr(XF+12,4)}, v2 offset:64", "s_mov_b64 exec, -1")
        for h in range(2):
            for k in range(2): a(f"ds_read_b128 {vr(WA+8*h+4*k,4)}, v7 offset:{4096*h + 1024*k + 2048}")
        for i in range(16): a(f"v_rcp_f32 v{EX+i}, v{DD+i}")
        a(f"v_pk_mul_f32 v[2:3], {vr(NN,2)}, {vr(DD,2)}")
        for i in range(2, 16, 2): a(f"v_pk_fma_f32 v[2:3], {vr(NN+i,2)}, {vr(DD+i,2)}, v[2:3]")
        a("s_waitcnt lgkmcnt(4)")
        def mx(t, h, k): return mf16(ACC+8*t+4*h, XF+8*t+4*k, WX+8*h+4*k, "0" if k == 0 else ACC+8*t+4*h)
        for i in range(0, 16, 2):
            a(f"v_pk_mul_f32 {vr(NN+i,2)}, {vr(NN+i,2)}, {vr(EX+i,2)}")
            if i % 8 == 0: a(mx(0, i // 8, 0))
        a("s_movk_i32 s64, 0x207", "v_add_f32 v2, v2, v3")
        for i in range(16):
            a(f"v_fmac_f32_dpp v{NN+i}, v{NN+i}, v{MFL} row_shl:4 row_mask:0xf bank_mask:0xf bound_ctrl:0")
            if i % 8 == 0: a(mx(0, i // 8, 1))
        a(f"v_cmp_class_f32 vcc, v2, s64")
        for i in range(8): a(f"v_cvt_pk_bf16_f32 v{EX+i}, v{NN+2*i}, v{NN+2*i+1}")
        a(f"s_mov_b64 exec, s[58:59]", f"ds_write_b128 v{AGA}, {vr(EX,4)} offset:{L_AGB}", f"ds_write_b128 v{AGA}, {vr(EX+4,4)} offset:{L_AGB+16}")
        a("s_mov_b64 exec, vcc", "v_mov_b32 v2, 0", f"ds_write_b32 v2, v5 offset:{L_FLG}", "s_mov_b64 exec, -1", "v_mov_b32 v2, 0")
        a("s_cbranch_scc0 K2_N3", mx(1, 0, 0), mx(1, 1, 0), mx(1, 0, 1), mx(1, 1, 1))
        a.label("K2_N3")
        a("s_waitcnt lgkmcnt(0)", "s_barrier")
        st()
        a.label("K2_EPI")
        B = Z0; O = EX; TT = NN
        a(f"ds_read_b128 {vr(B,4)}, v{ARD} offset:{L_AGB}", f"ds_read_b128 {vr(B+4,4)}, v{ARD} offset:{L_AGB+64}", f"ds_read_b32 v3, v2 offset:{L_FLG}")
        a("s_cmp_eq_u32 s73, 0", "s_cselect_b64 exec, -1, 0", f"ds_read_b128 {vr(B+8,4)}, v{AR6}", f"ds_read_b128 {vr(B+12,4)}, v{AR6} offset:64", "s_mov_b64 exec, -1")
        if opt.get("es"): a("s_waitcnt lgkmcnt(0)", "s_memrealtime s[60:61]")
        def ma(t, h, k): return mf16(O+8*t+4*h, B+8*t+4*k, WA+8*h+4*k, ACC+8*t+4*h if k == 0 else O+8*t+4*h)
        a("s_waitcnt lgkmcnt(4)", ma(0, 0, 0), ma(0, 1, 0), "s_waitcnt lgkmcnt(3)", ma(0, 0, 1), ma(0, 1, 1))
        a("s_cbranch_scc0 K2_N4", "s_waitcnt lgkmcnt(0)", ma(1, 0, 0), ma(1, 1, 0), ma(1, 0, 1), ma(1, 1, 1))
        a.label("K2_N4")
        a("s_waitcnt lgkmcnt(2)", "v_readfirstlane_b32 s23, v3", "s_andn2_b32 s23, s23, s71", "s_cbranch_scc1 K2_BF")
        so = f"s[{SO}:{SO+3}]"
        for g in range(2):
            rs = [O+2*g, O+2*g+1, O+4+2*g, O+5+2*g]; t = TT + 4 * g
            for k in range(4): a(f"v_exp_f32 v{t+k}, v{rs[k]}")
            a(f"v_pk_fma_f32 {vr(t,2)}, {vr(t,2)}, s[66:67], s[66:67]", f"v_pk_fma_f32 {vr(t+2,2)}, {vr(t+2,2)}, s[66:67], s[66:67]")
            for k in range(4): a(f"v_rcp_f32 v{t+k}, v{t+k}")
            a(f"v_pk_mul_f32 {vr(t,2)}, {vr(t,2)}, {vr(rs[0],2)}", f"v_pk_mul_f32 {vr(t+2,2)}, {vr(t+2,2)}, {vr(rs[2],2)}")
            a(f"v_cvt_pk_bf16_f32 v{t}, v{t}, v{t+2}", f"v_cvt_pk_bf16_f32 v{t+1}, v{t+1}, v{t+3}")
            for k in range(2): a(f"buffer_store_dword v{t+k}, v{OOF}, {so}, s74 offen offset:{128*(2*g+k)} {opt.get('oflag', '')}")
        a("s_cmp_lg_u32 s73, 0", "s_cbranch_scc1 K2_FIN")
        t = TT + 8
        a("s_mov_b64 exec, 0xffff", f"v_exp_f32 v{t}, v{O+8}", f"v_exp_f32 v{t+1}, v{O+12}", f"v_pk_fma_f32 {vr(t,2)}, {vr(t,2)}, s[66:67], s[66:67]", f"v_rcp_f32 v{t}, v{t}", f"v_rcp_f32 v{t+1}, v{t+1}",
          f"v_mul_f32 v{t}, v{t}, v{O+8}", f"v_mul_f32 v{t+1}, v{t+1}, v{O+12}", f"v_cvt_pk_bf16_f32 v{t}, v{t}, v{t+1}", f"buffer_store_dword v{t}, v{OOF}, {so}, s75 offen {opt.get('oflag', '')}")
    else:
        n3 = EP & 2
        a(f"v_xor_b32 v3, 64, v{ARX}", "s_waitcnt lgkmcnt(0)")
        if n3: a("s_cmp_eq_u32 s73, 0", "s_cselect_b64 s[44:45], -1, 0")
        for k in range(2): a(f"ds_read_b128 {vr(WU+4*k,4)}, v7 offset:{1024*k}")
        for i in range(3):
            if i == 2 and n3: a("s_mov_b64 exec, s[44:45]")
            a(f"ds_read_b128 {vr(XF+8*i,4)}, v{ARX} offset:{6144*i}", f"ds_read_b128 {vr(XF+8*i+4,4)}, v3 offset:{6144*i}")
        if n3: a("s_mov_b64 exec, -1")
        for k in range(2, 4): a(f"ds_read_b128 {vr(WU+4*k,4)}, v7 offset:{1024*k}")
        for i in range(16): a(f"v_rcp_f32 v{EX+i}, v{DD+i}")
        a(f"v_pk_mul_f32 v[2:3], {vr(NN,2)}, {vr(DD,2)}")
        for i in range(2, 16, 2): a(f"v_pk_fma_f32 v[2:3], {vr(NN+i,2)}, {vr(DD+i,2)}, v[2:3]")
        GR = EP & 4
        if GR:
            a(f"s_mov_b32 s64, {NLN2:#x}", f"s_mov_b32 s65, {NLN2:#x}")
            for i in range(0, 16, 2): a(f"v_pk_mul_f32 {vr(NN+i,2)}, {vr(NN+i,2)}, s[64:65]")
        a("s_waitcnt lgkmcnt(2)")
        nt = 2 if n3 else 3
        mfx = [mf16(ACC+4*i, WU, XF+8*i, "0") for i in range(3)] + [mf16(ACC+4*i, WU+4, XF+8*i+4, ACC+4*i) for i in range(3)]
        for i in range(0, 16, 2):
            a(f"v_pk_mul_f32 {vr(NN+i,2)}, {vr(NN+i,2)}, {vr(EX+i,2)}")
            if i % 4 == 0 and i < 4 * nt: a(mfx[i // 4])
        a("s_movk_i32 s64, 0x207", "v_add_f32 v2, v2, v3")
        for i in range(16):
            a(f"v_fmac_f32_dpp v{NN+i}, v{NN+i}, v{MFL} row_shl:4 row_mask:0xf bank_mask:0xf bound_ctrl:0")
            if i % 4 == 0 and i < 4 * nt: a(mfx[3 + i // 4])
        a(f"v_cmp_class_f32 vcc, v2, s64")
        if N4:
            a(f"s_cmp_eq_u32 s3, {perm.index(11)}", "s_cbranch_scc1 K2_QD")
            a.label("K2_QDR")
            if n3: a("s_cmp_eq_u32 s73, 0")
        for i in range(8): a(f"v_cvt_pk_bf16_f32 v{EX+i}, v{NN+2*i}, v{NN+2*i+1}")
        a(f"s_mov_b64 exec, s[58:59]", f"ds_write_b128 v{AGA}, {vr(EX,4)} offset:{L_AGB}", f"ds_write_b128 v{AGA}, {vr(EX+4,4)} offset:{L_AGB+16}")
        a("s_mov_b64 exec, vcc", "v_mov_b32 v2, 0", f"ds_write_b32 v2, v5 offset:{L_FLG}", "s_mov_b64 exec, -1", "v_mov_b32 v2, 0")
        if n3:
            a("s_cbranch_scc0 K2_N3", mfx[2], mfx[5])
            if not opt.get("wsc") and not GR: a(*[f"v_pk_mul_f32 {vr(ACC+i,2)}, {vr(ACC+i,2)}, s[66:67]" for i in (8, 10)])
            a.label("K2_N3")
        if not opt.get("wsc") and not GR:
            for i in range(0, 4 * nt, 2): a(f"v_pk_mul_f32 {vr(ACC+i,2)}, {vr(ACC+i,2)}, s[66:67]")
        a("s_waitcnt lgkmcnt(0)", "s_barrier")
        st()
        a.label("K2_EPI")
        B = Z0; O = EX; TT = NN; WU2 = WU + 8
        a(f"ds_read_b32 v3, v2 offset:{L_FLG}")
        for i in range(3):
            if i == 2 and n3: a("s_cmp_eq_u32 s73, 0", "s_cselect_b64 exec, -1, 0")
            for s in range(2): a(f"ds_read_b128 {vr(B+8*i+4*s,4)}, v{ARD} offset:{L_AGB + 48*ASTR*i + 64*s}")
        if n3: a("s_mov_b64 exec, -1")
        a("s_waitcnt lgkmcnt(6)", "v_readfirstlane_b32 s23, v3", "s_andn2_b32 s23, s23, s71", "s_cbranch_scc1 K2_BF")
        def epi_tile(i):
            o = O + 4 * i; t = TT + 4 * i
            if GR:
                a(f"v_pk_mul_f32 {vr(t,2)}, {vr(o,2)}, s[66:67]", f"v_pk_mul_f32 {vr(t+2,2)}, {vr(o+2,2)}, s[66:67]")
                for k in range(4): a(f"v_exp_f32 v{t+k}, v{t+k}")
                a(f"v_pk_add_f32 {vr(t,2)}, {vr(t,2)}, 1.0 op_sel_hi:[1,0]", f"v_pk_add_f32 {vr(t+2,2)}, {vr(t+2,2)}, 1.0 op_sel_hi:[1,0]")
            else:
                for k in range(4): a(f"v_exp_f32 v{t+k}, v{o+k}")
                a(f"v_pk_fma_f32 {vr(t,2)}, {vr(t,2)}, s[66:67], s[66:67]", f"v_pk_fma_f32 {vr(t+2,2)}, {vr(t+2,2)}, s[66:67], s[66:67]")
            for k in range(4): a(f"v_rcp_f32 v{t+k}, v{t+k}")
            a(f"v_pk_mul_f32 {vr(t,2)}, {vr(t,2)}, {vr(o,2)}", f"v_pk_mul_f32 {vr(t+2,2)}, {vr(t+2,2)}, {vr(o+2,2)}")
            a(f"v_cvt_pk_bf16_f32 v{o}, v{t}, v{t+1}", f"v_cvt_pk_bf16_f32 v{o+1}, v{t+2}, v{t+3}")
            a(f"buffer_store_dwordx2 {vr(o,2)}, v{OOF}, s[{SO}:{SO+3}], {('s74','s75','s22')[i]} offen {opt.get('oflag', '')}")
        def emf(i): a(f"s_waitcnt lgkmcnt({4-2*i})", mf16(O+4*i, WU2, B+8*i, ACC+4*i), mf16(O+4*i, WU2+4, B+8*i+4, O+4*i))
        if opt.get("es"): a("s_waitcnt lgkmcnt(0)", "s_memrealtime s[60:61]")
        for i in range(nt): emf(i)
        if n3:
            a("s_cmp_lg_u32 s73, 0", "s_cbranch_scc1 K2_N4"); emf(2); a.label("K2_N4")
        epi_tile(0); epi_tile(1)
        a("s_cmp_lg_u32 s73, 0", "s_cbranch_scc1 K2_FIN")
        epi_tile(2)
    a.label("K2_FIN")
    if opt.get("es"): a("s_memrealtime s[62:63]")
    if st.on: a("s_waitcnt vmcnt(0)")
    if opt.get("edly") is not None:
        a("s_cmp_lg_u32 s3, 0", "s_cbranch_scc1 K2_END", "s_memrealtime s[40:41]", "s_waitcnt lgkmcnt(0)")
        a.label("K2_DG")
        a("s_sleep 1", "s_memrealtime s[42:43]", "s_waitcnt lgkmcnt(0)", "s_sub_u32 s42, s42, s40", f"s_cmp_lt_u32 s42, {opt['edly']}", "s_cbranch_scc1 K2_DG")
    if opt.get("diag"):
        kind, M = opt["diag"]
        a("s_cmp_lg_u32 s3, 0", "s_cbranch_scc1 K2_END", "s_memrealtime s[40:41]", "s_lshl_b32 s42, s2, 10", f"s_add_u32 s42, s42, {WS_STAMP}", "s_add_u32 s44, s20, s42", "s_addc_u32 s45, s21, 0",
          "v_mov_b32 v2, 0", "global_load_dwordx4 v[8:11], v2, s[44:45]", "global_load_dwordx4 v[12:15], v2, s[44:45] offset:16", "s_waitcnt vmcnt(0) lgkmcnt(0)",
          "v_readfirstlane_b32 s46, v8", "v_readfirstlane_b32 s47, v13", "v_readfirstlane_b32 s48, v9", "v_readfirstlane_b32 s49, v10", "s_nop 4")
        a({"k1": "s_sub_u32 s46, s47, s46", "k12": "s_sub_u32 s46, s78, s46", "k2": "s_sub_u32 s46, s40, s78", "tot": "s_sub_u32 s46, s40, s46", "dst": "s_sub_u32 s46, s48, s46", "src": "s_sub_u32 s46, s49, s46",
           "kb3": "s_sub_u32 s46, s92, s80", "reg": "s_lshr_b32 s46, s77, 22\ns_sub_u32 s46, s46, 8", "xcc": "s_getreg_b32 s46, hwreg(HW_REG_XCC_ID)\ns_xor_b32 s46, s46, s2\ns_and_b32 s46, s46, 7", "ent": "s_sub_u32 s46, s80, s78"}.get(kind, "s_cmp_lg_u32 s2, 5\ns_cbranch_scc1 K2_END"))
        if kind.startswith("g"):
            a(f"s_add_u32 s44, s20, {WS_STAMP}", "s_addc_u32 s45, s21, 0", "v_lshlrev_b32 v2, 6, v0", "v_mov_b32 v16, 0", "v_mov_b32 v17, -1", "v_mov_b32 v18, -1", "v_mov_b32 v19, 0", "s_mov_b32 s47, 0")
            a.label("K2_DL")
            a("global_load_dword v8, v2, s[44:45]", f"global_load_dword v9, v2, s[44:45] offset:{opt.get('dk', 5)*4}", "v_add_u32 v2, 4096, v2", "s_waitcnt vmcnt(0)", "v_sub_u32 v8, s78, v8", "v_sub_u32 v9, s78, v9",
              "v_max_u32 v16, v16, v8", "v_min_u32 v17, v17, v8", "v_min_u32 v18, v18, v9", "v_max_u32 v19, v19, v9", "s_add_u32 s47, s47, 1", "s_cmp_lt_u32 s47, 63", "s_cbranch_scc1 K2_DL")
            a("s_mov_b32 s47, 0", "s_mov_b32 s50, 0", "s_mov_b32 s51, -1", "s_mov_b32 s52, -1", "s_mov_b32 s53, 0")
            a.label("K2_DM")
            a("v_readlane_b32 s54, v16, s47", "v_readlane_b32 s55, v17, s47", "v_readlane_b32 s56, v18, s47", "v_readlane_b32 s57, v19, s47", "s_max_u32 s50, s50, s54", "s_min_u32 s51, s51, s55", "s_min_u32 s52, s52, s56", "s_max_u32 s53, s53, s57",
              "s_add_u32 s47, s47, 1", "s_cmp_lt_u32 s47, 64", "s_cbranch_scc1 K2_DM")
            a({"gskew": "s_sub_u32 s46, s50, s51", "gk1": "s_sub_u32 s46, s50, s52", "ggap": "s_mov_b32 s46, s52", "g0": "s_mov_b32 s46, 0", "gfirst": "s_sub_u32 s46, s50, s53"}[kind])
            a("s_memrealtime s[40:41]", "s_waitcnt lgkmcnt(0)")
        if opt.get("thr"): a(f"s_cmp_gt_u32 s46, {opt['thr']}", f"s_cselect_b32 s46, {M}, 0")
        else: a("s_min_u32 s46, s46, 4000", f"s_mul_i32 s46, s46, {M}")
        a.label("K2_DG")
        a("s_sleep 2", "s_memrealtime s[42:43]", "s_waitcnt lgkmcnt(0)", "s_sub_u32 s42, s42, s40", "s_cmp_lt_u32 s42, s46", "s_cbranch_scc1 K2_DG")
    else: st.flush(20, 3, 2, 3)
    a.label("K2_END")
    a("s_endpgm")

    if N4:
        a.label("K2_QD")
        for i in range(16): a(f"v_add_f32_dpp v{NN+i}, v{NN+i}, v{NN+i} row_shl:8 row_mask:0x8 bank_mask:0x1")
        a("s_branch K2_QDR")
    a.label("K2_G0R")
    a(f"v_mov_b32 v{IP}, v{EX+3}", *gather(0, IP), "s_branch K2_G0D")
    a.label("K2_DONE0")
    a("s_waitcnt vmcnt(0) lgkmcnt(0)", "s_branch K2_DONE")
    a.label("K2_MARK")
    T = Z1
    a("s_mov_b64 exec, vcc", f"v_mov_b32 v{T}, 0", f"v_mov_b32 v{T+1}, 1", f"ds_add_rtn_u32 v{T}, v{T}, v{T+1} offset:{L_OVC}", "s_waitcnt lgkmcnt(0)",
      f"v_and_b32 v{T}, 255, v{T}", f"v_lshlrev_b32 v{T}, 2, v{T}", f"ds_write_b32 v{T}, v0 offset:{L_OVL}", "s_mov_b64 exec, -1", "s_branch K2_MR")

    SD, SS, SE = 40, 44, 48
    a.label("K2_RESCAN")
    srd(a, SD, 10, 11, E * 4); srd(a, SS, 8, 9, E * 4); srd(a, SE, 6, 7, E * 2)
    a("s_mov_b32 s52, 0", f"s_mul_i32 s53, {BK}, {NB}", "s_min_u32 s23, s23, 256", "s_waitcnt lgkmcnt(0)")
    a.label("K2_RS1")
    T = Z1 + 8
    a("s_lshl_b32 s54, s52, 2", f"v_mov_b32 v{T}, s54", f"ds_read_b32 v{T}, v{T} offset:{L_OVL}", "s_waitcnt lgkmcnt(0)", f"v_readfirstlane_b32 s54, v{T}",
      "s_and_b32 s55, s54, 31", "s_lshl_b32 s55, s55, 3", "s_lshr_b32 s54, s54, 5", "s_add_u32 s54, s54, s55",
      f"s_mul_i32 s54, s54, {CH}", f"s_sub_u32 s55, {E}, s54", f"s_min_u32 s55, s55, {CH}",
      f"v_mov_b32 v{T}, v0")
    a.label("K2_RS2")
    a(f"v_add_u32 v{T+1}, s54, v{T}", f"v_lshlrev_b32 v{T+2}, 1, v{T+1}", f"v_lshlrev_b32 v{T+1}, 2, v{T+1}",
      f"buffer_load_dword v{T+3}, v{T+1}, s[{SD}:{SD+3}], 0 offen", f"buffer_load_dword v{T+4}, v{T+1}, s[{SS}:{SS+3}], 0 offen",
      f"buffer_load_ushort v{T+5}, v{T+2}, s[{SE}:{SE+3}], 0 offen", "s_waitcnt vmcnt(0)",
      f"v_subrev_u32 v{T+3}, s53, v{T+3}", f"v_cmp_gt_u32 vcc, {NB}, v{T+3}", f"v_cmp_gt_u32 s[56:57], s55, v{T}", "s_and_b64 exec, vcc, s[56:57]",
      f"v_lshlrev_b32 v{T+3}, 2, v{T+3}", f"ds_add_rtn_u32 v{T+3}, v{T+3}, v5 offset:{L_CTR}", f"v_lshl_or_b32 v{T+4}, v{T+5}, 16, v{T+4}",
      "s_waitcnt lgkmcnt(0)", f"v_min_u32 v{T+3}, s65, v{T+3}", f"ds_write_b32 v{T+3}, v{T+4}", "s_mov_b64 exec, -1",
      f"v_add_u32 v{T}, 768, v{T}", f"v_cmp_gt_u32 vcc, s55, v{T}", "s_cbranch_vccnz K2_RS2")
    a("s_add_u32 s52, s52, 1", "s_cmp_lt_u32 s52, s23", "s_cbranch_scc1 K2_RS1")
    a("s_mov_b32 s68, -1", "s_waitcnt lgkmcnt(0)", "s_barrier", "s_cmp_eq_u32 s73, 0", "s_cbranch_scc1 K2_AB1T", "s_branch K2_AB1")

    a.label("K2_BF")
    T = Z0
    a("s_waitcnt vmcnt(0) lgkmcnt(0)")
    srd(a, SD, 10, 11, E * 4); srd(a, SS, 8, 9, E * 4); srd(a, SE, 6, 7, E * 2); srd(a, 52, 12, 13, 129 * 128)
    a(f"s_mov_b32 s{SX}, s{SPT}", f"s_and_b32 s{SX+1}, s{SPT+1}, 0xffff", f"s_mov_b32 s{SX+2}, {N*128}", f"s_mov_b32 s{SX+3}, 0x20000")
    for i in range(4): a(f"v_mov_b32 v{T+i}, 0")
    a(f"v_lshlrev_b32 v{T+4}, 4, v0", f"v_add_u32 v{T+4}, {L_ELL}, v{T+4}")
    for i in range(3): a(f"ds_write_b128 v{T+4}, {vr(T,4)} offset:{12288*i}")
    LN, F4, F2, PO, W3 = T + 4, T + 5, T + 6, T + 7, T + 8
    a(f"v_and_b32 v{LN}, 63, v0", f"v_lshlrev_b32 v{F4}, 2, v{LN}", f"v_lshlrev_b32 v{F2}, 1, v{LN}",
      f"v_and_b32 v{PO}, 8, v{LN}", f"v_lshlrev_b32 v{PO}, 3, v{PO}", f"v_and_b32 v{T}, 48, v{LN}", f"v_add_u32 v{PO}, v{PO}, v{T}",
      f"v_and_b32 v{T}, 7, v{LN}", f"v_lshl_add_u32 v{PO}, v{T}, 1, v{PO}",
      "s_movk_i32 s56, 16384", f"buffer_load_ushort v{W3}, v{F2}, s[52:55], s56 offen", "s_waitcnt vmcnt(0) lgkmcnt(0)",
      f"v_lshlrev_b32 v{W3}, 16, v{W3}", f"v_mul_f32 v{W3}, s66, v{W3}",
      f"s_mul_i32 s57, {BK}, {NB}", "s_mov_b32 s56, s3", "s_barrier")
    a.label("K2_BF1")
    DV, SV, EV = T + 9, T + 10, T + 11
    a("s_lshl_b32 s58, s56, 8", "s_lshl_b32 s59, s56, 7",
      f"buffer_load_dword v{DV}, v{F4}, s[{SD}:{SD+3}], s58 offen", "s_waitcnt vmcnt(0)",
      f"v_subrev_u32 v{DV}, s57, v{DV}", f"v_cmp_gt_u32 vcc, {NB}, v{DV}", "s_cbranch_vccz K2_BF3",
      f"buffer_load_dword v{SV}, v{F4}, s[{SS}:{SS+3}], s58 offen", f"buffer_load_ushort v{EV}, v{F2}, s[{SE}:{SE+3}], s59 offen",
      "s_mov_b64 s[60:61], vcc", "s_waitcnt vmcnt(0)")
    a.label("K2_BF2")
    a("s_ff1_i32_b64 s58, s[60:61]", "s_bitset0_b64 s[60:61], s58",
      f"v_readlane_b32 s59, v{SV}, s58", f"v_readlane_b32 s62, v{DV}, s58", f"v_readlane_b32 s63, v{EV}, s58",
      "s_min_u32 s59, s59, %d" % (N - 1), "s_lshl_b32 s59, s59, 7", f"buffer_load_ushort v{T}, v{PO}, s[{SX}:{SX+3}], s59 offen",
      f"s_mul_i32 s58, s62, {QSTR}", f"v_add_u32 v{T+1}, s58, v{F4}", f"ds_read_b32 v{T+1}, v{T+1} offset:{L_QS}",
      "s_lshl_b32 s63, s63, 16", "s_lshl_b32 s62, s62, 8", f"s_add_u32 s62, s62, {L_ELL}", f"v_add_u32 v{T+2}, s62, v{F4}",
      "s_waitcnt vmcnt(0) lgkmcnt(0)",
      f"v_lshlrev_b32 v{T}, 16, v{T}", f"v_add_f32 v{T}, v{T}, v{T+1}", f"v_fma_f32 v{T}, s63, v{W3}, v{T}",
      f"v_exp_f32 v{T+1}, v{T}", f"v_add_f32 v{T+1}, 1.0, v{T+1}", f"v_rcp_f32 v{T+1}, v{T+1}", *([] if EP and not EP & 4 else [f"v_mul_f32 v{T}, {NLN2:#x}, v{T}"]), f"v_mul_f32 v{T}, v{T}, v{T+1}",
      f"ds_add_f32 v{T+2}, v{T}", "s_cmp_lg_u64 s[60:61], 0", "s_cbranch_scc1 K2_BF2")
    a.label("K2_BF3")
    a("s_add_u32 s56, s56, 12", f"s_cmp_lt_u32 s56, {E//64}", "s_cbranch_scc1 K2_BF1")
    a("s_waitcnt lgkmcnt(0)", "s_barrier", f"v_mov_b32 v{T+4}, v0")
    a.label("K2_BF4")
    a(f"v_lshlrev_b32 v{T+5}, 3, v{T+4}", f"v_add_u32 v{T+5}, {L_ELL}, v{T+5}", f"ds_read_b64 {vr(T,2)}, v{T+5}",
      f"v_lshrrev_b32 v{T+5}, 5, v{T+4}", f"v_mul_u32_u24 v{T+5}, {ASTR}, v{T+5}", f"v_and_b32 v{T+6}, 31, v{T+4}", f"v_lshl_add_u32 v{T+5}, v{T+6}, 2, v{T+5}",
      "s_waitcnt lgkmcnt(0)", f"v_cvt_pk_bf16_f32 v{T}, v{T}, v{T+1}", f"ds_write_b32 v{T+5}, v{T} offset:{L_AGB}",
      f"v_add_u32 v{T+4}, 768, v{T+4}", f"v_cmpx_gt_u32 vcc, {NB*32}, v{T+4}", "s_cbranch_execnz K2_BF4")
    a("s_mov_b64 exec, -1", "s_mov_b32 s71, -1", "s_waitcnt lgkmcnt(0)", "s_barrier", "s_branch K2_EPI")
    return a.lines

def kd(name, vg, sg=102):
    return f""".amdhsa_kernel {name}
  .amdhsa_next_free_vgpr {vg}
  .amdhsa_next_free_sgpr {sg}
  .amdhsa_accum_offset {vg}
  .amdhsa_group_segment_fixed_size 0
  .amdhsa_kernarg_size 72
  .amdhsa_user_sgpr_count 2
  .amdhsa_user_sgpr_kernarg_segment_ptr 1
  .amdhsa_system_sgpr_workgroup_id_x 1
.end_amdhsa_kernel"""

def build(opt=None):
    opt = opt or {}
    out = ["; mpnn edge MLP: K1 bins edges by destination bucket and builds the P' table, K2 aggregates and updates",
           f"; @launch kernel=mpnn_bin_kernel grid=(256,1,1) block=(1024,1,1) lds={K1_LDS}",
           f"; @launch kernel=mpnn_msg_kernel grid=(256,1,1) block=(768,1,1) lds={K2_LDS}",
           '.amdgcn_target "amdgcn-amd-amdhsa--gfx950"', ".text"]
    for name, fn in (("mpnn_bin_kernel", gen_k1), ("mpnn_msg_kernel", gen_k2)):
        lines, nn = fix_hazards(fn(opt), verbose=opt.get("verbose"))
        out += [f".globl {name}", ".p2align 8", f".type {name},@function"] + lines
    out += ['.section .rodata,"a"', ".p2align 6", kd("mpnn_bin_kernel", 128), ".p2align 6", kd("mpnn_msg_kernel", 168)]
    return "\n".join(out) + "\n"

if __name__ == "__main__":
    import argparse
    ap = argparse.ArgumentParser(); ap.add_argument("-o", default="standalone__mpnn_edge_mlp__graph.s")
    ap.add_argument("--stamp", type=int, default=0); ap.add_argument("-v", action="store_true"); ap.add_argument("--opt", default="{}")
    g = ap.parse_args()
    open(g.o, "w").write(build({"stamp": g.stamp, "verbose": g.v, **eval(g.opt)}))
```

```python
import sys, struct, math
sys.path.insert(0, "gen")
from asmlib import *

N = 25000; E = 800000; NB = 98; CH = 3128; CAP = 72
WS_RA = 0x400000; WS_DA = 0x800000; WS_RB = 0xA00000; WS_WF = 0x380000; WS_END = WS_RB + 0x800000
MARK = 0xFEFEFEFE
WS_PR = 0x2000000; WS_HDR = WS_WF + 0x8000
WS_STAMP = 0x1400000
f2u = lambda f: struct.unpack("<I", struct.pack("<f", f))[0]
NLOG2E = f2u(-1.4426950408889634); NLN2 = f2u(-0.6931471805599453)
NTILE = (N + 15) // 16

def mf16(d, a, b, c): return f"v_mfma_f32_16x16x32_bf16 {vr(d,4)}, {vr(a,4)}, {vr(b,4)}, {c if isinstance(c,str) else vr(c,4)}"
def mf32(d, a, b, c): return f"v_mfma_f32_32x32x16_bf16 {vr(d,16)}, {vr(a,4)}, {vr(b,4)}, {vr(c,16)}"

class Stamps:
    def __init__(self, a, on, base, kidx, nw): self.a = a; self.on = on; self.base = base; self.k = 0; self.kidx = kidx; self.nw = nw
    def __call__(self):
        if not self.on: return
        r = self.base + 2 * self.k; self.k += 1
        if self.on == 3 and (self.k - 1) not in ((0, 5), (0, 1, 7, 8))[self.kidx]: return
        self.a(f"s_waitcnt lgkmcnt(0)", f"s_memrealtime s[{r}:{r+1}]", "s_waitcnt lgkmcnt(0)")
    def early(self):
        if not self.on: return
        r = self.base + 2 * self.k; self.k += 1
        self.a(f"s_memrealtime s[{r}:{r+1}]")
    def flush(self, ws, wave, t0, t1):
        if not self.on: return
        a = self.a
        self()
        a("s_mov_b64 exec, -1")
        a(f"v_mov_b32 v{t0}, 0")
        for k in range(self.k): a(f"v_writelane_b32 v{t0}, s{self.base+2*k}, {k}")
        if self.kidx == 1: a(f"v_writelane_b32 v{t0}, s60, 9", f"v_writelane_b32 v{t0}, s62, 10")
        if self.kidx == 1: a(f"v_writelane_b32 v{t0}, s98, 13", f"v_writelane_b32 v{t0}, s96, 12", f"v_writelane_b32 v{t0}, s97, 11", f"v_writelane_b32 v{t0}, s69, 15", f"s_getreg_b32 s69, hwreg(HW_REG_HW_ID)", f"v_writelane_b32 v{t0}, s69, 14")
        if self.on == 2 and self.kidx == 1:
            b = self.base
            a(f"s_add_u32 s{b}, s2, s{wave}", f"s_cmp_lg_u32 s{b}, 0", f"s_cbranch_scc1 STK{self.kidx}",
              f"s_load_dwordx2 s[{b}:{b+1}], s[0:1], 56", f"v_and_b32 v{t1}, 63, v0", f"v_lshlrev_b32 v{t1}, 2, v{t1}",
              f"v_add_u32 v{t1+1}, {WS_STAMP}, v{t1}", f"global_load_dword v{t1+1}, v{t1+1}, s[{ws}:{ws+1}]",
              "s_waitcnt vmcnt(0) lgkmcnt(0)", f"s_mov_b64 exec, 0x3ff", f"global_store_dword v{t1}, v{t0}, s[{b}:{b+1}] offset:24",
              f"s_mov_b64 exec, 0x3f", f"global_store_dword v{t1}, v{t1+1}, s[{b}:{b+1}]")
            a.label(f"STK{self.kidx}")
            return
        a(f"s_mul_i32 s{self.base}, s2, {self.nw}", f"s_add_u32 s{self.base}, s{self.base}, s{wave}", f"s_lshl_b32 s{self.base}, s{self.base}, 6",
          f"s_add_u32 s{self.base}, s{self.base}, {WS_STAMP + self.kidx * 0x100000}",
          f"v_and_b32 v{t1}, 63, v0", f"v_lshlrev_b32 v{t1}, 2, v{t1}", f"v_add_u32 v{t1}, s{self.base}, v{t1}",
          "s_mov_b64 exec, 0xffff", f"global_store_dword v{t1}, v{t0}, s[{ws}:{ws+1}]")

def srd(a, r, lo, hi, num, stride=0):
    a(f"s_mov_b32 s{r}, s{lo}")
    if stride: a(f"s_or_b32 s{r+1}, s{hi}, {stride << 16:#x}")
    else: a(f"s_mov_b32 s{r+1}, s{hi}")
    a(f"s_mov_b32 s{r+2}, {num}", f"s_mov_b32 s{r+3}, 0x20000")

K1_DA = 32768; K1_CNT = 40960; K1_XS = K1_CNT + 1024; K1_LDS = K1_XS + 3 * 6144
def gen_k1(opt):
    a = Asm(); st = Stamps(a, opt.get("stamp"), 70, 0, 16)
    a.label("mpnn_bin_kernel")
    if opt.get("cpf") == 2:
        a("s_getpc_b64 s[48:49]", "v_lshlrev_b32 v54, 7, v0", "v_min_u32 v54, K2_END-mpnn_bin_kernel-4, v54", "global_load_dword v55, v54, s[48:49]")
    a("s_cmp_ge_u32 s2, 256", "s_cbranch_scc1 K1_END")
    if opt.get("dly"):
        a("s_memrealtime s[4:5]", "s_waitcnt lgkmcnt(0)")
        a.label("K1_DL")
        a("s_sleep 1", "s_memrealtime s[6:7]", "s_waitcnt lgkmcnt(0)", "s_sub_u32 s6, s6, s4", f"s_cmp_lt_u32 s6, {opt['dly']}", "s_cbranch_scc1 K1_DL")
    a("s_load_dwordx8 s[4:11], s[0:1], 0", "s_load_dwordx4 s[12:15], s[0:1], 32", "s_load_dwordx2 s[16:17], s[0:1], 64")
    if opt.get("pw0"): a(f"v_add_u32 v0, {64*opt['pw0']}, v0", "v_and_b32 v0, 1023, v0")
    a("v_lshrrev_b32 v1, 6, v0", "v_lshlrev_b32 v7, 4, v0", "v_readfirstlane_b32 s3, v1", "v_lshlrev_b32 v4, 3, v0")
    a("v_mov_b32 v46, -1", "v_mov_b32 v47, -1", f"ds_write_b64 v4, v[46:47] offset:{K1_DA}",
      "v_and_b32 v45, 255, v0", "v_lshlrev_b32 v44, 2, v45", "v_lshlrev_b32 v45, 5, v45", f"ds_write_b32 v44, v45 offset:{K1_CNT}")
    a("s_and_b32 s40, s2, 7", "s_lshr_b32 s41, s2, 3")
    a(f"s_mov_b32 s34, {WS_END}", "s_mov_b32 s35, 0x20000")
    CO = 44
    def co_addr():
        IL = opt.get("il", 0); RBS = opt.get("rbs", 7)
        a("s_lshl_b32 s42, s40, 5", "s_add_u32 s42, s42, s41",
          "s_lshl_b32 s43, s42, 5", f"s_add_u32 s43, s43, {WS_RA + 16384 if IL else WS_DA}", f"s_lshl_b32 s44, s42, {RBS}", "s_lshl_b32 s42, s42, 6", f"s_add_u32 s44, s44, {WS_RA + 24576 if IL else WS_RB}", f"s_add_u32 s42, s42, {WS_RA}")
        a(f"v_lshrrev_b32 v{CO+6}, 2, v0", f"v_and_b32 v{CO+5}, 3, v0")
        if IL: a(f"v_mul_u32_u24 v{CO}, {IL}, v{CO+6}", f"v_lshl_add_u32 v{CO+1}, v{CO+5}, 3, v{CO}", f"v_lshl_add_u32 v{CO}, v{CO+5}, 4, v{CO}", f"v_mov_b32 v{CO+8}, v{CO}")
        else: a(f"v_lshlrev_b32 v{CO+1}, 13, v{CO+6}", f"v_lshl_add_u32 v{CO+1}, v{CO+5}, 3, v{CO+1}", f"v_lshlrev_b32 v{CO}, 1, v{CO+1}", f"v_lshl_add_u32 v{CO+8}, v{CO+6}, 14, v{CO}")
        a(
          f"v_lshlrev_b32 v{CO+2}, 7, v{CO+6}", f"v_lshl_add_u32 v{CO+2}, v{CO+5}, 4, v{CO+2}", f"v_and_b32 v{CO+3}, 64, v0", f"v_add_u32 v{CO+2}, v{CO+2}, v{CO+3}", f"v_xor_b32 v{CO+3}, 64, v{CO+2}",
          f"v_bfe_u32 v{CO+4}, v0, 4, 2", f"v_xor_b32 v{CO+5}, v{CO+5}, v{CO+4}", f"v_lshlrev_b32 v{CO+6}, 5, v{CO+6}", f"v_lshl_add_u32 v{CO+5}, v{CO+5}, 2, v{CO+6}", f"v_add_u32 v{CO+5}, 16, v{CO+5}",
          *([f"v_add_u32 v{CO+5}, 16, v{CO+6}"] if opt.get("bfull", 1) else []), f"v_add_u32 v{CO+6}, 32, v{CO+6}", f"v_and_b32 v{CO+4}, 0x3fc, v0", f"v_lshlrev_b32 v{CO+7}, 3, v0")
    a("s_cmp_ge_u32 s3, 13", "s_cbranch_scc1 K1_P")
    DST, SRC, EE, B, DL, S, LIM, REC = 8, 12, 16, 20, 24, 28, 32, 36
    a(f"s_mul_i32 s18, s2, {CH}", f"s_sub_u32 s19, {E}, s18", f"s_min_u32 s19, s19, {CH}", "s_lshl_b32 s36, s18, 2", "s_lshl_b32 s37, s18, 1")
    for r, n in ((20, E * 4), (24, E * 4), (28, E * 2)): a(f"s_mov_b32 s{r+2}, {n}", f"s_mov_b32 s{r+3}, 0x20000")
    a("v_lshlrev_b32 v1, 2, v0", "v_cmp_gt_u32 vcc, s19, v1")
    if opt.get("cpf") == 1:
        a("s_cmp_lg_u32 s3, 12", "s_cbranch_scc1 K1_NPF", "s_getpc_b64 s[48:49]")
        a.label("K1_PC")
        a("s_add_u32 s48, s48, mpnn_msg_kernel-K1_PC", "s_addc_u32 s49, s49, 0", "v_and_b32 v54, 63, v0", "v_lshlrev_b32 v54, 7, v54",
          "v_min_u32 v54, K2_END-mpnn_msg_kernel, v54", "global_load_dword v55, v54, s[48:49]")
        a.label("K1_NPF")
    a("s_waitcnt lgkmcnt(0)")
    st()
    a("s_mov_b32 s20, s10", "s_mov_b32 s21, s11", f"buffer_load_dwordx4 {vr(DST,4)}, v7, s[20:23], s36 offen {opt.get('lflag', '')}")
    a("s_mov_b32 s24, s8", "s_mov_b32 s25, s9", "s_mov_b32 s28, s6", "s_mov_b32 s29, s7", "s_mov_b32 s32, s16", "s_mov_b32 s33, s17")
    a("s_barrier")
    a(f"buffer_load_dwordx4 {vr(SRC,4)}, v7, s[24:27], s36 offen {opt.get('lflag', '')}", f"buffer_load_dwordx2 {vr(EE,2)}, v4, s[28:31], s37 offen {opt.get('lflag', '')}")
    co_addr()
    if opt.get("tlb"):
        a("s_cmp_lg_u32 s3, 12", "s_cbranch_scc1 K1_NT", "v_and_b32 v54, 63, v0", f"v_mul_u32_u24 v54, {opt['tlb']}, v54", "buffer_load_dword v55, v54, s[32:35], 0 offen", "s_waitcnt vmcnt(1)")
        a.label("K1_NT")
    a("v_mov_b32 v6, 1", "s_movk_i32 s38, -98", "s_mov_b32 s39, 0xffff0000")
    a("s_mov_b64 exec, vcc", "s_cbranch_execz K1_B1")
    a("s_waitcnt vmcnt(2)")
    st()
    for i in range(4):
        a(f"v_mul_u32_u24 v{B+i}, 21400, v{DST+i}", f"v_lshrrev_b32 v{B+i}, 21, v{B+i}", f"v_lshlrev_b32 v{S+i}, 2, v{B+i}",
          f"ds_add_rtn_u32 v{S+i}, v{S+i}, v6 offset:{K1_CNT}")
    for i in range(4): a(f"v_mad_i32_i24 v{DL+i}, v{B+i}, s38, v{DST+i}", f"v_lshl_or_b32 v{LIM+i}, v{B+i}, 5, 31", f"v_and_b32 v{B+i}, 31, v{B+i}")
    for i in range(4):
        a(f"s_waitcnt lgkmcnt(3)", f"v_min_u32 v{S+i}, v{S+i}, v{LIM+i}", f"v_xor_b32 v{S+i}, v{S+i}, v{B+i}", f"ds_write_b8 v{S+i}, v{DL+i} offset:{K1_DA}")
    for i in range(4): a(f"v_lshlrev_b32 v{LIM+i}, 2, v{S+i}")
    a("s_waitcnt vmcnt(0)")
    st()
    if opt.get("smask"):
        for i in range(4): a(f"v_and_b32 v{SRC+i}, {opt['smask']}, v{SRC+i}")
    for i in range(4):
        if i % 2 == 0: a(f"v_lshl_or_b32 v{REC+i}, v{EE+i//2}, 16, v{SRC+i}")
        else: a(f"v_and_or_b32 v{REC+i}, v{EE+i//2}, s39, v{SRC+i}")
        a(f"ds_write_b32 v{LIM+i}, v{REC+i}")
    a.label("K1_B1")
    a("s_mov_b64 exec, -1")
    st.k = 3; st()
    a("s_waitcnt lgkmcnt(0)", "s_barrier")
    st()
    a(f"ds_read_b128 v[8:11], v{CO+2}", f"ds_read_b32 v18, v{CO+4} offset:{K1_CNT}", f"ds_read_b64 v[16:17], v{CO+7} offset:{K1_DA}", f"ds_read_b128 v[12:15], v{CO+3}")
    if "r" in opt.get("x1", ""): a("s_lshl_b32 s42, s2, 14", f"s_add_u32 s42, s42, {WS_RA}", f"v_lshlrev_b32 v{CO}, 4, v0")
    a("s_waitcnt lgkmcnt(3)")
    if "a" not in opt.get("x1", ""): a(f"buffer_store_dwordx4 v[8:11], v{CO}, s[32:35], s42 offen {opt.get('dflag', '')}")
    a("s_waitcnt lgkmcnt(1)", f"v_cmp_gt_u32 vcc, v18, v{CO+6}", f"v_cmp_gt_u32 s[46:47], v18, v{CO+5}", "s_cbranch_vccnz K1_OV")
    a.label("K1_OVR")
    x = opt.get("x1", "")
    if "c" in x:
        a("s_lshl_b32 s43, s2, 13", f"s_add_u32 s43, s43, {WS_DA}", f"buffer_store_dwordx2 v[16:17], v{CO+7}, s[32:35], s43 offen {opt.get('dflag', '')}")
    elif "h" in x:
        a(f"s_sub_u32 s43, s43, {WS_DA}", "s_lshr_b32 s43, s43, 1", f"s_add_u32 s43, s43, {WS_DA}", f"v_lshrrev_b32 v{CO+1}, 1, v{CO+1}", f"buffer_store_dword v16, v{CO+1}, s[32:35], s43 offen {opt.get('dflag', '')}")
    elif "d" not in x: a(f"buffer_store_dwordx2 v[16:17], v{CO+1}, s[32:35], s43 offen {opt.get('dflag', '')}")
    if "b" not in x: a("s_mov_b64 exec, s[46:47]", "s_waitcnt lgkmcnt(0)", f"buffer_store_dwordx4 v[12:15], v{CO+8}, s[32:35], s44 offen", *([] if opt.get("bhalf", 1) else [f"buffer_store_dwordx4 v[8:11], v{CO+8}, s[32:35], s44 offen offset:64"]))
    if st.on or opt.get("kw"): a("s_waitcnt vmcnt(0)")
    st.flush(16, 3, 20, 21)
    if opt.get("kp"):
        a("s_mov_b64 exec, -1", f"s_mul_i32 s45, s41, {782*128}", "v_lshlrev_b32 v60, 7, v0", f"v_cmp_gt_u32 vcc, {opt['kp']}, v0", "s_and_b64 exec, exec, vcc", "s_cbranch_execz K1_END", "buffer_load_dword v61, v60, s[32:35], s45 offen")
    a.label("K1_END")
    a("s_endpgm")
    a.label("K1_OV")
    a(f"v_mov_b32 v18, {MARK:#x}", "v_cndmask_b32 v16, v16, v18, vcc", "v_cndmask_b32 v17, v17, v18, vcc", "s_branch K1_OVR")
    W, A, X, D, O, FR = 8, 40, 72, 96, 112, 120
    a.label("K1_P")
    a("v_and_b32 v1, 15, v0", "v_bfe_u32 v2, v0, 4, 2",
      "v_lshlrev_b32 v3, 10, v2", "v_lshl_add_u32 v5, v1, 1, v3", "v_lshl_add_u32 v3, v1, 3, v3",
      "v_lshlrev_b32 v4, 7, v1", "v_lshl_add_u32 v4, v2, 4, v4")
    PC = opt.get("pc", 0)
    if PC & 1:
        a("v_bfe_u32 v6, v0, 1, 2", "v_lshlrev_b32 v3, 10, v2", "v_lshl_add_u32 v3, v6, 5, v3", "v_and_b32 v6, 8, v0", "v_lshl_add_u32 v3, v6, 1, v3", "v_and_b32 v6, 1, v0", "v_lshl_add_u32 v3, v6, 3, v3",
          "v_lshlrev_b32 v7, 9, v2", "v_lshl_add_u32 v7, v1, 3, v7")
    if PC & 2:
        a("v_and_b32 v55, 63, v0", "v_xor_b32 v55, v55, v2", "v_lshlrev_b32 v55, 4, v55", "v_xor_b32 v56, 64, v55",
          "s_mul_i32 s52, s3, 6144", f"s_add_u32 s52, s52, {K1_XS - 13*6144}",
          "v_lshrrev_b32 v4, 1, v1", "v_xor_b32 v4, v4, v2", "v_lshlrev_b32 v4, 4, v4", "v_lshl_add_u32 v4, v1, 7, v4", "v_add_u32 v4, s52, v4")
    a("s_mul_i32 s18, s41, 3", "s_add_u32 s18, s18, s3", "s_sub_u32 s18, s18, 13",
      "s_mul_i32 s36, s40, 196", "s_add_u32 s36, s36, s18",
      "s_lshl_b32 s36, s36, 11", f"s_add_u32 s37, s36, {96*2048}", f"s_add_u32 s38, s36, {192*2048}", "s_movk_i32 s39, 4096")
    for r, n in ((20, 129 * 128), (24, N * 128), (28, N * 128), (48, 128 * 128)): a(f"s_mov_b32 s{r+2}, {n}", f"s_mov_b32 s{r+3}, 0x20000")
    a("s_sub_u32 s19, s2, 16", "s_cmp_eq_u32 s3, 15", "s_cselect_b32 s19, s19, 100")
    a("s_waitcnt lgkmcnt(0)")
    st.k = 0; st()
    a("s_mov_b32 s24, s4", "s_mov_b32 s25, s5", "s_mov_b32 s20, s12", "s_mov_b32 s21, s13")
    a("s_cmp_le_u32 s19, 24", "s_cbranch_scc1 K1_FL")
    a.label("K1_FLR")
    def xload(i):
        if PC & 2: a(f"s_add_u32 m0, s52, {2048*i}", f"buffer_load_dwordx4 v55, s[24:27], s{36+i} offen lds", f"buffer_load_dwordx4 v56, s[24:27], s{36+i} offen offset:1024 lds")
        else:
            for s in range(2): a(f"buffer_load_dwordx4 {vr(X+8*i+4*s,4)}, v4, s[24:27], s{36+i} offen offset:{64*s} {opt.get('xflag', '')}")
    def xread(i):
        if PC & 2: a(f"ds_read_b128 {vr(X+8*i,4)}, v4 offset:{2048*i}", f"ds_read_b128 {vr(X+8*i+4,4)}, v3 offset:{2048*i}")
    for i in range(2): xload(i)
    for s in range(2):
        for kk in range(8): a(f"buffer_load_dwordx2 {vr(W+16*s+2*kk,2)}, v3, s[20:23], {'s39' if s else '0'} offen offset:{128*kk}")
    a("s_cmp_lt_u32 s18, 4", "s_cselect_b64 exec, -1, 0")
    xload(2)
    a("s_mov_b64 exec, -1")
    assert PC != 2
    if PC & 2: a("v_xor_b32 v3, 64, v4")
    a("s_barrier")
    if opt.get("rot"):
        a(*(["s_memrealtime s[52:53]", "s_waitcnt lgkmcnt(0)", "s_lshr_b32 s52, s52, 12"] if opt.get("trot") else ["s_lshr_b32 s52, s0, 4"]), "s_mul_i32 s52, s52, 0x9e3779b1", f"s_lshr_b32 s52, s52, {32 - opt['rot']}", "s_lshl_b32 s52, s52, 22", f"s_add_u32 s53, s52, {WS_PR}",
          "s_add_u32 s28, s16, s53", "s_addc_u32 s29, s17, 0", "s_mov_b32 s32, s16", "s_mov_b32 s33, s17")
    else: a("s_mov_b32 s28, s16", "s_mov_b32 s29, s17", "s_mov_b32 s32, s16", "s_mov_b32 s33, s17")
    a("s_mov_b32 s44, 0x05040100", "s_mov_b32 s45, 0x07060302", f"s_mov_b32 s46, {NLOG2E:#x}", f"s_mov_b32 s47, {NLOG2E:#x}")
    a("s_waitcnt vmcnt(2)")
    st()
    xread(0); xread(1)
    for tau in range(4):
        for s in range(2):
            for rr in range(4):
                a(f"v_perm_b32 v{A+8*tau+4*s+rr}, v{W+16*s+2*(2*rr+1)+tau//2}, v{W+16*s+2*(2*rr)+tau//2}, s{44+tau%2}")
    for i in range(3):
        if i == 2:
            a(f"s_cmp_ge_u32 s18, 4", "s_cbranch_scc1 K1_PD", "s_waitcnt vmcnt(%d)" % (8 if PC & 1 else 4))
            xread(2)
        if PC & 2 and i != 1: a("s_waitcnt lgkmcnt(0)")
        sw = (lambda w, x: (x, w)) if PC & 1 else (lambda w, x: (w, x))
        for tau in range(4): a(mf16(D+4*tau, *sw(A+8*tau, X+8*i), "0"))
        for tau in range(4): a(mf16(D+4*tau, *sw(A+8*tau+4, X+8*i+4), D+4*tau))
        for k in range(0, 16, 2): a(f"v_pk_mul_f32 {vr(D+k,2)}, {vr(D+k,2)}, s[46:47]")
        for r in range(4):
            for h in range(2): a(f"v_cvt_pk_bf16_f32 v{O+2*r+h}, v{D+4*(2*h)+r}, v{D+4*(2*h+1)+r}")
        if "p" in opt.get("x1", ""): pass
        elif PC & 1:
            for r in range(4): a(f"buffer_store_dwordx2 {vr(O+2*r,2)}, v7, s[28:31], s{36+i} offen offset:{128*r} {opt.get('pflag', '')}")
        elif opt.get("pfull"): a("v_and_b32 v6, 63, v0", "v_lshlrev_b32 v6, 4, v6", f"buffer_store_dwordx4 {vr(O,4)}, v6, s[28:31], s{36+i} offen {opt.get('pflag', '')}", f"buffer_store_dwordx4 {vr(O+4,4)}, v6, s[28:31], s{36+i} offen offset:1024 {opt.get('pflag', '')}")
        else: a(f"buffer_store_dwordx4 {vr(O,4)}, v4, s[28:31], s{36+i} offen {opt.get('pflag', '')}", f"buffer_store_dwordx4 {vr(O+4,4)}, v4, s[28:31], s{36+i} offen offset:64 {opt.get('pflag', '')}")
    a.label("K1_PD")
    st()
    a("s_cmp_le_u32 s19, 24", "s_cbranch_scc1 K1_FS")
    a.label("K1_PE")
    if opt.get("cpf", 3) == 3:
        a("s_lshr_b32 s19, s2, 5", "s_add_u32 s19, s19, s3", "s_cmp_lg_u32 s19, 18", "s_cbranch_scc1 K1_NPF", "s_getpc_b64 s[48:49]")
        a.label("K1_PC")
        a("s_add_u32 s48, s48, mpnn_msg_kernel-K1_PC", "s_addc_u32 s49, s49, 0", "v_and_b32 v54, 63, v0", "v_lshlrev_b32 v54, 7, v54",
          *([f"v_add_u32 v56, 8192, v54", f"v_min_u32 v56, {opt['cp2']}-mpnn_msg_kernel, v56", "global_load_dword v57, v56, s[48:49]"] if opt.get("cp2") else []),
          "v_min_u32 v54, K2_END-mpnn_msg_kernel, v54", "global_load_dword v55, v54, s[48:49]")
        a.label("K1_NPF")
    if opt.get("wb"):
        msk, slp = opt["wb"]
        a(f"s_and_b32 s19, s41, {msk}", "s_add_u32 s19, s19, s3", f"s_cmp_lg_u32 s19, {msk + 15}", "s_cbranch_scc1 K1_NWB", "s_waitcnt vmcnt(0)", *([f"s_sleep {slp}"] if slp else []), "buffer_wbl2 sc1")
        a.label("K1_NWB")
    co_addr()
    a("s_branch K1_B1")
    a.label("K1_FL")
    a("s_cmp_eq_u32 s19, 8", "s_cbranch_scc1 K1_FA", "s_cmp_gt_u32 s19, 8", "s_cbranch_scc1 K1_FU")
    a("s_lshr_b32 s42, s19, 1", "s_and_b32 s43, s19, 1", "s_lshl_b32 s42, s42, 5", "s_lshl_b32 s43, s43, 12", "s_add_u32 s43, s43, s42", "s_add_u32 s43, s43, 8192")
    for kk in range(8): a(f"buffer_load_ushort v{FR+kk}, v5, s[20:23], s43 offen offset:{128*kk}")
    a("s_branch K1_FLR")
    a.label("K1_FU")
    a("s_mov_b32 s48, s14", "s_mov_b32 s49, s15")
    if opt.get("ep", 0) & 8:
        a("s_sub_u32 s43, s19, 9", "s_lshr_b32 s42, s43, 3", "s_lshl_b32 s42, s42, 6", "s_bfe_u32 s44, s43, 0x10002", "s_lshl_b32 s44, s44, 1", "s_add_u32 s42, s42, s44",
          "s_and_b32 s43, s43, 3", "s_lshl_b32 s43, s43, 12", "s_add_u32 s43, s43, s42", "v_lshl_add_u32 v5, v1, 1, v5")
    else: a("s_sub_u32 s43, s19, 9", "s_lshr_b32 s42, s43, 2", "s_and_b32 s43, s43, 3", "s_lshl_b32 s42, s42, 5", "s_lshl_b32 s43, s43, 12", "s_add_u32 s43, s43, s42")
    for kk in range(8): a(f"buffer_load_ushort v{FR+kk}, v5, s[48:51], s43 offen offset:{128*kk}")
    a("s_branch K1_FLR")
    a.label("K1_FA")
    a("v_bfe_u32 v5, v0, 3, 2", "v_and_b32 v6, 3, v0", "v_lshl_add_u32 v5, v5, 2, v6", "v_lshlrev_b32 v5, 1, v5", "s_movk_i32 s43, 16384")
    for c in range(4): a(f"buffer_load_ushort v{FR+c}, v5, s[20:23], s43 offen offset:{32*c}")
    a("s_branch K1_FLR")
    a.label("K1_FS")
    a("v_and_b32 v5, 63, v0", "v_lshlrev_b32 v5, 4, v5", "s_lshl_b32 s36, s19, 10", f"s_add_u32 s36, s36, {WS_WF}")
    a("s_cmp_eq_u32 s19, 8", "s_cbranch_scc1 K1_AE")
    if opt.get("wsc"):
        msk = sum(1 << t for t in range(9, 25) if (t - 9) & 2 == 0) | (0xff if opt["wsc"] & 2 else 0)
        a(f"s_mov_b32 s37, {msk:#x}", "s_bitcmp0_b32 s37, s19", "s_cbranch_scc1 K1_FR")
        for c in range(8): a(f"v_lshlrev_b32 v{FR+c}, 16, v{FR+c}", f"v_mul_f32 v{FR+c}, s46, v{FR+c}")
        for rr in range(4): a(f"v_cvt_pk_bf16_f32 v{W+rr}, v{FR+2*rr}, v{FR+2*rr+1}")
        a(f"buffer_store_dwordx4 {vr(W,4)}, v5, s[32:35], s36 offen", "s_branch K1_PE")
        a.label("K1_FR")
    for rr in range(4): a(f"v_lshl_or_b32 v{W+rr}, v{FR+2*rr+1}, 16, v{FR+2*rr}")
    a(f"buffer_store_dwordx4 {vr(W,4)}, v5, s[32:35], s36 offen", "s_branch K1_PE")
    a.label("K1_AE")
    if opt.get("rot"): a("v_mov_b32 v2, s52", f"s_mov_b32 s53, {WS_HDR}", "buffer_store_dword v2, v5, s[32:35], s53 offen")
    a("v_bfe_u32 v2, v0, 2, 1", "v_bfe_u32 v3, v0, 5, 1", "v_cmp_eq_u32 vcc, v2, v3")
    for c in range(4):
        a(f"v_lshlrev_b32 v{FR+c}, 16, v{FR+c}", f"v_mul_f32 v{FR+c}, s46, v{FR+c}", f"v_cvt_pk_bf16_f32 v{FR+c}, 0, v{FR+c}", f"v_cndmask_b32 v{W+c}, 0, v{FR+c}, vcc")
    a(f"buffer_store_dwordx4 {vr(W,4)}, v5, s[32:35], s36 offen", "s_branch K1_PE")
    return a.lines

import os
L_AGB = 0; ASTR = int(os.environ.get('ASTR', 144))
L_QS = L_AGB + 112 * ASTR; QSTR = 272
L_CTR = L_QS + 112 * QSTR; L_OVC = L_CTR + 448; L_FLG = L_CTR + 452; L_CT2 = L_CTR + 512; L_SLOT = L_CTR + 1024; L_OVL = L_SLOT + 512
L_XS = L_OVL + 1024; L_WF = L_XS + 14336
L_ELL = L_WF + 25600; ESTR = 516; EROWS = 83
K2_LDS = L_ELL + 3 * 768 * 16 + 6144
assert K2_LDS >= L_ELL + EROWS * ESTR and L_ELL % 16 == 0 and L_XS % 256 == 0 and L_CTR % 256 == 0 and L_ELL + 512 < (1 << 17), (L_XS, L_ELL)
ZCOL = 112 * 4; DUMP = L_ELL + CAP * ESTR + 400; HCOL = 116 * 4

def gen_k2(opt):
    a = Asm(); st = Stamps(a, opt.get("stamp"), 78, 1, 12)
    perm = opt.get("perm", [0, 1, 2, 3, 10, 6, 5, 4, 11, 9, 8, 7])
    RG = opt.get("ring", 2); small = opt.get("small", 1); dp = opt.get("dprio", [8, 4, 2])
    Q, P, Z0, Z1, NN, DD, EX, BE, AL, AH, AE, IX, VI, VE, LEN, AGA, MFL, OOF, ARD, ARX = \
        8, 24, 56, 72, 88, 104, 120, 136, 140, 144, 148, 152, 154, 155, 159, 160, 161, 162, 163, 164
    WU = BE; NP = opt.get("np", 0)
    R = Z0
    AD = NN
    TG = DD
    W2 = Q; X = P
    SP, PP5, EH, QC, AC = DD + 8, DD + 9, DD + 10, DD + 11, DD + 12
    SWS, SPT, SX, SO = 24, 28, 32, 36
    MK = 40
    BK = "s76"
    ws = f"s[{SWS}:{SWS+3}]"
    a.label("mpnn_msg_kernel")
    a("s_cmp_ge_u32 s2, 256", "s_cbranch_scc1 K2_END")
    st.early()
    a("s_load_dwordx2 s[20:21], s[0:1], 64", "s_load_dwordx16 s[4:19], s[0:1], 0")
    a("v_lshrrev_b32 v1, 6, v0", "v_lshlrev_b32 v2, 4, v0", "v_readfirstlane_b32 s3, v1")
    for i in range(4): a(f"v_mov_b32 v{Q+i}, 0")
    a(f"v_add_u32 v4, {L_ELL}, v2")
    a("v_and_b32 v5, 255, v0", "v_lshlrev_b32 v5, 2, v5", f"v_add_u32 v6, {L_ELL}, v5", f"v_cmp_gt_u32 vcc, {NB*4}, v5")
    a(f"s_and_b32 {BK}, s2, 7", f"s_lshl_b32 {BK}, {BK}, 5", "s_lshr_b32 s64, s2, 3", f"s_add_u32 {BK}, {BK}, s64")
    a("v_cndmask_b32 v6, 0, v6, vcc", f"ds_write_b32 v5, v6 offset:{L_CTR}")
    for i in range(3): a(f"ds_write_b128 v4, {vr(Q,4)} offset:{12288*i}")
    a(f"v_lshlrev_b32 v5, 3, v0", f"v_add_u32 v5, {L_ELL + 3*12288}, v5", f"ds_write_b64 v5, {vr(Q,2)}")
    IL = opt.get("il", 0); RBS = opt.get("rbs", 7)
    assert WS_RA + 256 * IL <= WS_END and (not IL or IL >= 24576 + (256 << RBS))
    if IL: a(f"s_mul_i32 s66, {BK}, {IL}", f"s_add_u32 s62, s66, {WS_RA + 24576}", f"s_add_u32 s64, s66, {WS_RA - 4096}", "s_add_u32 s65, s64, 8192",
      f"s_and_b32 s67, {BK}, 16", "s_add_u32 s66, s66, s67", f"s_add_u32 s66, s66, {WS_RA + 16384}", "s_xor_b32 s60, s66, 16",
      "s_sub_u32 s66, s66, 2048", "s_add_u32 s67, s66, 4096")
    else: a(f"s_lshl_b32 s64, {BK}, 14", f"s_lshl_b32 s62, {BK}, 15", f"s_add_u32 s62, s62, {WS_RB}", f"s_add_u32 s64, s64, {WS_RA - 4096}", "s_add_u32 s65, s64, 8192",
      f"s_lshl_b32 s66, {BK}, 13", f"s_and_b32 s67, {BK}, 16", "s_add_u32 s66, s66, s67", f"s_add_u32 s66, s66, {WS_DA}", "s_xor_b32 s60, s66, 16",
      "s_sub_u32 s66, s66, 2048", "s_add_u32 s67, s66, 4096")
    a(f"s_mul_i32 s69, {BK}, {NB}", f"s_sub_u32 s70, {N}, s69", f"s_min_u32 s70, s70, {NB}", "s_lshl_b32 s70, s70, 7", "s_lshl_b32 s71, s69, 7")
    a("s_and_b32 s72, s3, 3", "s_lshr_b32 s73, s3, 2")
    a(f"s_mov_b32 s{SWS+2}, {WS_END}", f"s_mov_b32 s{SWS+3}, 0x20000", f"s_mov_b32 s{SX+2}, s70", f"s_mov_b32 s{SX+3}, 0x20000")
    a(f"v_and_b32 v4, 3, v0", "v_and_b32 v6, 63, v0", "v_lshlrev_b32 v6, 4, v6")
    a("v_lshlrev_b32 v3, 5, v0", "v_lshrrev_b32 v5, 2, v0", "v_lshlrev_b32 v5, 5, v5", "v_lshl_add_u32 v5, v4, 2, v5")
    BS = opt.get("bs", 0); BP = opt.get("bp", "a")
    if BS: a("v_lshlrev_b32 v166, 3, v6", "s_andn2_b32 s77, s2, 7", "s_add_u32 s77, s77, s3", "s_sub_u32 s77, s77, 4", f"s_mul_i32 s77, s77, {BS*128}", "s_and_b32 s61, s2, 7", f"s_mul_i32 s61, s61, {(25000 - 256*BS)//7*128 if opt.get('xo', 1) else 0}", "s_add_u32 s77, s77, s61")
    def bulk(): a(f"s_mov_b64 exec, {(1 << BS) - 1 if BS < 64 else -1:#x}" if BS <= 32 else f"s_mov_b32 exec_hi, {(1 << (BS-32)) - 1:#x}", "buffer_load_dword v167, v166, s[24:27], s77 offen", "s_mov_b64 exec, -1")
    a("s_cmp_eq_u32 s73, 0")
    a("s_waitcnt lgkmcnt(0)")
    st()
    if opt.get("x1"): a("s_branch K2_FIN")
    if opt.get("x2") == 3:
        a("s_movk_i32 s64, 60")
        a.label("K2_SPIN")
        for i in range(16): a(f"v_exp_f32 v{EX+i}, v{Z0+i}")
        for r in range(3):
            for i in range(0, 16, 2): a(f"v_pk_fma_f32 {vr(NN+i,2)}, {vr(NN+i,2)}, {vr(EX+i,2)}, {vr(DD+i,2)}")
        a("s_sub_u32 s64, s64, 3", "s_cmp_gt_u32 s64, 0", "s_cbranch_scc1 K2_SPIN", "s_branch K2_FIN")
    a(f"s_mov_b32 s{SWS}, s20", f"s_mov_b32 s{SWS+1}, s21")
    if opt.get("rot"): a(f"s_mov_b32 s23, {WS_HDR}", "s_load_dword s77, s[20:21], s23")
    a("s_cbranch_scc0 K2_A1")
    a(f"buffer_load_dwordx4 {vr(TG,4)}, v3, {ws}, s60 offen {opt.get('kflag', '')}")
    a(f"s_add_u32 s{SX}, s4, s71", f"s_addc_u32 s{SX+1}, s5, 0")
    a("v_bfe_u32 v7, v0, 4, 2", "v_lshlrev_b32 v7, 4, v7", "v_xor_b32 v7, v7, v6", "v_xor_b32 v5, 64, v7",
      "s_lshl_b32 s60, s3, 11", f"s_add_u32 s61, s60, {L_XS}", f"s_add_u32 m0, s60, {L_WF}", f"s_add_u32 s63, s60, {WS_WF}")
    a("s_barrier")
    sx = f"s[{SX}:{SX+3}]"
    a(f"buffer_load_dwordx4 v6, {ws}, s63 offen lds", f"buffer_load_dwordx4 v6, {ws}, s63 offen offset:1024 lds", "s_mov_b32 m0, s61", f"v_lshlrev_b32 v3, {RBS}, v0")
    a(f"buffer_load_dwordx4 v7, {sx}, s60 offen lds", f"buffer_load_dwordx4 v5, {sx}, s60 offen offset:1024 lds",
      "s_add_u32 m0, s61, 8192", "s_add_u32 s60, s60, 8192", "s_cmp_eq_u32 s3, 3", "s_cbranch_scc1 K2_A3",
      f"buffer_load_dwordx4 v7, {sx}, s60 offen lds", f"buffer_load_dwordx4 v5, {sx}, s60 offen offset:1024 lds")
    a("s_branch K2_A2")
    a.label("K2_A3")
    a(f"s_mov_b32 m0, {L_WF + 8192}", f"s_mov_b32 s60, {WS_WF + 8192}", f"buffer_load_dwordx4 v6, {ws}, s60 offen lds", "s_mov_b64 exec, 0", f"buffer_load_dwordx4 v6, {ws}, s60 offen lds", "s_mov_b64 exec, -1")
    a("s_branch K2_A2")
    a.label("K2_A1")
    a(f"buffer_load_dword v{TG}, v5, {ws}, s66 offen {opt.get('kflag', '')}", f"buffer_load_dword v{TG+1}, v5, {ws}, s67 offen {opt.get('kflag', '')}")
    a("s_barrier")
    a(f"buffer_load_dwordx4 {vr(R,4)}, v2, {ws}, s64 offen {opt.get('kflag', '')}", f"buffer_load_dwordx4 {vr(R+4,4)}, v2, {ws}, s65 offen {opt.get('kflag', '')}")
    if BS and BP == "a": bulk()
    a.label("K2_A2")
    E8 = opt.get("ep", 0) & 8
    if E8: a("s_lshr_b32 s22, s3, 1", "s_lshl_b32 s74, s22, 11", "s_lshl_b32 s75, s22, 7", f"s_add_u32 s75, s75, {96*128}")
    else: a("s_lshl_b32 s74, s73, 11", f"s_add_u32 s75, s74, {3*2048}", f"s_add_u32 s22, s74, {6*2048}")
    srd(a, SPT, 20, 21, N, stride=128)
    a(f"s_add_u32 s{SO}, s16, s71", f"s_addc_u32 s{SO+1}, s17, 0", f"s_mov_b32 s{SO+2}, s70", f"s_mov_b32 s{SO+3}, 0x20000")
    T = Z1
    SMF = opt.get("smf", 0)
    if SMF:
        a(f"v_bfe_u32 v{T}, v0, 2, 1", f"v_bfe_u32 v{T+1}, v0, 3, 1", f"v_lshl_add_u32 v{T}, v{T}, 1, v{T+1}",
          f"v_lshrrev_b32 v{T+1}, 1, v0", f"v_xor_b32 v{T+1}, v{T+1}, v0", f"v_and_or_b32 v{T}, v{T+1}, 16, v{T}", f"v_mov_b32 v{T+1}, 0x3f80", f"v_mul_u32_u24 v{AH}, 0x5555, v4")
        for k in range(4): a(f"v_cmp_eq_u32 s[{MK+2*k}:{MK+2*k+1}], {k}, v{T}")
        for k in range(4): a(f"v_cndmask_b32 v{AL+k}, 0, v{T+1}, s[{MK+2*k}:{MK+2*k+1}]")
    elif small:
        a(f"v_and_b32 v{T}, 1, v0", f"v_lshlrev_b32 v{T}, 4, v{T}", f"v_mov_b32 v{T+1}, 0x3f80", f"v_lshlrev_b32 v{T}, v{T}, v{T+1}", "v_cmp_gt_u32 vcc, 2, v4",
          f"v_cndmask_b32 v{AL}, 0, v{T}, vcc", f"v_cndmask_b32 v{AL+1}, v{T}, 0, vcc")
    else:
        a(f"v_and_b32 v{T}, 1, v0", f"v_lshlrev_b32 v{T}, 4, v{T}", f"v_mov_b32 v{T+1}, 0x3f80", f"v_lshlrev_b32 v{T}, v{T}, v{T+1}",
          f"v_bfe_u32 v{T+1}, v0, 3, 2", f"v_bfe_u32 v{T+2}, v0, 1, 1", f"v_lshl_add_u32 v{T+1}, v{T+1}, 1, v{T+2}",
          f"v_bfe_u32 v{T+2}, v0, 2, 1", f"v_bfe_u32 v{T+3}, v0, 5, 1", f"v_xor_b32 v{T+2}, v{T+2}, v{T+3}", f"v_lshl_add_u32 v{T+1}, v{T+2}, 3, v{T+1}")
        for k in range(8): a(f"v_cmp_eq_u32 s[{MK+2*k}:{MK+2*k+1}], {k}, v{T+1}")
        for k in range(8): a(f"v_cndmask_b32 v{AL+k}, 0, v{T}, s[{MK+2*k}:{MK+2*k+1}]")
    J, QQ = T, T + 1
    a(f"v_and_b32 v{J}, 15, v0", f"v_bfe_u32 v{QQ}, v0, 4, 2", f"v_lshlrev_b32 v{OOF}, 7, v{J}",
      f"v_lshrrev_b32 v{ARX}, 1, v{J}", f"v_xor_b32 v{ARX}, v{ARX}, v{QQ}", f"v_lshl_add_u32 v{ARX}, v{ARX}, 4, v{OOF}",
      *([f"v_and_b32 v{OOF}, 64, v0", f"v_lshl_add_u32 v{OOF}, v{J}, 2, v{OOF}", f"v_lshl_add_u32 v{OOF}, v{QQ}, 9, v{OOF}"] if E8 else
        [f"s_lshl_b32 s64, s72, 5", f"v_lshl_add_u32 v{OOF}, v{QQ}, 3, v{OOF}", f"v_add_u32 v{OOF}, s64, v{OOF}"]),
      *(["s_lshr_b32 s23, s72, 1", f"s_mul_i32 s64, s23, {64*QSTR}", "s_and_b32 s65, s72, 1", f"s_lshl_b32 s65, s65, 7", "s_add_u32 s64, s64, s65", f"s_add_u32 s64, s64, {L_QS}"] if NP & 8 else
        [f"s_mul_i32 s64, s73, {64*QSTR}", f"s_lshl_b32 s65, s72, 6", "s_add_u32 s64, s64, s65", f"s_add_u32 s64, s64, {L_QS - 64*QSTR}"]),
      f"v_mul_u32_u24 v1, {QSTR}, v{J}", f"v_lshl_add_u32 v1, v{QQ}, 4, v1", "v_add_u32 v1, s64, v1",
      *([f"s_lshl_b32 s64, s23, 13", f"s_add_u32 s64, s64, {L_XS}"] if NP & 8 else [f"s_lshl_b32 s64, s73, 13", f"s_add_u32 s64, s64, {L_XS - 8192}"]), f"v_add_u32 v2, s64, v{ARX}", "v_xor_b32 v7, 64, v2",
      f"s_lshl_b32 s64, {'s22' if E8 else 's73'}, 4", f"v_add_u32 v{J}, s64, v{J}", f"v_mul_u32_u24 v{ARD}, {ASTR}, v{J}", f"v_lshl_add_u32 v{ARD}, v{QQ}, 4, v{ARD}",
      f"s_add_u32 s64, s74, {L_XS}", f"v_add_u32 v{ARX}, s64, v{ARX}")
    a(f"v_lshlrev_b32 v{IX+1}, 4, v4")
    a(f"v_mov_b32 v5, {ESTR}", f"s_movk_i32 s64, {NB*4}", f"s_mov_b32 s65, {DUMP}", "s_mov_b32 s68, 0", "s_mov_b32 s71, 0", "s_mov_b32 s70, 0")
    pk = sum(p << (4 * w) for w, p in enumerate(perm))
    a(f"s_mov_b32 s66, {pk & 0xffffffff:#x}", f"s_mov_b32 s67, {pk >> 32:#x}", "s_lshl_b32 s23, s3, 2", f"s_lshr_b64 s[66:67], s[66:67], s23",
      f"s_and_b32 s23, s66, 15", "s_lshl_b32 s23, s23, 4")
    a(f"v_bfe_u32 v{BE}, v0, 2, 4", f"v_add_u32 v{BE}, s23, v{BE}")
    if opt.get("n4"): a("s_movk_i32 s23, 187")
    N4 = opt.get("n4", 0); KM = DD + 13
    if N4:
        a(f"v_cmp_gt_u32 vcc, 6, v{BE}", f"v_cmp_lt_u32 s[66:67], 187, v{BE}".replace("187", "s23"),
          f"v_lshlrev_b32 v{BE+1}, 1, v{BE}", f"v_and_b32 v{BE+1}, 0x1fc, v{BE+1}", f"v_subrev_u32 v{BE+1}, 8, v{BE+1}", f"v_lshlrev_b32 v{BE+2}, 2, v{BE}", f"v_add_u32 v{BE+2}, {(NB-6)*4}, v{BE+2}",
          f"v_cndmask_b32 v{BE+1}, v{BE+1}, v{BE+2}, vcc", f"v_cndmask_b32 v{BE+1}, v{BE+1}, 0, s[66:67]",
          f"v_cndmask_b32 v{SP}, 1, 0, vcc", f"v_cndmask_b32 v{KM}, v{SP}, 3, s[66:67]", f"v_cndmask_b32 v{SP}, v{SP}, 2, s[66:67]",
          f"v_and_b32 v{PP5}, v{BE}, v{KM}", f"v_sub_u32 v{EH}, v{KM}, v{PP5}", f"v_cmp_eq_u32 s[58:59], 0, v{PP5}", f"v_and_b32 v{MFL}, 1, v{EH}", f"v_cvt_f32_u32 v{MFL}, v{MFL}")
    else:
        a(f"v_and_b32 v{BE+2}, 1, v{BE}", f"v_cmp_gt_u32 vcc, 4, v{BE}", f"v_cmp_eq_u32 s[66:67], 0, v{BE+2}",
          f"v_lshlrev_b32 v{BE+1}, 1, v{BE}", f"v_and_b32 v{BE+1}, 0x1fc, v{BE+1}", f"v_subrev_u32 v{BE+1}, 8, v{BE+1}", f"v_lshlrev_b32 v{BE}, 2, v{BE}", f"v_add_u32 v{BE}, {(NB-4)*4}, v{BE}",
          f"s_or_b64 s[58:59], vcc, s[66:67]", f"s_andn2_b64 s[66:67], s[66:67], vcc",
          f"v_cndmask_b32 v{BE+1}, v{BE+1}, v{BE}, vcc",
          f"v_cndmask_b32 v{SP}, 1, 0, vcc", f"v_cndmask_b32 v{PP5}, v5, 0, s[58:59]", f"v_cndmask_b32 v{EH}, 0, 1, s[66:67]",
          f"v_cndmask_b32 v{MFL}, 0, 1.0, s[66:67]", f"v_mov_b32 v{BE+3}, {L_ELL + ZCOL}")
    a(
      f"v_lshlrev_b32 v{QC}, 6, v4", f"v_add_u32 v{QC}, {(L_QS - 68*L_ELL) & 0xffffffff:#x}, v{QC}", f"v_lshlrev_b32 v{AC}, 5, v4", f"v_add_u32 v{AC}, {(L_AGB - ASTR//4*L_ELL) & 0xffffffff:#x}, v{AC}")
    a(f"s_mov_b32 s66, {NLOG2E:#x}", f"s_mov_b32 s67, {NLOG2E:#x}")
    T = EX; IP = EX + 4
    for k in range(RG + 1 + (NP & 1)): a(f"v_mov_b32 v{IP+2*k+1}, v{IX+1}")
    a("s_cmp_eq_u32 s73, 0", "s_cbranch_scc1 K2_CT")
    def a_round(ad, l, mk):
        for k in range(4): a(f"v_lshlrev_b32_sdwa v{ad+k}, 2, v{l} dst_sel:DWORD dst_unused:UNUSED_PAD src0_sel:DWORD src1_sel:BYTE_{k}")
        for k in range(4): a(f"v_cmp_gt_u32 s[{mk+2*k}:{mk+2*k+1}], s64, v{ad+k}")
        for k in range(4): a(f"s_mov_b64 exec, s[{mk+2*k}:{mk+2*k+1}]", f"ds_add_rtn_u32 v{ad+k}, v{ad+k}, v5 offset:{L_CTR}")
        a("s_mov_b64 exec, -1")
    stk = st.k
    ellpre = 0
    def ellw():
        for k in range(8):
            if k % 4 == 0: a(f"s_waitcnt vmcnt({1 - k//4 + (1 if BS else 0)})")
            if k == 4 and st.on == 1: a("s_memrealtime s[100:101]")
            a(f"v_min_u32 v{AD+k}, s65, v{AD+k}", f"ds_write_b32 v{AD+k}, v{R+k}")
    a(*(["s_and_b32 s23, s72, 1", "s_lshl_b32 s23, s23, 12"] if NP & 8 else [f"s_lshl_b32 s23, s72, 11"]), f"s_add_u32 s23, s23, {L_WF}", f"v_add_u32 v3, s23, v6", f"v_mov_b32 v{Z1+4}, 0")
    if BS and BP == "a2": bulk()
    a(f"s_waitcnt vmcnt({2 + (1 if BS and BP != 'b' else 0)})")
    st()
    if BS and BP == "b": bulk()
    a_round(AD, TG, MK); a_round(AD + 4, TG + 1, MK + 8)
    a("s_waitcnt lgkmcnt(0)")
    if ellpre: ellw()
    a("s_barrier")
    if opt.get("rot"): a(f"s_and_b32 s77, s77, {((1 << opt['rot']) - 1) << 22:#x}", f"s_add_u32 s77, s77, {WS_PR}", f"s_add_u32 s{SPT}, s20, s77", f"s_addc_u32 s{SPT+1}, s21, 0", f"s_or_b32 s{SPT+1}, s{SPT+1}, {128 << 16:#x}")
    st()
    def gather(slot, ix):
        p = P + 8 * slot
        return [f"buffer_load_dwordx4 {vr(p,4)}, {vr(ix,2)}, s[{SPT}:{SPT+3}], 0 idxen offen {opt.get('gflag', '')}",
                f"buffer_load_dwordx4 {vr(p+4,4)}, {vr(ix,2)}, s[{SPT}:{SPT+3}], 0 idxen offen offset:64 {opt.get('gflag', '')}"]
    def early_q():
        QV = opt.get("qv", 4); T = Z1 + 4; XT = [P + 8, P + 16, P + 24, NN + 8]; QG = opt.get("qg", 2)
        a.label("K2_AB1")
        a(f"ds_read_b32 v{T+1}, v{T} offset:{L_OVC}", f"s_cmp_eq_u32 s73, {QG}", "s_cbranch_scc1 K2_AB2")
        a("s_cmp_gt_u32 s72, 1", "s_cselect_b64 s[52:53], 1, -1")
        for k in range(4): a(f"ds_read_b128 {vr(W2+4*k,4)}, v3 offset:{1024*k}")
        for i in range(4):
            if i == 3: a("s_mov_b64 exec, s[52:53]")
            a(f"ds_read_b128 {vr(XT[i],4)}, v2 offset:{2048*i}", f"ds_read_b128 {vr(XT[i]+4,4)}, v7 offset:{2048*i}")
        a("s_mov_b64 exec, -1")
        a.label("K2_AB2")
        for k in range(8):
            if k % 4 == 0: a(f"s_waitcnt vmcnt({1 - k//4 + (1 if BS else 0)}) lgkmcnt(11)")
            if k == 4 and st.on == 1: a("s_memrealtime s[100:101]")
            a(f"v_min_u32 v{AD+k}, s65, v{AD+k}", f"ds_write_b32 v{AD+k}, v{R+k}")
        a("s_waitcnt lgkmcnt(%d)" % (0 if st.on == 1 else 8), f"v_readfirstlane_b32 s23, v{T+1}")
        for r in range(4): a(f"v_cmp_eq_u32 s[{MK+4+2*r}:{MK+5+2*r}], {r}, v4")
        a("s_andn2_b32 s23, s23, s68", "s_cbranch_scc1 K2_RESCAN", f"v_add_u32 v7, {L_WF + 8192}, v6", f"s_cmp_eq_u32 s73, {QG}", "s_cbranch_scc1 K2_G2")
        T = EX
        QD = lambda i, t: [Z1, Z1 + 8, Z0 + 8, Z0][i] + 4 * t
        def qm(i):
            for k in range(2):
                for t in range(2): a(mf16(QD(i, t), W2 + 8*t + 4*k, XT[i] + 4*k, QD(i, t) if k else "0"))
        def qw(i):
            for t in range(2): a(f"v_pk_mul_f32 {vr(QD(i,t),2)}, {vr(QD(i,t),2)}, s[66:67]", f"v_pk_mul_f32 {vr(QD(i,t)+2,2)}, {vr(QD(i,t)+2,2)}, s[66:67]", f"ds_write_b128 v1, {vr(QD(i,t),4)} offset:{16*QSTR*i + 64*t}")
        def slotdec():
            a("s_waitcnt lgkmcnt(1)")
            a(f"v_lshrrev_b32 v{LEN}, 17, v{T}", f"v_add_u32 v{T+1}, v{LEN}, v{SP}", f"v_and_b32 v{T}, 0x1ffff, v{T}", f"v_lshrrev_b32 v{T+1}, 1, v{T+1}", f"v_mad_u32_u24 v{VI}, v{T+1}, v{PP5}, v{T}")
            a(f"ds_read_u16 v{IP}, v{VI}")
        def pre():
            if st.on == 1: a("s_memrealtime s[96:97]", "s_waitcnt lgkmcnt(0)", "s_mov_b32 s97, s100")
        qm(0); qm(1); qm(2); a("s_waitcnt lgkmcnt(0)"); qm(3)
        stb = st.k
        for i in range(min(QV, 3)): qw(i)
        if QV == 4:
            a("s_cmp_gt_u32 s72, 1", "s_cbranch_scc1 K2_G2B"); qw(3); a("s_branch K2_G2B")
        else:
            pre(); a("s_barrier"); st()
            if NP & 16: a("s_setprio 3")
            a(f"ds_read_b32 v{T}, v{BE+1} offset:{L_SLOT}", f"ds_read_b128 {vr(AE,4)}, v7")
            slotdec()
            for i in range(QV, 3): qw(i)
            a(f"s_waitcnt lgkmcnt({2*(3-QV)})", *gather(0, IP), "s_cmp_gt_u32 s72, 1", "s_cbranch_scc1 K2_NQ2"); qw(3); a("s_branch K2_NQ2")
        a.label("K2_G2")
        st.k = stb
        a("s_waitcnt lgkmcnt(0)")
        a.label("K2_G2B")
        pre(); a("s_barrier"); st()
        a(f"ds_read_b32 v{T}, v{BE+1} offset:{L_SLOT}", f"ds_read_b128 {vr(AE,4)}, v7")
        slotdec()
        a(f"s_waitcnt lgkmcnt(0)", *gather(0, IP), "s_branch K2_NQ2")
        return slotdec
    def late_q():
        a.label("K2_AB1")
        T = Z1 + 4
        a(f"ds_read_b32 v{T+1}, v{T} offset:{L_OVC}")
        if not ellpre: ellw()
        if NP & 8: a("s_cmp_gt_u32 s72, 1", "s_cselect_b64 s[52:53], 1, -1")
        a("s_waitcnt lgkmcnt(4)", f"v_readfirstlane_b32 s23, v{T+1}")
        XT = [P + 8, P + 16, P + 24, NN + 8]
        if NP & 8:
            a("s_andn2_b32 s23, s23, s68", "s_cbranch_scc1 K2_RESCAN", "s_cmp_eq_u32 s73, 2", "s_cbranch_scc1 K2_G2")
            a("s_waitcnt lgkmcnt(3)")
            for k in range(4): a(f"ds_read_b128 {vr(W2+4*k,4)}, v3 offset:{1024*k}")
            for i in range(4):
                if i == 3: a("s_mov_b64 exec, s[52:53]")
                a(f"ds_read_b128 {vr(XT[i],4)}, v2 offset:{2048*i}", f"ds_read_b128 {vr(XT[i]+4,4)}, v7 offset:{2048*i}")
            a("s_mov_b64 exec, -1")
        else:
            a(f"ds_read_b128 {vr(W2,4)}, v3", f"ds_read_b128 {vr(W2+4,4)}, v3 offset:1024")
            for i in range(4): a(f"ds_read_b128 {vr(X+8*i,4)}, v2 offset:{2048*i}", f"ds_read_b128 {vr(X+8*i+4,4)}, v7 offset:{2048*i}")
            a("s_andn2_b32 s23, s23, s68", "s_cbranch_scc1 K2_RESCAN")
        QT = Z1; T = EX
        def gather(slot, ix):
            p = P + 8 * slot
            return [f"buffer_load_dwordx4 {vr(p,4)}, {vr(ix,2)}, s[{SPT}:{SPT+3}], 0 idxen offen {opt.get('gflag', '')}",
                    f"buffer_load_dwordx4 {vr(p+4,4)}, {vr(ix,2)}, s[{SPT}:{SPT+3}], 0 idxen offen offset:64 {opt.get('gflag', '')}"]
        stb = st.k
        for r in range(4): a(f"v_cmp_eq_u32 s[{MK+4+2*r}:{MK+5+2*r}], {r}, v4")
        a(f"v_add_u32 v7, {L_WF + 8192}, v6")
        if st.on == 1: a("s_memrealtime s[96:97]", "s_waitcnt lgkmcnt(0)", "s_mov_b32 s97, s100")
        a("s_waitcnt lgkmcnt(%d)" % (0 if st.on == 1 else 12 if NP & 8 else 10), "s_barrier")
        st()
        if NP & 16: a("s_setprio 3")
        if NP & 8: a("s_waitcnt lgkmcnt(10)")
        a(f"ds_read_b32 v{T}, v{BE+1} offset:{L_SLOT}", f"ds_read_b128 {vr(AE,4)}, v7")
        if not NP & 8:
            a("s_waitcnt lgkmcnt(2)")
            for i in range(4): a(mf16(QT+4*i, W2, X+8*i, "0"))
            for i in range(4): a(mf16(QT+4*i, W2+4, X+8*i+4, QT+4*i))
        def slotdec():
            a("s_waitcnt lgkmcnt(1)")
            if N4: a(f"v_lshrrev_b32 v{LEN}, 17, v{T}", f"v_and_b32 v{T}, 0x1ffff, v{T}", f"v_and_b32 v{T+2}, v{LEN}, v{KM}", f"v_lshrrev_b32 v{T+1}, v{SP}, v{LEN}", f"v_min_u32 v{T+2}, v{T+2}, v{PP5}",
                     f"v_mad_u32_u24 v{T+1}, v{T+1}, v{PP5}, v{T+2}", f"v_mad_u32_u24 v{VI}, v{T+1}, v5, v{T}")
            else: a(f"v_lshrrev_b32 v{LEN}, 17, v{T}", f"v_add_u32 v{T+1}, v{LEN}, v{SP}", f"v_and_b32 v{T}, 0x1ffff, v{T}", f"v_lshrrev_b32 v{T+1}, 1, v{T+1}", f"v_mad_u32_u24 v{VI}, v{T+1}, v{PP5}, v{T}")
            a(f"ds_read_u16 v{IP}, v{VI}")
        if NP & 8:
            QD = lambda i, t: Z0 + 8 * i + 4 * t
            def qm(i):
                for k in range(2):
                    for t in range(2): a(mf16(QD(i, t), W2 + 8*t + 4*k, XT[i] + 4*k, QD(i, t) if k else "0"))
            def qw(i):
                for t in range(2): a(f"v_pk_mul_f32 {vr(QD(i,t),2)}, {vr(QD(i,t),2)}, s[66:67]", f"v_pk_mul_f32 {vr(QD(i,t)+2,2)}, {vr(QD(i,t)+2,2)}, s[66:67]", f"ds_write_b128 v1, {vr(QD(i,t),4)} offset:{16*QSTR*i + 64*t}")
            a("s_waitcnt lgkmcnt(8)"); qm(0); a("s_waitcnt lgkmcnt(6)"); qm(1)
            slotdec()
            qm(2); qm(3); qw(0)
            a(f"s_waitcnt lgkmcnt(2)", *gather(0, IP))
            qw(1); qw(2)
            a("s_cmp_gt_u32 s72, 1", "s_cbranch_scc1 K2_NQ2")
            qw(3)
            a("s_branch K2_NQ2")
            a.label("K2_G2")
            st.k = stb
            for r in range(4): a(f"v_cmp_eq_u32 s[{MK+4+2*r}:{MK+5+2*r}], {r}, v4")
            a(f"v_add_u32 v7, {L_WF + 8192}, v6")
            if st.on == 1: a("s_memrealtime s[96:97]", "s_waitcnt lgkmcnt(0)", "s_mov_b32 s97, s100")
            a("s_waitcnt lgkmcnt(0)", "s_barrier")
            st()
            a(f"ds_read_b32 v{T}, v{BE+1} offset:{L_SLOT}", f"ds_read_b128 {vr(AE,4)}, v7")
            slotdec()
            a(f"s_waitcnt lgkmcnt(0)", *gather(0, IP), "s_branch K2_NQ2")
        else:
            slotdec()
            for i in range(4):
                if not opt.get("wsc", 0) & 2: a(f"v_pk_mul_f32 {vr(QT+4*i,2)}, {vr(QT+4*i,2)}, s[66:67]", f"v_pk_mul_f32 {vr(QT+4*i+2,2)}, {vr(QT+4*i+2,2)}, s[66:67]")
                if i == 3: a(f"s_waitcnt lgkmcnt(3)", *gather(0, IP), "s_cmp_eq_u32 s73, 2", "s_cbranch_scc1 K2_NQ2")
                a(f"ds_write_b128 v1, {vr(QT+4*i,4)} offset:{16*QSTR*i}")
            a("s_branch K2_NQ2")
        return slotdec
    assert not NP & 32 or (NP & 8 and not N4)
    slotdec = early_q() if NP & 32 else late_q()
    T = EX
    a.label("K2_CT")
    st.k = stk
    C0, C1, H0, H1, T0, T1, HH, PS, L4, B0, B1_, LOB, HIB, HA, FOUR = [Q + i for i in range(15)]
    a(f"v_mov_b32 v{Z1+4}, {MARK:#x}", "s_lshl_b32 s60, s3, 12", f"s_add_u32 m0, s60, {L_WF + 9*1024}", f"s_add_u32 s60, s60, {WS_WF + 9*1024}")
    a(f"v_lshlrev_b32 v{L4}, 2, v0", f"v_add_u32 v{B0}, {L_ELL}, v{L4}", f"v_add_u32 v{B1_}, {L_ELL + 256}, v{L4}",
      f"v_mov_b32 v{LOB}, {(CAP-63)*ESTR}", f"v_mov_b32 v{HIB}, {CAP*ESTR}", f"v_mul_u32_u24 v{HA}, {ESTR}, v0", f"v_sub_u32 v{HA}, {L_ELL + HCOL + CAP*ESTR}, v{HA}", f"v_mov_b32 v{FOUR}, 4",
      f"s_mov_b32 s61, {L_ELL + HCOL}")
    AD2 = P + 8; AD3 = P + 24
    for k in range(16): a(f"v_mov_b32 v{AD+k}, -1")
    a("s_waitcnt vmcnt(6)")
    st()
    for j in range(4): a(f"v_cmp_ne_u32 s[{MK+2*j}:{MK+2*j+1}], -1, v{TG+j}")
    a(f"v_cmp_eq_u32 vcc, v{Z1+4}, v{TG}")
    for j in range(4): a(f"s_mov_b64 exec, s[{MK+2*j}:{MK+2*j+1}]", f"buffer_load_dwordx4 {vr(R+4*j,4)}, v3, {ws}, s62 offen offset:{16*j} {opt.get('kflag', '')}")
    a("s_mov_b64 exec, -1")
    for j in range(4):
        a(f"s_cmp_eq_u64 s[{MK+2*j}:{MK+2*j+1}], 0", f"s_cbranch_scc1 K2_TS{j}")
        if j == 3: a("s_waitcnt lgkmcnt(8)")
        for k in range(4): a(f"v_lshlrev_b32_sdwa v{AD2+4*j+k}, 2, v{TG+j} dst_sel:DWORD dst_unused:UNUSED_PAD src0_sel:DWORD src1_sel:BYTE_{k}")
        for k in range(4): a(f"v_cmp_gt_u32 s[{MK+8+2*k}:{MK+9+2*k}], s64, v{AD2+4*j+k}")
        for k in range(4): a(f"s_mov_b64 exec, s[{MK+8+2*k}:{MK+9+2*k}]", f"ds_add_rtn_u32 v{AD+4*j+k}, v{AD2+4*j+k}, v5 offset:{L_CT2}")
        a("s_mov_b64 exec, -1", f"s_bitset1_b32 s70, {j}")
        a.label(f"K2_TS{j}")
    if opt.get("nowu"): a("s_mov_b64 exec, 0")
    for k in range(4): a(f"buffer_load_dwordx4 v6, {ws}, s60 offen offset:{1024*k} lds")
    if opt.get("nowu"): a("s_mov_b64 exec, -1")
    a("s_cbranch_vccnz K2_MARK")
    a.label("K2_MR")
    a("s_waitcnt lgkmcnt(0)")
    if opt.get("rot"): a(f"s_and_b32 s77, s77, {((1 << opt['rot']) - 1) << 22:#x}", f"s_add_u32 s77, s77, {WS_PR}", f"s_add_u32 s{SPT}, s20, s77", f"s_addc_u32 s{SPT+1}, s21, 0", f"s_or_b32 s{SPT+1}, s{SPT+1}, {128 << 16:#x}")
    a("s_waitcnt vmcnt(8)", "s_barrier")
    st()
    a.label("K2_AB1T")
    a(f"v_and_b32 v{T0}, 0xfc, v{L4}", f"ds_read2st64_b32 {vr(C0,2)}, v{T0} offset0:{L_CTR//256} offset1:{L_CTR//256+1}", f"ds_read2st64_b32 {vr(H0,2)}, v{T0} offset0:{L_CTR//256+2} offset1:{L_CTR//256+3}", "s_setprio 3", "s_mov_b32 s56, -1", "s_mov_b32 s57, 3")
    if NP & 2: a("s_mov_b32 s52, s70")
    a("s_waitcnt lgkmcnt(0)", f"v_readlane_b32 s23, v{C1}, 48", f"v_sub_u32 v{C0}, v{C0}, v{B0}", f"v_sub_u32 v{C1}, v{C1}, v{B1_}", f"v_add_u32 v{C0}, v{C0}, v{H0}", f"v_add_u32 v{C1}, v{C1}, v{H1}",
      "s_andn2_b32 s23, s23, s68", "s_cbranch_scc1 K2_RESCAN", "s_cmp_lg_u32 s3, 0", "s_cbranch_scc1 K2_TF" if NP & 2 else "s_cbranch_scc1 K2_TW")
    for c, h, t in ((C0, H0, T0), (C1, H1, T1)):
        if c == C1: a("s_mov_b64 exec, s[56:57]")
        a(f"v_med3_u32 v{h}, v{c}, v{LOB}, v{HIB}", f"v_add_u32 v{t}, s61, v{h}", f"ds_add_rtn_u32 v{t}, v{t}, v{FOUR}")
    a(f"v_cmp_gt_u32 s[{MK}:{MK+1}], v{C1}, v{HIB}", "s_mov_b64 exec, -1", f"ds_read_b32 v{HH}, v{HA}", f"v_cmp_gt_u32 vcc, v{C0}, v{HIB}")
    for c, h, b in ((C0, H0, B0), (C1, H1, B1_)):
        a(f"v_min_u32 v{c}, v{c}, v{HIB}", f"v_lshrrev_b32 v{c}, 2, v{c}", f"v_mul_u32_u24 v{c}, 509, v{c}", f"v_lshrrev_b32 v{c}, 16, v{c}",
          f"v_max_u32 v{h}, {CAP-63}, v{c}", f"v_sub_u32 v{h}, {CAP}, v{h}", f"v_lshlrev_b32 v{h}, 2, v{h}", f"v_lshl_or_b32 v{c}, v{c}, 17, v{b}")
    a(f"s_or_b64 vcc, vcc, s[{MK}:{MK+1}]", "s_waitcnt lgkmcnt(0)")
    a(f"v_add_u32_dpp v{PS}, v{HH}, v{HH} row_shr:1 row_mask:0xf bank_mask:0xf bound_ctrl:0")
    for k in (2, 4, 8): a(f"v_add_u32_dpp v{PS}, v{PS}, v{PS} row_shr:{k} row_mask:0xf bank_mask:0xf bound_ctrl:0")
    a(f"v_add_u32_dpp v{PS}, v{PS}, v{PS} row_bcast:15 row_mask:0xa bank_mask:0xf", f"v_add_u32_dpp v{PS}, v{PS}, v{PS} row_bcast:31 row_mask:0xc bank_mask:0xf")
    a(f"v_sub_u32 v{PS}, v{PS}, v{HH}", f"ds_bpermute_b32 v{H0}, v{H0}, v{PS}", f"ds_bpermute_b32 v{H1}, v{H1}, v{PS}")
    a(f"v_mov_b32 v{HH}, 0", "s_waitcnt lgkmcnt(1)", f"v_add_u32 v{H0}, v{H0}, v{T0}", f"ds_write_b32 v{H0}, v{C0} offset:{L_SLOT}",
      "s_waitcnt lgkmcnt(1)", "s_mov_b64 exec, s[56:57]", f"v_add_u32 v{H1}, v{H1}, v{T1}", f"ds_write_b32 v{H1}, v{C1} offset:{L_SLOT}", "s_mov_b64 exec, -1")
    a("s_cbranch_vccz K2_TW", f"ds_write_b32 v{HH}, v5 offset:{L_FLG}")
    if NP & 2:
        a("s_branch K2_TW")
        a.label("K2_TF")
        for j in range(4):
            a(f"s_bitcmp0_b32 s70, {j}", f"s_cbranch_scc1 K2_TQ{j}")
            if j == 3: a("s_waitcnt lgkmcnt(8)")
            for k in range(4): a(f"ds_read_b32 v{Z1+4*j+k}, v{AD2+4*j+k} offset:{L_CTR}")
            a.label(f"K2_TQ{j}")
        a("s_mov_b32 s52, 0", "s_waitcnt lgkmcnt(0)")
        for j in range(4):
            a(f"s_bitcmp0_b32 s70, {j}", f"s_cbranch_scc1 K2_TP{j}")
            for k in range(4): a(f"v_add_u32 v{AD+4*j+k}, v{AD+4*j+k}, v{Z1+4*j+k} clamp", f"v_min_u32 v{AD+4*j+k}, s65, v{AD+4*j+k}")
            a.label(f"K2_TP{j}")
    a.label("K2_TW")
    a.label("K2_CWR")
    if opt.get("dg") == 1: a("s_waitcnt vmcnt(4)", "s_memrealtime s[100:101]", "s_waitcnt lgkmcnt(0)", "s_mov_b32 s97, s100", "s_mov_b32 s101, s100")
    for r in range(4): a(f"v_cmp_eq_u32 s[{MK+4+2*r}:{MK+5+2*r}], {r}, v4")
    T = EX
    a(f"v_add_u32 v7, {L_WF + 8192}, v6")
    if st.on == 1: a("s_waitcnt lgkmcnt(0)", "s_memrealtime s[96:97]")
    a("s_waitcnt lgkmcnt(0)", "s_barrier")
    st()
    a(f"ds_read_b32 v{T}, v{BE+1} offset:{L_SLOT}", f"ds_read_b128 {vr(AE,4)}, v7")
    slotdec()
    a(f"s_waitcnt lgkmcnt(0)", *gather(0, IP))
    if NP & 2: a("s_cmp_eq_u32 s52, 0", "s_cbranch_scc1 K2_TR3")
    for j in range(4):
        a(f"s_bitcmp0_b32 s70, {j}", f"s_cbranch_scc1 K2_TR{j}")
        for k in range(4): a(f"ds_read_b32 v{AD3+k}, v{AD2+4*j+k} offset:{L_CTR}")
        for k in range(4): a(f"s_waitcnt lgkmcnt({3-k})", f"v_add_u32 v{AD+4*j+k}, v{AD+4*j+k}, v{AD3+k} clamp", f"v_min_u32 v{AD+4*j+k}, s65, v{AD+4*j+k}")
        a.label(f"K2_TR{j}")
    a("s_waitcnt vmcnt(6)")
    if st.on == 1 and opt.get("dg") == 1: a("s_mov_b32 s97, s101")
    elif st.on == 1: a("s_memrealtime s[100:101]", "s_waitcnt lgkmcnt(0)", "s_mov_b32 s97, s100")
    for j in range(4):
        a(f"s_bitcmp0_b32 s70, {j}", f"s_cbranch_scc1 K2_TW{j}")
        if j == 3: a("s_waitcnt lgkmcnt(4)")
        for k in range(4): a(f"ds_write_b32 v{AD+4*j+k}, v{R+4*j+k}")
        a.label(f"K2_TW{j}")
    a.label("K2_NQ2")
    LV = opt.get("lv", 0); ME = LV & 1; MC = LV & 2
    def rde(t, cur=None):
        if not ME: return [f"ds_read_b32 v{BE+r}, v{VE+r} offset:{t*ESTR}" for r in range(4)]
        o = []
        for r in range(4): o += [f"s_and_b64 exec, {cur}, s[{MK+4+2*r}:{MK+5+2*r}]" if cur else f"s_mov_b64 exec, s[{MK+4+2*r}:{MK+5+2*r}]", f"ds_read_b32 v{BE+r}, v{VI} offset:{t*ESTR}"]
        return o + [f"s_mov_b64 exec, {cur or -1}"]
    a(f"v_mov_b32 v{T+1}, 68", f"v_mad_u32_u24 v{T+2}, v{T}, v{T+1}, v{QC}")
    for r in range(4): a(f"v_mov_b32 v{BE+r}, 0" if ME else f"v_cndmask_b32 v{VE+r}, v{BE+3}, v{VI}, s[{MK+4+2*r}:{MK+5+2*r}]")
    TG3 = LV & 4; TL = LV & 24; PEEL = NP & 1; EARLY = NP & 4
    assert not EARLY or PEEL
    if not PEEL:
        for i in range(16): a(f"v_mov_b32 v{NN+i}, 0")
    def lens(T1, T2):
        a(f"v_add_u32 v{LEN}, v{LEN}, v{EH}", f"v_lshrrev_b32 v{LEN}, v{SP}, v{LEN}", f"v_mad_u32_u24 v{AGA}, v{T}, {ASTR//4}, v{AC}")
        a(f"v_max_u32_dpp v{T1}, v{LEN}, v{LEN} row_shr:4 row_mask:0xf bank_mask:0xf bound_ctrl:0")
        if MC: a(f"v_min_u32_dpp v{T2}, v{LEN}, v{LEN} row_shr:4 row_mask:0xf bank_mask:0xf bound_ctrl:0")
        for i in range(0 if PEEL else 8): a(f"v_mov_b32 v{DD+i}, 1.0")
        if PEEL and E8: a("s_and_b32 s23, s3, 1", "s_lshl_b32 s23, s23, 13")
        a(f"v_max_u32_dpp v{T1}, v{T1}, v{T1} row_shr:8 row_mask:0xf bank_mask:0xf bound_ctrl:0")
        if MC: a(f"v_min_u32_dpp v{T2}, v{T2}, v{T2} row_shr:8 row_mask:0xf bank_mask:0xf bound_ctrl:0")
        for i in range(8, 8 if PEEL else 16): a(f"v_mov_b32 v{DD+i}, 1.0")
        if PEEL and E8: a(f"s_add_u32 s23, s23, 1024", "v_add_u32 v7, s23, v7")
        a(f"v_readlane_b32 s69, v{T1}, 15", f"v_readlane_b32 s70, v{T1}, 31", f"v_readlane_b32 s64, v{T1}, 47", f"v_readlane_b32 s65, v{T1}, 63",
          "s_max_u32 s69, s69, s70", "s_max_u32 s64, s64, s65", "s_max_u32 s69, s69, s64")
        if MC: a(f"v_readlane_b32 s56, v{T2}, 15", f"v_readlane_b32 s70, v{T2}, 31", f"v_readlane_b32 s64, v{T2}, 47", f"v_readlane_b32 s65, v{T2}, 63",
          "s_min_u32 s56, s56, s70", "s_min_u32 s64, s64, s65", "s_min_u32 s56, s56, s64")
        if TG3: a("s_sub_u32 s64, s69, 3", "s_max_i32 s64, s64, 0", "s_min_u32 s56, s56, s64")
        elif TL: a("s_sub_u32 s64, s69, 1", "s_min_u32 s56, s56, s64")
        a("s_mov_b32 s70, 0")
        if PEEL and E8: pass
        elif E8: a("s_and_b32 s23, s3, 1", "s_lshl_b32 s23, s23, 13", f"s_add_u32 s23, s23, 1024", "v_add_u32 v7, s23, v7")
        else: a(f"s_lshl_b32 s23, s72, 12", f"s_add_u32 s23, s23, 1024", "v_add_u32 v7, s23, v7")
    if EARLY: lens(T + 1, T + 3)
    if opt.get("dg") == 2: a("s_waitcnt vmcnt(0)")
    if st.on == 1: a("s_waitcnt lgkmcnt(0)", "s_memrealtime s[62:63]")
    a("s_waitcnt vmcnt(2) lgkmcnt(0)", "s_barrier")
    if st.on == 1: a("s_memrealtime s[60:61]", "s_waitcnt lgkmcnt(0)")
    if opt.get("x2") == 1: a("s_waitcnt vmcnt(0)", "s_branch K2_FIN")
    a(f"ds_read_u16 v{T+3}, v{VI}")
    for k in range(1, RG + 1): a(f"ds_read_u16 v{IP+2*k}, v{VI} offset:{k*ESTR}")
    for k in range(4): a(f"ds_read_b128 {vr(Q+4*k,4)}, v{T+2} offset:{16*k}")
    a(*rde(0), f"ds_read_u16 v{IP+2*RG+2 if PEEL else IX}, v{VI} offset:{(RG+1)*ESTR}")
    if PEEL: a(f"ds_read_u16 v{IX}, v{VI} offset:{(RG+2)*ESTR}")
    a(f"s_waitcnt lgkmcnt({RG + 8 + PEEL})", f"v_cmp_ne_u32 vcc, v{T+3}, v{IP}", "s_cbranch_vccnz K2_G0R")
    a.label("K2_G0D")
    a(*gather(1, IP + 2))
    if not EARLY: lens(T + 1, T + 2)
    def sm(z, b, c): return f"v_mfma_f32_4x4x4_16b_bf16 {vr(z,4)}, {vr(AL,2)}, {vr(b,2)}, {vr(c,4)}"
    def smf(z, b): return f"v_smfmac_f32_32x32x32_bf16 {vr(z,16)}, {vr(AL,4)}, {vr(b,8)}, v{AH}"
    def first(Z, stamp):
        a(f"s_waitcnt vmcnt(2) lgkmcnt(0)")
        if stamp:
            st()
            if st.on == 1: a("s_memtime s[98:99]", "s_waitcnt lgkmcnt(0)")
        for k in range(2, RG): a(*gather(k, IP + 2*k))
        if SMF: a(mf32(Z, AE, BE, Q), smf(Z, P))
        elif small: a(*[sm(Z+4*i, P+2*i, Q+4*i) for i in range(4)], mf32(Z, AE, BE, Z))
        else: a(mf32(Z, AE, BE, Q), mf32(Z, AL, P, Z), mf32(Z, AH, P + 4, Z))
        a(*gather(0, IP + 2*RG), *rde(1))
    if PEEL:
        assert MC and RG == 2 and opt.get("bf") and not SMF
        a("s_cmp_eq_u32 s56, 0", "s_cbranch_scc1 K2_GEN", "s_setprio 3")
        first(NN, True)
        ex = [f"v_exp_f32 v{DD+i}, v{NN+i}" for i in range(16)]; k = opt["bf"]; p = P + 8
        s4 = [sm(Z1+4*i, p+2*i, Z1+4*i) for i in range(4)]
        a(*ex[0:4], "s_waitcnt lgkmcnt(0)", mf32(Z1, AE, BE, Q), *ex[4:16], *rde(2))
        for i in range(0, 16, 2): a(f"v_pk_add_f32 {vr(DD+i,2)}, {vr(DD+i,2)}, 1.0 op_sel_hi:[1,0]")
        a("s_mov_b32 s70, 1", f"s_waitcnt vmcnt(2)", *s4, *gather(1, IP + 2*RG + 2), "s_branch K2_PRI0")
        a.label("K2_GEN")
        for i in range(16): a(f"v_mov_b32 v{NN+i}, 0", f"v_mov_b32 v{DD+i}, 1.0")
        a("s_waitcnt lgkmcnt(0)", f"v_mov_b32 v{IX}, v{IP+2*RG+2}")
    a("s_cmp_eq_u32 s69, 0", "s_cbranch_scc1 K2_DONE0")
    first(Z0, not PEEL)
    a("s_nop 3")
    U = max(2, RG)
    a(f"s_branch K2_PRI{U-1}")
    a(".p2align 6")
    late = []
    def fmas(zc):
        for i in range(0, 16, 2): a(f"v_pk_fma_f32 {vr(NN+i,2)}, {vr(NN+i,2)}, {vr(EX+i,2)}, {vr(NN+i,2)}")
        for i in range(0, 16, 2): a(f"v_pk_fma_f32 {vr(NN+i,2)}, {vr(zc+i,2)}, {vr(DD+i,2)}, {vr(NN+i,2)}")
        for i in range(0, 16, 2): a(f"v_pk_fma_f32 {vr(DD+i,2)}, {vr(DD+i,2)}, {vr(EX+i,2)}, {vr(DD+i,2)}")
    def body(L, u):
        tail = L == "M"
        a.label(f"K2_{L}{u}")
        zc = (Z0, Z1)[u % 2]; zn = (Z1, Z0)[u % 2]; p = P + 8 * ((u + 1) % RG)
        ex = [f"v_exp_f32 v{EX+i}, v{zc+i}" for i in range(16)]
        if tail:
            a(f"v_cmpx_lt_u32 vcc, s70, v{LEN}", "s_sub_u32 s65, s69, s70", *ex[13:16]); ex = ex[:13]
            if TL: a("s_cmp_eq_u32 s65, 1", f"s_cbranch_scc1 K2_MS{u}"); late.append((u, ex))
        if SMF:
            a("s_waitcnt lgkmcnt(0)", mf32(zn, AE, BE, Q), *ex[0:SMF], f"s_waitcnt vmcnt({2*RG-2})", smf(zn, p), *ex[SMF:16])
        elif opt.get("bf"):
            k = opt["bf"] - (3 if tail else 0)
            s4 = [sm(zn+4*i, p+2*i, zn+4*i) for i in range(4)]
            a("s_waitcnt lgkmcnt(0)", mf32(zn, AE, BE, Q), *ex[0:k], f"s_waitcnt vmcnt({2*RG-2})", s4[0], ex[k], s4[1], ex[k+1], s4[2], ex[k+2], s4[3], *ex[k+3:16])
        else:
            a(f"s_waitcnt vmcnt({2*RG-2}) lgkmcnt(0)")
            s4 = [sm(zn+4*i, p+2*i, Q+4*i) for i in range(4)]
            a(s4[0], ex[0], s4[1], ex[1], s4[2], ex[2], s4[3], *ex[3:8], mf32(zn, AE, BE, zn), *ex[8:16])
        if tail and TG3: a("s_cmp_gt_u32 s65, 3", "s_cselect_b64 exec, vcc, 0")
        a(*gather((u + 1) % RG, IX), f"ds_read_u16 v{IX}, v{VI} offset:{(u+RG+2)*ESTR}", *rde(u + 2, "vcc" if tail else None)) if ME else a(*gather((u + 1) % RG, IX), *rde(u + 2), f"ds_read_u16 v{IX}, v{VI} offset:{(u+RG+2)*ESTR}")
        if not MC: a(f"v_cmpx_lt_u32 vcc, s70, v{LEN}")
        if tail and TL == 8: a.label(f"K2_MF{u}")
        fmas(zc)
        if not MC: a("s_mov_b64 exec, -1")
        a("s_add_u32 s70, s70, 1", "s_cmp_ge_u32 s70, s64")
        if u < U - 1: a(f"s_cbranch_scc1 K2_PRI{u}")
        else:
            for rg in [VI] + ([] if ME else [VE + r for r in range(4)]): a(f"v_add_u32 v{rg}, {U*ESTR}, v{rg}")
            a(f"s_cbranch_scc0 K2_{L}0")
            if tail: a(f"s_branch K2_PRI{u}")
    for u in range(U): body("L", u)
    for u in list(range(U - 1, -1, -1)):
        a.label(f"K2_PRI{u}")
        nx = f"K2_X{u}" if MC else f"K2_L{(u+1)%U}"
        a("s_sub_u32 s65, s69, s70")
        for lv, th in zip((3, 2, 1), dp):
            a(f"s_setprio {lv}", f"s_sub_u32 s64, s69, {th}", f"s_cmp_gt_u32 s65, {th}", f"s_cbranch_scc1 {nx}")
        if MC:
            a("s_setprio 0", "s_mov_b32 s64, s69", "s_cmp_eq_u32 s65, 0", f"s_cbranch_scc1 K2_DONEX")
            a.label(nx)
            a("s_cmp_ge_u32 s70, s56", f"s_cbranch_scc1 K2_M{(u+1)%U}", "s_min_u32 s64, s64, s56", f"s_branch K2_L{(u+1)%U}")
        else:
            a("s_setprio 0", "s_mov_b32 s64, s69", "s_cmp_lg_u32 s65, 0", f"s_cbranch_scc1 {nx}")
            if u: a("s_branch K2_DONE")
    if MC:
        a(".p2align 6")
        for u in range(U): body("M", u)
        for u, ex in late:
            a.label(f"K2_MS{u}")
            if TL == 8: a(*ex, f"s_branch K2_MF{u}")
            else:
                a(*ex); fmas((Z0, Z1)[u % 2])
                if u != U - 1: a("s_branch K2_DONEX")
        a.label("K2_DONEX")
        a("s_mov_b64 exec, -1")
    a.label("K2_DONE")
    st()
    if st.on == 1: a("s_memtime s[100:101]", "s_waitcnt lgkmcnt(0)", "s_sub_u32 s98, s100, s98")
    XF = Z0; ACC = Q
    EP = opt.get("ep", 0)
    if not EP:
        a(f"v_xor_b32 v3, 64, v{ARX}")
        for i in range(16): a(f"v_rcp_f32 v{EX+i}, v{DD+i}")
        a("s_waitcnt lgkmcnt(0)")
        for k in range(4): a(f"ds_read_b128 {vr(WU+4*k,4)}, v7 offset:{1024*k}")
        for i in range(3): a(f"ds_read_b128 {vr(XF+8*i,4)}, v{ARX} offset:{6144*i}", f"ds_read_b128 {vr(XF+8*i+4,4)}, v3 offset:{6144*i}")
        a(f"s_mov_b32 s66, {NLN2:#x}", f"s_mov_b32 s67, {NLN2:#x}", f"s_mov_b32 s64, {f2u(2.0**120):#x}")
        for i in range(0, 16, 2): a(f"v_pk_mul_f32 {vr(NN+i,2)}, {vr(NN+i,2)}, s[66:67]")
        a(f"v_max3_f32 v2, v{DD}, v{DD+1}, v{DD+2}")
        for i in range(3, 15, 2): a(f"v_max3_f32 v2, v{DD+i}, v{DD+i+1}, v2")
        a(f"v_max_f32 v2, v{DD+15}, v2")
        for i in range(0, 16, 2): a(f"v_pk_mul_f32 {vr(NN+i,2)}, {vr(NN+i,2)}, {vr(EX+i,2)}")
        a(f"v_pk_mul_f32 {vr(DD,2)}, {vr(NN,2)}, 0")
        for i in range(2, 16, 2): a(f"v_pk_fma_f32 {vr(DD,2)}, {vr(NN+i,2)}, 0, {vr(DD,2)}")
        for i in range(16): a(f"v_fmac_f32_dpp v{NN+i}, v{NN+i}, v{MFL} row_shl:4 row_mask:0xf bank_mask:0xf bound_ctrl:0")
        a(f"v_cmp_u_f32 vcc, v{DD}, v{DD+1}", f"v_cmp_nlt_f32 s[{MK+2}:{MK+3}], v2, s64", f"s_or_b64 vcc, vcc, s[{MK+2}:{MK+3}]")
        for i in range(8): a(f"v_cvt_pk_bf16_f32 v{EX+i}, v{NN+2*i}, v{NN+2*i+1}")
        a("s_waitcnt lgkmcnt(0)", f"s_mov_b64 exec, s[58:59]", f"ds_write_b128 v{AGA}, {vr(EX,4)} offset:{L_AGB}", f"ds_write_b128 v{AGA}, {vr(EX+4,4)} offset:{L_AGB+16}")
        a("s_mov_b64 exec, vcc", "v_mov_b32 v2, 0", f"ds_write_b32 v2, v5 offset:{L_FLG}", "s_mov_b64 exec, -1")
        a(f"s_mov_b32 s66, {NLOG2E:#x}", f"s_mov_b32 s67, {NLOG2E:#x}", "v_mov_b32 v2, 0")
        for i in range(3): a(mf16(ACC+4*i, WU, XF+8*i, "0"))
        for i in range(3): a(mf16(ACC+4*i, WU+4, XF+8*i+4, ACC+4*i))
        a("s_waitcnt lgkmcnt(0)", "s_barrier")
        st()
        a.label("K2_EPI")
        B = Z0; O = EX; TT = NN; WU2 = WU + 8
        a(f"ds_read_b32 v3, v2 offset:{L_FLG}")
        for i in range(3):
            for s in range(2): a(f"ds_read_b128 {vr(B+8*i+4*s,4)}, v{ARD} offset:{L_AGB + 48*ASTR*i + 64*s}")
        a("s_waitcnt lgkmcnt(6)", "v_readfirstlane_b32 s23, v3", "s_andn2_b32 s23, s23, s71", "s_cbranch_scc1 K2_BF")
        def epi_tile(i):
            o = O + 4 * i; t = TT + 4 * i
            a(f"v_pk_mul_f32 {vr(t,2)}, {vr(o,2)}, s[66:67]", f"v_pk_mul_f32 {vr(t+2,2)}, {vr(o+2,2)}, s[66:67]")
            for k in range(4): a(f"v_exp_f32 v{t+k}, v{t+k}")
            a(f"v_pk_add_f32 {vr(t,2)}, {vr(t,2)}, 1.0 op_sel_hi:[1,0]", f"v_pk_add_f32 {vr(t+2,2)}, {vr(t+2,2)}, 1.0 op_sel_hi:[1,0]")
            for k in range(4): a(f"v_rcp_f32 v{t+k}, v{t+k}")
            a(f"v_pk_mul_f32 {vr(t,2)}, {vr(t,2)}, {vr(o,2)}", f"v_pk_mul_f32 {vr(t+2,2)}, {vr(t+2,2)}, {vr(o+2,2)}")
            a(f"v_cvt_pk_bf16_f32 v{o}, v{t}, v{t+1}", f"v_cvt_pk_bf16_f32 v{o+1}, v{t+2}, v{t+3}")
            a(f"buffer_store_dwordx2 {vr(o,2)}, v{OOF}, s[{SO}:{SO+3}], {('s74','s75','s22')[i]} offen {opt.get('oflag', '')}")
        for i in range(3):
            a(f"s_waitcnt lgkmcnt({4-2*i})", mf16(O+4*i, WU2, B+8*i, ACC+4*i), mf16(O+4*i, WU2+4, B+8*i+4, O+4*i))
        epi_tile(0); epi_tile(1)
        a("s_cmp_lg_u32 s73, 0", "s_cbranch_scc1 K2_FIN")
        epi_tile(2)
    elif E8:
        assert opt.get("wsc") and not N4
        WX = P + 16; WA = BE; AR6 = 165
        a(f"v_xor_b32 v3, 64, v{ARX}", "v_and_b32 v2, 48, v0", f"s_add_u32 s64, s75, {L_XS}", f"s_mul_i32 s65, s22, {ASTR}", f"s_add_u32 s65, s65, {L_AGB + 96*ASTR}",
          f"v_add_u32 v{AR6}, s65, v2", "v_add_u32 v2, s64, v2", "s_cmp_eq_u32 s73, 0", "s_waitcnt lgkmcnt(0)")
        a(f"ds_read_b128 {vr(XF,4)}, v{ARX}", f"ds_read_b128 {vr(XF+4,4)}, v3")
        for h in range(2):
            for k in range(2): a(f"ds_read_b128 {vr(WX+8*h+4*k,4)}, v7 offset:{4096*h + 1024*k}")
        a("s_cselect_b64 exec, -1, 0", f"ds_read_b128 {vr(XF+8,4)}, v2", f"ds_read_b128 {vr(XF+12,4)}, v2 offset:64", "s_mov_b64 exec, -1")
        for h in range(2):
            for k in range(2): a(f"ds_read_b128 {vr(WA+8*h+4*k,4)}, v7 offset:{4096*h + 1024*k + 2048}")
        for i in range(16): a(f"v_rcp_f32 v{EX+i}, v{DD+i}")
        a(f"v_pk_mul_f32 v[2:3], {vr(NN,2)}, {vr(DD,2)}")
        for i in range(2, 16, 2): a(f"v_pk_fma_f32 v[2:3], {vr(NN+i,2)}, {vr(DD+i,2)}, v[2:3]")
        a("s_waitcnt lgkmcnt(4)")
        def mx(t, h, k): return mf16(ACC+8*t+4*h, XF+8*t+4*k, WX+8*h+4*k, "0" if k == 0 else ACC+8*t+4*h)
        for i in range(0, 16, 2):
            a(f"v_pk_mul_f32 {vr(NN+i,2)}, {vr(NN+i,2)}, {vr(EX+i,2)}")
            if i % 8 == 0: a(mx(0, i // 8, 0))
        a("s_movk_i32 s64, 0x207", "v_add_f32 v2, v2, v3")
        for i in range(16):
            a(f"v_fmac_f32_dpp v{NN+i}, v{NN+i}, v{MFL} row_shl:4 row_mask:0xf bank_mask:0xf bound_ctrl:0")
            if i % 8 == 0: a(mx(0, i // 8, 1))
        a(f"v_cmp_class_f32 vcc, v2, s64")
        for i in range(8): a(f"v_cvt_pk_bf16_f32 v{EX+i}, v{NN+2*i}, v{NN+2*i+1}")
        a(f"s_mov_b64 exec, s[58:59]", f"ds_write_b128 v{AGA}, {vr(EX,4)} offset:{L_AGB}", f"ds_write_b128 v{AGA}, {vr(EX+4,4)} offset:{L_AGB+16}")
        a("s_mov_b64 exec, vcc", "v_mov_b32 v2, 0", f"ds_write_b32 v2, v5 offset:{L_FLG}", "s_mov_b64 exec, -1", "v_mov_b32 v2, 0")
        a("s_cbranch_scc0 K2_N3", mx(1, 0, 0), mx(1, 1, 0), mx(1, 0, 1), mx(1, 1, 1))
        a.label("K2_N3")
        a("s_waitcnt lgkmcnt(0)", "s_barrier")
        st()
        a.label("K2_EPI")
        B = Z0; O = EX; TT = NN
        a(f"ds_read_b128 {vr(B,4)}, v{ARD} offset:{L_AGB}", f"ds_read_b128 {vr(B+4,4)}, v{ARD} offset:{L_AGB+64}", f"ds_read_b32 v3, v2 offset:{L_FLG}")
        a("s_cmp_eq_u32 s73, 0", "s_cselect_b64 exec, -1, 0", f"ds_read_b128 {vr(B+8,4)}, v{AR6}", f"ds_read_b128 {vr(B+12,4)}, v{AR6} offset:64", "s_mov_b64 exec, -1")
        if opt.get("es"): a("s_waitcnt lgkmcnt(0)", "s_memrealtime s[60:61]")
        def ma(t, h, k): return mf16(O+8*t+4*h, B+8*t+4*k, WA+8*h+4*k, ACC+8*t+4*h if k == 0 else O+8*t+4*h)
        a("s_waitcnt lgkmcnt(4)", ma(0, 0, 0), ma(0, 1, 0), "s_waitcnt lgkmcnt(3)", ma(0, 0, 1), ma(0, 1, 1))
        a("s_cbranch_scc0 K2_N4", "s_waitcnt lgkmcnt(0)", ma(1, 0, 0), ma(1, 1, 0), ma(1, 0, 1), ma(1, 1, 1))
        a.label("K2_N4")
        a("s_waitcnt lgkmcnt(2)", "v_readfirstlane_b32 s23, v3", "s_andn2_b32 s23, s23, s71", "s_cbranch_scc1 K2_BF")
        so = f"s[{SO}:{SO+3}]"
        for g in range(2):
            rs = [O+2*g, O+2*g+1, O+4+2*g, O+5+2*g]; t = TT + 4 * g
            for k in range(4): a(f"v_exp_f32 v{t+k}, v{rs[k]}")
            a(f"v_pk_fma_f32 {vr(t,2)}, {vr(t,2)}, s[66:67], s[66:67]", f"v_pk_fma_f32 {vr(t+2,2)}, {vr(t+2,2)}, s[66:67], s[66:67]")
            for k in range(4): a(f"v_rcp_f32 v{t+k}, v{t+k}")
            a(f"v_pk_mul_f32 {vr(t,2)}, {vr(t,2)}, {vr(rs[0],2)}", f"v_pk_mul_f32 {vr(t+2,2)}, {vr(t+2,2)}, {vr(rs[2],2)}")
            a(f"v_cvt_pk_bf16_f32 v{t}, v{t}, v{t+2}", f"v_cvt_pk_bf16_f32 v{t+1}, v{t+1}, v{t+3}")
            for k in range(2): a(f"buffer_store_dword v{t+k}, v{OOF}, {so}, s74 offen offset:{128*(2*g+k)} {opt.get('oflag', '')}")
        a("s_cmp_lg_u32 s73, 0", "s_cbranch_scc1 K2_FIN")
        t = TT + 8
        a("s_mov_b64 exec, 0xffff", f"v_exp_f32 v{t}, v{O+8}", f"v_exp_f32 v{t+1}, v{O+12}", f"v_pk_fma_f32 {vr(t,2)}, {vr(t,2)}, s[66:67], s[66:67]", f"v_rcp_f32 v{t}, v{t}", f"v_rcp_f32 v{t+1}, v{t+1}",
          f"v_mul_f32 v{t}, v{t}, v{O+8}", f"v_mul_f32 v{t+1}, v{t+1}, v{O+12}", f"v_cvt_pk_bf16_f32 v{t}, v{t}, v{t+1}", f"buffer_store_dword v{t}, v{OOF}, {so}, s75 offen {opt.get('oflag', '')}")
    else:
        n3 = EP & 2
        a(f"v_xor_b32 v3, 64, v{ARX}", "s_waitcnt lgkmcnt(0)")
        if n3: a("s_cmp_eq_u32 s73, 0", "s_cselect_b64 s[44:45], -1, 0")
        for k in range(2): a(f"ds_read_b128 {vr(WU+4*k,4)}, v7 offset:{1024*k}")
        for i in range(3):
            if i == 2 and n3: a("s_mov_b64 exec, s[44:45]")
            a(f"ds_read_b128 {vr(XF+8*i,4)}, v{ARX} offset:{6144*i}", f"ds_read_b128 {vr(XF+8*i+4,4)}, v3 offset:{6144*i}")
        if n3: a("s_mov_b64 exec, -1")
        for k in range(2, 4): a(f"ds_read_b128 {vr(WU+4*k,4)}, v7 offset:{1024*k}")
        for i in range(16): a(f"v_rcp_f32 v{EX+i}, v{DD+i}")
        a(f"v_pk_mul_f32 v[2:3], {vr(NN,2)}, {vr(DD,2)}")
        for i in range(2, 16, 2): a(f"v_pk_fma_f32 v[2:3], {vr(NN+i,2)}, {vr(DD+i,2)}, v[2:3]")
        GR = EP & 4
        if GR:
            a(f"s_mov_b32 s64, {NLN2:#x}", f"s_mov_b32 s65, {NLN2:#x}")
            for i in range(0, 16, 2): a(f"v_pk_mul_f32 {vr(NN+i,2)}, {vr(NN+i,2)}, s[64:65]")
        a("s_waitcnt lgkmcnt(2)")
        nt = 2 if n3 else 3
        mfx = [mf16(ACC+4*i, WU, XF+8*i, "0") for i in range(3)] + [mf16(ACC+4*i, WU+4, XF+8*i+4, ACC+4*i) for i in range(3)]
        for i in range(0, 16, 2):
            a(f"v_pk_mul_f32 {vr(NN+i,2)}, {vr(NN+i,2)}, {vr(EX+i,2)}")
            if i % 4 == 0 and i < 4 * nt: a(mfx[i // 4])
        a("s_movk_i32 s64, 0x207", "v_add_f32 v2, v2, v3")
        for i in range(16):
            a(f"v_fmac_f32_dpp v{NN+i}, v{NN+i}, v{MFL} row_shl:4 row_mask:0xf bank_mask:0xf bound_ctrl:0")
            if i % 4 == 0 and i < 4 * nt: a(mfx[3 + i // 4])
        a(f"v_cmp_class_f32 vcc, v2, s64")
        if N4:
            a(f"s_cmp_eq_u32 s3, {perm.index(11)}", "s_cbranch_scc1 K2_QD")
            a.label("K2_QDR")
            if n3: a("s_cmp_eq_u32 s73, 0")
        for i in range(8): a(f"v_cvt_pk_bf16_f32 v{EX+i}, v{NN+2*i}, v{NN+2*i+1}")
        a(f"s_mov_b64 exec, s[58:59]", f"ds_write_b128 v{AGA}, {vr(EX,4)} offset:{L_AGB}", f"ds_write_b128 v{AGA}, {vr(EX+4,4)} offset:{L_AGB+16}")
        a("s_mov_b64 exec, vcc", "v_mov_b32 v2, 0", f"ds_write_b32 v2, v5 offset:{L_FLG}", "s_mov_b64 exec, -1", "v_mov_b32 v2, 0")
        if n3:
            a("s_cbranch_scc0 K2_N3", mfx[2], mfx[5])
            if not opt.get("wsc") and not GR: a(*[f"v_pk_mul_f32 {vr(ACC+i,2)}, {vr(ACC+i,2)}, s[66:67]" for i in (8, 10)])
            a.label("K2_N3")
        if not opt.get("wsc") and not GR:
            for i in range(0, 4 * nt, 2): a(f"v_pk_mul_f32 {vr(ACC+i,2)}, {vr(ACC+i,2)}, s[66:67]")
        a("s_waitcnt lgkmcnt(0)", "s_barrier")
        st()
        a.label("K2_EPI")
        B = Z0; O = EX; TT = NN; WU2 = WU + 8
        a(f"ds_read_b32 v3, v2 offset:{L_FLG}")
        for i in range(3):
            if i == 2 and n3: a("s_cmp_eq_u32 s73, 0", "s_cselect_b64 exec, -1, 0")
            for s in range(2): a(f"ds_read_b128 {vr(B+8*i+4*s,4)}, v{ARD} offset:{L_AGB + 48*ASTR*i + 64*s}")
        if n3: a("s_mov_b64 exec, -1")
        a("s_waitcnt lgkmcnt(6)", "v_readfirstlane_b32 s23, v3", "s_andn2_b32 s23, s23, s71", "s_cbranch_scc1 K2_BF")
        def epi_tile(i):
            o = O + 4 * i; t = TT + 4 * i
            if GR:
                a(f"v_pk_mul_f32 {vr(t,2)}, {vr(o,2)}, s[66:67]", f"v_pk_mul_f32 {vr(t+2,2)}, {vr(o+2,2)}, s[66:67]")
                for k in range(4): a(f"v_exp_f32 v{t+k}, v{t+k}")
                a(f"v_pk_add_f32 {vr(t,2)}, {vr(t,2)}, 1.0 op_sel_hi:[1,0]", f"v_pk_add_f32 {vr(t+2,2)}, {vr(t+2,2)}, 1.0 op_sel_hi:[1,0]")
            else:
                for k in range(4): a(f"v_exp_f32 v{t+k}, v{o+k}")
                a(f"v_pk_fma_f32 {vr(t,2)}, {vr(t,2)}, s[66:67], s[66:67]", f"v_pk_fma_f32 {vr(t+2,2)}, {vr(t+2,2)}, s[66:67], s[66:67]")
            for k in range(4): a(f"v_rcp_f32 v{t+k}, v{t+k}")
            a(f"v_pk_mul_f32 {vr(t,2)}, {vr(t,2)}, {vr(o,2)}", f"v_pk_mul_f32 {vr(t+2,2)}, {vr(t+2,2)}, {vr(o+2,2)}")
            a(f"v_cvt_pk_bf16_f32 v{o}, v{t}, v{t+1}", f"v_cvt_pk_bf16_f32 v{o+1}, v{t+2}, v{t+3}")
            a(f"buffer_store_dwordx2 {vr(o,2)}, v{OOF}, s[{SO}:{SO+3}], {('s74','s75','s22')[i]} offen {opt.get('oflag', '')}")
        def emf(i): a(f"s_waitcnt lgkmcnt({4-2*i})", mf16(O+4*i, WU2, B+8*i, ACC+4*i), mf16(O+4*i, WU2+4, B+8*i+4, O+4*i))
        if opt.get("es"): a("s_waitcnt lgkmcnt(0)", "s_memrealtime s[60:61]")
        for i in range(nt): emf(i)
        if n3:
            a("s_cmp_lg_u32 s73, 0", "s_cbranch_scc1 K2_N4"); emf(2); a.label("K2_N4")
        epi_tile(0); epi_tile(1)
        a("s_cmp_lg_u32 s73, 0", "s_cbranch_scc1 K2_FIN")
        epi_tile(2)
    a.label("K2_FIN")
    if opt.get("es"): a("s_memrealtime s[62:63]")
    if st.on: a("s_waitcnt vmcnt(0)")
    if opt.get("edly") is not None:
        a("s_cmp_lg_u32 s3, 0", "s_cbranch_scc1 K2_END", "s_memrealtime s[40:41]", "s_waitcnt lgkmcnt(0)")
        a.label("K2_DG")
        a("s_sleep 1", "s_memrealtime s[42:43]", "s_waitcnt lgkmcnt(0)", "s_sub_u32 s42, s42, s40", f"s_cmp_lt_u32 s42, {opt['edly']}", "s_cbranch_scc1 K2_DG")
    if opt.get("diag"):
        kind, M = opt["diag"]
        a("s_cmp_lg_u32 s3, 0", "s_cbranch_scc1 K2_END", "s_memrealtime s[40:41]", "s_lshl_b32 s42, s2, 10", f"s_add_u32 s42, s42, {WS_STAMP}", "s_add_u32 s44, s20, s42", "s_addc_u32 s45, s21, 0",
          "v_mov_b32 v2, 0", "global_load_dwordx4 v[8:11], v2, s[44:45]", "global_load_dwordx4 v[12:15], v2, s[44:45] offset:16", "s_waitcnt vmcnt(0) lgkmcnt(0)",
          "v_readfirstlane_b32 s46, v8", "v_readfirstlane_b32 s47, v13", "v_readfirstlane_b32 s48, v9", "v_readfirstlane_b32 s49, v10", "s_nop 4")
        a({"k1": "s_sub_u32 s46, s47, s46", "k12": "s_sub_u32 s46, s78, s46", "k2": "s_sub_u32 s46, s40, s78", "tot": "s_sub_u32 s46, s40, s46", "dst": "s_sub_u32 s46, s48, s46", "src": "s_sub_u32 s46, s49, s46",
           "kb3": "s_sub_u32 s46, s92, s80", "reg": "s_lshr_b32 s46, s77, 22\ns_sub_u32 s46, s46, 8", "xcc": "s_getreg_b32 s46, hwreg(HW_REG_XCC_ID)\ns_xor_b32 s46, s46, s2\ns_and_b32 s46, s46, 7", "ent": "s_sub_u32 s46, s80, s78"}.get(kind, "s_cmp_lg_u32 s2, 5\ns_cbranch_scc1 K2_END"))
        if kind.startswith("g"):
            a(f"s_add_u32 s44, s20, {WS_STAMP}", "s_addc_u32 s45, s21, 0", "v_lshlrev_b32 v2, 6, v0", "v_mov_b32 v16, 0", "v_mov_b32 v17, -1", "v_mov_b32 v18, -1", "v_mov_b32 v19, 0", "s_mov_b32 s47, 0")
            a.label("K2_DL")
            a("global_load_dword v8, v2, s[44:45]", f"global_load_dword v9, v2, s[44:45] offset:{opt.get('dk', 5)*4}", "v_add_u32 v2, 4096, v2", "s_waitcnt vmcnt(0)", "v_sub_u32 v8, s78, v8", "v_sub_u32 v9, s78, v9",
              "v_max_u32 v16, v16, v8", "v_min_u32 v17, v17, v8", "v_min_u32 v18, v18, v9", "v_max_u32 v19, v19, v9", "s_add_u32 s47, s47, 1", "s_cmp_lt_u32 s47, 63", "s_cbranch_scc1 K2_DL")
            a("s_mov_b32 s47, 0", "s_mov_b32 s50, 0", "s_mov_b32 s51, -1", "s_mov_b32 s52, -1", "s_mov_b32 s53, 0")
            a.label("K2_DM")
            a("v_readlane_b32 s54, v16, s47", "v_readlane_b32 s55, v17, s47", "v_readlane_b32 s56, v18, s47", "v_readlane_b32 s57, v19, s47", "s_max_u32 s50, s50, s54", "s_min_u32 s51, s51, s55", "s_min_u32 s52, s52, s56", "s_max_u32 s53, s53, s57",
              "s_add_u32 s47, s47, 1", "s_cmp_lt_u32 s47, 64", "s_cbranch_scc1 K2_DM")
            a({"gskew": "s_sub_u32 s46, s50, s51", "gk1": "s_sub_u32 s46, s50, s52", "ggap": "s_mov_b32 s46, s52", "g0": "s_mov_b32 s46, 0", "gfirst": "s_sub_u32 s46, s50, s53"}[kind])
            a("s_memrealtime s[40:41]", "s_waitcnt lgkmcnt(0)")
        if opt.get("thr"): a(f"s_cmp_gt_u32 s46, {opt['thr']}", f"s_cselect_b32 s46, {M}, 0")
        else: a("s_min_u32 s46, s46, 4000", f"s_mul_i32 s46, s46, {M}")
        a.label("K2_DG")
        a("s_sleep 2", "s_memrealtime s[42:43]", "s_waitcnt lgkmcnt(0)", "s_sub_u32 s42, s42, s40", "s_cmp_lt_u32 s42, s46", "s_cbranch_scc1 K2_DG")
    else: st.flush(20, 3, 2, 3)
    a.label("K2_END")
    a("s_endpgm")

    if N4:
        a.label("K2_QD")
        for i in range(16): a(f"v_add_f32_dpp v{NN+i}, v{NN+i}, v{NN+i} row_shl:8 row_mask:0x8 bank_mask:0x1")
        a("s_branch K2_QDR")
    a.label("K2_G0R")
    a(f"v_mov_b32 v{IP}, v{EX+3}", *gather(0, IP), "s_branch K2_G0D")
    a.label("K2_DONE0")
    a("s_waitcnt vmcnt(0) lgkmcnt(0)", "s_branch K2_DONE")
    a.label("K2_MARK")
    T = Z1
    a("s_mov_b64 exec, vcc", f"v_mov_b32 v{T}, 0", f"v_mov_b32 v{T+1}, 1", f"ds_add_rtn_u32 v{T}, v{T}, v{T+1} offset:{L_OVC}", "s_waitcnt lgkmcnt(0)",
      f"v_and_b32 v{T}, 255, v{T}", f"v_lshlrev_b32 v{T}, 2, v{T}", f"ds_write_b32 v{T}, v0 offset:{L_OVL}", "s_mov_b64 exec, -1", "s_branch K2_MR")

    SD, SS, SE = 40, 44, 48
    a.label("K2_RESCAN")
    srd(a, SD, 10, 11, E * 4); srd(a, SS, 8, 9, E * 4); srd(a, SE, 6, 7, E * 2)
    a("s_mov_b32 s52, 0", f"s_mul_i32 s53, {BK}, {NB}", "s_min_u32 s23, s23, 256", "s_waitcnt lgkmcnt(0)")
    a.label("K2_RS1")
    T = Z1 + 8
    a("s_lshl_b32 s54, s52, 2", f"v_mov_b32 v{T}, s54", f"ds_read_b32 v{T}, v{T} offset:{L_OVL}", "s_waitcnt lgkmcnt(0)", f"v_readfirstlane_b32 s54, v{T}",
      "s_and_b32 s55, s54, 31", "s_lshl_b32 s55, s55, 3", "s_lshr_b32 s54, s54, 5", "s_add_u32 s54, s54, s55",
      f"s_mul_i32 s54, s54, {CH}", f"s_sub_u32 s55, {E}, s54", f"s_min_u32 s55, s55, {CH}",
      f"v_mov_b32 v{T}, v0")
    a.label("K2_RS2")
    a(f"v_add_u32 v{T+1}, s54, v{T}", f"v_lshlrev_b32 v{T+2}, 1, v{T+1}", f"v_lshlrev_b32 v{T+1}, 2, v{T+1}",
      f"buffer_load_dword v{T+3}, v{T+1}, s[{SD}:{SD+3}], 0 offen", f"buffer_load_dword v{T+4}, v{T+1}, s[{SS}:{SS+3}], 0 offen",
      f"buffer_load_ushort v{T+5}, v{T+2}, s[{SE}:{SE+3}], 0 offen", "s_waitcnt vmcnt(0)",
      f"v_subrev_u32 v{T+3}, s53, v{T+3}", f"v_cmp_gt_u32 vcc, {NB}, v{T+3}", f"v_cmp_gt_u32 s[56:57], s55, v{T}", "s_and_b64 exec, vcc, s[56:57]",
      f"v_lshlrev_b32 v{T+3}, 2, v{T+3}", f"ds_add_rtn_u32 v{T+3}, v{T+3}, v5 offset:{L_CTR}", f"v_lshl_or_b32 v{T+4}, v{T+5}, 16, v{T+4}",
      "s_waitcnt lgkmcnt(0)", f"v_min_u32 v{T+3}, s65, v{T+3}", f"ds_write_b32 v{T+3}, v{T+4}", "s_mov_b64 exec, -1",
      f"v_add_u32 v{T}, 768, v{T}", f"v_cmp_gt_u32 vcc, s55, v{T}", "s_cbranch_vccnz K2_RS2")
    a("s_add_u32 s52, s52, 1", "s_cmp_lt_u32 s52, s23", "s_cbranch_scc1 K2_RS1")
    a("s_mov_b32 s68, -1", "s_waitcnt lgkmcnt(0)", "s_barrier", "s_cmp_eq_u32 s73, 0", "s_cbranch_scc1 K2_AB1T", "s_branch K2_AB1")

    a.label("K2_BF")
    T = Z0
    a("s_waitcnt vmcnt(0) lgkmcnt(0)")
    srd(a, SD, 10, 11, E * 4); srd(a, SS, 8, 9, E * 4); srd(a, SE, 6, 7, E * 2); srd(a, 52, 12, 13, 129 * 128)
    a(f"s_mov_b32 s{SX}, s{SPT}", f"s_and_b32 s{SX+1}, s{SPT+1}, 0xffff", f"s_mov_b32 s{SX+2}, {N*128}", f"s_mov_b32 s{SX+3}, 0x20000")
    for i in range(4): a(f"v_mov_b32 v{T+i}, 0")
    a(f"v_lshlrev_b32 v{T+4}, 4, v0", f"v_add_u32 v{T+4}, {L_ELL}, v{T+4}")
    for i in range(3): a(f"ds_write_b128 v{T+4}, {vr(T,4)} offset:{12288*i}")
    LN, F4, F2, PO, W3 = T + 4, T + 5, T + 6, T + 7, T + 8
    a(f"v_and_b32 v{LN}, 63, v0", f"v_lshlrev_b32 v{F4}, 2, v{LN}", f"v_lshlrev_b32 v{F2}, 1, v{LN}",
      f"v_and_b32 v{PO}, 8, v{LN}", f"v_lshlrev_b32 v{PO}, 3, v{PO}", f"v_and_b32 v{T}, 48, v{LN}", f"v_add_u32 v{PO}, v{PO}, v{T}",
      f"v_and_b32 v{T}, 7, v{LN}", f"v_lshl_add_u32 v{PO}, v{T}, 1, v{PO}",
      "s_movk_i32 s56, 16384", f"buffer_load_ushort v{W3}, v{F2}, s[52:55], s56 offen", "s_waitcnt vmcnt(0) lgkmcnt(0)",
      f"v_lshlrev_b32 v{W3}, 16, v{W3}", f"v_mul_f32 v{W3}, s66, v{W3}",
      f"s_mul_i32 s57, {BK}, {NB}", "s_mov_b32 s56, s3", "s_barrier")
    a.label("K2_BF1")
    DV, SV, EV = T + 9, T + 10, T + 11
    a("s_lshl_b32 s58, s56, 8", "s_lshl_b32 s59, s56, 7",
      f"buffer_load_dword v{DV}, v{F4}, s[{SD}:{SD+3}], s58 offen", "s_waitcnt vmcnt(0)",
      f"v_subrev_u32 v{DV}, s57, v{DV}", f"v_cmp_gt_u32 vcc, {NB}, v{DV}", "s_cbranch_vccz K2_BF3",
      f"buffer_load_dword v{SV}, v{F4}, s[{SS}:{SS+3}], s58 offen", f"buffer_load_ushort v{EV}, v{F2}, s[{SE}:{SE+3}], s59 offen",
      "s_mov_b64 s[60:61], vcc", "s_waitcnt vmcnt(0)")
    a.label("K2_BF2")
    a("s_ff1_i32_b64 s58, s[60:61]", "s_bitset0_b64 s[60:61], s58",
      f"v_readlane_b32 s59, v{SV}, s58", f"v_readlane_b32 s62, v{DV}, s58", f"v_readlane_b32 s63, v{EV}, s58",
      "s_min_u32 s59, s59, %d" % (N - 1), "s_lshl_b32 s59, s59, 7", f"buffer_load_ushort v{T}, v{PO}, s[{SX}:{SX+3}], s59 offen",
      f"s_mul_i32 s58, s62, {QSTR}", f"v_add_u32 v{T+1}, s58, v{F4}", f"ds_read_b32 v{T+1}, v{T+1} offset:{L_QS}",
      "s_lshl_b32 s63, s63, 16", "s_lshl_b32 s62, s62, 8", f"s_add_u32 s62, s62, {L_ELL}", f"v_add_u32 v{T+2}, s62, v{F4}",
      "s_waitcnt vmcnt(0) lgkmcnt(0)",
      f"v_lshlrev_b32 v{T}, 16, v{T}", f"v_add_f32 v{T}, v{T}, v{T+1}", f"v_fma_f32 v{T}, s63, v{W3}, v{T}",
      f"v_exp_f32 v{T+1}, v{T}", f"v_add_f32 v{T+1}, 1.0, v{T+1}", f"v_rcp_f32 v{T+1}, v{T+1}", *([] if EP and not EP & 4 else [f"v_mul_f32 v{T}, {NLN2:#x}, v{T}"]), f"v_mul_f32 v{T}, v{T}, v{T+1}",
      f"ds_add_f32 v{T+2}, v{T}", "s_cmp_lg_u64 s[60:61], 0", "s_cbranch_scc1 K2_BF2")
    a.label("K2_BF3")
    a("s_add_u32 s56, s56, 12", f"s_cmp_lt_u32 s56, {E//64}", "s_cbranch_scc1 K2_BF1")
    a("s_waitcnt lgkmcnt(0)", "s_barrier", f"v_mov_b32 v{T+4}, v0")
    a.label("K2_BF4")
    a(f"v_lshlrev_b32 v{T+5}, 3, v{T+4}", f"v_add_u32 v{T+5}, {L_ELL}, v{T+5}", f"ds_read_b64 {vr(T,2)}, v{T+5}",
      f"v_lshrrev_b32 v{T+5}, 5, v{T+4}", f"v_mul_u32_u24 v{T+5}, {ASTR}, v{T+5}", f"v_and_b32 v{T+6}, 31, v{T+4}", f"v_lshl_add_u32 v{T+5}, v{T+6}, 2, v{T+5}",
      "s_waitcnt lgkmcnt(0)", f"v_cvt_pk_bf16_f32 v{T}, v{T}, v{T+1}", f"ds_write_b32 v{T+5}, v{T} offset:{L_AGB}",
      f"v_add_u32 v{T+4}, 768, v{T+4}", f"v_cmpx_gt_u32 vcc, {NB*32}, v{T+4}", "s_cbranch_execnz K2_BF4")
    a("s_mov_b64 exec, -1", "s_mov_b32 s71, -1", "s_waitcnt lgkmcnt(0)", "s_barrier", "s_branch K2_EPI")
    return a.lines

def kd(name, vg, sg=102):
    return f""".amdhsa_kernel {name}
  .amdhsa_next_free_vgpr {vg}
  .amdhsa_next_free_sgpr {sg}
  .amdhsa_accum_offset {vg}
  .amdhsa_group_segment_fixed_size 0
  .amdhsa_kernarg_size 72
  .amdhsa_user_sgpr_count 2
  .amdhsa_user_sgpr_kernarg_segment_ptr 1
  .amdhsa_system_sgpr_workgroup_id_x 1
.end_amdhsa_kernel"""

def build(opt=None):
    opt = opt or {}
    out = ["; mpnn edge MLP: K1 bins edges by destination bucket and builds the P' table, K2 aggregates and updates",
           f"; @launch kernel=mpnn_bin_kernel grid=(256,1,1) block=(1024,1,1) lds={K1_LDS}",
           f"; @launch kernel=mpnn_msg_kernel grid=(256,1,1) block=(768,1,1) lds={K2_LDS}",
           '.amdgcn_target "amdgcn-amd-amdhsa--gfx950"', ".text"]
    for name, fn in (("mpnn_bin_kernel", gen_k1), ("mpnn_msg_kernel", gen_k2)):
        lines, nn = fix_hazards(fn(opt), verbose=opt.get("verbose"))
        out += [f".globl {name}", ".p2align 8", f".type {name},@function"] + lines
    out += ['.section .rodata,"a"', ".p2align 6", kd("mpnn_bin_kernel", 128), ".p2align 6", kd("mpnn_msg_kernel", 168)]
    return "\n".join(out) + "\n"

if __name__ == "__main__":
    import argparse
    ap = argparse.ArgumentParser(); ap.add_argument("-o", default="standalone__mpnn_edge_mlp__graph.s")
    ap.add_argument("--stamp", type=int, default=0); ap.add_argument("-v", action="store_true"); ap.add_argument("--opt", default="{}")
    g = ap.parse_args()
    open(g.o, "w").write(build({"stamp": g.stamp, "verbose": g.v, **eval(g.opt)}))
```
